```python
import torch

def _softmax(x, axis=-1):
    return torch.softmax(x, dim=axis)
def _gelu(x):
    return torch.nn.functional.gelu(x, approximate="tanh")
def _silu(x):
    return torch.nn.functional.silu(x)
def _sigmoid(x):
    return torch.sigmoid(x)
def _layernorm(x, axis=-1, eps=1e-5):
    m = x.mean(dim=axis, keepdim=True)
    v = x.var(dim=axis, keepdim=True, unbiased=False)
    return (x - m) / torch.sqrt(v + eps)
def _scatter_add(tgt, idx, src, axis=0):
    return tgt.clone().index_add_(axis, idx, src)
def _segment_sum(src, seg, n):
    out = torch.zeros((n,) + src.shape[1:], dtype=src.dtype)
    return out.index_add_(0, seg, src)
def _pad(x, pw):
    flat = tuple(v for pair in reversed(pw) for v in pair)
    return torch.nn.functional.pad(x, flat)

kernel_name = 'gated_mix__sliding_block__sliding_local_dilated__prompt'

def setup_inputs():

    _w = (lambda a: (lambda t: t.to(torch.bfloat16) if t.is_floating_point() else t)(torch.as_tensor(a)))
    def _A_setup():
        B, S, D = 1, 2048, 640
        return {
            "x": _w((lambda *s: torch.randn(*s, dtype=torch.bfloat16) * 0.05)(B, S, D)),
            "wqkv": _w((lambda *s: torch.randn(*s, dtype=torch.bfloat16) * 0.8)(D, 3 * D)),
            "wo": _w((lambda *s: torch.randn(*s, dtype=torch.bfloat16) * 0.05)(D, D)),
        }
    _A_in = _A_setup()

    def _B_setup():
        B, S, D = 1, 2048, 640
        return {
            "x": _w((lambda *s: torch.randn(*s, dtype=torch.bfloat16) * 0.05)(B, S, D)),
            "wqkv": _w((lambda *s: torch.randn(*s, dtype=torch.bfloat16) * 0.8)(D, 3 * D)),
            "wo": _w((lambda *s: torch.randn(*s, dtype=torch.bfloat16) * 0.05)(D, D)),
        }
    _B_in = _B_setup()

    return {
        "A_x": _A_in["x"],
        "A_wqkv": _A_in["wqkv"],
        "A_wo": _A_in["wo"],
        "B_x": _B_in["x"],
        "B_wqkv": _B_in["wqkv"],
        "B_wo": _B_in["wo"],
        "gate_w": _w((lambda *s: torch.randn(*s, dtype=torch.bfloat16) * 0.05)(640) * 16.0),
    }

def reference(A_x, A_wqkv, A_wo, B_x, B_wqkv, B_wo, gate_w):
    def _A_ref(x, wqkv, wo):
        B, S, D = x.shape
        H = 32; Dh = D // H; W = 256
        qkv = (lambda x, *d: x.permute(*d))((x @ wqkv).reshape(B, S, 3, H, Dh), 2, 0, 3, 1, 4)
        q, k, v = qkv[0], qkv[1], qkv[2]
        scores = torch.einsum("bhqd,bhkd->bhqk", q, k) * (Dh ** -0.5)
        idx = torch.arange(S)
        mask = (idx[:, None] - idx[None, :] >= 0) & (idx[:, None] - idx[None, :] < W)
        scores = torch.where(mask[None, None], scores, -1e9)
        p = _softmax(scores, axis=-1)
        o = torch.einsum("bhqk,bhkd->bhqd", p, v)
        return (lambda x, *d: x.permute(*d))(o, 0, 2, 1, 3).reshape(B, S, D) @ wo

    def _B_ref(x, wqkv, wo):
        B, S, D = x.shape
        H = 32; Dh = D // H
        W, dil = 8, 2
        qkv = (lambda x, *d: x.permute(*d))((x @ wqkv).reshape(B, S, 3, H, Dh), 2, 0, 3, 1, 4)
        q, k, v = qkv[0], qkv[1], qkv[2]
        scale = Dh ** -0.5
        pos = torch.arange(S)
        off = torch.arange(W) * dil
        idx = pos[:, None] - off[None, :]
        mask = idx >= 0
        idx_c = torch.where(mask, idx, 0).reshape(-1)
        kg = k[:, :, idx_c, :].reshape(B, H, S, W, Dh)
        vg = v[:, :, idx_c, :].reshape(B, H, S, W, Dh)
        logits = torch.einsum("bhsd,bhswd->bhsw", q, kg) * scale
        logits = torch.where(mask[None, None, :, :], logits, -1e9)
        attn = _softmax(logits, axis=-1)
        o = torch.einsum("bhsw,bhswd->bhsd", attn, vg)
        return (lambda x, *d: x.permute(*d))(o, 0, 2, 1, 3).reshape(B, S, D) @ wo

    x = A_x
    g = _sigmoid((x * gate_w).sum(-1, keepdims=True))
    a = _A_ref(x, A_wqkv, A_wo)
    b = _B_ref(x, B_wqkv, B_wo)
    return g * a + (1 - g) * b
```

```python
import re
REG_RE = re.compile(r'(?<![\w.])([vas])\[(\d+):(\d+)\]|(?<![\w.])([vas])(\d+)(?![\w\[])|(?<![\w.])(vcc|exec|m0)(?:_lo|_hi)?(?![\w])')
TRANS = ('v_exp_', 'v_log_', 'v_rcp_', 'v_rsq_', 'v_sqrt_', 'v_sin_', 'v_cos_')

def regs_of(op):
    out = []
    for m in REG_RE.finditer(op):
        if m.group(1):
            out += [m.group(1) + str(i) for i in range(int(m.group(2)), int(m.group(3)) + 1)]
        elif m.group(4):
            out.append(m.group(4) + m.group(5))
        else:
            out.append(m.group(6))
    return out

def split_ops(s):
    ops, depth, cur = [], 0, ''
    for ch in s:
        if ch in '[(': depth += 1
        if ch in '])': depth -= 1
        if ch == ',' and depth == 0:
            ops.append(cur.strip()); cur = ''
        else:
            cur += ch
    if cur.strip(): ops.append(cur.strip())
    return ops

class Ins:
    __slots__ = ('text', 'mn', 'kind', 'defs', 'uses', 'tok', 'passes', 'srcc', 'srcab', 'wide_data', 'dpp', 'lds')
    def __init__(self, text, tok=None):
        self.text = text; self.tok = tok
        self.defs = set(); self.uses = set(); self.passes = 0; self.srcc = (); self.srcab = set(); self.wide_data = set(); self.dpp = False; self.lds = False
        t = text.split(';')[0].strip()
        if not t or t.startswith('.'):
            self.kind = 'none'; self.mn = ''; return
        if t.endswith(':'):
            self.kind = 'label'; self.mn = ''; return
        if t.startswith('@'):
            self.kind = 'pseudo'; self.mn = t.split()[0]; return
        p = t.split(None, 1); mn = p[0]; self.mn = mn
        ops = split_ops(p[1]) if len(p) > 1 else []
        R = [regs_of(o) for o in ops]
        allr = lambda l: set(x for r in l for x in r)
        if mn.startswith('v_mfma'):
            self.kind = 'mfma'; self.defs = set(R[0]); self.uses = allr(R[1:]); self.srcc = tuple(R[3]); self.srcab = set(R[1]) | set(R[2])
            self.passes = 8 if '32x32' in mn else 4
        elif mn.startswith('v_'):
            self.kind = 'trans' if mn.startswith(TRANS) else 'valu'
            self.dpp = ('row_' in t or 'quad_perm' in t or 'wave_' in t)
            if mn.startswith('v_permlane') and 'swap' in mn:
                self.defs = allr(R[:2]); self.uses = allr(R[:2])
            elif mn.startswith(('v_add_co', 'v_sub_co', 'v_addc_co', 'v_subb_co')):
                self.defs = allr(R[:2]); self.uses = allr(R[2:])
            elif mn == 'v_nop':
                pass
            else:
                self.defs = set(R[0]); self.uses = allr(R[1:])
                if mn.startswith(('v_fmac', 'v_dot2c', 'v_writelane')) or self.dpp: self.uses |= self.defs
            self.uses.add('exec')
        elif mn.startswith('ds_'):
            self.kind = 'ds'
            if mn.startswith(('ds_read', 'ds_bpermute', 'ds_swizzle')):
                self.defs = set(R[0]); self.uses = allr(R[1:])
            else:
                self.uses = allr(R)
        elif mn.startswith(('buffer_', 'global_')):
            self.kind = 'vm'
            if mn.startswith(('buffer_inv', 'buffer_wbl2')):
                pass
            elif 'load' in mn:
                if re.search(r'\blds\b', t):
                    self.lds = True; self.uses = allr(R) | {'m0'}
                else:
                    self.defs = set(R[0]); self.uses = allr(R[1:])
            else:
                self.uses = allr(R)
                if 'x4' in mn or 'x3' in mn:
                    self.wide_data = set(R[0] if mn.startswith('buffer_') else R[1])
        elif mn.startswith(('s_load', 's_memtime', 's_memrealtime', 's_buffer_load')):
            self.kind = 'smem'; self.defs = set(R[0]); self.uses = allr(R[1:])
        elif mn == 's_waitcnt':
            self.kind = 'wait'
        elif mn == 's_nop':
            self.kind = 'nop'
        elif mn.startswith(('s_cbranch', 's_branch', 's_endpgm', 's_setpc', 's_barrier', 's_sleep', 's_setprio')):
            self.kind = 'ctl'
        elif mn.startswith('s_'):
            self.kind = 'salu'
            if mn.startswith(('s_cmp', 's_bitcmp')):
                self.uses = allr(R)
            else:
                self.defs = set(R[0]); self.uses = allr(R[1:])
                if 'saveexec' in mn: self.defs.add('exec')
        else:
            raise ValueError('unknown instr: ' + text)

class Tok:
    pass

class Stream:
    def __init__(self): self.l = []
    def __call__(self, s, tok=None):
        lines = [x.strip() for x in s.strip('\n').split('\n')]
        lines = [x for x in lines if x]
        for x in lines:
            self.l.append(Ins(x, tok))
        return self
    def vm(self, s):
        t = Tok(); self.l.append(Ins(s.strip(), t)); return t
    def wait(self, *toks):
        i = Ins('@wait'); i.tok = toks; self.l.append(i)
    def extend(self, o):
        self.l += o.l if isinstance(o, Stream) else o
    def drain(self):
        self('s_waitcnt vmcnt(0) lgkmcnt(0)')

def parse_wait(text):
    vm = re.search(r'vmcnt\((\d+)\)', text); lg = re.search(r'lgkmcnt\((\d+)\)', text)
    return (int(vm.group(1)) if vm else None, int(lg.group(1)) if lg else None)

def resolve_waits(l):
    out = []; vq = []; dq = []; smem = []
    for ins in l:
        nv = nd = None
        def need(q, pred):
            for k in range(len(q) - 1, -1, -1):
                if pred(q[k]): return len(q) - 1 - k
            return None
        if ins.kind == 'pseudo':
            if ins.mn == '@wait':
                toks = ins.tok
                nv = need(vq, lambda o: o.tok in toks); nd = need(dq, lambda o: o.tok in toks)
            elif ins.mn == '@reset':
                vq.clear(); dq.clear(); smem.clear(); out.append(ins); continue
            else:
                out.append(ins); continue
        elif ins.kind == 'wait':
            a, b = parse_wait(ins.text)
            if a is not None: del vq[:max(0, len(vq) - a)]
            if b is not None:
                if b == 0: smem.clear()
                del dq[:max(0, len(dq) - b)]
            out.append(ins); continue
        elif ins.kind in ('none', 'label', 'nop'):
            out.append(ins); continue
        else:
            touched = ins.uses | ins.defs
            nv = need(vq, lambda o: o.defs & touched); nd = need(dq, lambda o: o.defs & touched)
            if any(o.defs & touched for o in smem): nd = 0
        if nd is not None and smem: nd = 0
        if nv is not None or nd is not None:
            w = 's_waitcnt'
            if nv is not None:
                nv = min(nv, 63); w += ' vmcnt(%d)' % nv; del vq[:max(0, len(vq) - nv)]
            if nd is not None:
                nd = min(nd, 15); w += ' lgkmcnt(%d)' % nd; del dq[:max(0, len(dq) - nd)]
                if nd == 0: smem.clear()
            out.append(Ins(w))
        if ins.kind == 'pseudo': continue
        out.append(ins)
        if ins.kind == 'vm': vq.append(ins)
        elif ins.kind == 'ds': dq.append(ins)
        elif ins.kind == 'smem': smem.append(ins)
    return out

def is_sg(r): return r[0] == 's' or r == 'vcc'
def required(p, c):
    n = 0
    pv = p.kind in ('valu', 'trans'); cv = c.kind in ('valu', 'trans')
    if pv:
        vd = {r for r in p.defs if r[0] in 'va' and r != 'vcc'}
        sd = {r for r in p.defs if is_sg(r)}
        if c.kind == 'mfma' and vd & c.uses: n = max(n, 2)
        if cv and vd & c.uses:
            if c.mn.startswith(('v_readlane', 'v_readfirstlane')): n = max(n, 1)
            if c.mn.startswith('v_permlane') or c.dpp: n = max(n, 2)
            if p.kind == 'trans' and c.kind != 'trans': n = max(n, 1)
            if p.mn.startswith('v_dot'):
                n = max(n, 0 if (c.mn == p.mn and not (vd & (c.uses - c.defs))) else 3)
        if cv and p.mn.startswith('v_dot') and vd & c.defs and c.mn != p.mn: n = max(n, 3)
        if sd & c.uses:
            if cv: n = max(n, 4 if c.mn.startswith(('v_readlane', 'v_writelane')) else 2)
            if c.kind == 'vm': n = max(n, 5)
        if 'exec' in p.defs: n = max(n, 5)
    elif p.kind == 'mfma':
        big = {4: 8, 8: 12}[p.passes]
        if c.kind == 'mfma':
            if p.defs & c.srcab: n = max(n, big)
            if p.defs & set(c.srcc):
                if not (set(c.srcc) == p.defs and c.passes == p.passes): n = max(n, big - 2)
            elif p.defs & c.defs and not (p.defs == c.defs and c.passes == p.passes): n = max(n, big - 2)
        elif c.kind in ('valu', 'trans', 'vm', 'ds'):
            if p.defs & (c.uses | c.defs): n = max(n, big)
            if cv and set(p.srcc) & c.defs: n = max(n, {4: 3, 8: 7}[p.passes])
    elif p.kind == 'salu':
        if 'm0' in p.defs and c.kind == 'vm' and c.lds: n = max(n, 1)
        if 'm0' in p.defs and c.mn.startswith(('v_writelane', 'v_readlane')) and 'm0' in c.uses: n = max(n, 1)
    elif p.kind == 'vm':
        if p.wide_data & c.defs: n = max(n, 2 if cv or c.kind == 'mfma' else 1)
    return n

def pad_hazards(l, stats=None):
    out = []
    for ins in l:
        if ins.kind in ('none', 'label', 'pseudo'):
            out.append(ins); continue
        dist = 0; need = 0
        for p in reversed(out):
            if p.kind in ('none', 'label', 'pseudo'): continue
            if dist >= 12: break
            r = required(p, ins)
            need = max(need, r - dist)
            dist += (int(p.text.split()[1]) + 1) if p.kind == 'nop' else 1
        if need > 0:
            out.append(Ins('s_nop %d' % (need - 1)))
            if stats is not None: stats.append((need, ins.text))
        out.append(ins)
    return out

def finalize(stream, stats=None):
    l = resolve_waits(stream.l)
    l = pad_hazards(l, stats)
    return [('' if i.kind == 'label' else '    ') + i.text for i in l if i.kind != 'pseudo']

def weave(slots, side, lo=0, hi=None, per=None):
    items = side.l if isinstance(side, Stream) else side
    if hi is None: hi = len(slots)
    n = hi - lo; m = len(items)
    for k, it in enumerate(items):
        s = lo + (k * n // m if per is None else k // per)
        assert s < hi, "side stream does not fit"
        if isinstance(it, list): slots[s] += it
        else: slots[s].append(it)
```

```python
import sys, math, struct
from fw import *

NAME = "gated_mix__sliding_block__sliding_local_dilated__prompt"
STAMPS = '--stamps' in sys.argv
OUT = [a for a in sys.argv[1:] if not a.startswith('--')]
OUT = OUT[0] if OUT else 'k.s'

GRP = 2048 * 16
QKV = [0, 240 * GRP]
O_OFF = 480 * GRP
WOF = O_OFF + 2 * 32 * 128 * 640
G_OFF = WOF + 64 * 25600
FLG = G_OFF + 8192
F1 = [FLG, FLG + 2048]
F2 = [FLG + 4096, FLG + 5120]
WS_SIZE = FLG + 8192
STAMP_OFF = WS_SIZE
BIG = 0x40000000
L_W = 0
L_X = 65536
GS = 8192 + 64
L_KA = L_X; L_VA = L_X + 3 * GS; L_ONE = L_VA + 3 * GS
L_VB = 131072
VBW = 4608
LDS_BYTES = 160 * 1024
assert L_ONE + 8192 <= L_VB

def f32(x): return '0x%08x' % struct.unpack('<I', struct.pack('<f', x))[0]
QSCALE = (20 ** -0.5) * math.log2(math.e)
NEGINF = '0xff800000'

sX, sWA, sWB, sWS, sOUT, sDBG, sTMP = 's[4:7]', 's[8:11]', 's[12:15]', 's[16:19]', 's[20:23]', 's[24:27]', 's[28:31]'
s_xcd, s_t, s_rb, s_cb, s_w = 's32', 's33', 's34', 's35', 's36'
s_t0, s_t1, s_t2, s_t3 = 's37', 's38', 's39', 's40'
s_scale, s_stb, s_mW, s_mX = 's41', 's42', 's43', 's44'
s_hd, s_r2, s_gF, s_gS, s_so, s_q0 = 's45', 's46', 's47', 's48', 's49', 's50'
s_R, s_C, s_cnt, s_f1 = 's51', 's52', 's53', 's54'
s_ob = 's55'
SW0, SX0 = 60, 70
ST0 = 80
v_lane = 'v1'
VWD, VXD, VWR, VXR = 2, 6, 10, 14
v_st, v_flag, v_one, v_pres, v_padr, v_tmp = 'v18', 'v19', 'v20', 'v21', 'v22', 'v23'
v_t1, v_t2, v_t3, v_t4 = 'v58', 'v59', 'v60', 'v61'
v_l16, v_big = 'v62', 'v63'
ACC = [64, 128]
M_FAR, M_DIAG, MB_DIAG, MB_PREV, MB_PREV0 = 192, 208, 224, 232, 240
AW = 160

def vr(b, n): return 'v[%d:%d]' % (b, b + n - 1)
def ar(b, n): return 'a[%d:%d]' % (b, b + n - 1)

S = Stream()
tail = Stream()
nstamp = [0]
def stamp(st=None):
    if STAMPS:
        (st or S)('s_memrealtime s[%d:%d]' % (ST0 + 2 * nstamp[0], ST0 + 2 * nstamp[0] + 1))
    nstamp[0] += 1
nlab = [0]
def lab(p):
    nlab[0] += 1
    return 'L_%s_%d' % (p, nlab[0])

def poll_issue(st, srd, soff):
    st('buffer_load_dword %s, %s, %s, %s offen sc1' % (v_pres, v_padr, srd, soff))
def poll_check(st, srd, soff):
    l = lab('poll'); b = lab('back')
    st('v_cmp_ne_u32 vcc, 1, %s' % v_pres)
    st('s_cbranch_vccnz %s' % l)
    st(b + ':')
    tail('@reset')
    tail(f'''
    {l}:
    s_mov_b32 {s_cnt}, 0
    {l}_a:
    buffer_load_dword {v_pres}, {v_padr}, {srd}, {soff} offen sc1
    s_add_u32 {s_cnt}, {s_cnt}, 1
    s_waitcnt vmcnt(0)
    v_cmp_ne_u32 vcc, 1, {v_pres}
    s_cbranch_vccz {b}
    s_cmp_lt_u32 {s_cnt}, 0x40000
    s_cbranch_scc1 {l}_a
    s_branch {b}
    ''')
def poll(st, srd, soff):
    poll_issue(st, srd, soff); poll_check(st, srd, soff)
def set_flag(st, soff):
    st('buffer_store_dword %s, %s, %s, %s offen sc1' % (v_one, v_flag, sWS, soff))

def lanemask(pred):
    m = 0
    for l in range(64):
        if pred(l): m |= 1 << l
    return m
def emit_masks(st):
    st('v_mov_b32 %s, %s' % (v_tmp, NEGINF))
    def one(reg, pred):
        m = lanemask(pred)
        st('s_mov_b32 s38, 0x%x\ns_mov_b32 s39, 0x%x' % (m & 0xffffffff, m >> 32))
        st('v_cndmask_b32 v%d, %s, 0, s[38:39]' % (reg, v_tmp))
    key = lambda i, l: 8 * (i >> 2) + 4 * (l >> 5) + (i & 3)
    okb = lambda d: 0 <= d <= 14 and d % 2 == 0
    for i in range(16):
        m = lanemask(lambda l: key(i, l) <= (l & 31))
        st('s_mov_b32 s38, 0x%x\ns_mov_b32 s39, 0x%x' % (m & 0xffffffff, m >> 32))
        st('v_cndmask_b32 v%d, %s, 0, s[38:39]' % (M_DIAG + i, v_tmp))
        st('v_cndmask_b32 v%d, 0, %s, s[38:39]' % (M_FAR + i, v_tmp))
    for i in range(16):
        one(MB_DIAG + i, lambda l: okb((l & 31) - key(i, l)))
    st('s_cmp_eq_u32 %s, 0\ns_cselect_b32 %s, %s, 0' % (s_q0, s_t0, NEGINF))
    for i in range(8, 16):
        one(MB_PREV + i, lambda l: okb((l & 31) + 32 - key(i, l)))
        st('v_or_b32 v%d, %s, v%d' % (MB_PREV0 + i, s_t0, MB_PREV + i))

S(f'''
s_cmp_ge_u32 s2, 0x100
s_cbranch_scc1 L_end
s_load_dwordx2 s[4:5], s[0:1], 0
s_load_dwordx2 s[8:9], s[0:1], 8
s_load_dwordx2 s[12:13], s[0:1], 32
s_load_dwordx2 s[16:17], s[0:1], 72
s_load_dwordx2 s[20:21], s[0:1], 56
s_load_dwordx2 s[24:25], s[0:1], 64
''')
stamp()
S(f'''
v_lshrrev_b32 {v_tmp}, 6, v0
v_and_b32 {v_lane}, 63, v0
v_readfirstlane_b32 {s_w}, {v_tmp}
s_and_b32 {s_xcd}, s2, 7
s_lshr_b32 {s_t}, s2, 3
s_and_b32 {s_t0}, {s_xcd}, 1
s_lshl_b32 {s_t0}, {s_t0}, 3
s_and_b32 {s_t1}, {s_t}, 7
s_add_u32 {s_rb}, {s_t0}, {s_t1}
s_lshr_b32 {s_t0}, {s_xcd}, 1
s_lshl_b32 {s_t0}, {s_t0}, 2
s_lshr_b32 {s_t2}, {s_t}, 3
s_add_u32 {s_cb}, {s_t0}, {s_t2}
s_mov_b32 s6, {2048*1280}
s_mov_b32 s7, 0x20000
s_mov_b32 s10, {640*3840}
s_mov_b32 s11, 0x20000
s_mov_b32 s14, {640*3840}
s_mov_b32 s15, 0x20000
s_mov_b32 s18, {WS_SIZE + (65536 if STAMPS else 0)}
s_mov_b32 s19, 0x20000
s_mov_b32 s22, {2048*1280}
s_mov_b32 s23, 0x20000
s_mov_b32 s26, 256
s_mov_b32 s27, 0x20000
s_mov_b32 s31, 0x20000
''')
S(f'''
s_lshl_b32 {s_t0}, {s_xcd}, 2
s_add_u32 {s_hd}, {s_t0}, {s_t2}
s_mov_b32 {s_R}, {s_hd}
s_mov_b32 {s_r2}, {s_t1}
s_mov_b32 {s_C}, {s_t1}
s_lshl_b32 {s_q0}, {s_r2}, 8
s_lshl_b32 {s_t0}, {s_w}, 6
s_add_u32 {s_q0}, {s_q0}, {s_t0}
s_mul_i32 {s_t0}, {s_hd}, 5
s_lshr_b32 {s_t0}, {s_t0}, 1
s_and_b32 {s_t3}, {s_hd}, 1
s_add_u32 {s_gF}, {s_t0}, {s_t3}
s_lshl_b32 {s_so}, {s_t3}, 3
s_lshl_b32 {s_t3}, {s_t3}, 1
s_add_u32 {s_gS}, {s_t0}, 2
s_sub_u32 {s_gS}, {s_gS}, {s_t3}
s_lshl_b32 {s_f1}, {s_rb}, 7
s_lshl_b32 {s_t0}, {s_cb}, 2
s_add_u32 {s_f1}, {s_f1}, {s_t0}
v_mov_b32 {v_big}, {BIG}
v_mov_b32 {v_one}, 1
v_lshlrev_b32 {v_l16}, 4, {v_lane}
v_cmp_eq_u32 vcc, 0, v0
v_cndmask_b32 {v_flag}, {v_big}, 0, vcc
s_cmp_eq_u32 {s_cb}, 15
s_cbranch_scc1 L_spare
''')
S(f'''
s_mul_i32 {s_t0}, {s_t2}, 5
s_lshr_b32 {s_t0}, {s_t0}, 1
s_add_u32 {s_t0}, {s_t0}, {s_t1}
''')
rot = Stream()
for n in range(10):
    st = S if n < 3 else rot
    st(f'''
    s_cmp_ge_u32 {s_t0}, 10
    s_cselect_b32 {s_t3}, 10, 0
    s_sub_u32 {s_t0}, {s_t0}, {s_t3}
    s_mul_i32 s{SW0+n}, {s_t0}, {64*3840}
    s_lshl_b32 s{SX0+n}, {s_t0}, 7
    s_add_u32 {s_t0}, {s_t0}, 1
    ''')
S(f'''
v_lshrrev_b32 {v_t1}, 4, {v_lane}
v_and_b32 {v_t2}, 15, {v_lane}
v_lshlrev_b32 {v_t3}, 2, {v_t1}
v_xor_b32 {v_t2}, {v_t2}, {v_t3}
v_mul_u32_u24 {v_t3}, 3840, {v_t1}
v_lshl_add_u32 {v_t3}, {v_t2}, 4, {v_t3}
s_mul_i32 {s_t1}, {s_w}, {16*3840}
s_lshl_b32 {s_t2}, {s_cb}, 8
s_add_u32 {s_t1}, {s_t1}, {s_t2}
v_add_u32 v{VWD}, {s_t1}, {v_t3}
''')
for i in range(1, 4):
    S(f'v_add_u32 v{VWD+i}, {i*(4*3840-1024)}, v{VWD}')
S(f'''
v_lshrrev_b32 {v_t2}, 3, {v_lane}
v_mul_u32_u24 {v_t2}, 1280, {v_t2}
v_and_b32 {v_t3}, 7, {v_lane}
v_xor_b32 {v_t3}, {v_t3}, {v_t1}
s_lshl_b32 {s_t1}, {s_rb}, 2
s_add_u32 {s_t1}, {s_t1}, {s_w}
s_mul_i32 {s_t2}, {s_t1}, {32*1280}
v_add_u32 {v_t2}, {s_t2}, {v_t2}
v_lshl_add_u32 v{VXD}, {v_t3}, 4, {v_t2}
v_xor_b32 {v_t3}, 4, {v_t3}
v_lshl_add_u32 v{VXD+1}, {v_t3}, 4, {v_t2}
v_add_u32 v{VXD+2}, {2*(8*1280-1024)}, v{VXD}
v_add_u32 v{VXD+3}, {3*(8*1280-1024)}, v{VXD+1}
v_add_u32 v{VXD+1}, {8*1280-1024}, v{VXD+1}
s_lshl_b32 {s_mW}, {s_w}, 12
s_add_u32 {s_mX}, {s_mW}, {L_X}
s_waitcnt lgkmcnt(0)
''')

dma_tok = {}
def dma_stage(n):
    p, ns, slot = n // 10, n % 10, n % 4
    g = []
    def grp(lines, last=False):
        st = Stream()
        for x in lines[:-1]: st(x)
        t = st.vm(lines[-1])
        if last: dma_tok[n] = t
        g.append(st.l)
    if p == 0:
        for i in range(4):
            pre = [f's_add_u32 m0, {s_mX}, {slot*16384}'] if i == 0 else []
            grp(pre + [f'buffer_load_dwordx4 v{VXD+i}, {sX}, s{SX0+ns} offen offset:{1024*i} lds'])
    for i in range(4):
        pre = [f's_add_u32 m0, {s_mW}, {L_W+slot*16384}'] if i == 0 else []
        grp(pre + [f'buffer_load_dwordx4 v{VWD+i}, {sWB if p else sWA}, s{SW0+ns} offen offset:{1024*i} lds'], last=(i == 3))
    return g

for n in range(3):
    for g in dma_stage(n): S.extend(g)
S(f'''
s_getpc_b64 s[28:29]
L_pc:
s_mov_b32 s30, L_end-L_pc
v_lshlrev_b32 {v_t1}, 7, v0
buffer_load_dword {v_t4}, {v_t1}, {sTMP}, 0 offen
''')
S.extend(rot)
S(f'''
v_lshrrev_b32 {v_t1}, 5, {v_lane}
v_bfe_u32 {v_t2}, {v_lane}, 2, 2
v_lshl_add_u32 {v_t3}, {v_t1}, 3, {v_t2}
v_lshlrev_b32 {v_t3}, 8, {v_t3}
v_bfe_u32 {v_tmp}, {v_lane}, 4, 1
v_lshl_add_u32 {v_t3}, {v_tmp}, 5, {v_t3}
v_and_b32 {v_tmp}, 1, {v_lane}
v_lshl_add_u32 {v_t3}, {v_tmp}, 4, {v_t3}
v_bfe_u32 {v_tmp}, {v_lane}, 1, 1
v_lshl_add_u32 {v_t3}, {v_tmp}, 3, {v_t3}
v_lshl_add_u32 v{VWR}, {v_t2}, 6, {v_t3}
''')
for ct in range(1, 4):
    S(f'v_xor_b32 v{VWR+ct}, {ct*64}, v{VWR}')
S(f'''
v_and_b32 {v_t2}, 31, {v_lane}
v_bfe_u32 {v_t3}, {v_lane}, 1, 3
v_xor_b32 {v_t3}, {v_t3}, {v_t1}
v_lshlrev_b32 {v_t3}, 4, {v_t3}
v_lshl_add_u32 {v_t3}, {v_t2}, 7, {v_t3}
v_add_u32 v{VXR}, {s_mX}, {v_t3}
''')
for s_ in range(1, 4):
    S(f'v_xor_b32 v{VXR+s_}, {s_*32}, v{VXR}')
S(f'''
s_lshl_b32 {s_t1}, {s_rb}, 2
s_add_u32 {s_t1}, {s_t1}, {s_w}
s_lshl_b32 {s_t1}, {s_t1}, 9
v_lshlrev_b32 {v_t1}, 15, {v_t1}
v_lshl_add_u32 {v_t1}, {v_t2}, 4, {v_t1}
v_add_u32 {v_st}, {s_t1}, {v_t1}
s_lshl_b32 {s_stb}, {s_cb}, 19
s_cmp_lt_u32 {s_cb}, 5
s_cselect_b32 {s_scale}, {f32(QSCALE)}, 1.0
''')
emit_masks(S)

def w_reads(n, s_, ct):
    buf = AW + 16 * (s_ & 1) + 4 * ct
    return [Ins(f'ds_read_b64_tr_b16 {ar(buf+2*u,2)}, v{VWR+ct} offset:{L_W+(n%4)*16384+(16*s_+4*u)*256}') for u in range(2)]
def x_read(n, s_):
    return [Ins(f'ds_read_b128 {ar(4*(4*n+s_),4)}, v{VXR+s_} offset:{(n%4)*16384}')]

def epilogue1(p):
    st = Stream(); toks = []
    for ct in range(4):
        for u in range(2):
            b = ACC[p] + 16 * ct + 8 * u
            for i in range(8): st(f'v_mul_f32 v{b+i}, {s_scale}, v{b+i}')
            for i in range(4): st(f'v_cvt_pk_bf16_f32 v{b+i}, v{b+2*i}, v{b+2*i+1}')
            st(f's_add_u32 {s_t0}, {s_stb}, {QKV[p]+(4*ct+2*u)*GRP}')
            st(f'buffer_store_dwordx4 {vr(b,4)}, {v_st}, {sWS}, {s_t0} offen sc1')
    return st

S.wait(dma_tok[0]); S('s_barrier')
stamp()
S.extend(x_read(0, 0))
for ct in range(4): S.extend(w_reads(0, 0, ct))
slots = []
for n in range(20):
    p = n // 10
    for s_ in range(4):
        for ct in range(4):
            acc = vr(ACC[p] + 16 * ct, 16)
            first = (n % 10 == 0 and s_ == 0)
            g = [Ins(f'v_mfma_f32_32x32x16_bf16 {acc}, {ar(AW+16*(s_&1)+4*ct,4)}, {ar(4*(4*(n%10)+s_),4)}, {"0" if first else acc}')]
            n2, s2 = (n, s_ + 1) if s_ < 3 else (n + 1, 0)
            if n2 < 20:
                if s_ == 3 and ct == 0:
                    g.append(('BAR', n2))
                if ct == 0 and n2 < 10: g += x_read(n2, s2)
                g += w_reads(n2, s2, ct)
            slots.append(g)
for n in range(17):
    weave(slots, dma_stage(n + 3), 16 * n + 13, 16 * n + 13 + 12)
weave(slots, epilogue1(0), 16 * 10 + 4, 16 * 12 + 10)
hs = Stream(); hs(f'v_mov_b32 {v_padr}, 0'); poll_issue(hs, sDBG, '0'); slots[16 * 8 + 2] += hs.l
hs = Stream(); poll_check(hs, sDBG, '0'); slots[16 * 9 + 13] += hs.l
for k, g in enumerate(slots):
    for it in g:
        if isinstance(it, tuple):
            n2 = it[1]
            if n2 == 14:
                S('s_waitcnt vmcnt(0)')
            else:
                S.wait(dma_tok[n2])
            S('s_barrier')
            if n2 == 14:
                S(f's_add_u32 {s_t0}, {s_f1}, {F1[0]}'); set_flag(S, s_t0)
            if n2 == 10: stamp()
        else:
            S.l.append(it)
stamp()
S.extend(epilogue1(1))
S('s_waitcnt vmcnt(0)\ns_barrier')
S(f's_add_u32 {s_t0}, {s_f1}, {F1[1]}'); set_flag(S, s_t0)
S('L_join:')
S('s_waitcnt vmcnt(0) lgkmcnt(0)')
nst_join = nstamp[0]

QA0, QA1 = 24, 32
E0, P0 = 42, 50
SB = [64, 80]; OA = [96, 112]
AK0, AK1, AV = 200, 208, 216
v_k0, v_k1, v_v, v_dma, v_o4, v_o2, v_q4, v_qe, v_qo = 'v2', 'v3', 'v4', 'v5', 'v6', 'v7', 'v8', 'v9', 'v10'
v_g = ['v12', 'v13']; v_vb, v_vh = 'v14', 'v15'
v_h, v_r = 'v16', 'v17'

S(f'''
v_lshrrev_b32 {v_h}, 5, {v_lane}
v_and_b32 {v_r}, 31, {v_lane}
s_min_u32 {s_t0}, {s_gF}, {s_gS}
v_bfe_u32 {v_t1}, {v_lane}, 2, 1
v_lshl_add_u32 {v_t1}, {v_t1}, 1, {s_t0}
v_lshrrev_b32 {v_t1}, 4, {v_t1}
v_and_b32 {v_t2}, 3, {v_lane}
v_min_u32 {v_t3}, 2, {v_t2}
v_mad_u32_u24 {v_t4}, {v_t3}, 5, {v_t1}
s_lshl_b32 {s_t0}, {s_r2}, 1
s_add_u32 {s_t1}, {s_t0}, {s_w}
s_sub_u32 {s_t1}, {s_t1}, 2
s_max_i32 {s_t1}, {s_t1}, 0
s_lshr_b32 {s_t2}, {s_q0}, 7
v_mov_b32 {v_t1}, {s_t1}
v_mov_b32 {v_t3}, {s_t2}
v_cmp_eq_u32 vcc, 0, {v_t2}
v_cndmask_b32 {v_t1}, {v_t1}, {v_t3}, vcc
v_lshlrev_b32 {v_t1}, 7, {v_t1}
v_lshl_add_u32 {v_padr}, {v_t4}, 2, {v_t1}
s_mov_b32 {s_t3}, {F1[0]}
''')
poll(S, sWS, s_t3)
stamp()
S(f'''
s_lshl_b32 {s_t0}, {s_r2}, 1
s_add_u32 {s_t0}, {s_t0}, {s_w}
s_cmp_ge_u32 {s_t0}, 2
s_cselect_b32 {s_t1}, 0, {BIG}
s_cselect_b32 {s_t2}, 0x3f803f80, 0
v_add_u32 {v_dma}, {s_t1}, {v_l16}
s_lshl_b32 {s_t0}, {s_t0}, 11
s_lshl_b32 {s_t1}, {s_w}, 11
v_mov_b32 v64, {s_t2}
v_mov_b32 v65, {s_t2}
v_mov_b32 v66, {s_t2}
v_mov_b32 v67, {s_t2}
v_add_u32 {v_t1}, {s_t1}, {v_l16}
v_add_u32 {v_t1}, {L_ONE}, {v_t1}
ds_write_b128 {v_t1}, v[64:67]
ds_write_b128 {v_t1}, v[64:67] offset:1024
''')
for ty in (1, 2):
    for gi in range(3):
        gsrc = s_gS if gi == 2 else s_gF
        S(f'''
        s_lshl_b32 {s_t2}, {gsrc}, 15
        s_add_u32 {s_t2}, {s_t2}, {s_t0}
        s_add_u32 {s_t2}, {s_t2}, {QKV[0] + (80*ty + (gi if gi < 2 else 0))*GRP - 4096}
        s_add_u32 m0, {s_t1}, {(L_KA if ty == 1 else L_VA) + gi*GS}
        buffer_load_dwordx4 {v_dma}, {sWS}, {s_t2} offen sc1 lds
        buffer_load_dwordx4 {v_dma}, {sWS}, {s_t2} offen offset:1024 sc1 lds
        ''')
def q_addr(st):
    st(f'''
    v_lshlrev_b32 {v_q4}, 15, {v_h}
    v_lshl_add_u32 {v_q4}, {v_r}, 4, {v_q4}
    v_lshlrev_b32 {v_t1}, 4, {v_r}
    v_cmp_eq_u32 vcc, 0, {v_h}
    v_add_u32 {v_t1}, {s_so}, {v_t1}
    v_cndmask_b32 {v_qe}, {v_big}, {v_t1}, vcc
    v_cndmask_b32 {v_qo}, {v_t1}, {v_big}, vcc
    ''')
q_addr(S)
S(f'''
s_lshl_b32 {s_t0}, {s_q0}, 4
s_lshl_b32 {s_t1}, {s_gF}, 15
s_add_u32 {s_t1}, {s_t1}, {s_t0}
s_lshl_b32 {s_t2}, {s_gS}, 15
s_add_u32 {s_t2}, {s_t2}, {s_t0}
buffer_load_dwordx4 {vr(QA0,4)}, {v_q4}, {sWS}, {s_t1} offen sc1
buffer_load_dwordx4 {vr(QA0+4,4)}, {v_q4}, {sWS}, {s_t1} offen offset:512 sc1
buffer_load_dwordx2 {vr(QA1,2)}, {v_qe}, {sWS}, {s_t2} offen sc1
buffer_load_dwordx2 {vr(QA1+2,2)}, {v_qo}, {sWS}, {s_t2} offen sc1
buffer_load_dwordx2 {vr(QA1+4,2)}, {v_qe}, {sWS}, {s_t2} offen offset:512 sc1
buffer_load_dwordx2 {vr(QA1+6,2)}, {v_qo}, {sWS}, {s_t2} offen offset:512 sc1
v_mov_b32 v{QA1+8}, 0
v_mov_b32 v{QA1+9}, 0
''')
S(f'''
s_lshl_b32 {s_t0}, {s_w}, 10
v_mul_u32_u24 {v_t1}, {GS}, {v_h}
v_lshl_add_u32 {v_t1}, {v_r}, 4, {v_t1}
s_add_u32 {s_t1}, {s_t0}, {L_KA}
v_add_u32 {v_k0}, {s_t1}, {v_t1}
s_add_u32 {s_t1}, {s_t0}, {L_KA + 2*GS}
s_add_u32 {s_t1}, {s_t1}, {s_so}
v_add_u32 {v_k1}, {s_t1}, {v_l16}
''')
S(f'''
v_bfe_u32 {v_t1}, {v_lane}, 2, 2
v_lshl_add_u32 {v_t1}, {v_h}, 2, {v_t1}
v_lshlrev_b32 {v_t1}, 4, {v_t1}
v_and_b32 {v_t2}, 1, {v_lane}
v_bfe_u32 {v_t3}, {v_lane}, 1, 1
v_add_u32 {v_t4}, 2, {v_t3}
v_lshlrev_b32 {v_t3}, 3, {v_t3}
v_mov_b32 {v_tmp}, {s_so}
v_and_b32 {v_pres}, 16, {v_lane}
v_cmp_eq_u32 vcc, 0, {v_pres}
v_cndmask_b32 {v_t2}, {v_t4}, {v_t2}, vcc
v_cndmask_b32 {v_t3}, {v_tmp}, {v_t3}, vcc
v_add_u32 {v_t1}, {v_t1}, {v_t3}
s_add_u32 {s_t1}, {s_t0}, {L_VA}
v_mul_u32_u24 {v_t3}, {GS}, {v_t2}
v_add3_u32 {v_v}, {v_t1}, {v_t3}, {s_t1}
s_mul_i32 {s_t1}, {s_w}, {VBW}
s_add_u32 {s_t1}, {s_t1}, {L_VB}
v_mul_u32_u24 {v_t3}, 1088, {v_t2}
v_add3_u32 {v_vb}, {v_t1}, {v_t3}, {s_t1}
s_add_u32 {s_t1}, {s_t1}, {3*1088}
v_lshlrev_b32 {v_t3}, 8, {v_t2}
v_add3_u32 {v_vh}, {v_t1}, {v_t3}, {s_t1}
v_add_u32 {v_t1}, {L_ONE + 4096}, {v_t1}
v_cmp_eq_u32 vcc, 3, {v_t2}
v_cndmask_b32 {v_vb}, {v_vb}, {v_t1}, vcc
v_cndmask_b32 {v_vh}, {v_vh}, {v_t1}, vcc
''')
for b in (AK1 + 2, AK1 + 3, AK1 + 6, AK1 + 7):
    S(f'v_accvgpr_write_b32 a{b}, 0')
S(f'''
v_lshrrev_b32 {v_t1}, 4, {v_r}
v_mul_u32_u24 {v_t1}, 640, {v_t1}
v_and_b32 {v_t2}, 15, {v_lane}
v_lshl_add_u32 {v_t3}, {v_h}, 8, {v_t1}
v_lshl_add_u32 {v_o4}, {v_t2}, 4, {v_t3}
v_lshl_add_u32 {v_t3}, {v_t2}, 3, {v_t1}
v_add_u32 {v_t3}, 512, {v_t3}
v_cmp_eq_u32 vcc, 0, {v_h}
v_cndmask_b32 {v_o2}, {v_big}, {v_t3}, vcc
s_lshl_b32 {s_ob}, {s_hd}, 7
s_lshr_b32 {s_t0}, {s_q0}, 4
s_add_u32 {s_ob}, {s_ob}, {s_t0}
s_mul_i32 {s_ob}, {s_ob}, 640
''')
S('s_waitcnt vmcnt(0) lgkmcnt(0)\ns_barrier')
S(f'''
v_and_b32 {v_t1}, 1, {v_lane}
v_lshlrev_b32 {v_t1}, 10, {v_t1}
s_lshl_b32 {s_t0}, {s_C}, 7
s_add_u32 {s_t0}, {s_t0}, 60
v_add_u32 {v_padr}, {s_t0}, {v_t1}
''')
poll(S, sWS, s_t3)
S(f'''
s_lshl_b32 {s_t0}, {s_C}, 2
s_add_u32 {s_t0}, {s_t0}, {s_w}
s_mul_i32 {s_t0}, {s_t0}, 25600
''')
for br in range(2):
    for f in range(25):
        if f % 4 == 0: S(f's_add_u32 {s_t1}, {s_t0}, {WOF + br*32*25600 + f*1024}')
        S(f'buffer_load_dwordx4 {ar(100*br+4*f,4)}, {v_l16}, {sWS}, {s_t1} offen offset:{(f%4)*1024} sc1')
stamp()

steps = [(0, 0)] + [(j, q) for j in range(1, 9) for q in range(2)] + [(9, 1)]
def k0_read(j): return Ins(f'ds_read_b128 {ar(AK0+4*(j&1),4)}, {v_k0} offset:{512*j}')
def k1_read(j): return Ins(f'ds_read_b64 {ar(AK1+4*((j>>1)&1),2)}, {v_k1} offset:{512*j}')
def v_read(j, kk, u): return Ins(f'ds_read_b64_tr_b16 {ar(AV+8*(j&1)+4*kk+2*u,2)}, {v_v} offset:{512*j+256*kk+128*u}')
def qka(n):
    j, q = steps[n]
    c = vr(M_FAR, 16) if j == q else vr(M_DIAG, 16) if j == 8 + q else '0'
    return f'v_mfma_f32_32x32x16_bf16 {vr(SB[n&1],16)}, {ar(AK0+4*(j&1),4)}, {vr(QA0+4*q,4)}, {c}'
def qkb(n):
    j, q = steps[n]
    return f'v_mfma_f32_32x32x16_bf16 {vr(SB[n&1],16)}, {ar(AK1+4*((j>>1)&1),4)}, {vr(QA1+4*q+2*(j&1),4)}, {vr(SB[n&1],16)}'
def pv(n, kk):
    j, q = steps[n]
    c = '0' if (j == q and kk == 0) else vr(OA[q], 16)
    return f'v_mfma_f32_32x32x16_bf16 {vr(OA[q],16)}, {ar(AV+8*(j&1)+4*kk,4)}, {vr(P0+4*kk,4)}, {c}'
def exps(n, g): return [f'v_exp_f32 v{E0+4*(g&1)+i}, v{SB[n&1]+4*g+i}' for i in range(4)]
def cvts(g): return [f'v_cvt_pk_bf16_f32 v{P0+2*g+i}, v{E0+4*(g&1)+2*i}, v{E0+4*(g&1)+2*i+1}' for i in range(2)]
S.l += [k0_read(0), k1_read(0), k0_read(1)] + [v_read(0, kk, u) for kk in range(2) for u in range(2)]
S(qka(0)); S(qkb(0))
N = len(steps)
groups = []
for n in range(N):
    for g in range(4):
        st = Stream()
        if g == 0 and n + 1 < N: st(qka(n + 1))
        if g == 1 and n > 0: st(pv(n - 1, 1))
        if g == 2 and n + 1 < N: st(qkb(n + 1))
        if g == 3: st(pv(n, 0))
        if g > 0 or n > 0:
            for x in cvts((g - 1) & 3): st(x)
        for x in exps(n, g): st(x)
        groups.append(st.l)
first = {}
for n, (j, q) in enumerate(steps): first.setdefault(j, n)
last = {j: n for n, (j, q) in enumerate(steps)}
for j in range(1, 10):
    if j >= 2: groups[4 * max(last[j-2] - 1, 0) + 1].append(k0_read(j))
    if j % 2 == 0: groups[4 * max(first[j] - 3, 0) + 0].append(k1_read(j))
    for kk in range(2):
        for u in range(2):
            base = 4 * (last[j-2] + 1) + 1 if j >= 2 else 0
            groups[base + 2 * kk + u].append(v_read(j, kk, u))
for g in groups: S.l += g
for x in cvts(3): S(x)
S(pv(N - 1, 1))
stamp()

S(f'''
s_min_u32 {s_t0}, {s_gF}, {s_gS}
v_bfe_u32 {v_t1}, {v_lane}, 2, 1
v_lshl_add_u32 {v_t1}, {v_t1}, 1, {s_t0}
v_lshrrev_b32 {v_t1}, 4, {v_t1}
v_and_b32 {v_t2}, 3, {v_lane}
v_mad_u32_u24 {v_t4}, {v_t2}, 5, {v_t1}
v_min_u32 {v_t4}, 15, {v_t4}
s_sub_u32 {s_t1}, {s_q0}, 32
s_max_i32 {s_t1}, {s_t1}, 0
s_lshr_b32 {s_t1}, {s_t1}, 7
s_lshr_b32 {s_t2}, {s_q0}, 7
v_mov_b32 {v_t1}, {s_t1}
v_mov_b32 {v_t3}, {s_t2}
v_and_b32 {v_t2}, 8, {v_lane}
v_cmp_eq_u32 vcc, 0, {v_t2}
v_cndmask_b32 {v_t1}, {v_t1}, {v_t3}, vcc
v_lshlrev_b32 {v_t1}, 7, {v_t1}
v_lshl_add_u32 {v_padr}, {v_t4}, 2, {v_t1}
s_mov_b32 {s_t3}, {F1[1]}
''')
poll(S, sWS, s_t3)
QB0, QB1, KB0, KB1 = 128, 136, 144, 156
S(f'''
v_lshlrev_b32 {v_t1}, 2, {v_r}
s_lshl_b32 {s_t0}, {s_q0}, 2
s_add_u32 {s_t0}, {s_t0}, {G_OFF}
buffer_load_dword {v_g[0]}, {v_t1}, {sWS}, {s_t0} offen sc1
buffer_load_dword {v_g[1]}, {v_t1}, {sWS}, {s_t0} offen offset:128 sc1
s_lshl_b32 {s_t0}, {s_q0}, 4
s_lshl_b32 {s_t1}, {s_gF}, 15
s_add_u32 {s_t1}, {s_t1}, {s_t0}
s_lshl_b32 {s_t2}, {s_gS}, 15
s_add_u32 {s_t2}, {s_t2}, {s_t0}
s_add_u32 {s_t1}, {s_t1}, {QKV[1]}
s_add_u32 {s_t2}, {s_t2}, {QKV[1]}
buffer_load_dwordx4 {vr(QB0,4)}, {v_q4}, {sWS}, {s_t1} offen sc1
buffer_load_dwordx4 {vr(QB0+4,4)}, {v_q4}, {sWS}, {s_t1} offen offset:512 sc1
buffer_load_dwordx2 {vr(QB1,2)}, {v_qe}, {sWS}, {s_t2} offen sc1
buffer_load_dwordx2 {vr(QB1+2,2)}, {v_qo}, {sWS}, {s_t2} offen sc1
buffer_load_dwordx2 {vr(QB1+4,2)}, {v_qo}, {sWS}, {s_t2} offen offset:512 sc1
v_mov_b32 v{QB1+6}, 0
v_mov_b32 v{QB1+7}, 0
s_add_u32 {s_t1}, {s_t1}, {80*GRP - 512}
s_add_u32 {s_t2}, {s_t2}, {80*GRP - 512}
s_cmp_eq_u32 {s_q0}, 0
s_cselect_b32 {s_t0}, {BIG}, 0
v_add_u32 {v_t1}, {s_t0}, {v_q4}
buffer_load_dwordx4 {vr(KB0,4)}, {v_t1}, {sWS}, {s_t1} offen sc1
buffer_load_dwordx4 {vr(KB0+4,4)}, {v_q4}, {sWS}, {s_t1} offen offset:512 sc1
buffer_load_dwordx4 {vr(KB0+8,4)}, {v_q4}, {sWS}, {s_t1} offen offset:1024 sc1
v_mov_b32 {v_t2}, {s_t0}
v_cmp_eq_u32 vcc, 0, {v_h}
v_cndmask_b32 {v_t2}, 0, {v_t2}, vcc
v_add3_u32 {v_t2}, {v_t2}, {v_l16}, {s_so}
buffer_load_dwordx2 {vr(KB1,2)}, {v_t2}, {sWS}, {s_t2} offen sc1
buffer_load_dwordx2 {vr(KB1+4,2)}, {v_qo}, {sWS}, {s_t2} offen offset:1024 sc1
v_mov_b32 v{KB1+2}, 0
v_mov_b32 v{KB1+3}, 0
v_mov_b32 v{KB1+6}, 0
v_mov_b32 v{KB1+7}, 0
s_add_u32 {s_t1}, {s_t1}, {80*GRP + 512}
s_add_u32 {s_t2}, {s_t2}, {80*GRP + 512}
s_mul_i32 {s_t3}, {s_w}, {VBW}
s_add_u32 m0, {s_t3}, {L_VB}
s_add_u32 {s_cnt}, {s_t1}, {GRP}
buffer_load_dwordx4 {v_l16}, {sWS}, {s_t1} offen sc1 lds
s_add_u32 m0, {s_t3}, {L_VB + 1088}
v_lshrrev_b32 {v_t1}, 4, {v_lane}
buffer_load_dwordx4 {v_l16}, {sWS}, {s_cnt} offen sc1 lds
s_add_u32 m0, {s_t3}, {L_VB + 2*1088}
v_and_b32 {v_t2}, 15, {v_lane}
buffer_load_dwordx4 {v_l16}, {sWS}, {s_t2} offen sc1 lds
v_lshl_add_u32 {v_t3}, {v_t1}, 15, {s_t1}
v_mov_b32 {v_t4}, {s_t2}
v_cmp_eq_u32 vcc, 2, {v_t1}
v_cndmask_b32 {v_t3}, {v_t3}, {v_t4}, vcc
v_cmp_eq_u32 vcc, 3, {v_t1}
v_cndmask_b32 {v_t3}, {v_t3}, {v_big}, vcc
v_lshl_add_u32 {v_t3}, {v_t2}, 4, {v_t3}
s_sub_u32 {s_t0}, {s_t0}, 256
v_add_u32 {v_t3}, {s_t0}, {v_t3}
s_add_u32 m0, {s_t3}, {L_VB + 3*1088}
''')
tokvb = S.vm(f'buffer_load_dwordx4 {v_t3}, {sWS}, 0 offen sc1 lds')

def epilogue2(st, br, O):
    st(f's_add_u32 {s_t0}, {s_ob}, {O_OFF + br*32*128*640}')
    for q in range(2):
        o = O[q]
        st(f'v_rcp_f32 {v_t1}, v{o+12}')
        if br: st(f'v_sub_f32 {v_g[q]}, 1.0, {v_g[q]}')
        st(f'v_mul_f32 {v_t1}, {v_g[q]}, {v_t1}')
        for i in range(12): st(f'v_mul_f32 v{o+i}, {v_t1}, v{o+i}')
        for i in range(6): st(f'v_cvt_pk_bf16_f32 v{o+i}, v{o+2*i}, v{o+2*i+1}')
        st(f'buffer_store_dwordx4 {vr(o,4)}, {v_o4}, {sWS}, {s_t0} offen offset:{1280*q} sc1')
        st(f'buffer_store_dwordx2 {vr(o+4,2)}, {v_o2}, {sWS}, {s_t0} offen offset:{1280*q} sc1')
epilogue2(S, 0, OA)
S('s_waitcnt vmcnt(0)\ns_barrier')
S(f'''
s_lshl_b32 {s_f1}, {s_r2}, 7
s_lshl_b32 {s_t0}, {s_hd}, 2
s_add_u32 {s_f1}, {s_f1}, {s_t0}
s_add_u32 {s_t0}, {s_f1}, {F2[0]}
''')
set_flag(S, s_t0)
stamp()
SP = [64, 192]; SD = [80, 208]
VB = 200
for u in range(2): S(f'ds_read_b64_tr_b16 {ar(VB+2*u,2)}, {v_vh} offset:{128*u}')
for t in range(2):
    for kk in range(2):
        for u in range(2): S(f'ds_read_b64_tr_b16 {ar(VB+4+8*t+4*kk+2*u,2)}, {v_vb} offset:{512*t+256*kk+128*u}')
mm = 'v_mfma_f32_32x32x16_bf16'
S(f'''
{mm} {vr(SP[0],16)}, {vr(KB0,4)}, {vr(QB0,4)}, {vr(MB_PREV0,16)}
{mm} {vr(SP[0],16)}, {vr(KB1,4)}, {vr(QB1,4)}, {vr(SP[0],16)}
{mm} {vr(SD[0],16)}, {vr(KB0+4,4)}, {vr(QB0,4)}, {vr(MB_DIAG,16)}
{mm} {vr(SD[0],16)}, {vr(KB1,4)}, {vr(QB1+2,4)}, {vr(SD[0],16)}
{mm} {vr(SP[1],16)}, {vr(KB0+4,4)}, {vr(QB0+4,4)}, {vr(MB_PREV,16)}
{mm} {vr(SP[1],16)}, {vr(KB1,4)}, {vr(QB1+4,4)}, {vr(SP[1],16)}
{mm} {vr(SD[1],16)}, {vr(KB0+8,4)}, {vr(QB0+4,4)}, {vr(MB_DIAG,16)}
{mm} {vr(SD[1],16)}, {vr(KB1+4,4)}, {vr(QB1+4,4)}, {vr(SD[1],16)}
''')
for q in range(2):
    b = SP[q] + 8
    assert SD[q] == SP[q] + 16
    S(f'v_max3_f32 {v_t1}, v{b}, v{b+1}, v{b+2}')
    S(f'v_max3_f32 {v_t2}, v{b+3}, v{b+4}, v{b+5}')
    for i in range(6, 22, 4):
        S(f'v_max3_f32 {v_t1}, {v_t1}, v{b+i}, v{b+i+1}')
        S(f'v_max3_f32 {v_t2}, {v_t2}, v{b+i+2}, v{b+i+3}')
    S(f'v_max3_f32 {v_t1}, {v_t1}, v{b+22}, v{b+23}')
    S(f'v_max_f32 {v_t1}, {v_t1}, {v_t2}')
    S(f'v_mov_b32 {v_t2}, {v_t1}')
    S(f'v_permlane32_swap_b32 {v_t1}, {v_t2}')
    S(f'v_max_f32 {v_t1}, {v_t1}, {v_t2}')
    for i in range(24): S(f'v_sub_f32 v{b+i}, v{b+i}, {v_t1}')
    for i in range(24): S(f'v_exp_f32 v{b+i}, v{b+i}')
    for i in range(12): S(f'v_cvt_pk_bf16_f32 v{b+i}, v{b+2*i}, v{b+2*i+1}')
    vprev = VB if q == 0 else VB + 8
    vd = VB + 4 + 8 * q
    S(f'''
    {mm} {vr(OA[q],16)}, {ar(vprev,4)}, {vr(b,4)}, 0
    {mm} {vr(OA[q],16)}, {ar(vd,4)}, {vr(b+4,4)}, {vr(OA[q],16)}
    {mm} {vr(OA[q],16)}, {ar(vd+4,4)}, {vr(b+8,4)}, {vr(OA[q],16)}
    ''')
epilogue2(S, 1, OA)
S('s_waitcnt vmcnt(0)\ns_barrier')
S(f's_add_u32 {s_t0}, {s_f1}, {F2[1]}')
set_flag(S, s_t0)
stamp()

OF = [96, 176]; AC3 = 16
V4, V2, VRW, v_rr, v_out = 2, 6, 10, 'v13', 'v14'
S(f'''
v_lshrrev_b32 {v_t1}, 4, {v_lane}
v_and_b32 {v_t2}, 15, {v_lane}
s_mov_b32 {s_t0}, 81920
v_mul_lo_u32 {v_t3}, {v_h}, {s_t0}
v_and_b32 {v_t4}, 1, {v_t1}
v_lshl_add_u32 {v_t3}, {v_t4}, 8, {v_t3}
v_lshl_add_u32 {v_t3}, {v_t2}, 4, {v_t3}
s_mov_b32 {s_t0}, 163840
v_mul_lo_u32 {v_t4}, {v_t1}, {s_t0}
v_lshl_add_u32 {v_t4}, {v_t2}, 3, {v_t4}
v_add_u32 {v_t4}, 512, {v_t4}
''')
for rho in range(4):
    S(f'''
    s_add_u32 {s_t0}, {s_w}, {rho}
    s_and_b32 {s_t0}, {s_t0}, 3
    s_mul_i32 {s_t1}, {s_t0}, 640
    v_add_u32 v{V4+rho}, {s_t1}, {v_t3}
    v_add_u32 v{V2+rho}, {s_t1}, {v_t4}
    ''')
    if rho:
        S(f'''
        s_mul_i32 {s_t1}, {s_t0}, {3*5120}
        s_add_u32 {s_t1}, {s_t1}, {(rho-1)*5120}
        v_add_u32 v{VRW+rho-1}, {s_t1}, {v_l16}
        ''')
S(f'''
s_mul_i32 {s_t1}, {s_w}, {3*5120}
v_add_u32 {v_rr}, {s_t1}, {v_l16}
v_mul_u32_u24 {v_t2}, 1280, {v_t2}
v_mad_u32_u24 {v_t2}, {v_t1}, 40, {v_t2}
s_lshl_b32 {s_t0}, {s_R}, 2
s_add_u32 {s_t0}, {s_t0}, {s_w}
s_mul_i32 {s_t0}, {s_t0}, {16*1280}
s_mul_i32 {s_t1}, {s_C}, 160
s_add_u32 {s_t0}, {s_t0}, {s_t1}
v_add_u32 {v_out}, {s_t0}, {v_t2}
v_and_b32 {v_t1}, 7, {v_lane}
s_lshl_b32 {s_t0}, {s_xcd}, 7
s_lshl_b32 {s_t1}, {s_w}, 5
s_add_u32 {s_t0}, {s_t0}, {s_t1}
v_lshl_add_u32 v15, {v_t1}, 2, {s_t0}
s_lshl_b32 {s_ob}, {s_w}, 10
s_lshl_b32 {s_t0}, {s_R}, 2
s_add_u32 {s_ob}, {s_ob}, {s_t0}
s_mul_i32 {s_ob}, {s_ob}, 640
''')
v_padr = 'v15'; v_pres = 'v0'
for br in range(2):
    S(f's_mov_b32 {s_t3}, {F2[br]}')
    poll(S, sWS, s_t3)
    for s_ in range(4):
        S(f's_add_u32 {s_t0}, {s_ob}, {O_OFF + br*32*128*640 + s_*163840}')
        for rho in range(4):
            S(f'buffer_load_dwordx4 {vr(OF[br]+16*s_+4*rho,4)}, v{V4+rho}, {sWS}, {s_t0} offen sc1')
    for u in range(2):
        S(f's_add_u32 {s_t0}, {s_ob}, {O_OFF + br*32*128*640 + u*81920}')
        for rho in range(4):
            S(f'buffer_load_dwordx2 {vr(OF[br]+64+4*rho+2*u,2)}, v{V2+rho}, {sWS}, {s_t0} offen sc1')
stamp()
for br in range(2):
    for s_ in range(5):
        for rho in range(4):
            for ct in range(5):
                acc = vr(AC3 + 20 * rho + 4 * ct, 4)
                S(f'v_mfma_f32_16x16x32_bf16 {acc}, {ar(100*br+20*s_+4*ct,4)}, {vr(OF[br]+16*s_+4*rho,4)}, {"0" if br == 0 and s_ == 0 else acc}')
for rho in range(1, 4):
    for ct in range(5):
        S(f'ds_write_b128 v{VRW+rho-1}, {vr(AC3+20*rho+4*ct,4)} offset:{1024*ct}')
S('s_waitcnt lgkmcnt(0)\ns_barrier')
for k in range(3):
    for ct in range(5):
        S(f'ds_read_b128 {vr(96+20*k+4*ct,4)}, {v_rr} offset:{5120*k+1024*ct}')
for k in range(3):
    for i in range(0, 20, 2):
        S(f'v_pk_add_f32 {vr(AC3+i,2)}, {vr(AC3+i,2)}, {vr(96+20*k+i,2)}')
for i in range(10): S(f'v_cvt_pk_bf16_f32 v{AC3+i}, v{AC3+2*i}, v{AC3+2*i+1}')
S(f'''
buffer_store_dwordx4 {vr(AC3,4)}, {v_out}, {sOUT}, 0 offen
buffer_store_dwordx4 {vr(AC3+4,4)}, {v_out}, {sOUT}, 0 offen offset:16
buffer_store_dwordx2 {vr(AC3+8,2)}, {v_out}, {sOUT}, 0 offen offset:32
''')
if STAMPS:
    S('s_waitcnt vmcnt(0)')
    stamp()
    S(f'''
    s_waitcnt lgkmcnt(0)
    s_cmp_lg_u32 {s_w}, 0
    s_cbranch_scc1 L_end
    v_mov_b32 v2, 0
    ''')
    for i in range(nstamp[0]):
        S(f'v_writelane_b32 v2, s{ST0+2*i}, {i}')
    S(f'''
    s_lshl_b32 {s_t0}, s2, 8
    s_add_u32 {s_t0}, {s_t0}, {STAMP_OFF}
    v_lshlrev_b32 v3, 2, {v_lane}
    buffer_store_dword v2, v3, {sWS}, {s_t0} offen
    ''')
    assert nstamp[0] <= 11, nstamp[0]
S('s_endpgm')

v_padr = 'v22'; v_pres = 'v21'
T = Stream()
T('@reset')
T(f'''
L_spare:
s_waitcnt lgkmcnt(0)
s_load_dwordx2 s[56:57], s[0:1], 16
s_load_dwordx2 s[58:59], s[0:1], 40
s_load_dwordx2 s[8:9], s[0:1], 48
s_mov_b32 s30, {640*1280}
s_mov_b32 s10, 1280
s_cmp_lg_u32 {s_rb}, 0
s_cbranch_scc1 L_noinit
v_mov_b32 v64, 0
v_mov_b32 v65, 0
v_mov_b32 v66, 0
v_mov_b32 v67, 0
v_lshlrev_b32 {v_t1}, 4, v0
s_mov_b32 {s_t0}, {FLG}
s_mov_b32 {s_t1}, {FLG+4096}
buffer_store_dwordx4 v[64:67], {v_t1}, {sWS}, {s_t0} offen sc1
buffer_store_dwordx4 v[64:67], {v_t1}, {sWS}, {s_t1} offen sc1
s_waitcnt vmcnt(0)
s_barrier
buffer_store_dword {v_one}, {v_flag}, {sDBG}, 0 offen sc1
L_noinit:
s_and_b32 {s_t2}, {s_rb}, 7
s_mul_i32 {s_t2}, {s_t2}, 160
s_mul_i32 {s_t1}, {s_w}, {160*1280}
s_add_u32 {s_t2}, {s_t2}, {s_t1}
s_mov_b32 {s_t0}, {(1<<32)//10+1}
''')
for i in range(5):
    T(f'''
    v_add_u32 {v_t1}, {64*i}, {v_lane}
    v_mul_hi_u32 {v_t2}, {v_t1}, {s_t0}
    v_mul_u32_u24 {v_t3}, 10, {v_t2}
    v_sub_u32 {v_t1}, {v_t1}, {v_t3}
    v_mul_u32_u24 {v_t2}, 1280, {v_t2}
    v_lshl_add_u32 {v_t2}, {v_t1}, 4, {v_t2}
    v_add_u32 v{2+i}, {s_t2}, {v_t2}
    ''')
T(f's_mul_i32 {s_mW}, {s_w}, 25600\ns_waitcnt lgkmcnt(0)\ns_cmp_ge_u32 {s_rb}, 8\ns_cselect_b32 s28, s58, s56\ns_cselect_b32 s29, s59, s57')
for i in range(25):
    if i % 5 == 0: T(f's_mov_b32 {s_t1}, {(i//5)*32*1280}')
    T(f's_add_u32 m0, {s_mW}, {1024*i}')
    T(f'buffer_load_dwordx4 v{2+i%5}, {sTMP}, {s_t1} offen lds')
T(f'''
v_lshrrev_b32 {v_t1}, 4, {v_lane}
v_bfe_u32 {v_t2}, {v_lane}, 2, 2
v_and_b32 {v_t3}, 3, {v_lane}
v_mul_u32_u24 {v_t3}, 40, {v_t3}
v_add_u32 {v_t3}, {s_mW}, {v_t3}
v_mad_u32_u24 {v_t4}, {v_t1}, 40, {v_t2}
v_add_u32 {v_t4}, 16, {v_t4}
v_mul_u32_u24 {v_t4}, 160, {v_t4}
v_add_u32 v8, {v_t4}, {v_t3}
v_lshrrev_b32 {v_t4}, 1, {v_t1}
v_mad_u32_u24 {v_t2}, {v_t4}, 24, {v_t2}
v_and_b32 {v_t4}, 1, {v_t1}
v_lshl_add_u32 {v_t2}, {v_t4}, 3, {v_t2}
v_mul_u32_u24 {v_t2}, 160, {v_t2}
v_add_u32 v7, {v_t2}, {v_t3}
s_lshl_b32 {s_t0}, {s_rb}, 2
s_add_u32 {s_t0}, {s_t0}, {s_w}
s_mul_i32 {s_t0}, {s_t0}, 25600
s_waitcnt vmcnt(0)
''')
for f in range(25):
    s_, ct = f // 5, f % 5
    for u in range(2):
        if s_ < 4: T(f'ds_read_b64_tr_b16 {vr(64+4*f+2*u,2)}, v7 offset:{(40*s_+4*u)*160+8*ct}')
        else: T(f'ds_read_b64_tr_b16 {vr(64+4*f+2*u,2)}, v8 offset:{640*u+8*ct}')
    if f >= 4:
        f2 = f - 4
        if f2 % 4 == 0: T(f's_add_u32 {s_t1}, {s_t0}, {WOF + f2*1024}')
        T(f'buffer_store_dwordx4 {vr(64+4*f2,4)}, {v_l16}, {sWS}, {s_t1} offen offset:{(f2%4)*1024} sc1')
for f2 in range(21, 25):
    if f2 % 4 == 0: T(f's_add_u32 {s_t1}, {s_t0}, {WOF + f2*1024}')
    T(f'buffer_store_dwordx4 {vr(64+4*f2,4)}, {v_l16}, {sWS}, {s_t1} offen offset:{(f2%4)*1024} sc1')
T(f'v_mov_b32 {v_padr}, 0')
poll(T, sDBG, '0')
T('s_waitcnt vmcnt(0)\ns_barrier')
T(f's_add_u32 {s_t0}, {s_f1}, {F1[0]}'); set_flag(T, s_t0)
T(f'''
v_and_b32 {v_t2}, 15, {v_lane}
v_lshlrev_b32 {v_t2}, 4, {v_t2}
v_mul_u32_u24 {v_t3}, 1280, {v_t1}
v_add_u32 {v_t3}, {v_t3}, {v_t2}
s_lshl_b32 {s_t0}, {s_rb}, 2
s_add_u32 {s_t0}, {s_t0}, {s_w}
s_mul_i32 {s_t1}, {s_t0}, {32*1280}
''')
for j in range(5): T(f'buffer_load_dwordx4 {vr(24+4*j,4)}, {v_t2}, {sWA}, 0 offen offset:{256*j}')
for i in range(8):
    for j in range(5): T(f'buffer_load_dwordx4 {vr(64+20*i+4*j,4)}, {v_t3}, {sX}, {s_t1} offen offset:{256*j}')
    T(f's_add_u32 {s_t1}, {s_t1}, {4*1280}')
T(f'''
v_lshlrev_b32 {v_t1}, 2, {v_t1}
v_cmp_eq_u32 vcc, 0, {v_t2}
v_cndmask_b32 {v_t1}, {v_big}, {v_t1}, vcc
s_lshl_b32 {s_t0}, {s_t0}, 7
s_add_u32 {s_t0}, {s_t0}, {G_OFF}
''')
for i in range(8):
    T(f'v_mov_b32 v{44+i}, 0')
    for k in range(20): T(f'v_dot2c_f32_bf16 v{44+i}, v{64+20*i+k}, v{24+k}')
for sh in (8, 4, 2, 1):
    for i in range(8): T(f'v_add_f32_dpp v{44+i}, v{44+i}, v{44+i} row_ror:{sh} row_mask:0xf bank_mask:0xf')
for i in range(8): T(f'v_mul_f32 v{44+i}, {f32(-math.log2(math.e))}, v{44+i}')
for i in range(8): T(f'v_exp_f32 v{44+i}, v{44+i}')
for i in range(8): T(f'v_add_f32 v{44+i}, 1.0, v{44+i}')
for i in range(8): T(f'v_rcp_f32 v{44+i}, v{44+i}')
T('s_nop 0')
for i in range(8): T(f'buffer_store_dword v{44+i}, {v_t1}, {sWS}, {s_t0} offen offset:{16*i} sc1')
T('s_waitcnt vmcnt(0)\ns_barrier')
T(f's_add_u32 {s_t0}, {s_f1}, {F1[1]}'); set_flag(T, s_t0)
emit_masks(T)
if STAMPS:
    for i in range(1, nst_join): T('s_memrealtime s[%d:%d]' % (ST0 + 2 * i, ST0 + 2 * i + 1))
T('s_branch L_join')

S.extend(T); S.extend(tail)
S('L_end:\ns_endpgm')

stats = []
body = finalize(S, stats)
hdr = open('cdna_kernels/%s.s.ref' % NAME).read().split('; Override')[0]
K = NAME + '_kernel'
txt = hdr + f'''; Generated by a hand-written generator script: one persistent workgroup per CU, phases chained by flags in d_ws.
; @launch grid=(256,1,1) block=(256,1,1) lds={LDS_BYTES}
.amdgcn_target "amdgcn-amd-amdhsa--gfx950"
.text
.globl {K}
.p2align 8
.type {K},@function
{K}:
''' + '\n'.join(body) + f'''
.section .rodata,"a"
.p2align 6
.amdhsa_kernel {K}
  .amdhsa_next_free_vgpr 512
  .amdhsa_next_free_sgpr 102
  .amdhsa_accum_offset 256
  .amdhsa_group_segment_fixed_size 0
  .amdhsa_kernarg_size 80
  .amdhsa_user_sgpr_count 2
  .amdhsa_user_sgpr_kernarg_segment_ptr 1
  .amdhsa_system_sgpr_workgroup_id_x 1
  .amdhsa_float_denorm_mode_32 3
.end_amdhsa_kernel
'''
open(OUT, 'w').write(txt)
print('instructions:', len(body), ' nops inserted:', len(stats), sum(s[0] for s in stats), ' stamps', nstamp[0], 'WS_SIZE', WS_SIZE)
if '--nops' in sys.argv:
    for s in stats: print(s)
```

```python
import re
REG_RE = re.compile(r'(?<![\w.])([vas])\[(\d+):(\d+)\]|(?<![\w.])([vas])(\d+)(?![\w\[])|(?<![\w.])(vcc|exec|m0)(?:_lo|_hi)?(?![\w])')
TRANS = ('v_exp_', 'v_log_', 'v_rcp_', 'v_rsq_', 'v_sqrt_', 'v_sin_', 'v_cos_')

def regs_of(op):
    out = []
    for m in REG_RE.finditer(op):
        if m.group(1):
            out += [m.group(1) + str(i) for i in range(int(m.group(2)), int(m.group(3)) + 1)]
        elif m.group(4):
            out.append(m.group(4) + m.group(5))
        else:
            out.append(m.group(6))
    return out

def split_ops(s):
    ops, depth, cur = [], 0, ''
    for ch in s:
        if ch in '[(': depth += 1
        if ch in '])': depth -= 1
        if ch == ',' and depth == 0:
            ops.append(cur.strip()); cur = ''
        else:
            cur += ch
    if cur.strip(): ops.append(cur.strip())
    return ops

class Ins:
    __slots__ = ('text', 'mn', 'kind', 'defs', 'uses', 'tok', 'passes', 'srcc', 'srcab', 'wide_data', 'dpp', 'lds')
    def __init__(self, text, tok=None):
        self.text = text; self.tok = tok
        self.defs = set(); self.uses = set(); self.passes = 0; self.srcc = (); self.srcab = set(); self.wide_data = set(); self.dpp = False; self.lds = False
        t = text.split(';')[0].strip()
        if not t or t.startswith('.'):
            self.kind = 'none'; self.mn = ''; return
        if t.endswith(':'):
            self.kind = 'label'; self.mn = ''; return
        if t.startswith('@'):
            self.kind = 'pseudo'; self.mn = t.split()[0]; return
        p = t.split(None, 1); mn = p[0]; self.mn = mn
        ops = split_ops(p[1]) if len(p) > 1 else []
        R = [regs_of(o) for o in ops]
        allr = lambda l: set(x for r in l for x in r)
        if mn.startswith('v_mfma'):
            self.kind = 'mfma'; self.defs = set(R[0]); self.uses = allr(R[1:]); self.srcc = tuple(R[3]); self.srcab = set(R[1]) | set(R[2])
            self.passes = 8 if '32x32' in mn else 4
        elif mn.startswith('v_'):
            self.kind = 'trans' if mn.startswith(TRANS) else 'valu'
            self.dpp = ('row_' in t or 'quad_perm' in t or 'wave_' in t)
            if mn.startswith('v_permlane') and 'swap' in mn:
                self.defs = allr(R[:2]); self.uses = allr(R[:2])
            elif mn.startswith(('v_add_co', 'v_sub_co', 'v_addc_co', 'v_subb_co')):
                self.defs = allr(R[:2]); self.uses = allr(R[2:])
            elif mn == 'v_nop':
                pass
            else:
                self.defs = set(R[0]); self.uses = allr(R[1:])
                if mn.startswith(('v_fmac', 'v_dot2c', 'v_writelane')) or self.dpp: self.uses |= self.defs
            self.uses.add('exec')
        elif mn.startswith('ds_'):
            self.kind = 'ds'
            if mn.startswith(('ds_read', 'ds_bpermute', 'ds_swizzle')):
                self.defs = set(R[0]); self.uses = allr(R[1:])
            else:
                self.uses = allr(R)
        elif mn.startswith(('buffer_', 'global_')):
            self.kind = 'vm'
            if mn.startswith(('buffer_inv', 'buffer_wbl2')):
                pass
            elif 'load' in mn:
                if re.search(r'\blds\b', t):
                    self.lds = True; self.uses = allr(R) | {'m0'}
                else:
                    self.defs = set(R[0]); self.uses = allr(R[1:])
            else:
                self.uses = allr(R)
                if 'x4' in mn or 'x3' in mn:
                    self.wide_data = set(R[0] if mn.startswith('buffer_') else R[1])
        elif mn.startswith(('s_load', 's_memtime', 's_memrealtime', 's_buffer_load')):
            self.kind = 'smem'; self.defs = set(R[0]); self.uses = allr(R[1:])
        elif mn == 's_waitcnt':
            self.kind = 'wait'
        elif mn == 's_nop':
            self.kind = 'nop'
        elif mn.startswith(('s_cbranch', 's_branch', 's_endpgm', 's_setpc', 's_barrier', 's_sleep', 's_setprio')):
            self.kind = 'ctl'
        elif mn.startswith('s_'):
            self.kind = 'salu'
            if mn.startswith(('s_cmp', 's_bitcmp')):
                self.uses = allr(R)
            else:
                self.defs = set(R[0]); self.uses = allr(R[1:])
                if 'saveexec' in mn: self.defs.add('exec')
        else:
            raise ValueError('unknown instr: ' + text)

class Tok:
    pass

class Stream:
    def __init__(self): self.l = []
    def __call__(self, s, tok=None):
        lines = [x.strip() for x in s.strip('\n').split('\n')]
        lines = [x for x in lines if x]
        for x in lines:
            self.l.append(Ins(x, tok))
        return self
    def vm(self, s):
        t = Tok(); self.l.append(Ins(s.strip(), t)); return t
    def wait(self, *toks):
        i = Ins('@wait'); i.tok = toks; self.l.append(i)
    def extend(self, o):
        self.l += o.l if isinstance(o, Stream) else o
    def drain(self):
        self('s_waitcnt vmcnt(0) lgkmcnt(0)')

def parse_wait(text):
    vm = re.search(r'vmcnt\((\d+)\)', text); lg = re.search(r'lgkmcnt\((\d+)\)', text)
    return (int(vm.group(1)) if vm else None, int(lg.group(1)) if lg else None)

def resolve_waits(l):
    out = []; vq = []; dq = []; smem = []
    for ins in l:
        nv = nd = None
        def need(q, pred):
            for k in range(len(q) - 1, -1, -1):
                if pred(q[k]): return len(q) - 1 - k
            return None
        if ins.kind == 'pseudo':
            if ins.mn == '@wait':
                toks = ins.tok
                nv = need(vq, lambda o: o.tok in toks); nd = need(dq, lambda o: o.tok in toks)
            elif ins.mn == '@reset':
                vq.clear(); dq.clear(); smem.clear(); out.append(ins); continue
            else:
                out.append(ins); continue
        elif ins.kind == 'wait':
            a, b = parse_wait(ins.text)
            if a is not None: del vq[:max(0, len(vq) - a)]
            if b is not None:
                if b == 0: smem.clear()
                del dq[:max(0, len(dq) - b)]
            out.append(ins); continue
        elif ins.kind in ('none', 'label', 'nop'):
            out.append(ins); continue
        else:
            touched = ins.uses | ins.defs
            nv = need(vq, lambda o: o.defs & touched); nd = need(dq, lambda o: o.defs & touched)
            if any(o.defs & touched for o in smem): nd = 0
        if nd is not None and smem: nd = 0
        if nv is not None or nd is not None:
            w = 's_waitcnt'
            if nv is not None:
                nv = min(nv, 63); w += ' vmcnt(%d)' % nv; del vq[:max(0, len(vq) - nv)]
            if nd is not None:
                nd = min(nd, 15); w += ' lgkmcnt(%d)' % nd; del dq[:max(0, len(dq) - nd)]
                if nd == 0: smem.clear()
            out.append(Ins(w))
        if ins.kind == 'pseudo': continue
        out.append(ins)
        if ins.kind == 'vm': vq.append(ins)
        elif ins.kind == 'ds': dq.append(ins)
        elif ins.kind == 'smem': smem.append(ins)
    return out

def is_sg(r): return r[0] == 's' or r == 'vcc'
def required(p, c):
    n = 0
    pv = p.kind in ('valu', 'trans'); cv = c.kind in ('valu', 'trans')
    if pv:
        vd = {r for r in p.defs if r[0] in 'va' and r != 'vcc'}
        sd = {r for r in p.defs if is_sg(r)}
        if c.kind == 'mfma' and vd & c.uses: n = max(n, 2)
        if cv and vd & c.uses:
            if c.mn.startswith(('v_readlane', 'v_readfirstlane')): n = max(n, 1)
            if c.mn.startswith('v_permlane') or c.dpp: n = max(n, 2)
            if p.kind == 'trans' and c.kind != 'trans': n = max(n, 1)
            if p.mn.startswith('v_dot'):
                n = max(n, 0 if (c.mn == p.mn and not (vd & (c.uses - c.defs))) else 3)
        if cv and p.mn.startswith('v_dot') and vd & c.defs and c.mn != p.mn: n = max(n, 3)
        if sd & c.uses:
            if cv: n = max(n, 4 if c.mn.startswith(('v_readlane', 'v_writelane')) else 2)
            if c.kind == 'vm': n = max(n, 5)
        if 'exec' in p.defs: n = max(n, 5)
    elif p.kind == 'mfma':
        big = {4: 8, 8: 12}[p.passes]
        if c.kind == 'mfma':
            if p.defs & c.srcab: n = max(n, big)
            if p.defs & set(c.srcc):
                if not (set(c.srcc) == p.defs and c.passes == p.passes): n = max(n, big - 2)
            elif p.defs & c.defs and not (p.defs == c.defs and c.passes == p.passes): n = max(n, big - 2)
        elif c.kind in ('valu', 'trans', 'vm', 'ds'):
            if p.defs & (c.uses | c.defs): n = max(n, big)
            if cv and set(p.srcc) & c.defs: n = max(n, {4: 3, 8: 7}[p.passes])
    elif p.kind == 'salu':
        if 'm0' in p.defs and c.kind == 'vm' and c.lds: n = max(n, 1)
        if 'm0' in p.defs and c.mn.startswith(('v_writelane', 'v_readlane')) and 'm0' in c.uses: n = max(n, 1)
    elif p.kind == 'vm':
        if p.wide_data & c.defs: n = max(n, 2 if cv or c.kind == 'mfma' else 1)
    return n

def pad_hazards(l, stats=None):
    out = []
    for ins in l:
        if ins.kind in ('none', 'label', 'pseudo'):
            out.append(ins); continue
        dist = 0; need = 0
        for p in reversed(out):
            if p.kind in ('none', 'label', 'pseudo'): continue
            if dist >= 12: break
            r = required(p, ins)
            need = max(need, r - dist)
            dist += (int(p.text.split()[1]) + 1) if p.kind == 'nop' else 1
        if need > 0:
            out.append(Ins('s_nop %d' % (need - 1)))
            if stats is not None: stats.append((need, ins.text))
        out.append(ins)
    return out

def finalize(stream, stats=None):
    l = resolve_waits(stream.l)
    l = pad_hazards(l, stats)
    return [('' if i.kind == 'label' else '    ') + i.text for i in l if i.kind != 'pseudo']

def weave(slots, side, lo=0, hi=None, per=None):
    items = side.l if isinstance(side, Stream) else side
    if hi is None: hi = len(slots)
    n = hi - lo; m = len(items)
    for k, it in enumerate(items):
        s = lo + (k * n // m if per is None else k // per)
        assert s < hi, "side stream does not fit"
        if isinstance(it, list): slots[s] += it
        else: slots[s].append(it)

def atomize(l):
    out = []
    for i in l:
        if i.mn.startswith('s_cselect'): out[-1].append(i)
        else: out.append([i])
    return out
```

```python
import sys, math, struct
from fw import *

NAME = "gated_mix__sliding_block__sliding_local_dilated__prompt"
ARGS = sys.argv[1:]
STAMPS = '--stamps' in ARGS
FINE = '--fine' in ARGS
def opt(name, default):
    for a in ARGS:
        if a.startswith('--' + name + '='): return int(a.split('=')[1])
    return default
OUT = [a for a in ARGS if not a.startswith('--')]
OUT = OUT[0] if OUT else 'k.s'

GRP = 2048 * 16
QKV = [0, 240 * GRP]
O_OFF = 480 * GRP
OBR = 32 * 128 * 640
WOF = O_OFF + 2 * OBR
G_OFF = WOF + 64 * 25600
FLG = G_OFF + 8192
F1 = [FLG, FLG + 4]
F2 = [FLG + 32768, FLG + 32768 + 16]
WS_SIZE = FLG + 65536
STAMP_OFF = WS_SIZE
BIG = 0x40000000
L_W = 0
L_X = 65536
GS = 8192 + 64
L_KA = L_X; L_VA = L_X + 3 * GS
L_VB = 131072; VBW = 4608
L_ONE = L_VB + 4 * VBW + ((L_VA + 3 * GS) % 256)
L_TAB = L_VB + 4 * VBW + 8192 + 256
LDS_BYTES = 160 * 1024
assert L_TAB + 1024 <= LDS_BYTES

def f32(x): return '0x%08x' % struct.unpack('<I', struct.pack('<f', x))[0]
QSCALE = (20 ** -0.5) * math.log2(math.e)
NEGINF = '0xff800000'

sX, sWA, sWB, sWS, sOUT, sDBG, sTMP = 's[4:7]', 's[8:11]', 's[12:15]', 's[16:19]', 's[20:23]', 's[24:27]', 's[28:31]'
s_xcd, s_t, s_rb, s_cb, s_w = 's32', 's33', 's34', 's35', 's36'
s_t0, s_t1, s_t2, s_t3 = 's37', 's38', 's39', 's40'
s_stb, s_scale, s_mW, s_mX = 's41', 's42', 's44', 's45'
s_hd, s_r2, s_so, s_q0 = 's46', 's47', 's48', 's49'
s_cnt, s_f1, s_f2, s_ob, s_o3, s_wob = 's50', 's51', 's52', 's53', 's54', 's55'
SW0, SX0 = 60, 70
ST0 = 80
s_bF, s_bS, s_dF, s_dS, s_mK, s_mV, s_gb, s_rot = 's84', 's85', 's86', 's87', 's88', 's89', 's90', 's91'
s_e0, s_e1, s_e2, s_e3 = 's92', 's93', 's94', 's95'
s_F1A, s_F1B, s_F2A, s_F2B = 's96', 's97', 's98', 's99'
v_lane = 'v1'
VWD, VXD, VWR, VXR = 2, 6, 10, 14
v_st, v_flag, v_one, v_pres, v_zero, v_tmp = 'v18', 'v19', 'v20', 'v21', 'v22', 'v23'
QA0, QA1 = 24, 32
E0, P0 = 42, 50
v_p1, v_p2, v_dma, v_h, v_r = 'v42', 'v43', 'v44', 'v45', 'v46'
v_t1, v_t2, v_t3, v_t4 = 'v58', 'v59', 'v60', 'v61'
v_l16, v_big = 'v62', 'v63'
ACC = [64, 128]
SB = [64, 80]; OA = [96, 112]
QB0, QB1, KB0 = 128, 136, 144
MB_DIAG, MB_PREV, MB_PREV0 = 160, 168, 176
M_FAR, M_DIAG = 192, 208
(v_p3, v_q4, v_qe, v_qo, v_k0, v_k1, v_v, v_vb, v_vh, v_o4, v_o2, v_kb0, v_kb1, v_halo, v_gad, v_mA, v_mB0, v_flagw) = ['v%d' % i for i in range(224, 242)]
v_g = ['v12', 'v13']
V4, V2, VRW, v_rr, v_out, v_p4 = 242, 246, 250, 'v253', 'v254', 'v255'
AC3 = 2; OF = [82, 162]
AW = 160
AK0, AK1, AV, AKB1 = 200, 208, 216, 232

def vr(b, n): return 'v[%d:%d]' % (b, b + n - 1)
def ar(b, n): return 'a[%d:%d]' % (b, b + n - 1)
mm = 'v_mfma_f32_32x32x16_bf16'

S = Stream()
tail = Stream()
nstamp = [0]; stamp_names = []
def stamp(name='', st=None):
    if STAMPS:
        st = st or S
        k = nstamp[0]
        if k > 0: st('v_writelane_b32 v0, s%d, %d' % (ST0 + 2 * ((k - 1) & 1), k - 1))
        st('s_memrealtime s[%d:%d]' % (ST0 + 2 * (k & 1), ST0 + 2 * (k & 1) + 1))
    stamp_names.append(name)
    nstamp[0] += 1
nlab = [0]
def lab(p):
    nlab[0] += 1
    return 'L_%s_%d' % (p, nlab[0])

def poll_issue(st, res, adr, srd, soff):
    st('buffer_load_dword %s, %s, %s, %s offen sc1' % (res, adr, srd, soff))
def poll_check(st, res, adr, srd, soff):
    l = lab('poll'); b = lab('back')
    st('v_cmp_ne_u32 vcc, 1, %s' % res)
    st('s_cbranch_vccnz %s' % l)
    st(b + ':')
    tail('@reset')
    tail(f'''
    {l}:
    s_mov_b32 {s_cnt}, 0
    {l}_a:
    buffer_load_dword {res}, {adr}, {srd}, {soff} offen sc1
    s_add_u32 {s_cnt}, {s_cnt}, 1
    s_waitcnt vmcnt(0)
    v_cmp_ne_u32 vcc, 1, {res}
    s_cbranch_vccz {b}
    s_cmp_lt_u32 {s_cnt}, 0x40000
    s_cbranch_scc1 {l}_a
    s_branch {b}
    ''')
def poll(st, res, adr, srd, soff):
    poll_issue(st, res, adr, srd, soff); poll_check(st, res, adr, srd, soff)
def set_flag(st, vf, base, off):
    st(f's_add_u32 {s_t0}, {base}, {off}')
    st(f'buffer_store_dword {v_one}, {vf}, {sWS}, {s_t0} offen sc1')
def mk(fn, *a):
    st = Stream(); fn(st, *a); return st.l

def setup23(st):
    st(f'''
    s_mov_b32 s14, {640*3840}
    s_mov_b32 s15, 0x20000
    s_mov_b32 s22, {2048*1280}
    s_mov_b32 s23, 0x20000
    s_mov_b32 {s_F1A}, {F1[0]}
    s_mov_b32 {s_F1B}, {F1[1]}
    s_mov_b32 {s_F2A}, {F2[0]}
    s_mov_b32 {s_F2B}, {F2[1]}
    s_and_b32 {s_r2}, {s_t}, 7
    s_lshr_b32 {s_t2}, {s_t}, 3
    s_lshl_b32 {s_t0}, {s_xcd}, 2
    s_add_u32 {s_hd}, {s_t0}, {s_t2}
    s_lshl_b32 {s_q0}, {s_r2}, 8
    s_lshl_b32 {s_t0}, {s_w}, 6
    s_add_u32 {s_q0}, {s_q0}, {s_t0}
    s_mul_i32 {s_e0}, {s_hd}, 5
    s_lshr_b32 {s_e0}, {s_e0}, 1
    s_and_b32 {s_t3}, {s_hd}, 1
    s_add_u32 {s_e1}, {s_e0}, {s_t3}
    s_lshl_b32 {s_so}, {s_t3}, 3
    s_lshl_b32 {s_t3}, {s_t3}, 1
    s_add_u32 {s_e2}, {s_e0}, 2
    s_sub_u32 {s_e2}, {s_e2}, {s_t3}
    s_lshl_b32 {s_e1}, {s_e1}, 15
    s_lshl_b32 {s_e2}, {s_e2}, 15
    s_lshl_b32 {s_t0}, {s_q0}, 4
    s_add_u32 {s_bF}, {s_e1}, {s_t0}
    s_add_u32 {s_bS}, {s_e2}, {s_t0}
    s_lshl_b32 {s_e3}, {s_r2}, 1
    s_add_u32 {s_e3}, {s_e3}, {s_w}
    s_lshl_b32 {s_t0}, {s_e3}, 11
    s_add_u32 {s_dF}, {s_e1}, {s_t0}
    s_add_u32 {s_dS}, {s_e2}, {s_t0}
    s_lshl_b32 {s_mK}, {s_w}, 11
    s_mul_i32 {s_mV}, {s_w}, {VBW}
    s_add_u32 {s_mV}, {s_mV}, {L_VB}
    s_lshl_b32 {s_gb}, {s_q0}, 2
    s_add_u32 {s_gb}, {s_gb}, {G_OFF}
    s_lshl_b32 {s_f1}, {s_rb}, 11
    s_lshl_b32 {s_t0}, {s_cb}, 7
    s_add_u32 {s_f1}, {s_f1}, {s_t0}
    s_lshl_b32 {s_f2}, {s_r2}, 12
    s_lshl_b32 {s_t0}, {s_hd}, 7
    s_add_u32 {s_f2}, {s_f2}, {s_t0}
    s_lshl_b32 {s_t0}, {s_w}, 2
    s_add_u32 {s_f2}, {s_f2}, {s_t0}
    s_lshl_b32 {s_ob}, {s_hd}, 7
    s_lshr_b32 {s_t0}, {s_q0}, 4
    s_add_u32 {s_ob}, {s_ob}, {s_t0}
    s_mul_i32 {s_ob}, {s_ob}, 640
    s_lshl_b32 {s_o3}, {s_w}, 10
    s_lshl_b32 {s_t0}, {s_hd}, 2
    s_add_u32 {s_o3}, {s_o3}, {s_t0}
    s_mul_i32 {s_o3}, {s_o3}, 640
    s_lshl_b32 {s_wob}, {s_r2}, 2
    s_add_u32 {s_wob}, {s_wob}, {s_w}
    s_mul_i32 {s_wob}, {s_wob}, 25600
    v_mov_b32 {v_zero}, 0
    v_lshrrev_b32 {v_h}, 5, {v_lane}
    v_and_b32 {v_r}, 31, {v_lane}
    v_cmp_eq_u32 vcc, 0, {v_lane}
    v_bfe_u32 {v_t1}, {v_lane}, 2, 1
    v_lshl_add_u32 {v_t1}, {v_t1}, 1, {s_e0}
    v_cndmask_b32 {v_flagw}, {v_big}, 0, vcc
    v_lshrrev_b32 {v_t1}, 4, {v_t1}
    v_and_b32 {v_t2}, 3, {v_lane}
    v_min_u32 {v_t3}, 2, {v_t2}
    v_mad_u32_u24 {v_t4}, {v_t3}, 5, {v_t1}
    v_mad_u32_u24 {v_tmp}, {v_t2}, 5, {v_t1}
    v_min_u32 {v_tmp}, 15, {v_tmp}
    s_sub_u32 {s_t1}, {s_e3}, 2
    s_max_i32 {s_t1}, {s_t1}, 0
    s_lshl_b32 {s_t1}, {s_t1}, 11
    s_andn2_b32 {s_t2}, {s_q0}, 127
    s_lshl_b32 {s_t2}, {s_t2}, 4
    v_cmp_eq_u32 vcc, 0, {v_t2}
    v_mov_b32 {v_t1}, {s_t1}
    v_mov_b32 {v_t3}, {s_t2}
    v_cndmask_b32 {v_t1}, {v_t1}, {v_t3}, vcc
    v_lshl_add_u32 {v_p1}, {v_t4}, 7, {v_t1}
    s_sub_u32 {s_t1}, {s_q0}, 32
    s_max_i32 {s_t1}, {s_t1}, 0
    s_andn2_b32 {s_t1}, {s_t1}, 127
    s_lshl_b32 {s_t1}, {s_t1}, 4
    v_and_b32 {v_t2}, 8, {v_lane}
    v_cmp_eq_u32 vcc, 0, {v_t2}
    v_mov_b32 {v_t1}, {s_t1}
    v_and_b32 {v_t2}, 1, {v_lane}
    v_cndmask_b32 {v_t1}, {v_t1}, {v_t3}, vcc
    v_lshl_add_u32 {v_p3}, {v_tmp}, 7, {v_t1}
    s_lshl_b32 {s_t0}, {s_w}, 1
    s_lshr_b32 {s_t1}, {s_r2}, 2
    s_add_u32 {s_t0}, {s_t0}, {s_t1}
    s_lshl_b32 {s_t0}, {s_t0}, 11
    s_add_u32 {s_t0}, {s_t0}, {15*128}
    v_lshl_add_u32 {v_p2}, {v_t2}, 14, {s_t0}
    ''')
    st(f'''
    s_cmp_ge_u32 {s_e3}, 2
    s_cselect_b32 {s_t1}, 0, {BIG}
    s_cselect_b32 {s_t2}, 0x3f803f80, 0
    v_add_u32 {v_dma}, {s_t1}, {v_l16}
    v_mov_b32 v24, {s_t2}
    v_mov_b32 v25, {s_t2}
    v_mov_b32 v26, {s_t2}
    v_mov_b32 v27, {s_t2}
    s_add_u32 {s_t1}, {s_mK}, {L_ONE}
    v_add_u32 {v_t1}, {s_t1}, {v_l16}
    ds_write_b128 {v_t1}, v[24:27]
    ds_write_b128 {v_t1}, v[24:27] offset:1024
    ''')
    st(f'''
    v_lshlrev_b32 {v_q4}, 15, {v_h}
    v_lshl_add_u32 {v_q4}, {v_r}, 4, {v_q4}
    v_cmp_eq_u32 vcc, 0, {v_h}
    v_lshl_add_u32 {v_t1}, {v_r}, 4, {s_so}
    s_cmp_eq_u32 {s_q0}, 0
    s_cselect_b32 {s_t3}, {BIG}, 0
    v_cndmask_b32 {v_qe}, {v_big}, {v_t1}, vcc
    v_cndmask_b32 {v_qo}, {v_t1}, {v_big}, vcc
    v_add_u32 {v_kb0}, {s_t3}, {v_q4}
    v_mov_b32 {v_t2}, {s_t3}
    v_cndmask_b32 {v_t2}, 0, {v_t2}, vcc
    v_add3_u32 {v_kb1}, {v_t2}, {v_l16}, {s_so}
    v_lshlrev_b32 {v_gad}, 2, {v_r}
    v_lshrrev_b32 {v_t1}, 4, {v_r}
    v_mul_u32_u24 {v_t1}, 640, {v_t1}
    v_and_b32 {v_t2}, 15, {v_lane}
    v_lshl_add_u32 {v_t3}, {v_h}, 8, {v_t1}
    v_lshl_add_u32 {v_o4}, {v_t2}, 4, {v_t3}
    v_lshl_add_u32 {v_t3}, {v_t2}, 3, {v_t1}
    v_add_u32 {v_t3}, 512, {v_t3}
    v_cndmask_b32 {v_o2}, {v_big}, {v_t3}, vcc
    v_lshrrev_b32 {v_t1}, 4, {v_lane}
    v_lshl_add_u32 {v_t3}, {v_t1}, 15, {s_bF}
    v_cmp_eq_u32 vcc, 2, {v_t1}
    v_mov_b32 {v_t4}, {s_bS}
    s_add_u32 {s_t3}, {s_t3}, {QKV[1] + 160*GRP - 256}
    v_cndmask_b32 {v_t3}, {v_t3}, {v_t4}, vcc
    v_cmp_eq_u32 vcc, 3, {v_t1}
    v_lshl_add_u32 {v_t3}, {v_t2}, 4, {v_t3}
    v_add_u32 {v_t3}, {s_t3}, {v_t3}
    v_cndmask_b32 {v_halo}, {v_t3}, {v_big}, vcc
    ''')
    st(f'''
    s_mov_b32 {s_t0}, 81920
    v_mul_lo_u32 {v_t3}, {v_h}, {s_t0}
    v_and_b32 {v_t4}, 1, {v_t1}
    v_lshl_add_u32 {v_t3}, {v_t4}, 8, {v_t3}
    v_lshl_add_u32 {v_t3}, {v_t2}, 4, {v_t3}
    s_mov_b32 {s_t0}, 163840
    v_mul_lo_u32 {v_t4}, {v_t1}, {s_t0}
    v_lshl_add_u32 {v_t4}, {v_t2}, 3, {v_t4}
    v_add_u32 {v_t4}, 512, {v_t4}
    ''')
    for rho in range(4):
        st(f'''
        s_add_u32 {s_t0}, {s_w}, {rho}
        s_and_b32 {s_t0}, {s_t0}, 3
        s_mul_i32 {s_t1}, {s_t0}, 640
        v_add_u32 v{V4+rho}, {s_t1}, {v_t3}
        v_add_u32 v{V2+rho}, {s_t1}, {v_t4}
        s_mul_i32 {s_t1}, {s_t0}, {3*5120}
        ''')
        if rho:
            st(f's_add_u32 {s_t1}, {s_t1}, {(rho-1)*5120}\nv_add_u32 v{VRW+rho-1}, {s_t1}, {v_l16}')
        else:
            st(f'v_add_u32 {v_rr}, {s_t1}, {v_l16}')
    st(f'''
    v_mul_u32_u24 {v_t2}, 1280, {v_t2}
    v_mad_u32_u24 {v_t2}, {v_t1}, 40, {v_t2}
    s_lshl_b32 {s_t0}, {s_hd}, 2
    s_add_u32 {s_t0}, {s_t0}, {s_w}
    s_mul_i32 {s_t0}, {s_t0}, {16*1280}
    s_mul_i32 {s_t1}, {s_r2}, 160
    s_add_u32 {s_t0}, {s_t0}, {s_t1}
    v_add_u32 {v_out}, {s_t0}, {v_t2}
    v_and_b32 {v_t1}, 7, {v_lane}
    s_lshl_b32 {s_t0}, {s_xcd}, 12
    s_lshl_b32 {s_t1}, {s_w}, 10
    s_add_u32 {s_t0}, {s_t0}, {s_t1}
    s_and_b32 {s_t1}, {s_hd}, 3
    s_lshl_b32 {s_t1}, {s_t1}, 2
    s_add_u32 {s_t0}, {s_t0}, {s_t1}
    v_lshl_add_u32 {v_p4}, {v_t1}, 7, {s_t0}
    ''')
    st(f'''
    s_lshl_b32 {s_t0}, {s_w}, 10
    v_mul_u32_u24 {v_t1}, {GS}, {v_h}
    v_lshl_add_u32 {v_t1}, {v_r}, 4, {v_t1}
    s_add_u32 {s_t1}, {s_t0}, {L_KA}
    v_add_u32 {v_k0}, {s_t1}, {v_t1}
    s_add_u32 {s_t1}, {s_t0}, {L_KA + 2*GS}
    s_add_u32 {s_t1}, {s_t1}, {s_so}
    v_add_u32 {v_k1}, {s_t1}, {v_l16}
    v_bfe_u32 {v_t1}, {v_lane}, 2, 2
    v_lshl_add_u32 {v_t1}, {v_h}, 2, {v_t1}
    v_lshlrev_b32 {v_t1}, 4, {v_t1}
    v_and_b32 {v_pres}, 16, {v_lane}
    v_cmp_eq_u32 vcc, 0, {v_pres}
    v_and_b32 {v_t2}, 1, {v_lane}
    v_bfe_u32 {v_t3}, {v_lane}, 1, 1
    v_add_u32 {v_t4}, 2, {v_t3}
    v_lshlrev_b32 {v_t3}, 3, {v_t3}
    v_mov_b32 {v_tmp}, {s_so}
    v_cndmask_b32 {v_t2}, {v_t4}, {v_t2}, vcc
    v_cndmask_b32 {v_t3}, {v_tmp}, {v_t3}, vcc
    v_cmp_eq_u32 vcc, 3, {v_t2}
    v_add_u32 {v_t1}, {v_t1}, {v_t3}
    s_add_u32 {s_t1}, {s_t0}, {L_VA}
    v_mul_u32_u24 {v_t3}, {GS}, {v_t2}
    v_add3_u32 {v_v}, {v_t1}, {v_t3}, {s_t1}
    v_mul_u32_u24 {v_t3}, 1088, {v_t2}
    v_add3_u32 {v_vb}, {v_t1}, {v_t3}, {s_mV}
    s_add_u32 {s_t1}, {s_mV}, {3*1088}
    v_lshlrev_b32 {v_t3}, 8, {v_t2}
    v_add3_u32 {v_vh}, {v_t1}, {v_t3}, {s_t1}
    s_add_u32 {s_t1}, {s_t0}, {L_ONE}
    v_add_u32 {v_t3}, {s_t1}, {v_t1}
    v_add_u32 {v_t1}, {L_ONE + 4096}, {v_t1}
    v_cndmask_b32 {v_v}, {v_v}, {v_t3}, vcc
    v_cndmask_b32 {v_vb}, {v_vb}, {v_t1}, vcc
    v_cndmask_b32 {v_vh}, {v_vh}, {v_t1}, vcc
    ''')
    for b in (AK1 + 2, AK1 + 3, AK1 + 6, AK1 + 7, AKB1 + 2, AKB1 + 3, AKB1 + 6, AKB1 + 7):
        st(f'v_accvgpr_write_b32 a{b}, 0')
    st(f'v_mov_b32 v{QA1+8}, 0\nv_mov_b32 v{QA1+9}, 0')
    mk_ = [0, 0, 0, 0]
    for e in range(256):
        ok = (e - 32 <= 0) if e < 64 else (e - 96 > 0) if e < 128 else (0 <= 191 - e <= 14 and (191 - e) % 2 == 0)
        if ok: mk_[e >> 6] |= 1 << (e & 63)
    assert mk_[3] == 0
    st(f'''
    s_cmp_eq_u32 {s_w}, 0
    s_cselect_b32 s38, 0x{mk_[0] & 0xffffffff:x}, 0
    s_cselect_b32 s39, 0x{mk_[0] >> 32:x}, 0
    s_cmp_eq_u32 {s_w}, 1
    s_cselect_b32 s39, 0x{mk_[1] >> 32:x}, s39
    s_cmp_eq_u32 {s_w}, 2
    s_cselect_b32 s39, 0x{mk_[2] >> 32:x}, s39
    v_mov_b32 {v_tmp}, {NEGINF}
    s_lshl_b32 {s_t0}, {s_w}, 8
    s_add_u32 {s_t0}, {s_t0}, {L_TAB}
    v_cndmask_b32 {v_tmp}, {v_tmp}, 0, s[38:39]
    v_lshl_add_u32 {v_t1}, {v_lane}, 2, {s_t0}
    ds_write_b32 {v_t1}, {v_tmp}
    v_lshlrev_b32 {v_t1}, 2, {v_h}
    v_sub_u32 {v_t1}, {v_t1}, {v_r}
    v_lshlrev_b32 {v_t1}, 2, {v_t1}
    v_add_u32 {v_mA}, {L_TAB + 128}, {v_t1}
    s_cmp_eq_u32 {s_q0}, 0
    s_cselect_b64 vcc, -1, 0
    v_mov_b32 {v_t1}, {L_TAB + 4*64}
    v_cndmask_b32 {v_mB0}, {v_mA}, {v_t1}, vcc
    ''')
    assert mk_[1] & 0xffffffff == 0 and mk_[2] & 0xffffffff == 0

def mask_reads(reg, adr, base, a0=0):
    l = []
    for a in range(a0, 4):
        for b in (0, 2):
            k = base + 8 * a + b
            l.append(Ins(f'ds_read2_b32 {vr(reg+4*a+b,2)}, {adr} offset0:{k} offset1:{k+1}'))
    return l
masksA = mask_reads(M_DIAG, v_mA, 0) + mask_reads(M_FAR, v_mA, 64)
masksB = mask_reads(MB_DIAG, v_mA, 159) + mask_reads(MB_PREV, v_mA, 127, 2) + mask_reads(MB_PREV0, v_mB0, 127, 2)

def kvq_loads():
    g = []
    for ty in (1, 2):
        for gi in range(3):
            st = Stream()
            st(f's_add_u32 m0, {s_mK}, {(L_KA if ty == 1 else L_VA) + gi*GS}')
            st(f's_add_u32 {s_e1}, {s_dS if gi == 2 else s_dF}, {QKV[0] + (80*ty + (gi if gi < 2 else 0))*GRP - 4096}')
            st(f'buffer_load_dwordx4 {v_dma}, {sWS}, {s_e1} offen sc1 lds')
            g.append(st.l); st = Stream()
            tok = st.vm(f'buffer_load_dwordx4 {v_dma}, {sWS}, {s_e1} offen offset:1024 sc1 lds')
            g.append(st.l)
    for x in (f'buffer_load_dwordx4 {vr(QA0,4)}, {v_q4}, {sWS}, {s_bF} offen sc1',
              f'buffer_load_dwordx2 {vr(QA1,2)}, {v_qe}, {sWS}, {s_bS} offen sc1',
              f'buffer_load_dwordx2 {vr(QA1+2,2)}, {v_qo}, {sWS}, {s_bS} offen sc1',
              f'buffer_load_dwordx4 {vr(QA0+4,4)}, {v_q4}, {sWS}, {s_bF} offen offset:512 sc1',
              f'buffer_load_dwordx2 {vr(QA1+4,2)}, {v_qe}, {sWS}, {s_bS} offen offset:512 sc1',
              f'buffer_load_dwordx2 {vr(QA1+6,2)}, {v_qo}, {sWS}, {s_bS} offen offset:512 sc1'):
        g.append([Ins(x)])
    return g, tok
def wo_loads(f0, f1):
    g = []
    for F in range(f0, f1):
        br, f = F // 25, F % 25
        st = Stream()
        if f % 4 == 0 or F == f0: st(f's_add_u32 {s_e2}, {s_wob}, {WOF + br*32*25600 + (f & ~3)*1024}')
        st(f'buffer_load_dwordx4 {ar(4*F,4)}, {v_l16}, {sWS}, {s_e2} offen offset:{(f%4)*1024} sc1')
        g.append(st.l)
    return g

S(f'''
s_cmp_ge_u32 s2, 0x100
s_cbranch_scc1 L_end
s_load_dwordx2 s[4:5], s[0:1], 0
s_load_dwordx2 s[8:9], s[0:1], 8
s_load_dwordx2 s[12:13], s[0:1], 32
s_load_dwordx2 s[16:17], s[0:1], 72
s_load_dwordx2 s[20:21], s[0:1], 56
s_load_dwordx2 s[24:25], s[0:1], 64
''')
stamp('start')
S(f'''
v_lshrrev_b32 {v_tmp}, 6, v0
v_and_b32 {v_lane}, 63, v0
v_readfirstlane_b32 {s_w}, {v_tmp}
s_and_b32 {s_xcd}, s2, 7
s_lshr_b32 {s_t}, s2, 3
s_and_b32 {s_t0}, {s_xcd}, 1
s_lshl_b32 {s_t0}, {s_t0}, 3
s_and_b32 {s_t1}, {s_t}, 7
s_add_u32 {s_rb}, {s_t0}, {s_t1}
s_lshr_b32 {s_t0}, {s_xcd}, 1
s_lshl_b32 {s_t0}, {s_t0}, 2
s_lshr_b32 {s_t2}, {s_t}, 3
s_add_u32 {s_cb}, {s_t0}, {s_t2}
s_mov_b32 s6, {2048*1280}
s_mov_b32 s7, 0x20000
s_mov_b32 s11, 0x20000
s_cmp_eq_u32 {s_cb}, 15
s_cbranch_scc1 L_spare
s_mov_b32 s10, {640*3840}
''')
ROT = opt('rot', 10)
if ROT == 10:
    S(f's_mul_i32 {s_rot}, {s_t2}, 5\ns_lshr_b32 {s_rot}, {s_rot}, 1\ns_add_u32 {s_rot}, {s_rot}, {s_t1}')
elif ROT == 1:
    S(f's_mov_b32 {s_rot}, 0')
elif ROT == 2:
    S(f's_add_u32 {s_rot}, {s_t1}, {s_t2}\ns_and_b32 {s_rot}, {s_rot}, 1\ns_mul_i32 {s_rot}, {s_rot}, 5')
elif ROT == 4:
    S(f's_add_u32 {s_rot}, {s_t1}, {s_t2}\ns_and_b32 {s_rot}, {s_rot}, 3\ns_mul_i32 {s_rot}, {s_rot}, 5\ns_lshr_b32 {s_rot}, {s_rot}, 1')
elif ROT == 22:
    S(f's_add_u32 {s_rot}, {s_t1}, {s_t2}\ns_and_b32 {s_rot}, {s_rot}, 1\ns_lshl_b32 {s_rot}, {s_rot}, 1\ns_lshr_b32 {s_t0}, {s_xcd}, 1\ns_add_u32 {s_t0}, {s_t0}, {s_xcd}\ns_and_b32 {s_t0}, {s_t0}, 1\ns_add_u32 {s_rot}, {s_rot}, {s_t0}\ns_mul_i32 {s_rot}, {s_rot}, 5\ns_lshr_b32 {s_rot}, {s_rot}, 1')
elif ROT == 3:
    S(f's_add_u32 {s_rot}, {s_t1}, {s_t2}\ns_mul_i32 {s_t0}, {s_rot}, 86\ns_lshr_b32 {s_t0}, {s_t0}, 8\ns_mul_i32 {s_t0}, {s_t0}, 3\ns_sub_u32 {s_rot}, {s_rot}, {s_t0}\ns_mul_i32 {s_rot}, {s_rot}, 7\ns_lshr_b32 {s_rot}, {s_rot}, 1')
def rot(st, n):
    st(f'''
    s_cmp_ge_u32 {s_rot}, 10
    s_cselect_b32 {s_t3}, 10, 0
    s_sub_u32 {s_rot}, {s_rot}, {s_t3}
    s_mul_i32 s{SW0+n}, {s_rot}, {64*3840}
    s_lshl_b32 s{SX0+n}, {s_rot}, 7
    s_add_u32 {s_rot}, {s_rot}, 1
    ''')
rot(S, 0)
S(f'''
v_lshrrev_b32 {v_t1}, 4, {v_lane}
v_lshrrev_b32 {v_t2}, 3, {v_lane}
v_mul_u32_u24 {v_t2}, 1280, {v_t2}
v_and_b32 {v_t3}, 7, {v_lane}
v_xor_b32 {v_t3}, {v_t3}, {v_t1}
s_lshl_b32 {s_stb}, {s_rb}, 2
s_add_u32 {s_stb}, {s_stb}, {s_w}
s_mul_i32 {s_t2}, {s_stb}, {32*1280}
v_add_u32 {v_t2}, {s_t2}, {v_t2}
v_lshl_add_u32 v{VXD}, {v_t3}, 4, {v_t2}
v_xor_b32 {v_t3}, 4, {v_t3}
v_lshl_add_u32 v{VXD+1}, {v_t3}, 4, {v_t2}
v_add_u32 v{VXD+2}, {2*(8*1280-1024)}, v{VXD}
v_add_u32 v{VXD+3}, {3*(8*1280-1024)}, v{VXD+1}
v_add_u32 v{VXD+1}, {8*1280-1024}, v{VXD+1}
s_lshl_b32 {s_mW}, {s_w}, 12
s_add_u32 {s_mX}, {s_mW}, {L_X}
v_and_b32 {v_t2}, 15, {v_lane}
v_lshlrev_b32 {v_t3}, 2, {v_t1}
v_xor_b32 {v_t2}, {v_t2}, {v_t3}
v_mul_u32_u24 {v_t3}, 3840, {v_t1}
v_lshl_add_u32 {v_t3}, {v_t2}, 4, {v_t3}
s_mul_i32 {s_t1}, {s_w}, {16*3840}
s_lshl_b32 {s_t2}, {s_cb}, 8
s_add_u32 {s_t1}, {s_t1}, {s_t2}
v_add_u32 v{VWD}, {s_t1}, {v_t3}
''')
for i in range(1, 4):
    S(f'v_add_u32 v{VWD+i}, {i*(4*3840-1024)}, v{VWD}')
rot(S, 1)
S('s_waitcnt lgkmcnt(0)')

dma_tok = {}
WSLOT = [n % 4 for n in range(10)] + [2, 6, 3, 7, 0, 4, 1, 2, 3, 0]
WISS = {n: n - 2 for n in range(3, 11)}
WISS.update({11: 8, 12: 9, 13: 9, 14: 10, 15: 10, 16: 11, 17: 12, 18: 14, 19: 16})
CTM = opt('ctm', 2)
def dma_stage(n):
    p, ns, slot = n // 10, n % 10, WSLOT[n]
    g = []
    if p == 0:
        g.append([Ins(f's_add_u32 m0, {s_mX}, {slot*16384}')])
        for i in range(4):
            g.append([Ins(f'buffer_load_dwordx4 v{VXD+i}, {sX}, s{SX0+ns} offen offset:{1024*i} lds')])
        g[-1].append(Ins(f's_add_u32 m0, {s_mW}, {L_W+slot*16384}'))
    else:
        g.append([Ins(f's_add_u32 m0, {s_mW}, {L_W+slot*16384}')])
    for i in range(4):
        st = Stream()
        dma_tok[n] = st.vm(f'buffer_load_dwordx4 v{VWD+i}, {sWB if p else sWA}, s{SW0+ns} offen offset:{1024*i} lds')
        g.append(st.l)
    return g

def common_consts(st):
    if opt('wsoff', 0): st(f"s_add_u32 s16, s16, {opt('wsoff', 0) << 20}\ns_addc_u32 s17, s17, 0")
    st(f'''
    s_mov_b32 s18, {WS_SIZE + (65536 if STAMPS else 0)}
    s_mov_b32 s19, 0x20000
    s_mov_b32 s26, 256
    s_mov_b32 s27, 0x20000
    s_mov_b32 s31, 0x20000
    v_cmp_eq_u32 vcc, 0, v0
    v_mov_b32 {v_big}, {BIG}
    v_mov_b32 {v_one}, 1
    v_lshlrev_b32 {v_l16}, 4, {v_lane}
    v_cndmask_b32 {v_flag}, {v_big}, 0, vcc
    ''')

PRE = opt('pre', 5)
d0, d1, d2 = dma_stage(0), dma_stage(1), dma_stage(2)
for g in d0: S.extend(g)
common_consts(S)
S(f'''
s_getpc_b64 s[28:29]
L_pc:
s_mov_b32 s30, L_end-L_pc
v_lshlrev_b32 {v_t1}, 7, v0
buffer_load_dword v47, {v_t1}, {sTMP}, 0 offen
''')
for g in d1[:PRE]: S.extend(g)
stamp('iss0')
for n in range(2, 10): rot(S, n)
S(f'''
v_lshrrev_b32 {v_t1}, 5, {v_lane}
v_bfe_u32 {v_t2}, {v_lane}, 2, 2
v_lshl_add_u32 {v_t3}, {v_t1}, 3, {v_t2}
v_lshlrev_b32 {v_t3}, 8, {v_t3}
v_bfe_u32 {v_tmp}, {v_lane}, 4, 1
v_lshl_add_u32 {v_t3}, {v_tmp}, 5, {v_t3}
v_and_b32 {v_tmp}, 1, {v_lane}
v_lshl_add_u32 {v_t3}, {v_tmp}, 4, {v_t3}
v_bfe_u32 {v_tmp}, {v_lane}, 1, 1
v_lshl_add_u32 {v_t3}, {v_tmp}, 3, {v_t3}
v_lshl_add_u32 v{VWR}, {v_t2}, 6, {v_t3}
''')
for ct in range(1, 4):
    S(f'v_xor_b32 v{VWR+ct}, {ct*64}, v{VWR}')
S(f'''
v_and_b32 {v_t2}, 31, {v_lane}
v_bfe_u32 {v_t3}, {v_lane}, 1, 3
v_xor_b32 {v_t3}, {v_t3}, {v_t1}
v_lshlrev_b32 {v_t3}, 4, {v_t3}
v_lshl_add_u32 {v_t3}, {v_t2}, 7, {v_t3}
v_add_u32 v{VXR}, {s_mX}, {v_t3}
''')
for s_ in range(1, 4):
    S(f'v_xor_b32 v{VXR+s_}, {s_*32}, v{VXR}')
S(f'''
s_lshl_b32 {s_t1}, {s_stb}, 9
v_lshlrev_b32 {v_t1}, 15, {v_t1}
v_lshl_add_u32 {v_t1}, {v_t2}, 4, {v_t1}
v_add_u32 {v_st}, {s_t1}, {v_t1}
s_lshl_b32 {s_stb}, {s_cb}, 19
s_cmp_lt_u32 {s_cb}, 5
s_cselect_b32 s42, {f32(QSCALE)}, 1.0
s_mov_b32 s43, s42
''')
su = Stream(); setup23(su)
SPLIT = opt('split', 100)
sug = atomize(su.l)
su_pre, su_post = sug[:SPLIT], sug[SPLIT:]
for g in su_pre: S.extend(g)
stamp('setup')
for g in d1[PRE:]: S.extend(g)

seq = []
for n in range(20 - CTM):
    seq += [(n, s_, ct) for s_ in range(4) for ct in range(4)]
seq += [(n, s_, ct) for ct in range(4) for n in range(20 - CTM, 20) for s_ in range(4)]
def w_reads(k):
    n, s_, ct = seq[k]; buf = AW + 4 * (k & 7); sl_ = WSLOT[n]
    return [Ins(f'ds_read_b64_tr_b16 {ar(buf+2*u,2)}, v{(VXR if sl_ >= 4 else VWR)+ct} offset:{(sl_%4)*16384+(16*s_+4*u)*256}') for u in range(2)]
def x_read(n, s_):
    return [Ins(f'ds_read_b128 {ar(4*(4*n+s_),4)}, v{VXR+s_} offset:{(n%4)*16384}')]
QSC = ['', ' sc1', ' nt', ' sc0 sc1', ' sc1 nt'][opt('qsc', 1)]
def epi1_tile(p, ct, pk=False):
    st = Stream(); tok = None
    for u in range(2):
        b = ACC[p] + 16 * ct + 8 * u
        if pk:
            for i in range(0, 8, 2): st(f'v_pk_mul_f32 {vr(b+i,2)}, {vr(b+i,2)}, s[42:43]')
        else:
            for i in range(8): st(f'v_mul_f32 v{b+i}, s42, v{b+i}')
        for i in range(4): st(f'v_cvt_pk_bf16_f32 v{b+i}, v{b+2*i}, v{b+2*i+1}')
        st(f's_add_u32 {s_e0}, {s_stb}, {QKV[p]+(4*ct+2*u)*GRP}')
        tok = st.vm(f'buffer_store_dwordx4 {vr(b,4)}, {v_st}, {sWS}, {s_e0} offen{QSC}')
    return st.l, tok

S.wait(dma_tok[0]); S('s_barrier')
stamp('first')
S.extend(x_read(0, 0))
for k in range(4): S.extend(w_reads(k))
slots = []
for k, (n, s_, ct) in enumerate(seq):
    p = n // 10
    acc = vr(ACC[p] + 16 * ct, 16)
    first = (n % 10 == 0 and s_ == 0)
    g = [Ins(f'{mm} {acc}, {ar(AW+4*(k&7),4)}, {ar(4*(4*(n%10)+s_),4)}, {"0" if first else acc}')]
    if k + 4 < len(seq):
        n2, s2, c2 = seq[k + 4]
        if k % 16 == 12 and k // 16 + 1 <= 20 - CTM: g.append(('BAR', n2))
        if c2 == 0 and n2 < 10: g += x_read(n2, s2)
        g += w_reads(k + 4)
    slots.append(g)
weave(slots, d2, 0, 10)
for b in range(1, 20):
    l = [g for n in range(3, 20) if WISS[n] == b for g in dma_stage(n)]
    if l: weave(slots, l, 16 * b - 3, 16 * b + (9 if b < 16 else 3))
weave(slots, [Ins(f'v_add_u32 v{VXR+ct}, {L_X}, v{VWR+ct}') for ct in range(4)], 158, 162)
if su_post: weave(slots, su_post, 2, 16 * 8)
slots[16 * 8 + 4] += mk(poll_issue, v_pres, v_zero, sDBG, '0')
slots[16 * 9 + 14] += mk(poll_check, v_pres, v_zero, sDBG, '0')
epiA = []
for ct in range(4):
    l, tokA = epi1_tile(0, ct); epiA += l
weave(slots, epiA, 163, opt('epiAend', 212))
FLAGA = opt('flagA', 15)
WO0 = opt('wo0', 14)
NWO1 = opt('nwo1', 28)
slots[16 * (WO0 - 1) - 8] += mk(poll_issue, v_pres, v_p2, sWS, s_F1A)
slots[16 * (WO0 - 1) + 14] += mk(poll_check, v_pres, v_p2, sWS, s_F1A) + [('ST', 'pc2')]
slots[16 * FLAGA - 5] += [('ST', 'preF')]
P1S = opt('p1s', 17)
wl = wo_loads(0, NWO1)
n_a = min(NWO1, 5 * (P1S - WO0))
weave(slots, wl[:n_a], 16 * WO0, 16 * P1S - 8)
weave(slots, masksA, 16 * 15, 16 * 16)
slots[16 * P1S - 7] += mk(poll_issue, v_pres, v_p1, sWS, s_F1A)
slots[16 * P1S + 9] += [('ST', 'pre1')] + mk(poll_check, v_pres, v_p1, sWS, s_F1A) + [('ST', 'pc1')]
for k_ in (295, 303, 311): slots[k_] += [('ST', 's%d' % k_)]
kv, tokKV = kvq_loads()
assert 16 * P1S + 10 >= 16 * 16 + 13
weave(slots, kv, 16 * P1S + 10, 16 * P1S + 22)
if n_a < NWO1: weave(slots, wo_loads(n_a, NWO1), 16 * P1S + 22, 16 * 19 + 12)
assert NWO1 <= 4 * (10 - CTM)
for ct in range(3):
    l, tokB = epi1_tile(1, ct)
    lo = 320 - 4 * CTM * (3 - ct) + 2
    weave(slots, l, lo, min(lo + 4 * CTM, 320))
for k, g in enumerate(slots):
    for it in g:
        if isinstance(it, tuple) and it[0] == 'ST':
            if FINE: stamp(it[1])
        elif isinstance(it, tuple):
            n2 = it[1]
            tk = [dma_tok[n2]] if n2 < 20 - CTM else [dma_tok[m] for m in range(n2, 20)]
            if n2 == FLAGA: tk.append(tokA)
            S.wait(*tk)
            S('s_barrier')
            if n2 == FLAGA: set_flag(S, v_flag, s_f1, F1[0])
            if FINE or n2 in (10, 14, 18): stamp('b%d' % n2)
        else:
            S.l.append(it)
stamp('p1end')
l, tokB = epi1_tile(1, 3, True)
S.extend(l)
S.wait(tokKV)
S('s_barrier')
S('L_join:')
stamp('join')
nst_join = nstamp[0] - 1

steps = [(0, 0)] + [(j, q) for j in range(1, 9) for q in range(2)] + [(9, 1)]
def k0_read(j): return Ins(f'ds_read_b128 {ar(AK0+4*(j&1),4)}, {v_k0} offset:{512*j}')
def k1_read(j): return Ins(f'ds_read_b64 {ar(AK1+4*((j>>1)&1),2)}, {v_k1} offset:{512*j}')
def v_read(j, kk, u): return Ins(f'ds_read_b64_tr_b16 {ar(AV+8*(j&1)+4*kk+2*u,2)}, {v_v} offset:{512*j+256*kk+128*u}')
def qka(n):
    j, q = steps[n]
    c = vr(M_FAR, 16) if j == q else vr(M_DIAG, 16) if j == 8 + q else '0'
    return f'{mm} {vr(SB[n&1],16)}, {ar(AK0+4*(j&1),4)}, {vr(QA0+4*q,4)}, {c}'
def qkb(n):
    j, q = steps[n]
    return f'{mm} {vr(SB[n&1],16)}, {ar(AK1+4*((j>>1)&1),4)}, {vr(QA1+4*q+2*(j&1),4)}, {vr(SB[n&1],16)}'
def pv(n, kk):
    j, q = steps[n]
    c = '0' if (j == q and kk == 0) else vr(OA[q], 16)
    return f'{mm} {vr(OA[q],16)}, {ar(AV+8*(j&1)+4*kk,4)}, {vr(P0+4*kk,4)}, {c}'
def exps(n, g): return [f'v_exp_f32 v{E0+4*(g&1)+i}, v{SB[n&1]+4*g+i}' for i in range(4)]
def cvts(g): return [f'v_cvt_pk_bf16_f32 v{P0+2*g+i}, v{E0+4*(g&1)+2*i}, v{E0+4*(g&1)+2*i+1}' for i in range(2)]
S.l += [k0_read(0), k1_read(0), k0_read(1)] + [v_read(0, kk, u) for kk in range(2) for u in range(2)]
S(qka(0)); S(qkb(0))
S.l += masksB[:10]
N = len(steps)
groups = []
for n in range(N):
    for g in range(4):
        st = Stream()
        if g == 0 and n + 1 < N: st(qka(n + 1))
        if g == 1 and n > 0: st(pv(n - 1, 1))
        if g == 2 and n + 1 < N: st(qkb(n + 1))
        if g == 3: st(pv(n, 0))
        if g > 0 or n > 0:
            for x in cvts((g - 1) & 3): st(x)
        for x in exps(n, g): st(x)
        groups.append(st.l)
first = {}
for n, (j, q) in enumerate(steps): first.setdefault(j, n)
last = {j: n for n, (j, q) in enumerate(steps)}
for j in range(1, 10):
    if j >= 2: groups[4 * max(last[j-2] - 1, 0) + 1].append(k0_read(j))
    if j % 2 == 0: groups[4 * max(first[j] - 3, 0) + 0].append(k1_read(j))
    for kk in range(2):
        for u in range(2):
            base = 4 * (last[j-2] + 1) + 1 if j >= 2 else 0
            groups[base + 2 * kk + u].append(v_read(j, kk, u))
weave(groups, masksB[10:], 4, 16)
FB = opt('fb', 3)
st = Stream(); st.wait(tokB); st('s_barrier'); set_flag(st, v_flag, s_f1, F1[1]); groups[4 * FB - 1] += st.l
P3S = opt('p3s', 11)
weave(groups, wo_loads(NWO1, 50), 0, 4 * (P3S - 2) - 1)
groups[4 * (P3S - 2) - 1] += mk(poll_issue, v_pres, v_p3, sWS, s_F1B)
groups[4 * P3S - 1] += mk(poll_check, v_pres, v_p3, sWS, s_F1B)
bl = []
def G(txt):
    st = Stream(); st(txt); bl.append(st.l)
G(f's_add_u32 {s_e0}, {s_bF}, {QKV[1]}\nbuffer_load_dwordx4 {vr(QB0,4)}, {v_q4}, {sWS}, {s_e0} offen sc1')
G(f'buffer_load_dwordx4 {vr(QB0+4,4)}, {v_q4}, {sWS}, {s_e0} offen offset:512 sc1')
G(f's_add_u32 {s_e1}, {s_bS}, {QKV[1]}\nbuffer_load_dwordx2 {vr(QB1,2)}, {v_qe}, {sWS}, {s_e1} offen sc1')
G(f'buffer_load_dwordx2 {vr(QB1+2,2)}, {v_qo}, {sWS}, {s_e1} offen sc1')
G(f'buffer_load_dwordx2 {vr(QB1+4,2)}, {v_qo}, {sWS}, {s_e1} offen offset:512 sc1')
G(f's_add_u32 {s_e0}, {s_bF}, {QKV[1] + 80*GRP - 512}\nbuffer_load_dwordx4 {vr(KB0,4)}, {v_kb0}, {sWS}, {s_e0} offen sc1')
G(f'buffer_load_dwordx4 {vr(KB0+4,4)}, {v_q4}, {sWS}, {s_e0} offen offset:512 sc1')
G(f'buffer_load_dwordx4 {vr(KB0+8,4)}, {v_q4}, {sWS}, {s_e0} offen offset:1024 sc1')
G(f's_add_u32 {s_e1}, {s_bS}, {QKV[1] + 80*GRP - 512}\nbuffer_load_dwordx2 {ar(AKB1,2)}, {v_kb1}, {sWS}, {s_e1} offen sc1')
G(f'buffer_load_dwordx2 {ar(AKB1+4,2)}, {v_qo}, {sWS}, {s_e1} offen offset:1024 sc1')
G(f'buffer_load_dword {v_g[0]}, {v_gad}, {sWS}, {s_gb} offen sc1')
G(f'buffer_load_dword {v_g[1]}, {v_gad}, {sWS}, {s_gb} offen offset:128 sc1')
G(f's_mov_b32 m0, {s_mV}\ns_add_u32 {s_e0}, {s_bF}, {QKV[1] + 160*GRP}\nbuffer_load_dwordx4 {v_l16}, {sWS}, {s_e0} offen sc1 lds')
G(f's_add_u32 m0, {s_mV}, 1088\ns_add_u32 {s_e0}, {s_bF}, {QKV[1] + 161*GRP}\nbuffer_load_dwordx4 {v_l16}, {sWS}, {s_e0} offen sc1 lds')
G(f's_add_u32 m0, {s_mV}, 2176\ns_add_u32 {s_e0}, {s_bS}, {QKV[1] + 160*GRP}\nbuffer_load_dwordx4 {v_l16}, {sWS}, {s_e0} offen sc1 lds')
st = Stream(); st(f's_add_u32 m0, {s_mV}, 3264\nv_mov_b32 v{QB1+6}, 0\nv_mov_b32 v{QB1+7}, 0')
tokVB = st.vm(f'buffer_load_dwordx4 {v_halo}, {sWS}, 0 offen sc1 lds'); bl.append(st.l)
weave(groups, bl, 4 * P3S, 4 * P3S + 12)
for k, g in enumerate(groups):
    S.l += g
    if FINE and k % 8 == 7: stamp('a%d' % (k // 4))
for x in cvts(3): S(x)
S(pv(N - 1, 1))
stamp('attA')

SP = [64, 192]; SD = [80, 208]
VB = 200
OB = [24, 40]
def epi2(br, q, o, pk=False):
    st = Stream()
    st(f'v_rcp_f32 {v_t1}, v{o+12}')
    if q == 0: st(f's_add_u32 {s_e0}, {s_ob}, {O_OFF + br*OBR}')
    if br: st(f'v_sub_f32 {v_g[q]}, 1.0, {v_g[q]}')
    st(f'v_mul_f32 {v_t1}, {v_g[q]}, {v_t1}')
    if pk:
        for i in range(0, 12, 2): st(f'v_pk_mul_f32 {vr(o+i,2)}, {vr(o+i,2)}, {vr(58,2)} op_sel_hi:[1,0]')
    else:
        for i in range(12): st(f'v_mul_f32 v{o+i}, {v_t1}, v{o+i}')
    for i in range(6): st(f'v_cvt_pk_bf16_f32 v{o+i}, v{o+2*i}, v{o+2*i+1}')
    st(f'buffer_store_dwordx4 {vr(o,4)}, {v_o4}, {sWS}, {s_e0} offen offset:{1280*q} sc1')
    tok = st.vm(f'buffer_store_dwordx2 {vr(o+4,2)}, {v_o2}, {sWS}, {s_e0} offen offset:{1280*q} sc1')
    return st.l, tok
qkB = [[Ins(x)] for x in (
    f'{mm} {vr(SP[0],16)}, {vr(KB0,4)}, {vr(QB0,4)}, {vr(MB_PREV0,16)}',
    f'{mm} {vr(SP[0],16)}, {ar(AKB1,4)}, {vr(QB1,4)}, {vr(SP[0],16)}',
    f'{mm} {vr(SD[0],16)}, {vr(KB0+4,4)}, {vr(QB0,4)}, {vr(MB_DIAG,16)}',
    f'{mm} {vr(SD[0],16)}, {ar(AKB1,4)}, {vr(QB1+2,4)}, {vr(SD[0],16)}',
    f'{mm} {vr(SP[1],16)}, {vr(KB0+4,4)}, {vr(QB0+4,4)}, {vr(MB_PREV,16)}',
    f'{mm} {vr(SP[1],16)}, {ar(AKB1,4)}, {vr(QB1+4,4)}, {vr(SP[1],16)}',
    f'{mm} {vr(SD[1],16)}, {vr(KB0+8,4)}, {vr(QB0+4,4)}, {vr(MB_DIAG,16)}',
    f'{mm} {vr(SD[1],16)}, {ar(AKB1+4,4)}, {vr(QB1+4,4)}, {vr(SD[1],16)}')]
e0, _ = epi2(0, 0, OA[0]); e1, tokOA = epi2(0, 1, OA[1])
weave(qkB, e0 + e1, 0, 7)
st = Stream(); st.wait(tokVB)
for u in range(2): st(f'ds_read_b64_tr_b16 {ar(VB+2*u,2)}, {v_vh} offset:{128*u}')
for t in range(2):
    for kk in range(2):
        for u in range(2): st(f'ds_read_b64_tr_b16 {ar(VB+4+8*t+4*kk+2*u,2)}, {v_vb} offset:{512*t+256*kk+128*u}')
weave(qkB, st.l, 7, 8)
for g in qkB: S.l += g
def softB(q):
    st = Stream()
    b = SP[q] + 8
    assert SD[q] == SP[q] + 16
    st(f'v_max3_f32 {v_t3}, v{b}, v{b+1}, v{b+2}')
    st(f'v_max3_f32 {v_t4}, v{b+3}, v{b+4}, v{b+5}')
    for i in range(6, 22, 4):
        st(f'v_max3_f32 {v_t3}, {v_t3}, v{b+i}, v{b+i+1}')
        st(f'v_max3_f32 {v_t4}, {v_t4}, v{b+i+2}, v{b+i+3}')
    st(f'v_max3_f32 {v_t3}, {v_t3}, v{b+22}, v{b+23}')
    st(f'v_max_f32 {v_t3}, {v_t3}, {v_t4}')
    st(f'v_mov_b32 {v_t4}, {v_t3}')
    st(f'v_permlane32_swap_b32 {v_t3}, {v_t4}')
    st(f'v_max_f32 {v_t3}, {v_t3}, {v_t4}')
    for i in range(0, 24, 2): st(f'v_pk_add_f32 {vr(b+i,2)}, {vr(b+i,2)}, {vr(60,2)} op_sel_hi:[1,0] neg_lo:[0,1] neg_hi:[0,1]')
    vop = [VB if q == 0 else VB + 8, VB + 4 + 8 * q, VB + 8 + 8 * q]
    for c in range(3):
        for i in range(8): st(f'v_exp_f32 v{b+8*c+i}, v{b+8*c+i}')
        if c: st(f'{mm} {vr(OB[q],16)}, {ar(vop[c-1],4)}, {vr(b+8*(c-1),4)}, {"0" if c == 1 else vr(OB[q],16)}')
        for i in range(4): st(f'v_cvt_pk_bf16_f32 v{b+8*c+i}, v{b+8*c+2*i}, v{b+8*c+2*i+1}')
    return st.l, Ins(f'{mm} {vr(OB[q],16)}, {ar(vop[2],4)}, {vr(b+16,4)}, {vr(OB[q],16)}')
l0, m0_ = softB(0); l1, m1_ = softB(1)
S.l += l0; S.l += l1[:2]; S.l.append(m0_); S.l += l1[2:30]
S.wait(tokOA); set_flag(S, v_flagw, s_f2, F2[0])
stamp('flgA')
S.l += l1[30:]
e0, _ = epi2(1, 0, OB[0]); e1, tokOB = epi2(1, 1, OB[1], True)
S.l += e0[:2]; S.l.append(m1_); S.l += e0[2:]; S.l += e1
poll_issue(S, 'v1', v_p4, sWS, s_F2A)
S.wait(tokOB); set_flag(S, v_flagw, s_f2, F2[1])
stamp('flgB')
poll_check(S, 'v1', v_p4, sWS, s_F2A)
stamp('poll4')

def o_load(br, s_, rho, u=0):
    st = Stream()
    if s_ < 4:
        st(f's_add_u32 {s_e0}, {s_o3}, {O_OFF + br*OBR + s_*163840}')
        st(f'buffer_load_dwordx4 {vr(OF[br]+16*s_+4*rho,4)}, v{V4+rho}, {sWS}, {s_e0} offen sc1')
    else:
        st(f's_add_u32 {s_e0}, {s_o3}, {O_OFF + br*OBR + u*81920}')
        st(f'buffer_load_dwordx2 {vr(OF[br]+64+4*rho+2*u,2)}, v{V2+rho}, {sWS}, {s_e0} offen sc1')
    return st.l
P5 = opt('p5', 2)
for s_ in range(4):
    for rho in range(4):
        l = o_load(0, s_, rho); S.l += l if rho == 0 else l[1:]
    if s_ == P5: poll_issue(S, 'v1', v_p4, sWS, s_F2B)
for u in range(2):
    for rho in range(4):
        l = o_load(0, 4, rho, u); S.l += l if rho == 0 else l[1:]
def mf3(br, s_, rho, ct):
    acc = vr(AC3 + 20 * rho + 4 * ct, 4)
    return [Ins(f'v_mfma_f32_16x16x32_bf16 {acc}, {ar(100*br+20*s_+4*ct,4)}, {vr(OF[br]+16*s_+4*rho,4)}, {"0" if br == 0 and s_ == 0 else acc}')]
sl = [mf3(0, s_, rho, ct) for s_ in range(5) for rho in range(4) for ct in range(5)]
order = (1, 2, 3, 0)
sl += [mf3(1, s_, rho, ct) for rho in order for s_ in range(5) for ct in range(5)]
C5 = opt('c5', 20)
sl[C5] += mk(poll_check, 'v1', v_p4, sWS, s_F2B)
ob = []
for rho in order:
    for s_ in range(4): ob += [[x] for x in o_load(1, s_, rho)]
    for u in range(2): ob += [[x] for x in o_load(1, 4, rho, u)]
weave(sl, ob, C5 + 1, C5 + 1 + 48)
for i, rho in enumerate((1, 2, 3)):
    wr = [Ins(f'ds_write_b128 v{VRW+rho-1}, {vr(AC3+20*rho+4*ct,4)} offset:{1024*ct}') for ct in range(5)]
    lo = 125 + 25 * i + 3
    weave(sl, wr, lo, lo + (15 if i < 2 else 5))
st = Stream(); st('s_waitcnt lgkmcnt(0)\ns_barrier'); sl[189] += st.l
rd = [Ins(f'ds_read_b128 {vr(OF[0]+20*k+4*ct,4)}, {v_rr} offset:{5120*k+1024*ct}') for ct in range(5) for k in range(3)]
weave(sl, rd, 190, 200)
for k, g in enumerate(sl):
    S.l += g
    if k == 99: stamp('mf3A')
stamp('mf3')
for i in range(0, 20, 2):
    S(f'v_pk_add_f32 {vr(OF[0]+i,2)}, {vr(OF[0]+i,2)}, {vr(OF[0]+20+i,2)}')
    S(f'v_pk_add_f32 {vr(AC3+i,2)}, {vr(AC3+i,2)}, {vr(OF[0]+40+i,2)}')
for i in range(0, 20, 2):
    S(f'v_pk_add_f32 {vr(AC3+i,2)}, {vr(AC3+i,2)}, {vr(OF[0]+i,2)}')
for i in range(10):
    S(f'v_cvt_pk_bf16_f32 v{AC3+i}, v{AC3+2*i}, v{AC3+2*i+1}')
OSC = ['', ' sc1', ' nt', ' sc0 sc1', ' sc1 nt'][opt('osc', 0)]
S(f'''
buffer_store_dwordx4 {vr(AC3,4)}, {v_out}, {sOUT}, 0 offen{OSC}
buffer_store_dwordx4 {vr(AC3+4,4)}, {v_out}, {sOUT}, 0 offen offset:16{OSC}
buffer_store_dwordx2 {vr(AC3+8,2)}, {v_out}, {sOUT}, 0 offen offset:32{OSC}
''')
if STAMPS:
    stamp('red')
    S('s_waitcnt vmcnt(0)')
    stamp('end')
    S(f'''
    s_waitcnt lgkmcnt(0)
    s_cmp_lg_u32 {s_w}, 0
    s_cbranch_scc1 L_end
    v_writelane_b32 v0, s{ST0+2*((nstamp[0]-1)&1)}, {nstamp[0]-1}
    s_lshl_b32 {s_t0}, s2, 8
    s_add_u32 {s_t0}, {s_t0}, {STAMP_OFF}
    v_mbcnt_lo_u32_b32 v3, -1, 0
    v_mbcnt_hi_u32_b32 v3, -1, v3
    v_lshlrev_b32 v3, 2, v3
    buffer_store_dword v0, v3, {sWS}, {s_t0} offen
    ''')
    assert nstamp[0] <= 64, nstamp[0]
    open(OUT + '.stamps', 'w').write(' '.join(n or str(i) for i, n in enumerate(stamp_names)))
S('s_endpgm')

T = Stream()
nstamp[0] = 1
T('@reset')
T(f'''
L_spare:
s_waitcnt lgkmcnt(0)
s_load_dwordx2 s[56:57], s[0:1], 16
s_load_dwordx2 s[58:59], s[0:1], 40
s_load_dwordx2 s[8:9], s[0:1], 48
s_mov_b32 s30, {640*1280}
s_mov_b32 s10, 1280
''')
common_consts(T)
T(f'''
s_and_b32 {s_e0}, {s_rb}, 1
s_lshl_b32 {s_e0}, {s_e0}, 2
s_add_u32 {s_e0}, {s_e0}, {s_w}
s_bfe_u32 {s_e1}, {s_rb}, 0x20001
s_mul_i32 {s_t2}, {s_e0}, 160
s_mul_i32 {s_t1}, {s_e1}, {160*1280}
s_add_u32 {s_t2}, {s_t2}, {s_t1}
s_mov_b32 {s_t0}, {(1<<32)//10+1}
''')
for i in range(5):
    T(f'''
    v_add_u32 {v_t1}, {64*i}, {v_lane}
    v_mul_hi_u32 {v_t2}, {v_t1}, {s_t0}
    v_mul_u32_u24 {v_t3}, 10, {v_t2}
    v_sub_u32 {v_t1}, {v_t1}, {v_t3}
    v_mul_u32_u24 {v_t2}, 1280, {v_t2}
    v_lshl_add_u32 {v_t2}, {v_t1}, 4, {v_t2}
    v_add_u32 v{2+i}, {s_t2}, {v_t2}
    ''')
T(f'''
s_mul_i32 {s_mW}, {s_w}, 25600
s_waitcnt lgkmcnt(0)
s_cmp_ge_u32 {s_rb}, 8
s_cselect_b32 s28, s58, s56
s_cselect_b32 s29, s59, s57
s_cmp_lg_u32 {s_rb}, 0
s_cbranch_scc1 L_noinit
v_mov_b32 v64, 0
v_mov_b32 v65, 0
v_mov_b32 v66, 0
v_mov_b32 v67, 0
v_lshlrev_b32 {v_t1}, 7, v0
s_mov_b32 {s_t0}, {F1[0]}
s_mov_b32 {s_t1}, {F2[0]}
s_mov_b32 {s_t3}, {F2[1]}
buffer_store_dwordx4 v[64:67], {v_t1}, {sWS}, {s_t0} offen sc1
buffer_store_dwordx4 v[64:67], {v_t1}, {sWS}, {s_t1} offen sc1
buffer_store_dwordx4 v[64:67], {v_t1}, {sWS}, {s_t3} offen sc1
s_waitcnt vmcnt(0)
s_barrier
buffer_store_dword {v_one}, {v_flag}, {sDBG}, 0 offen sc1
s_waitcnt vmcnt(0)
L_noinit:
''')
wtok = []
for i in range(25):
    T(f's_add_u32 m0, {s_mW}, {1024*i}')
    T(f's_mov_b32 {s_t1}, {(i//5)*32*1280}')
    wtok.append(T.vm(f'buffer_load_dwordx4 v{2+i%5}, {sTMP}, {s_t1} offen lds'))
T(f'''
v_lshrrev_b32 {v_t1}, 4, {v_lane}
v_bfe_u32 {v_t2}, {v_lane}, 2, 2
v_and_b32 {v_t3}, 3, {v_lane}
v_mul_u32_u24 {v_t3}, 40, {v_t3}
v_add_u32 {v_t3}, {s_mW}, {v_t3}
v_mad_u32_u24 {v_t4}, {v_t1}, 40, {v_t2}
v_add_u32 {v_t4}, 16, {v_t4}
v_mul_u32_u24 {v_t4}, 160, {v_t4}
v_add_u32 v8, {v_t4}, {v_t3}
v_lshrrev_b32 {v_t4}, 1, {v_t1}
v_mad_u32_u24 {v_t2}, {v_t4}, 24, {v_t2}
v_and_b32 {v_t4}, 1, {v_t1}
v_lshl_add_u32 {v_t2}, {v_t4}, 3, {v_t2}
v_mul_u32_u24 {v_t2}, 160, {v_t2}
v_add_u32 v7, {v_t2}, {v_t3}
s_lshr_b32 {s_t0}, {s_rb}, 3
s_lshl_b32 {s_t0}, {s_t0}, 3
s_add_u32 {s_t0}, {s_t0}, {s_e0}
s_lshl_b32 {s_t0}, {s_t0}, 2
s_add_u32 {s_t0}, {s_t0}, {s_e1}
s_mul_i32 {s_e2}, {s_t0}, 25600
''')
stamp('', T)
for s_ in range(5):
    T.wait(wtok[min(24, (40 * (s_ + 1) * 10 - 1) // 64)])
    for ct in range(5):
        f = 5 * s_ + ct
        for u in range(2):
            if s_ < 4: T(f'ds_read_b64_tr_b16 {vr(64+4*f+2*u,2)}, v7 offset:{(40*s_+4*u)*160+8*ct}')
            else: T(f'ds_read_b64_tr_b16 {vr(64+4*f+2*u,2)}, v8 offset:{640*u+8*ct}')
    for ct in range(5):
        f = 5 * s_ + ct
        if f % 4 == 0: T(f's_add_u32 {s_t1}, {s_e2}, {WOF + f*1024}')
        tokw = T.vm(f'buffer_store_dwordx4 {vr(64+4*f,4)}, {v_l16}, {sWS}, {s_t1} offen offset:{(f%4)*1024} sc1')
stamp('', T)
T(f'v_mov_b32 {v_zero}, 0')
poll_issue(T, v_pres, v_zero, sDBG, '0')
T(f'''
v_and_b32 {v_t2}, 15, {v_lane}
v_lshlrev_b32 {v_t2}, 4, {v_t2}
v_mul_u32_u24 {v_t3}, 1280, {v_t1}
v_add_u32 {v_t3}, {v_t3}, {v_t2}
s_lshl_b32 {s_e3}, {s_rb}, 2
s_add_u32 {s_e3}, {s_e3}, {s_w}
s_mul_i32 {s_t1}, {s_e3}, {32*1280}
s_lshl_b32 {s_f1}, {s_rb}, 11
s_add_u32 {s_f1}, {s_f1}, {15*128}
''')
for j in range(5): T(f'buffer_load_dwordx4 {vr(24+4*j,4)}, {v_t2}, {sWA}, 0 offen offset:{256*j}')
for i in range(8):
    for j in range(5): T(f'buffer_load_dwordx4 {vr(64+20*i+4*j,4)}, {v_t3}, {sX}, {s_t1} offen offset:{256*j}')
    T(f's_add_u32 {s_t1}, {s_t1}, {4*1280}')
    if i == 0:
        poll_check(T, v_pres, v_zero, sDBG, '0')
        T('s_barrier')
        set_flag(T, v_flag, s_f1, F1[0])
        stamp('', T)
T(f'''
v_cmp_eq_u32 vcc, 0, {v_t2}
v_lshlrev_b32 {v_t1}, 2, {v_t1}
s_lshl_b32 {s_e3}, {s_e3}, 7
s_add_u32 {s_e3}, {s_e3}, {G_OFF}
v_cndmask_b32 {v_t1}, {v_big}, {v_t1}, vcc
''')
for i in range(8):
    T(f'v_mov_b32 v{44+i}, 0')
    for k in range(20): T(f'v_dot2c_f32_bf16 v{44+i}, v{64+20*i+k}, v{24+k}')
for sh in (8, 4, 2, 1):
    for i in range(8): T(f'v_add_f32_dpp v{44+i}, v{44+i}, v{44+i} row_ror:{sh} row_mask:0xf bank_mask:0xf')
for i in range(8): T(f'v_mul_f32 v{44+i}, {f32(-math.log2(math.e))}, v{44+i}')
for i in range(8): T(f'v_exp_f32 v{44+i}, v{44+i}')
for i in range(8): T(f'v_add_f32 v{44+i}, 1.0, v{44+i}')
for i in range(8): T(f'v_rcp_f32 v{44+i}, v{44+i}')
T('s_nop 0')
for i in range(8): T(f'buffer_store_dword v{44+i}, {v_t1}, {sWS}, {s_e3} offen offset:{16*i} sc1')
stamp('', T)
setup23(T)
T('s_waitcnt vmcnt(0) lgkmcnt(0)\ns_barrier')
set_flag(T, v_flag, s_f1, F1[1])
T.l += masksA
poll(T, v_pres, v_p2, sWS, s_F1A)
for g in wo_loads(0, NWO1): T.l += g
poll(T, v_pres, v_p1, sWS, s_F1A)
kv, _ = kvq_loads()
for g in kv: T.l += g
T('s_waitcnt vmcnt(0) lgkmcnt(0)\ns_barrier')
while nstamp[0] < nst_join: stamp('', T)
T('s_waitcnt lgkmcnt(0)')
T('s_branch L_join')

S.extend(T); S.extend(tail)
S('L_end:\ns_endpgm')

stats = []
body = finalize(S, stats)
hdr = open('cdna_kernels/%s.s.ref' % NAME).read().split('; Override')[0]
K = NAME + '_kernel'
txt = hdr + f'''; Generated by a hand-written generator script: one persistent workgroup per CU, phases chained by flags in d_ws.
; @launch grid=(256,1,1) block=(256,1,1) lds={LDS_BYTES}
.amdgcn_target "amdgcn-amd-amdhsa--gfx950"
.text
.globl {K}
.p2align 8
.type {K},@function
{K}:
''' + '\n'.join(body) + f'''
.section .rodata,"a"
.p2align 6
.amdhsa_kernel {K}
  .amdhsa_next_free_vgpr 512
  .amdhsa_next_free_sgpr 102
  .amdhsa_accum_offset 256
  .amdhsa_group_segment_fixed_size 0
  .amdhsa_kernarg_size 80
  .amdhsa_user_sgpr_count 2
  .amdhsa_user_sgpr_kernarg_segment_ptr 1
  .amdhsa_system_sgpr_workgroup_id_x 1
  .amdhsa_float_denorm_mode_32 3
.end_amdhsa_kernel
'''
open(OUT, 'w').write(txt)
print('instructions:', len(body), ' nops inserted:', len(stats), sum(s[0] for s in stats), ' setup23', len(su.l), 'WS_SIZE', WS_SIZE)
if '--nops' in ARGS:
    for s in stats: print(s)
```

```python
import sys, math, struct
from fw import *

NAME = "gated_mix__sliding_block__sliding_local_dilated__prompt"
ARGS = sys.argv[1:]
STAMPS = '--stamps' in ARGS
FINE = '--fine' in ARGS
def opt(name, default):
    for a in ARGS:
        if a.startswith('--' + name + '='): return int(a.split('=')[1])
    return default
OUT = [a for a in ARGS if not a.startswith('--')]
OUT = OUT[0] if OUT else 'k.s'

GRP = 2048 * 16
QKV = [0, 240 * GRP]
O_OFF = 480 * GRP
OBR = 32 * 128 * 640
WOF = O_OFF + 2 * OBR
G_OFF = WOF + 64 * 25600
FLG = G_OFF + 8192
F1 = [FLG, FLG + 4]
F2 = [FLG + 32768, FLG + 32768 + 16]
WS_SIZE = FLG + 65536
STAMP_OFF = WS_SIZE
BIG = 0x40000000
L_W = 0
L_X = 65536
GS = 8192 + 64
L_KA = L_X; L_VA = L_X + 3 * GS
L_VB = 131072; VBW = 4608
L_ONE = L_VB + 4 * VBW + ((L_VA + 3 * GS) % 256)
L_TAB = L_VB + 4 * VBW + 8192 + 256
LDS_BYTES = 160 * 1024
assert L_TAB + 1024 <= LDS_BYTES

def f32(x): return '0x%08x' % struct.unpack('<I', struct.pack('<f', x))[0]
QSCALE = (20 ** -0.5) * math.log2(math.e)
NEGINF = '0xff800000'

sX, sWA, sWB, sWS, sOUT, sDBG, sTMP = 's[4:7]', 's[8:11]', 's[12:15]', 's[16:19]', 's[20:23]', 's[24:27]', 's[28:31]'
s_xcd, s_t, s_rb, s_cb, s_w = 's32', 's33', 's34', 's35', 's36'
s_t0, s_t1, s_t2, s_t3 = 's37', 's38', 's39', 's40'
s_stb, s_scale, s_mW, s_mX = 's41', 's42', 's44', 's45'
s_hd, s_r2, s_so, s_q0 = 's46', 's47', 's48', 's49'
s_cnt, s_f1, s_f2, s_ob, s_o3, s_wob = 's50', 's51', 's52', 's53', 's54', 's55'
SW0, SX0 = 60, 70
ST0 = 80
s_bF, s_bS, s_dF, s_dS, s_mK, s_mV, s_gb, s_rot = 's84', 's85', 's86', 's87', 's88', 's89', 's90', 's91'
s_e0, s_e1, s_e2, s_e3 = 's92', 's93', 's94', 's95'
s_F1A, s_F1B, s_F2A, s_F2B = 's96', 's97', 's98', 's99'
v_lane = 'v1'
VWD, VXD, VWR, VXR = 2, 6, 10, 14
v_st, v_flag, v_one, v_pres, v_zero, v_tmp = 'v18', 'v19', 'v20', 'v21', 'v22', 'v23'
QA0, QA1 = 24, 32
E0, P0 = 42, 50
v_p1, v_p2, v_dma, v_h, v_r = 'v42', 'v43', 'v44', 'v45', 'v46'
v_t1, v_t2, v_t3, v_t4 = 'v58', 'v59', 'v60', 'v61'
v_l16, v_big = 'v62', 'v63'
ACC = [64, 128]
SB = [64, 80]; OA = [96, 112]
QB0, QB1, KB0 = 128, 136, 144
MB_DIAG, MB_PREV, MB_PREV0 = 160, 168, 176
M_FAR, M_DIAG = 192, 208
(v_p3, v_q4, v_qe, v_qo, v_k0, v_k1, v_v, v_vb, v_vh, v_o4, v_o2, v_kb0, v_kb1, v_halo, v_gad, v_mA, v_mB0, v_flagw) = ['v%d' % i for i in range(224, 242)]
v_g = ['v12', 'v13']
V4, V2, VRW, v_rr, v_out, v_p4 = 242, 246, 250, 'v253', 'v254', 'v255'
AC3 = 2; OF = [82, 162]
AW = 160
AK0, AK1, AV, AKB1 = 200, 208, 216, 232

def vr(b, n): return 'v[%d:%d]' % (b, b + n - 1)
def ar(b, n): return 'a[%d:%d]' % (b, b + n - 1)
mm = 'v_mfma_f32_32x32x16_bf16'

S = Stream()
tail = Stream()
nstamp = [0]; stamp_names = []
def stamp(name='', st=None):
    if STAMPS:
        st = st or S
        k = nstamp[0]
        if k > 0: st('v_writelane_b32 v0, s%d, %d' % (ST0 + 2 * ((k - 1) & 1), k - 1))
        st('s_memrealtime s[%d:%d]' % (ST0 + 2 * (k & 1), ST0 + 2 * (k & 1) + 1))
    stamp_names.append(name)
    nstamp[0] += 1
nlab = [0]
def lab(p):
    nlab[0] += 1
    return 'L_%s_%d' % (p, nlab[0])

def poll_issue(st, res, adr, srd, soff):
    st('buffer_load_dword %s, %s, %s, %s offen sc1' % (res, adr, srd, soff))
def poll_check(st, res, adr, srd, soff):
    l = lab('poll'); b = lab('back')
    st('v_cmp_ne_u32 vcc, 1, %s' % res)
    st('s_cbranch_vccnz %s' % l)
    st(b + ':')
    tail('@reset')
    tail(f'''
    {l}:
    s_mov_b32 {s_cnt}, 0
    {l}_a:
    buffer_load_dword {res}, {adr}, {srd}, {soff} offen sc1
    s_add_u32 {s_cnt}, {s_cnt}, 1
    s_waitcnt vmcnt(0)
    v_cmp_ne_u32 vcc, 1, {res}
    s_cbranch_vccz {b}
    s_cmp_lt_u32 {s_cnt}, 0x40000
    s_cbranch_scc1 {l}_a
    s_branch {b}
    ''')
def poll(st, res, adr, srd, soff):
    poll_issue(st, res, adr, srd, soff); poll_check(st, res, adr, srd, soff)
def set_flag(st, vf, base, off):
    st(f's_add_u32 {s_t0}, {base}, {off}')
    st(f'buffer_store_dword {v_one}, {vf}, {sWS}, {s_t0} offen sc1')
def mk(fn, *a):
    st = Stream(); fn(st, *a); return st.l

def setup23(st):
    st(f'''
    s_mov_b32 s14, {640*3840}
    s_mov_b32 s15, 0x20000
    s_mov_b32 s22, {2048*1280}
    s_mov_b32 s23, 0x20000
    s_mov_b32 {s_F1A}, {F1[0]}
    s_mov_b32 {s_F1B}, {F1[1]}
    s_mov_b32 {s_F2A}, {F2[0]}
    s_mov_b32 {s_F2B}, {F2[1]}
    s_and_b32 {s_r2}, {s_t}, 7
    s_lshr_b32 {s_t2}, {s_t}, 3
    s_lshl_b32 {s_t0}, {s_xcd}, 2
    s_add_u32 {s_hd}, {s_t0}, {s_t2}
    s_lshl_b32 {s_q0}, {s_r2}, 8
    s_lshl_b32 {s_t0}, {s_w}, 6
    s_add_u32 {s_q0}, {s_q0}, {s_t0}
    s_mul_i32 {s_e0}, {s_hd}, 5
    s_lshr_b32 {s_e0}, {s_e0}, 1
    s_and_b32 {s_t3}, {s_hd}, 1
    s_add_u32 {s_e1}, {s_e0}, {s_t3}
    s_lshl_b32 {s_so}, {s_t3}, 3
    s_lshl_b32 {s_t3}, {s_t3}, 1
    s_add_u32 {s_e2}, {s_e0}, 2
    s_sub_u32 {s_e2}, {s_e2}, {s_t3}
    s_lshl_b32 {s_e1}, {s_e1}, 15
    s_lshl_b32 {s_e2}, {s_e2}, 15
    s_lshl_b32 {s_t0}, {s_q0}, 4
    s_add_u32 {s_bF}, {s_e1}, {s_t0}
    s_add_u32 {s_bS}, {s_e2}, {s_t0}
    s_lshl_b32 {s_e3}, {s_r2}, 1
    s_add_u32 {s_e3}, {s_e3}, {s_w}
    s_lshl_b32 {s_t0}, {s_e3}, 11
    s_add_u32 {s_dF}, {s_e1}, {s_t0}
    s_add_u32 {s_dS}, {s_e2}, {s_t0}
    s_lshl_b32 {s_mK}, {s_w}, 11
    s_mul_i32 {s_mV}, {s_w}, {VBW}
    s_add_u32 {s_mV}, {s_mV}, {L_VB}
    s_lshl_b32 {s_gb}, {s_q0}, 2
    s_add_u32 {s_gb}, {s_gb}, {G_OFF}
    s_lshl_b32 {s_f1}, {s_rb}, 11
    s_lshl_b32 {s_t0}, {s_cb}, 7
    s_add_u32 {s_f1}, {s_f1}, {s_t0}
    s_lshl_b32 {s_f2}, {s_r2}, 12
    s_lshl_b32 {s_t0}, {s_hd}, 7
    s_add_u32 {s_f2}, {s_f2}, {s_t0}
    s_lshl_b32 {s_t0}, {s_w}, 2
    s_add_u32 {s_f2}, {s_f2}, {s_t0}
    s_lshl_b32 {s_ob}, {s_hd}, 7
    s_lshr_b32 {s_t0}, {s_q0}, 4
    s_add_u32 {s_ob}, {s_ob}, {s_t0}
    s_mul_i32 {s_ob}, {s_ob}, 640
    s_lshl_b32 {s_o3}, {s_w}, 10
    s_lshl_b32 {s_t0}, {s_hd}, 2
    s_add_u32 {s_o3}, {s_o3}, {s_t0}
    s_mul_i32 {s_o3}, {s_o3}, 640
    s_lshl_b32 {s_wob}, {s_r2}, 2
    s_add_u32 {s_wob}, {s_wob}, {s_w}
    s_mul_i32 {s_wob}, {s_wob}, 25600
    v_mov_b32 {v_zero}, 0
    v_lshrrev_b32 {v_h}, 5, {v_lane}
    v_and_b32 {v_r}, 31, {v_lane}
    v_cmp_eq_u32 vcc, 0, {v_lane}
    v_bfe_u32 {v_t1}, {v_lane}, 2, 1
    v_lshl_add_u32 {v_t1}, {v_t1}, 1, {s_e0}
    v_cndmask_b32 {v_flagw}, {v_big}, 0, vcc
    v_lshrrev_b32 {v_t1}, 4, {v_t1}
    v_and_b32 {v_t2}, 3, {v_lane}
    v_min_u32 {v_t3}, 2, {v_t2}
    v_mad_u32_u24 {v_t4}, {v_t3}, 5, {v_t1}
    v_mad_u32_u24 {v_tmp}, {v_t2}, 5, {v_t1}
    v_min_u32 {v_tmp}, 15, {v_tmp}
    s_sub_u32 {s_t1}, {s_e3}, 2
    s_max_i32 {s_t1}, {s_t1}, 0
    s_lshl_b32 {s_t1}, {s_t1}, 11
    s_andn2_b32 {s_t2}, {s_q0}, 127
    s_lshl_b32 {s_t2}, {s_t2}, 4
    v_cmp_eq_u32 vcc, 0, {v_t2}
    v_mov_b32 {v_t1}, {s_t1}
    v_mov_b32 {v_t3}, {s_t2}
    v_cndmask_b32 {v_t1}, {v_t1}, {v_t3}, vcc
    v_lshl_add_u32 {v_p1}, {v_t4}, 7, {v_t1}
    s_sub_u32 {s_t1}, {s_q0}, 32
    s_max_i32 {s_t1}, {s_t1}, 0
    s_andn2_b32 {s_t1}, {s_t1}, 127
    s_lshl_b32 {s_t1}, {s_t1}, 4
    v_and_b32 {v_t2}, 8, {v_lane}
    v_cmp_eq_u32 vcc, 0, {v_t2}
    v_mov_b32 {v_t1}, {s_t1}
    v_and_b32 {v_t2}, 1, {v_lane}
    v_cndmask_b32 {v_t1}, {v_t1}, {v_t3}, vcc
    v_lshl_add_u32 {v_p3}, {v_tmp}, 7, {v_t1}
    s_lshl_b32 {s_t0}, {s_w}, 1
    s_lshr_b32 {s_t1}, {s_r2}, 2
    s_add_u32 {s_t0}, {s_t0}, {s_t1}
    s_lshl_b32 {s_t0}, {s_t0}, 11
    s_add_u32 {s_t0}, {s_t0}, {15*128}
    v_lshl_add_u32 {v_p2}, {v_t2}, 14, {s_t0}
    ''')
    st(f'''
    s_cmp_ge_u32 {s_e3}, 2
    s_cselect_b32 {s_t1}, 0, {BIG}
    s_cselect_b32 {s_t2}, 0x3f803f80, 0
    v_add_u32 {v_dma}, {s_t1}, {v_l16}
    v_mov_b32 v24, {s_t2}
    v_mov_b32 v25, {s_t2}
    v_mov_b32 v26, {s_t2}
    v_mov_b32 v27, {s_t2}
    s_add_u32 {s_t1}, {s_mK}, {L_ONE}
    v_add_u32 {v_t1}, {s_t1}, {v_l16}
    ds_write_b128 {v_t1}, v[24:27]
    ds_write_b128 {v_t1}, v[24:27] offset:1024
    ''')
    st(f'''
    v_lshlrev_b32 {v_q4}, 15, {v_h}
    v_lshl_add_u32 {v_q4}, {v_r}, 4, {v_q4}
    v_cmp_eq_u32 vcc, 0, {v_h}
    v_lshl_add_u32 {v_t1}, {v_r}, 4, {s_so}
    s_cmp_eq_u32 {s_q0}, 0
    s_cselect_b32 {s_t3}, {BIG}, 0
    v_cndmask_b32 {v_qe}, {v_big}, {v_t1}, vcc
    v_cndmask_b32 {v_qo}, {v_t1}, {v_big}, vcc
    v_add_u32 {v_kb0}, {s_t3}, {v_q4}
    v_mov_b32 {v_t2}, {s_t3}
    v_cndmask_b32 {v_t2}, 0, {v_t2}, vcc
    v_add3_u32 {v_kb1}, {v_t2}, {v_l16}, {s_so}
    v_lshlrev_b32 {v_gad}, 2, {v_r}
    v_lshrrev_b32 {v_t1}, 4, {v_r}
    v_mul_u32_u24 {v_t1}, 640, {v_t1}
    v_and_b32 {v_t2}, 15, {v_lane}
    v_lshl_add_u32 {v_t3}, {v_h}, 8, {v_t1}
    v_lshl_add_u32 {v_o4}, {v_t2}, 4, {v_t3}
    v_lshl_add_u32 {v_t3}, {v_t2}, 3, {v_t1}
    v_add_u32 {v_t3}, 512, {v_t3}
    v_cndmask_b32 {v_o2}, {v_big}, {v_t3}, vcc
    v_lshrrev_b32 {v_t1}, 4, {v_lane}
    v_lshl_add_u32 {v_t3}, {v_t1}, 15, {s_bF}
    v_cmp_eq_u32 vcc, 2, {v_t1}
    v_mov_b32 {v_t4}, {s_bS}
    s_add_u32 {s_t3}, {s_t3}, {QKV[1] + 160*GRP - 256}
    v_cndmask_b32 {v_t3}, {v_t3}, {v_t4}, vcc
    v_cmp_eq_u32 vcc, 3, {v_t1}
    v_lshl_add_u32 {v_t3}, {v_t2}, 4, {v_t3}
    v_add_u32 {v_t3}, {s_t3}, {v_t3}
    v_cndmask_b32 {v_halo}, {v_t3}, {v_big}, vcc
    ''')
    st(f'''
    s_mov_b32 {s_t0}, 81920
    v_mul_lo_u32 {v_t3}, {v_h}, {s_t0}
    v_and_b32 {v_t4}, 1, {v_t1}
    v_lshl_add_u32 {v_t3}, {v_t4}, 8, {v_t3}
    v_lshl_add_u32 {v_t3}, {v_t2}, 4, {v_t3}
    s_mov_b32 {s_t0}, 163840
    v_mul_lo_u32 {v_t4}, {v_t1}, {s_t0}
    v_lshl_add_u32 {v_t4}, {v_t2}, 3, {v_t4}
    v_add_u32 {v_t4}, 512, {v_t4}
    ''')
    for rho in range(4):
        st(f'''
        s_add_u32 {s_t0}, {s_w}, {rho}
        s_and_b32 {s_t0}, {s_t0}, 3
        s_mul_i32 {s_t1}, {s_t0}, 640
        v_add_u32 v{V4+rho}, {s_t1}, {v_t3}
        v_add_u32 v{V2+rho}, {s_t1}, {v_t4}
        s_mul_i32 {s_t1}, {s_t0}, {3*5120}
        ''')
        if rho:
            st(f's_add_u32 {s_t1}, {s_t1}, {(rho-1)*5120}\nv_add_u32 v{VRW+rho-1}, {s_t1}, {v_l16}')
        else:
            st(f'v_add_u32 {v_rr}, {s_t1}, {v_l16}')
    st(f'''
    v_mul_u32_u24 {v_t2}, 1280, {v_t2}
    v_mad_u32_u24 {v_t2}, {v_t1}, 40, {v_t2}
    s_lshl_b32 {s_t0}, {s_hd}, 2
    s_add_u32 {s_t0}, {s_t0}, {s_w}
    s_mul_i32 {s_t0}, {s_t0}, {16*1280}
    s_mul_i32 {s_t1}, {s_r2}, 160
    s_add_u32 {s_t0}, {s_t0}, {s_t1}
    v_add_u32 {v_out}, {s_t0}, {v_t2}
    v_and_b32 {v_t1}, 7, {v_lane}
    s_lshl_b32 {s_t0}, {s_xcd}, 12
    s_lshl_b32 {s_t1}, {s_w}, 10
    s_add_u32 {s_t0}, {s_t0}, {s_t1}
    s_and_b32 {s_t1}, {s_hd}, 3
    s_lshl_b32 {s_t1}, {s_t1}, 2
    s_add_u32 {s_t0}, {s_t0}, {s_t1}
    v_lshl_add_u32 {v_p4}, {v_t1}, 7, {s_t0}
    ''')
    st(f'''
    s_lshl_b32 {s_t0}, {s_w}, 10
    v_mul_u32_u24 {v_t1}, {GS}, {v_h}
    v_lshl_add_u32 {v_t1}, {v_r}, 4, {v_t1}
    s_add_u32 {s_t1}, {s_t0}, {L_KA}
    v_add_u32 {v_k0}, {s_t1}, {v_t1}
    s_add_u32 {s_t1}, {s_t0}, {L_KA + 2*GS}
    s_add_u32 {s_t1}, {s_t1}, {s_so}
    v_add_u32 {v_k1}, {s_t1}, {v_l16}
    v_bfe_u32 {v_t1}, {v_lane}, 2, 2
    v_lshl_add_u32 {v_t1}, {v_h}, 2, {v_t1}
    v_lshlrev_b32 {v_t1}, 4, {v_t1}
    v_and_b32 {v_pres}, 16, {v_lane}
    v_cmp_eq_u32 vcc, 0, {v_pres}
    v_and_b32 {v_t2}, 1, {v_lane}
    v_bfe_u32 {v_t3}, {v_lane}, 1, 1
    v_add_u32 {v_t4}, 2, {v_t3}
    v_lshlrev_b32 {v_t3}, 3, {v_t3}
    v_mov_b32 {v_tmp}, {s_so}
    v_cndmask_b32 {v_t2}, {v_t4}, {v_t2}, vcc
    v_cndmask_b32 {v_t3}, {v_tmp}, {v_t3}, vcc
    v_cmp_eq_u32 vcc, 3, {v_t2}
    v_add_u32 {v_t1}, {v_t1}, {v_t3}
    s_add_u32 {s_t1}, {s_t0}, {L_VA}
    v_mul_u32_u24 {v_t3}, {GS}, {v_t2}
    v_add3_u32 {v_v}, {v_t1}, {v_t3}, {s_t1}
    v_mul_u32_u24 {v_t3}, 1088, {v_t2}
    v_add3_u32 {v_vb}, {v_t1}, {v_t3}, {s_mV}
    s_add_u32 {s_t1}, {s_mV}, {3*1088}
    v_lshlrev_b32 {v_t3}, 8, {v_t2}
    v_add3_u32 {v_vh}, {v_t1}, {v_t3}, {s_t1}
    s_add_u32 {s_t1}, {s_t0}, {L_ONE}
    v_add_u32 {v_t3}, {s_t1}, {v_t1}
    v_add_u32 {v_t1}, {L_ONE + 4096}, {v_t1}
    v_cndmask_b32 {v_v}, {v_v}, {v_t3}, vcc
    v_cndmask_b32 {v_vb}, {v_vb}, {v_t1}, vcc
    v_cndmask_b32 {v_vh}, {v_vh}, {v_t1}, vcc
    ''')
    for b in (AK1 + 2, AK1 + 3, AK1 + 6, AK1 + 7, AKB1 + 2, AKB1 + 3, AKB1 + 6, AKB1 + 7):
        st(f'v_accvgpr_write_b32 a{b}, 0')
    st(f'v_mov_b32 v{QA1+8}, 0\nv_mov_b32 v{QA1+9}, 0')
    mk_ = [0, 0, 0, 0]
    for e in range(256):
        ok = (e - 32 <= 0) if e < 64 else (e - 96 > 0) if e < 128 else (0 <= 191 - e <= 14 and (191 - e) % 2 == 0)
        if ok: mk_[e >> 6] |= 1 << (e & 63)
    assert mk_[3] == 0
    st(f'''
    s_cmp_eq_u32 {s_w}, 0
    s_cselect_b32 s38, 0x{mk_[0] & 0xffffffff:x}, 0
    s_cselect_b32 s39, 0x{mk_[0] >> 32:x}, 0
    s_cmp_eq_u32 {s_w}, 1
    s_cselect_b32 s39, 0x{mk_[1] >> 32:x}, s39
    s_cmp_eq_u32 {s_w}, 2
    s_cselect_b32 s39, 0x{mk_[2] >> 32:x}, s39
    v_mov_b32 {v_tmp}, {NEGINF}
    s_lshl_b32 {s_t0}, {s_w}, 8
    s_add_u32 {s_t0}, {s_t0}, {L_TAB}
    v_cndmask_b32 {v_tmp}, {v_tmp}, 0, s[38:39]
    v_lshl_add_u32 {v_t1}, {v_lane}, 2, {s_t0}
    ds_write_b32 {v_t1}, {v_tmp}
    v_lshlrev_b32 {v_t1}, 2, {v_h}
    v_sub_u32 {v_t1}, {v_t1}, {v_r}
    v_lshlrev_b32 {v_t1}, 2, {v_t1}
    v_add_u32 {v_mA}, {L_TAB + 128}, {v_t1}
    s_cmp_eq_u32 {s_q0}, 0
    s_cselect_b64 vcc, -1, 0
    v_mov_b32 {v_t1}, {L_TAB + 4*64}
    v_cndmask_b32 {v_mB0}, {v_mA}, {v_t1}, vcc
    ''')
    assert mk_[1] & 0xffffffff == 0 and mk_[2] & 0xffffffff == 0

def mask_reads(reg, adr, base, a0=0):
    l = []
    for a in range(a0, 4):
        for b in (0, 2):
            k = base + 8 * a + b
            l.append(Ins(f'ds_read2_b32 {vr(reg+4*a+b,2)}, {adr} offset0:{k} offset1:{k+1}'))
    return l
masksA = mask_reads(M_DIAG, v_mA, 0) + mask_reads(M_FAR, v_mA, 64)
masksB = mask_reads(MB_DIAG, v_mA, 159) + mask_reads(MB_PREV, v_mA, 127, 2) + mask_reads(MB_PREV0, v_mB0, 127, 2)

def kvq_loads():
    g = []
    for ty in (1, 2):
        for gi in range(3):
            st = Stream()
            st(f's_add_u32 m0, {s_mK}, {(L_KA if ty == 1 else L_VA) + gi*GS}')
            st(f's_add_u32 {s_e1}, {s_dS if gi == 2 else s_dF}, {QKV[0] + (80*ty + (gi if gi < 2 else 0))*GRP - 4096}')
            st(f'buffer_load_dwordx4 {v_dma}, {sWS}, {s_e1} offen sc1 lds')
            g.append(st.l); st = Stream()
            tok = st.vm(f'buffer_load_dwordx4 {v_dma}, {sWS}, {s_e1} offen offset:1024 sc1 lds')
            g.append(st.l)
    for x in (f'buffer_load_dwordx4 {vr(QA0,4)}, {v_q4}, {sWS}, {s_bF} offen sc1',
              f'buffer_load_dwordx2 {vr(QA1,2)}, {v_qe}, {sWS}, {s_bS} offen sc1',
              f'buffer_load_dwordx2 {vr(QA1+2,2)}, {v_qo}, {sWS}, {s_bS} offen sc1',
              f'buffer_load_dwordx4 {vr(QA0+4,4)}, {v_q4}, {sWS}, {s_bF} offen offset:512 sc1',
              f'buffer_load_dwordx2 {vr(QA1+4,2)}, {v_qe}, {sWS}, {s_bS} offen offset:512 sc1',
              f'buffer_load_dwordx2 {vr(QA1+6,2)}, {v_qo}, {sWS}, {s_bS} offen offset:512 sc1'):
        g.append([Ins(x)])
    return g, tok
def wo_loads(f0, f1):
    g = []
    for F in range(f0, f1):
        br, f = F // 25, F % 25
        st = Stream()
        if f % 4 == 0 or F == f0: st(f's_add_u32 {s_e2}, {s_wob}, {WOF + br*32*25600 + (f & ~3)*1024}')
        st(f'buffer_load_dwordx4 {ar(4*F,4)}, {v_l16}, {sWS}, {s_e2} offen offset:{(f%4)*1024} sc1')
        g.append(st.l)
    return g

S(f'''
s_cmp_ge_u32 s2, 0x100
s_cbranch_scc1 L_end
s_load_dwordx2 s[4:5], s[0:1], 0
s_load_dwordx2 s[8:9], s[0:1], 8
s_load_dwordx2 s[12:13], s[0:1], 32
s_load_dwordx2 s[16:17], s[0:1], 72
s_load_dwordx2 s[20:21], s[0:1], 56
s_load_dwordx2 s[24:25], s[0:1], 64
''')
stamp('start')
CPF = opt('cpf', 1)
def code_prefetch():
    S(f'''
    s_getpc_b64 s[28:29]
    L_pc:
    s_mov_b32 s30, L_end-L_pc
    s_mov_b32 s31, 0x20000
    v_lshlrev_b32 v48, 7, v0
    buffer_load_dword v47, v48, {sTMP}, 0 offen
    ''')
if CPF == 2: code_prefetch()
S(f'''
v_lshrrev_b32 {v_tmp}, 6, v0
v_and_b32 {v_lane}, 63, v0
v_readfirstlane_b32 {s_w}, {v_tmp}
s_and_b32 {s_xcd}, s2, 7
s_lshr_b32 {s_t}, s2, 3
s_and_b32 {s_t0}, {s_xcd}, 1
s_lshl_b32 {s_t0}, {s_t0}, 3
s_and_b32 {s_t1}, {s_t}, 7
s_add_u32 {s_rb}, {s_t0}, {s_t1}
s_lshr_b32 {s_t0}, {s_xcd}, 1
s_lshl_b32 {s_t0}, {s_t0}, 2
s_lshr_b32 {s_t2}, {s_t}, 3
s_add_u32 {s_cb}, {s_t0}, {s_t2}
s_mov_b32 s6, {2048*1280}
s_mov_b32 s7, 0x20000
s_mov_b32 s11, 0x20000
s_cmp_eq_u32 {s_cb}, 15
s_cbranch_scc1 L_spare
s_mov_b32 s10, {640*3840}
''')
ROT = opt('rot', 10)
if ROT == 10:
    S(f's_mul_i32 {s_rot}, {s_t2}, 5\ns_lshr_b32 {s_rot}, {s_rot}, 1\ns_add_u32 {s_rot}, {s_rot}, {s_t1}')
elif ROT == 1:
    S(f's_mov_b32 {s_rot}, 0')
elif ROT == 2:
    S(f's_add_u32 {s_rot}, {s_t1}, {s_t2}\ns_and_b32 {s_rot}, {s_rot}, 1\ns_mul_i32 {s_rot}, {s_rot}, 5')
elif ROT == 4:
    S(f's_add_u32 {s_rot}, {s_t1}, {s_t2}\ns_and_b32 {s_rot}, {s_rot}, 3\ns_mul_i32 {s_rot}, {s_rot}, 5\ns_lshr_b32 {s_rot}, {s_rot}, 1')
elif ROT == 22:
    S(f's_add_u32 {s_rot}, {s_t1}, {s_t2}\ns_and_b32 {s_rot}, {s_rot}, 1\ns_lshl_b32 {s_rot}, {s_rot}, 1\ns_lshr_b32 {s_t0}, {s_xcd}, 1\ns_add_u32 {s_t0}, {s_t0}, {s_xcd}\ns_and_b32 {s_t0}, {s_t0}, 1\ns_add_u32 {s_rot}, {s_rot}, {s_t0}\ns_mul_i32 {s_rot}, {s_rot}, 5\ns_lshr_b32 {s_rot}, {s_rot}, 1')
elif ROT == 3:
    S(f's_add_u32 {s_rot}, {s_t1}, {s_t2}\ns_mul_i32 {s_t0}, {s_rot}, 86\ns_lshr_b32 {s_t0}, {s_t0}, 8\ns_mul_i32 {s_t0}, {s_t0}, 3\ns_sub_u32 {s_rot}, {s_rot}, {s_t0}\ns_mul_i32 {s_rot}, {s_rot}, 7\ns_lshr_b32 {s_rot}, {s_rot}, 1')
def rot(st, n):
    st(f'''
    s_cmp_ge_u32 {s_rot}, 10
    s_cselect_b32 {s_t3}, 10, 0
    s_sub_u32 {s_rot}, {s_rot}, {s_t3}
    s_mul_i32 s{SW0+n}, {s_rot}, {64*3840}
    s_lshl_b32 s{SX0+n}, {s_rot}, 7
    s_add_u32 {s_rot}, {s_rot}, 1
    ''')
rot(S, 0)
S(f'''
v_lshrrev_b32 {v_t1}, 4, {v_lane}
v_lshrrev_b32 {v_t2}, 3, {v_lane}
v_mul_u32_u24 {v_t2}, 1280, {v_t2}
v_and_b32 {v_t3}, 7, {v_lane}
v_xor_b32 {v_t3}, {v_t3}, {v_t1}
s_lshl_b32 {s_stb}, {s_rb}, 2
s_add_u32 {s_stb}, {s_stb}, {s_w}
s_mul_i32 {s_t2}, {s_stb}, {32*1280}
v_add_u32 {v_t2}, {s_t2}, {v_t2}
v_lshl_add_u32 v{VXD}, {v_t3}, 4, {v_t2}
v_xor_b32 {v_t3}, 4, {v_t3}
v_lshl_add_u32 v{VXD+1}, {v_t3}, 4, {v_t2}
v_add_u32 v{VXD+2}, {2*(8*1280-1024)}, v{VXD}
v_add_u32 v{VXD+3}, {3*(8*1280-1024)}, v{VXD+1}
v_add_u32 v{VXD+1}, {8*1280-1024}, v{VXD+1}
s_lshl_b32 {s_mW}, {s_w}, 12
s_add_u32 {s_mX}, {s_mW}, {L_X}
v_and_b32 {v_t2}, 15, {v_lane}
v_lshlrev_b32 {v_t3}, 2, {v_t1}
v_xor_b32 {v_t2}, {v_t2}, {v_t3}
v_mul_u32_u24 {v_t3}, 3840, {v_t1}
v_lshl_add_u32 {v_t3}, {v_t2}, 4, {v_t3}
s_mul_i32 {s_t1}, {s_w}, {16*3840}
s_lshl_b32 {s_t2}, {s_cb}, 8
s_add_u32 {s_t1}, {s_t1}, {s_t2}
v_add_u32 v{VWD}, {s_t1}, {v_t3}
''')
for i in range(1, 4):
    S(f'v_add_u32 v{VWD+i}, {i*(4*3840-1024)}, v{VWD}')
rot(S, 1)
S('s_waitcnt lgkmcnt(0)')

dma_tok = {}
WSLOT = [n % 4 for n in range(10)] + [2, 6, 3, 7, 0, 4, 1, 2, 3, 0]
WISS = {n: n - 2 for n in range(3, 11)}
WISS.update({11: 8, 12: 9, 13: 9, 14: 10, 15: 10, 16: 11, 17: 12, 18: 14, 19: 16})
CTM = opt('ctm', 2)
def dma_stage(n):
    p, ns, slot = n // 10, n % 10, WSLOT[n]
    g = []
    if p == 0:
        g.append([Ins(f's_add_u32 m0, {s_mX}, {slot*16384}')])
        for i in range(4):
            g.append([Ins(f'buffer_load_dwordx4 v{VXD+i}, {sX}, s{SX0+ns} offen offset:{1024*i} lds')])
        g[-1].append(Ins(f's_add_u32 m0, {s_mW}, {L_W+slot*16384}'))
    else:
        g.append([Ins(f's_add_u32 m0, {s_mW}, {L_W+slot*16384}')])
    for i in range(4):
        st = Stream()
        dma_tok[n] = st.vm(f'buffer_load_dwordx4 v{VWD+i}, {sWB if p else sWA}, s{SW0+ns} offen offset:{1024*i} lds')
        g.append(st.l)
    return g

def common_consts(st):
    if opt('wsoff', 0): st(f"s_add_u32 s16, s16, {opt('wsoff', 0) << 20}\ns_addc_u32 s17, s17, 0")
    st(f'''
    s_mov_b32 s18, {WS_SIZE + (65536 if STAMPS else 0)}
    s_mov_b32 s19, 0x20000
    s_mov_b32 s26, 256
    s_mov_b32 s27, 0x20000
    s_mov_b32 s31, 0x20000
    v_cmp_eq_u32 vcc, 0, v0
    v_mov_b32 {v_big}, {BIG}
    v_mov_b32 {v_one}, 1
    v_lshlrev_b32 {v_l16}, 4, {v_lane}
    v_cndmask_b32 {v_flag}, {v_big}, 0, vcc
    ''')

PRE = opt('pre', 5)
d0, d1, d2 = dma_stage(0), dma_stage(1), dma_stage(2)
for g in d0: S.extend(g)
common_consts(S)
if CPF == 1: code_prefetch()
if opt('tlb', 0):
    S(f'''
    v_lshlrev_b32 {v_t1}, 19, {v_lane}
    s_mov_b32 s14, {640*3840}
    s_mov_b32 s15, 0x20000
    s_mov_b32 s22, {2048*1280}
    s_mov_b32 s23, 0x20000
    buffer_load_dword v48, {v_t1}, {sWS}, 0 offen
    buffer_load_dword v48, {v_t1}, {sWB}, 0 offen
    buffer_load_dword v48, {v_t1}, {sOUT}, 0 offen
    buffer_load_dword v48, {v_t1}, {sDBG}, 0 offen
    ''')
for g in d1[:PRE]: S.extend(g)
stamp('iss0')
for n in range(2, 10): rot(S, n)
S(f'''
v_lshrrev_b32 {v_t1}, 5, {v_lane}
v_bfe_u32 {v_t2}, {v_lane}, 2, 2
v_lshl_add_u32 {v_t3}, {v_t1}, 3, {v_t2}
v_lshlrev_b32 {v_t3}, 8, {v_t3}
v_bfe_u32 {v_tmp}, {v_lane}, 4, 1
v_lshl_add_u32 {v_t3}, {v_tmp}, 5, {v_t3}
v_and_b32 {v_tmp}, 1, {v_lane}
v_lshl_add_u32 {v_t3}, {v_tmp}, 4, {v_t3}
v_bfe_u32 {v_tmp}, {v_lane}, 1, 1
v_lshl_add_u32 {v_t3}, {v_tmp}, 3, {v_t3}
v_lshl_add_u32 v{VWR}, {v_t2}, 6, {v_t3}
''')
for ct in range(1, 4):
    S(f'v_xor_b32 v{VWR+ct}, {ct*64}, v{VWR}')
S(f'''
v_and_b32 {v_t2}, 31, {v_lane}
v_bfe_u32 {v_t3}, {v_lane}, 1, 3
v_xor_b32 {v_t3}, {v_t3}, {v_t1}
v_lshlrev_b32 {v_t3}, 4, {v_t3}
v_lshl_add_u32 {v_t3}, {v_t2}, 7, {v_t3}
v_add_u32 v{VXR}, {s_mX}, {v_t3}
''')
for s_ in range(1, 4):
    S(f'v_xor_b32 v{VXR+s_}, {s_*32}, v{VXR}')
S(f'''
s_lshl_b32 {s_t1}, {s_stb}, 9
v_lshlrev_b32 {v_t1}, 15, {v_t1}
v_lshl_add_u32 {v_t1}, {v_t2}, 4, {v_t1}
v_add_u32 {v_st}, {s_t1}, {v_t1}
s_lshl_b32 {s_stb}, {s_cb}, 19
s_cmp_lt_u32 {s_cb}, 5
s_cselect_b32 s42, {f32(QSCALE)}, 1.0
s_mov_b32 s43, s42
''')
su = Stream(); setup23(su)
SPLIT = opt('split', 100)
sug = atomize(su.l)
su_pre, su_post = sug[:SPLIT], sug[SPLIT:]
for g in su_pre: S.extend(g)
stamp('setup')
for g in d1[PRE:]: S.extend(g)

seq = []
for n in range(20 - CTM):
    seq += [(n, s_, ct) for s_ in range(4) for ct in range(4)]
seq += [(n, s_, ct) for ct in range(4) for n in range(20 - CTM, 20) for s_ in range(4)]
def w_reads(k):
    n, s_, ct = seq[k]; buf = AW + 4 * (k & 7); sl_ = WSLOT[n]
    return [Ins(f'ds_read_b64_tr_b16 {ar(buf+2*u,2)}, v{(VXR if sl_ >= 4 else VWR)+ct} offset:{(sl_%4)*16384+(16*s_+4*u)*256}') for u in range(2)]
def x_read(n, s_):
    return [Ins(f'ds_read_b128 {ar(4*(4*n+s_),4)}, v{VXR+s_} offset:{(n%4)*16384}')]
QSC = ['', ' sc1', ' nt', ' sc0 sc1', ' sc1 nt'][opt('qsc', 1)]
def epi1_tile(p, ct, pk=False):
    st = Stream(); tok = None
    for u in range(2):
        b = ACC[p] + 16 * ct + 8 * u
        if pk:
            for i in range(0, 8, 2): st(f'v_pk_mul_f32 {vr(b+i,2)}, {vr(b+i,2)}, s[42:43]')
        else:
            for i in range(8): st(f'v_mul_f32 v{b+i}, s42, v{b+i}')
        for i in range(4): st(f'v_cvt_pk_bf16_f32 v{b+i}, v{b+2*i}, v{b+2*i+1}')
        st(f's_add_u32 {s_e0}, {s_stb}, {QKV[p]+(4*ct+2*u)*GRP}')
        tok = st.vm(f'buffer_store_dwordx4 {vr(b,4)}, {v_st}, {sWS}, {s_e0} offen{QSC}')
    return st.l, tok

S.wait(dma_tok[0]); S('s_barrier')
stamp('first')
S.extend(x_read(0, 0))
for k in range(4): S.extend(w_reads(k))
slots = []
for k, (n, s_, ct) in enumerate(seq):
    p = n // 10
    acc = vr(ACC[p] + 16 * ct, 16)
    first = (n % 10 == 0 and s_ == 0)
    g = [Ins(f'{mm} {acc}, {ar(AW+4*(k&7),4)}, {ar(4*(4*(n%10)+s_),4)}, {"0" if first else acc}')]
    if k + 4 < len(seq):
        n2, s2, c2 = seq[k + 4]
        if k % 16 == 12 and k // 16 + 1 <= 20 - CTM: g.append(('BAR', n2))
        if c2 == 0 and n2 < 10: g += x_read(n2, s2)
        g += w_reads(k + 4)
    slots.append(g)
weave(slots, d2, 0, 10)
for b in range(1, 20):
    l = [g for n in range(3, 20) if WISS[n] == b for g in dma_stage(n)]
    if l: weave(slots, l, 16 * b - 3, 16 * b + (9 if b < 16 else 3))
weave(slots, [Ins(f'v_add_u32 v{VXR+ct}, {L_X}, v{VWR+ct}') for ct in range(4)], 158, 162)
if su_post: weave(slots, su_post, 2, 16 * 8)
slots[16 * 8 + 4] += mk(poll_issue, v_pres, v_zero, sDBG, '0')
slots[16 * 9 + 14] += mk(poll_check, v_pres, v_zero, sDBG, '0')
epiA = []
for ct in range(4):
    l, tokA = epi1_tile(0, ct); epiA += l
weave(slots, epiA, 163, opt('epiAend', 212))
FLAGA = opt('flagA', 15)
WO0 = opt('wo0', 14)
NWO1 = opt('nwo1', 28)
slots[16 * (WO0 - 1) - 8] += mk(poll_issue, v_pres, v_p2, sWS, s_F1A)
slots[16 * (WO0 - 1) + 14] += mk(poll_check, v_pres, v_p2, sWS, s_F1A) + [('ST', 'pc2')]
slots[16 * FLAGA - 5] += [('ST', 'preF')]
P1S = opt('p1s', 17)
wl = wo_loads(0, NWO1)
n_a = min(NWO1, 5 * (P1S - WO0))
weave(slots, wl[:n_a], 16 * WO0, 16 * P1S - 8)
weave(slots, masksA, 16 * 15, 16 * 16)
slots[16 * P1S - 7] += mk(poll_issue, v_pres, v_p1, sWS, s_F1A)
slots[16 * P1S + 9] += [('ST', 'pre1')] + mk(poll_check, v_pres, v_p1, sWS, s_F1A) + [('ST', 'pc1')]
for k_ in (295, 303, 311): slots[k_] += [('ST', 's%d' % k_)]
kv, tokKV = kvq_loads()
assert 16 * P1S + 10 >= 16 * 16 + 13
weave(slots, kv, 16 * P1S + 10, 16 * P1S + 22)
if n_a < NWO1: weave(slots, wo_loads(n_a, NWO1), 16 * P1S + 22, 16 * 19 + 12)
assert NWO1 <= 4 * (10 - CTM)
for ct in range(3):
    l, tokB = epi1_tile(1, ct)
    lo = 320 - 4 * CTM * (3 - ct) + 2
    weave(slots, l, lo, min(lo + 4 * CTM, 320))
for k, g in enumerate(slots):
    for it in g:
        if isinstance(it, tuple) and it[0] == 'ST':
            if FINE: stamp(it[1])
        elif isinstance(it, tuple):
            n2 = it[1]
            tk = [dma_tok[n2]] if n2 < 20 - CTM else [dma_tok[m] for m in range(n2, 20)]
            if n2 == FLAGA: tk.append(tokA)
            S.wait(*tk)
            S('s_barrier')
            if n2 == FLAGA: set_flag(S, v_flag, s_f1, F1[0])
            if FINE or n2 in (10, 14, 18): stamp('b%d' % n2)
        else:
            S.l.append(it)
stamp('p1end')
l, tokB = epi1_tile(1, 3, True)
S.extend(l)
S.wait(tokKV)
S('s_barrier')
S('L_join:')
stamp('join')
nst_join = nstamp[0] - 1

steps = [(0, 0)] + [(j, q) for j in range(1, 9) for q in range(2)] + [(9, 1)]
def k0_read(j): return Ins(f'ds_read_b128 {ar(AK0+4*(j&1),4)}, {v_k0} offset:{512*j}')
def k1_read(j): return Ins(f'ds_read_b64 {ar(AK1+4*((j>>1)&1),2)}, {v_k1} offset:{512*j}')
def v_read(j, kk, u): return Ins(f'ds_read_b64_tr_b16 {ar(AV+8*(j&1)+4*kk+2*u,2)}, {v_v} offset:{512*j+256*kk+128*u}')
def qka(n):
    j, q = steps[n]
    c = vr(M_FAR, 16) if j == q else vr(M_DIAG, 16) if j == 8 + q else '0'
    return f'{mm} {vr(SB[n&1],16)}, {ar(AK0+4*(j&1),4)}, {vr(QA0+4*q,4)}, {c}'
def qkb(n):
    j, q = steps[n]
    return f'{mm} {vr(SB[n&1],16)}, {ar(AK1+4*((j>>1)&1),4)}, {vr(QA1+4*q+2*(j&1),4)}, {vr(SB[n&1],16)}'
def pv(n, kk):
    j, q = steps[n]
    c = '0' if (j == q and kk == 0) else vr(OA[q], 16)
    return f'{mm} {vr(OA[q],16)}, {ar(AV+8*(j&1)+4*kk,4)}, {vr(P0+4*kk,4)}, {c}'
def exps(n, g): return [f'v_exp_f32 v{E0+4*(g&1)+i}, v{SB[n&1]+4*g+i}' for i in range(4)]
def cvts(g): return [f'v_cvt_pk_bf16_f32 v{P0+2*g+i}, v{E0+4*(g&1)+2*i}, v{E0+4*(g&1)+2*i+1}' for i in range(2)]
S.l += [k0_read(0), k1_read(0), k0_read(1)] + [v_read(0, kk, u) for kk in range(2) for u in range(2)]
S(qka(0)); S(qkb(0))
S.l += masksB[:10]
N = len(steps)
groups = []
for n in range(N):
    for g in range(4):
        st = Stream()
        if g == 0 and n + 1 < N: st(qka(n + 1))
        if g == 1 and n > 0: st(pv(n - 1, 1))
        if g == 2 and n + 1 < N: st(qkb(n + 1))
        if g == 3: st(pv(n, 0))
        if g > 0 or n > 0:
            for x in cvts((g - 1) & 3): st(x)
        for x in exps(n, g): st(x)
        groups.append(st.l)
first = {}
for n, (j, q) in enumerate(steps): first.setdefault(j, n)
last = {j: n for n, (j, q) in enumerate(steps)}
for j in range(1, 10):
    if j >= 2: groups[4 * max(last[j-2] - 1, 0) + 1].append(k0_read(j))
    if j % 2 == 0: groups[4 * max(first[j] - 3, 0) + 0].append(k1_read(j))
    for kk in range(2):
        for u in range(2):
            base = 4 * (last[j-2] + 1) + 1 if j >= 2 else 0
            groups[base + 2 * kk + u].append(v_read(j, kk, u))
weave(groups, masksB[10:], 4, 16)
FB = opt('fb', 3)
st = Stream(); st.wait(tokB); st('s_barrier'); set_flag(st, v_flag, s_f1, F1[1]); groups[4 * FB - 1] += st.l
P3S = opt('p3s', 11)
weave(groups, wo_loads(NWO1, 50), 0, 4 * (P3S - 2) - 1)
groups[4 * (P3S - 2) - 1] += mk(poll_issue, v_pres, v_p3, sWS, s_F1B)
groups[4 * P3S - 1] += mk(poll_check, v_pres, v_p3, sWS, s_F1B)
bl = []
def G(txt):
    st = Stream(); st(txt); bl.append(st.l)
G(f's_add_u32 {s_e0}, {s_bF}, {QKV[1]}\nbuffer_load_dwordx4 {vr(QB0,4)}, {v_q4}, {sWS}, {s_e0} offen sc1')
G(f'buffer_load_dwordx4 {vr(QB0+4,4)}, {v_q4}, {sWS}, {s_e0} offen offset:512 sc1')
G(f's_add_u32 {s_e1}, {s_bS}, {QKV[1]}\nbuffer_load_dwordx2 {vr(QB1,2)}, {v_qe}, {sWS}, {s_e1} offen sc1')
G(f'buffer_load_dwordx2 {vr(QB1+2,2)}, {v_qo}, {sWS}, {s_e1} offen sc1')
G(f'buffer_load_dwordx2 {vr(QB1+4,2)}, {v_qo}, {sWS}, {s_e1} offen offset:512 sc1')
G(f's_add_u32 {s_e0}, {s_bF}, {QKV[1] + 80*GRP - 512}\nbuffer_load_dwordx4 {vr(KB0,4)}, {v_kb0}, {sWS}, {s_e0} offen sc1')
G(f'buffer_load_dwordx4 {vr(KB0+4,4)}, {v_q4}, {sWS}, {s_e0} offen offset:512 sc1')
G(f'buffer_load_dwordx4 {vr(KB0+8,4)}, {v_q4}, {sWS}, {s_e0} offen offset:1024 sc1')
G(f's_add_u32 {s_e1}, {s_bS}, {QKV[1] + 80*GRP - 512}\nbuffer_load_dwordx2 {ar(AKB1,2)}, {v_kb1}, {sWS}, {s_e1} offen sc1')
G(f'buffer_load_dwordx2 {ar(AKB1+4,2)}, {v_qo}, {sWS}, {s_e1} offen offset:1024 sc1')
G(f'buffer_load_dword {v_g[0]}, {v_gad}, {sWS}, {s_gb} offen sc1')
G(f'buffer_load_dword {v_g[1]}, {v_gad}, {sWS}, {s_gb} offen offset:128 sc1')
G(f's_mov_b32 m0, {s_mV}\ns_add_u32 {s_e0}, {s_bF}, {QKV[1] + 160*GRP}\nbuffer_load_dwordx4 {v_l16}, {sWS}, {s_e0} offen sc1 lds')
G(f's_add_u32 m0, {s_mV}, 1088\ns_add_u32 {s_e0}, {s_bF}, {QKV[1] + 161*GRP}\nbuffer_load_dwordx4 {v_l16}, {sWS}, {s_e0} offen sc1 lds')
G(f's_add_u32 m0, {s_mV}, 2176\ns_add_u32 {s_e0}, {s_bS}, {QKV[1] + 160*GRP}\nbuffer_load_dwordx4 {v_l16}, {sWS}, {s_e0} offen sc1 lds')
st = Stream(); st(f's_add_u32 m0, {s_mV}, 3264\nv_mov_b32 v{QB1+6}, 0\nv_mov_b32 v{QB1+7}, 0')
tokVB = st.vm(f'buffer_load_dwordx4 {v_halo}, {sWS}, 0 offen sc1 lds'); bl.append(st.l)
weave(groups, bl, 4 * P3S, 4 * P3S + 12)
for k, g in enumerate(groups):
    S.l += g
    if FINE and k % 8 == 7: stamp('a%d' % (k // 4))
for x in cvts(3): S(x)
S(pv(N - 1, 1))
stamp('attA')

SP = [64, 192]; SD = [80, 208]
VB = 200
OB = [24, 40]
def epi2(br, q, o, pk=False):
    st = Stream()
    st(f'v_rcp_f32 {v_t1}, v{o+12}')
    if q == 0: st(f's_add_u32 {s_e0}, {s_ob}, {O_OFF + br*OBR}')
    if br: st(f'v_sub_f32 {v_g[q]}, 1.0, {v_g[q]}')
    st(f'v_mul_f32 {v_t1}, {v_g[q]}, {v_t1}')
    if pk:
        for i in range(0, 12, 2): st(f'v_pk_mul_f32 {vr(o+i,2)}, {vr(o+i,2)}, {vr(58,2)} op_sel_hi:[1,0]')
    else:
        for i in range(12): st(f'v_mul_f32 v{o+i}, {v_t1}, v{o+i}')
    for i in range(6): st(f'v_cvt_pk_bf16_f32 v{o+i}, v{o+2*i}, v{o+2*i+1}')
    st(f'buffer_store_dwordx4 {vr(o,4)}, {v_o4}, {sWS}, {s_e0} offen offset:{1280*q} sc1')
    tok = st.vm(f'buffer_store_dwordx2 {vr(o+4,2)}, {v_o2}, {sWS}, {s_e0} offen offset:{1280*q} sc1')
    return st.l, tok
qkB = [[Ins(x)] for x in (
    f'{mm} {vr(SP[0],16)}, {vr(KB0,4)}, {vr(QB0,4)}, {vr(MB_PREV0,16)}',
    f'{mm} {vr(SP[0],16)}, {ar(AKB1,4)}, {vr(QB1,4)}, {vr(SP[0],16)}',
    f'{mm} {vr(SD[0],16)}, {vr(KB0+4,4)}, {vr(QB0,4)}, {vr(MB_DIAG,16)}',
    f'{mm} {vr(SD[0],16)}, {ar(AKB1,4)}, {vr(QB1+2,4)}, {vr(SD[0],16)}',
    f'{mm} {vr(SP[1],16)}, {vr(KB0+4,4)}, {vr(QB0+4,4)}, {vr(MB_PREV,16)}',
    f'{mm} {vr(SP[1],16)}, {ar(AKB1,4)}, {vr(QB1+4,4)}, {vr(SP[1],16)}',
    f'{mm} {vr(SD[1],16)}, {vr(KB0+8,4)}, {vr(QB0+4,4)}, {vr(MB_DIAG,16)}',
    f'{mm} {vr(SD[1],16)}, {ar(AKB1+4,4)}, {vr(QB1+4,4)}, {vr(SD[1],16)}')]
e0, _ = epi2(0, 0, OA[0]); e1, tokOA = epi2(0, 1, OA[1])
weave(qkB, e0 + e1, 0, 7)
st = Stream(); st.wait(tokVB)
for u in range(2): st(f'ds_read_b64_tr_b16 {ar(VB+2*u,2)}, {v_vh} offset:{128*u}')
for t in range(2):
    for kk in range(2):
        for u in range(2): st(f'ds_read_b64_tr_b16 {ar(VB+4+8*t+4*kk+2*u,2)}, {v_vb} offset:{512*t+256*kk+128*u}')
weave(qkB, st.l, 7, 8)
for g in qkB: S.l += g
def softB(q):
    st = Stream()
    b = SP[q] + 8
    assert SD[q] == SP[q] + 16
    st(f'v_max3_f32 {v_t3}, v{b}, v{b+1}, v{b+2}')
    st(f'v_max3_f32 {v_t4}, v{b+3}, v{b+4}, v{b+5}')
    for i in range(6, 22, 4):
        st(f'v_max3_f32 {v_t3}, {v_t3}, v{b+i}, v{b+i+1}')
        st(f'v_max3_f32 {v_t4}, {v_t4}, v{b+i+2}, v{b+i+3}')
    st(f'v_max3_f32 {v_t3}, {v_t3}, v{b+22}, v{b+23}')
    st(f'v_max_f32 {v_t3}, {v_t3}, {v_t4}')
    st(f'v_mov_b32 {v_t4}, {v_t3}')
    st(f'v_permlane32_swap_b32 {v_t3}, {v_t4}')
    st(f'v_max_f32 {v_t3}, {v_t3}, {v_t4}')
    for i in range(0, 24, 2): st(f'v_pk_add_f32 {vr(b+i,2)}, {vr(b+i,2)}, {vr(60,2)} op_sel_hi:[1,0] neg_lo:[0,1] neg_hi:[0,1]')
    vop = [VB if q == 0 else VB + 8, VB + 4 + 8 * q, VB + 8 + 8 * q]
    for c in range(3):
        for i in range(8): st(f'v_exp_f32 v{b+8*c+i}, v{b+8*c+i}')
        if c: st(f'{mm} {vr(OB[q],16)}, {ar(vop[c-1],4)}, {vr(b+8*(c-1),4)}, {"0" if c == 1 else vr(OB[q],16)}')
        for i in range(4): st(f'v_cvt_pk_bf16_f32 v{b+8*c+i}, v{b+8*c+2*i}, v{b+8*c+2*i+1}')
    return st.l, Ins(f'{mm} {vr(OB[q],16)}, {ar(vop[2],4)}, {vr(b+16,4)}, {vr(OB[q],16)}')
l0, m0_ = softB(0); l1, m1_ = softB(1)
S.l += l0; S.l += l1[:2]; S.l.append(m0_); S.l += l1[2:30]
S.wait(tokOA); set_flag(S, v_flagw, s_f2, F2[0])
stamp('flgA')
S.l += l1[30:]
e0, _ = epi2(1, 0, OB[0]); e1, tokOB = epi2(1, 1, OB[1], True)
S.l += e0[:2]; S.l.append(m1_); S.l += e0[2:]; S.l += e1
poll_issue(S, 'v1', v_p4, sWS, s_F2A)
S.wait(tokOB); set_flag(S, v_flagw, s_f2, F2[1])
stamp('flgB')
poll_check(S, 'v1', v_p4, sWS, s_F2A)
stamp('poll4')

def o_load(br, s_, rho, u=0):
    st = Stream()
    if s_ < 4:
        st(f's_add_u32 {s_e0}, {s_o3}, {O_OFF + br*OBR + s_*163840}')
        st(f'buffer_load_dwordx4 {vr(OF[br]+16*s_+4*rho,4)}, v{V4+rho}, {sWS}, {s_e0} offen sc1')
    else:
        st(f's_add_u32 {s_e0}, {s_o3}, {O_OFF + br*OBR + u*81920}')
        st(f'buffer_load_dwordx2 {vr(OF[br]+64+4*rho+2*u,2)}, v{V2+rho}, {sWS}, {s_e0} offen sc1')
    return st.l
P5 = opt('p5', 2)
for s_ in range(4):
    for rho in range(4):
        l = o_load(0, s_, rho); S.l += l if rho == 0 else l[1:]
    if s_ == P5: poll_issue(S, 'v1', v_p4, sWS, s_F2B)
for u in range(2):
    for rho in range(4):
        l = o_load(0, 4, rho, u); S.l += l if rho == 0 else l[1:]
def mf3(br, s_, rho, ct):
    acc = vr(AC3 + 20 * rho + 4 * ct, 4)
    return [Ins(f'v_mfma_f32_16x16x32_bf16 {acc}, {ar(100*br+20*s_+4*ct,4)}, {vr(OF[br]+16*s_+4*rho,4)}, {"0" if br == 0 and s_ == 0 else acc}')]
sl = [mf3(0, s_, rho, ct) for s_ in range(5) for rho in range(4) for ct in range(5)]
order = (1, 2, 3, 0)
sl += [mf3(1, s_, rho, ct) for rho in order for s_ in range(5) for ct in range(5)]
C5 = opt('c5', 20)
sl[C5] += mk(poll_check, 'v1', v_p4, sWS, s_F2B)
ob = []
for rho in order:
    for s_ in range(4): ob += [[x] for x in o_load(1, s_, rho)]
    for u in range(2): ob += [[x] for x in o_load(1, 4, rho, u)]
weave(sl, ob, C5 + 1, C5 + 1 + 48)
for i, rho in enumerate((1, 2, 3)):
    wr = [Ins(f'ds_write_b128 v{VRW+rho-1}, {vr(AC3+20*rho+4*ct,4)} offset:{1024*ct}') for ct in range(5)]
    lo = 125 + 25 * i + 3
    weave(sl, wr, lo, lo + (15 if i < 2 else 5))
st = Stream(); st('s_waitcnt lgkmcnt(0)\ns_barrier'); sl[189] += st.l
rd = [Ins(f'ds_read_b128 {vr(OF[0]+20*k+4*ct,4)}, {v_rr} offset:{5120*k+1024*ct}') for ct in range(5) for k in range(3)]
weave(sl, rd, 190, 200)
for k, g in enumerate(sl):
    S.l += g
    if k == 99: stamp('mf3A')
stamp('mf3')
for i in range(0, 20, 2):
    S(f'v_pk_add_f32 {vr(OF[0]+i,2)}, {vr(OF[0]+i,2)}, {vr(OF[0]+20+i,2)}')
    S(f'v_pk_add_f32 {vr(AC3+i,2)}, {vr(AC3+i,2)}, {vr(OF[0]+40+i,2)}')
for i in range(0, 20, 2):
    S(f'v_pk_add_f32 {vr(AC3+i,2)}, {vr(AC3+i,2)}, {vr(OF[0]+i,2)}')
for i in range(10):
    S(f'v_cvt_pk_bf16_f32 v{AC3+i}, v{AC3+2*i}, v{AC3+2*i+1}')
OSC = ['', ' sc1', ' nt', ' sc0 sc1', ' sc1 nt'][opt('osc', 0)]
S(f'''
buffer_store_dwordx4 {vr(AC3,4)}, {v_out}, {sOUT}, 0 offen{OSC}
buffer_store_dwordx4 {vr(AC3+4,4)}, {v_out}, {sOUT}, 0 offen offset:16{OSC}
buffer_store_dwordx2 {vr(AC3+8,2)}, {v_out}, {sOUT}, 0 offen offset:32{OSC}
''')
if STAMPS:
    stamp('red')
    S('s_waitcnt vmcnt(0)')
    stamp('end')
    S(f'''
    s_waitcnt lgkmcnt(0)
    s_cmp_lg_u32 {s_w}, 0
    s_cbranch_scc1 L_end
    v_writelane_b32 v0, s{ST0+2*((nstamp[0]-1)&1)}, {nstamp[0]-1}
    s_lshl_b32 {s_t0}, s2, 8
    s_add_u32 {s_t0}, {s_t0}, {STAMP_OFF}
    v_mbcnt_lo_u32_b32 v3, -1, 0
    v_mbcnt_hi_u32_b32 v3, -1, v3
    v_lshlrev_b32 v3, 2, v3
    buffer_store_dword v0, v3, {sWS}, {s_t0} offen
    ''')
    assert nstamp[0] <= 64, nstamp[0]
    open(OUT + '.stamps', 'w').write(' '.join(n or str(i) for i, n in enumerate(stamp_names)))
S('s_endpgm')

T = Stream()
nstamp[0] = 1
T('@reset')
T(f'''
L_spare:
s_waitcnt lgkmcnt(0)
s_load_dwordx2 s[56:57], s[0:1], 16
s_load_dwordx2 s[58:59], s[0:1], 40
s_load_dwordx2 s[8:9], s[0:1], 48
s_mov_b32 s30, {640*1280}
s_mov_b32 s10, 1280
''')
common_consts(T)
T(f'''
s_and_b32 {s_e0}, {s_rb}, 1
s_lshl_b32 {s_e0}, {s_e0}, 2
s_add_u32 {s_e0}, {s_e0}, {s_w}
s_bfe_u32 {s_e1}, {s_rb}, 0x20001
s_mul_i32 {s_t2}, {s_e0}, 160
s_mul_i32 {s_t1}, {s_e1}, {160*1280}
s_add_u32 {s_t2}, {s_t2}, {s_t1}
s_mov_b32 {s_t0}, {(1<<32)//10+1}
''')
for i in range(5):
    T(f'''
    v_add_u32 {v_t1}, {64*i}, {v_lane}
    v_mul_hi_u32 {v_t2}, {v_t1}, {s_t0}
    v_mul_u32_u24 {v_t3}, 10, {v_t2}
    v_sub_u32 {v_t1}, {v_t1}, {v_t3}
    v_mul_u32_u24 {v_t2}, 1280, {v_t2}
    v_lshl_add_u32 {v_t2}, {v_t1}, 4, {v_t2}
    v_add_u32 v{2+i}, {s_t2}, {v_t2}
    ''')
T(f'''
s_mul_i32 {s_mW}, {s_w}, 25600
s_waitcnt lgkmcnt(0)
s_cmp_ge_u32 {s_rb}, 8
s_cselect_b32 s28, s58, s56
s_cselect_b32 s29, s59, s57
s_cmp_lg_u32 {s_rb}, 0
s_cbranch_scc1 L_noinit
v_mov_b32 v64, 0
v_mov_b32 v65, 0
v_mov_b32 v66, 0
v_mov_b32 v67, 0
v_lshlrev_b32 {v_t1}, 7, v0
s_mov_b32 {s_t0}, {F1[0]}
s_mov_b32 {s_t1}, {F2[0]}
s_mov_b32 {s_t3}, {F2[1]}
buffer_store_dwordx4 v[64:67], {v_t1}, {sWS}, {s_t0} offen sc1
buffer_store_dwordx4 v[64:67], {v_t1}, {sWS}, {s_t1} offen sc1
buffer_store_dwordx4 v[64:67], {v_t1}, {sWS}, {s_t3} offen sc1
s_waitcnt vmcnt(0)
s_barrier
buffer_store_dword {v_one}, {v_flag}, {sDBG}, 0 offen sc1
s_waitcnt vmcnt(0)
L_noinit:
''')
wtok = []
for i in range(25):
    T(f's_add_u32 m0, {s_mW}, {1024*i}')
    T(f's_mov_b32 {s_t1}, {(i//5)*32*1280}')
    wtok.append(T.vm(f'buffer_load_dwordx4 v{2+i%5}, {sTMP}, {s_t1} offen lds'))
T(f'''
v_lshrrev_b32 {v_t1}, 4, {v_lane}
v_bfe_u32 {v_t2}, {v_lane}, 2, 2
v_and_b32 {v_t3}, 3, {v_lane}
v_mul_u32_u24 {v_t3}, 40, {v_t3}
v_add_u32 {v_t3}, {s_mW}, {v_t3}
v_mad_u32_u24 {v_t4}, {v_t1}, 40, {v_t2}
v_add_u32 {v_t4}, 16, {v_t4}
v_mul_u32_u24 {v_t4}, 160, {v_t4}
v_add_u32 v8, {v_t4}, {v_t3}
v_lshrrev_b32 {v_t4}, 1, {v_t1}
v_mad_u32_u24 {v_t2}, {v_t4}, 24, {v_t2}
v_and_b32 {v_t4}, 1, {v_t1}
v_lshl_add_u32 {v_t2}, {v_t4}, 3, {v_t2}
v_mul_u32_u24 {v_t2}, 160, {v_t2}
v_add_u32 v7, {v_t2}, {v_t3}
s_lshr_b32 {s_t0}, {s_rb}, 3
s_lshl_b32 {s_t0}, {s_t0}, 3
s_add_u32 {s_t0}, {s_t0}, {s_e0}
s_lshl_b32 {s_t0}, {s_t0}, 2
s_add_u32 {s_t0}, {s_t0}, {s_e1}
s_mul_i32 {s_e2}, {s_t0}, 25600
''')
stamp('', T)
for s_ in range(5):
    T.wait(wtok[min(24, (40 * (s_ + 1) * 10 - 1) // 64)])
    for ct in range(5):
        f = 5 * s_ + ct
        for u in range(2):
            if s_ < 4: T(f'ds_read_b64_tr_b16 {vr(64+4*f+2*u,2)}, v7 offset:{(40*s_+4*u)*160+8*ct}')
            else: T(f'ds_read_b64_tr_b16 {vr(64+4*f+2*u,2)}, v8 offset:{640*u+8*ct}')
    for ct in range(5):
        f = 5 * s_ + ct
        if f % 4 == 0: T(f's_add_u32 {s_t1}, {s_e2}, {WOF + f*1024}')
        tokw = T.vm(f'buffer_store_dwordx4 {vr(64+4*f,4)}, {v_l16}, {sWS}, {s_t1} offen offset:{(f%4)*1024} sc1')
stamp('', T)
T(f'v_mov_b32 {v_zero}, 0')
poll_issue(T, v_pres, v_zero, sDBG, '0')
T(f'''
v_and_b32 {v_t2}, 15, {v_lane}
v_lshlrev_b32 {v_t2}, 4, {v_t2}
v_mul_u32_u24 {v_t3}, 1280, {v_t1}
v_add_u32 {v_t3}, {v_t3}, {v_t2}
s_lshl_b32 {s_e3}, {s_rb}, 2
s_add_u32 {s_e3}, {s_e3}, {s_w}
s_mul_i32 {s_t1}, {s_e3}, {32*1280}
s_lshl_b32 {s_f1}, {s_rb}, 11
s_add_u32 {s_f1}, {s_f1}, {15*128}
''')
for j in range(5): T(f'buffer_load_dwordx4 {vr(24+4*j,4)}, {v_t2}, {sWA}, 0 offen offset:{256*j}')
for i in range(8):
    for j in range(5): T(f'buffer_load_dwordx4 {vr(64+20*i+4*j,4)}, {v_t3}, {sX}, {s_t1} offen offset:{256*j}')
    T(f's_add_u32 {s_t1}, {s_t1}, {4*1280}')
    if i == 0:
        poll_check(T, v_pres, v_zero, sDBG, '0')
        T('s_barrier')
        set_flag(T, v_flag, s_f1, F1[0])
        stamp('', T)
T(f'''
v_cmp_eq_u32 vcc, 0, {v_t2}
v_lshlrev_b32 {v_t1}, 2, {v_t1}
s_lshl_b32 {s_e3}, {s_e3}, 7
s_add_u32 {s_e3}, {s_e3}, {G_OFF}
v_cndmask_b32 {v_t1}, {v_big}, {v_t1}, vcc
''')
for i in range(8):
    T(f'v_mov_b32 v{44+i}, 0')
    for k in range(20): T(f'v_dot2c_f32_bf16 v{44+i}, v{64+20*i+k}, v{24+k}')
for sh in (8, 4, 2, 1):
    for i in range(8): T(f'v_add_f32_dpp v{44+i}, v{44+i}, v{44+i} row_ror:{sh} row_mask:0xf bank_mask:0xf')
for i in range(8): T(f'v_mul_f32 v{44+i}, {f32(-math.log2(math.e))}, v{44+i}')
for i in range(8): T(f'v_exp_f32 v{44+i}, v{44+i}')
for i in range(8): T(f'v_add_f32 v{44+i}, 1.0, v{44+i}')
for i in range(8): T(f'v_rcp_f32 v{44+i}, v{44+i}')
T('s_nop 0')
for i in range(8): T(f'buffer_store_dword v{44+i}, {v_t1}, {sWS}, {s_e3} offen offset:{16*i} sc1')
stamp('', T)
setup23(T)
T('s_waitcnt vmcnt(0) lgkmcnt(0)\ns_barrier')
set_flag(T, v_flag, s_f1, F1[1])
T.l += masksA
poll(T, v_pres, v_p2, sWS, s_F1A)
for g in wo_loads(0, NWO1): T.l += g
poll(T, v_pres, v_p1, sWS, s_F1A)
kv, _ = kvq_loads()
for g in kv: T.l += g
T('s_waitcnt vmcnt(0) lgkmcnt(0)\ns_barrier')
while nstamp[0] < nst_join: stamp('', T)
T('s_waitcnt lgkmcnt(0)')
T('s_branch L_join')

S.extend(T); S.extend(tail)
S('L_end:\ns_endpgm')

stats = []
body = finalize(S, stats)
hdr = open('cdna_kernels/%s.s.ref' % NAME).read().split('; Override')[0]
K = NAME + '_kernel'
txt = hdr + f'''; Generated by a hand-written generator script: one persistent workgroup per CU, phases chained by flags in d_ws.
; @launch grid=(256,1,1) block=(256,1,1) lds={LDS_BYTES}
.amdgcn_target "amdgcn-amd-amdhsa--gfx950"
.text
.globl {K}
.p2align 8
.type {K},@function
{K}:
''' + '\n'.join(body) + f'''
.section .rodata,"a"
.p2align 6
.amdhsa_kernel {K}
  .amdhsa_next_free_vgpr 512
  .amdhsa_next_free_sgpr 102
  .amdhsa_accum_offset 256
  .amdhsa_group_segment_fixed_size 0
  .amdhsa_kernarg_size 80
  .amdhsa_user_sgpr_count 2
  .amdhsa_user_sgpr_kernarg_segment_ptr 1
  .amdhsa_system_sgpr_workgroup_id_x 1
  .amdhsa_float_denorm_mode_32 3
.end_amdhsa_kernel
'''
open(OUT, 'w').write(txt)
print('instructions:', len(body), ' nops inserted:', len(stats), sum(s[0] for s in stats), ' setup23', len(su.l), 'WS_SIZE', WS_SIZE)
if '--nops' in ARGS:
    for s in stats: print(s)
```

```python
import re
REG_RE = re.compile(r'(?<![\w.])([vas])\[(\d+):(\d+)\]|(?<![\w.])([vas])(\d+)(?![\w\[])|(?<![\w.])(vcc|exec|m0)(?:_lo|_hi)?(?![\w])')
TRANS = ('v_exp_', 'v_log_', 'v_rcp_', 'v_rsq_', 'v_sqrt_', 'v_sin_', 'v_cos_')

def regs_of(op):
    out = []
    for m in REG_RE.finditer(op):
        if m.group(1):
            out += [m.group(1) + str(i) for i in range(int(m.group(2)), int(m.group(3)) + 1)]
        elif m.group(4):
            out.append(m.group(4) + m.group(5))
        else:
            out.append(m.group(6))
    return out

def split_ops(s):
    ops, depth, cur = [], 0, ''
    for ch in s:
        if ch in '[(': depth += 1
        if ch in '])': depth -= 1
        if ch == ',' and depth == 0:
            ops.append(cur.strip()); cur = ''
        else:
            cur += ch
    if cur.strip(): ops.append(cur.strip())
    return ops

class Ins:
    __slots__ = ('text', 'mn', 'kind', 'defs', 'uses', 'tok', 'passes', 'srcc', 'srcab', 'wide_data', 'dpp', 'lds')
    def __init__(self, text, tok=None):
        self.text = text; self.tok = tok
        self.defs = set(); self.uses = set(); self.passes = 0; self.srcc = (); self.srcab = set(); self.wide_data = set(); self.dpp = False; self.lds = False
        t = text.split(';')[0].strip()
        if not t or t.startswith('.'):
            self.kind = 'none'; self.mn = ''; return
        if t.endswith(':'):
            self.kind = 'label'; self.mn = ''; return
        if t.startswith('@'):
            self.kind = 'pseudo'; self.mn = t.split()[0]; return
        p = t.split(None, 1); mn = p[0]; self.mn = mn
        ops = split_ops(p[1]) if len(p) > 1 else []
        R = [regs_of(o) for o in ops]
        allr = lambda l: set(x for r in l for x in r)
        if mn.startswith('v_mfma'):
            self.kind = 'mfma'; self.defs = set(R[0]); self.uses = allr(R[1:]); self.srcc = tuple(R[3]); self.srcab = set(R[1]) | set(R[2])
            self.passes = 8 if '32x32' in mn else 4
        elif mn.startswith('v_'):
            self.kind = 'trans' if mn.startswith(TRANS) else 'valu'
            self.dpp = ('row_' in t or 'quad_perm' in t or 'wave_' in t)
            if mn.startswith('v_permlane') and 'swap' in mn:
                self.defs = allr(R[:2]); self.uses = allr(R[:2])
            elif mn.startswith(('v_add_co', 'v_sub_co', 'v_addc_co', 'v_subb_co')):
                self.defs = allr(R[:2]); self.uses = allr(R[2:])
            elif mn == 'v_nop':
                pass
            else:
                self.defs = set(R[0]); self.uses = allr(R[1:])
                if mn.startswith(('v_fmac', 'v_dot2c', 'v_writelane')) or self.dpp: self.uses |= self.defs
            self.uses.add('exec')
        elif mn.startswith('ds_'):
            self.kind = 'ds'
            if mn.startswith(('ds_read', 'ds_bpermute', 'ds_swizzle')):
                self.defs = set(R[0]); self.uses = allr(R[1:])
            else:
                self.uses = allr(R)
        elif mn.startswith(('buffer_', 'global_')):
            self.kind = 'vm'
            if mn.startswith(('buffer_inv', 'buffer_wbl2')):
                pass
            elif 'load' in mn:
                if re.search(r'\blds\b', t):
                    self.lds = True; self.uses = allr(R) | {'m0'}
                else:
                    self.defs = set(R[0]); self.uses = allr(R[1:])
            else:
                self.uses = allr(R)
                if 'x4' in mn or 'x3' in mn:
                    self.wide_data = set(R[0] if mn.startswith('buffer_') else R[1])
        elif mn.startswith(('s_load', 's_memtime', 's_memrealtime', 's_buffer_load')):
            self.kind = 'smem'; self.defs = set(R[0]); self.uses = allr(R[1:])
        elif mn == 's_waitcnt':
            self.kind = 'wait'
        elif mn == 's_nop':
            self.kind = 'nop'
        elif mn.startswith(('s_cbranch', 's_branch', 's_endpgm', 's_setpc', 's_barrier', 's_sleep', 's_setprio')):
            self.kind = 'ctl'
        elif mn.startswith('s_'):
            self.kind = 'salu'
            if mn.startswith(('s_cmp', 's_bitcmp')):
                self.uses = allr(R)
            else:
                self.defs = set(R[0]); self.uses = allr(R[1:])
                if 'saveexec' in mn: self.defs.add('exec')
        else:
            raise ValueError('unknown instr: ' + text)

class Tok:
    pass

class Stream:
    def __init__(self): self.l = []
    def __call__(self, s, tok=None):
        lines = [x.strip() for x in s.strip('\n').split('\n')]
        lines = [x for x in lines if x]
        for x in lines:
            self.l.append(Ins(x, tok))
        return self
    def vm(self, s):
        t = Tok(); self.l.append(Ins(s.strip(), t)); return t
    def wait(self, *toks):
        i = Ins('@wait'); i.tok = toks; self.l.append(i)
    def use(self, regs):
        i = Ins('@use'); i.uses = set(regs); self.l.append(i)
    def extend(self, o):
        self.l += o.l if isinstance(o, Stream) else o
    def drain(self):
        self('s_waitcnt vmcnt(0) lgkmcnt(0)')

def parse_wait(text):
    vm = re.search(r'vmcnt\((\d+)\)', text); lg = re.search(r'lgkmcnt\((\d+)\)', text)
    return (int(vm.group(1)) if vm else None, int(lg.group(1)) if lg else None)

def resolve_waits(l):
    out = []; vq = []; dq = []; smem = []
    for ins in l:
        nv = nd = None
        def need(q, pred):
            for k in range(len(q) - 1, -1, -1):
                if pred(q[k]): return len(q) - 1 - k
            return None
        if ins.kind == 'pseudo':
            if ins.mn == '@wait':
                toks = ins.tok
                nv = need(vq, lambda o: o.tok in toks); nd = need(dq, lambda o: o.tok in toks)
            elif ins.mn == '@use':
                touched = ins.uses
                nv = need(vq, lambda o: o.defs & touched); nd = need(dq, lambda o: o.defs & touched)
            elif ins.mn == '@reset':
                vq.clear(); dq.clear(); smem.clear(); out.append(ins); continue
            else:
                out.append(ins); continue
        elif ins.kind == 'wait':
            a, b = parse_wait(ins.text)
            if a is not None: del vq[:max(0, len(vq) - a)]
            if b is not None:
                if b == 0: smem.clear()
                del dq[:max(0, len(dq) - b)]
            out.append(ins); continue
        elif ins.kind in ('none', 'label', 'nop'):
            out.append(ins); continue
        else:
            touched = ins.uses | ins.defs
            nv = need(vq, lambda o: o.defs & touched); nd = need(dq, lambda o: o.defs & touched)
            if any(o.defs & touched for o in smem): nd = 0
        if nd is not None and smem: nd = 0
        if nv is not None or nd is not None:
            w = 's_waitcnt'
            if nv is not None:
                nv = min(nv, 63); w += ' vmcnt(%d)' % nv; del vq[:max(0, len(vq) - nv)]
            if nd is not None:
                nd = min(nd, 15); w += ' lgkmcnt(%d)' % nd; del dq[:max(0, len(dq) - nd)]
                if nd == 0: smem.clear()
            out.append(Ins(w))
        if ins.kind == 'pseudo': continue
        out.append(ins)
        if ins.kind == 'vm': vq.append(ins)
        elif ins.kind == 'ds': dq.append(ins)
        elif ins.kind == 'smem': smem.append(ins)
    return out

def is_sg(r): return r[0] == 's' or r == 'vcc'
def required(p, c):
    n = 0
    pv = p.kind in ('valu', 'trans'); cv = c.kind in ('valu', 'trans')
    if pv:
        vd = {r for r in p.defs if r[0] in 'va' and r != 'vcc'}
        sd = {r for r in p.defs if is_sg(r)}
        if c.kind == 'mfma' and vd & c.uses: n = max(n, 2)
        if cv and vd & c.uses:
            if c.mn.startswith(('v_readlane', 'v_readfirstlane')): n = max(n, 1)
            if c.mn.startswith('v_permlane') or c.dpp: n = max(n, 2)
            if p.kind == 'trans' and c.kind != 'trans': n = max(n, 1)
            if p.mn.startswith('v_dot'):
                n = max(n, 0 if (c.mn == p.mn and not (vd & (c.uses - c.defs))) else 3)
        if cv and p.mn.startswith('v_dot') and vd & c.defs and c.mn != p.mn: n = max(n, 3)
        if sd & c.uses:
            if cv: n = max(n, 4 if c.mn.startswith(('v_readlane', 'v_writelane')) else 2)
            if c.kind == 'vm': n = max(n, 5)
        if 'exec' in p.defs: n = max(n, 5)
    elif p.kind == 'mfma':
        big = {4: 8, 8: 12}[p.passes]
        if c.kind == 'mfma':
            if p.defs & c.srcab: n = max(n, big)
            if p.defs & set(c.srcc):
                if not (set(c.srcc) == p.defs and c.passes == p.passes): n = max(n, big - 2)
            elif p.defs & c.defs and not (p.defs == c.defs and c.passes == p.passes): n = max(n, big - 2)
        elif c.kind in ('valu', 'trans', 'vm', 'ds'):
            if p.defs & (c.uses | c.defs): n = max(n, big)
            if cv and set(p.srcc) & c.defs: n = max(n, {4: 3, 8: 7}[p.passes])
    elif p.kind == 'salu':
        if 'm0' in p.defs and c.kind == 'vm' and c.lds: n = max(n, 1)
        if 'm0' in p.defs and c.mn.startswith(('v_writelane', 'v_readlane')) and 'm0' in c.uses: n = max(n, 1)
    elif p.kind == 'vm':
        if p.wide_data & c.defs: n = max(n, 2 if cv or c.kind == 'mfma' else 1)
    return n

def pad_hazards(l, stats=None):
    out = []
    for ins in l:
        if ins.kind in ('none', 'label', 'pseudo'):
            out.append(ins); continue
        dist = 0; need = 0
        for p in reversed(out):
            if p.kind in ('none', 'label', 'pseudo'): continue
            if dist >= 12: break
            r = required(p, ins)
            need = max(need, r - dist)
            dist += (int(p.text.split()[1]) + 1) if p.kind == 'nop' else 1
        if need > 0:
            out.append(Ins('s_nop %d' % (need - 1)))
            if stats is not None: stats.append((need, ins.text))
        out.append(ins)
    return out

def finalize(stream, stats=None):
    l = resolve_waits(stream.l)
    l = pad_hazards(l, stats)
    return [('' if i.kind == 'label' else '    ') + i.text for i in l if i.kind != 'pseudo']

def weave(slots, side, lo=0, hi=None, per=None):
    items = side.l if isinstance(side, Stream) else side
    if hi is None: hi = len(slots)
    n = hi - lo; m = len(items)
    for k, it in enumerate(items):
        s = lo + (k * n // m if per is None else k // per)
        assert s < hi, "side stream does not fit"
        if isinstance(it, list): slots[s] += it
        else: slots[s].append(it)

def atomize(l):
    out = []
    for i in l:
        if i.mn.startswith('s_cselect'): out[-1].append(i)
        else: out.append([i])
    return out

COST = {'valu': 1, 'trans': 2, 'salu': 1, 'ds': 1, 'vm': 3.5, 'ctl': 1, 'wait': 1, 'nop': 1, 'smem': 1}
class Item:
    def __init__(self, ins, lo, hi, sep=False):
        self.ins = ins if isinstance(ins, list) else [ins]
        self.lo = lo; self.hi = hi; self.sep = sep
        self.cost = sum(COST.get(i.kind, 0) if isinstance(i, Ins) else 0 for i in self.ins)
        self.cost += sum(1 for i in self.ins if isinstance(i, Ins) and i.mn == '@wait')
        self.vm = any(isinstance(i, Ins) and i.kind == 'vm' for i in self.ins)
def paced(groups, a, b, slack=3):
    out = []; m = len(groups); prev = None
    for k, g in enumerate(groups):
        g = g if isinstance(g, list) else [g]
        t = a + k * (b - a) // m
        sep = bool(prev) and g[0].kind == 'vm' and any(p.kind == 'salu' and p.defs & g[0].uses for p in prev)
        out.append(Item(g, t, t + slack, sep)); prev = g
    return out
def asap(groups, a, b):
    out = paced(groups, a, b, 0)
    for it in out: it.lo = a
    return out
def schedule(n, cap, streams, report=None):
    gaps = [[] for _ in range(n)]; pos = [0] * len(streams); lastgap = [-1] * len(streams); over = 0
    for k in range(n):
        used = 0; nvm = 0
        while True:
            best = None
            for si, st in enumerate(streams):
                if pos[si] >= len(st): continue
                it = st[pos[si]]
                if it.lo > k and k < n - 1: continue
                dl = min(x.hi for x in st[pos[si]:pos[si] + 4])
                forced = dl <= k or k == n - 1
                if it.sep and lastgap[si] == k and k < n - 1 and it.hi > k - 1: continue
                if not forced and (used + it.cost > cap[k] or (it.vm and nvm)): continue
                if best is None or dl < best[0]: best = (dl, si)
            if best is None: break
            si = best[1]; it = streams[si][pos[si]]
            gaps[k] += it.ins; used += it.cost; nvm += it.vm; pos[si] += 1; lastgap[si] = k
        over += max(0, used - cap[k])
        if report is not None: report.append(used - cap[k])
    return gaps, over
```

```python
import sys, math, struct
from fw import *

NAME = "gated_mix__sliding_block__sliding_local_dilated__prompt"
ARGS = sys.argv[1:]
STAMPS = '--stamps' in ARGS
FINE = '--fine' in ARGS
FINE2 = '--fine2' in ARGS
def opt(name, default):
    for a in ARGS:
        if a.startswith('--' + name + '='): return int(a.split('=')[1])
    return default
OUT = [a for a in ARGS if not a.startswith('--')]
OUT = OUT[0] if OUT else 'k.s'

GRP = 2048 * 16
QKV = [0, 240 * GRP]
O_OFF = 480 * GRP
OBR = 32 * 128 * 640
WOF = O_OFF + 2 * OBR
G_OFF = WOF + 64 * 25600
FLG = G_OFF + 8192
F1 = [FLG, FLG + 4, FLG + 8]
F2 = FLG + 32768
WS_SIZE = FLG + 65536
STAMP_OFF = WS_SIZE
BIG = 0x40000000
L_X = 65536
GS = 8192 + 64
L_KA = L_X + 16384; L_VA = L_KA + 3 * GS
L_VB = 131072 + 512; VBW = 4608
L_ONE = L_VB + 4 * VBW + ((L_VA + 3 * GS) % 256)
L_TAB = L_VB + 4 * VBW + 8192 + 256
LDS_BYTES = 160 * 1024
assert L_TAB + 1024 <= LDS_BYTES and L_VA + 3 * GS <= L_VB

def f32(x): return '0x%08x' % struct.unpack('<I', struct.pack('<f', x))[0]
QSCALE = (20 ** -0.5) * math.log2(math.e)
NEGINF = '0xff800000'

sX, sWA, sWB, sWS, sOUT, sDBG, sTMP = 's[4:7]', 's[8:11]', 's[12:15]', 's[16:19]', 's[20:23]', 's[24:27]', 's[28:31]'
s_xcd, s_t, s_rb, s_cb, s_w = 's32', 's33', 's34', 's35', 's36'
s_t0, s_t1, s_t2, s_t3 = 's37', 's38', 's39', 's40'
s_stb, s_scale, s_inv, s_mW, s_mX = 's41', 's42', 's43', 's44', 's45'
s_hd, s_r2, s_so, s_q0 = 's46', 's47', 's48', 's49'
s_cnt, s_f1, s_f2, s_ob, s_k1, s_wob = 's50', 's51', 's52', 's53', 's54', 's55'
SW0, SX0 = 60, 70
ST0 = 80
s_bF, s_bS, s_dF, s_dS, s_mK, s_mV, s_gb, s_rot = 's84', 's85', 's86', 's87', 's88', 's89', 's90', 's91'
s_e0, s_e1, s_e2, s_e3 = 's92', 's93', 's94', 's95'
s_F1A, s_F1B, s_F2, s_q0z = 's96', 's97', 's98', 's99'
v_lane = 'v1'
VWD, VXD, VWR, VXR = 2, 6, 10, 12
v_dma, v_gad, v_kb0, v_k1 = 'v6', 'v7', 'v8', 'v9'
v_st, v_flag, v_one, v_pres, v_l16, v_big = 'v16', 'v17', 'v18', 'v19', 'v20', 'v21'
v_t1, v_t2, v_t3, v_t4, v_tmp, v_zero = 'v22', 'v23', 'v24', 'v25', 'v26', 'v27'
(v_p1, v_p2, v_p3, v_q4, v_qe, v_qo, v_k0, v_v, v_vb, v_vh, v_kb1, v_halo, v_mA, v_mB0, v_flagw, v_o4, v_o2, v_h, v_r, v_tabc) = ['v%d' % i for i in range(28, 48)]
WRING = 48
ACC = [64, 128]
XV = 192
E0, P0 = 48, 56
SB = [64, 192]; M_FAR, M_DIAG = 80, 208; QA0, QA1 = 96, 104; OA = [224, 240]
QB0, QB1, KB0 = 128, 136, 144
v_g = ['v156', 'v157']
MB_DIAG, MB_PREV, MB_PREV0 = 160, 168, 176
SP = [64, 192]; SD = [80, 208]; OB = [96, 112]
V4, V2, VRW, v_rr, v_out, v_p4 = 2, 6, 10, 'v13', 'v14', 'v15'
AC3 = 16; OF = [96, 176]
AK0, AK1, AV, AKB1 = 200, 208, 216, 232
VB = 200

def vr(b, n): return 'v[%d:%d]' % (b, b + n - 1)
def ar(b, n): return 'a[%d:%d]' % (b, b + n - 1)
mm = 'v_mfma_f32_32x32x16_bf16'

S = Stream()
tail = Stream()
nstamp = [0]; stamp_names = []
AMP = [a.split('=')[1].split(',') for a in ARGS if a.startswith('--amp=')]
AMP = AMP[0] if AMP else None
def stamp(name='', st=None):
    if AMP and name in AMP and st is None: S('s_memrealtime s[%d:%d]' % (ST0 + 2 * AMP.index(name), ST0 + 2 * AMP.index(name) + 1))
    if STAMPS:
        st = st or S
        k = nstamp[0]
        if k == 1:
            for i in range(56, 64): st('v_writelane_b32 v0, 0, %d' % i)
        if k > 0: st('v_writelane_b32 v0, s%d, %d' % (ST0 + 2 * ((k - 1) & 1), k - 1))
        st('s_memrealtime s[%d:%d]' % (ST0 + 2 * (k & 1), ST0 + 2 * (k & 1) + 1))
    stamp_names.append(name)
    nstamp[0] += 1
def st2(n):
    if FINE2: stamp(n)
nlab = [0]
def lab(p):
    nlab[0] += 1
    return 'L_%s_%d' % (p, nlab[0])

PIDX = {v_zero: 0, v_p1: 1, v_p2: 2, v_p3: 3, v_p4: 4}
def poll_issue(st, res, adr, srd, soff):
    st('buffer_load_dword %s, %s, %s, %s offen sc1' % (res, adr, srd, soff))
def poll_check(st, res, adr, srd, soff):
    l = lab('poll'); b = lab('back')
    st('v_cmp_ne_u32 vcc, 1, %s' % res)
    st('s_cbranch_vccnz %s' % l)
    st(b + ':')
    tail('@reset')
    tail(f'''
    {l}:
    s_mov_b32 {s_cnt}, 0
    {l}_a:
    buffer_load_dword {res}, {adr}, {srd}, {soff} offen sc1
    s_add_u32 {s_cnt}, {s_cnt}, 1
    {('v_writelane_b32 v0, %s, %d' % (s_cnt, 56 + PIDX[adr])) if STAMPS else ''}
    s_waitcnt vmcnt(0)
    v_cmp_ne_u32 vcc, 1, {res}
    s_cbranch_vccz {b}
    s_cmp_lt_u32 {s_cnt}, 0x40000
    s_cbranch_scc1 {l}_a
    s_branch {b}
    ''')
def poll(st, res, adr, srd, soff):
    poll_issue(st, res, adr, srd, soff); poll_check(st, res, adr, srd, soff)
def set_flag(st, vf, base, off):
    st(f'buffer_store_dword {v_one}, {vf}, {sWS}, {base} offen offset:{off} sc1')
def mk(fn, *a):
    st = Stream(); fn(st, *a); return st.l
def L(txt):
    st = Stream(); st(txt); return st.l

def setup2(st):
    st(f'''
    s_mov_b32 s14, {640*3840}
    s_mov_b32 s15, 0x20000
    s_mov_b32 s22, {2048*1280}
    s_mov_b32 s23, 0x20000
    s_mov_b32 {s_F1A}, {F1[0]}
    s_mov_b32 {s_F1B}, {F1[1]}
    s_mov_b32 {s_F2}, {F2}
    s_and_b32 {s_r2}, {s_t}, 7
    s_lshr_b32 {s_t2}, {s_t}, 3
    s_lshl_b32 {s_t0}, {s_xcd}, 2
    s_add_u32 {s_hd}, {s_t0}, {s_t2}
    s_lshl_b32 {s_q0}, {s_r2}, 8
    s_lshl_b32 {s_t0}, {s_w}, 6
    s_add_u32 {s_q0}, {s_q0}, {s_t0}
    s_mul_i32 {s_e0}, {s_hd}, 5
    s_lshr_b32 {s_e0}, {s_e0}, 1
    s_and_b32 {s_t3}, {s_hd}, 1
    s_add_u32 {s_e1}, {s_e0}, {s_t3}
    s_lshl_b32 {s_so}, {s_t3}, 3
    s_lshl_b32 {s_t3}, {s_t3}, 1
    s_add_u32 {s_e2}, {s_e0}, 2
    s_sub_u32 {s_e2}, {s_e2}, {s_t3}
    s_lshl_b32 {s_e1}, {s_e1}, 15
    s_lshl_b32 {s_e2}, {s_e2}, 15
    s_lshl_b32 {s_t0}, {s_q0}, 4
    s_add_u32 {s_bF}, {s_e1}, {s_t0}
    s_add_u32 {s_bS}, {s_e2}, {s_t0}
    s_lshl_b32 {s_e3}, {s_r2}, 1
    s_add_u32 {s_e3}, {s_e3}, {s_w}
    s_lshl_b32 {s_t0}, {s_e3}, 11
    s_add_u32 {s_dF}, {s_e1}, {s_t0}
    s_add_u32 {s_dS}, {s_e2}, {s_t0}
    s_lshl_b32 {s_mK}, {s_w}, 11
    s_mul_i32 {s_mV}, {s_w}, {VBW}
    s_add_u32 {s_mV}, {s_mV}, {L_VB}
    s_lshl_b32 {s_gb}, {s_q0}, 2
    s_add_u32 {s_gb}, {s_gb}, {G_OFF}
    s_lshl_b32 {s_f1}, {s_rb}, 11
    s_lshl_b32 {s_t0}, {s_cb}, 7
    s_add_u32 {s_f1}, {s_f1}, {s_t0}
    s_add_u32 {s_f1}, {s_f1}, {F1[0]}
    s_lshl_b32 {s_f2}, {s_r2}, 12
    s_lshl_b32 {s_t0}, {s_hd}, 7
    s_add_u32 {s_f2}, {s_f2}, {s_t0}
    s_lshl_b32 {s_t0}, {s_w}, 2
    s_add_u32 {s_f2}, {s_f2}, {s_t0}
    s_add_u32 {s_f2}, {s_f2}, {F2}
    s_lshl_b32 {s_ob}, {s_hd}, 7
    s_lshr_b32 {s_t0}, {s_q0}, 4
    s_add_u32 {s_ob}, {s_ob}, {s_t0}
    s_mul_i32 {s_ob}, {s_ob}, 640
    s_add_u32 {s_ob}, {s_ob}, {O_OFF}
    s_lshl_b32 {s_wob}, {s_r2}, 2
    s_add_u32 {s_wob}, {s_wob}, {s_w}
    s_mul_i32 {s_wob}, {s_wob}, 25600
    v_and_b32 {v_zero}, 60, {v_lane}
    v_lshrrev_b32 {v_h}, 5, {v_lane}
    v_and_b32 {v_r}, 31, {v_lane}
    v_cmp_eq_u32 vcc, 0, {v_lane}
    v_bfe_u32 {v_t1}, {v_lane}, 2, 1
    v_lshl_add_u32 {v_t1}, {v_t1}, 1, {s_e0}
    v_cndmask_b32 {v_flagw}, {v_big}, 0, vcc
    v_lshrrev_b32 {v_t1}, 4, {v_t1}
    v_and_b32 {v_t2}, 3, {v_lane}
    v_min_u32 {v_t3}, 2, {v_t2}
    v_mad_u32_u24 {v_t4}, {v_t3}, 5, {v_t1}
    v_mad_u32_u24 {v_tmp}, {v_t2}, 5, {v_t1}
    v_min_u32 {v_tmp}, 15, {v_tmp}
    s_sub_u32 {s_t1}, {s_e3}, 2
    s_max_i32 {s_t1}, {s_t1}, 0
    s_lshl_b32 {s_t1}, {s_t1}, 11
    s_andn2_b32 {s_t2}, {s_q0}, 127
    s_lshl_b32 {s_t2}, {s_t2}, 4
    v_cmp_eq_u32 vcc, 0, {v_t2}
    v_mov_b32 {v_t1}, {s_t1}
    v_mov_b32 {v_t3}, {s_t2}
    v_cndmask_b32 {v_t1}, {v_t1}, {v_t3}, vcc
    v_lshl_add_u32 {v_p1}, {v_t4}, 7, {v_t1}
    s_sub_u32 {s_t1}, {s_q0}, 32
    s_max_i32 {s_t1}, {s_t1}, 0
    s_andn2_b32 {s_t1}, {s_t1}, 127
    s_lshl_b32 {s_t1}, {s_t1}, 4
    v_and_b32 {v_t2}, 8, {v_lane}
    v_cmp_eq_u32 vcc, 0, {v_t2}
    v_mov_b32 {v_t1}, {s_t1}
    v_and_b32 {v_t2}, 1, {v_lane}
    v_cndmask_b32 {v_t1}, {v_t1}, {v_t3}, vcc
    v_lshl_add_u32 {v_p3}, {v_tmp}, 7, {v_t1}
    s_lshl_b32 {s_t0}, {s_w}, 1
    s_lshr_b32 {s_t1}, {s_r2}, 2
    s_add_u32 {s_t0}, {s_t0}, {s_t1}
    s_lshl_b32 {s_t0}, {s_t0}, 11
    s_add_u32 {s_t0}, {s_t0}, {15*128}
    v_lshl_add_u32 {v_p2}, {v_t2}, 14, {s_t0}
    v_add_u32 {v_t1}, 8, {v_p2}
    v_cndmask_b32 {v_p1}, {v_t1}, {v_p1}, vcc
    ''')
    st(f'''
    s_cmp_ge_u32 {s_e3}, 2
    s_cselect_b32 {s_inv}, 0, {BIG}
    s_cselect_b32 {s_t2}, 0x3f803f80, 0
    v_mov_b32 v128, {s_t2}
    v_mov_b32 v129, {s_t2}
    v_mov_b32 v130, {s_t2}
    v_mov_b32 v131, {s_t2}
    s_add_u32 {s_t1}, {s_mK}, {L_ONE}
    v_add_u32 {v_t1}, {s_t1}, {v_l16}
    ds_write_b128 {v_t1}, v[128:131]
    ds_write_b128 {v_t1}, v[128:131] offset:1024
    ''')
    st(f'''
    v_lshlrev_b32 {v_q4}, 15, {v_h}
    v_lshl_add_u32 {v_q4}, {v_r}, 4, {v_q4}
    v_cmp_eq_u32 vcc, 0, {v_h}
    v_lshl_add_u32 {v_t1}, {v_r}, 4, {s_so}
    s_cmp_eq_u32 {s_q0}, 0
    s_cselect_b32 {s_q0z}, {BIG}, 0
    v_cndmask_b32 {v_qe}, {v_big}, {v_t1}, vcc
    v_cndmask_b32 {v_qo}, {v_t1}, {v_big}, vcc
    v_mov_b32 {v_t2}, {s_q0z}
    v_cndmask_b32 {v_t2}, 0, {v_t2}, vcc
    v_add3_u32 {v_kb1}, {v_t2}, {v_l16}, {s_so}
    v_lshrrev_b32 {v_t1}, 4, {v_r}
    v_mul_u32_u24 {v_t1}, 640, {v_t1}
    v_and_b32 {v_t2}, 15, {v_lane}
    v_lshl_add_u32 {v_t3}, {v_h}, 8, {v_t1}
    v_lshl_add_u32 {v_o4}, {v_t2}, 4, {v_t3}
    v_lshl_add_u32 {v_t3}, {v_t2}, 3, {v_t1}
    v_add_u32 {v_t3}, 512, {v_t3}
    v_cndmask_b32 {v_o2}, {v_big}, {v_t3}, vcc
    v_lshrrev_b32 {v_t1}, 4, {v_lane}
    v_lshl_add_u32 {v_t3}, {v_t1}, 15, {s_bF}
    v_cmp_eq_u32 vcc, 2, {v_t1}
    v_mov_b32 {v_t4}, {s_bS}
    s_add_u32 {s_t3}, {s_q0z}, {QKV[1] + 160*GRP - 256}
    v_cndmask_b32 {v_t3}, {v_t3}, {v_t4}, vcc
    v_cmp_eq_u32 vcc, 3, {v_t1}
    v_lshl_add_u32 {v_t3}, {v_t2}, 4, {v_t3}
    v_add_u32 {v_t3}, {s_t3}, {v_t3}
    v_cndmask_b32 {v_halo}, {v_t3}, {v_big}, vcc
    ''')
    st(f'''
    s_lshl_b32 {s_t0}, {s_w}, 10
    v_mul_u32_u24 {v_t1}, {GS}, {v_h}
    v_lshl_add_u32 {v_t1}, {v_r}, 4, {v_t1}
    s_add_u32 {s_t1}, {s_t0}, {L_KA}
    v_add_u32 {v_k0}, {s_t1}, {v_t1}
    s_add_u32 {s_k1}, {s_t0}, {L_KA + 2*GS}
    s_add_u32 {s_k1}, {s_k1}, {s_so}
    v_bfe_u32 {v_t1}, {v_lane}, 2, 2
    v_lshl_add_u32 {v_t1}, {v_h}, 2, {v_t1}
    v_lshlrev_b32 {v_t1}, 4, {v_t1}
    v_and_b32 {v_pres}, 16, {v_lane}
    v_cmp_eq_u32 vcc, 0, {v_pres}
    v_and_b32 {v_t2}, 1, {v_lane}
    v_bfe_u32 {v_t3}, {v_lane}, 1, 1
    v_add_u32 {v_t4}, 2, {v_t3}
    v_lshlrev_b32 {v_t3}, 3, {v_t3}
    v_mov_b32 {v_tmp}, {s_so}
    v_cndmask_b32 {v_t2}, {v_t4}, {v_t2}, vcc
    v_cndmask_b32 {v_t3}, {v_tmp}, {v_t3}, vcc
    v_cmp_eq_u32 vcc, 3, {v_t2}
    v_add_u32 {v_t1}, {v_t1}, {v_t3}
    s_add_u32 {s_t1}, {s_t0}, {L_VA}
    v_mul_u32_u24 {v_t3}, {GS}, {v_t2}
    v_add3_u32 {v_v}, {v_t1}, {v_t3}, {s_t1}
    v_mul_u32_u24 {v_t3}, 1088, {v_t2}
    v_add3_u32 {v_vb}, {v_t1}, {v_t3}, {s_mV}
    s_add_u32 {s_t1}, {s_mV}, {3*1088}
    v_lshlrev_b32 {v_t3}, 8, {v_t2}
    v_add3_u32 {v_vh}, {v_t1}, {v_t3}, {s_t1}
    s_add_u32 {s_t1}, {s_t0}, {L_ONE}
    v_add_u32 {v_t3}, {s_t1}, {v_t1}
    v_add_u32 {v_t1}, {L_ONE + 4096}, {v_t1}
    v_cndmask_b32 {v_v}, {v_v}, {v_t3}, vcc
    v_cndmask_b32 {v_vb}, {v_vb}, {v_t1}, vcc
    v_cndmask_b32 {v_vh}, {v_vh}, {v_t1}, vcc
    ''')
    mk_ = [0, 0, 0, 0]
    for e in range(256):
        ok = (e - 32 <= 0) if e < 64 else (e - 96 > 0) if e < 128 else (0 <= 191 - e <= 14 and (191 - e) % 2 == 0)
        if ok: mk_[e >> 6] |= 1 << (e & 63)
    assert mk_[3] == 0 and mk_[1] & 0xffffffff == 0 and mk_[2] & 0xffffffff == 0
    st(f'''
    s_cmp_eq_u32 {s_w}, 0
    s_cselect_b32 s38, 0x{mk_[0] & 0xffffffff:x}, 0
    s_cselect_b32 s39, 0x{mk_[0] >> 32:x}, 0
    s_cmp_eq_u32 {s_w}, 1
    s_cselect_b32 s39, 0x{mk_[1] >> 32:x}, s39
    s_cmp_eq_u32 {s_w}, 2
    s_cselect_b32 s39, 0x{mk_[2] >> 32:x}, s39
    v_mov_b32 {v_tmp}, {NEGINF}
    s_lshl_b32 {s_t0}, {s_w}, 8
    s_add_u32 {s_t0}, {s_t0}, {L_TAB}
    v_cndmask_b32 {v_tmp}, {v_tmp}, 0, s[38:39]
    v_lshl_add_u32 {v_t1}, {v_lane}, 2, {s_t0}
    ds_write_b32 {v_t1}, {v_tmp}
    v_lshlrev_b32 {v_t1}, 2, {v_h}
    v_sub_u32 {v_t1}, {v_t1}, {v_r}
    v_lshlrev_b32 {v_t1}, 2, {v_t1}
    v_add_u32 {v_mA}, {L_TAB + 128}, {v_t1}
    s_cmp_eq_u32 {s_q0}, 0
    s_cselect_b64 vcc, -1, 0
    v_mov_b32 {v_t1}, {L_TAB + 4*64}
    v_cndmask_b32 {v_mB0}, {v_mA}, {v_t1}, vcc
    ''')
def setup_late():
    return L(f'''
    v_add_u32 {v_dma}, {s_inv}, {v_l16}
    v_lshlrev_b32 {v_gad}, 2, {v_r}
    v_add_u32 {v_kb0}, {s_q0z}, {v_q4}
    v_add_u32 {v_k1}, {s_k1}, {v_l16}
    ''')
def zero_pads():
    return L('\n'.join(f'v_accvgpr_write_b32 a{b}, 0' for b in (AK1 + 2, AK1 + 3, AK1 + 6, AK1 + 7, AKB1 + 2, AKB1 + 3, AKB1 + 6, AKB1 + 7))
             + f'\nv_mov_b32 v{QA1+8}, 0\nv_mov_b32 v{QA1+9}, 0')

def mask_reads(reg, adr, base, a0=0):
    l = []
    for a in range(a0, 4):
        for b in (0, 2):
            k = base + 8 * a + b
            l.append(Ins(f'ds_read2_b32 {vr(reg+4*a+b,2)}, {adr} offset0:{k} offset1:{k+1}'))
    return l
def mask_far(): return mask_reads(M_FAR, v_mA, 64)
def mask_rest(): return mask_reads(M_DIAG, v_mA, 0) + mask_reads(MB_DIAG, v_mA, 159) + mask_reads(MB_PREV, v_mA, 127, 2) + mask_reads(MB_PREV0, v_mB0, 127, 2)

def kvq_loads():
    g = []
    for ty in (1, 2):
        for gi in range(3):
            g.append(L(f's_add_u32 m0, {s_mK}, {(L_KA if ty == 1 else L_VA) + gi*GS}\n'
                       f's_add_u32 {s_e1}, {s_dS if gi == 2 else s_dF}, {QKV[0] + (80*ty + (gi if gi < 2 else 0))*GRP - 4096}'))
            g.append(L(f'buffer_load_dwordx4 {v_dma}, {sWS}, {s_e1} offen sc1 lds'))
            st = Stream()
            tok = st.vm(f'buffer_load_dwordx4 {v_dma}, {sWS}, {s_e1} offen offset:1024 sc1 lds')
            g.append(st.l)
    for x in (f'buffer_load_dwordx4 {vr(QA0,4)}, {v_q4}, {sWS}, {s_bF} offen sc1',
              f'buffer_load_dwordx2 {vr(QA1,2)}, {v_qe}, {sWS}, {s_bS} offen sc1',
              f'buffer_load_dwordx2 {vr(QA1+2,2)}, {v_qo}, {sWS}, {s_bS} offen sc1',
              f'buffer_load_dwordx4 {vr(QA0+4,4)}, {v_q4}, {sWS}, {s_bF} offen offset:512 sc1',
              f'buffer_load_dwordx2 {vr(QA1+4,2)}, {v_qe}, {sWS}, {s_bS} offen offset:512 sc1',
              f'buffer_load_dwordx2 {vr(QA1+6,2)}, {v_qo}, {sWS}, {s_bS} offen offset:512 sc1'):
        g.append([Ins(x)])
    return g, tok
def wo_loads(f0, f1):
    g = []
    for F in range(f0, f1):
        s_, br, ct = F // 10, (F // 5) & 1, F % 5
        if ct % 4 == 0 or F == f0: g.append(L(f's_add_u32 {s_e2}, {s_wob}, {WOF + br*32*25600 + (5*s_ + (ct & 4))*1024}'))
        g.append(L(f'buffer_load_dwordx4 {ar(4*F,4)}, {v_l16}, {sWS}, {s_e2} offen offset:{(ct%4)*1024} sc1'))
    return g

steps = [(0, 0)] + [(j, q) for j in range(1, 9) for q in range(2)] + [(9, 1)]
def k0_read(j): return Ins(f'ds_read_b128 {ar(AK0+4*(j&1),4)}, {v_k0} offset:{512*j}')
def k1_read(j): return Ins(f'ds_read_b64 {ar(AK1+4*((j>>1)&1),2)}, {v_k1} offset:{512*j}')
def v_read(j, kk, u): return Ins(f'ds_read_b64_tr_b16 {ar(AV+8*(j&1)+4*kk+2*u,2)}, {v_v} offset:{512*j+256*kk+128*u}')
def qka(n):
    j, q = steps[n]
    c = vr(M_FAR, 16) if j == q else vr(M_DIAG, 16) if j == 8 + q else '0'
    return f'{mm} {vr(SB[n&1],16)}, {ar(AK0+4*(j&1),4)}, {vr(QA0+4*q,4)}, {c}'
def qkb(n):
    j, q = steps[n]
    return f'{mm} {vr(SB[n&1],16)}, {ar(AK1+4*((j>>1)&1),4)}, {vr(QA1+4*q+2*(j&1),4)}, {vr(SB[n&1],16)}'
def pv(n, kk):
    j, q = steps[n]
    c = '0' if (j == q and kk == 0) else vr(OA[q], 16)
    return f'{mm} {vr(OA[q],16)}, {ar(AV+8*(j&1)+4*kk,4)}, {vr(P0+4*kk,4)}, {c}'
def exps(n, g): return [f'v_exp_f32 v{E0+4*(g&1)+i}, v{SB[n&1]+4*g+i}' for i in range(4)]
def cvts(g): return [f'v_cvt_pk_bf16_f32 v{P0+2*g+i}, v{E0+4*(g&1)+2*i}, v{E0+4*(g&1)+2*i+1}' for i in range(2)]
def att_pre(): return [k0_read(0), k1_read(0), k0_read(1)] + [v_read(0, kk, u) for kk in range(2) for u in range(2)]

S(f'''
s_cmp_ge_u32 s2, 0x100
s_cbranch_scc1 L_end
s_load_dwordx2 s[4:5], s[0:1], 0
s_load_dwordx2 s[8:9], s[0:1], 8
s_load_dwordx2 s[12:13], s[0:1], 32
s_load_dwordx2 s[16:17], s[0:1], 72
s_load_dwordx2 s[20:21], s[0:1], 56
s_load_dwordx2 s[24:25], s[0:1], 64
''')
stamp('start')
if opt('cpf', 1):
    S(f'''
    s_getpc_b64 s[28:29]
    L_pc:
    s_mov_b32 s30, L_end-L_pc
    s_mov_b32 s31, 0x20000
    s_andn2_b32 {s_t0}, s2, 7
    v_min_u32 v132, 7, v0
    v_add_lshl_u32 v132, v132, {s_t0}, 7
    buffer_load_dword v133, v132, {sTMP}, 0 offen
    ''')
S(f'''
v_lshrrev_b32 {v_tmp}, 6, v0
v_and_b32 {v_lane}, 63, v0
v_readfirstlane_b32 {s_w}, {v_tmp}
s_and_b32 {s_xcd}, s2, 7
s_lshr_b32 {s_t}, s2, 3
s_and_b32 {s_t0}, {s_xcd}, 1
s_lshl_b32 {s_t0}, {s_t0}, 3
s_and_b32 {s_t1}, {s_t}, 7
s_add_u32 {s_rb}, {s_t0}, {s_t1}
s_lshr_b32 {s_t0}, {s_xcd}, 1
s_lshl_b32 {s_t0}, {s_t0}, 2
s_lshr_b32 {s_t2}, {s_t}, 3
s_add_u32 {s_cb}, {s_t0}, {s_t2}
s_mov_b32 s6, {2048*1280}
s_mov_b32 s7, 0x20000
s_mov_b32 s11, 0x20000
s_cmp_eq_u32 {s_cb}, 15
s_cbranch_scc1 L_spare
s_mov_b32 s10, {640*3840}
s_lshl_b32 {s_rot}, {s_t2}, 1
s_add_u32 {s_rot}, {s_rot}, {s_t1}
s_and_b32 {s_rot}, {s_rot}, 7
s_mul_i32 {s_rot}, {s_rot}, 5
s_lshr_b32 {s_rot}, {s_rot}, 2
''')
def rot(st, n):
    if n >= 2: st(f's_cmp_eq_u32 {s_rot}, 10\ns_cselect_b32 {s_rot}, 0, {s_rot}')
    st(f'''
    s_mul_i32 s{SW0+n}, {s_rot}, {64*3840}
    s_lshl_b32 s{SX0+n}, {s_rot}, 7
    s_add_u32 {s_rot}, {s_rot}, 1
    ''')
rot(S, 0)
S(f'''
v_lshrrev_b32 {v_t1}, 4, {v_lane}
v_lshrrev_b32 {v_t2}, 3, {v_lane}
v_mul_u32_u24 {v_t2}, 1280, {v_t2}
v_and_b32 {v_t3}, 7, {v_lane}
v_xor_b32 {v_t3}, {v_t3}, {v_t1}
s_lshl_b32 {s_t2}, {s_rb}, 2
s_add_u32 {s_t2}, {s_t2}, {s_w}
s_mul_i32 {s_t2}, {s_t2}, {32*1280}
v_add_u32 {v_t2}, {s_t2}, {v_t2}
v_lshl_add_u32 v{VXD}, {v_t3}, 4, {v_t2}
v_xor_b32 {v_t3}, 4, {v_t3}
v_lshl_add_u32 v{VXD+1}, {v_t3}, 4, {v_t2}
v_add_u32 v{VXD+2}, {2*(8*1280-1024)}, v{VXD}
v_add_u32 v{VXD+3}, {3*(8*1280-1024)}, v{VXD+1}
v_add_u32 v{VXD+1}, {8*1280-1024}, v{VXD+1}
s_lshl_b32 {s_mW}, {s_w}, 12
s_add_u32 {s_mX}, {s_mW}, {L_X}
v_and_b32 {v_t2}, 15, {v_lane}
v_lshlrev_b32 {v_t3}, 2, {v_t1}
v_xor_b32 {v_t2}, {v_t2}, {v_t3}
v_mul_u32_u24 {v_t3}, 3840, {v_t1}
v_lshl_add_u32 {v_t3}, {v_t2}, 4, {v_t3}
s_mul_i32 {s_t1}, {s_w}, {16*3840}
s_lshl_b32 {s_t2}, {s_cb}, 8
s_add_u32 {s_t1}, {s_t1}, {s_t2}
v_add_u32 v{VWD}, {s_t1}, {v_t3}
''')
for i in range(1, 4):
    S(f'v_add_u32 v{VWD+i}, {i*(4*3840-1024)}, v{VWD}')
rot(S, 1)
S('s_waitcnt lgkmcnt(0)')

dma_tok = {}
WSLOT = [n % 4 for n in range(10)] + [2, 6, 3, 7, 0, 4, 1, 2, 3, 0]
WISS = {n: n - 2 for n in range(2, 11)}
WISS.update({11: 8, 12: 9, 13: 9, 14: 10, 15: 10, 16: 11, 17: 12, 18: 14, 19: 16})
CTM = opt('ctm', 4)
def dma_stage(n):
    p, ns, slot = n // 10, n % 10, WSLOT[n]
    g = []
    if p == 0:
        g.append(L(f's_add_u32 m0, {s_mX}, {slot*16384}'))
        for i in range(4):
            g.append(L(f'buffer_load_dwordx4 v{VXD+i}, {sX}, s{SX0+ns} offen offset:{1024*i} lds'))
        g[-1] += L(f's_add_u32 m0, {s_mW}, {slot*16384}')
    else:
        g.append(L(f's_add_u32 m0, {s_mW}, {slot*16384}'))
    for i in range(4):
        st = Stream()
        dma_tok[n] = st.vm(f'buffer_load_dwordx4 v{VWD+i}, {sWB if p else sWA}, s{SW0+ns} offen offset:{1024*i} lds')
        g.append(st.l)
    return g

def common_consts(st):
    st(f'''
    s_mov_b32 s18, {WS_SIZE + (65536 if STAMPS else 0)}
    s_mov_b32 s19, 0x20000
    s_mov_b32 s26, 256
    s_mov_b32 s27, 0x20000
    s_mov_b32 s31, 0x20000
    v_cmp_eq_u32 vcc, 0, v0
    v_mov_b32 {v_big}, {BIG}
    v_mov_b32 {v_one}, 1
    v_lshlrev_b32 {v_l16}, 4, {v_lane}
    v_cndmask_b32 {v_flag}, {v_big}, 0, vcc
    ''')

for g in dma_stage(0): S.extend(g)
common_consts(S)
stamp('iss0')
d1 = dma_stage(1)
PRE = opt('pre', 5)
for g in d1[:PRE]: S.extend(g)
pre = Stream()
for n in range(2, 10): rot(pre, n)
pre(f'''
v_lshrrev_b32 {v_t1}, 5, {v_lane}
v_bfe_u32 {v_t2}, {v_lane}, 2, 2
v_lshl_add_u32 {v_t3}, {v_t1}, 3, {v_t2}
v_lshlrev_b32 {v_t3}, 8, {v_t3}
v_bfe_u32 {v_tmp}, {v_lane}, 4, 1
v_lshl_add_u32 {v_t3}, {v_tmp}, 5, {v_t3}
v_and_b32 {v_tmp}, 1, {v_lane}
v_lshl_add_u32 {v_t3}, {v_tmp}, 4, {v_t3}
v_bfe_u32 {v_tmp}, {v_lane}, 1, 1
v_lshl_add_u32 {v_t3}, {v_tmp}, 3, {v_t3}
v_lshl_add_u32 {v_t3}, {v_t2}, 6, {v_t3}
s_and_b32 {s_t0}, {s_w}, 1
s_lshr_b32 {s_t1}, {s_w}, 1
s_lshl_b32 {s_t2}, {s_t0}, 7
v_xor_b32 v{VWR}, {s_t2}, {v_t3}
v_xor_b32 v{VWR+1}, 64, v{VWR}
v_and_b32 {v_t2}, 31, {v_lane}
v_bfe_u32 {v_t3}, {v_lane}, 1, 3
v_xor_b32 {v_t3}, {v_t3}, {v_t1}
v_lshlrev_b32 {v_t3}, 4, {v_t3}
v_lshl_add_u32 {v_t3}, {v_t2}, 7, {v_t3}
s_lshl_b32 {s_t2}, {s_t1}, 13
s_add_u32 {s_t2}, {s_t2}, {L_X}
v_add_u32 v{VXR}, {s_t2}, {v_t3}
''')
for s_ in range(1, 4):
    pre(f'v_xor_b32 v{VXR+s_}, {s_*32}, v{VXR}')
pre(f'''
s_lshl_b32 {s_t2}, {s_rb}, 1
s_add_u32 {s_t2}, {s_t2}, {s_t1}
s_lshl_b32 {s_t2}, {s_t2}, 10
v_lshlrev_b32 {v_t1}, 15, {v_t1}
v_lshl_add_u32 {v_t1}, {v_t2}, 4, {v_t1}
v_add_u32 {v_st}, {s_t2}, {v_t1}
s_lshl_b32 {s_stb}, {s_cb}, 1
s_add_u32 {s_stb}, {s_stb}, {s_t0}
s_lshl_b32 {s_stb}, {s_stb}, 18
s_cmp_lt_u32 {s_cb}, 5
s_cselect_b32 {s_scale}, {f32(QSCALE)}, 1.0
''')
setup2(pre)
pre = atomize(pre.l)
SPLIT = min(opt('split', 1000), len(pre))
pre, su_post = pre[:SPLIT], pre[SPLIT:]
if d1[PRE:]: weave(pre, d1[PRE:], opt('pre0', 20), opt('pre1', 120))
for g in pre: S.extend(g)
stamp('setup')

seq = []
def tilewise(ns, k2):
    ns = list(ns); m = len(ns) - k2
    l = [(n, s_, 0, rt) for n in ns for s_ in range(4) for rt in range(2)]
    l += [(n, s_, 1, rt) for n in ns[:m] for s_ in range(4) for rt in range(2)]
    for rt in range(2): l += [(n, s_, 1, rt) for n in ns[m:] for s_ in range(4)]
    return l
for n in range(20 - CTM):
    if n == 9: seq += tilewise([9], 0)
    else: seq += [(n, s_, c, rt) for s_ in range(4) for c in range(2) for rt in range(2)]
seq += tilewise(range(20 - CTM, 20), opt('ct2', 2))
NG = len(seq)
def xreg(n, s_, rt):
    n %= 10
    return ar(32 * n + 8 * s_ + 4 * rt, 4) if n < 8 else vr(XV + 32 * (n - 8) + 8 * s_ + 4 * rt, 4)
BO = opt('bo', 5)
firstuse = {}; lastuse = {}
for k, e in enumerate(seq): firstuse.setdefault(e[0], k); lastuse[e[0]] = k
BARS = list(range(1, 21 - CTM)) + ([19] if CTM > 2 else [])
def bar_of(n): return max(b for b in [0] + BARS if b <= n)
def bar_gap(n): return firstuse[bar_of(n)] - BO
for n in range(4, 20):
    prev = [m for m in range(n) if WSLOT[m] == WSLOT[n] or (m < 10 and WSLOT[n] == 4 + m % 4)]
    assert WISS[n] in BARS and lastuse[prev[-1]] < bar_gap(WISS[n]), n
frag = []; fidx = []
for k, e in enumerate(seq):
    if k == 0 or seq[k - 1][:3] != e[:3]: frag.append([e[:3], k, k])
    frag[-1][2] = k; fidx.append(len(frag) - 1)
reads = []; xseen = set(); first_reads = []
for j, ((n, s_, c), u0, u1) in enumerate(frag):
    lo = max(frag[j - 4][2] if j >= 4 else -1, bar_gap(n))
    sl_ = WSLOT[n]; buf = WRING + 4 * (j & 3)
    l = [Ins(f'ds_read_b64_tr_b16 {vr(buf+2*u,2)}, v{(VXR if sl_ >= 4 else VWR)+c} offset:{(sl_%4)*16384+(16*s_+4*u)*256}') for u in range(2)]
    if n < 10 and (n, s_) not in xseen:
        xseen.add((n, s_))
        l = [Ins(f'ds_read_b128 {xreg(n,s_,rt)}, v{VXR+s_} offset:{(n%4)*16384+rt*4096}') for rt in range(2)] + l
    if j < 2: first_reads += l
    else: reads += [Item(x, lo, u0 - (3 if u0 - 3 >= lo else 2)) for x in l]
mf = []
for k, (n, s_, c, rt) in enumerate(seq):
    acc = vr(ACC[n // 10] + 16 * (2 * c + rt), 16)
    mf.append(Ins(f'{mm} {acc}, {vr(WRING+4*(fidx[k]&3),4)}, {xreg(n,s_,rt)}, {"0" if n % 10 == 0 and s_ == 0 else acc}'))
done = {}
for k, (n, s_, c, rt) in enumerate(seq): done[(n // 10, 2 * c + rt)] = k
def epi1_tile(p, T):
    g = []; c, rt = T >> 1, T & 1
    for u in range(2):
        b = ACC[p] + 16 * T + 8 * u
        g.append(L(f's_add_u32 {s_e0}, {s_stb}, {QKV[p]+(4*c+2*u)*GRP}'))
        for i in range(8): g.append(L(f'v_mul_f32 v{b+i}, {s_scale}, v{b+i}'))
        for i in range(4): g.append(L(f'v_cvt_pk_bf16_f32 v{b+i}, v{b+2*i}, v{b+2*i+1}'))
        st = Stream(); tok = st.vm(f'buffer_store_dwordx4 {vr(b,4)}, {v_st}, {sWS}, {s_e0} offen offset:{512*rt} sc1')
        g.append(st.l)
    return g, tok

cap = [6 - (1 if k + 1 < NG and fidx[k + 1] != fidx[k] else 0) for k in range(NG)]
fixed = {}
FLAGA = opt('flagA', 14)
for n in BARS:
    fixed[bar_gap(n)] = [('BAR', n)]; cap[bar_gap(n)] -= 2 + (3.5 if n == FLAGA else 0)
dmas = []
for b in range(0, 17):
    l = [g for n in range(2, 20) if WISS[n] == b for g in dma_stage(n)]
    if l:
        lo = max(bar_gap(b), 0)
        dmas += paced(l, lo, lo + (opt('dsp', 14) if len(l) > 5 else 7), 2)
KV0 = opt('kv0', 262); KV1 = opt('kv1', 290); KVB = opt('kvb', 312)
assert KV0 > bar_gap(16) + 9
kv, tokKV = kvq_loads()
dmas += [Item(mk(poll_check, v_pres, v_p1, sWS, s_F1A) + [('ST', 'pc1')], KV0 - 1, KV0 - 1)] + paced(kv, KV0, KV1, 2)
epi = []
EA1 = opt('epiAend', 196)
for T in range(4):
    g, tokA = epi1_tile(0, T)
    lo = done[(0, T)] + 3
    it = asap(g, lo, lo + 1)
    for i, x in enumerate(it): x.hi = max(lo, 154 + (28 * T + i) * (EA1 - 154) // 112) + 2
    epi += it
for T in range(3):
    g, tokB = epi1_tile(1, T)
    lo = done[(1, T)] + 3
    it = asap(g, lo, lo + 1)
    e0 = done[(1, 0)] + 3; e1 = done[(1, 2)] + 3
    for i, x in enumerate(it): x.hi = max(lo, e0 + (28 * T + i) * (e1 - e0) // 56) + 1 if T < 2 else NG
    epi += it
NWO1 = opt('nwo1', 30); NA = min(NWO1, opt('na', 30)); assert NA <= 30
WO0 = opt('wo0', 198); WO1 = opt('wo1', 258)
misc = []
if su_post: misc += paced(su_post, 0, 70, 4)
misc += [Item(mk(poll_issue, v_pres, v_zero, sDBG, '0'), 80, 84), Item(mk(poll_check, v_pres, v_zero, sDBG, '0'), 120, 124)]
misc += paced(setup_late(), 130, 140, 4)
misc += [Item(mk(poll_issue, v_pres, v_p2, sWS, s_F1A), opt('p2i', 148), opt('p2i', 148) + 2)]
misc += paced([Ins(f'v_add_u32 v{VXR+c}, {L_X}, v{VWR+c}') for c in range(2)], 156, 160, 3)
misc += [Item(mk(poll_check, v_pres, v_p2, sWS, s_F1A) + [('ST', 'pc2')], WO0 - 1, WO0 - 1)]
wl = paced(wo_loads(0, NA), WO0, WO1, 3)
P1I = KV0 - opt('p1d', 20)
misc += [x for x in wl if x.lo < P1I] + [Item(mk(poll_issue, v_pres, v_p1, sWS, s_F1A), P1I, P1I + 2)] + [x for x in wl if x.lo >= P1I]
if NA < NWO1: misc += paced(wo_loads(NA, NWO1), KV1, NG - 2, 2)
misc2 = paced(mask_far(), 230, 250, 4) + paced(zero_pads(), lastuse[17] + 1, lastuse[17] + 6, 2)
st = Stream(); st.wait(tokKV); st('s_barrier'); fixed[KVB] = st.l + [('ST', 'kvb')]; cap[KVB] -= 2
misc2 += paced(att_pre(), KVB, NG - 2, 1)
rep_ = []
gaps, over = schedule(NG, cap, [reads, dmas, epi, misc, misc2], rep_)
if '--sched' in ARGS:
    for n in range(20): print(n, ' '.join('%4.1f' % x for x in rep_[16 * n:16 * n + 16]))
last_def = {}; last_use = {}
for k, m in enumerate(mf):
    for r in m.defs: last_def[r] = k
    for r in m.srcab: last_use[r] = k
for k, g in enumerate(gaps):
    for it in g:
        if isinstance(it, tuple): continue
        if it.kind in ('valu', 'vm') or (it.kind == 'ds' and k > 200):
            for r in it.uses | it.defs: assert last_def.get(r, -1) <= k or k < 150, (k, it.text)
            if 'tr_b16 v' not in it.text:
                for r in it.defs: assert last_use.get(r, -1) <= k, (k, it.text)

S.wait(dma_tok[0]); S('s_barrier')
stamp('first')
S.l += first_reads
for k in range(NG):
    if k + 1 < NG and fidx[k + 1] == fidx[k]: S.use(mf[k].srcab | mf[k + 1].srcab)
    S.l.append(mf[k])
    for it in fixed.get(k, []) + gaps[k]:
        if isinstance(it, tuple) and it[0] == 'ST':
            if FINE: stamp(it[1])
        elif isinstance(it, tuple):
            n2 = it[1]
            tk = [dma_tok[m] for m in range(20) if bar_of(m) == n2]
            if n2 == FLAGA: tk.append(tokA)
            S.wait(*tk)
            S('s_barrier')
            if n2 == FLAGA: set_flag(S, v_flag, s_f1, 0)
            if FINE or n2 in (10, 14, 16): stamp('b%d' % n2)
        else:
            S.l.append(it)
stamp('p1end')
S(qka(0)); S(qkb(0))
mrest = mask_rest()
S.l += mrest[:8]
g, tokB = epi1_tile(1, 3)
for x in g: S.l += x
S('L_join:')
stamp('join')
nst_join = nstamp[0] - 1

N = len(steps)
groups = []
for n in range(N):
    for g in range(4):
        st = Stream()
        if g == 0 and n + 1 < N: st(qka(n + 1))
        if g == 1 and n > 0: st(pv(n - 1, 1))
        if g == 2 and n + 1 < N: st(qkb(n + 1))
        if g == 3: st(pv(n, 0))
        if g > 0 or n > 0:
            for x in cvts((g - 1) & 3): st(x)
        for x in exps(n, g): st(x)
        groups.append(st.l)
first = {}
for n, (j, q) in enumerate(steps): first.setdefault(j, n)
last = {j: n for n, (j, q) in enumerate(steps)}
for j in range(1, 10):
    if j >= 2: groups[4 * max(last[j-2] - 1, 0) + 1].append(k0_read(j))
    if j % 2 == 0: groups[4 * max(first[j] - 3, 0) + 0].append(k1_read(j))
    for kk in range(2):
        for u in range(2):
            base = 4 * (last[j-2] + 1) + 1 if j >= 2 else 0
            groups[base + 2 * kk + u].append(v_read(j, kk, u))
weave(groups, mrest[8:], 4, 36)
FB = opt('fb', 5)
st = Stream(); st.wait(tokB); st('s_barrier'); set_flag(st, v_flag, s_f1, 4); groups[4 * FB - 1] += st.l
P3S = opt('p3s', 12); P3D = opt('p3d', 2)
NWO2 = opt('nwo2', 50)
if NWO2 > NWO1: weave(groups, wo_loads(NWO1, NWO2), 2, 4 * (P3S - P3D) - 1)
groups[4 * (P3S - P3D) - 1] += mk(poll_issue, v_pres, v_p3, sWS, s_F1B)
groups[4 * P3S - 2] += L(f'''
s_add_u32 s60, {s_bF}, {QKV[1]}
s_add_u32 s61, {s_bS}, {QKV[1]}
s_add_u32 s62, {s_bF}, {QKV[1] + 80*GRP - 512}
s_add_u32 s63, {s_bS}, {QKV[1] + 80*GRP - 512}
''')
groups[4 * P3S - 3] += L(f'''
s_add_u32 s64, {s_bF}, {QKV[1] + 160*GRP}
s_add_u32 s65, {s_bF}, {QKV[1] + 161*GRP - 1088}
s_add_u32 s66, {s_bS}, {QKV[1] + 160*GRP - 2176}
s_mov_b32 m0, {s_mV}
''')
groups[4 * P3S - 1] += mk(poll_check, v_pres, v_p3, sWS, s_F1B)
bl = L(f'''
buffer_load_dwordx4 {vr(QB0,4)}, {v_q4}, {sWS}, s60 offen sc1
buffer_load_dwordx4 {vr(KB0,4)}, {v_kb0}, {sWS}, s62 offen sc1
buffer_load_dwordx2 {vr(QB1,2)}, {v_qe}, {sWS}, s61 offen sc1
buffer_load_dwordx2 {vr(QB1+2,2)}, {v_qo}, {sWS}, s61 offen sc1
buffer_load_dwordx2 {ar(AKB1,2)}, {v_kb1}, {sWS}, s63 offen sc1
buffer_load_dwordx4 {vr(KB0+4,4)}, {v_q4}, {sWS}, s62 offen offset:512 sc1
buffer_load_dwordx4 {vr(QB0+4,4)}, {v_q4}, {sWS}, s60 offen offset:512 sc1
buffer_load_dwordx2 {vr(QB1+4,2)}, {v_qo}, {sWS}, s61 offen offset:512 sc1
buffer_load_dwordx4 {vr(KB0+8,4)}, {v_q4}, {sWS}, s62 offen offset:1024 sc1
buffer_load_dwordx2 {ar(AKB1+4,2)}, {v_qo}, {sWS}, s63 offen offset:1024 sc1
buffer_load_dword {v_g[0]}, {v_gad}, {sWS}, {s_gb} offen sc1
buffer_load_dword {v_g[1]}, {v_gad}, {sWS}, {s_gb} offen offset:128 sc1
buffer_load_dwordx4 {v_l16}, {sWS}, s64 offen sc1 lds
buffer_load_dwordx4 {v_l16}, {sWS}, s65 offen offset:1088 sc1 lds
buffer_load_dwordx4 {v_l16}, {sWS}, s66 offen offset:2176 sc1 lds
''')
st = Stream(); st(f's_add_u32 m0, {s_mV}, 3264\nv_mov_b32 v{QB1+6}, 0\nv_mov_b32 v{QB1+7}, 0')
tokVB = st.vm(f'buffer_load_dwordx4 {v_halo}, {sWS}, 0 offen sc1 lds'); bl.append(st.l)
weave(groups, bl, 4 * P3S, 4 * P3S + opt('bln', 12))
for k, g in enumerate(groups):
    S.l += g
    if FINE and k % 8 == 7: stamp('a%d' % (k // 4))
for x in cvts(3): S(x)
S(f's_add_u32 {s_e1}, {s_ob}, {OBR}\ns_nop 0')
S(pv(N - 1, 1))
stamp('attA')

def epi2(br, q, o, pk=False):
    st = Stream()
    st(f'v_rcp_f32 {v_t1}, v{o+12}')
    if br: st(f'v_sub_f32 {v_g[q]}, 1.0, {v_g[q]}')
    st(f'v_mul_f32 {v_t1}, {v_g[q]}, {v_t1}')
    if pk:
        for i in range(0, 12, 2): st(f'v_pk_mul_f32 {vr(o+i,2)}, {vr(o+i,2)}, {vr(22,2)} op_sel_hi:[1,0]')
    else:
        for i in range(12): st(f'v_mul_f32 v{o+i}, {v_t1}, v{o+i}')
    for i in range(6): st(f'v_cvt_pk_bf16_f32 v{o+i}, v{o+2*i}, v{o+2*i+1}')
    so = s_e1 if br else s_ob
    st(f'buffer_store_dwordx4 {vr(o,4)}, {v_o4}, {sWS}, {so} offen offset:{1280*q} sc1')
    tok = st.vm(f'buffer_store_dwordx2 {vr(o+4,2)}, {v_o2}, {sWS}, {so} offen offset:{1280*q} sc1')
    return st.l, tok
qkB = [[Ins(x)] for x in (
    f'{mm} {vr(SP[0],16)}, {vr(KB0,4)}, {vr(QB0,4)}, {vr(MB_PREV0,16)}',
    f'{mm} {vr(SP[0],16)}, {ar(AKB1,4)}, {vr(QB1,4)}, {vr(SP[0],16)}',
    f'{mm} {vr(SD[0],16)}, {vr(KB0+4,4)}, {vr(QB0,4)}, {vr(MB_DIAG,16)}',
    f'{mm} {vr(SD[0],16)}, {ar(AKB1,4)}, {vr(QB1+2,4)}, {vr(SD[0],16)}',
    f'{mm} {vr(SP[1],16)}, {vr(KB0+4,4)}, {vr(QB0+4,4)}, {vr(MB_PREV,16)}',
    f'{mm} {vr(SP[1],16)}, {ar(AKB1,4)}, {vr(QB1+4,4)}, {vr(SP[1],16)}',
    f'{mm} {vr(SD[1],16)}, {vr(KB0+8,4)}, {vr(QB0+4,4)}, {vr(MB_DIAG,16)}',
    f'{mm} {vr(SD[1],16)}, {ar(AKB1+4,4)}, {vr(QB1+4,4)}, {vr(SD[1],16)}')]
st = Stream(); st.wait(tokVB)
for u in range(2): st(f'ds_read_b64_tr_b16 {ar(VB+2*u,2)}, {v_vh} offset:{128*u}')
for t in range(2):
    for kk in range(2):
        for u in range(2): st(f'ds_read_b64_tr_b16 {ar(VB+4+8*t+4*kk+2*u,2)}, {v_vb} offset:{512*t+256*kk+128*u}')
e0, _ = epi2(0, 0, OA[0]); e1, tokOA = epi2(0, 1, OA[1])
weave(qkB, e0 + e1, 0, 7)
weave(qkB, st.l, 7, 8)
for g in qkB: S.l += g
st2('qkB')
def softB(q):
    st = Stream()
    b = SP[q] + 8
    assert SD[q] == SP[q] + 16
    st(f'v_max3_f32 {v_t3}, v{b}, v{b+1}, v{b+2}')
    st(f'v_max3_f32 {v_t4}, v{b+3}, v{b+4}, v{b+5}')
    for i in range(6, 22, 4):
        st(f'v_max3_f32 {v_t3}, {v_t3}, v{b+i}, v{b+i+1}')
        st(f'v_max3_f32 {v_t4}, {v_t4}, v{b+i+2}, v{b+i+3}')
    st(f'v_max3_f32 {v_t3}, {v_t3}, v{b+22}, v{b+23}')
    st(f'v_max_f32 {v_t3}, {v_t3}, {v_t4}')
    st(f'v_mov_b32 {v_t4}, {v_t3}')
    st(f'v_permlane32_swap_b32 {v_t3}, {v_t4}')
    st(f'v_max_f32 {v_t3}, {v_t3}, {v_t4}')
    for i in range(0, 24, 2): st(f'v_pk_add_f32 {vr(b+i,2)}, {vr(b+i,2)}, {vr(24,2)} op_sel_hi:[1,0] neg_lo:[0,1] neg_hi:[0,1]')
    vop = [VB if q == 0 else VB + 8, VB + 4 + 8 * q, VB + 8 + 8 * q]
    for c in range(3):
        for i in range(8): st(f'v_exp_f32 v{b+8*c+i}, v{b+8*c+i}')
        if c: st(f'{mm} {vr(OB[q],16)}, {ar(vop[c-1],4)}, {vr(b+8*(c-1),4)}, {"0" if c == 1 else vr(OB[q],16)}')
        for i in range(4): st(f'v_cvt_pk_bf16_f32 v{b+8*c+i}, v{b+8*c+2*i}, v{b+8*c+2*i+1}')
    return st.l, Ins(f'{mm} {vr(OB[q],16)}, {ar(vop[2],4)}, {vr(b+16,4)}, {vr(OB[q],16)}')
l0, m0_ = softB(0); l1, m1_ = softB(1)
S.l += l0; S.l += l1[:2]; S.l.append(m0_); S.l += l1[2:]
e0, _ = epi2(1, 0, OB[0]); e1, tokOB = epi2(1, 1, OB[1], True)
S.l += e0[:2]; S.l.append(m1_); S.l += e0[2:]; S.l += e1
st2('epiB')
for g in wo_loads(NWO2, 50): S.l += g

S(f'''
v_lshrrev_b32 {v_t1}, 4, {v_lane}
v_and_b32 {v_t2}, 15, {v_lane}
s_mov_b32 {s_t0}, 81920
v_mul_lo_u32 {v_t3}, {v_h}, {s_t0}
v_and_b32 {v_t4}, 1, {v_t1}
v_lshl_add_u32 {v_t3}, {v_t4}, 8, {v_t3}
v_lshl_add_u32 {v_t3}, {v_t2}, 4, {v_t3}
s_mov_b32 {s_t0}, 163840
v_mul_lo_u32 {v_t4}, {v_t1}, {s_t0}
v_lshl_add_u32 {v_t4}, {v_t2}, 3, {v_t4}
v_add_u32 {v_t4}, 512, {v_t4}
''')
for rho in range(4):
    S(f'''
    s_add_u32 {s_t0}, {s_w}, {rho}
    s_and_b32 {s_t0}, {s_t0}, 3
    s_mul_i32 {s_t1}, {s_t0}, 640
    v_add_u32 v{V4+rho}, {s_t1}, {v_t3}
    v_add_u32 v{V2+rho}, {s_t1}, {v_t4}
    s_mul_i32 {s_t1}, {s_t0}, {3*5120}
    ''')
    if rho: S(f's_add_u32 {s_t1}, {s_t1}, {(rho-1)*5120}\nv_add_u32 v{VRW+rho-1}, {s_t1}, {v_l16}')
    else: S(f'v_add_u32 {v_rr}, {s_t1}, {v_l16}')
S(f'''
v_mul_u32_u24 {v_t2}, 1280, {v_t2}
v_mad_u32_u24 {v_t2}, {v_t1}, 40, {v_t2}
s_lshl_b32 {s_t0}, {s_hd}, 2
s_add_u32 {s_t0}, {s_t0}, {s_w}
s_mul_i32 {s_t0}, {s_t0}, {16*1280}
s_mul_i32 {s_t1}, {s_r2}, 160
s_add_u32 {s_t0}, {s_t0}, {s_t1}
v_add_u32 {v_out}, {s_t0}, {v_t2}
v_and_b32 {v_t1}, 7, {v_lane}
s_lshl_b32 {s_t0}, {s_xcd}, 12
s_lshl_b32 {s_t1}, {s_w}, 10
s_add_u32 {s_t0}, {s_t0}, {s_t1}
s_and_b32 {s_t2}, {s_hd}, 3
s_lshl_b32 {s_t2}, {s_t2}, 2
s_add_u32 {s_t0}, {s_t0}, {s_t2}
v_lshl_add_u32 {v_p4}, {v_t1}, 7, {s_t0}
s_lshl_b32 {s_t0}, {s_hd}, 2
s_add_u32 {s_t0}, {s_t0}, {s_t1}
s_mul_i32 {s_t0}, {s_t0}, 640
''')
for br in range(2):
    for s_ in range(4): S(f's_add_u32 s{SW0+6*br+s_}, {s_t0}, {O_OFF + br*OBR + s_*163840}')
    for u in range(2): S(f's_add_u32 s{SW0+6*br+4+u}, {s_t0}, {O_OFF + br*OBR + u*81920}')
st2('adr3')
S.wait(tokOB); set_flag(S, v_flagw, s_f2, 0)
stamp('flg2')
poll(S, 'v1', v_p4, sWS, s_F2)
stamp('poll4')
def o_load(br, s_, rho):
    if s_ < 4: return L(f'buffer_load_dwordx4 {vr(OF[br]+16*s_+4*rho,4)}, v{V4+rho}, {sWS}, s{SW0+6*br+s_} offen sc1')
    return L('\n'.join(f'buffer_load_dwordx2 {vr(OF[br]+64+4*rho+2*u,2)}, v{V2+rho}, {sWS}, s{SW0+6*br+4+u} offen sc1' for u in range(2)))
def mf3(br, s_, rho, ct):
    acc = vr(AC3 + 20 * rho + 4 * ct, 4)
    return [Ins(f'v_mfma_f32_16x16x32_bf16 {acc}, {ar(40*s_+20*br+4*ct,4)}, {vr(OF[br]+16*s_+4*rho,4)}, {"0" if br == 0 and s_ == 0 else acc}')]
order = (1, 2, 3, 0)
ol = [x for s_ in range(5) for rho in range(4) for x in o_load(0, s_, rho)] + [x for rho in order for s_ in range(5) for x in o_load(1, s_, rho)]
NO0 = opt('no0', 12)
S.l += ol[:NO0]
st2('oiss')
sl = [mf3(0, s_, rho, ct) for s_ in range(5) for rho in range(4) for ct in range(5)]
sl += [mf3(1, s_, rho, ct) for rho in order for s_ in range(5) for ct in range(5)]
weave(sl, ol[NO0:], 0, opt('no1', 130))
for k, g in enumerate(sl):
    for it in g[1:]:
        assert not any(it.defs & sl[j][0].srcab for j in range(k + 1)), it.text
for i, rho in enumerate((1, 2, 3)):
    wr = [Ins(f'ds_write_b128 v{VRW+rho-1}, {vr(AC3+20*rho+4*ct,4)} offset:{1024*ct}') for ct in range(5)]
    lo = 125 + 25 * i + 3
    weave(sl, wr, lo, lo + (15 if i < 2 else 5))
sl[189] += L('s_waitcnt lgkmcnt(0)\ns_barrier')
rd = [Ins(f'ds_read_b128 {vr(OF[0]+20*k+4*ct,4)}, {v_rr} offset:{5120*k+1024*ct}') for ct in range(5) for k in range(3)]
weave(sl, rd, 190, 200)
for k, g in enumerate(sl):
    S.l += g
    if k == 99: stamp('mf3A')
    elif k in (0, 19, 39, 59, 79, 124, 149, 174, 188, 189): st2('m%d' % k)
stamp('mf3')
for i in range(0, 20, 2):
    S(f'v_pk_add_f32 {vr(OF[0]+i,2)}, {vr(OF[0]+i,2)}, {vr(OF[0]+20+i,2)}')
    S(f'v_pk_add_f32 {vr(AC3+i,2)}, {vr(AC3+i,2)}, {vr(OF[0]+40+i,2)}')
for i in range(0, 20, 2):
    S(f'v_pk_add_f32 {vr(AC3+i,2)}, {vr(AC3+i,2)}, {vr(OF[0]+i,2)}')
for i in range(10):
    S(f'v_cvt_pk_bf16_f32 v{AC3+i}, v{AC3+2*i}, v{AC3+2*i+1}')
S(f'''
buffer_store_dwordx4 {vr(AC3,4)}, {v_out}, {sOUT}, 0 offen
buffer_store_dwordx4 {vr(AC3+4,4)}, {v_out}, {sOUT}, 0 offen offset:16
buffer_store_dwordx2 {vr(AC3+8,2)}, {v_out}, {sOUT}, 0 offen offset:32
''')
if AMP:
    S('s_waitcnt vmcnt(0)')
    stamp('end')
    S(f'''
    s_cmp_lg_u32 s2, {opt('ampwg', 9)}
    s_cbranch_scc1 L_end
    s_memrealtime s[84:85]
    s_waitcnt lgkmcnt(0)
    s_sub_u32 s80, s82, s80
    s_lshl_b32 s80, s80, 2
    s_min_u32 s80, s80, 100000
    L_amp:
    s_memrealtime s[86:87]
    s_waitcnt lgkmcnt(0)
    s_sub_u32 s86, s86, s84
    s_cmp_lt_u32 s86, s80
    s_cbranch_scc1 L_amp
    ''')
if STAMPS:
    stamp('red')
    S('s_waitcnt vmcnt(0)')
    stamp('end')
    S(f'''
    s_waitcnt lgkmcnt(0)
    s_cmp_lg_u32 {s_w}, 0
    s_cbranch_scc1 L_end
    v_writelane_b32 v0, s{ST0+2*((nstamp[0]-1)&1)}, {nstamp[0]-1}
    s_lshl_b32 {s_t0}, s2, 8
    s_add_u32 {s_t0}, {s_t0}, {STAMP_OFF}
    v_mbcnt_lo_u32_b32 v3, -1, 0
    v_mbcnt_hi_u32_b32 v3, -1, v3
    v_lshlrev_b32 v3, 2, v3
    buffer_store_dword v0, v3, {sWS}, {s_t0} offen
    ''')
    assert nstamp[0] <= 56, nstamp[0]
    open(OUT + '.stamps', 'w').write(' '.join(n or str(i) for i, n in enumerate(stamp_names)))
S('s_endpgm')

T = Stream()
nstamp[0] = 1
T('@reset')
T(f'''
L_spare:
s_waitcnt lgkmcnt(0)
s_load_dwordx2 s[56:57], s[0:1], 16
s_load_dwordx2 s[58:59], s[0:1], 40
s_load_dwordx2 s[8:9], s[0:1], 48
s_mov_b32 s30, {640*1280}
s_mov_b32 s10, 1280
''')
common_consts(T)
T(f'''
v_mov_b32 v64, 0
v_mov_b32 v65, 0
v_mov_b32 v66, 0
v_mov_b32 v67, 0
v_lshlrev_b32 {v_t1}, 4, v0
s_lshl_b32 {s_t0}, {s_rb}, 12
s_add_u32 {s_t0}, {s_t0}, {FLG}
buffer_store_dwordx4 v[64:67], {v_t1}, {sWS}, {s_t0} offen sc1
''')
T(f'''
s_and_b32 {s_e0}, {s_rb}, 1
s_lshl_b32 {s_e0}, {s_e0}, 2
s_add_u32 {s_e0}, {s_e0}, {s_w}
s_bfe_u32 {s_e1}, {s_rb}, 0x20001
s_mul_i32 {s_t2}, {s_e0}, 160
s_mul_i32 {s_t1}, {s_e1}, {160*1280}
s_add_u32 {s_t2}, {s_t2}, {s_t1}
s_mov_b32 {s_t0}, {(1<<32)//10+1}
''')
for i in range(5):
    T(f'''
    v_add_u32 {v_t1}, {64*i}, {v_lane}
    v_mul_hi_u32 {v_t2}, {v_t1}, {s_t0}
    v_mul_u32_u24 {v_t3}, 10, {v_t2}
    v_sub_u32 {v_t1}, {v_t1}, {v_t3}
    v_mul_u32_u24 {v_t2}, 1280, {v_t2}
    v_lshl_add_u32 {v_t2}, {v_t1}, 4, {v_t2}
    v_add_u32 v{2+i}, {s_t2}, {v_t2}
    ''')
T(f'''
s_mul_i32 {s_mW}, {s_w}, 25600
s_waitcnt lgkmcnt(0)
s_cmp_ge_u32 {s_rb}, 8
s_cselect_b32 s28, s58, s56
s_cselect_b32 s29, s59, s57
''')
wtok = {}
def wo_dma(b):
    T(f's_mov_b32 {s_t3}, {b*32*1280}')
    for i in range(5):
        T(f's_add_u32 m0, {s_mW}, {1024*(5*b+i)}')
        wtok[5 * b + i] = T.vm(f'buffer_load_dwordx4 v{2+i}, {sTMP}, {s_t3} offen lds')
wo_dma(0); wo_dma(1)
T(f'''
v_lshrrev_b32 {v_t1}, 4, {v_lane}
v_bfe_u32 {v_t2}, {v_lane}, 2, 2
v_and_b32 {v_t3}, 3, {v_lane}
v_mul_u32_u24 {v_t3}, 40, {v_t3}
v_add_u32 {v_t3}, {s_mW}, {v_t3}
v_mad_u32_u24 {v_t4}, {v_t1}, 40, {v_t2}
v_add_u32 {v_t4}, 16, {v_t4}
v_mul_u32_u24 {v_t4}, 160, {v_t4}
v_add_u32 v8, {v_t4}, {v_t3}
v_lshrrev_b32 {v_t4}, 1, {v_t1}
v_mad_u32_u24 {v_t2}, {v_t4}, 24, {v_t2}
v_and_b32 {v_t4}, 1, {v_t1}
v_lshl_add_u32 {v_t2}, {v_t4}, 3, {v_t2}
v_mul_u32_u24 {v_t2}, 160, {v_t2}
v_add_u32 v7, {v_t2}, {v_t3}
s_lshr_b32 {s_t0}, {s_rb}, 3
s_lshl_b32 {s_t0}, {s_t0}, 3
s_add_u32 {s_t0}, {s_t0}, {s_e0}
s_lshl_b32 {s_t0}, {s_t0}, 2
s_add_u32 {s_t0}, {s_t0}, {s_e1}
s_mul_i32 {s_stb}, {s_t0}, 25600
v_and_b32 v9, 15, {v_lane}
v_lshlrev_b32 v9, 4, v9
v_mul_u32_u24 v10, 1280, {v_t1}
v_add_u32 v10, v10, v9
v_cmp_eq_u32 vcc, 0, v9
v_lshlrev_b32 {v_t1}, 2, {v_t1}
s_lshl_b32 {s_rot}, {s_rb}, 2
s_add_u32 {s_rot}, {s_rot}, {s_w}
v_cndmask_b32 v11, {v_big}, {v_t1}, vcc
''')
stamp('', T)
setup2(T)
wo_dma(2)
stamp('', T)
for s_ in range(5):
    T.wait(wtok[min(24, (400 * (s_ + 1) - 1) // 64)])
    if s_ == 0:
        T(f'''
        s_barrier
        s_lshl_b32 {s_t0}, {s_rb}, 2
        buffer_store_dword {v_one}, {v_flag}, {sDBG}, {s_t0} offen sc1
        ''')
    for ct in range(5):
        f = 5 * s_ + ct
        for u in range(2):
            if s_ < 4: T(f'ds_read_b64_tr_b16 {vr(140+4*f+2*u,2)}, v7 offset:{(40*s_+4*u)*160+8*ct}')
            else: T(f'ds_read_b64_tr_b16 {vr(140+4*f+2*u,2)}, v8 offset:{640*u+8*ct}')
    if s_ + 3 < 5: wo_dma(s_ + 3)
    if s_ == 2: poll_issue(T, v_pres, v_zero, sDBG, '0')
    for ct in range(5):
        f = 5 * s_ + ct
        if f % 4 == 0: T(f's_add_u32 {s_t1}, {s_stb}, {WOF + f*1024}')
        tokw = T.vm(f'buffer_store_dwordx4 {vr(140+4*f,4)}, {v_l16}, {sWS}, {s_t1} offen offset:{(f%4)*1024} sc1')
    if s_ == 2: tokw2 = tokw
    if FINE: stamp('', T)
poll_check(T, v_pres, v_zero, sDBG, '0')
T.wait(tokw2)
T('s_barrier')
set_flag(T, v_flag, s_f1, 0)
stamp('', T)
GW = 224; GA = 48
T(f's_mul_i32 {s_t1}, {s_rot}, {32*1280}')
for j in range(5): T(f'buffer_load_dwordx4 {vr(GW+4*j,4)}, v9, {sWA}, 0 offen offset:{256*j}')
for i in range(8):
    for j in range(5): T(f'buffer_load_dwordx4 {vr(64+20*i+4*j,4)}, v10, {sX}, {s_t1} offen offset:{256*j}')
    T(f's_add_u32 {s_t1}, {s_t1}, {4*1280}')
    if i == 2:
        T.wait(tokw)
        T('s_barrier')
        set_flag(T, v_flag, s_f1, 8)
        stamp('', T)
poll_issue(T, v_pres, v_p2, sWS, s_F1A)
T(f's_lshl_b32 {s_rot}, {s_rot}, 7\ns_add_u32 {s_rot}, {s_rot}, {G_OFF}')
for i in range(8):
    T(f'v_mov_b32 v{GA+i}, 0')
    for k in range(20): T(f'v_dot2c_f32_bf16 v{GA+i}, v{64+20*i+k}, v{GW+k}')
poll_check(T, v_pres, v_p2, sWS, s_F1A)
wl_ = wo_loads(0, NA)
for g in wl_[:10]: T.l += g
for sh in (8, 4, 2, 1):
    for i in range(8): T(f'v_add_f32_dpp v{GA+i}, v{GA+i}, v{GA+i} row_ror:{sh} row_mask:0xf bank_mask:0xf')
for i in range(8): T(f'v_mul_f32 v{GA+i}, {f32(-math.log2(math.e))}, v{GA+i}')
for i in range(8): T(f'v_exp_f32 v{GA+i}, v{GA+i}')
for i in range(8): T(f'v_add_f32 v{GA+i}, 1.0, v{GA+i}')
for i in range(8): T(f'v_rcp_f32 v{GA+i}, v{GA+i}')
T.l += setup_late()
for i in range(8): tokg = T.vm(f'buffer_store_dword v{GA+i}, v11, {sWS}, {s_rot} offen offset:{16*i} sc1')
stamp('', T)
T.l += mask_far() + zero_pads()
for g in wl_[10:24]: T.l += g
T.wait(tokg)
T('s_barrier')
set_flag(T, v_flag, s_f1, 4)
for g in wl_[24:]: T.l += g
stamp('', T)
poll(T, v_pres, v_p1, sWS, s_F1A)
kv, _ = kvq_loads()
for g in kv: T.l += g
if NA < NWO1:
    for g in wo_loads(NA, NWO1): T.l += g
T('s_waitcnt vmcnt(0) lgkmcnt(0)\ns_barrier')
T.l += att_pre()
T(qka(0)); T(qkb(0))
T.l += mask_rest()[:8]
T('s_nop 7')
assert nstamp[0] <= nst_join
while nstamp[0] < nst_join: stamp('', T)
T('s_waitcnt lgkmcnt(0)')
T('s_branch L_join')

S.extend(T); S.extend(tail)
S('L_end:\ns_endpgm')

stats = []
body = finalize(S, stats)
hdr = open('cdna_kernels/%s.s.ref' % NAME).read().split('; Override')[0]
K = NAME + '_kernel'
txt = hdr + f'''; Generated by a hand-written generator script: one persistent workgroup per CU, phases chained by flags in d_ws.
; @launch grid=(256,1,1) block=(256,1,1) lds={LDS_BYTES}
.amdgcn_target "amdgcn-amd-amdhsa--gfx950"
.text
.globl {K}
.p2align 8
.type {K},@function
{K}:
''' + '\n'.join(body) + f'''
.section .rodata,"a"
.p2align 6
.amdhsa_kernel {K}
  .amdhsa_next_free_vgpr 512
  .amdhsa_next_free_sgpr 102
  .amdhsa_accum_offset 256
  .amdhsa_group_segment_fixed_size 0
  .amdhsa_kernarg_size 80
  .amdhsa_user_sgpr_count 2
  .amdhsa_user_sgpr_kernarg_segment_ptr 1
  .amdhsa_system_sgpr_workgroup_id_x 1
  .amdhsa_float_denorm_mode_32 3
.end_amdhsa_kernel
'''
open(OUT, 'w').write(txt)
print('instructions:', len(body), ' nops:', len(stats), sum(s[0] for s in stats), ' overflow slots', over, 'WS_SIZE', WS_SIZE)
if '--nops' in ARGS:
    for s in stats: print(s)
```

```python
import sys, math, struct
from fw import *

NAME = "gated_mix__sliding_block__sliding_local_dilated__prompt"
ARGS = sys.argv[1:]
STAMPS = '--stamps' in ARGS
FINE = '--fine' in ARGS
FINE2 = '--fine2' in ARGS
def opt(name, default):
    for a in ARGS:
        if a.startswith('--' + name + '='): return int(a.split('=')[1])
    return default
OUT = [a for a in ARGS if not a.startswith('--')]
OUT = OUT[0] if OUT else 'k.s'

GRP = 2048 * 16
QKV = [0, 240 * GRP]
O_OFF = 480 * GRP
OBR = 32 * 128 * 640
WOF = O_OFF + 2 * OBR
G_OFF = WOF + 64 * 25600
FLG = G_OFF + 8192
F1 = [FLG, FLG + 4, FLG + 8]
F2 = FLG + 32768
WS_SIZE = FLG + 65536
STAMP_OFF = WS_SIZE
BIG = 0x40000000
L_X = 65536
GS = 8192 + 64
L_KA = L_X + 16384; L_VA = L_KA + 3 * GS
L_VB = 131072 + 512; VBW = 4608
L_ONE = L_VB + 4 * VBW + ((L_VA + 3 * GS) % 256)
L_TAB = L_VB + 4 * VBW + 8192 + 256
LDS_BYTES = 160 * 1024
assert L_TAB + 1024 <= LDS_BYTES and L_VA + 3 * GS <= L_VB

def f32(x): return '0x%08x' % struct.unpack('<I', struct.pack('<f', x))[0]
QSCALE = (20 ** -0.5) * math.log2(math.e)
NEGINF = '0xff800000'

sX, sWA, sWB, sWS, sOUT, sDBG, sTMP = 's[4:7]', 's[8:11]', 's[12:15]', 's[16:19]', 's[20:23]', 's[24:27]', 's[28:31]'
s_xcd, s_t, s_rb, s_cb, s_w = 's32', 's33', 's34', 's35', 's36'
s_t0, s_t1, s_t2, s_t3 = 's37', 's38', 's39', 's40'
s_stb, s_scale, s_inv, s_mW, s_mX = 's41', 's42', 's43', 's44', 's45'
s_hd, s_r2, s_so, s_q0 = 's46', 's47', 's48', 's49'
s_cnt, s_f1, s_f2, s_ob, s_k1, s_wob = 's50', 's51', 's52', 's53', 's54', 's55'
SW0, SX0 = 60, 70
ST0 = 80
s_bF, s_bS, s_dF, s_dS, s_mK, s_mV, s_gb, s_rot = 's84', 's85', 's86', 's87', 's88', 's89', 's90', 's91'
s_e0, s_e1, s_e2, s_e3 = 's92', 's93', 's94', 's95'
s_F1A, s_F1B, s_F2, s_q0z, s_R, s_C = 's96', 's97', 's98', 's99', 's100', 's101'
ROWMAP = opt('rowmap', 0)
v_lane = 'v1'
VWD, VXD, VWR, VXR = 2, 6, 10, 12
v_dma, v_gad, v_kb0, v_k1 = 'v6', 'v7', 'v8', 'v9'
v_st, v_flag, v_one, v_pres, v_l16, v_big = 'v16', 'v17', 'v18', 'v19', 'v20', 'v21'
v_t1, v_t2, v_t3, v_t4, v_tmp, v_zero = 'v22', 'v23', 'v24', 'v25', 'v26', 'v27'
(v_p1, v_p2, v_p3, v_q4, v_qe, v_qo, v_k0, v_v, v_vb, v_vh, v_kb1, v_halo, v_mA, v_mB0, v_flagw, v_o4, v_o2, v_h, v_r, v_tabc) = ['v%d' % i for i in range(28, 48)]
WRING = 48
ACC = [64, 128]
XV = 192
E0, P0 = 48, 56
SB = [64, 192]; M_FAR, M_DIAG = 80, 208; QA0, QA1 = 96, 104; OA = [224, 240]
QB0, QB1, KB0 = 128, 136, 144
v_g = ['v156', 'v157']
MB_DIAG, MB_PREV, MB_PREV0 = 160, 168, 176
SP = [64, 192]; SD = [80, 208]; OB = [96, 112]
V4, V2, VRW, v_rr, v_out, v_p4 = 2, 6, 10, 'v13', 'v14', 'v15'
AC3 = 16; OF = [96, 176]
AK0, AK1, AV, AKB1 = 200, 208, 216, 232
VB = 200

def vr(b, n): return 'v[%d:%d]' % (b, b + n - 1)
def ar(b, n): return 'a[%d:%d]' % (b, b + n - 1)
mm = 'v_mfma_f32_32x32x16_bf16'

S = Stream()
tail = Stream()
nstamp = [0]; stamp_names = []
AMP = [a.split('=')[1].split(',') for a in ARGS if a.startswith('--amp=')]
AMP = AMP[0] if AMP else None
def stamp(name='', st=None):
    if AMP and name in AMP and st is None: S('s_memrealtime s[%d:%d]' % (ST0 + 2 * AMP.index(name), ST0 + 2 * AMP.index(name) + 1))
    if STAMPS:
        st = st or S
        k = nstamp[0]
        if k == 1:
            for i in range(56, 64): st('v_writelane_b32 v0, 0, %d' % i)
        if k > 0: st('v_writelane_b32 v0, s%d, %d' % (ST0 + 2 * ((k - 1) & 1), k - 1))
        st('s_memrealtime s[%d:%d]' % (ST0 + 2 * (k & 1), ST0 + 2 * (k & 1) + 1))
    stamp_names.append(name)
    nstamp[0] += 1
def st2(n):
    if FINE2: stamp(n)
nlab = [0]
def lab(p):
    nlab[0] += 1
    return 'L_%s_%d' % (p, nlab[0])

PIDX = {v_zero: 0, v_p1: 1, v_p2: 2, v_p3: 3, v_p4: 4}
def poll_issue(st, res, adr, srd, soff):
    st('buffer_load_dword %s, %s, %s, %s offen sc1' % (res, adr, srd, soff))
def poll_check(st, res, adr, srd, soff):
    l = lab('poll'); b = lab('back')
    st('v_cmp_ne_u32 vcc, 1, %s' % res)
    st('s_cbranch_vccnz %s' % l)
    st(b + ':')
    tail('@reset')
    tail(f'''
    {l}:
    s_mov_b32 {s_cnt}, 0
    {l}_a:
    buffer_load_dword {res}, {adr}, {srd}, {soff} offen sc1
    s_add_u32 {s_cnt}, {s_cnt}, 1
    {('v_writelane_b32 v0, %s, %d' % (s_cnt, 56 + PIDX[adr])) if STAMPS else ''}
    s_waitcnt vmcnt(0)
    v_cmp_ne_u32 vcc, 1, {res}
    s_cbranch_vccz {b}
    s_cmp_lt_u32 {s_cnt}, 0x40000
    s_cbranch_scc1 {l}_a
    s_branch {b}
    ''')
def poll(st, res, adr, srd, soff):
    poll_issue(st, res, adr, srd, soff); poll_check(st, res, adr, srd, soff)
def set_flag(st, vf, base, off):
    st(f'buffer_store_dword {v_one}, {vf}, {sWS}, {base} offen offset:{off} sc1')
def mk(fn, *a):
    st = Stream(); fn(st, *a); return st.l
def L(txt):
    st = Stream(); st(txt); return st.l

def setup2(st):
    st(f'''
    s_mov_b32 s14, {640*3840}
    s_mov_b32 s15, 0x20000
    s_mov_b32 s22, {2048*1280}
    s_mov_b32 s23, 0x20000
    s_mov_b32 {s_F1A}, {F1[0]}
    s_mov_b32 {s_F1B}, {F1[1]}
    s_mov_b32 {s_F2}, {F2}
    s_and_b32 {s_C}, {s_t}, 7
    s_lshr_b32 {s_t2}, {s_t}, 3
    s_lshl_b32 {s_t0}, {s_xcd}, 2
    s_add_u32 {s_R}, {s_t0}, {s_t2}
    s_mov_b32 {s_r2}, {s_xcd if ROWMAP else s_C}
    s_mov_b32 {s_hd}, {s_t if ROWMAP else s_R}
    s_lshl_b32 {s_q0}, {s_r2}, 8
    s_lshl_b32 {s_t0}, {s_w}, 6
    s_add_u32 {s_q0}, {s_q0}, {s_t0}
    s_mul_i32 {s_e0}, {s_hd}, 5
    s_lshr_b32 {s_e0}, {s_e0}, 1
    s_and_b32 {s_t3}, {s_hd}, 1
    s_add_u32 {s_e1}, {s_e0}, {s_t3}
    s_lshl_b32 {s_so}, {s_t3}, 3
    s_lshl_b32 {s_t3}, {s_t3}, 1
    s_add_u32 {s_e2}, {s_e0}, 2
    s_sub_u32 {s_e2}, {s_e2}, {s_t3}
    s_lshl_b32 {s_e1}, {s_e1}, 15
    s_lshl_b32 {s_e2}, {s_e2}, 15
    s_lshl_b32 {s_t0}, {s_q0}, 4
    s_add_u32 {s_bF}, {s_e1}, {s_t0}
    s_add_u32 {s_bS}, {s_e2}, {s_t0}
    s_lshl_b32 {s_e3}, {s_r2}, 1
    s_add_u32 {s_e3}, {s_e3}, {s_w}
    s_lshl_b32 {s_t0}, {s_e3}, 11
    s_add_u32 {s_dF}, {s_e1}, {s_t0}
    s_add_u32 {s_dS}, {s_e2}, {s_t0}
    s_lshl_b32 {s_mK}, {s_w}, 11
    s_mul_i32 {s_mV}, {s_w}, {VBW}
    s_add_u32 {s_mV}, {s_mV}, {L_VB}
    s_lshl_b32 {s_gb}, {s_q0}, 2
    s_add_u32 {s_gb}, {s_gb}, {G_OFF}
    s_lshl_b32 {s_f1}, {s_rb}, 11
    s_lshl_b32 {s_t0}, {s_cb}, 7
    s_add_u32 {s_f1}, {s_f1}, {s_t0}
    s_add_u32 {s_f1}, {s_f1}, {F1[0]}
    s_lshl_b32 {s_f2}, {s_r2}, 12
    s_lshl_b32 {s_t0}, {s_hd}, 7
    s_add_u32 {s_f2}, {s_f2}, {s_t0}
    s_lshl_b32 {s_t0}, {s_w}, 2
    s_add_u32 {s_f2}, {s_f2}, {s_t0}
    s_add_u32 {s_f2}, {s_f2}, {F2}
    s_lshl_b32 {s_ob}, {s_hd}, 7
    s_lshr_b32 {s_t0}, {s_q0}, 4
    s_add_u32 {s_ob}, {s_ob}, {s_t0}
    s_mul_i32 {s_ob}, {s_ob}, 640
    s_add_u32 {s_ob}, {s_ob}, {O_OFF}
    s_lshl_b32 {s_wob}, {s_C}, 2
    s_add_u32 {s_wob}, {s_wob}, {s_w}
    s_mul_i32 {s_wob}, {s_wob}, 25600
    v_and_b32 {v_zero}, 60, {v_lane}
    v_lshrrev_b32 {v_h}, 5, {v_lane}
    v_and_b32 {v_r}, 31, {v_lane}
    v_cmp_eq_u32 vcc, 0, {v_lane}
    v_bfe_u32 {v_t1}, {v_lane}, 2, 1
    v_lshl_add_u32 {v_t1}, {v_t1}, 1, {s_e0}
    v_cndmask_b32 {v_flagw}, {v_big}, 0, vcc
    v_lshrrev_b32 {v_t1}, 4, {v_t1}
    v_and_b32 {v_t2}, 3, {v_lane}
    v_min_u32 {v_t3}, 2, {v_t2}
    v_mad_u32_u24 {v_t4}, {v_t3}, 5, {v_t1}
    v_mad_u32_u24 {v_tmp}, {v_t2}, 5, {v_t1}
    v_min_u32 {v_tmp}, 15, {v_tmp}
    s_sub_u32 {s_t1}, {s_e3}, 2
    s_max_i32 {s_t1}, {s_t1}, 0
    s_lshl_b32 {s_t1}, {s_t1}, 11
    s_andn2_b32 {s_t2}, {s_q0}, 127
    s_lshl_b32 {s_t2}, {s_t2}, 4
    v_cmp_eq_u32 vcc, 0, {v_t2}
    v_mov_b32 {v_t1}, {s_t1}
    v_mov_b32 {v_t3}, {s_t2}
    v_cndmask_b32 {v_t1}, {v_t1}, {v_t3}, vcc
    v_lshl_add_u32 {v_p1}, {v_t4}, 7, {v_t1}
    s_sub_u32 {s_t1}, {s_q0}, 32
    s_max_i32 {s_t1}, {s_t1}, 0
    s_andn2_b32 {s_t1}, {s_t1}, 127
    s_lshl_b32 {s_t1}, {s_t1}, 4
    v_and_b32 {v_t2}, 8, {v_lane}
    v_cmp_eq_u32 vcc, 0, {v_t2}
    v_mov_b32 {v_t1}, {s_t1}
    v_and_b32 {v_t2}, 1, {v_lane}
    v_cndmask_b32 {v_t1}, {v_t1}, {v_t3}, vcc
    v_lshl_add_u32 {v_p3}, {v_tmp}, 7, {v_t1}
    s_lshl_b32 {s_t0}, {s_w}, 1
    s_lshr_b32 {s_t1}, {s_C}, 2
    s_add_u32 {s_t0}, {s_t0}, {s_t1}
    s_lshl_b32 {s_t0}, {s_t0}, 11
    s_add_u32 {s_t0}, {s_t0}, {15*128}
    v_lshl_add_u32 {v_p2}, {v_t2}, 14, {s_t0}
    v_add_u32 {v_t1}, 8, {v_p2}
    v_cndmask_b32 {v_p1}, {v_t1}, {v_p1}, vcc
    ''')
    st(f'''
    s_cmp_ge_u32 {s_e3}, 2
    s_cselect_b32 {s_inv}, 0, {BIG}
    s_cselect_b32 {s_t2}, 0x3f803f80, 0
    v_mov_b32 v128, {s_t2}
    v_mov_b32 v129, {s_t2}
    v_mov_b32 v130, {s_t2}
    v_mov_b32 v131, {s_t2}
    s_add_u32 {s_t1}, {s_mK}, {L_ONE}
    v_add_u32 {v_t1}, {s_t1}, {v_l16}
    ds_write_b128 {v_t1}, v[128:131]
    ds_write_b128 {v_t1}, v[128:131] offset:1024
    ''')
    st(f'''
    v_lshlrev_b32 {v_q4}, 15, {v_h}
    v_lshl_add_u32 {v_q4}, {v_r}, 4, {v_q4}
    v_cmp_eq_u32 vcc, 0, {v_h}
    v_lshl_add_u32 {v_t1}, {v_r}, 4, {s_so}
    s_cmp_eq_u32 {s_q0}, 0
    s_cselect_b32 {s_q0z}, {BIG}, 0
    v_cndmask_b32 {v_qe}, {v_big}, {v_t1}, vcc
    v_cndmask_b32 {v_qo}, {v_t1}, {v_big}, vcc
    v_mov_b32 {v_t2}, {s_q0z}
    v_cndmask_b32 {v_t2}, 0, {v_t2}, vcc
    v_add3_u32 {v_kb1}, {v_t2}, {v_l16}, {s_so}
    v_lshrrev_b32 {v_t1}, 4, {v_r}
    v_mul_u32_u24 {v_t1}, 640, {v_t1}
    v_and_b32 {v_t2}, 15, {v_lane}
    v_lshl_add_u32 {v_t3}, {v_h}, 8, {v_t1}
    v_lshl_add_u32 {v_o4}, {v_t2}, 4, {v_t3}
    v_lshl_add_u32 {v_t3}, {v_t2}, 3, {v_t1}
    v_add_u32 {v_t3}, 512, {v_t3}
    v_cndmask_b32 {v_o2}, {v_big}, {v_t3}, vcc
    v_lshrrev_b32 {v_t1}, 4, {v_lane}
    v_lshl_add_u32 {v_t3}, {v_t1}, 15, {s_bF}
    v_cmp_eq_u32 vcc, 2, {v_t1}
    v_mov_b32 {v_t4}, {s_bS}
    s_add_u32 {s_t3}, {s_q0z}, {QKV[1] + 160*GRP - 256}
    v_cndmask_b32 {v_t3}, {v_t3}, {v_t4}, vcc
    v_cmp_eq_u32 vcc, 3, {v_t1}
    v_lshl_add_u32 {v_t3}, {v_t2}, 4, {v_t3}
    v_add_u32 {v_t3}, {s_t3}, {v_t3}
    v_cndmask_b32 {v_halo}, {v_t3}, {v_big}, vcc
    ''')
    st(f'''
    s_lshl_b32 {s_t0}, {s_w}, 10
    v_mul_u32_u24 {v_t1}, {GS}, {v_h}
    v_lshl_add_u32 {v_t1}, {v_r}, 4, {v_t1}
    s_add_u32 {s_t1}, {s_t0}, {L_KA}
    v_add_u32 {v_k0}, {s_t1}, {v_t1}
    s_add_u32 {s_k1}, {s_t0}, {L_KA + 2*GS}
    s_add_u32 {s_k1}, {s_k1}, {s_so}
    v_bfe_u32 {v_t1}, {v_lane}, 2, 2
    v_lshl_add_u32 {v_t1}, {v_h}, 2, {v_t1}
    v_lshlrev_b32 {v_t1}, 4, {v_t1}
    v_and_b32 {v_pres}, 16, {v_lane}
    v_cmp_eq_u32 vcc, 0, {v_pres}
    v_and_b32 {v_t2}, 1, {v_lane}
    v_bfe_u32 {v_t3}, {v_lane}, 1, 1
    v_add_u32 {v_t4}, 2, {v_t3}
    v_lshlrev_b32 {v_t3}, 3, {v_t3}
    v_mov_b32 {v_tmp}, {s_so}
    v_cndmask_b32 {v_t2}, {v_t4}, {v_t2}, vcc
    v_cndmask_b32 {v_t3}, {v_tmp}, {v_t3}, vcc
    v_cmp_eq_u32 vcc, 3, {v_t2}
    v_add_u32 {v_t1}, {v_t1}, {v_t3}
    s_add_u32 {s_t1}, {s_t0}, {L_VA}
    v_mul_u32_u24 {v_t3}, {GS}, {v_t2}
    v_add3_u32 {v_v}, {v_t1}, {v_t3}, {s_t1}
    v_mul_u32_u24 {v_t3}, 1088, {v_t2}
    v_add3_u32 {v_vb}, {v_t1}, {v_t3}, {s_mV}
    s_add_u32 {s_t1}, {s_mV}, {3*1088}
    v_lshlrev_b32 {v_t3}, 8, {v_t2}
    v_add3_u32 {v_vh}, {v_t1}, {v_t3}, {s_t1}
    s_add_u32 {s_t1}, {s_t0}, {L_ONE}
    v_add_u32 {v_t3}, {s_t1}, {v_t1}
    v_add_u32 {v_t1}, {L_ONE + 4096}, {v_t1}
    v_cndmask_b32 {v_v}, {v_v}, {v_t3}, vcc
    v_cndmask_b32 {v_vb}, {v_vb}, {v_t1}, vcc
    v_cndmask_b32 {v_vh}, {v_vh}, {v_t1}, vcc
    ''')
    mk_ = [0, 0, 0, 0]
    for e in range(256):
        ok = (e - 32 <= 0) if e < 64 else (e - 96 > 0) if e < 128 else (0 <= 191 - e <= 14 and (191 - e) % 2 == 0)
        if ok: mk_[e >> 6] |= 1 << (e & 63)
    assert mk_[3] == 0 and mk_[1] & 0xffffffff == 0 and mk_[2] & 0xffffffff == 0
    st(f'''
    s_cmp_eq_u32 {s_w}, 0
    s_cselect_b32 s38, 0x{mk_[0] & 0xffffffff:x}, 0
    s_cselect_b32 s39, 0x{mk_[0] >> 32:x}, 0
    s_cmp_eq_u32 {s_w}, 1
    s_cselect_b32 s39, 0x{mk_[1] >> 32:x}, s39
    s_cmp_eq_u32 {s_w}, 2
    s_cselect_b32 s39, 0x{mk_[2] >> 32:x}, s39
    v_mov_b32 {v_tmp}, {NEGINF}
    s_lshl_b32 {s_t0}, {s_w}, 8
    s_add_u32 {s_t0}, {s_t0}, {L_TAB}
    v_cndmask_b32 {v_tmp}, {v_tmp}, 0, s[38:39]
    v_lshl_add_u32 {v_t1}, {v_lane}, 2, {s_t0}
    ds_write_b32 {v_t1}, {v_tmp}
    v_lshlrev_b32 {v_t1}, 2, {v_h}
    v_sub_u32 {v_t1}, {v_t1}, {v_r}
    v_lshlrev_b32 {v_t1}, 2, {v_t1}
    v_add_u32 {v_mA}, {L_TAB + 128}, {v_t1}
    s_cmp_eq_u32 {s_q0}, 0
    s_cselect_b64 vcc, -1, 0
    v_mov_b32 {v_t1}, {L_TAB + 4*64}
    v_cndmask_b32 {v_mB0}, {v_mA}, {v_t1}, vcc
    ''')
def setup_late():
    return L(f'''
    v_add_u32 {v_dma}, {s_inv}, {v_l16}
    v_lshlrev_b32 {v_gad}, 2, {v_r}
    v_add_u32 {v_kb0}, {s_q0z}, {v_q4}
    v_add_u32 {v_k1}, {s_k1}, {v_l16}
    ''')
def zero_pads():
    return L('\n'.join(f'v_accvgpr_write_b32 a{b}, 0' for b in (AK1 + 2, AK1 + 3, AK1 + 6, AK1 + 7, AKB1 + 2, AKB1 + 3, AKB1 + 6, AKB1 + 7))
             + f'\nv_mov_b32 v{QA1+8}, 0\nv_mov_b32 v{QA1+9}, 0')

def mask_reads(reg, adr, base, a0=0):
    l = []
    for a in range(a0, 4):
        for b in (0, 2):
            k = base + 8 * a + b
            l.append(Ins(f'ds_read2_b32 {vr(reg+4*a+b,2)}, {adr} offset0:{k} offset1:{k+1}'))
    return l
def mask_far(): return mask_reads(M_FAR, v_mA, 64)
def mask_rest(): return mask_reads(M_DIAG, v_mA, 0) + mask_reads(MB_DIAG, v_mA, 159) + mask_reads(MB_PREV, v_mA, 127, 2) + mask_reads(MB_PREV0, v_mB0, 127, 2)

def kvq_loads():
    g = []
    for ty in (1, 2):
        for gi in range(3):
            g.append(L(f's_add_u32 m0, {s_mK}, {(L_KA if ty == 1 else L_VA) + gi*GS}\n'
                       f's_add_u32 {s_e1}, {s_dS if gi == 2 else s_dF}, {QKV[0] + (80*ty + (gi if gi < 2 else 0))*GRP - 4096}'))
            g.append(L(f'buffer_load_dwordx4 {v_dma}, {sWS}, {s_e1} offen sc1 lds'))
            st = Stream()
            tok = st.vm(f'buffer_load_dwordx4 {v_dma}, {sWS}, {s_e1} offen offset:1024 sc1 lds')
            g.append(st.l)
    for x in (f'buffer_load_dwordx4 {vr(QA0,4)}, {v_q4}, {sWS}, {s_bF} offen sc1',
              f'buffer_load_dwordx2 {vr(QA1,2)}, {v_qe}, {sWS}, {s_bS} offen sc1',
              f'buffer_load_dwordx2 {vr(QA1+2,2)}, {v_qo}, {sWS}, {s_bS} offen sc1',
              f'buffer_load_dwordx4 {vr(QA0+4,4)}, {v_q4}, {sWS}, {s_bF} offen offset:512 sc1',
              f'buffer_load_dwordx2 {vr(QA1+4,2)}, {v_qe}, {sWS}, {s_bS} offen offset:512 sc1',
              f'buffer_load_dwordx2 {vr(QA1+6,2)}, {v_qo}, {sWS}, {s_bS} offen offset:512 sc1'):
        g.append([Ins(x)])
    return g, tok
def wo_loads(f0, f1):
    g = []
    for F in range(f0, f1):
        s_, br, ct = F // 10, (F // 5) & 1, F % 5
        if ct % 4 == 0 or F == f0: g.append(L(f's_add_u32 {s_e2}, {s_wob}, {WOF + br*32*25600 + (5*s_ + (ct & 4))*1024}'))
        g.append(L(f'buffer_load_dwordx4 {ar(4*F,4)}, {v_l16}, {sWS}, {s_e2} offen offset:{(ct%4)*1024} sc1'))
    return g

steps = [(0, 0)] + [(j, q) for j in range(1, 9) for q in range(2)] + [(9, 1)]
def k0_read(j): return Ins(f'ds_read_b128 {ar(AK0+4*(j&1),4)}, {v_k0} offset:{512*j}')
def k1_read(j): return Ins(f'ds_read_b64 {ar(AK1+4*((j>>1)&1),2)}, {v_k1} offset:{512*j}')
def v_read(j, kk, u): return Ins(f'ds_read_b64_tr_b16 {ar(AV+8*(j&1)+4*kk+2*u,2)}, {v_v} offset:{512*j+256*kk+128*u}')
def qka(n):
    j, q = steps[n]
    c = vr(M_FAR, 16) if j == q else vr(M_DIAG, 16) if j == 8 + q else '0'
    return f'{mm} {vr(SB[n&1],16)}, {ar(AK0+4*(j&1),4)}, {vr(QA0+4*q,4)}, {c}'
def qkb(n):
    j, q = steps[n]
    return f'{mm} {vr(SB[n&1],16)}, {ar(AK1+4*((j>>1)&1),4)}, {vr(QA1+4*q+2*(j&1),4)}, {vr(SB[n&1],16)}'
def pv(n, kk):
    j, q = steps[n]
    c = '0' if (j == q and kk == 0) else vr(OA[q], 16)
    return f'{mm} {vr(OA[q],16)}, {ar(AV+8*(j&1)+4*kk,4)}, {vr(P0+4*kk,4)}, {c}'
def exps(n, g): return [f'v_exp_f32 v{E0+4*(g&1)+i}, v{SB[n&1]+4*g+i}' for i in range(4)]
def cvts(g): return [f'v_cvt_pk_bf16_f32 v{P0+2*g+i}, v{E0+4*(g&1)+2*i}, v{E0+4*(g&1)+2*i+1}' for i in range(2)]
def att_pre(): return [k0_read(0), k1_read(0), k0_read(1)] + [v_read(0, kk, u) for kk in range(2) for u in range(2)]

S(f'''
s_cmp_ge_u32 s2, 0x100
s_cbranch_scc1 L_end
s_load_dwordx2 s[4:5], s[0:1], 0
s_load_dwordx2 s[8:9], s[0:1], 8
s_load_dwordx2 s[12:13], s[0:1], 32
s_load_dwordx2 s[16:17], s[0:1], 72
s_load_dwordx2 s[20:21], s[0:1], 56
s_load_dwordx2 s[24:25], s[0:1], 64
''')
stamp('start')
if opt('cpf', 1):
    S(f'''
    s_getpc_b64 s[28:29]
    L_pc:
    s_mov_b32 s30, L_end-L_pc
    s_mov_b32 s31, 0x20000
    s_andn2_b32 {s_t0}, s2, 7
    v_min_u32 v132, 7, v0
    v_add_lshl_u32 v132, v132, {s_t0}, 7
    buffer_load_dword v133, v132, {sTMP}, 0 offen
    ''')
S(f'''
v_lshrrev_b32 {v_tmp}, 6, v0
v_and_b32 {v_lane}, 63, v0
v_readfirstlane_b32 {s_w}, {v_tmp}
s_and_b32 {s_xcd}, s2, 7
s_lshr_b32 {s_t}, s2, 3
s_and_b32 {s_t0}, {s_xcd}, 1
s_lshl_b32 {s_t0}, {s_t0}, 3
s_and_b32 {s_t1}, {s_t}, 7
s_add_u32 {s_rb}, {s_t0}, {s_t1}
s_lshr_b32 {s_t0}, {s_xcd}, 1
s_lshl_b32 {s_t0}, {s_t0}, 2
s_lshr_b32 {s_t2}, {s_t}, 3
s_add_u32 {s_cb}, {s_t0}, {s_t2}
s_mov_b32 s6, {2048*1280}
s_mov_b32 s7, 0x20000
s_mov_b32 s11, 0x20000
s_cmp_eq_u32 {s_cb}, 15
s_cbranch_scc1 L_spare
s_mov_b32 s10, {640*3840}
s_lshl_b32 {s_rot}, {s_t2}, 1
s_add_u32 {s_rot}, {s_rot}, {s_t1}
s_and_b32 {s_rot}, {s_rot}, 7
s_mul_i32 {s_rot}, {s_rot}, 5
s_lshr_b32 {s_rot}, {s_rot}, 2
''')
def rot(st, n):
    if n >= 2: st(f's_cmp_eq_u32 {s_rot}, 10\ns_cselect_b32 {s_rot}, 0, {s_rot}')
    st(f'''
    s_mul_i32 s{SW0+n}, {s_rot}, {64*3840}
    s_lshl_b32 s{SX0+n}, {s_rot}, 7
    s_add_u32 {s_rot}, {s_rot}, 1
    ''')
rot(S, 0)
S(f'''
v_lshrrev_b32 {v_t1}, 4, {v_lane}
v_lshrrev_b32 {v_t2}, 3, {v_lane}
v_mul_u32_u24 {v_t2}, 1280, {v_t2}
v_and_b32 {v_t3}, 7, {v_lane}
v_xor_b32 {v_t3}, {v_t3}, {v_t1}
s_lshl_b32 {s_t2}, {s_rb}, 2
s_add_u32 {s_t2}, {s_t2}, {s_w}
s_mul_i32 {s_t2}, {s_t2}, {32*1280}
v_add_u32 {v_t2}, {s_t2}, {v_t2}
v_lshl_add_u32 v{VXD}, {v_t3}, 4, {v_t2}
v_xor_b32 {v_t3}, 4, {v_t3}
v_lshl_add_u32 v{VXD+1}, {v_t3}, 4, {v_t2}
v_add_u32 v{VXD+2}, {2*(8*1280-1024)}, v{VXD}
v_add_u32 v{VXD+3}, {3*(8*1280-1024)}, v{VXD+1}
v_add_u32 v{VXD+1}, {8*1280-1024}, v{VXD+1}
s_lshl_b32 {s_mW}, {s_w}, 12
s_add_u32 {s_mX}, {s_mW}, {L_X}
v_and_b32 {v_t2}, 15, {v_lane}
v_lshlrev_b32 {v_t3}, 2, {v_t1}
v_xor_b32 {v_t2}, {v_t2}, {v_t3}
v_mul_u32_u24 {v_t3}, 3840, {v_t1}
v_lshl_add_u32 {v_t3}, {v_t2}, 4, {v_t3}
s_mul_i32 {s_t1}, {s_w}, {16*3840}
s_lshl_b32 {s_t2}, {s_cb}, 8
s_add_u32 {s_t1}, {s_t1}, {s_t2}
v_add_u32 v{VWD}, {s_t1}, {v_t3}
''')
for i in range(1, 4):
    S(f'v_add_u32 v{VWD+i}, {i*(4*3840-1024)}, v{VWD}')
rot(S, 1)
S('s_waitcnt lgkmcnt(0)')

dma_tok = {}
WSLOT = [n % 4 for n in range(10)] + [2, 6, 3, 7, 0, 4, 1, 2, 3, 0]
WISS = {n: n - 2 for n in range(2, 11)}
WISS.update({11: 8, 12: 9, 13: 9, 14: 10, 15: 10, 16: 11, 17: 12, 18: 14, 19: 16})
CTM = opt('ctm', 4)
def dma_stage(n):
    p, ns, slot = n // 10, n % 10, WSLOT[n]
    g = []
    if p == 0:
        g.append(L(f's_add_u32 m0, {s_mX}, {slot*16384}'))
        for i in range(4):
            g.append(L(f'buffer_load_dwordx4 v{VXD+i}, {sX}, s{SX0+ns} offen offset:{1024*i} lds'))
        g[-1] += L(f's_add_u32 m0, {s_mW}, {slot*16384}')
    else:
        g.append(L(f's_add_u32 m0, {s_mW}, {slot*16384}'))
    for i in range(4):
        st = Stream()
        dma_tok[n] = st.vm(f'buffer_load_dwordx4 v{VWD+i}, {sWB if p else sWA}, s{SW0+ns} offen offset:{1024*i} lds')
        g.append(st.l)
    return g

def common_consts(st):
    st(f'''
    s_mov_b32 s18, {WS_SIZE + (65536 if STAMPS else 0)}
    s_mov_b32 s19, 0x20000
    s_mov_b32 s26, 256
    s_mov_b32 s27, 0x20000
    s_mov_b32 s31, 0x20000
    v_cmp_eq_u32 vcc, 0, v0
    v_mov_b32 {v_big}, {BIG}
    v_mov_b32 {v_one}, 1
    v_lshlrev_b32 {v_l16}, 4, {v_lane}
    v_cndmask_b32 {v_flag}, {v_big}, 0, vcc
    ''')

for g in dma_stage(0): S.extend(g)
common_consts(S)
stamp('iss0')
d1 = dma_stage(1)
PRE = opt('pre', 5)
for g in d1[:PRE]: S.extend(g)
pre = Stream()
for n in range(2, 10): rot(pre, n)
pre(f'''
v_lshrrev_b32 {v_t1}, 5, {v_lane}
v_bfe_u32 {v_t2}, {v_lane}, 2, 2
v_lshl_add_u32 {v_t3}, {v_t1}, 3, {v_t2}
v_lshlrev_b32 {v_t3}, 8, {v_t3}
v_bfe_u32 {v_tmp}, {v_lane}, 4, 1
v_lshl_add_u32 {v_t3}, {v_tmp}, 5, {v_t3}
v_and_b32 {v_tmp}, 1, {v_lane}
v_lshl_add_u32 {v_t3}, {v_tmp}, 4, {v_t3}
v_bfe_u32 {v_tmp}, {v_lane}, 1, 1
v_lshl_add_u32 {v_t3}, {v_tmp}, 3, {v_t3}
v_lshl_add_u32 {v_t3}, {v_t2}, 6, {v_t3}
s_and_b32 {s_t0}, {s_w}, 1
s_lshr_b32 {s_t1}, {s_w}, 1
s_lshl_b32 {s_t2}, {s_t0}, 7
v_xor_b32 v{VWR}, {s_t2}, {v_t3}
v_xor_b32 v{VWR+1}, 64, v{VWR}
v_and_b32 {v_t2}, 31, {v_lane}
v_bfe_u32 {v_t3}, {v_lane}, 1, 3
v_xor_b32 {v_t3}, {v_t3}, {v_t1}
v_lshlrev_b32 {v_t3}, 4, {v_t3}
v_lshl_add_u32 {v_t3}, {v_t2}, 7, {v_t3}
s_lshl_b32 {s_t2}, {s_t1}, 13
s_add_u32 {s_t2}, {s_t2}, {L_X}
v_add_u32 v{VXR}, {s_t2}, {v_t3}
''')
for s_ in range(1, 4):
    pre(f'v_xor_b32 v{VXR+s_}, {s_*32}, v{VXR}')
pre(f'''
s_lshl_b32 {s_t2}, {s_rb}, 1
s_add_u32 {s_t2}, {s_t2}, {s_t1}
s_lshl_b32 {s_t2}, {s_t2}, 10
v_lshlrev_b32 {v_t1}, 15, {v_t1}
v_lshl_add_u32 {v_t1}, {v_t2}, 4, {v_t1}
v_add_u32 {v_st}, {s_t2}, {v_t1}
s_lshl_b32 {s_stb}, {s_cb}, 1
s_add_u32 {s_stb}, {s_stb}, {s_t0}
s_lshl_b32 {s_stb}, {s_stb}, 18
s_cmp_lt_u32 {s_cb}, 5
s_cselect_b32 {s_scale}, {f32(QSCALE)}, 1.0
''')
setup2(pre)
pre = atomize(pre.l)
SPLIT = min(opt('split', 1000), len(pre))
pre, su_post = pre[:SPLIT], pre[SPLIT:]
if d1[PRE:]: weave(pre, d1[PRE:], opt('pre0', 20), opt('pre1', 120))
for g in pre: S.extend(g)
stamp('setup')

seq = []
def tilewise(ns, k2):
    ns = list(ns); m = len(ns) - k2
    l = [(n, s_, 0, rt) for n in ns for s_ in range(4) for rt in range(2)]
    l += [(n, s_, 1, rt) for n in ns[:m] for s_ in range(4) for rt in range(2)]
    for rt in range(2): l += [(n, s_, 1, rt) for n in ns[m:] for s_ in range(4)]
    return l
for n in range(20 - CTM):
    if n == 9: seq += tilewise([9], 0)
    else: seq += [(n, s_, c, rt) for s_ in range(4) for c in range(2) for rt in range(2)]
seq += tilewise(range(20 - CTM, 20), opt('ct2', 2))
NG = len(seq)
def xreg(n, s_, rt):
    n %= 10
    return ar(32 * n + 8 * s_ + 4 * rt, 4) if n < 8 else vr(XV + 32 * (n - 8) + 8 * s_ + 4 * rt, 4)
BO = opt('bo', 5)
firstuse = {}; lastuse = {}
for k, e in enumerate(seq): firstuse.setdefault(e[0], k); lastuse[e[0]] = k
BARS = list(range(1, 21 - CTM)) + ([19] if CTM > 2 else [])
def bar_of(n): return max(b for b in [0] + BARS if b <= n)
def bar_gap(n): return firstuse[bar_of(n)] - BO
for n in range(4, 20):
    prev = [m for m in range(n) if WSLOT[m] == WSLOT[n] or (m < 10 and WSLOT[n] == 4 + m % 4)]
    assert WISS[n] in BARS and lastuse[prev[-1]] < bar_gap(WISS[n]), n
frag = []; fidx = []
for k, e in enumerate(seq):
    if k == 0 or seq[k - 1][:3] != e[:3]: frag.append([e[:3], k, k])
    frag[-1][2] = k; fidx.append(len(frag) - 1)
reads = []; xseen = set(); first_reads = []
for j, ((n, s_, c), u0, u1) in enumerate(frag):
    lo = max(frag[j - 4][2] if j >= 4 else -1, bar_gap(n))
    sl_ = WSLOT[n]; buf = WRING + 4 * (j & 3)
    l = [Ins(f'ds_read_b64_tr_b16 {vr(buf+2*u,2)}, v{(VXR if sl_ >= 4 else VWR)+c} offset:{(sl_%4)*16384+(16*s_+4*u)*256}') for u in range(2)]
    if n < 10 and (n, s_) not in xseen:
        xseen.add((n, s_))
        l = [Ins(f'ds_read_b128 {xreg(n,s_,rt)}, v{VXR+s_} offset:{(n%4)*16384+rt*4096}') for rt in range(2)] + l
    if j < 2: first_reads += l
    else: reads += [Item(x, lo, u0 - (3 if u0 - 3 >= lo else 2)) for x in l]
mf = []
for k, (n, s_, c, rt) in enumerate(seq):
    acc = vr(ACC[n // 10] + 16 * (2 * c + rt), 16)
    mf.append(Ins(f'{mm} {acc}, {vr(WRING+4*(fidx[k]&3),4)}, {xreg(n,s_,rt)}, {"0" if n % 10 == 0 and s_ == 0 else acc}'))
done = {}
for k, (n, s_, c, rt) in enumerate(seq): done[(n // 10, 2 * c + rt)] = k
def epi1_tile(p, T):
    g = []; c, rt = T >> 1, T & 1
    for u in range(2):
        b = ACC[p] + 16 * T + 8 * u
        g.append(L(f's_add_u32 {s_e0}, {s_stb}, {QKV[p]+(4*c+2*u)*GRP}'))
        for i in range(8): g.append(L(f'v_mul_f32 v{b+i}, {s_scale}, v{b+i}'))
        for i in range(4): g.append(L(f'v_cvt_pk_bf16_f32 v{b+i}, v{b+2*i}, v{b+2*i+1}'))
        st = Stream(); tok = st.vm(f'buffer_store_dwordx4 {vr(b,4)}, {v_st}, {sWS}, {s_e0} offen offset:{512*rt} sc1')
        g.append(st.l)
    return g, tok

cap = [6 - (1 if k + 1 < NG and fidx[k + 1] != fidx[k] else 0) for k in range(NG)]
fixed = {}
FLAGA = opt('flagA', 14)
for n in BARS:
    fixed[bar_gap(n)] = [('BAR', n)]; cap[bar_gap(n)] -= 2 + (3.5 if n == FLAGA else 0)
dmas = []
for b in range(0, 17):
    l = [g for n in range(2, 20) if WISS[n] == b for g in dma_stage(n)]
    if l:
        lo = max(bar_gap(b), 0)
        dmas += paced(l, lo, lo + (opt('dsp', 14) if len(l) > 5 else 7), 2)
KV0 = opt('kv0', 262); KV1 = opt('kv1', 290); KVB = opt('kvb', 312)
assert KV0 > bar_gap(16) + 9
kv, tokKV = kvq_loads()
dmas += [Item(mk(poll_check, v_pres, v_p1, sWS, s_F1A) + [('ST', 'pc1')], KV0 - 1, KV0 - 1)] + paced(kv, KV0, KV1, 2)
epi = []
EA1 = opt('epiAend', 196)
for T in range(4):
    g, tokA = epi1_tile(0, T)
    lo = done[(0, T)] + 3
    it = asap(g, lo, lo + 1)
    for i, x in enumerate(it): x.hi = max(lo, 154 + (28 * T + i) * (EA1 - 154) // 112) + 2
    epi += it
for T in range(3):
    g, tokB = epi1_tile(1, T)
    lo = done[(1, T)] + 3
    it = asap(g, lo, lo + 1)
    e0 = done[(1, 0)] + 3; e1 = done[(1, 2)] + 3
    for i, x in enumerate(it): x.hi = max(lo, e0 + (28 * T + i) * (e1 - e0) // 56) + 1 if T < 2 else NG
    epi += it
NWO1 = opt('nwo1', 12); NA = min(NWO1, opt('na', 30)); assert NA <= 30
WO0 = opt('wo0', 222); WO1 = opt('wo1', 258)
misc = []
if su_post: misc += paced(su_post, 0, 70, 4)
misc += [Item(mk(poll_issue, v_pres, v_zero, sDBG, '0'), 80, 84), Item(mk(poll_check, v_pres, v_zero, sDBG, '0'), 120, 124)]
misc += paced(setup_late(), 130, 140, 4)
if NA: misc += [Item(mk(poll_issue, v_pres, v_p2, sWS, s_F1A), opt('p2i', 148), opt('p2i', 148) + 2)]
misc += paced([Ins(f'v_add_u32 v{VXR+c}, {L_X}, v{VWR+c}') for c in range(2)], 156, 160, 3)
if NA: misc += [Item(mk(poll_check, v_pres, v_p2, sWS, s_F1A) + [('ST', 'pc2')], WO0 - 1, WO0 - 1)]
wl = paced(wo_loads(0, NA), WO0, WO1, 3) if NA else []
P1I = KV0 - opt('p1d', 20)
misc += [x for x in wl if x.lo < P1I] + [Item(mk(poll_issue, v_pres, v_p1, sWS, s_F1A), P1I, P1I + 2)] + [x for x in wl if x.lo >= P1I]
if NA < NWO1: misc += paced(wo_loads(NA, NWO1), KV1, NG - 2, 2)
misc2 = paced(mask_far(), 230, 250, 4) + paced(zero_pads(), lastuse[17] + 1, lastuse[17] + 6, 2)
st = Stream(); st.wait(tokKV); st('s_barrier'); fixed[KVB] = st.l + [('ST', 'kvb')]; cap[KVB] -= 2
misc2 += paced(att_pre(), KVB, NG - 2, 1)
rep_ = []
gaps, over = schedule(NG, cap, [reads, dmas, epi, misc, misc2], rep_)
if '--sched' in ARGS:
    for n in range(20): print(n, ' '.join('%4.1f' % x for x in rep_[16 * n:16 * n + 16]))
last_def = {}; last_use = {}
for k, m in enumerate(mf):
    for r in m.defs: last_def[r] = k
    for r in m.srcab: last_use[r] = k
for k, g in enumerate(gaps):
    for it in g:
        if isinstance(it, tuple): continue
        if it.kind in ('valu', 'vm') or (it.kind == 'ds' and k > 200):
            for r in it.uses | it.defs: assert last_def.get(r, -1) <= k or k < 150, (k, it.text)
            if 'tr_b16 v' not in it.text:
                for r in it.defs: assert last_use.get(r, -1) <= k, (k, it.text)

S.wait(dma_tok[0]); S('s_barrier')
stamp('first')
S.l += first_reads
for k in range(NG):
    if k + 1 < NG and fidx[k + 1] == fidx[k]: S.use(mf[k].srcab | mf[k + 1].srcab)
    S.l.append(mf[k])
    if opt('slow', 0) and k < 160: S('s_nop %d' % opt('slow', 0))
    for it in fixed.get(k, []) + gaps[k]:
        if isinstance(it, tuple) and it[0] == 'ST':
            if FINE: stamp(it[1])
        elif isinstance(it, tuple):
            n2 = it[1]
            tk = [dma_tok[m] for m in range(20) if bar_of(m) == n2]
            if n2 == FLAGA: tk.append(tokA)
            S.wait(*tk)
            S('s_barrier')
            if n2 == FLAGA: set_flag(S, v_flag, s_f1, 0)
            if FINE or n2 in (10, 14, 16): stamp('b%d' % n2)
        else:
            S.l.append(it)
stamp('p1end')
S(qka(0)); S(qkb(0))
mrest = mask_rest()
S.l += mrest[:8]
g, tokB = epi1_tile(1, 3)
for x in g: S.l += x
S('L_join:')
stamp('join')
nst_join = nstamp[0] - 1

N = len(steps)
groups = []
for n in range(N):
    for g in range(4):
        st = Stream()
        if g == 0 and n + 1 < N: st(qka(n + 1))
        if g == 1 and n > 0: st(pv(n - 1, 1))
        if g == 2 and n + 1 < N: st(qkb(n + 1))
        if g == 3: st(pv(n, 0))
        if g > 0 or n > 0:
            for x in cvts((g - 1) & 3): st(x)
        for x in exps(n, g): st(x)
        groups.append(st.l)
first = {}
for n, (j, q) in enumerate(steps): first.setdefault(j, n)
last = {j: n for n, (j, q) in enumerate(steps)}
for j in range(1, 10):
    if j >= 2: groups[4 * max(last[j-2] - 1, 0) + 1].append(k0_read(j))
    if j % 2 == 0: groups[4 * max(first[j] - 3, 0) + 0].append(k1_read(j))
    for kk in range(2):
        for u in range(2):
            base = 4 * (last[j-2] + 1) + 1 if j >= 2 else 0
            groups[base + 2 * kk + u].append(v_read(j, kk, u))
weave(groups, mrest[8:], 4, 36)
FB = opt('fb', 5)
st = Stream(); st.wait(tokB); st('s_barrier'); set_flag(st, v_flag, s_f1, 4); groups[4 * FB - 1] += st.l
P3S = opt('p3s', 12); P3D = opt('p3d', 2)
NWO2 = opt('nwo2', 50)
NWOM = min(NWO2, opt('nwom', 42))
if NWOM > NWO1: weave(groups, wo_loads(NWO1, NWOM), 1, 4 * (P3S - P3D) - 1)
if NWO2 > NWOM: weave(groups, wo_loads(NWOM, NWO2), 4 * P3S + opt('bln', 12), 72)
groups[4 * (P3S - P3D) - 1] += mk(poll_issue, v_pres, v_p3, sWS, s_F1B)
groups[4 * P3S - 2] += L(f'''
s_add_u32 s60, {s_bF}, {QKV[1]}
s_add_u32 s61, {s_bS}, {QKV[1]}
s_add_u32 s62, {s_bF}, {QKV[1] + 80*GRP - 512}
s_add_u32 s63, {s_bS}, {QKV[1] + 80*GRP - 512}
''')
groups[4 * P3S - 3] += L(f'''
s_add_u32 s64, {s_bF}, {QKV[1] + 160*GRP}
s_add_u32 s65, {s_bF}, {QKV[1] + 161*GRP - 1088}
s_add_u32 s66, {s_bS}, {QKV[1] + 160*GRP - 2176}
s_mov_b32 m0, {s_mV}
''')
groups[4 * P3S - 1] += mk(poll_check, v_pres, v_p3, sWS, s_F1B)
bl = L(f'''
buffer_load_dwordx4 {vr(QB0,4)}, {v_q4}, {sWS}, s60 offen sc1
buffer_load_dwordx4 {vr(KB0,4)}, {v_kb0}, {sWS}, s62 offen sc1
buffer_load_dwordx2 {vr(QB1,2)}, {v_qe}, {sWS}, s61 offen sc1
buffer_load_dwordx2 {vr(QB1+2,2)}, {v_qo}, {sWS}, s61 offen sc1
buffer_load_dwordx2 {ar(AKB1,2)}, {v_kb1}, {sWS}, s63 offen sc1
buffer_load_dwordx4 {vr(KB0+4,4)}, {v_q4}, {sWS}, s62 offen offset:512 sc1
buffer_load_dwordx4 {vr(QB0+4,4)}, {v_q4}, {sWS}, s60 offen offset:512 sc1
buffer_load_dwordx2 {vr(QB1+4,2)}, {v_qo}, {sWS}, s61 offen offset:512 sc1
buffer_load_dwordx4 {vr(KB0+8,4)}, {v_q4}, {sWS}, s62 offen offset:1024 sc1
buffer_load_dwordx2 {ar(AKB1+4,2)}, {v_qo}, {sWS}, s63 offen offset:1024 sc1
buffer_load_dword {v_g[0]}, {v_gad}, {sWS}, {s_gb} offen sc1
buffer_load_dword {v_g[1]}, {v_gad}, {sWS}, {s_gb} offen offset:128 sc1
buffer_load_dwordx4 {v_l16}, {sWS}, s64 offen sc1 lds
buffer_load_dwordx4 {v_l16}, {sWS}, s65 offen offset:1088 sc1 lds
buffer_load_dwordx4 {v_l16}, {sWS}, s66 offen offset:2176 sc1 lds
''')
st = Stream(); st(f's_add_u32 m0, {s_mV}, 3264\nv_mov_b32 v{QB1+6}, 0\nv_mov_b32 v{QB1+7}, 0')
tokVB = st.vm(f'buffer_load_dwordx4 {v_halo}, {sWS}, 0 offen sc1 lds'); bl.append(st.l)
weave(groups, bl, 4 * P3S, 4 * P3S + opt('bln', 12))
for k, g in enumerate(groups):
    S.l += g
    if FINE and k % 8 == 7: stamp('a%d' % (k // 4))
for x in cvts(3): S(x)
S(f's_add_u32 {s_e1}, {s_ob}, {OBR}\ns_nop 0')
S(pv(N - 1, 1))
stamp('attA')

OSC = '' if opt('local', 0) else ' sc1'
def epi2(br, q, o, pk=False):
    st = Stream()
    st(f'v_rcp_f32 {v_t1}, v{o+12}')
    if br: st(f'v_sub_f32 {v_g[q]}, 1.0, {v_g[q]}')
    st(f'v_mul_f32 {v_t1}, {v_g[q]}, {v_t1}')
    if pk:
        for i in range(0, 12, 2): st(f'v_pk_mul_f32 {vr(o+i,2)}, {vr(o+i,2)}, {vr(22,2)} op_sel_hi:[1,0]')
    else:
        for i in range(12): st(f'v_mul_f32 v{o+i}, {v_t1}, v{o+i}')
    for i in range(6): st(f'v_cvt_pk_bf16_f32 v{o+i}, v{o+2*i}, v{o+2*i+1}')
    so = s_e1 if br else s_ob
    st(f'buffer_store_dwordx4 {vr(o,4)}, {v_o4}, {sWS}, {so} offen offset:{1280*q}{OSC}')
    tok = st.vm(f'buffer_store_dwordx2 {vr(o+4,2)}, {v_o2}, {sWS}, {so} offen offset:{1280*q}{OSC}')
    return st.l, tok
qkB = [[Ins(x)] for x in (
    f'{mm} {vr(SP[0],16)}, {vr(KB0,4)}, {vr(QB0,4)}, {vr(MB_PREV0,16)}',
    f'{mm} {vr(SP[0],16)}, {ar(AKB1,4)}, {vr(QB1,4)}, {vr(SP[0],16)}',
    f'{mm} {vr(SD[0],16)}, {vr(KB0+4,4)}, {vr(QB0,4)}, {vr(MB_DIAG,16)}',
    f'{mm} {vr(SD[0],16)}, {ar(AKB1,4)}, {vr(QB1+2,4)}, {vr(SD[0],16)}',
    f'{mm} {vr(SP[1],16)}, {vr(KB0+4,4)}, {vr(QB0+4,4)}, {vr(MB_PREV,16)}',
    f'{mm} {vr(SP[1],16)}, {ar(AKB1,4)}, {vr(QB1+4,4)}, {vr(SP[1],16)}',
    f'{mm} {vr(SD[1],16)}, {vr(KB0+8,4)}, {vr(QB0+4,4)}, {vr(MB_DIAG,16)}',
    f'{mm} {vr(SD[1],16)}, {ar(AKB1+4,4)}, {vr(QB1+4,4)}, {vr(SD[1],16)}')]
st = Stream(); st.wait(tokVB)
for u in range(2): st(f'ds_read_b64_tr_b16 {ar(VB+2*u,2)}, {v_vh} offset:{128*u}')
for t in range(2):
    for kk in range(2):
        for u in range(2): st(f'ds_read_b64_tr_b16 {ar(VB+4+8*t+4*kk+2*u,2)}, {v_vb} offset:{512*t+256*kk+128*u}')
e0, _ = epi2(0, 0, OA[0]); e1, tokOA = epi2(0, 1, OA[1])
weave(qkB, e0 + e1, 0, 7)
weave(qkB, st.l, 7, 8)
for g in qkB: S.l += g
st2('qkB')
def softB(q):
    st = Stream()
    b = SP[q] + 8
    assert SD[q] == SP[q] + 16
    st(f'v_max3_f32 {v_t3}, v{b}, v{b+1}, v{b+2}')
    st(f'v_max3_f32 {v_t4}, v{b+3}, v{b+4}, v{b+5}')
    for i in range(6, 22, 4):
        st(f'v_max3_f32 {v_t3}, {v_t3}, v{b+i}, v{b+i+1}')
        st(f'v_max3_f32 {v_t4}, {v_t4}, v{b+i+2}, v{b+i+3}')
    st(f'v_max3_f32 {v_t3}, {v_t3}, v{b+22}, v{b+23}')
    st(f'v_max_f32 {v_t3}, {v_t3}, {v_t4}')
    st(f'v_mov_b32 {v_t4}, {v_t3}')
    st(f'v_permlane32_swap_b32 {v_t3}, {v_t4}')
    st(f'v_max_f32 {v_t3}, {v_t3}, {v_t4}')
    for i in range(0, 24, 2): st(f'v_pk_add_f32 {vr(b+i,2)}, {vr(b+i,2)}, {vr(24,2)} op_sel_hi:[1,0] neg_lo:[0,1] neg_hi:[0,1]')
    vop = [VB if q == 0 else VB + 8, VB + 4 + 8 * q, VB + 8 + 8 * q]
    for c in range(3):
        for i in range(8): st(f'v_exp_f32 v{b+8*c+i}, v{b+8*c+i}')
        if c: st(f'{mm} {vr(OB[q],16)}, {ar(vop[c-1],4)}, {vr(b+8*(c-1),4)}, {"0" if c == 1 else vr(OB[q],16)}')
        for i in range(4): st(f'v_cvt_pk_bf16_f32 v{b+8*c+i}, v{b+8*c+2*i}, v{b+8*c+2*i+1}')
    return st.l, Ins(f'{mm} {vr(OB[q],16)}, {ar(vop[2],4)}, {vr(b+16,4)}, {vr(OB[q],16)}')
l0, m0_ = softB(0); l1, m1_ = softB(1)
S.l += l0; S.l += l1[:2]; S.l.append(m0_); S.l += l1[2:]
e0, _ = epi2(1, 0, OB[0]); e1, tokOB = epi2(1, 1, OB[1], True)
S.l += e0[:2]; S.l.append(m1_); S.l += e0[2:]; S.l += e1
st2('epiB')
for g in wo_loads(NWO2, 50): S.l += g

S(f'''
v_lshrrev_b32 {v_t1}, 4, {v_lane}
v_and_b32 {v_t2}, 15, {v_lane}
s_mov_b32 {s_t0}, 81920
v_mul_lo_u32 {v_t3}, {v_h}, {s_t0}
v_and_b32 {v_t4}, 1, {v_t1}
v_lshl_add_u32 {v_t3}, {v_t4}, 8, {v_t3}
v_lshl_add_u32 {v_t3}, {v_t2}, 4, {v_t3}
s_mov_b32 {s_t0}, 163840
v_mul_lo_u32 {v_t4}, {v_t1}, {s_t0}
v_lshl_add_u32 {v_t4}, {v_t2}, 3, {v_t4}
v_add_u32 {v_t4}, 512, {v_t4}
''')
for rho in range(4):
    S(f'''
    s_add_u32 {s_t0}, {s_w}, {rho}
    s_and_b32 {s_t0}, {s_t0}, 3
    s_mul_i32 {s_t1}, {s_t0}, 640
    v_add_u32 v{V4+rho}, {s_t1}, {v_t3}
    v_add_u32 v{V2+rho}, {s_t1}, {v_t4}
    s_mul_i32 {s_t1}, {s_t0}, {3*5120}
    ''')
    if rho: S(f's_add_u32 {s_t1}, {s_t1}, {(rho-1)*5120}\nv_add_u32 v{VRW+rho-1}, {s_t1}, {v_l16}')
    else: S(f'v_add_u32 {v_rr}, {s_t1}, {v_l16}')
S(f'''
v_mul_u32_u24 {v_t2}, 1280, {v_t2}
v_mad_u32_u24 {v_t2}, {v_t1}, 40, {v_t2}
s_lshl_b32 {s_t0}, {s_R}, 2
s_add_u32 {s_t0}, {s_t0}, {s_w}
s_mul_i32 {s_t0}, {s_t0}, {16*1280}
s_mul_i32 {s_t1}, {s_C}, 160
s_add_u32 {s_t0}, {s_t0}, {s_t1}
v_add_u32 {v_out}, {s_t0}, {v_t2}
v_and_b32 {v_t1}, 7, {v_lane}
s_lshl_b32 {s_t0}, {s_xcd}, 12
s_lshl_b32 {s_t1}, {s_w}, 10
s_add_u32 {s_t0}, {s_t0}, {s_t1}
s_and_b32 {s_t2}, {s_R}, 3
s_lshl_b32 {s_t2}, {s_t2}, 2
s_add_u32 {s_t0}, {s_t0}, {s_t2}
v_lshl_add_u32 {v_p4}, {v_t1}, 7, {s_t0}
s_lshl_b32 {s_t0}, {s_R}, 2
s_add_u32 {s_t0}, {s_t0}, {s_t1}
s_mul_i32 {s_t0}, {s_t0}, 640
''')
for br in range(2):
    for s_ in range(4): S(f's_add_u32 s{SW0+6*br+s_}, {s_t0}, {O_OFF + br*OBR + s_*163840}')
    for u in range(2): S(f's_add_u32 s{SW0+6*br+4+u}, {s_t0}, {O_OFF + br*OBR + u*81920}')
st2('adr3')
S.wait(tokOB); S(f'buffer_store_dword {v_one}, {v_flagw}, {sWS}, {s_f2} offen{OSC}')
stamp('flg2')
poll(S, 'v1', v_p4, sWS, s_F2)
stamp('poll4')
def o_load(br, s_, rho):
    if s_ < 4: return L(f'buffer_load_dwordx4 {vr(OF[br]+16*s_+4*rho,4)}, v{V4+rho}, {sWS}, s{SW0+6*br+s_} offen sc1')
    return L('\n'.join(f'buffer_load_dwordx2 {vr(OF[br]+64+4*rho+2*u,2)}, v{V2+rho}, {sWS}, s{SW0+6*br+4+u} offen sc1' for u in range(2)))
def mf3(br, s_, rho, ct):
    acc = vr(AC3 + 20 * rho + 4 * ct, 4)
    return [Ins(f'v_mfma_f32_16x16x32_bf16 {acc}, {ar(40*s_+20*br+4*ct,4)}, {vr(OF[br]+16*s_+4*rho,4)}, {"0" if br == 0 and s_ == 0 else acc}')]
order = (1, 2, 3, 0)
ol = [x for s_ in range(5) for rho in range(4) for x in o_load(0, s_, rho)] + [x for rho in order for s_ in range(5) for x in o_load(1, s_, rho)]
NO0 = opt('no0', 12)
S.l += ol[:NO0]
st2('oiss')
sl = [mf3(0, s_, rho, ct) for s_ in range(5) for rho in range(4) for ct in range(5)]
sl += [mf3(1, s_, rho, ct) for rho in order for s_ in range(5) for ct in range(5)]
weave(sl, ol[NO0:], 0, opt('no1', 130))
for k, g in enumerate(sl):
    for it in g[1:]:
        assert not any(it.defs & sl[j][0].srcab for j in range(k + 1)), it.text
for i, rho in enumerate((1, 2, 3)):
    wr = [Ins(f'ds_write_b128 v{VRW+rho-1}, {vr(AC3+20*rho+4*ct,4)} offset:{1024*ct}') for ct in range(5)]
    lo = 125 + 25 * i + 3
    weave(sl, wr, lo, lo + (15 if i < 2 else 5))
sl[189] += L('s_waitcnt lgkmcnt(0)\ns_barrier')
rd = [Ins(f'ds_read_b128 {vr(OF[0]+20*k+4*ct,4)}, {v_rr} offset:{5120*k+1024*ct}') for ct in range(5) for k in range(3)]
weave(sl, rd, 190, 200)
for k, g in enumerate(sl):
    S.l += g
    if k == 99: stamp('mf3A')
    elif k in (0, 19, 39, 59, 79, 124, 149, 174, 188, 189): st2('m%d' % k)
stamp('mf3')
for i in range(0, 20, 2):
    S(f'v_pk_add_f32 {vr(OF[0]+i,2)}, {vr(OF[0]+i,2)}, {vr(OF[0]+20+i,2)}')
    S(f'v_pk_add_f32 {vr(AC3+i,2)}, {vr(AC3+i,2)}, {vr(OF[0]+40+i,2)}')
for i in range(0, 20, 2):
    S(f'v_pk_add_f32 {vr(AC3+i,2)}, {vr(AC3+i,2)}, {vr(OF[0]+i,2)}')
for i in range(10):
    S(f'v_cvt_pk_bf16_f32 v{AC3+i}, v{AC3+2*i}, v{AC3+2*i+1}')
S(f'''
buffer_store_dwordx4 {vr(AC3,4)}, {v_out}, {sOUT}, 0 offen
buffer_store_dwordx4 {vr(AC3+4,4)}, {v_out}, {sOUT}, 0 offen offset:16
buffer_store_dwordx2 {vr(AC3+8,2)}, {v_out}, {sOUT}, 0 offen offset:32
''')
if AMP:
    S('s_waitcnt vmcnt(0)')
    stamp('end')
    S(f'''
    s_cmp_lg_u32 s2, {opt('ampwg', 9)}
    s_cbranch_scc1 L_end
    s_memrealtime s[84:85]
    s_waitcnt lgkmcnt(0)
    s_sub_u32 s80, s82, s80
    s_lshl_b32 s80, s80, 2
    s_min_u32 s80, s80, 100000
    {('s_mov_b32 s80, %d' % opt('ampc', 0)) if opt('ampc', 0) else ''}
    L_amp:
    s_memrealtime s[86:87]
    s_waitcnt lgkmcnt(0)
    s_sub_u32 s86, s86, s84
    s_cmp_lt_u32 s86, s80
    s_cbranch_scc1 L_amp
    ''')
if STAMPS:
    stamp('red')
    S('s_waitcnt vmcnt(0)')
    stamp('end')
    S(f'''
    s_waitcnt lgkmcnt(0)
    s_cmp_lg_u32 {s_w}, 0
    s_cbranch_scc1 L_end
    v_writelane_b32 v0, s{ST0+2*((nstamp[0]-1)&1)}, {nstamp[0]-1}
    s_lshl_b32 {s_t0}, s2, 8
    s_add_u32 {s_t0}, {s_t0}, {STAMP_OFF}
    v_mbcnt_lo_u32_b32 v3, -1, 0
    v_mbcnt_hi_u32_b32 v3, -1, v3
    v_lshlrev_b32 v3, 2, v3
    buffer_store_dword v0, v3, {sWS}, {s_t0} offen
    ''')
    assert nstamp[0] <= 56, nstamp[0]
    open(OUT + '.stamps', 'w').write(' '.join(n or str(i) for i, n in enumerate(stamp_names)))
S('s_endpgm')

T = Stream()
nstamp[0] = 1
T('@reset')
T(f'''
L_spare:
s_waitcnt lgkmcnt(0)
s_load_dwordx2 s[56:57], s[0:1], 16
s_load_dwordx2 s[58:59], s[0:1], 40
s_load_dwordx2 s[8:9], s[0:1], 48
s_mov_b32 s30, {640*1280}
s_mov_b32 s10, 1280
''')
common_consts(T)
T(f'''
v_mov_b32 v64, 0
v_mov_b32 v65, 0
v_mov_b32 v66, 0
v_mov_b32 v67, 0
v_lshlrev_b32 {v_t1}, 4, v0
s_lshl_b32 {s_t0}, {s_rb}, 12
s_add_u32 {s_t0}, {s_t0}, {FLG}
buffer_store_dwordx4 v[64:67], {v_t1}, {sWS}, {s_t0} offen sc1
''')
T(f'''
s_and_b32 {s_e0}, {s_rb}, 1
s_lshl_b32 {s_e0}, {s_e0}, 2
s_add_u32 {s_e0}, {s_e0}, {s_w}
s_bfe_u32 {s_e1}, {s_rb}, 0x20001
s_mul_i32 {s_t2}, {s_e0}, 160
s_mul_i32 {s_t1}, {s_e1}, {160*1280}
s_add_u32 {s_t2}, {s_t2}, {s_t1}
s_mov_b32 {s_t0}, {(1<<32)//10+1}
''')
for i in range(5):
    T(f'''
    v_add_u32 {v_t1}, {64*i}, {v_lane}
    v_mul_hi_u32 {v_t2}, {v_t1}, {s_t0}
    v_mul_u32_u24 {v_t3}, 10, {v_t2}
    v_sub_u32 {v_t1}, {v_t1}, {v_t3}
    v_mul_u32_u24 {v_t2}, 1280, {v_t2}
    v_lshl_add_u32 {v_t2}, {v_t1}, 4, {v_t2}
    v_add_u32 v{2+i}, {s_t2}, {v_t2}
    ''')
T(f'''
s_mul_i32 {s_mW}, {s_w}, 25600
s_waitcnt lgkmcnt(0)
s_cmp_ge_u32 {s_rb}, 8
s_cselect_b32 s28, s58, s56
s_cselect_b32 s29, s59, s57
''')
wtok = {}
def wo_dma(b):
    T(f's_mov_b32 {s_t3}, {b*32*1280}')
    for i in range(5):
        T(f's_add_u32 m0, {s_mW}, {1024*(5*b+i)}')
        wtok[5 * b + i] = T.vm(f'buffer_load_dwordx4 v{2+i}, {sTMP}, {s_t3} offen lds')
wo_dma(0); wo_dma(1)
T(f'''
v_lshrrev_b32 {v_t1}, 4, {v_lane}
v_bfe_u32 {v_t2}, {v_lane}, 2, 2
v_and_b32 {v_t3}, 3, {v_lane}
v_mul_u32_u24 {v_t3}, 40, {v_t3}
v_add_u32 {v_t3}, {s_mW}, {v_t3}
v_mad_u32_u24 {v_t4}, {v_t1}, 40, {v_t2}
v_add_u32 {v_t4}, 16, {v_t4}
v_mul_u32_u24 {v_t4}, 160, {v_t4}
v_add_u32 v8, {v_t4}, {v_t3}
v_lshrrev_b32 {v_t4}, 1, {v_t1}
v_mad_u32_u24 {v_t2}, {v_t4}, 24, {v_t2}
v_and_b32 {v_t4}, 1, {v_t1}
v_lshl_add_u32 {v_t2}, {v_t4}, 3, {v_t2}
v_mul_u32_u24 {v_t2}, 160, {v_t2}
v_add_u32 v7, {v_t2}, {v_t3}
s_lshr_b32 {s_t0}, {s_rb}, 3
s_lshl_b32 {s_t0}, {s_t0}, 3
s_add_u32 {s_t0}, {s_t0}, {s_e0}
s_lshl_b32 {s_t0}, {s_t0}, 2
s_add_u32 {s_t0}, {s_t0}, {s_e1}
s_mul_i32 {s_stb}, {s_t0}, 25600
v_and_b32 v9, 15, {v_lane}
v_lshlrev_b32 v9, 4, v9
v_mul_u32_u24 v10, 1280, {v_t1}
v_add_u32 v10, v10, v9
v_cmp_eq_u32 vcc, 0, v9
v_lshlrev_b32 {v_t1}, 2, {v_t1}
s_lshl_b32 {s_rot}, {s_rb}, 2
s_add_u32 {s_rot}, {s_rot}, {s_w}
v_cndmask_b32 v11, {v_big}, {v_t1}, vcc
''')
stamp('', T)
setup2(T)
wo_dma(2)
stamp('', T)
for s_ in range(5):
    T.wait(wtok[min(24, (400 * (s_ + 1) - 1) // 64)])
    if s_ == 0:
        T(f'''
        s_barrier
        s_lshl_b32 {s_t0}, {s_rb}, 2
        buffer_store_dword {v_one}, {v_flag}, {sDBG}, {s_t0} offen sc1
        ''')
    for ct in range(5):
        f = 5 * s_ + ct
        for u in range(2):
            if s_ < 4: T(f'ds_read_b64_tr_b16 {vr(140+4*f+2*u,2)}, v7 offset:{(40*s_+4*u)*160+8*ct}')
            else: T(f'ds_read_b64_tr_b16 {vr(140+4*f+2*u,2)}, v8 offset:{640*u+8*ct}')
    if s_ + 3 < 5: wo_dma(s_ + 3)
    if s_ == 2: poll_issue(T, v_pres, v_zero, sDBG, '0')
    for ct in range(5):
        f = 5 * s_ + ct
        if f % 4 == 0: T(f's_add_u32 {s_t1}, {s_stb}, {WOF + f*1024}')
        tokw = T.vm(f'buffer_store_dwordx4 {vr(140+4*f,4)}, {v_l16}, {sWS}, {s_t1} offen offset:{(f%4)*1024} sc1')
    if s_ == 2: tokw2 = tokw
    if FINE: stamp('', T)
poll_check(T, v_pres, v_zero, sDBG, '0')
T.wait(tokw2)
T('s_barrier')
set_flag(T, v_flag, s_f1, 0)
stamp('', T)
GW = 224; GA = 48
T(f's_mul_i32 {s_t1}, {s_rot}, {32*1280}')
for j in range(5): T(f'buffer_load_dwordx4 {vr(GW+4*j,4)}, v9, {sWA}, 0 offen offset:{256*j}')
for i in range(8):
    for j in range(5): T(f'buffer_load_dwordx4 {vr(64+20*i+4*j,4)}, v10, {sX}, {s_t1} offen offset:{256*j}')
    T(f's_add_u32 {s_t1}, {s_t1}, {4*1280}')
    if i == 2:
        T.wait(tokw)
        T('s_barrier')
        set_flag(T, v_flag, s_f1, 8)
        stamp('', T)
poll_issue(T, v_pres, v_p2, sWS, s_F1A)
T(f's_lshl_b32 {s_rot}, {s_rot}, 7\ns_add_u32 {s_rot}, {s_rot}, {G_OFF}')
for i in range(8):
    T(f'v_mov_b32 v{GA+i}, 0')
    for k in range(20): T(f'v_dot2c_f32_bf16 v{GA+i}, v{64+20*i+k}, v{GW+k}')
poll_check(T, v_pres, v_p2, sWS, s_F1A)
wl_ = wo_loads(0, NA)
for g in wl_[:10]: T.l += g
for sh in (8, 4, 2, 1):
    for i in range(8): T(f'v_add_f32_dpp v{GA+i}, v{GA+i}, v{GA+i} row_ror:{sh} row_mask:0xf bank_mask:0xf')
for i in range(8): T(f'v_mul_f32 v{GA+i}, {f32(-math.log2(math.e))}, v{GA+i}')
for i in range(8): T(f'v_exp_f32 v{GA+i}, v{GA+i}')
for i in range(8): T(f'v_add_f32 v{GA+i}, 1.0, v{GA+i}')
for i in range(8): T(f'v_rcp_f32 v{GA+i}, v{GA+i}')
T.l += setup_late()
for i in range(8): tokg = T.vm(f'buffer_store_dword v{GA+i}, v11, {sWS}, {s_rot} offen offset:{16*i} sc1')
stamp('', T)
T.l += mask_far() + zero_pads()
for g in wl_[10:24]: T.l += g
T.wait(tokg)
T('s_barrier')
set_flag(T, v_flag, s_f1, 4)
for g in wl_[24:]: T.l += g
stamp('', T)
poll(T, v_pres, v_p1, sWS, s_F1A)
kv, _ = kvq_loads()
for g in kv: T.l += g
if NA < NWO1:
    for g in wo_loads(NA, NWO1): T.l += g
T('s_waitcnt vmcnt(0) lgkmcnt(0)\ns_barrier')
T.l += att_pre()
T(qka(0)); T(qkb(0))
T.l += mask_rest()[:8]
T('s_nop 7')
assert nstamp[0] <= nst_join
while nstamp[0] < nst_join: stamp('', T)
T('s_waitcnt lgkmcnt(0)')
T('s_branch L_join')

S.extend(T); S.extend(tail)
S('L_end:\ns_endpgm')

stats = []
body = finalize(S, stats)
hdr = open('cdna_kernels/%s.s.ref' % NAME).read().split('; Override')[0]
K = NAME + '_kernel'
txt = hdr + f'''; Generated by a hand-written generator script: one persistent workgroup per CU, phases chained by flags in d_ws.
; @launch grid=(256,1,1) block=(256,1,1) lds={LDS_BYTES}
.amdgcn_target "amdgcn-amd-amdhsa--gfx950"
.text
.globl {K}
.p2align 8
.type {K},@function
{K}:
''' + '\n'.join(body) + f'''
.section .rodata,"a"
.p2align 6
.amdhsa_kernel {K}
  .amdhsa_next_free_vgpr 512
  .amdhsa_next_free_sgpr 102
  .amdhsa_accum_offset 256
  .amdhsa_group_segment_fixed_size 0
  .amdhsa_kernarg_size 80
  .amdhsa_user_sgpr_count 2
  .amdhsa_user_sgpr_kernarg_segment_ptr 1
  .amdhsa_system_sgpr_workgroup_id_x 1
  .amdhsa_float_denorm_mode_32 3
.end_amdhsa_kernel
'''
open(OUT, 'w').write(txt)
print('instructions:', len(body), ' nops:', len(stats), sum(s[0] for s in stats), ' overflow slots', over, 'WS_SIZE', WS_SIZE)
if '--nops' in ARGS:
    for s in stats: print(s)
```

```python
import sys, math, struct
from fw import *

NAME = "gated_mix__sliding_block__sliding_local_dilated__prompt"
ARGS = sys.argv[1:]
STAMPS = '--stamps' in ARGS
FINE = '--fine' in ARGS
FINE2 = '--fine2' in ARGS
def opt(name, default):
    for a in ARGS:
        if a.startswith('--' + name + '='): return int(a.split('=')[1])
    return default
OUT = [a for a in ARGS if not a.startswith('--')]
OUT = OUT[0] if OUT else 'k.s'

GRP = 2048 * 16
QKV = [0, 240 * GRP]
O_OFF = 480 * GRP
OBR = 32 * 128 * 640
WOF = O_OFF + 2 * OBR
G_OFF = WOF + 64 * 25600
FLG = G_OFF + 8192
F1 = [FLG, FLG + 32768]
F2 = FLG + 65536
WS_SIZE = FLG + 65536 + 131072
STAMP_OFF = WS_SIZE
BIG = 0x40000000
L_X = 65536
GS = 8192 + 64
L_KA = L_X + 16384; L_VA = L_KA + 3 * GS
L_VB = 131072 + 512; VBW = 4608
L_ONE = L_VB + 4 * VBW + ((L_VA + 3 * GS) % 256)
L_TAB = L_VB + 4 * VBW + 8192 + 256
LDS_BYTES = 160 * 1024
assert L_TAB + 1024 <= LDS_BYTES and L_VA + 3 * GS <= L_VB

def f32(x): return '0x%08x' % struct.unpack('<I', struct.pack('<f', x))[0]
QSCALE = (20 ** -0.5) * math.log2(math.e)
NEGINF = '0xff800000'

sX, sWA, sWB, sWS, sOUT, sDBG, sTMP = 's[4:7]', 's[8:11]', 's[12:15]', 's[16:19]', 's[20:23]', 's[24:27]', 's[28:31]'
s_xcd, s_t, s_rb, s_cb, s_w = 's32', 's33', 's34', 's35', 's36'
s_t0, s_t1, s_t2, s_t3 = 's37', 's38', 's39', 's40'
s_stb, s_scale, s_inv, s_mW, s_mX = 's41', 's42', 's43', 's44', 's45'
s_hd, s_r2, s_so, s_q0 = 's46', 's47', 's48', 's49'
s_cnt, s_f1, s_f2, s_ob, s_k1, s_wob = 's50', 's51', 's52', 's53', 's54', 's55'
SW0, SX0 = 60, 70
ST0 = 80
s_bF, s_bS, s_dF, s_dS, s_mK, s_mV, s_gb, s_rot = 's84', 's85', 's86', 's87', 's88', 's89', 's90', 's91'
s_e0, s_e1, s_e2, s_e3 = 's92', 's93', 's94', 's95'
s_F1A, s_F1B, s_F2, s_q0z, s_R, s_C = 's96', 's97', 's98', 's99', 's100', 's101'
ROWMAP = opt('rowmap', 0)
v_lane = 'v1'
VWD, VXD, VWR, VXR = 2, 6, 10, 12
v_dma, v_gad, v_kb0, v_k1 = 'v6', 'v7', 'v8', 'v9'
v_st, v_flag, v_one, v_pres, v_l16, v_big = 'v16', 'v17', 'v18', 'v19', 'v20', 'v21'
v_t1, v_t2, v_t3, v_t4, v_tmp, v_zero = 'v22', 'v23', 'v24', 'v25', 'v26', 'v27'
(v_p1, v_p2, v_p3, v_q4, v_qe, v_qo, v_k0, v_v, v_vb, v_vh, v_kb1, v_halo, v_mA, v_mB0, v_flagw, v_o4, v_o2, v_h, v_r, v_tabc) = ['v%d' % i for i in range(28, 48)]
WRING = 48
ACC = [64, 128]
XV = 192
E0, P0 = 48, 56
SB = [64, 192]; M_FAR, M_DIAG = 80, 208; QA0, QA1 = 96, 104; OA = [224, 240]
QB0, QB1, KB0 = 128, 136, 144
v_g = ['v156', 'v157']
MB_DIAG, MB_PREV, MB_PREV0 = 160, 168, 176
SP = [64, 192]; SD = [80, 208]; OB = [96, 112]
V4, V2, VRW, v_rr, v_out, v_p4 = 2, 6, 10, 'v13', 'v14', 'v15'
AC3 = 16; OF = [96, 176]
AK0, AK1, AV, AKB1 = 200, 208, 216, 232
VB = 200

def vr(b, n): return 'v[%d:%d]' % (b, b + n - 1)
def ar(b, n): return 'a[%d:%d]' % (b, b + n - 1)
mm = 'v_mfma_f32_32x32x16_bf16'

S = Stream()
tail = Stream()
nstamp = [0]; stamp_names = []
AMP = [a.split('=')[1].split(',') for a in ARGS if a.startswith('--amp=')]
AMP = AMP[0] if AMP else None
def stamp(name='', st=None):
    if AMP and name in AMP and st is None: S('s_memrealtime s[%d:%d]' % (ST0 + 2 * AMP.index(name), ST0 + 2 * AMP.index(name) + 1))
    if STAMPS:
        st = st or S
        k = nstamp[0]
        if k == 1:
            for i in range(56, 64): st('v_writelane_b32 v0, 0, %d' % i)
        if k > 0: st('v_writelane_b32 v0, s%d, %d' % (ST0 + 2 * ((k - 1) & 1), k - 1))
        st('s_memrealtime s[%d:%d]' % (ST0 + 2 * (k & 1), ST0 + 2 * (k & 1) + 1))
    stamp_names.append(name)
    nstamp[0] += 1
def st2(n):
    if FINE2: stamp(n)
nlab = [0]
def lab(p):
    nlab[0] += 1
    return 'L_%s_%d' % (p, nlab[0])

PIDX = {v_zero: 0, v_p1: 1, v_p2: 2, v_p3: 3, v_p4: 4}
def poll_issue(st, res, adr, srd, soff, off=0):
    st('buffer_load_dword %s, %s, %s, %s offen offset:%d sc1' % (res, adr, srd, soff, off))
def poll_check(st, res, adr, srd, soff, off=0):
    l = lab('poll'); b = lab('back')
    st('v_cmp_ne_u32 vcc, 1, %s' % res)
    st('s_cbranch_vccnz %s' % l)
    st(b + ':')
    tail('@reset')
    tail(f'''
    {l}:
    s_mov_b32 {s_cnt}, 0
    {l}_a:
    buffer_load_dword {res}, {adr}, {srd}, {soff} offen offset:{off} sc1
    s_add_u32 {s_cnt}, {s_cnt}, 1
    {('v_writelane_b32 v0, %s, %d' % (s_cnt, 56 + PIDX[adr] + off // 4)) if STAMPS else ''}
    s_waitcnt vmcnt(0)
    v_cmp_ne_u32 vcc, 1, {res}
    s_cbranch_vccz {b}
    s_cmp_lt_u32 {s_cnt}, 0x40000
    s_cbranch_scc1 {l}_a
    s_branch {b}
    ''')
def poll(st, res, adr, srd, soff):
    poll_issue(st, res, adr, srd, soff); poll_check(st, res, adr, srd, soff)
def set_flag(st, vf, base, off):
    st(f'buffer_store_dword {v_one}, {vf}, {sWS}, {base} offen offset:{off} sc1')
def mk(fn, *a):
    st = Stream(); fn(st, *a); return st.l
def L(txt):
    st = Stream(); st(txt); return st.l

def setup2(st):
    st(f'''
    s_mov_b32 s14, {640*3840}
    s_mov_b32 s15, 0x20000
    s_mov_b32 s22, {2048*1280}
    s_mov_b32 s23, 0x20000
    s_mov_b32 {s_F1A}, {F1[0]}
    s_mov_b32 {s_F1B}, {F1[1]}
    s_mov_b32 {s_F2}, {F2}
    s_and_b32 {s_C}, {s_t}, 7
    s_lshr_b32 {s_t2}, {s_t}, 3
    s_lshl_b32 {s_t0}, {s_xcd}, 2
    s_add_u32 {s_R}, {s_t0}, {s_t2}
    s_mov_b32 {s_r2}, {s_xcd if ROWMAP else s_C}
    s_mov_b32 {s_hd}, {s_t if ROWMAP else s_R}
    ''')
    if opt('map3', 0) == 1:
        st(f'''
        s_lshr_b32 {s_R}, {s_xcd}, 1
        s_lshl_b32 {s_R}, {s_R}, 3
        s_lshr_b32 {s_t0}, {s_t}, 2
        s_add_u32 {s_R}, {s_R}, {s_t0}
        s_and_b32 {s_C}, {s_xcd}, 1
        s_lshl_b32 {s_C}, {s_C}, 2
        s_and_b32 {s_t0}, {s_t}, 3
        s_add_u32 {s_C}, {s_C}, {s_t0}
        ''')
    st(f'''
    s_lshl_b32 {s_q0}, {s_r2}, 8
    s_lshl_b32 {s_t0}, {s_w}, 6
    s_add_u32 {s_q0}, {s_q0}, {s_t0}
    s_mul_i32 {s_e0}, {s_hd}, 5
    s_lshr_b32 {s_e0}, {s_e0}, 1
    s_and_b32 {s_t3}, {s_hd}, 1
    s_add_u32 {s_e1}, {s_e0}, {s_t3}
    s_lshl_b32 {s_so}, {s_t3}, 3
    s_lshl_b32 {s_t3}, {s_t3}, 1
    s_add_u32 {s_e2}, {s_e0}, 2
    s_sub_u32 {s_e2}, {s_e2}, {s_t3}
    s_lshl_b32 {s_e1}, {s_e1}, 15
    s_lshl_b32 {s_e2}, {s_e2}, 15
    s_lshl_b32 {s_t0}, {s_q0}, 4
    s_add_u32 {s_bF}, {s_e1}, {s_t0}
    s_add_u32 {s_bS}, {s_e2}, {s_t0}
    s_lshl_b32 {s_e3}, {s_r2}, 1
    s_add_u32 {s_e3}, {s_e3}, {s_w}
    s_lshl_b32 {s_t0}, {s_e3}, 11
    s_add_u32 {s_dF}, {s_e1}, {s_t0}
    s_add_u32 {s_dS}, {s_e2}, {s_t0}
    s_lshl_b32 {s_mK}, {s_w}, 11
    s_mul_i32 {s_mV}, {s_w}, {VBW}
    s_add_u32 {s_mV}, {s_mV}, {L_VB}
    s_lshl_b32 {s_gb}, {s_q0}, 2
    s_add_u32 {s_gb}, {s_gb}, {G_OFF}
    s_lshl_b32 {s_f1}, {s_rb}, 11
    s_lshl_b32 {s_t0}, {s_cb}, 7
    s_add_u32 {s_f1}, {s_f1}, {s_t0}
    s_add_u32 {s_f1}, {s_f1}, {F1[0]}
    s_lshl_b32 {s_f2}, {s_q0}, 6
    s_lshl_b32 {s_t0}, {s_hd}, 7
    s_add_u32 {s_f2}, {s_f2}, {s_t0}
    s_add_u32 {s_f2}, {s_f2}, {F2}
    s_lshl_b32 {s_ob}, {s_hd}, 7
    s_lshr_b32 {s_t0}, {s_q0}, 4
    s_add_u32 {s_ob}, {s_ob}, {s_t0}
    s_mul_i32 {s_ob}, {s_ob}, 640
    s_add_u32 {s_ob}, {s_ob}, {O_OFF}
    s_lshl_b32 {s_wob}, {s_C}, 2
    s_add_u32 {s_wob}, {s_wob}, {s_w}
    s_mul_i32 {s_wob}, {s_wob}, 25600
    v_and_b32 {v_zero}, 60, {v_lane}
    v_lshrrev_b32 {v_h}, 5, {v_lane}
    v_and_b32 {v_r}, 31, {v_lane}
    v_cmp_eq_u32 vcc, 0, {v_lane}
    v_bfe_u32 {v_t1}, {v_lane}, 2, 1
    v_lshl_add_u32 {v_t1}, {v_t1}, 1, {s_e0}
    v_cndmask_b32 {v_flagw}, {v_big}, 0, vcc
    v_lshrrev_b32 {v_t1}, 4, {v_t1}
    v_and_b32 {v_t2}, 3, {v_lane}
    v_min_u32 {v_t3}, 2, {v_t2}
    v_mad_u32_u24 {v_t4}, {v_t3}, 5, {v_t1}
    v_mad_u32_u24 {v_tmp}, {v_t2}, 5, {v_t1}
    v_min_u32 {v_tmp}, 15, {v_tmp}
    s_sub_u32 {s_t1}, {s_e3}, 2
    s_max_i32 {s_t1}, {s_t1}, 0
    s_lshl_b32 {s_t1}, {s_t1}, 11
    s_andn2_b32 {s_t2}, {s_q0}, 127
    s_lshl_b32 {s_t2}, {s_t2}, 4
    v_cmp_eq_u32 vcc, 0, {v_t2}
    v_mov_b32 {v_t1}, {s_t1}
    v_mov_b32 {v_t3}, {s_t2}
    v_cndmask_b32 {v_t1}, {v_t1}, {v_t3}, vcc
    v_lshl_add_u32 {v_p1}, {v_t4}, 7, {v_t1}
    s_sub_u32 {s_t1}, {s_q0}, 32
    s_max_i32 {s_t1}, {s_t1}, 0
    s_andn2_b32 {s_t1}, {s_t1}, 127
    s_lshl_b32 {s_t1}, {s_t1}, 4
    v_and_b32 {v_t2}, 8, {v_lane}
    v_cmp_eq_u32 vcc, 0, {v_t2}
    v_mov_b32 {v_t1}, {s_t1}
    v_and_b32 {v_t2}, 1, {v_lane}
    v_cndmask_b32 {v_t1}, {v_t1}, {v_t3}, vcc
    v_lshl_add_u32 {v_p3}, {v_tmp}, 7, {v_t1}
    s_lshl_b32 {s_t0}, {s_w}, 1
    s_lshr_b32 {s_t1}, {s_C}, 2
    s_add_u32 {s_t0}, {s_t0}, {s_t1}
    s_lshl_b32 {s_t0}, {s_t0}, 11
    s_add_u32 {s_t0}, {s_t0}, {15*128}
    v_lshl_add_u32 {v_p2}, {v_t2}, 14, {s_t0}
    v_add_u32 {v_t1}, 8, {v_p2}
    v_cndmask_b32 {v_p1}, {v_t1}, {v_p1}, vcc
    ''')
    st(f'''
    s_cmp_ge_u32 {s_e3}, 2
    s_cselect_b32 {s_inv}, 0, {BIG}
    s_cselect_b32 {s_t2}, 0x3f803f80, 0
    v_mov_b32 v128, {s_t2}
    v_mov_b32 v129, {s_t2}
    v_mov_b32 v130, {s_t2}
    v_mov_b32 v131, {s_t2}
    s_add_u32 {s_t1}, {s_mK}, {L_ONE}
    v_add_u32 {v_t1}, {s_t1}, {v_l16}
    ds_write_b128 {v_t1}, v[128:131]
    ds_write_b128 {v_t1}, v[128:131] offset:1024
    ''')
    st(f'''
    v_lshlrev_b32 {v_q4}, 15, {v_h}
    v_lshl_add_u32 {v_q4}, {v_r}, 4, {v_q4}
    v_cmp_eq_u32 vcc, 0, {v_h}
    v_lshl_add_u32 {v_t1}, {v_r}, 4, {s_so}
    s_cmp_eq_u32 {s_q0}, 0
    s_cselect_b32 {s_q0z}, {BIG}, 0
    v_cndmask_b32 {v_qe}, {v_big}, {v_t1}, vcc
    v_cndmask_b32 {v_qo}, {v_t1}, {v_big}, vcc
    v_mov_b32 {v_t2}, {s_q0z}
    v_cndmask_b32 {v_t2}, 0, {v_t2}, vcc
    v_add3_u32 {v_kb1}, {v_t2}, {v_l16}, {s_so}
    v_lshrrev_b32 {v_t1}, 4, {v_r}
    v_mul_u32_u24 {v_t1}, 640, {v_t1}
    v_and_b32 {v_t2}, 15, {v_lane}
    v_lshl_add_u32 {v_t3}, {v_h}, 8, {v_t1}
    v_lshl_add_u32 {v_o4}, {v_t2}, 4, {v_t3}
    v_lshl_add_u32 {v_t3}, {v_t2}, 3, {v_t1}
    v_add_u32 {v_t3}, 512, {v_t3}
    v_cndmask_b32 {v_o2}, {v_big}, {v_t3}, vcc
    v_lshrrev_b32 {v_t1}, 4, {v_lane}
    v_lshl_add_u32 {v_t3}, {v_t1}, 15, {s_bF}
    v_cmp_eq_u32 vcc, 2, {v_t1}
    v_mov_b32 {v_t4}, {s_bS}
    s_add_u32 {s_t3}, {s_q0z}, {QKV[1] + 160*GRP - 256}
    v_cndmask_b32 {v_t3}, {v_t3}, {v_t4}, vcc
    v_cmp_eq_u32 vcc, 3, {v_t1}
    v_lshl_add_u32 {v_t3}, {v_t2}, 4, {v_t3}
    v_add_u32 {v_t3}, {s_t3}, {v_t3}
    v_cndmask_b32 {v_halo}, {v_t3}, {v_big}, vcc
    ''')
    st(f'''
    s_lshl_b32 {s_t0}, {s_w}, 10
    v_mul_u32_u24 {v_t1}, {GS}, {v_h}
    v_lshl_add_u32 {v_t1}, {v_r}, 4, {v_t1}
    s_add_u32 {s_t1}, {s_t0}, {L_KA}
    v_add_u32 {v_k0}, {s_t1}, {v_t1}
    s_add_u32 {s_k1}, {s_t0}, {L_KA + 2*GS}
    s_add_u32 {s_k1}, {s_k1}, {s_so}
    v_bfe_u32 {v_t1}, {v_lane}, 2, 2
    v_lshl_add_u32 {v_t1}, {v_h}, 2, {v_t1}
    v_lshlrev_b32 {v_t1}, 4, {v_t1}
    v_and_b32 {v_pres}, 16, {v_lane}
    v_cmp_eq_u32 vcc, 0, {v_pres}
    v_and_b32 {v_t2}, 1, {v_lane}
    v_bfe_u32 {v_t3}, {v_lane}, 1, 1
    v_add_u32 {v_t4}, 2, {v_t3}
    v_lshlrev_b32 {v_t3}, 3, {v_t3}
    v_mov_b32 {v_tmp}, {s_so}
    v_cndmask_b32 {v_t2}, {v_t4}, {v_t2}, vcc
    v_cndmask_b32 {v_t3}, {v_tmp}, {v_t3}, vcc
    v_cmp_eq_u32 vcc, 3, {v_t2}
    v_add_u32 {v_t1}, {v_t1}, {v_t3}
    s_add_u32 {s_t1}, {s_t0}, {L_VA}
    v_mul_u32_u24 {v_t3}, {GS}, {v_t2}
    v_add3_u32 {v_v}, {v_t1}, {v_t3}, {s_t1}
    v_mul_u32_u24 {v_t3}, 1088, {v_t2}
    v_add3_u32 {v_vb}, {v_t1}, {v_t3}, {s_mV}
    s_add_u32 {s_t1}, {s_mV}, {3*1088}
    v_lshlrev_b32 {v_t3}, 8, {v_t2}
    v_add3_u32 {v_vh}, {v_t1}, {v_t3}, {s_t1}
    s_add_u32 {s_t1}, {s_t0}, {L_ONE}
    v_add_u32 {v_t3}, {s_t1}, {v_t1}
    v_add_u32 {v_t1}, {L_ONE + 4096}, {v_t1}
    v_cndmask_b32 {v_v}, {v_v}, {v_t3}, vcc
    v_cndmask_b32 {v_vb}, {v_vb}, {v_t1}, vcc
    v_cndmask_b32 {v_vh}, {v_vh}, {v_t1}, vcc
    ''')
    mk_ = [0, 0, 0, 0]
    for e in range(256):
        ok = (e - 32 <= 0) if e < 64 else (e - 96 > 0) if e < 128 else (0 <= 191 - e <= 14 and (191 - e) % 2 == 0)
        if ok: mk_[e >> 6] |= 1 << (e & 63)
    assert mk_[3] == 0 and mk_[1] & 0xffffffff == 0 and mk_[2] & 0xffffffff == 0
    st(f'''
    s_cmp_eq_u32 {s_w}, 0
    s_cselect_b32 s38, 0x{mk_[0] & 0xffffffff:x}, 0
    s_cselect_b32 s39, 0x{mk_[0] >> 32:x}, 0
    s_cmp_eq_u32 {s_w}, 1
    s_cselect_b32 s39, 0x{mk_[1] >> 32:x}, s39
    s_cmp_eq_u32 {s_w}, 2
    s_cselect_b32 s39, 0x{mk_[2] >> 32:x}, s39
    v_mov_b32 {v_tmp}, {NEGINF}
    s_lshl_b32 {s_t0}, {s_w}, 8
    s_add_u32 {s_t0}, {s_t0}, {L_TAB}
    v_cndmask_b32 {v_tmp}, {v_tmp}, 0, s[38:39]
    v_lshl_add_u32 {v_t1}, {v_lane}, 2, {s_t0}
    ds_write_b32 {v_t1}, {v_tmp}
    v_lshlrev_b32 {v_t1}, 2, {v_h}
    v_sub_u32 {v_t1}, {v_t1}, {v_r}
    v_lshlrev_b32 {v_t1}, 2, {v_t1}
    v_add_u32 {v_mA}, {L_TAB + 128}, {v_t1}
    s_cmp_eq_u32 {s_q0}, 0
    s_cselect_b64 vcc, -1, 0
    v_mov_b32 {v_t1}, {L_TAB + 4*64}
    v_cndmask_b32 {v_mB0}, {v_mA}, {v_t1}, vcc
    ''')
def setup_late():
    return L(f'''
    v_add_u32 {v_dma}, {s_inv}, {v_l16}
    v_lshlrev_b32 {v_gad}, 2, {v_r}
    v_add_u32 {v_kb0}, {s_q0z}, {v_q4}
    v_add_u32 {v_k1}, {s_k1}, {v_l16}
    ''')
def zero_pads():
    return L('\n'.join(f'v_accvgpr_write_b32 a{b}, 0' for b in (AK1 + 2, AK1 + 3, AK1 + 6, AK1 + 7, AKB1 + 2, AKB1 + 3, AKB1 + 6, AKB1 + 7))
             + f'\nv_mov_b32 v{QA1+8}, 0\nv_mov_b32 v{QA1+9}, 0')

def mask_reads(reg, adr, base, a0=0):
    l = []
    for a in range(a0, 4):
        for b in (0, 2):
            k = base + 8 * a + b
            l.append(Ins(f'ds_read2_b32 {vr(reg+4*a+b,2)}, {adr} offset0:{k} offset1:{k+1}'))
    return l
def mask_far(): return mask_reads(M_FAR, v_mA, 64)
def mask_rest(): return mask_reads(M_DIAG, v_mA, 0) + mask_reads(MB_DIAG, v_mA, 159) + mask_reads(MB_PREV, v_mA, 127, 2) + mask_reads(MB_PREV0, v_mB0, 127, 2)

def kvq_loads():
    g = []
    for ty in (1, 2):
        for gi in range(3):
            g.append(L(f's_add_u32 m0, {s_mK}, {(L_KA if ty == 1 else L_VA) + gi*GS}\n'
                       f's_add_u32 {s_e1}, {s_dS if gi == 2 else s_dF}, {QKV[0] + (80*ty + (gi if gi < 2 else 0))*GRP - 4096}'))
            g.append(L(f'buffer_load_dwordx4 {v_dma}, {sWS}, {s_e1} offen sc1 lds'))
            st = Stream()
            tok = st.vm(f'buffer_load_dwordx4 {v_dma}, {sWS}, {s_e1} offen offset:1024 sc1 lds')
            g.append(st.l)
    for x in (f'buffer_load_dwordx4 {vr(QA0,4)}, {v_q4}, {sWS}, {s_bF} offen sc1',
              f'buffer_load_dwordx2 {vr(QA1,2)}, {v_qe}, {sWS}, {s_bS} offen sc1',
              f'buffer_load_dwordx2 {vr(QA1+2,2)}, {v_qo}, {sWS}, {s_bS} offen sc1',
              f'buffer_load_dwordx4 {vr(QA0+4,4)}, {v_q4}, {sWS}, {s_bF} offen offset:512 sc1',
              f'buffer_load_dwordx2 {vr(QA1+4,2)}, {v_qe}, {sWS}, {s_bS} offen offset:512 sc1',
              f'buffer_load_dwordx2 {vr(QA1+6,2)}, {v_qo}, {sWS}, {s_bS} offen offset:512 sc1'):
        g.append([Ins(x)])
    return g, tok
def wo_loads(f0, f1):
    g = []
    for F in range(f0, f1):
        s_, br, ct = F // 10, (F // 5) & 1, F % 5
        if ct % 4 == 0 or F == f0: g.append(L(f's_add_u32 {s_e2}, {s_wob}, {WOF + br*32*25600 + (5*s_ + (ct & 4))*1024}'))
        g.append(L(f'buffer_load_dwordx4 {ar(4*F,4)}, {v_l16}, {sWS}, {s_e2} offen offset:{(ct%4)*1024} sc1'))
    return g

steps = [(0, 0)] + [(j, q) for j in range(1, 9) for q in range(2)] + [(9, 1)]
def k0_read(j): return Ins(f'ds_read_b128 {ar(AK0+4*(j&1),4)}, {v_k0} offset:{512*j}')
def k1_read(j): return Ins(f'ds_read_b64 {ar(AK1+4*((j>>1)&1),2)}, {v_k1} offset:{512*j}')
def v_read(j, kk, u): return Ins(f'ds_read_b64_tr_b16 {ar(AV+8*(j&1)+4*kk+2*u,2)}, {v_v} offset:{512*j+256*kk+128*u}')
def qka(n):
    j, q = steps[n]
    c = vr(M_FAR, 16) if j == q else vr(M_DIAG, 16) if j == 8 + q else '0'
    return f'{mm} {vr(SB[n&1],16)}, {ar(AK0+4*(j&1),4)}, {vr(QA0+4*q,4)}, {c}'
def qkb(n):
    j, q = steps[n]
    return f'{mm} {vr(SB[n&1],16)}, {ar(AK1+4*((j>>1)&1),4)}, {vr(QA1+4*q+2*(j&1),4)}, {vr(SB[n&1],16)}'
def pv(n, kk):
    j, q = steps[n]
    c = '0' if (j == q and kk == 0) else vr(OA[q], 16)
    return f'{mm} {vr(OA[q],16)}, {ar(AV+8*(j&1)+4*kk,4)}, {vr(P0+4*kk,4)}, {c}'
def exps(n, g): return [f'v_exp_f32 v{E0+4*(g&1)+i}, v{SB[n&1]+4*g+i}' for i in range(4)]
def cvts(g): return [f'v_cvt_pk_bf16_f32 v{P0+2*g+i}, v{E0+4*(g&1)+2*i}, v{E0+4*(g&1)+2*i+1}' for i in range(2)]
def att_pre(): return [k0_read(0), k1_read(0), k0_read(1)] + [v_read(0, kk, u) for kk in range(2) for u in range(2)]

S(f'''
s_cmp_ge_u32 s2, 0x100
s_cbranch_scc1 L_end
s_load_dwordx2 s[4:5], s[0:1], 0
s_load_dwordx2 s[8:9], s[0:1], 8
s_load_dwordx2 s[12:13], s[0:1], 32
s_load_dwordx2 s[16:17], s[0:1], 72
s_load_dwordx2 s[20:21], s[0:1], 56
s_load_dwordx2 s[24:25], s[0:1], 64
''')
stamp('start')
if opt('cpf', 1):
    S(f'''
    s_getpc_b64 s[28:29]
    L_pc:
    s_mov_b32 s30, L_end-L_pc
    s_mov_b32 s31, 0x20000
    s_andn2_b32 {s_t0}, s2, 7
    v_min_u32 v132, 7, v0
    v_add_lshl_u32 v132, v132, {s_t0}, 7
    buffer_load_dword v133, v132, {sTMP}, 0 offen
    ''')
S(f'''
v_lshrrev_b32 {v_tmp}, 6, v0
v_and_b32 {v_lane}, 63, v0
v_readfirstlane_b32 {s_w}, {v_tmp}
s_and_b32 {s_xcd}, s2, 7
s_lshr_b32 {s_t}, s2, 3
s_and_b32 {s_t0}, {s_xcd}, 1
s_lshl_b32 {s_t0}, {s_t0}, 3
s_and_b32 {s_t1}, {s_t}, 7
s_add_u32 {s_rb}, {s_t0}, {s_t1}
s_lshr_b32 {s_t0}, {s_xcd}, 1
s_lshl_b32 {s_t0}, {s_t0}, 2
s_lshr_b32 {s_t2}, {s_t}, 3
s_add_u32 {s_cb}, {s_t0}, {s_t2}
s_mov_b32 s6, {2048*1280}
s_mov_b32 s7, 0x20000
s_mov_b32 s11, 0x20000
s_cmp_eq_u32 {s_cb}, 15
s_cbranch_scc1 L_spare
s_mov_b32 s10, {640*3840}
s_lshl_b32 {s_rot}, {s_t2}, 1
s_add_u32 {s_rot}, {s_rot}, {s_t1}
s_and_b32 {s_rot}, {s_rot}, 7
s_mul_i32 {s_rot}, {s_rot}, 5
s_lshr_b32 {s_rot}, {s_rot}, 2
''')
def rot(st, n):
    if n >= 2: st(f's_cmp_eq_u32 {s_rot}, 10\ns_cselect_b32 {s_rot}, 0, {s_rot}')
    st(f'''
    s_mul_i32 s{SW0+n}, {s_rot}, {64*3840}
    s_lshl_b32 s{SX0+n}, {s_rot}, 7
    s_add_u32 {s_rot}, {s_rot}, 1
    ''')
rot(S, 0)
S(f'''
v_lshrrev_b32 {v_t1}, 4, {v_lane}
v_lshrrev_b32 {v_t2}, 3, {v_lane}
v_mul_u32_u24 {v_t2}, 1280, {v_t2}
v_and_b32 {v_t3}, 7, {v_lane}
v_xor_b32 {v_t3}, {v_t3}, {v_t1}
s_lshl_b32 {s_t2}, {s_rb}, 2
s_add_u32 {s_t2}, {s_t2}, {s_w}
s_mul_i32 {s_t2}, {s_t2}, {32*1280}
v_add_u32 {v_t2}, {s_t2}, {v_t2}
v_lshl_add_u32 v{VXD}, {v_t3}, 4, {v_t2}
v_xor_b32 {v_t3}, 4, {v_t3}
v_lshl_add_u32 v{VXD+1}, {v_t3}, 4, {v_t2}
v_add_u32 v{VXD+2}, {2*(8*1280-1024)}, v{VXD}
v_add_u32 v{VXD+3}, {3*(8*1280-1024)}, v{VXD+1}
v_add_u32 v{VXD+1}, {8*1280-1024}, v{VXD+1}
s_lshl_b32 {s_mW}, {s_w}, 12
s_add_u32 {s_mX}, {s_mW}, {L_X}
v_and_b32 {v_t2}, 15, {v_lane}
v_lshlrev_b32 {v_t3}, 2, {v_t1}
v_xor_b32 {v_t2}, {v_t2}, {v_t3}
v_mul_u32_u24 {v_t3}, 3840, {v_t1}
v_lshl_add_u32 {v_t3}, {v_t2}, 4, {v_t3}
s_mul_i32 {s_t1}, {s_w}, {16*3840}
s_lshl_b32 {s_t2}, {s_cb}, 8
s_add_u32 {s_t1}, {s_t1}, {s_t2}
v_add_u32 v{VWD}, {s_t1}, {v_t3}
''')
for i in range(1, 4):
    S(f'v_add_u32 v{VWD+i}, {i*(4*3840-1024)}, v{VWD}')
rot(S, 1)
S('s_waitcnt lgkmcnt(0)')

dma_tok = {}
WSLOT = [n % 4 for n in range(10)] + [2, 6, 3, 7, 0, 4, 1, 2, 3, 0]
WISS = {n: n - 2 for n in range(2, 11)}
WISS.update({11: 8, 12: 9, 13: 9, 14: 10, 15: 13, 16: 13, 17: 14, 18: 14, 19: 16})
for a_ in ARGS:
    if a_.startswith('--wiss='): WISS.update({11 + i: int(x) for i, x in enumerate(a_[7:].split(','))})
CTM = opt('ctm', 4)
def dma_stage(n):
    p, ns, slot = n // 10, n % 10, WSLOT[n]
    g = []
    if p == 0:
        g.append(L(f's_add_u32 m0, {s_mX}, {slot*16384}'))
        for i in range(4):
            g.append(L(f'buffer_load_dwordx4 v{VXD+i}, {sX}, s{SX0+ns} offen offset:{1024*i} lds'))
        g[-1] += L(f's_add_u32 m0, {s_mW}, {slot*16384}')
    else:
        g.append(L(f's_add_u32 m0, {s_mW}, {slot*16384}'))
    for i in range(4):
        st = Stream()
        dma_tok[n] = st.vm(f'buffer_load_dwordx4 v{VWD+i}, {sWB if p else sWA}, s{SW0+ns} offen offset:{1024*i} lds')
        g.append(st.l)
    return g

def common_consts(st):
    st(f'''
    s_mov_b32 s18, {WS_SIZE + (65536 if STAMPS else 0)}
    s_mov_b32 s19, 0x20000
    s_mov_b32 s26, 256
    s_mov_b32 s27, 0x20000
    s_mov_b32 s31, 0x20000
    v_cmp_eq_u32 vcc, 0, v0
    v_mov_b32 {v_big}, {BIG}
    v_mov_b32 {v_one}, 1
    v_lshlrev_b32 {v_l16}, 4, {v_lane}
    v_cndmask_b32 {v_flag}, {v_big}, 0, vcc
    ''')

for g in dma_stage(0): S.extend(g)
common_consts(S)
stamp('iss0')
d1 = dma_stage(1)
PRE = opt('pre', 5)
for g in d1[:PRE]: S.extend(g)
pre = Stream()
for n in range(2, 10): rot(pre, n)
pre(f'''
v_lshrrev_b32 {v_t1}, 5, {v_lane}
v_bfe_u32 {v_t2}, {v_lane}, 2, 2
v_lshl_add_u32 {v_t3}, {v_t1}, 3, {v_t2}
v_lshlrev_b32 {v_t3}, 8, {v_t3}
v_bfe_u32 {v_tmp}, {v_lane}, 4, 1
v_lshl_add_u32 {v_t3}, {v_tmp}, 5, {v_t3}
v_and_b32 {v_tmp}, 1, {v_lane}
v_lshl_add_u32 {v_t3}, {v_tmp}, 4, {v_t3}
v_bfe_u32 {v_tmp}, {v_lane}, 1, 1
v_lshl_add_u32 {v_t3}, {v_tmp}, 3, {v_t3}
v_lshl_add_u32 {v_t3}, {v_t2}, 6, {v_t3}
s_and_b32 {s_t0}, {s_w}, 1
s_lshr_b32 {s_t1}, {s_w}, 1
s_lshl_b32 {s_t2}, {s_t0}, 7
v_xor_b32 v{VWR}, {s_t2}, {v_t3}
v_xor_b32 v{VWR+1}, 64, v{VWR}
v_and_b32 {v_t2}, 31, {v_lane}
v_bfe_u32 {v_t3}, {v_lane}, 1, 3
v_xor_b32 {v_t3}, {v_t3}, {v_t1}
v_lshlrev_b32 {v_t3}, 4, {v_t3}
v_lshl_add_u32 {v_t3}, {v_t2}, 7, {v_t3}
s_lshl_b32 {s_t2}, {s_t1}, 13
s_add_u32 {s_t2}, {s_t2}, {L_X}
v_add_u32 v{VXR}, {s_t2}, {v_t3}
''')
for s_ in range(1, 4):
    pre(f'v_xor_b32 v{VXR+s_}, {s_*32}, v{VXR}')
pre(f'''
s_lshl_b32 {s_t2}, {s_rb}, 1
s_add_u32 {s_t2}, {s_t2}, {s_t1}
s_lshl_b32 {s_t2}, {s_t2}, 10
v_lshlrev_b32 {v_t1}, 15, {v_t1}
v_lshl_add_u32 {v_t1}, {v_t2}, 4, {v_t1}
v_add_u32 {v_st}, {s_t2}, {v_t1}
s_lshl_b32 {s_stb}, {s_cb}, 1
s_add_u32 {s_stb}, {s_stb}, {s_t0}
s_lshl_b32 {s_stb}, {s_stb}, 18
s_cmp_lt_u32 {s_cb}, 5
s_cselect_b32 {s_scale}, {f32(QSCALE)}, 1.0
''')
setup2(pre)
TB = opt('tb', -1); TBH = opt('tbh', 1)
if TB >= 0:
    nl = 20 if TBH else 40
    pre(f'''
    v_lshrrev_b32 v134, 1, {v_lane}
    v_mul_u32_u24 v134, 3840, v134
    v_and_b32 v135, 1, {v_lane}
    v_lshl_add_u32 v134, v135, 7, v134
    v_cmp_gt_u32 vcc, {nl}, {v_lane}
    s_and_b32 s56, {s_rb}, {15 if TBH else 7}
    s_lshl_b32 s56, s56, 2
    s_add_u32 s56, s56, {s_w}
    v_cndmask_b32 v134, {v_big}, v134, vcc
    s_mul_i32 s56, s56, {nl//2*3840}
    s_lshl_b32 s57, {s_cb}, 8
    s_add_u32 s56, s56, s57
    ''')
    touch = Ins(f'buffer_load_dword v135, v134, {sWB}, s56 offen')
    if TB == 0: pre.l.append(touch)
pre = atomize(pre.l)
SPLIT = min(opt('split', 1000), len(pre))
pre, su_post = pre[:SPLIT], pre[SPLIT:]
if d1[PRE:]: weave(pre, d1[PRE:], opt('pre0', 20), opt('pre1', 120))
for g in pre: S.extend(g)
stamp('setup')

seq = []
def tilewise(ns, k2):
    ns = list(ns); m = len(ns) - k2
    l = [(n, s_, 0, rt) for n in ns for s_ in range(4) for rt in range(2)]
    l += [(n, s_, 1, rt) for n in ns[:m] for s_ in range(4) for rt in range(2)]
    for rt in range(2): l += [(n, s_, 1, rt) for n in ns[m:] for s_ in range(4)]
    return l
for n in range(20 - CTM):
    if n == 9: seq += tilewise([9], 0)
    else: seq += [(n, s_, c, rt) for s_ in range(4) for c in range(2) for rt in range(2)]
seq += tilewise(range(20 - CTM, 20), opt('ct2', 2))
NG = len(seq)
def xreg(n, s_, rt):
    n %= 10
    return ar(32 * n + 8 * s_ + 4 * rt, 4) if n < 8 else vr(XV + 32 * (n - 8) + 8 * s_ + 4 * rt, 4)
BO = opt('bo', 5)
firstuse = {}; lastuse = {}
for k, e in enumerate(seq): firstuse.setdefault(e[0], k); lastuse[e[0]] = k
BARS = list(range(1, 21 - CTM)) + ([19] if CTM > 2 else [])
def bar_of(n): return max(b for b in [0] + BARS if b <= n)
def bar_gap(n): return firstuse[bar_of(n)] - BO
for n in range(4, 20):
    prev = [m for m in range(n) if WSLOT[m] == WSLOT[n] or (m < 10 and WSLOT[n] == 4 + m % 4)]
    assert WISS[n] in BARS and lastuse[prev[-1]] < bar_gap(WISS[n]), n
frag = []; fidx = []
for k, e in enumerate(seq):
    if k == 0 or seq[k - 1][:3] != e[:3]: frag.append([e[:3], k, k])
    frag[-1][2] = k; fidx.append(len(frag) - 1)
reads = []; xseen = set(); first_reads = []
for j, ((n, s_, c), u0, u1) in enumerate(frag):
    lo = max(frag[j - 4][2] if j >= 4 else -1, bar_gap(n))
    sl_ = WSLOT[n]; buf = WRING + 4 * (j & 3)
    l = [Ins(f'ds_read_b64_tr_b16 {vr(buf+2*u,2)}, v{(VXR if sl_ >= 4 else VWR)+c} offset:{(sl_%4)*16384+(16*s_+4*u)*256}') for u in range(2)]
    if n < 10 and (n, s_) not in xseen:
        xseen.add((n, s_))
        l = [Ins(f'ds_read_b128 {xreg(n,s_,rt)}, v{VXR+s_} offset:{(n%4)*16384+rt*4096}') for rt in range(2)] + l
    if j < 2: first_reads += l
    else: reads += [Item(x, lo, u0 - (3 if u0 - 3 >= lo else 2)) for x in l]
mf = []
for k, (n, s_, c, rt) in enumerate(seq):
    acc = vr(ACC[n // 10] + 16 * (2 * c + rt), 16)
    mf.append(Ins(f'{mm} {acc}, {vr(WRING+4*(fidx[k]&3),4)}, {xreg(n,s_,rt)}, {"0" if n % 10 == 0 and s_ == 0 else acc}'))
done = {}
for k, (n, s_, c, rt) in enumerate(seq): done[(n // 10, 2 * c + rt)] = k
def epi1_tile(p, T):
    g = []; c, rt = T >> 1, T & 1
    for u in range(2):
        b = ACC[p] + 16 * T + 8 * u
        g.append(L(f's_add_u32 {s_e0}, {s_stb}, {QKV[p]+(4*c+2*u)*GRP}'))
        for i in range(8): g.append(L(f'v_mul_f32 v{b+i}, {s_scale}, v{b+i}'))
        for i in range(4): g.append(L(f'v_cvt_pk_bf16_f32 v{b+i}, v{b+2*i}, v{b+2*i+1}'))
        st = Stream(); tok = st.vm(f'buffer_store_dwordx4 {vr(b,4)}, {v_st}, {sWS}, {s_e0} offen offset:{512*rt} sc1')
        g.append(st.l)
    return g, tok

cap = [6 - (1 if k + 1 < NG and fidx[k + 1] != fidx[k] else 0) for k in range(NG)]
fixed = {}
FLAGA = opt('flagA', 14)
for n in BARS:
    fixed[bar_gap(n)] = [('BAR', n)]; cap[bar_gap(n)] -= 2 + (3.5 if n == FLAGA else 0)
dmas = []
for b in range(0, 17):
    l = [g for n in range(2, 20) if WISS[n] == b for g in dma_stage(n)]
    if l:
        lo = max(bar_gap(b), 0)
        dmas += paced(l, lo, lo + (opt('dsp', 14) if len(l) > 5 else 7), 2)
KV0 = opt('kv0', 262); KV1 = opt('kv1', 290); KVB = opt('kvb', 312)
assert KV0 > bar_gap(16) + 9
kv, tokKV = kvq_loads()
dmas += [Item(mk(poll_check, v_pres, v_p1, sWS, s_F1A) + [('ST', 'pc1')], KV0 - 1, KV0 - 1)] + paced(kv, KV0, KV1, 2)
epi = []
EA1 = opt('epiAend', 188)
for T in range(4):
    g, tokA = epi1_tile(0, T)
    lo = done[(0, T)] + 3
    it = asap(g, lo, lo + 1)
    for i, x in enumerate(it): x.hi = max(lo, 154 + (28 * T + i) * (EA1 - 154) // 112) + 2
    epi += it
for T in range(3):
    g, tokB = epi1_tile(1, T)
    lo = done[(1, T)] + 3
    it = asap(g, lo, lo + 1)
    e0 = done[(1, 0)] + 3; e1 = done[(1, 2)] + 3
    for i, x in enumerate(it): x.hi = max(lo, e0 + (28 * T + i) * (e1 - e0) // 56) + 1 if T < 2 else NG
    epi += it
NWO1 = opt('nwo1', 0); NA = min(NWO1, opt('na', 0)); assert NA <= 30
WO0 = opt('wo0', 222); WO1 = opt('wo1', 258)
misc = []
if TB > 0: misc.append(Item(touch, TB, TB + 2))
if su_post: misc += paced(su_post, 0, 70, 4)
misc += [Item(mk(poll_issue, v_pres, v_zero, sDBG, '0'), 80, 84), Item(mk(poll_check, v_pres, v_zero, sDBG, '0'), 120, 124)]
misc += paced(setup_late(), 130, 140, 4)
if NA: misc += [Item(mk(poll_issue, v_pres, v_p2, sWS, s_F1A), opt('p2i', 148), opt('p2i', 148) + 2)]
misc += paced([Ins(f'v_add_u32 v{VXR+c}, {L_X}, v{VWR+c}') for c in range(2)], 156, 160, 3)
if NA: misc += [Item(mk(poll_check, v_pres, v_p2, sWS, s_F1A) + [('ST', 'pc2')], WO0 - 1, WO0 - 1)]
wl = paced(wo_loads(0, NA), WO0, WO1, 3) if NA else []
P1I = KV0 - opt('p1d', 20)
misc += [x for x in wl if x.lo < P1I] + [Item(mk(poll_issue, v_pres, v_p1, sWS, s_F1A), P1I, P1I + 2)] + [x for x in wl if x.lo >= P1I]
if NA < NWO1: misc += paced(wo_loads(NA, NWO1), KV1, NG - 2, 2)
misc2 = paced(mask_far(), 230, 250, 4) + paced(zero_pads(), lastuse[17] + 1, lastuse[17] + 6, 2)
st = Stream(); st.wait(tokKV); st('s_barrier'); fixed[KVB] = st.l + [('ST', 'kvb')]; cap[KVB] -= 2
misc2 += paced(att_pre(), KVB, NG - 2, 1)
rep_ = []
gaps, over = schedule(NG, cap, [reads, dmas, epi, misc, misc2], rep_)
if '--sched' in ARGS:
    for n in range(20): print(n, ' '.join('%4.1f' % x for x in rep_[16 * n:16 * n + 16]))
last_def = {}; last_use = {}
for k, m in enumerate(mf):
    for r in m.defs: last_def[r] = k
    for r in m.srcab: last_use[r] = k
for k, g in enumerate(gaps):
    for it in g:
        if isinstance(it, tuple): continue
        if it.kind in ('valu', 'vm') or (it.kind == 'ds' and k > 200):
            for r in it.uses | it.defs: assert last_def.get(r, -1) <= k or k < 150, (k, it.text)
            if 'tr_b16 v' not in it.text:
                for r in it.defs: assert last_use.get(r, -1) <= k, (k, it.text)

S.wait(dma_tok[0]); S('s_barrier')
stamp('first')
S.l += first_reads
for k in range(NG):
    if k + 1 < NG and fidx[k + 1] == fidx[k]: S.use(mf[k].srcab | mf[k + 1].srcab)
    S.l.append(mf[k])
    if opt('slow', 0) and k < 160: S('s_nop %d' % opt('slow', 0))
    for it in fixed.get(k, []) + gaps[k]:
        if isinstance(it, tuple) and it[0] == 'ST':
            if FINE: stamp(it[1])
        elif isinstance(it, tuple):
            n2 = it[1]
            tk = [dma_tok[m] for m in range(20) if bar_of(m) == n2]
            if n2 == FLAGA: tk.append(tokA)
            S.wait(*tk)
            S('s_barrier')
            if n2 == FLAGA: set_flag(S, v_flag, s_f1, 0)
            if FINE or n2 in (10, 14, 16): stamp('b%d' % n2)
        else:
            S.l.append(it)
stamp('p1end')
S(qka(0)); S(qkb(0))
mrest = mask_rest()
S.l += mrest[:8]
g, tokB = epi1_tile(1, 3)
for x in g: S.l += x
S('L_join:')
stamp('join')
nst_join = nstamp[0] - 1

N = len(steps)
groups = []
for n in range(N):
    for g in range(4):
        st = Stream()
        if g == 0 and n + 1 < N: st(qka(n + 1))
        if g == 1 and n > 0: st(pv(n - 1, 1))
        if g == 2 and n + 1 < N: st(qkb(n + 1))
        if g == 3: st(pv(n, 0))
        if g > 0 or n > 0:
            for x in cvts((g - 1) & 3): st(x)
        for x in exps(n, g): st(x)
        groups.append(st.l)
first = {}
for n, (j, q) in enumerate(steps): first.setdefault(j, n)
last = {j: n for n, (j, q) in enumerate(steps)}
for j in range(1, 10):
    if j >= 2: groups[4 * max(last[j-2] - 1, 0) + 1].append(k0_read(j))
    if j % 2 == 0: groups[4 * max(first[j] - 3, 0) + 0].append(k1_read(j))
    for kk in range(2):
        for u in range(2):
            base = 4 * (last[j-2] + 1) + 1 if j >= 2 else 0
            groups[base + 2 * kk + u].append(v_read(j, kk, u))
weave(groups, mrest[8:], 4, 36)
FB = opt('fb', 4)
st = Stream(); st.wait(tokB); st('s_barrier'); set_flag(st, v_flag, s_f1, 0); groups[4 * FB - 1] += st.l
groups[0] += L(f's_add_u32 {s_f1}, {s_f1}, 32768')
P3S = opt('p3s', 11); P3D = opt('p3d', 2)
NWO2 = opt('nwo2', 44)
NWOM = min(NWO2, opt('nwom', 34))
if NWOM > NWO1: weave(groups, wo_loads(NWO1, NWOM), 1, 4 * (P3S - P3D) - 1)
if NWO2 > NWOM: weave(groups, wo_loads(NWOM, NWO2), 4 * P3S + opt('bln', 12), 72)
groups[4 * (P3S - P3D) - 1] += mk(poll_issue, v_pres, v_p3, sWS, s_F1B)
groups[4 * P3S - 2] += L(f'''
s_add_u32 s60, {s_bF}, {QKV[1]}
s_add_u32 s61, {s_bS}, {QKV[1]}
s_add_u32 s62, {s_bF}, {QKV[1] + 80*GRP - 512}
s_add_u32 s63, {s_bS}, {QKV[1] + 80*GRP - 512}
''')
groups[4 * P3S - 3] += L(f'''
s_add_u32 s64, {s_bF}, {QKV[1] + 160*GRP}
s_add_u32 s65, {s_bF}, {QKV[1] + 161*GRP - 1088}
s_add_u32 s66, {s_bS}, {QKV[1] + 160*GRP - 2176}
s_mov_b32 m0, {s_mV}
''')
groups[4 * P3S - 1] += mk(poll_check, v_pres, v_p3, sWS, s_F1B)
bl = L(f'''
buffer_load_dword {v_g[0]}, {v_gad}, {sWS}, {s_gb} offen sc1
buffer_load_dword {v_g[1]}, {v_gad}, {sWS}, {s_gb} offen offset:128 sc1
buffer_load_dwordx4 {vr(QB0,4)}, {v_q4}, {sWS}, s60 offen sc1
buffer_load_dwordx4 {vr(KB0,4)}, {v_kb0}, {sWS}, s62 offen sc1
buffer_load_dwordx2 {vr(QB1,2)}, {v_qe}, {sWS}, s61 offen sc1
buffer_load_dwordx2 {vr(QB1+2,2)}, {v_qo}, {sWS}, s61 offen sc1
buffer_load_dwordx2 {ar(AKB1,2)}, {v_kb1}, {sWS}, s63 offen sc1
buffer_load_dwordx4 {vr(KB0+4,4)}, {v_q4}, {sWS}, s62 offen offset:512 sc1
buffer_load_dwordx4 {vr(QB0+4,4)}, {v_q4}, {sWS}, s60 offen offset:512 sc1
buffer_load_dwordx2 {vr(QB1+4,2)}, {v_qo}, {sWS}, s61 offen offset:512 sc1
buffer_load_dwordx4 {vr(KB0+8,4)}, {v_q4}, {sWS}, s62 offen offset:1024 sc1
buffer_load_dwordx2 {ar(AKB1+4,2)}, {v_qo}, {sWS}, s63 offen offset:1024 sc1
buffer_load_dwordx4 {v_l16}, {sWS}, s64 offen sc1 lds
buffer_load_dwordx4 {v_l16}, {sWS}, s65 offen offset:1088 sc1 lds
buffer_load_dwordx4 {v_l16}, {sWS}, s66 offen offset:2176 sc1 lds
''')
st = Stream(); st(f's_add_u32 m0, {s_mV}, 3264\nv_mov_b32 v{QB1+6}, 0\nv_mov_b32 v{QB1+7}, 0')
tokVB = st.vm(f'buffer_load_dwordx4 {v_halo}, {sWS}, 0 offen sc1 lds'); bl.append(st.l)
weave(groups, bl, 4 * P3S, 4 * P3S + opt('bln', 12))
for k, g in enumerate(groups):
    S.l += g
    if FINE and k % 8 == 7: stamp('a%d' % (k // 4))
for x in cvts(3): S(x)
S(f's_add_u32 {s_e1}, {s_ob}, {OBR}\ns_nop 0')
S(pv(N - 1, 1))
stamp('attA')
S(f'''
s_lshl_b32 {s_t0}, {s_R}, 2
s_lshl_b32 {s_t1}, {s_w}, 10
s_add_u32 {s_t0}, {s_t0}, {s_t1}
s_mul_i32 {s_t0}, {s_t0}, 640
''')
for s_ in range(4): S(f's_add_u32 s{SX0+s_}, {s_t0}, {O_OFF + s_*163840}')
for u in range(2): S(f's_add_u32 s{SX0+4+u}, {s_t0}, {O_OFF + u*81920}')
S(f'''
s_mov_b32 {s_t1}, {hex(64 << 23)}
v_subrev_u32 {v_t1}, {hex(95 << 23)}, v{OA[0]+12}
v_subrev_u32 {v_t2}, {hex(95 << 23)}, v{OA[1]+12}
v_max_u32 {v_t1}, {v_t1}, {v_t2}
v_cmp_le_u32 vcc, {s_t1}, {v_t1}
s_cbranch_vccnz L_truemax
L_Aok:
''')
FBK = Stream()
FBK('@reset')
FBK(f'''
L_truemax:
s_lshr_b32 {s_t1}, {s_q0}, 5
s_sub_u32 {s_t1}, 8, {s_t1}
s_nop 7
''')
def fb_qk(j, q):
    c = vr(M_FAR, 16) if j == q else vr(M_DIAG, 16) if j == 8 + q else '0'
    FBK(f'''
    ds_read_b128 {ar(AK0,4)}, {v_k0} offset:{512*j}
    ds_read_b64 {ar(AK1,2)}, {v_k1} offset:{512*(j & ~1)}
    {mm} {vr(SB[0],16)}, {ar(AK0,4)}, {vr(QA0+4*q,4)}, {c}
    {mm} {vr(SB[0],16)}, {ar(AK1,4)}, {vr(QA1+4*q+2*(j&1),4)}, {vr(SB[0],16)}
    ''')
for q in range(2):
    FBK(f'v_mov_b32 {v_t3}, {NEGINF}')
    for i in range(16): FBK(f'v_mov_b32 v{OA[q]+i}, 0')
    for ps in range(2):
        for j in range(q, q + 9):
            l = lab('skip')
            FBK(f's_cmp_gt_i32 {s_t1}, {j}\ns_cbranch_scc1 {l}')
            if ps == 1:
                for kk in range(2):
                    for u in range(2): FBK(f'ds_read_b64_tr_b16 {ar(AV+4*kk+2*u,2)}, {v_v} offset:{512*j+256*kk+128*u}')
            fb_qk(j, q)
            if ps == 0:
                for i in range(0, 16, 2): FBK(f'v_max3_f32 {v_t3}, {v_t3}, v{SB[0]+i}, v{SB[0]+i+1}')
            else:
                for i in range(16): FBK(f'v_sub_f32 v{SB[0]+i}, v{SB[0]+i}, {v_t3}')
                for i in range(16): FBK(f'v_exp_f32 v{SB[0]+i}, v{SB[0]+i}')
                for i in range(8): FBK(f'v_cvt_pk_bf16_f32 v{P0+i}, v{SB[0]+2*i}, v{SB[0]+2*i+1}')
                for kk in range(2): FBK(f'{mm} {vr(OA[q],16)}, {ar(AV+4*kk,4)}, {vr(P0+4*kk,4)}, {vr(OA[q],16)}')
                FBK('s_nop 7')
            FBK(l + ':')
        if ps == 0:
            FBK(f'''
            s_nop 1
            v_mov_b32 {v_t4}, {v_t3}
            v_permlane32_swap_b32 {v_t3}, {v_t4}
            v_max_f32 {v_t3}, {v_t3}, {v_t4}
            ''')
FBK('s_nop 15\ns_branch L_Aok')

OSC = '' if opt('local', 0) else ' sc1'
def epi2(br, q, o, pk=False):
    st = Stream()
    st(f'v_rcp_f32 {v_t1}, v{o+12}')
    if br: st(f'v_sub_f32 {v_g[q]}, 1.0, {v_g[q]}')
    st(f'v_mul_f32 {v_t1}, {v_g[q]}, {v_t1}')
    if pk:
        for i in range(0, 12, 2): st(f'v_pk_mul_f32 {vr(o+i,2)}, {vr(o+i,2)}, {vr(22,2)} op_sel_hi:[1,0]')
    else:
        for i in range(12): st(f'v_mul_f32 v{o+i}, {v_t1}, v{o+i}')
    for i in range(6): st(f'v_cvt_pk_bf16_f32 v{o+i}, v{o+2*i}, v{o+2*i+1}')
    so = s_e1 if br else s_ob
    st(f'buffer_store_dwordx4 {vr(o,4)}, {v_o4}, {sWS}, {so} offen offset:{1280*q}{OSC}')
    tok = st.vm(f'buffer_store_dwordx2 {vr(o+4,2)}, {v_o2}, {sWS}, {so} offen offset:{1280*q}{OSC}')
    return st.l, tok
qkB = [[Ins(x)] for x in (
    f'{mm} {vr(SP[0],16)}, {vr(KB0,4)}, {vr(QB0,4)}, {vr(MB_PREV0,16)}',
    f'{mm} {vr(SP[0],16)}, {ar(AKB1,4)}, {vr(QB1,4)}, {vr(SP[0],16)}',
    f'{mm} {vr(SD[0],16)}, {vr(KB0+4,4)}, {vr(QB0,4)}, {vr(MB_DIAG,16)}',
    f'{mm} {vr(SD[0],16)}, {ar(AKB1,4)}, {vr(QB1+2,4)}, {vr(SD[0],16)}',
    f'{mm} {vr(SP[1],16)}, {vr(KB0+4,4)}, {vr(QB0+4,4)}, {vr(MB_PREV,16)}',
    f'{mm} {vr(SP[1],16)}, {ar(AKB1,4)}, {vr(QB1+4,4)}, {vr(SP[1],16)}',
    f'{mm} {vr(SD[1],16)}, {vr(KB0+8,4)}, {vr(QB0+4,4)}, {vr(MB_DIAG,16)}',
    f'{mm} {vr(SD[1],16)}, {ar(AKB1+4,4)}, {vr(QB1+4,4)}, {vr(SD[1],16)}')]
st = Stream(); st.wait(tokVB)
for u in range(2): st(f'ds_read_b64_tr_b16 {ar(VB+2*u,2)}, {v_vh} offset:{128*u}')
for t in range(2):
    for kk in range(2):
        for u in range(2): st(f'ds_read_b64_tr_b16 {ar(VB+4+8*t+4*kk+2*u,2)}, {v_vb} offset:{512*t+256*kk+128*u}')
vbr = st.l
e0, _ = epi2(0, 0, OA[0], True); e1, tokOA = epi2(0, 1, OA[1], True)
S.l += e0 + e1
st2('epiA')
weave(qkB, vbr, 2, 6)
for g in qkB[:6]: S.l += g
st2('qkB')
def softB(q):
    st = Stream()
    b = SP[q] + 8
    assert SD[q] == SP[q] + 16
    st(f'v_max3_f32 {v_t3}, v{b}, v{b+1}, v{b+2}')
    st(f'v_max3_f32 {v_t4}, v{b+3}, v{b+4}, v{b+5}')
    for i in range(6, 22, 4):
        st(f'v_max3_f32 {v_t3}, {v_t3}, v{b+i}, v{b+i+1}')
        st(f'v_max3_f32 {v_t4}, {v_t4}, v{b+i+2}, v{b+i+3}')
    st(f'v_max3_f32 {v_t3}, {v_t3}, v{b+22}, v{b+23}')
    st(f'v_max_f32 {v_t3}, {v_t3}, {v_t4}')
    st(f'v_mov_b32 {v_t4}, {v_t3}')
    st(f'v_permlane32_swap_b32 {v_t3}, {v_t4}')
    st(f'v_max_f32 {v_t3}, {v_t3}, {v_t4}')
    for i in range(0, 24, 2): st(f'v_pk_add_f32 {vr(b+i,2)}, {vr(b+i,2)}, {vr(24,2)} op_sel_hi:[1,0] neg_lo:[0,1] neg_hi:[0,1]')
    vop = [VB if q == 0 else VB + 8, VB + 4 + 8 * q, VB + 8 + 8 * q]
    for c in range(3):
        for i in range(8): st(f'v_exp_f32 v{b+8*c+i}, v{b+8*c+i}')
        if c: st(f'{mm} {vr(OB[q],16)}, {ar(vop[c-1],4)}, {vr(b+8*(c-1),4)}, {"0" if c == 1 else vr(OB[q],16)}')
        for i in range(4): st(f'v_cvt_pk_bf16_f32 v{b+8*c+i}, v{b+8*c+2*i}, v{b+8*c+2*i+1}')
    return st.l, Ins(f'{mm} {vr(OB[q],16)}, {ar(vop[2],4)}, {vr(b+16,4)}, {vr(OB[q],16)}')
l0, m0_ = softB(0); l1, m1_ = softB(1)
lb = l0[:5] + qkB[6] + l0[5:10] + qkB[7] + l0[10:] + l1[:2] + [m0_] + l1[2:]
SPLITF = opt('splitf', 1); FA = opt('fa', 50)
S.l += lb[:FA]
if SPLITF:
    S.wait(tokOA); set_flag(S, v_flagw, s_f2, 0)
    st2('flgA')
S.l += lb[FA:]
e0, _ = epi2(1, 0, OB[0]); e1, tokOB = epi2(1, 1, OB[1], True)
S.l += e0[:2]; S.l.append(m1_); S.l += e0[2:]; S.l += e1
st2('epiB')
NWO3 = max(NWO2, opt('nwo3', 50))
PAE = opt('pae', 1) and SPLITF
S(f'''
v_and_b32 {v_t1}, 7, {v_lane}
s_lshl_b32 {s_t0}, {s_R}, 12
s_lshl_b32 {s_t1}, {s_w}, 10
s_add_u32 {s_t0}, {s_t0}, {s_t1}
v_lshl_add_u32 {v_p4}, {v_t1}, 7, {s_t0}
''')
for g in wo_loads(NWO2, NWO3): S.l += g

S(f'''
v_lshrrev_b32 {v_t1}, 4, {v_lane}
v_and_b32 {v_t2}, 15, {v_lane}
s_mov_b32 {s_t0}, 81920
v_mul_lo_u32 {v_t3}, {v_h}, {s_t0}
v_and_b32 {v_t4}, 1, {v_t1}
v_lshl_add_u32 {v_t3}, {v_t4}, 8, {v_t3}
v_lshl_add_u32 {v_t3}, {v_t2}, 4, {v_t3}
s_mov_b32 {s_t0}, 163840
v_mul_lo_u32 {v_t4}, {v_t1}, {s_t0}
v_lshl_add_u32 {v_t4}, {v_t2}, 3, {v_t4}
v_add_u32 {v_t4}, 512, {v_t4}
''')
for rho in range(4):
    S(f'''
    s_add_u32 {s_t0}, {s_w}, {rho}
    s_and_b32 {s_t0}, {s_t0}, 3
    s_mul_i32 {s_t1}, {s_t0}, 640
    v_add_u32 v{V4+rho}, {s_t1}, {v_t3}
    v_add_u32 v{V2+rho}, {s_t1}, {v_t4}
    s_mul_i32 {s_t1}, {s_t0}, {3*5120}
    ''')
    if rho: S(f's_add_u32 {s_t1}, {s_t1}, {(rho-1)*5120}\nv_add_u32 v{VRW+rho-1}, {s_t1}, {v_l16}')
    else: S(f'v_add_u32 {v_rr}, {s_t1}, {v_l16}')
S(f'''
v_mul_u32_u24 {v_t2}, 1280, {v_t2}
v_mad_u32_u24 {v_t2}, {v_t1}, 40, {v_t2}
s_lshl_b32 {s_t0}, {s_R}, 2
s_add_u32 {s_t0}, {s_t0}, {s_w}
s_mul_i32 {s_t0}, {s_t0}, {16*1280}
s_mul_i32 {s_t1}, {s_C}, 160
s_add_u32 {s_t0}, {s_t0}, {s_t1}
v_add_u32 {v_out}, {s_t0}, {v_t2}
''')
for i in range(6): S(f's_add_u32 s{SW0+i}, s{SX0+i}, {OBR}')
if PAE: poll_issue(S, 'v1', v_p4, sWS, s_F2)
st2('adr3')
S.wait(tokOB)
if SPLITF:
    if not PAE: poll_issue(S, 'v1', v_p4, sWS, s_F2)
    set_flag(S, v_flagw, s_f2, 4)
    stamp('flg2')
    for g in wo_loads(NWO3, 50): S.l += g
    poll_check(S, 'v1', v_p4, sWS, s_F2)
else:
    set_flag(S, v_flagw, s_f2, 0)
    stamp('flg2')
    for g in wo_loads(NWO3, 50): S.l += g
    poll(S, 'v1', v_p4, sWS, s_F2)
stamp('poll4')
def o_load(br, s_, rho):
    if s_ < 4: return L(f'buffer_load_dwordx4 {vr(OF[br]+16*s_+4*rho,4)}, v{V4+rho}, {sWS}, s{(SW0 if br else SX0)+s_} offen sc1')
    return L('\n'.join(f'buffer_load_dwordx2 {vr(OF[br]+64+4*rho+2*u,2)}, v{V2+rho}, {sWS}, s{(SW0 if br else SX0)+4+u} offen sc1' for u in range(2)))
def mf3(br, s_, rho, ct):
    acc = vr(AC3 + 20 * rho + 4 * ct, 4)
    return [Ins(f'v_mfma_f32_16x16x32_bf16 {acc}, {ar(40*s_+20*br+4*ct,4)}, {vr(OF[br]+16*s_+4*rho,4)}, {"0" if br == 0 and s_ == 0 else acc}')]
order = (1, 2, 3, 0)
ol = [x for s_ in range(5) for rho in range(4) for x in o_load(0, s_, rho)] + [x for rho in order for s_ in range(5) for x in o_load(1, s_, rho)]
NO0 = opt('no0', 12)
S.l += ol[:NO0]
st2('oiss')
sl = [mf3(0, s_, rho, ct) for s_ in range(5) for rho in range(4) for ct in range(5)]
sl += [mf3(1, s_, rho, ct) for rho in order for s_ in range(5) for ct in range(5)]
if SPLITF:
    PB0 = opt('pb0', 30); PB1 = opt('pb1', 70)
    weave(sl, ol[NO0:24], 0, PB0)
    sl[PB0] += mk(poll_issue, 'v1', v_p4, sWS, s_F2, 4)
    sl[PB1] += mk(poll_check, 'v1', v_p4, sWS, s_F2, 4)
    weave(sl, ol[24:], PB1 + 1, opt('no1', 150))
else:
    weave(sl, ol[NO0:], 0, opt('no1', 130))
for k, g in enumerate(sl):
    for it in g[1:]:
        assert not any(it.defs & sl[j][0].srcab for j in range(k + 1)), it.text
for i, rho in enumerate((1, 2, 3)):
    wr = [Ins(f'ds_write_b128 v{VRW+rho-1}, {vr(AC3+20*rho+4*ct,4)} offset:{1024*ct}') for ct in range(5)]
    lo = 125 + 25 * i + 3
    weave(sl, wr, lo, lo + (15 if i < 2 else 5))
sl[189] += L('s_waitcnt lgkmcnt(0)\ns_barrier')
rd = [Ins(f'ds_read_b128 {vr(OF[0]+20*k+4*ct,4)}, {v_rr} offset:{5120*k+1024*ct}') for ct in range(5) for k in range(3)]
weave(sl, rd, 190, 200)
for k, g in enumerate(sl):
    S.l += g
    if k == 99: stamp('mf3A')
    elif k in (0, 19, 39, 59, 79, 124, 149, 174, 188, 189): st2('m%d' % k)
stamp('mf3')
for i in range(0, 20, 2):
    S(f'v_pk_add_f32 {vr(OF[0]+i,2)}, {vr(OF[0]+i,2)}, {vr(OF[0]+20+i,2)}')
    S(f'v_pk_add_f32 {vr(AC3+i,2)}, {vr(AC3+i,2)}, {vr(OF[0]+40+i,2)}')
for i in range(0, 20, 2):
    S(f'v_pk_add_f32 {vr(AC3+i,2)}, {vr(AC3+i,2)}, {vr(OF[0]+i,2)}')
for i in range(10):
    S(f'v_cvt_pk_bf16_f32 v{AC3+i}, v{AC3+2*i}, v{AC3+2*i+1}')
S(f'''
buffer_store_dwordx4 {vr(AC3,4)}, {v_out}, {sOUT}, 0 offen
buffer_store_dwordx4 {vr(AC3+4,4)}, {v_out}, {sOUT}, 0 offen offset:16
buffer_store_dwordx2 {vr(AC3+8,2)}, {v_out}, {sOUT}, 0 offen offset:32
''')
if AMP:
    S('s_waitcnt vmcnt(0)')
    stamp('end')
    S(f'''
    s_cmp_lg_u32 s2, {opt('ampwg', 9)}
    s_cbranch_scc1 L_end
    s_memrealtime s[84:85]
    s_waitcnt lgkmcnt(0)
    s_sub_u32 s80, s82, s80
    s_lshl_b32 s80, s80, 2
    s_min_u32 s80, s80, 100000
    {('s_mov_b32 s80, %d' % opt('ampc', 0)) if opt('ampc', 0) else ''}
    L_amp:
    s_memrealtime s[86:87]
    s_waitcnt lgkmcnt(0)
    s_sub_u32 s86, s86, s84
    s_cmp_lt_u32 s86, s80
    s_cbranch_scc1 L_amp
    ''')
if STAMPS:
    stamp('red')
    S('s_waitcnt vmcnt(0)')
    stamp('end')
    S(f'''
    s_waitcnt lgkmcnt(0)
    s_cmp_lg_u32 {s_w}, 0
    s_cbranch_scc1 L_end
    v_writelane_b32 v0, s{ST0+2*((nstamp[0]-1)&1)}, {nstamp[0]-1}
    s_lshl_b32 {s_t0}, s2, 8
    s_add_u32 {s_t0}, {s_t0}, {STAMP_OFF}
    v_mbcnt_lo_u32_b32 v3, -1, 0
    v_mbcnt_hi_u32_b32 v3, -1, v3
    v_lshlrev_b32 v3, 2, v3
    buffer_store_dword v0, v3, {sWS}, {s_t0} offen
    ''')
    assert nstamp[0] <= 56, nstamp[0]
    open(OUT + '.stamps', 'w').write(' '.join(n or str(i) for i, n in enumerate(stamp_names)))
S('s_endpgm')

T = Stream()
nstamp[0] = 1
T('@reset')
T(f'''
L_spare:
s_waitcnt lgkmcnt(0)
s_load_dwordx2 s[56:57], s[0:1], 16
s_load_dwordx2 s[58:59], s[0:1], 40
s_load_dwordx2 s[8:9], s[0:1], 48
s_mov_b32 s30, {640*1280}
s_mov_b32 s10, 1280
''')
common_consts(T)
T(f'''
v_mov_b32 v64, 0
v_mov_b32 v65, 0
v_mov_b32 v66, 0
v_mov_b32 v67, 0
v_lshlrev_b32 {v_t1}, 4, v0
s_mul_i32 {s_t0}, {s_rb}, 12288
s_add_u32 {s_t0}, {s_t0}, {FLG}
s_add_u32 {s_t1}, {s_t0}, 4096
s_add_u32 {s_t2}, {s_t0}, 8192
buffer_store_dwordx4 v[64:67], {v_t1}, {sWS}, {s_t0} offen sc1
buffer_store_dwordx4 v[64:67], {v_t1}, {sWS}, {s_t1} offen sc1
buffer_store_dwordx4 v[64:67], {v_t1}, {sWS}, {s_t2} offen sc1
''')
T(f'''
s_and_b32 {s_e0}, {s_rb}, 1
s_lshl_b32 {s_e0}, {s_e0}, 2
s_add_u32 {s_e0}, {s_e0}, {s_w}
s_bfe_u32 {s_e1}, {s_rb}, 0x20001
s_mul_i32 {s_t2}, {s_e0}, 160
s_mul_i32 {s_t1}, {s_e1}, {160*1280}
s_add_u32 {s_t2}, {s_t2}, {s_t1}
s_mov_b32 {s_t0}, {(1<<32)//10+1}
''')
for i in range(5):
    T(f'''
    v_add_u32 {v_t1}, {64*i}, {v_lane}
    v_mul_hi_u32 {v_t2}, {v_t1}, {s_t0}
    v_mul_u32_u24 {v_t3}, 10, {v_t2}
    v_sub_u32 {v_t1}, {v_t1}, {v_t3}
    v_mul_u32_u24 {v_t2}, 1280, {v_t2}
    v_lshl_add_u32 {v_t2}, {v_t1}, 4, {v_t2}
    v_add_u32 v{2+i}, {s_t2}, {v_t2}
    ''')
T(f'''
s_mul_i32 {s_mW}, {s_w}, 25600
s_waitcnt lgkmcnt(0)
s_cmp_ge_u32 {s_rb}, 8
s_cselect_b32 s28, s58, s56
s_cselect_b32 s29, s59, s57
''')
wtok = {}
def wo_dma(b):
    T(f's_mov_b32 {s_t3}, {b*32*1280}')
    for i in range(5):
        T(f's_add_u32 m0, {s_mW}, {1024*(5*b+i)}')
        wtok[5 * b + i] = T.vm(f'buffer_load_dwordx4 v{2+i}, {sTMP}, {s_t3} offen lds')
wo_dma(0); wo_dma(1)
T(f'''
v_lshrrev_b32 {v_t1}, 4, {v_lane}
v_bfe_u32 {v_t2}, {v_lane}, 2, 2
v_and_b32 {v_t3}, 3, {v_lane}
v_mul_u32_u24 {v_t3}, 40, {v_t3}
v_add_u32 {v_t3}, {s_mW}, {v_t3}
v_mad_u32_u24 {v_t4}, {v_t1}, 40, {v_t2}
v_add_u32 {v_t4}, 16, {v_t4}
v_mul_u32_u24 {v_t4}, 160, {v_t4}
v_add_u32 v8, {v_t4}, {v_t3}
v_lshrrev_b32 {v_t4}, 1, {v_t1}
v_mad_u32_u24 {v_t2}, {v_t4}, 24, {v_t2}
v_and_b32 {v_t4}, 1, {v_t1}
v_lshl_add_u32 {v_t2}, {v_t4}, 3, {v_t2}
v_mul_u32_u24 {v_t2}, 160, {v_t2}
v_add_u32 v7, {v_t2}, {v_t3}
s_lshr_b32 {s_t0}, {s_rb}, 3
s_lshl_b32 {s_t0}, {s_t0}, 3
s_add_u32 {s_t0}, {s_t0}, {s_e0}
s_lshl_b32 {s_t0}, {s_t0}, 2
s_add_u32 {s_t0}, {s_t0}, {s_e1}
s_mul_i32 {s_stb}, {s_t0}, 25600
v_and_b32 v9, 15, {v_lane}
v_lshlrev_b32 v9, 4, v9
v_mul_u32_u24 v10, 1280, {v_t1}
v_add_u32 v10, v10, v9
v_cmp_eq_u32 vcc, 0, v9
v_lshlrev_b32 {v_t1}, 2, {v_t1}
s_lshl_b32 {s_rot}, {s_rb}, 2
s_add_u32 {s_rot}, {s_rot}, {s_w}
v_cndmask_b32 v11, {v_big}, {v_t1}, vcc
''')
stamp('', T)
setup2(T)
wo_dma(2)
stamp('', T)
for s_ in range(5):
    T.wait(wtok[min(24, (400 * (s_ + 1) - 1) // 64)])
    if s_ == 0:
        T(f'''
        s_barrier
        s_lshl_b32 {s_t0}, {s_rb}, 2
        buffer_store_dword {v_one}, {v_flag}, {sDBG}, {s_t0} offen sc1
        ''')
    for ct in range(5):
        f = 5 * s_ + ct
        for u in range(2):
            if s_ < 4: T(f'ds_read_b64_tr_b16 {vr(140+4*f+2*u,2)}, v7 offset:{(40*s_+4*u)*160+8*ct}')
            else: T(f'ds_read_b64_tr_b16 {vr(140+4*f+2*u,2)}, v8 offset:{640*u+8*ct}')
    if s_ + 3 < 5: wo_dma(s_ + 3)
    if s_ == 2: poll_issue(T, v_pres, v_zero, sDBG, '0')
    for ct in range(5):
        f = 5 * s_ + ct
        if f % 4 == 0: T(f's_add_u32 {s_t1}, {s_stb}, {WOF + f*1024}')
        tokw = T.vm(f'buffer_store_dwordx4 {vr(140+4*f,4)}, {v_l16}, {sWS}, {s_t1} offen offset:{(f%4)*1024} sc1')
    if s_ == 2: tokw2 = tokw
    if FINE: stamp('', T)
poll_check(T, v_pres, v_zero, sDBG, '0')
T.wait(tokw2)
T('s_barrier')
set_flag(T, v_flag, s_f1, 0)
stamp('', T)
GW = 224; GA = 48
T(f's_mul_i32 {s_t1}, {s_rot}, {32*1280}')
for j in range(5): T(f'buffer_load_dwordx4 {vr(GW+4*j,4)}, v9, {sWA}, 0 offen offset:{256*j}')
for i in range(8):
    for j in range(5): T(f'buffer_load_dwordx4 {vr(64+20*i+4*j,4)}, v10, {sX}, {s_t1} offen offset:{256*j}')
    T(f's_add_u32 {s_t1}, {s_t1}, {4*1280}')
    if i == 2:
        T.wait(tokw)
        T('s_barrier')
        set_flag(T, v_flag, s_f1, 8)
        stamp('', T)
poll_issue(T, v_pres, v_p2, sWS, s_F1A)
T(f's_lshl_b32 {s_rot}, {s_rot}, 7\ns_add_u32 {s_rot}, {s_rot}, {G_OFF}')
for i in range(8):
    T(f'v_mov_b32 v{GA+i}, 0')
    for k in range(20): T(f'v_dot2c_f32_bf16 v{GA+i}, v{64+20*i+k}, v{GW+k}')
poll_check(T, v_pres, v_p2, sWS, s_F1A)
wl_ = wo_loads(0, NA)
for g in wl_[:10]: T.l += g
for sh in (8, 4, 2, 1):
    for i in range(8): T(f'v_add_f32_dpp v{GA+i}, v{GA+i}, v{GA+i} row_ror:{sh} row_mask:0xf bank_mask:0xf')
for i in range(8): T(f'v_mul_f32 v{GA+i}, {f32(-math.log2(math.e))}, v{GA+i}')
for i in range(8): T(f'v_exp_f32 v{GA+i}, v{GA+i}')
for i in range(8): T(f'v_add_f32 v{GA+i}, 1.0, v{GA+i}')
for i in range(8): T(f'v_rcp_f32 v{GA+i}, v{GA+i}')
T.l += setup_late()
for i in range(8): tokg = T.vm(f'buffer_store_dword v{GA+i}, v11, {sWS}, {s_rot} offen offset:{16*i} sc1')
stamp('', T)
T.l += mask_far() + zero_pads()
for g in wl_[10:24]: T.l += g
T.wait(tokg)
T('s_barrier')
T(f's_add_u32 {s_t0}, {s_f1}, 32768')
set_flag(T, v_flag, s_t0, 0)
for g in wl_[24:]: T.l += g
stamp('', T)
poll(T, v_pres, v_p1, sWS, s_F1A)
kv, _ = kvq_loads()
for g in kv: T.l += g
if NA < NWO1:
    for g in wo_loads(NA, NWO1): T.l += g
T('s_waitcnt vmcnt(0) lgkmcnt(0)\ns_barrier')
T.l += att_pre()
T(qka(0)); T(qkb(0))
T.l += mask_rest()[:8]
T('s_nop 7')
assert nstamp[0] <= nst_join
while nstamp[0] < nst_join: stamp('', T)
T('s_waitcnt lgkmcnt(0)')
T('s_branch L_join')

S.extend(T); S.extend(tail)
S('L_end:\ns_endpgm')
S.extend(FBK)

stats = []
body = finalize(S, stats)
hdr = open('cdna_kernels/%s.s.ref' % NAME).read().split('; Override')[0]
K = NAME + '_kernel'
txt = hdr + f'''; Generated by a hand-written generator script: one persistent workgroup per CU, phases chained by flags in d_ws.
; @launch grid=(256,1,1) block=(256,1,1) lds={LDS_BYTES}
.amdgcn_target "amdgcn-amd-amdhsa--gfx950"
.text
.globl {K}
.p2align 8
.type {K},@function
{K}:
''' + '\n'.join(body) + f'''
.section .rodata,"a"
.p2align 6
.amdhsa_kernel {K}
  .amdhsa_next_free_vgpr 512
  .amdhsa_next_free_sgpr 102
  .amdhsa_accum_offset 256
  .amdhsa_group_segment_fixed_size 0
  .amdhsa_kernarg_size 80
  .amdhsa_user_sgpr_count 2
  .amdhsa_user_sgpr_kernarg_segment_ptr 1
  .amdhsa_system_sgpr_workgroup_id_x 1
  .amdhsa_float_denorm_mode_32 3
.end_amdhsa_kernel
'''
open(OUT, 'w').write(txt)
print('instructions:', len(body), ' nops:', len(stats), sum(s[0] for s in stats), ' overflow slots', over, 'WS_SIZE', WS_SIZE)
if '--nops' in ARGS:
    for s in stats: print(s)
```

```python
import re
REG_RE = re.compile(r'(?<![\w.])([vas])\[(\d+):(\d+)\]|(?<![\w.])([vas])(\d+)(?![\w\[])|(?<![\w.])(vcc|exec|m0)(?:_lo|_hi)?(?![\w])')
TRANS = ('v_exp_', 'v_log_', 'v_rcp_', 'v_rsq_', 'v_sqrt_', 'v_sin_', 'v_cos_')

def regs_of(op):
    out = []
    for m in REG_RE.finditer(op):
        if m.group(1):
            out += [m.group(1) + str(i) for i in range(int(m.group(2)), int(m.group(3)) + 1)]
        elif m.group(4):
            out.append(m.group(4) + m.group(5))
        else:
            out.append(m.group(6))
    return out

def split_ops(s):
    ops, depth, cur = [], 0, ''
    for ch in s:
        if ch in '[(': depth += 1
        if ch in '])': depth -= 1
        if ch == ',' and depth == 0:
            ops.append(cur.strip()); cur = ''
        else:
            cur += ch
    if cur.strip(): ops.append(cur.strip())
    return ops

class Ins:
    __slots__ = ('text', 'mn', 'kind', 'defs', 'uses', 'tok', 'passes', 'srcc', 'srcab', 'wide_data', 'dpp', 'lds')
    def __init__(self, text, tok=None):
        self.text = text; self.tok = tok
        self.defs = set(); self.uses = set(); self.passes = 0; self.srcc = (); self.srcab = set(); self.wide_data = set(); self.dpp = False; self.lds = False
        t = text.split(';')[0].strip()
        if not t or t.startswith('.'):
            self.kind = 'none'; self.mn = ''; return
        if t.endswith(':'):
            self.kind = 'label'; self.mn = ''; return
        if t.startswith('@'):
            self.kind = 'pseudo'; self.mn = t.split()[0]; return
        p = t.split(None, 1); mn = p[0]; self.mn = mn
        ops = split_ops(p[1]) if len(p) > 1 else []
        R = [regs_of(o) for o in ops]
        allr = lambda l: set(x for r in l for x in r)
        if mn.startswith('v_mfma'):
            self.kind = 'mfma'; self.defs = set(R[0]); self.uses = allr(R[1:]); self.srcc = tuple(R[3]); self.srcab = set(R[1]) | set(R[2])
            self.passes = 8 if '32x32' in mn else 4
        elif mn.startswith('v_'):
            self.kind = 'trans' if mn.startswith(TRANS) else 'valu'
            self.dpp = ('row_' in t or 'quad_perm' in t or 'wave_' in t)
            if mn.startswith('v_permlane') and 'swap' in mn:
                self.defs = allr(R[:2]); self.uses = allr(R[:2])
            elif mn.startswith(('v_add_co', 'v_sub_co', 'v_addc_co', 'v_subb_co')):
                self.defs = allr(R[:2]); self.uses = allr(R[2:])
            elif mn == 'v_nop':
                pass
            else:
                self.defs = set(R[0]); self.uses = allr(R[1:])
                if mn.startswith(('v_fmac', 'v_dot2c', 'v_writelane')) or self.dpp: self.uses |= self.defs
            self.uses.add('exec')
        elif mn.startswith('ds_'):
            self.kind = 'ds'
            if mn.startswith(('ds_read', 'ds_bpermute', 'ds_swizzle')):
                self.defs = set(R[0]); self.uses = allr(R[1:])
            else:
                self.uses = allr(R)
        elif mn.startswith(('buffer_', 'global_')):
            self.kind = 'vm'
            if mn.startswith(('buffer_inv', 'buffer_wbl2')):
                pass
            elif 'load' in mn:
                if re.search(r'\blds\b', t):
                    self.lds = True; self.uses = allr(R) | {'m0'}
                else:
                    self.defs = set(R[0]); self.uses = allr(R[1:])
            else:
                self.uses = allr(R)
                if 'x4' in mn or 'x3' in mn:
                    self.wide_data = set(R[0] if mn.startswith('buffer_') else R[1])
        elif mn.startswith(('s_load', 's_memtime', 's_memrealtime', 's_buffer_load')):
            self.kind = 'smem'; self.defs = set(R[0]); self.uses = allr(R[1:])
        elif mn == 's_waitcnt':
            self.kind = 'wait'
        elif mn == 's_nop':
            self.kind = 'nop'
        elif mn.startswith(('s_cbranch', 's_branch', 's_endpgm', 's_setpc', 's_barrier', 's_sleep', 's_setprio')):
            self.kind = 'ctl'
        elif mn.startswith('s_'):
            self.kind = 'salu'
            if mn.startswith(('s_cmp', 's_bitcmp')):
                self.uses = allr(R)
            else:
                self.defs = set(R[0]); self.uses = allr(R[1:])
                if 'saveexec' in mn: self.defs.add('exec')
        else:
            raise ValueError('unknown instr: ' + text)

class Tok:
    pass

class Stream:
    def __init__(self): self.l = []
    def __call__(self, s, tok=None):
        lines = [x.strip() for x in s.strip('\n').split('\n')]
        lines = [x for x in lines if x]
        for x in lines:
            self.l.append(Ins(x, tok))
        return self
    def vm(self, s):
        t = Tok(); self.l.append(Ins(s.strip(), t)); return t
    def wait(self, *toks):
        i = Ins('@wait'); i.tok = toks; self.l.append(i)
    def use(self, regs):
        i = Ins('@use'); i.uses = set(regs); self.l.append(i)
    def extend(self, o):
        self.l += o.l if isinstance(o, Stream) else o
    def drain(self):
        self('s_waitcnt vmcnt(0) lgkmcnt(0)')

def parse_wait(text):
    vm = re.search(r'vmcnt\((\d+)\)', text); lg = re.search(r'lgkmcnt\((\d+)\)', text)
    return (int(vm.group(1)) if vm else None, int(lg.group(1)) if lg else None)

def resolve_waits(l):
    out = []; vq = []; dq = []; smem = []
    for ins in l:
        nv = nd = None
        def need(q, pred):
            for k in range(len(q) - 1, -1, -1):
                if pred(q[k]): return len(q) - 1 - k
            return None
        if ins.kind == 'pseudo':
            if ins.mn == '@wait':
                toks = ins.tok
                nv = need(vq, lambda o: o.tok in toks); nd = need(dq, lambda o: o.tok in toks)
            elif ins.mn == '@use':
                touched = ins.uses
                nv = need(vq, lambda o: o.defs & touched); nd = need(dq, lambda o: o.defs & touched)
            elif ins.mn == '@reset':
                vq.clear(); dq.clear(); smem.clear(); out.append(ins); continue
            else:
                out.append(ins); continue
        elif ins.kind == 'wait':
            a, b = parse_wait(ins.text)
            if a is not None: del vq[:max(0, len(vq) - a)]
            if b is not None:
                if b == 0: smem.clear()
                del dq[:max(0, len(dq) - b)]
            out.append(ins); continue
        elif ins.kind in ('none', 'label', 'nop'):
            out.append(ins); continue
        else:
            touched = ins.uses | ins.defs
            nv = need(vq, lambda o: o.defs & touched); nd = need(dq, lambda o: o.defs & touched)
            if any(o.defs & touched for o in smem): nd = 0
        if nd is not None and smem: nd = 0
        if nv is not None or nd is not None:
            w = 's_waitcnt'
            if nv is not None:
                nv = min(nv, 63); w += ' vmcnt(%d)' % nv; del vq[:max(0, len(vq) - nv)]
            if nd is not None:
                nd = min(nd, 15); w += ' lgkmcnt(%d)' % nd; del dq[:max(0, len(dq) - nd)]
                if nd == 0: smem.clear()
            out.append(Ins(w))
        if ins.kind == 'pseudo': continue
        out.append(ins)
        if ins.kind == 'vm': vq.append(ins)
        elif ins.kind == 'ds': dq.append(ins)
        elif ins.kind == 'smem': smem.append(ins)
    return out

def is_sg(r): return r[0] == 's' or r == 'vcc'
def required(p, c):
    n = 0
    pv = p.kind in ('valu', 'trans'); cv = c.kind in ('valu', 'trans')
    if pv:
        vd = {r for r in p.defs if r[0] in 'va' and r != 'vcc'}
        sd = {r for r in p.defs if is_sg(r)}
        if c.kind == 'mfma' and vd & c.uses: n = max(n, 2)
        if cv and vd & c.uses:
            if c.mn.startswith(('v_readlane', 'v_readfirstlane')): n = max(n, 1)
            if c.mn.startswith('v_permlane') or c.dpp: n = max(n, 2)
            if p.kind == 'trans' and c.kind != 'trans': n = max(n, 1)
            if p.mn.startswith('v_dot'):
                n = max(n, 0 if (c.mn == p.mn and not (vd & (c.uses - c.defs))) else 3)
        if cv and p.mn.startswith('v_dot') and vd & c.defs and c.mn != p.mn: n = max(n, 3)
        if sd & c.uses:
            if cv: n = max(n, 4 if c.mn.startswith(('v_readlane', 'v_writelane')) else 2)
            if c.kind == 'vm': n = max(n, 5)
        if 'exec' in p.defs: n = max(n, 5)
    elif p.kind == 'mfma':
        big = {4: 8, 8: 12}[p.passes]
        if c.kind == 'mfma':
            if p.defs & c.srcab: n = max(n, big)
            if p.defs & set(c.srcc):
                if not (set(c.srcc) == p.defs and c.passes == p.passes): n = max(n, big - 2)
            elif p.defs & c.defs and not (p.defs == c.defs and c.passes == p.passes): n = max(n, big - 2)
        elif c.kind in ('valu', 'trans', 'vm', 'ds'):
            if p.defs & (c.uses | c.defs): n = max(n, big)
            if cv and set(p.srcc) & c.defs: n = max(n, {4: 3, 8: 7}[p.passes])
    elif p.kind == 'salu':
        if 'm0' in p.defs and c.kind == 'vm' and c.lds: n = max(n, 1)
        if 'm0' in p.defs and c.mn.startswith(('v_writelane', 'v_readlane')) and 'm0' in c.uses: n = max(n, 1)
    elif p.kind == 'vm':
        if p.wide_data & c.defs: n = max(n, 2 if cv or c.kind == 'mfma' else 1)
    return n

def pad_hazards(l, stats=None):
    out = []
    for ins in l:
        if ins.kind in ('none', 'label', 'pseudo'):
            out.append(ins); continue
        dist = 0; need = 0
        for p in reversed(out):
            if p.kind in ('none', 'label', 'pseudo'): continue
            if dist >= 12: break
            r = required(p, ins)
            need = max(need, r - dist)
            dist += (int(p.text.split()[1]) + 1) if p.kind == 'nop' else 1
        if need > 0:
            out.append(Ins('s_nop %d' % (need - 1)))
            if stats is not None: stats.append((need, ins.text))
        out.append(ins)
    return out

def finalize(stream, stats=None):
    l = resolve_waits(stream.l)
    l = pad_hazards(l, stats)
    return [('' if i.kind == 'label' else '    ') + i.text for i in l if i.kind != 'pseudo']

def weave(slots, side, lo=0, hi=None, per=None):
    items = side.l if isinstance(side, Stream) else side
    if hi is None: hi = len(slots)
    n = hi - lo; m = len(items)
    for k, it in enumerate(items):
        s = lo + (k * n // m if per is None else k // per)
        assert s < hi, "side stream does not fit"
        if isinstance(it, list): slots[s] += it
        else: slots[s].append(it)

def atomize(l):
    out = []
    for i in l:
        if i.mn.startswith('s_cselect'): out[-1].append(i)
        else: out.append([i])
    return out

COST = {'valu': 1, 'trans': 2, 'salu': 1, 'ds': 1, 'vm': 2.5, 'ctl': 1, 'wait': 1, 'nop': 1, 'smem': 1}
class Item:
    def __init__(self, ins, lo, hi, sep=False):
        self.ins = ins if isinstance(ins, list) else [ins]
        self.lo = lo; self.hi = hi; self.sep = sep
        self.cost = sum(COST.get(i.kind, 0) if isinstance(i, Ins) else 0 for i in self.ins)
        self.cost += sum(1 for i in self.ins if isinstance(i, Ins) and i.mn == '@wait')
        self.vm = any(isinstance(i, Ins) and i.kind == 'vm' for i in self.ins)
def paced(groups, a, b, slack=3):
    out = []; m = len(groups); prev = None
    for k, g in enumerate(groups):
        g = g if isinstance(g, list) else [g]
        t = a + k * (b - a) // m
        sep = bool(prev) and g[0].kind == 'vm' and any(p.defs & (g[0].uses - {'exec'}) for p in prev)
        out.append(Item(g, t, t + slack, sep)); prev = g
    return out
def asap(groups, a, b):
    out = paced(groups, a, b, 0)
    for it in out: it.lo = a
    return out
def schedule(n, cap, streams, report=None):
    gaps = [[] for _ in range(n)]; pos = [0] * len(streams); lastgap = [-1] * len(streams); over = 0
    for k in range(n):
        used = 0; nvm = 0
        while True:
            best = None
            for si, st in enumerate(streams):
                if pos[si] >= len(st): continue
                it = st[pos[si]]
                if it.lo > k and k < n - 1: continue
                dl = min(x.hi for x in st[pos[si]:pos[si] + 4])
                forced = dl <= k or k == n - 1
                if it.sep and lastgap[si] == k and k < n - 1 and it.hi > k - 1: continue
                if not forced and (used + it.cost > cap[k] or (it.vm and nvm)): continue
                if best is None or dl < best[0]: best = (dl, si)
            if best is None: break
            si = best[1]; it = streams[si][pos[si]]
            gaps[k] += it.ins; used += it.cost; nvm += it.vm; pos[si] += 1; lastgap[si] = k
        over += max(0, used - cap[k])
        if report is not None: report.append(used - cap[k])
    return gaps, over

def mem_first(l):
    out = []
    for it in l:
        k = len(out)
        if isinstance(it, Ins) and it.kind in ('ds', 'vm'):
            while k > 0:
                p = out[k - 1]
                if not isinstance(p, Ins) or p.kind not in ('valu', 'trans', 'salu'): break
                if p.defs & (it.uses | it.defs) or it.defs & p.uses or 'vcc' in p.defs: break
                k -= 1
        out.insert(k, it)
    return out
```

```python
import sys, math, struct
from fw import *

NAME = "gated_mix__sliding_block__sliding_local_dilated__prompt"
ARGS = sys.argv[1:]
STAMPS = '--stamps' in ARGS
FINE = '--fine' in ARGS
FINE2 = '--fine2' in ARGS
def opt(name, default):
    for a in ARGS:
        if a.startswith('--' + name + '='): return int(a.split('=')[1])
    return default
OUT = [a for a in ARGS if not a.startswith('--')]
OUT = OUT[0] if OUT else 'k.s'

GRP = 2048 * 16
QKV = [0, 240 * GRP]
WOF = 480 * GRP
G_OFF = WOF + 64 * 25600
FLG = G_OFF + 8192
F1 = [FLG, FLG + 32768]
WS_SIZE = FLG + 65536
STAMP_OFF = WS_SIZE
BIG = 0x40000000
L_X = 65536
GS = 8192 + 64
L_KA = L_X + 16384; L_VA = L_KA + 3 * GS
L_VB = 131072 + 512; VBW = 4608
L_ONE = L_VB + 4 * VBW + ((L_VA + 3 * GS) % 256)
L_TAB = L_VB + 4 * VBW + 8192 + 256
LDS_BYTES = 160 * 1024
assert L_TAB + 1024 <= LDS_BYTES and L_VA + 3 * GS <= L_VB

def f32(x): return '0x%08x' % struct.unpack('<I', struct.pack('<f', x))[0]
QSCALE = (20 ** -0.5) * math.log2(math.e)
NEGINF = '0xff800000'

sX, sWA, sWB, sWS, sOUT, sDBG, sTMP = 's[4:7]', 's[8:11]', 's[12:15]', 's[16:19]', 's[20:23]', 's[24:27]', 's[28:31]'
s_xcd, s_t, s_rb, s_cb, s_w = 's32', 's33', 's34', 's35', 's36'
s_t0, s_t1, s_t2, s_t3 = 's37', 's38', 's39', 's40'
s_stb, s_scale, s_inv, s_mW, s_mX = 's41', 's42', 's43', 's44', 's45'
s_hd, s_r2, s_so, s_q0 = 's46', 's47', 's48', 's49'
s_cnt, s_f1, s_tag, s_rnd, s_k1, s_wob = 's50', 's51', 's52', 's53', 's54', 's55'
SW0, SX0 = 60, 70
ST0 = 80
s_bF, s_bS, s_dF, s_dS, s_mK, s_mV, s_gb, s_rot = 's84', 's85', 's86', 's87', 's88', 's89', 's90', 's91'
s_e0, s_e1, s_e2, s_e3 = 's92', 's93', 's94', 's95'
s_F1A, s_F1B, s_F2, s_q0z, s_R, s_C = 's96', 's97', 's98', 's99', 's100', 's101'
ROWMAP = opt('rowmap', 0); QRND = opt('qrnd', 0)
v_lane = 'v1'
VWD, VXD, VWR, VXR = 2, 6, 10, 12
v_dma, v_gad, v_kb0, v_k1 = 'v6', 'v7', 'v8', 'v9'
v_st, v_flag, v_one, v_pres, v_l16, v_big = 'v16', 'v17', 'v18', 'v19', 'v20', 'v21'
v_t1, v_t2, v_t3, v_t4, v_tmp, v_zero = 'v22', 'v23', 'v24', 'v25', 'v26', 'v27'
(v_p1, v_p2, v_p3, v_q4, v_qe, v_qo, v_k0, v_v, v_vb, v_vh, v_kb1, v_halo, v_mA, v_mB0, v_flagw, v_o4, v_o2, v_h, v_r, v_tabc) = ['v%d' % i for i in range(28, 48)]
WRING = 48
ACC = [64, 128]
XV = 192
E0, P0 = 48, 56
SB = [64, 192]; M_FAR, M_DIAG = 80, 208; QA0, QA1 = 96, 104; OA = [224, 240]
QB0, QB1, KB0 = 128, 136, 144
v_g = ['v46', 'v47']
MB_DIAG, MB_PREV, MB_PREV0 = 160, 168, 176
SP = [64, 192]; SD = [80, 208]; OB = [96, 112]
V4, V2, VRW, v_rr, v_out, v_p4 = 2, 6, 10, 'v13', 'v14', 'v15'
AC3 = 16; OF = [[128, 144, 160, 176, 224], [96, 112, 192, 208, 240]]; RED = 128
AK0, AK1, AV, AKB1 = 200, 208, 216, 232
VB = 200

def vr(b, n): return 'v[%d:%d]' % (b, b + n - 1)
def ar(b, n): return 'a[%d:%d]' % (b, b + n - 1)
mm = 'v_mfma_f32_32x32x16_bf16'

S = Stream()
tail = Stream()
nstamp = [0]; stamp_names = []
AMP = [a.split('=')[1].split(',') for a in ARGS if a.startswith('--amp=')]
AMP = AMP[0] if AMP else None
def stamp(name='', st=None):
    if AMP and name in AMP and st is None: S('s_memrealtime s[%d:%d]' % (ST0 + 2 * AMP.index(name), ST0 + 2 * AMP.index(name) + 1))
    if STAMPS:
        st = st or S
        k = nstamp[0]
        if k == 1:
            for i in range(56, 64): st('v_writelane_b32 v0, 0, %d' % i)
        if k > 0: st('v_writelane_b32 v0, s%d, %d' % (ST0 + 2 * ((k - 1) & 1), k - 1))
        st('s_memrealtime s[%d:%d]' % (ST0 + 2 * (k & 1), ST0 + 2 * (k & 1) + 1))
    stamp_names.append(name)
    nstamp[0] += 1
def st2(n):
    if FINE2: stamp(n)
nlab = [0]
def lab(p):
    nlab[0] += 1
    return 'L_%s_%d' % (p, nlab[0])

PIDX = {v_zero: 0, v_p1: 1, v_p2: 2, v_p3: 3, v_p4: 4}
def poll_issue(st, res, adr, srd, soff, off=0):
    st('buffer_load_dword %s, %s, %s, %s offen offset:%d sc1' % (res, adr, srd, soff, off))
def poll_check(st, res, adr, srd, soff, off=0):
    l = lab('poll'); b = lab('back')
    st('v_cmp_ne_u32 vcc, 1, %s' % res)
    st('s_cbranch_vccnz %s' % l)
    st(b + ':')
    tail('@reset')
    tail(f'''
    {l}:
    s_mov_b32 {s_cnt}, 0
    {l}_a:
    buffer_load_dword {res}, {adr}, {srd}, {soff} offen offset:{off} sc1
    s_add_u32 {s_cnt}, {s_cnt}, 1
    {('v_writelane_b32 v0, %s, %d' % (s_cnt, 56 + PIDX[adr] + off // 4)) if STAMPS else ''}
    s_waitcnt vmcnt(0)
    v_cmp_ne_u32 vcc, 1, {res}
    s_cbranch_vccz {b}
    s_cmp_lt_u32 {s_cnt}, 0x40000
    s_cbranch_scc1 {l}_a
    s_branch {b}
    ''')
def poll(st, res, adr, srd, soff):
    poll_issue(st, res, adr, srd, soff); poll_check(st, res, adr, srd, soff)
def set_flag(st, vf, base, off):
    st(f'buffer_store_dword {v_one}, {vf}, {sWS}, {base} offen offset:{off} sc1')
def mk(fn, *a):
    st = Stream(); fn(st, *a); return st.l
def L(txt):
    st = Stream(); st(txt); return st.l

def setup2(st):
    st(f'''
    s_mov_b32 s14, {640*3840}
    s_mov_b32 s15, 0x20000
    s_mov_b32 s22, {2048*1280}
    s_mov_b32 s23, 0x20000
    s_mov_b32 {s_F1A}, {F1[0]}
    s_mov_b32 {s_F1B}, {F1[1]}
    s_and_b32 {s_C}, {s_t}, 7
    s_lshr_b32 {s_t2}, {s_t}, 3
    s_lshl_b32 {s_t0}, {s_xcd}, 2
    s_add_u32 {s_R}, {s_t0}, {s_t2}
    s_mov_b32 {s_r2}, {s_xcd if ROWMAP else s_C}
    s_mov_b32 {s_hd}, {s_t if ROWMAP else s_R}
    ''')
    if opt('map3', 1) == 1:
        st(f'''
        s_lshr_b32 {s_R}, {s_xcd}, 1
        s_lshl_b32 {s_R}, {s_R}, 3
        s_lshr_b32 {s_t0}, {s_t}, 2
        s_add_u32 {s_R}, {s_R}, {s_t0}
        s_and_b32 {s_C}, {s_xcd}, 1
        s_lshl_b32 {s_C}, {s_C}, 2
        s_and_b32 {s_t0}, {s_t}, 3
        s_add_u32 {s_C}, {s_C}, {s_t0}
        ''')
    st(f'''
    s_lshl_b32 {s_q0}, {s_r2}, 8
    s_lshl_b32 {s_t0}, {s_w}, 6
    s_add_u32 {s_q0}, {s_q0}, {s_t0}
    s_mul_i32 {s_e0}, {s_hd}, 5
    s_lshr_b32 {s_e0}, {s_e0}, 1
    s_and_b32 {s_t3}, {s_hd}, 1
    s_add_u32 {s_e1}, {s_e0}, {s_t3}
    s_lshl_b32 {s_so}, {s_t3}, 3
    s_lshl_b32 {s_t3}, {s_t3}, 1
    s_add_u32 {s_e2}, {s_e0}, 2
    s_sub_u32 {s_e2}, {s_e2}, {s_t3}
    s_lshl_b32 {s_e1}, {s_e1}, 15
    s_lshl_b32 {s_e2}, {s_e2}, 15
    s_lshl_b32 {s_t0}, {s_q0}, 4
    s_add_u32 {s_bF}, {s_e1}, {s_t0}
    s_add_u32 {s_bS}, {s_e2}, {s_t0}
    s_lshl_b32 {s_e3}, {s_r2}, 1
    s_add_u32 {s_e3}, {s_e3}, {s_w}
    s_lshl_b32 {s_t0}, {s_e3}, 11
    s_add_u32 {s_dF}, {s_e1}, {s_t0}
    s_add_u32 {s_dS}, {s_e2}, {s_t0}
    s_lshl_b32 {s_mK}, {s_w}, 11
    s_mul_i32 {s_mV}, {s_w}, {VBW}
    s_add_u32 {s_mV}, {s_mV}, {L_VB}
    s_lshl_b32 {s_gb}, {s_q0}, 2
    s_add_u32 {s_gb}, {s_gb}, {G_OFF}
    s_lshl_b32 {s_f1}, {s_rb}, 11
    s_lshl_b32 {s_t0}, {s_cb}, 7
    s_add_u32 {s_f1}, {s_f1}, {s_t0}
    s_add_u32 {s_f1}, {s_f1}, {F1[0]}
    s_lshl_b32 {s_wob}, {s_C}, 2
    s_add_u32 {s_wob}, {s_wob}, {s_w}
    s_mul_i32 {s_wob}, {s_wob}, 25600
    v_and_b32 {v_zero}, 60, {v_lane}
    v_lshrrev_b32 {v_h}, 5, {v_lane}
    v_and_b32 {v_r}, 31, {v_lane}
    v_bfe_u32 {v_t1}, {v_lane}, 2, 1
    v_lshl_add_u32 {v_t1}, {v_t1}, 1, {s_e0}
    v_lshrrev_b32 {v_t1}, 4, {v_t1}
    v_and_b32 {v_t2}, 3, {v_lane}
    v_min_u32 {v_t3}, 2, {v_t2}
    v_mad_u32_u24 {v_t4}, {v_t3}, 5, {v_t1}
    v_mad_u32_u24 {v_tmp}, {v_t2}, 5, {v_t1}
    v_min_u32 {v_tmp}, 15, {v_tmp}
    s_sub_u32 {s_t1}, {s_e3}, 2
    s_max_i32 {s_t1}, {s_t1}, 0
    s_lshl_b32 {s_t1}, {s_t1}, 11
    s_andn2_b32 {s_t2}, {s_q0}, 127
    s_lshl_b32 {s_t2}, {s_t2}, 4
    v_cmp_eq_u32 vcc, 0, {v_t2}
    v_mov_b32 {v_t1}, {s_t1}
    v_mov_b32 {v_t3}, {s_t2}
    v_cndmask_b32 {v_t1}, {v_t1}, {v_t3}, vcc
    v_lshl_add_u32 {v_p1}, {v_t4}, 7, {v_t1}
    s_sub_u32 {s_t1}, {s_q0}, 32
    s_max_i32 {s_t1}, {s_t1}, 0
    s_andn2_b32 {s_t1}, {s_t1}, 127
    s_lshl_b32 {s_t1}, {s_t1}, 4
    v_and_b32 {v_t2}, 8, {v_lane}
    v_cmp_eq_u32 vcc, 0, {v_t2}
    v_mov_b32 {v_t1}, {s_t1}
    v_and_b32 {v_t2}, 1, {v_lane}
    v_cndmask_b32 {v_t1}, {v_t1}, {v_t3}, vcc
    v_lshl_add_u32 {v_p3}, {v_tmp}, 7, {v_t1}
    v_cmp_gt_u32 s[38:39], 32, {v_lane}
    s_lshr_b32 {s_t0}, {s_R}, 1
    s_lshl_b32 {s_t0}, {s_t0}, 4
    s_add_u32 {s_t0}, {s_t0}, {s_w}
    v_add_lshl_u32 {v_t1}, {v_t2}, {s_t0}, 7
    v_cndmask_b32 {v_p3}, {v_t1}, {v_p3}, s[38:39]
    s_lshl_b32 {s_t0}, {s_w}, 1
    s_lshr_b32 {s_t1}, {s_C}, 2
    s_add_u32 {s_t0}, {s_t0}, {s_t1}
    s_lshl_b32 {s_t0}, {s_t0}, 11
    s_add_u32 {s_t0}, {s_t0}, {15*128}
    v_lshl_add_u32 {v_p2}, {v_t2}, 14, {s_t0}
    v_cndmask_b32 {v_p1}, {v_p2}, {v_p1}, vcc
    ''')
    st(f'''
    s_cmp_ge_u32 {s_e3}, 2
    s_cselect_b32 {s_inv}, 0, {BIG}
    s_cselect_b32 {s_t2}, 0x3f803f80, 0
    v_mov_b32 v128, {s_t2}
    v_mov_b32 v129, {s_t2}
    v_mov_b32 v130, {s_t2}
    v_mov_b32 v131, {s_t2}
    s_add_u32 {s_t1}, {s_mK}, {L_ONE}
    v_add_u32 {v_t1}, {s_t1}, {v_l16}
    ds_write_b128 {v_t1}, v[128:131]
    ds_write_b128 {v_t1}, v[128:131] offset:1024
    ''')
    st(f'''
    v_lshlrev_b32 {v_q4}, 15, {v_h}
    v_lshl_add_u32 {v_q4}, {v_r}, 4, {v_q4}
    v_cmp_eq_u32 vcc, 0, {v_h}
    v_lshl_add_u32 {v_t1}, {v_r}, 4, {s_so}
    s_cmp_eq_u32 {s_q0}, 0
    s_cselect_b32 {s_q0z}, {BIG}, 0
    v_cndmask_b32 {v_qe}, {v_big}, {v_t1}, vcc
    v_cndmask_b32 {v_qo}, {v_t1}, {v_big}, vcc
    v_mov_b32 {v_t2}, {s_q0z}
    v_cndmask_b32 {v_t2}, 0, {v_t2}, vcc
    v_add3_u32 {v_kb1}, {v_t2}, {v_l16}, {s_so}
    v_and_b32 {v_t2}, 15, {v_lane}
    v_mov_b32 {v_o4}, 0x10000
    v_lshrrev_b32 {v_t1}, 4, {v_lane}
    v_lshl_add_u32 {v_t3}, {v_t1}, 15, {s_bF}
    v_cmp_eq_u32 vcc, 2, {v_t1}
    v_mov_b32 {v_t4}, {s_bS}
    s_add_u32 {s_t3}, {s_q0z}, {QKV[1] + 160*GRP - 256}
    v_cndmask_b32 {v_t3}, {v_t3}, {v_t4}, vcc
    v_cmp_eq_u32 vcc, 3, {v_t1}
    v_lshl_add_u32 {v_t3}, {v_t2}, 4, {v_t3}
    v_add_u32 {v_t3}, {s_t3}, {v_t3}
    v_cndmask_b32 {v_halo}, {v_t3}, {v_big}, vcc
    ''')
    st(f'''
    s_lshl_b32 {s_t0}, {s_w}, 10
    v_mul_u32_u24 {v_t1}, {GS}, {v_h}
    v_lshl_add_u32 {v_t1}, {v_r}, 4, {v_t1}
    s_add_u32 {s_t1}, {s_t0}, {L_KA}
    v_add_u32 {v_k0}, {s_t1}, {v_t1}
    s_add_u32 {s_k1}, {s_t0}, {L_KA + 2*GS}
    s_add_u32 {s_k1}, {s_k1}, {s_so}
    v_bfe_u32 {v_t1}, {v_lane}, 2, 2
    v_lshl_add_u32 {v_t1}, {v_h}, 2, {v_t1}
    v_lshlrev_b32 {v_t1}, 4, {v_t1}
    v_and_b32 {v_pres}, 16, {v_lane}
    v_cmp_eq_u32 vcc, 0, {v_pres}
    v_and_b32 {v_t2}, 1, {v_lane}
    v_bfe_u32 {v_t3}, {v_lane}, 1, 1
    v_add_u32 {v_t4}, 2, {v_t3}
    v_lshlrev_b32 {v_t3}, 3, {v_t3}
    v_mov_b32 {v_tmp}, {s_so}
    v_cndmask_b32 {v_t2}, {v_t4}, {v_t2}, vcc
    v_cndmask_b32 {v_t3}, {v_tmp}, {v_t3}, vcc
    v_cmp_eq_u32 vcc, 3, {v_t2}
    v_add_u32 {v_t1}, {v_t1}, {v_t3}
    s_add_u32 {s_t1}, {s_t0}, {L_VA}
    v_mul_u32_u24 {v_t3}, {GS}, {v_t2}
    v_add3_u32 {v_v}, {v_t1}, {v_t3}, {s_t1}
    v_mul_u32_u24 {v_t3}, 1088, {v_t2}
    v_add3_u32 {v_vb}, {v_t1}, {v_t3}, {s_mV}
    s_add_u32 {s_t1}, {s_mV}, {3*1088}
    v_lshlrev_b32 {v_t3}, 8, {v_t2}
    v_add3_u32 {v_vh}, {v_t1}, {v_t3}, {s_t1}
    s_add_u32 {s_t1}, {s_t0}, {L_ONE}
    v_add_u32 {v_t3}, {s_t1}, {v_t1}
    v_add_u32 {v_t1}, {L_ONE + 4096}, {v_t1}
    v_cndmask_b32 {v_v}, {v_v}, {v_t3}, vcc
    v_cndmask_b32 {v_vb}, {v_vb}, {v_t1}, vcc
    v_cndmask_b32 {v_vh}, {v_vh}, {v_t1}, vcc
    ''')
    mk_ = [0, 0, 0, 0]
    for e in range(256):
        ok = (e - 32 <= 0) if e < 64 else (e - 96 > 0) if e < 128 else (0 <= 191 - e <= 14 and (191 - e) % 2 == 0)
        if ok: mk_[e >> 6] |= 1 << (e & 63)
    assert mk_[3] == 0 and mk_[1] & 0xffffffff == 0 and mk_[2] & 0xffffffff == 0
    st(f'''
    s_cmp_eq_u32 {s_w}, 0
    s_cselect_b32 s38, 0x{mk_[0] & 0xffffffff:x}, 0
    s_cselect_b32 s39, 0x{mk_[0] >> 32:x}, 0
    s_cmp_eq_u32 {s_w}, 1
    s_cselect_b32 s39, 0x{mk_[1] >> 32:x}, s39
    s_cmp_eq_u32 {s_w}, 2
    s_cselect_b32 s39, 0x{mk_[2] >> 32:x}, s39
    v_mov_b32 {v_tmp}, {NEGINF}
    s_lshl_b32 {s_t0}, {s_w}, 8
    s_add_u32 {s_t0}, {s_t0}, {L_TAB}
    v_cndmask_b32 {v_tmp}, {v_tmp}, 0, s[38:39]
    v_lshl_add_u32 {v_t1}, {v_lane}, 2, {s_t0}
    ds_write_b32 {v_t1}, {v_tmp}
    v_lshlrev_b32 {v_t1}, 2, {v_h}
    v_sub_u32 {v_t1}, {v_t1}, {v_r}
    v_lshlrev_b32 {v_t1}, 2, {v_t1}
    v_add_u32 {v_mA}, {L_TAB + 128}, {v_t1}
    s_cmp_eq_u32 {s_q0}, 0
    s_cselect_b64 vcc, -1, 0
    v_mov_b32 {v_t1}, {L_TAB + 4*64}
    v_cndmask_b32 {v_mB0}, {v_mA}, {v_t1}, vcc
    ''')
def setup_late():
    return L(f'''
    v_add_u32 {v_dma}, {s_inv}, {v_l16}
    v_lshlrev_b32 {v_gad}, 2, {v_r}
    v_add_u32 {v_kb0}, {s_q0z}, {v_q4}
    v_add_u32 {v_k1}, {s_k1}, {v_l16}
    ''')
def zero_pads():
    return L('\n'.join(f'v_accvgpr_write_b32 a{b}, 0' for b in (AK1 + 2, AK1 + 3, AK1 + 6, AK1 + 7, AKB1 + 2, AKB1 + 3, AKB1 + 6, AKB1 + 7))
             + f'\nv_mov_b32 v{QA1+8}, 0\nv_mov_b32 v{QA1+9}, 0')

def mask_reads(reg, adr, base, a0=0):
    l = []
    for a in range(a0, 4):
        for b in (0, 2):
            k = base + 8 * a + b
            l.append(Ins(f'ds_read2_b32 {vr(reg+4*a+b,2)}, {adr} offset0:{k} offset1:{k+1}'))
    return l
def mask_far(): return mask_reads(M_FAR, v_mA, 64)
def mask_rest(): return mask_reads(M_DIAG, v_mA, 0) + mask_reads(MB_DIAG, v_mA, 159) + mask_reads(MB_PREV, v_mA, 127, 2) + mask_reads(MB_PREV0, v_mB0, 127, 2)

def kvq_loads():
    g = []
    for ty in (1, 2):
        for gi in range(3):
            g.append(L(f's_add_u32 m0, {s_mK}, {(L_KA if ty == 1 else L_VA) + gi*GS}\n'
                       f's_add_u32 {s_e1}, {s_dS if gi == 2 else s_dF}, {QKV[0] + (80*ty + (gi if gi < 2 else 0))*GRP - 4096}'))
            g.append(L(f'buffer_load_dwordx4 {v_dma}, {sWS}, {s_e1} offen sc1 lds'))
            st = Stream()
            tok = st.vm(f'buffer_load_dwordx4 {v_dma}, {sWS}, {s_e1} offen offset:1024 sc1 lds')
            g.append(st.l)
    for x in (f'buffer_load_dwordx4 {vr(QA0,4)}, {v_q4}, {sWS}, {s_bF} offen sc1',
              f'buffer_load_dwordx2 {vr(QA1,2)}, {v_qe}, {sWS}, {s_bS} offen sc1',
              f'buffer_load_dwordx2 {vr(QA1+2,2)}, {v_qo}, {sWS}, {s_bS} offen sc1',
              f'buffer_load_dwordx4 {vr(QA0+4,4)}, {v_q4}, {sWS}, {s_bF} offen offset:512 sc1',
              f'buffer_load_dwordx2 {vr(QA1+4,2)}, {v_qe}, {sWS}, {s_bS} offen offset:512 sc1',
              f'buffer_load_dwordx2 {vr(QA1+6,2)}, {v_qo}, {sWS}, {s_bS} offen offset:512 sc1'):
        g.append([Ins(x)])
    return g, tok
def wo_loads(f0, f1, adr=v_l16):
    g = []
    for F in range(f0, f1):
        br, f = F // 25, F % 25
        if f % 4 == 0 or F == f0: g.append(L(f's_add_u32 {s_e2}, {s_wob}, {WOF + br*32*25600 + (f & ~3)*1024}'))
        g.append(L(f'buffer_load_dwordx4 {ar(4*F,4)}, {adr}, {sWS}, {s_e2} offen offset:{(f%4)*1024} sc1'))
    return g

steps = [(0, 0)] + [(j, q) for j in range(1, 9) for q in range(2)] + [(9, 1)]
def k0_read(j): return Ins(f'ds_read_b128 {ar(AK0+4*(j&1),4)}, {v_k0} offset:{512*j}')
def k1_read(j): return Ins(f'ds_read_b64 {ar(AK1+4*((j>>1)&1),2)}, {v_k1} offset:{512*j}')
def v_read(j, kk, u): return Ins(f'ds_read_b64_tr_b16 {ar(AV+8*(j&1)+4*kk+2*u,2)}, {v_v} offset:{512*j+256*kk+128*u}')
def qka(n):
    j, q = steps[n]
    c = vr(M_FAR, 16) if j == q else vr(M_DIAG, 16) if j == 8 + q else '0'
    return f'{mm} {vr(SB[n&1],16)}, {ar(AK0+4*(j&1),4)}, {vr(QA0+4*q,4)}, {c}'
def qkb(n):
    j, q = steps[n]
    return f'{mm} {vr(SB[n&1],16)}, {ar(AK1+4*((j>>1)&1),4)}, {vr(QA1+4*q+2*(j&1),4)}, {vr(SB[n&1],16)}'
def pv(n, kk):
    j, q = steps[n]
    c = '0' if (j == q and kk == 0) else vr(OA[q], 16)
    return f'{mm} {vr(OA[q],16)}, {ar(AV+8*(j&1)+4*kk,4)}, {vr(P0+4*kk,4)}, {c}'
def exps(n, g): return [f'v_exp_f32 v{E0+4*(g&1)+i}, v{SB[n&1]+4*g+i}' for i in range(4)]
def cvts(g): return [f'v_cvt_pk_bf16_f32 v{P0+2*g+i}, v{E0+4*(g&1)+2*i}, v{E0+4*(g&1)+2*i+1}' for i in range(2)]
def att_pre(): return [k0_read(0), k1_read(0), k0_read(1)] + [v_read(0, kk, u) for kk in range(2) for u in range(2)]

S(f'''
s_cmp_ge_u32 s2, 0x100
s_cbranch_scc1 L_end
s_load_dwordx2 s[4:5], s[0:1], 0
s_load_dwordx2 s[8:9], s[0:1], 8
s_load_dwordx2 s[12:13], s[0:1], 32
s_load_dwordx2 s[16:17], s[0:1], 72
s_load_dwordx2 s[20:21], s[0:1], 56
s_load_dwordx2 s[24:25], s[0:1], 64
''')
stamp('start')
if opt('cpf', 1):
    S(f'''
    s_getpc_b64 s[28:29]
    L_pc:
    s_mov_b32 s30, L_end-L_pc
    s_mov_b32 s31, 0x20000
    s_andn2_b32 {s_t0}, s2, 7
    v_min_u32 v132, 7, v0
    v_add_lshl_u32 v132, v132, {s_t0}, 7
    buffer_load_dword v133, v132, {sTMP}, 0 offen
    ''')
S(f'''
v_lshrrev_b32 {v_tmp}, 6, v0
v_and_b32 {v_lane}, 63, v0
v_readfirstlane_b32 {s_w}, {v_tmp}
s_and_b32 {s_xcd}, s2, 7
{('s_xor_b32 %s, %s, %d' % (s_xcd, s_xcd, opt('xmap', 0))) if opt('xmap', 0) else ''}
s_lshr_b32 {s_t}, s2, 3
s_and_b32 {s_t0}, {s_xcd}, 1
s_lshl_b32 {s_t0}, {s_t0}, 3
s_and_b32 {s_t1}, {s_t}, 7
s_add_u32 {s_rb}, {s_t0}, {s_t1}
s_lshr_b32 {s_t0}, {s_xcd}, 1
s_lshl_b32 {s_t0}, {s_t0}, 2
s_lshr_b32 {s_t2}, {s_t}, 3
s_add_u32 {s_cb}, {s_t0}, {s_t2}
s_mov_b32 s6, {2048*1280}
s_mov_b32 s7, 0x20000
s_mov_b32 s11, 0x20000
s_cmp_eq_u32 {s_cb}, 15
s_cbranch_scc1 L_spare
s_mov_b32 s10, {640*3840}
s_lshl_b32 {s_rot}, {s_t2}, 1
s_add_u32 {s_rot}, {s_rot}, {s_t1}
''')
if opt('rot', 8) == 8:
    S(f's_and_b32 {s_rot}, {s_rot}, 7\ns_mul_i32 {s_rot}, {s_rot}, 5\ns_lshr_b32 {s_rot}, {s_rot}, 2')
else:
    S(f'''
    s_lshl_b32 {s_rot}, {s_rot}, 1
    s_add_u32 {s_t0}, {s_xcd}, 1
    s_lshr_b32 {s_t0}, {s_t0}, 1
    s_add_u32 {s_rot}, {s_rot}, {s_t0}
    s_and_b32 {s_rot}, {s_rot}, 15
    s_mul_i32 {s_rot}, {s_rot}, 5
    s_lshr_b32 {s_rot}, {s_rot}, 3
    ''')
def rot(st, n):
    if n >= 1: st(f's_cmp_eq_u32 {s_rot}, 10\ns_cselect_b32 {s_rot}, 0, {s_rot}')
    st(f'''
    s_mul_i32 s{SW0+n}, {s_rot}, {64*3840}
    s_lshl_b32 s{SX0+n}, {s_rot}, 7
    s_add_u32 {s_rot}, {s_rot}, 1
    ''')
rot(S, 0)
S(f'''
v_lshrrev_b32 {v_t1}, 4, {v_lane}
v_lshrrev_b32 {v_t2}, 3, {v_lane}
v_mul_u32_u24 {v_t2}, 1280, {v_t2}
v_and_b32 {v_t3}, 7, {v_lane}
v_xor_b32 {v_t3}, {v_t3}, {v_t1}
s_lshl_b32 {s_t2}, {s_rb}, 2
s_add_u32 {s_t2}, {s_t2}, {s_w}
s_mul_i32 {s_t2}, {s_t2}, {32*1280}
v_add_u32 {v_t2}, {s_t2}, {v_t2}
v_lshl_add_u32 v{VXD}, {v_t3}, 4, {v_t2}
v_xor_b32 {v_t3}, 4, {v_t3}
v_lshl_add_u32 v{VXD+1}, {v_t3}, 4, {v_t2}
v_add_u32 v{VXD+2}, {2*(8*1280-1024)}, v{VXD}
v_add_u32 v{VXD+3}, {3*(8*1280-1024)}, v{VXD+1}
v_add_u32 v{VXD+1}, {8*1280-1024}, v{VXD+1}
s_lshl_b32 {s_mW}, {s_w}, 12
s_add_u32 {s_mX}, {s_mW}, {L_X}
v_and_b32 {v_t2}, 15, {v_lane}
v_lshlrev_b32 {v_t3}, 2, {v_t1}
v_xor_b32 {v_t2}, {v_t2}, {v_t3}
v_mul_u32_u24 {v_t3}, 3840, {v_t1}
v_lshl_add_u32 {v_t3}, {v_t2}, 4, {v_t3}
s_mul_i32 {s_t1}, {s_w}, {16*3840}
s_lshl_b32 {s_t2}, {s_cb}, 8
s_add_u32 {s_t1}, {s_t1}, {s_t2}
v_add_u32 v{VWD}, {s_t1}, {v_t3}
''')
for i in range(1, 4):
    S(f'v_add_u32 v{VWD+i}, {i*(4*3840-1024)}, v{VWD}')
rot(S, 1)
S('s_waitcnt lgkmcnt(0)')

dma_tok = {}
WSLOT = [n % 4 for n in range(10)] + [2, 6, 3, 7, 0, 4, 1, 2, 3, 0]
WISS = {n: n - 2 for n in range(2, 11)}
WISS.update({11: 8, 12: 9, 13: 9, 14: 10, 15: 13, 16: 13, 17: 14, 18: 14, 19: 16})
for a_ in ARGS:
    if a_.startswith('--wiss='): WISS.update({11 + i: int(x) for i, x in enumerate(a_[7:].split(','))})
CTM = opt('ctm', 4)
def dma_stage(n):
    p, ns, slot = n // 10, n % 10, WSLOT[n]
    g = []
    if p == 0:
        g.append(L(f's_add_u32 m0, {s_mX}, {slot*16384}'))
        for i in range(4):
            g.append(L(f'buffer_load_dwordx4 v{VXD+i}, {sX}, s{SX0+ns} offen offset:{1024*i} lds'))
        g[-1] += L(f's_add_u32 m0, {s_mW}, {slot*16384}')
    else:
        g.append(L(f's_add_u32 m0, {s_mW}, {slot*16384}'))
    for i in range(4):
        st = Stream()
        dma_tok[n] = st.vm(f'buffer_load_dwordx4 v{VWD+i}, {sWB if p else sWA}, s{SW0+ns} offen offset:{1024*i} lds')
        g.append(st.l)
    return g

def common_consts(st):
    st(f'''
    s_mov_b32 s18, {WS_SIZE + (65536 if STAMPS else 0)}
    s_mov_b32 s19, 0x20000
    s_mov_b32 s26, 256
    s_mov_b32 s27, 0x20000
    s_mov_b32 s31, 0x20000
    v_cmp_eq_u32 vcc, 0, v0
    v_mov_b32 {v_big}, {BIG}
    v_mov_b32 {v_one}, 1
    v_lshlrev_b32 {v_l16}, 4, {v_lane}
    v_cndmask_b32 {v_flag}, {v_big}, 0, vcc
    ''')

for g in dma_stage(0): S.extend(g)
common_consts(S)
stamp('iss0')
d1 = dma_stage(1)
PRE = opt('pre', 5)
for g in d1[:PRE]: S.extend(g)
pre = Stream()
for n in range(2, 4): rot(pre, n)
pre(f'''
v_lshrrev_b32 {v_t1}, 5, {v_lane}
v_bfe_u32 {v_t2}, {v_lane}, 2, 2
v_lshl_add_u32 {v_t3}, {v_t1}, 3, {v_t2}
v_lshlrev_b32 {v_t3}, 8, {v_t3}
v_bfe_u32 {v_tmp}, {v_lane}, 4, 1
v_lshl_add_u32 {v_t3}, {v_tmp}, 5, {v_t3}
v_and_b32 {v_tmp}, 1, {v_lane}
v_lshl_add_u32 {v_t3}, {v_tmp}, 4, {v_t3}
v_bfe_u32 {v_tmp}, {v_lane}, 1, 1
v_lshl_add_u32 {v_t3}, {v_tmp}, 3, {v_t3}
v_lshl_add_u32 {v_t3}, {v_t2}, 6, {v_t3}
s_and_b32 {s_t0}, {s_w}, 1
s_lshr_b32 {s_t1}, {s_w}, 1
s_lshl_b32 {s_t2}, {s_t0}, 7
v_xor_b32 v{VWR}, {s_t2}, {v_t3}
v_xor_b32 v{VWR+1}, 64, v{VWR}
v_and_b32 {v_t2}, 31, {v_lane}
v_bfe_u32 {v_t3}, {v_lane}, 1, 3
v_xor_b32 {v_t3}, {v_t3}, {v_t1}
v_lshlrev_b32 {v_t3}, 4, {v_t3}
v_lshl_add_u32 {v_t3}, {v_t2}, 7, {v_t3}
s_lshl_b32 {s_t2}, {s_t1}, 13
s_add_u32 {s_t2}, {s_t2}, {L_X}
v_add_u32 v{VXR}, {s_t2}, {v_t3}
''')
for s_ in range(1, 4):
    pre(f'v_xor_b32 v{VXR+s_}, {s_*32}, v{VXR}')
pre(f'''
s_lshl_b32 {s_t2}, {s_rb}, 1
s_add_u32 {s_t2}, {s_t2}, {s_t1}
s_lshl_b32 {s_t2}, {s_t2}, 10
v_lshlrev_b32 {v_t1}, 15, {v_t1}
v_lshl_add_u32 {v_t1}, {v_t2}, 4, {v_t1}
v_add_u32 {v_st}, {s_t2}, {v_t1}
s_lshl_b32 {s_stb}, {s_cb}, 1
s_add_u32 {s_stb}, {s_stb}, {s_t0}
s_lshl_b32 {s_stb}, {s_stb}, 18
s_cmp_lt_u32 {s_cb}, 5
s_cselect_b32 {s_scale}, {f32(QSCALE)}, 1.0
s_cselect_b32 {s_tag}, {'0xfffe0000' if QRND else '-2'}, -1
s_cselect_b32 {s_rnd}, 0x10000, 0
''')
TB = opt('tb', 10); TBH = opt('tbh', 1)
if TB >= 0:
    nl = 20 if TBH else 40
    pre(f'''
    s_mov_b32 s14, {640*3840}
    s_mov_b32 s15, 0x20000
    v_lshrrev_b32 v134, 1, {v_lane}
    v_mul_u32_u24 v134, 3840, v134
    v_and_b32 v135, 1, {v_lane}
    v_lshl_add_u32 v134, v135, 7, v134
    v_cmp_gt_u32 vcc, {nl}, {v_lane}
    s_and_b32 s56, {s_rb}, {15 if TBH else 7}
    s_lshl_b32 s56, s56, 2
    s_add_u32 s56, s56, {s_w}
    v_cndmask_b32 v134, {v_big}, v134, vcc
    s_mul_i32 s56, s56, {nl//2*3840}
    s_lshl_b32 s57, {s_cb}, 8
    s_add_u32 s56, s56, s57
    ''')
    if TBH == 2:
        pre(f'''
        v_lshrrev_b32 v134, 1, {v_lane}
        v_mul_u32_u24 v134, 3840, v134
        v_lshl_add_u32 v134, v135, 7, v134
        s_lshr_b32 s56, {s_t}, 3
        s_lshl_b32 s56, s56, 1
        s_add_u32 s56, s56, {s_t}
        s_bitcmp1_b32 s56, 1
        s_cselect_b32 s58, 0, 40
        v_cmp_gt_u32 vcc, s58, {v_lane}
        s_bfe_u32 s58, s56, 0x10002
        s_lshl_b32 s58, s58, 1
        s_and_b32 s56, s56, 1
        v_cndmask_b32 v134, {v_big}, v134, vcc
        s_add_u32 s56, s56, s58
        s_lshr_b32 s58, {s_rb}, 3
        s_lshl_b32 s58, s58, 2
        s_add_u32 s56, s56, s58
        s_lshl_b32 s56, s56, 2
        s_add_u32 s56, s56, {s_w}
        s_mul_i32 s56, s56, {20*3840}
        s_add_u32 s56, s56, s57
        ''')
    touch = Ins(f'buffer_load_dword v135, v134, {sWB}, s56 offen')
    if TB == 0: pre.l.append(touch)
npre = len(atomize(pre.l))
for n in range(4, 10): rot(pre, n)
setup2(pre)
pre = atomize(pre.l)
SPLIT = min(npre + opt('split', 1000), len(pre))
pre, su_post = pre[:SPLIT], pre[SPLIT:]
if d1[PRE:]: weave(pre, d1[PRE:], opt('pre0', 20), min(len(pre), opt('pre1', 120)))
for g in pre: S.extend(g)
stamp('setup')

seq = []
def tilewise(ns, k2):
    ns = list(ns); m = len(ns) - k2
    l = [(n, s_, 0, rt) for n in ns for s_ in range(4) for rt in range(2)]
    l += [(n, s_, 1, rt) for n in ns[:m] for s_ in range(4) for rt in range(2)]
    for rt in range(2): l += [(n, s_, 1, rt) for n in ns[m:] for s_ in range(4)]
    return l
for n in range(20 - CTM):
    if n == 9: seq += tilewise([9], 0)
    else: seq += [(n, s_, c, rt) for s_ in range(4) for c in range(2) for rt in range(2)]
seq += tilewise(range(20 - CTM, 20), opt('ct2', 2))
NG = len(seq)
def xreg(n, s_, rt):
    n %= 10
    return ar(32 * n + 8 * s_ + 4 * rt, 4) if n < 8 else vr(XV + 32 * (n - 8) + 8 * s_ + 4 * rt, 4)
BO = opt('bo', 5)
firstuse = {}; lastuse = {}
for k, e in enumerate(seq): firstuse.setdefault(e[0], k); lastuse[e[0]] = k
BARS = list(range(1, 21 - CTM)) + ([19] if CTM > 2 else [])
def bar_of(n): return max(b for b in [0] + BARS if b <= n)
def bar_gap(n): return firstuse[bar_of(n)] - BO
for n in range(4, 20):
    prev = [m for m in range(n) if WSLOT[m] == WSLOT[n] or (m < 10 and WSLOT[n] == 4 + m % 4)]
    assert WISS[n] in BARS and lastuse[prev[-1]] < bar_gap(WISS[n]), n
frag = []; fidx = []
for k, e in enumerate(seq):
    if k == 0 or seq[k - 1][:3] != e[:3]: frag.append([e[:3], k, k])
    frag[-1][2] = k; fidx.append(len(frag) - 1)
reads = []; xseen = set(); first_reads = []
for j, ((n, s_, c), u0, u1) in enumerate(frag):
    lo = max(frag[j - 4][2] if j >= 4 else -1, bar_gap(n))
    sl_ = WSLOT[n]; buf = WRING + 4 * (j & 3)
    l = [Ins(f'ds_read_b64_tr_b16 {vr(buf+2*u,2)}, v{(VXR if sl_ >= 4 else VWR)+c} offset:{(sl_%4)*16384+(16*s_+4*u)*256}') for u in range(2)]
    if n < 10 and (n, s_) not in xseen:
        xseen.add((n, s_))
        l = [Ins(f'ds_read_b128 {xreg(n,s_,rt)}, v{VXR+s_} offset:{(n%4)*16384+rt*4096}') for rt in range(2)] + l
    if j < 2: first_reads += l
    else: reads += [Item(x, lo, u0 - (3 if u0 - 3 >= lo else 2)) for x in l]
mf = []
for k, (n, s_, c, rt) in enumerate(seq):
    acc = vr(ACC[n // 10] + 16 * (2 * c + rt), 16)
    mf.append(Ins(f'{mm} {acc}, {vr(WRING+4*(fidx[k]&3),4)}, {xreg(n,s_,rt)}, {"0" if n % 10 == 0 and s_ == 0 else acc}'))
done = {}
for k, (n, s_, c, rt) in enumerate(seq): done[(n // 10, 2 * c + rt)] = k
def epi1_tile(p, T):
    g = []; c, rt = T >> 1, T & 1
    for u in range(2):
        b = ACC[p] + 16 * T + 8 * u
        g.append(L(f's_add_u32 {s_e0}, {s_stb}, {QKV[p]+(4*c+2*u)*GRP}'))
        for i in range(8): g.append(L(f'v_mul_f32 v{b+i}, {s_scale}, v{b+i}'))
        if QRND:
            for i in (0, 4): g.append(L(f'v_add_u32 v{b+i}, {s_rnd}, v{b+i}'))
            for i in (0, 4): g.append(L(f'v_and_b32 v{b+i}, {s_tag}, v{b+i}'))
        for i in range(4): g.append(L(f'v_cvt_pk_bf16_f32 v{b+i}, v{b+2*i}, v{b+2*i+1}'))
        if not QRND:
            for i in (0, 2): g.append(L(f'v_and_b32 v{b+i}, {s_tag}, v{b+i}'))
        st = Stream(); tok = st.vm(f'buffer_store_dwordx4 {vr(b,4)}, {v_st}, {sWS}, {s_e0} offen offset:{512*rt} sc1')
        g.append(st.l)
    return g, tok

cap = [6 - (1 if k + 1 < NG and fidx[k + 1] != fidx[k] else 0) for k in range(NG)]
fixed = {}
FLAGA = opt('flagA', 14)
for n in BARS:
    fixed[bar_gap(n)] = [('BAR', n)]; cap[bar_gap(n)] -= 2 + (2.5 if n == FLAGA else 0)
dmas = []
for b in range(0, 17):
    l = [g for n in range(2, 20) if WISS[n] == b for g in dma_stage(n)]
    if l:
        lo = max(bar_gap(b), 0)
        dmas += paced(l, lo, lo + (opt('dsp', 14) if len(l) > 5 else 7), 2)
KV0 = opt('kv0', 262); KV1 = opt('kv1', 290); KVB = opt('kvb', 312)
assert KV0 > bar_gap(16) + 9
kv, tokKV = kvq_loads()
dmas += [Item(mk(poll_check, v_pres, v_p1, sWS, s_F1A) + [('ST', 'pc1')], KV0 - 1, KV0 - 1)] + paced(kv, KV0, KV1, 2)
epi = []
EA1 = opt('epiAend', 190)
for T in range(4):
    g, tokA = epi1_tile(0, T)
    lo = done[(0, T)] + 3
    it = asap(g, lo, lo + 1)
    for i, x in enumerate(it): x.hi = max(lo, 154 + (len(g) * T + i) * (EA1 - 154) // (4 * len(g))) + 2
    epi += it
for T in range(3):
    g, tokB = epi1_tile(1, T)
    lo = done[(1, T)] + 3
    it = asap(g, lo, lo + 1)
    e0 = done[(1, 0)] + 3; e1 = done[(1, 2)] + 3
    for i, x in enumerate(it): x.hi = max(lo, e0 + (len(g) * T + i) * (e1 - e0) // (2 * len(g))) + 1 if T < 2 else NG
    epi += it
NWO1 = opt('nwo1', 0); NA = 0
WO0 = opt('wo0', 222); WO1 = opt('wo1', 258)
misc = []
if TB > 0: misc.append(Item(touch, TB, TB + 2))
SU1 = opt('su1', 112)
sus = asap(su_post, 0, SU1) if su_post else []
for it in sus: it.hi += 4
misc += [Item(mk(poll_issue, v_pres, v_zero, sDBG, '0'), SU1 + 5, SU1 + 7), Item(mk(poll_check, v_pres, v_zero, sDBG, '0'), 146, 148)]
misc += paced(setup_late(), 148, 152, 4)
if NA: misc += [Item(mk(poll_issue, v_pres, v_p2, sWS, s_F1A), opt('p2i', 148), opt('p2i', 148) + 2)]
misc += paced([Ins(f'v_add_u32 v{VXR+c}, {L_X}, v{VWR+c}') for c in range(2)], 156, 160, 3)
if NA: misc += [Item(mk(poll_check, v_pres, v_p2, sWS, s_F1A) + [('ST', 'pc2')], WO0 - 1, WO0 - 1)]
wl = paced(wo_loads(0, NA), WO0, WO1, 3) if NA else []
P1I = KV0 - opt('p1d', 20)
misc += [x for x in wl if x.lo < P1I] + [Item(mk(poll_issue, v_pres, v_p1, sWS, s_F1A), P1I, P1I + 2)] + [x for x in wl if x.lo >= P1I]
if NWO1: misc += paced(wo_loads(0, NWO1), KV1, NG - 2, 2)
WT = opt('wt', 0)
def wo_touch():
    if opt('map3', 1):
        a_ = L(f'''
        v_min_u32 v114, 24, {v_r}
        v_lshlrev_b32 v114, 7, v114
        v_mul_u32_u24 v115, {32*25600}, {v_h}
        s_and_b32 s56, {s_R}, 7
        s_mul_i32 s56, s56, 3200
        v_add_u32 v114, v114, v115
        s_add_u32 s56, s56, {s_wob}
        s_add_u32 s56, s56, {WOF}
        ''')
        return a_, L(f'buffer_load_dword v115, v114, {sWS}, s56 offen sc1')
    a_ = L(f'''
    v_min_u32 v114, 49, {v_lane}
    v_lshlrev_b32 v114, 7, v114
    s_and_b32 s56, {s_R}, 3
    s_mul_i32 s56, s56, 6400
    s_add_u32 s56, s56, {s_wob}
    s_add_u32 s56, s56, {WOF}
    s_add_u32 s57, s56, {32*25600}
    ''')
    return a_, L(f'buffer_load_dword v115, v114, {sWS}, s56 offen sc1\nbuffer_load_dword v116, v114, {sWS}, s57 offen sc1')
if WT > KV0:
    a_, b_ = wo_touch()
    misc += paced(a_, KV0 + 2, KV0 + 12, 3) + paced(b_, WT, WT + opt('wtn', 4), 2)
elif WT:
    a_, b_ = wo_touch()
    assert WT + 6 < P1I
    it = [Item(mk(poll_issue, v_pres, v_p2, sWS, s_F1A), WT - 20, WT - 18)] + paced(a_, WT - 14, WT - 4, 2)
    it += [Item(mk(poll_check, v_pres, v_p2, sWS, s_F1A), WT - 1, WT - 1)] + paced(b_, WT, WT + 2, 2)
    k_ = next(i for i, x in enumerate(misc) if x.lo == P1I)
    misc[k_:k_] = it
misc2 = paced(mask_far(), 244, 256, 4) + paced(zero_pads(), lastuse[17] + 1, lastuse[17] + 6, 2)
st = Stream(); st.wait(tokKV); st('s_barrier'); fixed[KVB] = st.l + [('ST', 'kvb')]; cap[KVB] -= 2
misc2 += paced(att_pre(), KVB, NG - 2, 1)
rep_ = []
gaps, over = schedule(NG, cap, [reads, dmas, epi, misc, misc2, sus], rep_)
if '--sched' in ARGS:
    for n in range(20): print(n, ' '.join('%4.1f' % x for x in rep_[16 * n:16 * n + 16]))
last_def = {}; last_use = {}
for k, m in enumerate(mf):
    for r in m.defs: last_def[r] = k
    for r in m.srcab: last_use[r] = k
for k, g in enumerate(gaps):
    for it in g:
        if isinstance(it, tuple): continue
        if it.kind in ('valu', 'vm') or (it.kind == 'ds' and k > 200):
            for r in it.uses | it.defs: assert last_def.get(r, -1) <= k or k < 150, (k, it.text)
            if 'tr_b16 v' not in it.text:
                for r in it.defs: assert last_use.get(r, -1) <= k, (k, it.text)

S.wait(dma_tok[0]); S('s_barrier')
stamp('first')
S.l += first_reads
for k in range(NG):
    if k + 1 < NG and fidx[k + 1] == fidx[k]: S.use(mf[k].srcab | mf[k + 1].srcab)
    S.l.append(mf[k])
    if opt('slow', 0) and k < 160: S('s_nop %d' % opt('slow', 0))
    for it in fixed.get(k, []) + mem_first(gaps[k]):
        if isinstance(it, tuple) and it[0] == 'ST':
            if FINE: stamp(it[1])
        elif isinstance(it, tuple):
            n2 = it[1]
            tk = [dma_tok[m] for m in range(20) if bar_of(m) == n2]
            if n2 == FLAGA: tk.append(tokA)
            S.wait(*tk)
            S('s_barrier')
            if n2 == FLAGA: set_flag(S, v_flag, s_f1, 0)
            if FINE or n2 in (10, 14, 16): stamp('b%d' % n2)
        else:
            S.l.append(it)
stamp('p1end')
S(qka(0)); S(qkb(0))
mrest = mask_rest()
S.l += mrest[:8]
g, tokB = epi1_tile(1, 3)
for x in g: S.l += x
S('L_join:')
stamp('join')
nst_join = nstamp[0] - 1

N = len(steps)
groups = []
for n in range(N):
    for g in range(4):
        st = Stream()
        if g == 0 and n + 1 < N: st(qka(n + 1))
        if g == 1 and n > 0: st(pv(n - 1, 1))
        if g == 2 and n + 1 < N: st(qkb(n + 1))
        if g == 3: st(pv(n, 0))
        if g > 0 or n > 0:
            for x in cvts((g - 1) & 3): st(x)
        for x in exps(n, g): st(x)
        groups.append(st.l)
first = {}
for n, (j, q) in enumerate(steps): first.setdefault(j, n)
last = {j: n for n, (j, q) in enumerate(steps)}
for j in range(1, 10):
    base = 4 * (last[j-2] + 1) + 1 if j >= 2 else 0
    for kk in range(2):
        for u in range(2): groups[base + kk].append(v_read(j, kk, u))
    if j + 1 < 10:
        groups[base + 3].append(k0_read(j + 1))
        if (j + 1) % 2 == 0: groups[base + 3].append(k1_read(j + 1))
    need = set(x for kk in range(2) for u in range(2) for x in v_read(j, kk, u).defs)
    if j + 1 < 10: need |= k0_read(j + 1).defs | (k1_read(j + 1).defs if (j + 1) % 2 == 0 else set())
    st = Stream(); st.use(need); groups[4 * first[j] + 3][0:0] = st.l
weave(groups, mrest[8:], 4, 36)
FB = opt('fb', 4)
st = Stream(); st.wait(tokB); st('s_barrier'); set_flag(st, v_flag, s_f1, 0); groups[4 * FB - 1] += st.l
groups[0] += L(f's_add_u32 {s_f1}, {s_f1}, 32768')
P3S = opt('p3s', 11); P3D = opt('p3d', 2)
NWO2 = opt('nwo2', 44)
NWOM = min(NWO2, opt('nwom', 44))
if NWOM > NWO1: weave(groups, wo_loads(NWO1, NWOM), opt('wo0g', 1), 4 * (P3S - P3D) - 1)
if NWO2 > NWOM: weave(groups, wo_loads(NWOM, NWO2), 4 * P3S + opt('bln', 12), 72)
groups[4 * (P3S - P3D) - 1] += mk(poll_issue, v_pres, v_p3, sWS, s_F1B)
groups[4 * P3S - 2] += L(f'''
s_add_u32 s60, {s_bF}, {QKV[1]}
s_add_u32 s61, {s_bS}, {QKV[1]}
s_add_u32 s62, {s_bF}, {QKV[1] + 80*GRP - 512}
s_add_u32 s63, {s_bS}, {QKV[1] + 80*GRP - 512}
''')
groups[4 * P3S - 3] += L(f'''
s_add_u32 s64, {s_bF}, {QKV[1] + 160*GRP}
s_add_u32 s65, {s_bF}, {QKV[1] + 161*GRP - 1088}
s_add_u32 s66, {s_bS}, {QKV[1] + 160*GRP - 2176}
s_mov_b32 m0, {s_mV}
''')
groups[4 * P3S - 1] += mk(poll_check, v_pres, v_p3, sWS, s_F1B)
bl = L(f'''
buffer_load_dword {v_g[0]}, {v_gad}, {sWS}, {s_gb} offen sc1
buffer_load_dword {v_g[1]}, {v_gad}, {sWS}, {s_gb} offen offset:128 sc1
buffer_load_dwordx4 {vr(QB0,4)}, {v_q4}, {sWS}, s60 offen sc1
buffer_load_dwordx4 {vr(KB0,4)}, {v_kb0}, {sWS}, s62 offen sc1
buffer_load_dwordx2 {vr(QB1,2)}, {v_qe}, {sWS}, s61 offen sc1
buffer_load_dwordx2 {vr(QB1+2,2)}, {v_qo}, {sWS}, s61 offen sc1
buffer_load_dwordx2 {ar(AKB1,2)}, {v_kb1}, {sWS}, s63 offen sc1
buffer_load_dwordx4 {vr(KB0+4,4)}, {v_q4}, {sWS}, s62 offen offset:512 sc1
buffer_load_dwordx4 {vr(QB0+4,4)}, {v_q4}, {sWS}, s60 offen offset:512 sc1
buffer_load_dwordx2 {vr(QB1+4,2)}, {v_qo}, {sWS}, s61 offen offset:512 sc1
buffer_load_dwordx4 {vr(KB0+8,4)}, {v_q4}, {sWS}, s62 offen offset:1024 sc1
buffer_load_dwordx2 {ar(AKB1+4,2)}, {v_qo}, {sWS}, s63 offen offset:1024 sc1
buffer_load_dwordx4 {v_l16}, {sWS}, s64 offen sc1 lds
buffer_load_dwordx4 {v_l16}, {sWS}, s65 offen offset:1088 sc1 lds
buffer_load_dwordx4 {v_l16}, {sWS}, s66 offen offset:2176 sc1 lds
''')
st = Stream(); st(f's_add_u32 m0, {s_mV}, 3264\nv_mov_b32 v{QB1+6}, 0\nv_mov_b32 v{QB1+7}, 0')
tokVB = st.vm(f'buffer_load_dwordx4 {v_halo}, {sWS}, 0 offen sc1 lds'); bl.append(st.l)
weave(groups, bl, 4 * P3S, 4 * P3S + opt('bln', 12))
for k, g in enumerate(groups):
    S.l += mem_first(g)
    if FINE and k % 8 == 7: stamp('a%d' % (k // 4))
for x in cvts(3): S(x)
S('s_nop 1')
S(pv(N - 1, 1))
stamp('attA')
S(f'''
s_lshl_b32 {s_t0}, {s_R}, 10
s_mul_i32 {s_t1}, {s_w}, {20*GRP}
s_add_u32 s{SX0}, {s_t0}, {s_t1}
s_mov_b32 {s_tag}, 0xfffe0000
''')
for s_ in range(1, 5): S(f's_add_u32 s{SX0+s_}, s{SX0}, {4*s_*GRP}')
for s_ in range(2): S(f's_add_u32 s{SX0+5+s_}, s{SX0}, {QKV[1] + 4*s_*GRP}')
S(f'''
s_mov_b32 {s_t1}, {hex(64 << 23)}
v_subrev_u32 {v_t1}, {hex(95 << 23)}, v{OA[0]+12}
v_subrev_u32 {v_t2}, {hex(95 << 23)}, v{OA[1]+12}
v_max_u32 {v_t1}, {v_t1}, {v_t2}
v_cmp_le_u32 vcc, {s_t1}, {v_t1}
s_cbranch_vccnz L_truemax
L_Aok:
''')
FBK = Stream()
FBK('@reset')
FBK(f'''
L_truemax:
s_lshr_b32 {s_t1}, {s_q0}, 5
s_sub_u32 {s_t1}, 8, {s_t1}
s_nop 7
''')
def fb_qk(j, q):
    c = vr(M_FAR, 16) if j == q else vr(M_DIAG, 16) if j == 8 + q else '0'
    FBK(f'''
    ds_read_b128 {ar(AK0,4)}, {v_k0} offset:{512*j}
    ds_read_b64 {ar(AK1,2)}, {v_k1} offset:{512*(j & ~1)}
    {mm} {vr(SB[0],16)}, {ar(AK0,4)}, {vr(QA0+4*q,4)}, {c}
    {mm} {vr(SB[0],16)}, {ar(AK1,4)}, {vr(QA1+4*q+2*(j&1),4)}, {vr(SB[0],16)}
    ''')
for q in range(2):
    FBK(f'v_mov_b32 {v_t3}, {NEGINF}')
    for i in range(16): FBK(f'v_mov_b32 v{OA[q]+i}, 0')
    for ps in range(2):
        for j in range(q, q + 9):
            l = lab('skip')
            FBK(f's_cmp_gt_i32 {s_t1}, {j}\ns_cbranch_scc1 {l}')
            if ps == 1:
                for kk in range(2):
                    for u in range(2): FBK(f'ds_read_b64_tr_b16 {ar(AV+4*kk+2*u,2)}, {v_v} offset:{512*j+256*kk+128*u}')
            fb_qk(j, q)
            if ps == 0:
                for i in range(0, 16, 2): FBK(f'v_max3_f32 {v_t3}, {v_t3}, v{SB[0]+i}, v{SB[0]+i+1}')
            else:
                for i in range(16): FBK(f'v_sub_f32 v{SB[0]+i}, v{SB[0]+i}, {v_t3}')
                for i in range(16): FBK(f'v_exp_f32 v{SB[0]+i}, v{SB[0]+i}')
                for i in range(8): FBK(f'v_cvt_pk_bf16_f32 v{P0+i}, v{SB[0]+2*i}, v{SB[0]+2*i+1}')
                for kk in range(2): FBK(f'{mm} {vr(OA[q],16)}, {ar(AV+4*kk,4)}, {vr(P0+4*kk,4)}, {vr(OA[q],16)}')
                FBK('s_nop 7')
            FBK(l + ':')
        if ps == 0:
            FBK(f'''
            s_nop 1
            v_mov_b32 {v_t4}, {v_t3}
            v_permlane32_swap_b32 {v_t3}, {v_t4}
            v_max_f32 {v_t3}, {v_t3}, {v_t4}
            ''')
FBK('s_nop 15\ns_branch L_Aok')

OSC = '' if opt('local', 0) else ' sc1'
def epi2(br, q, o, pk=False):
    st = Stream()
    st(f'v_rcp_f32 {v_t1}, v{o+12}')
    if br: st(f'v_sub_f32 {v_g[q]}, 1.0, {v_g[q]}')
    st(f'v_mul_f32 {v_t1}, {v_g[q]}, {v_t1}')
    if pk:
        for i in range(0, 12, 2): st(f'v_pk_mul_f32 {vr(o+i,2)}, {vr(o+i,2)}, {vr(22,2)} op_sel_hi:[1,0]')
    else:
        for i in range(12): st(f'v_mul_f32 v{o+i}, {v_t1}, v{o+i}')
    for i in (0, 4, 8): st(f'v_and_or_b32 v{o+i}, v{o+i}, {s_tag}, {v_o4}')
    for i in range(6): st(f'v_cvt_pk_bf16_f32 v{o+i}, v{o+2*i}, v{o+2*i+1}')
    st(f'buffer_store_dwordx4 {vr(o,4)}, {v_q4}, {sWS}, {"s60" if br else s_bF} offen offset:{512*q} sc1')
    tok = st.vm(f'buffer_store_dwordx2 {vr(o+4,2)}, {v_qe}, {sWS}, {"s61" if br else s_bS} offen offset:{512*q} sc1')
    return st.l, tok
qkB = [[Ins(x)] for x in (
    f'{mm} {vr(SP[0],16)}, {vr(KB0,4)}, {vr(QB0,4)}, {vr(MB_PREV0,16)}',
    f'{mm} {vr(SP[0],16)}, {ar(AKB1,4)}, {vr(QB1,4)}, {vr(SP[0],16)}',
    f'{mm} {vr(SD[0],16)}, {vr(KB0+4,4)}, {vr(QB0,4)}, {vr(MB_DIAG,16)}',
    f'{mm} {vr(SD[0],16)}, {ar(AKB1,4)}, {vr(QB1+2,4)}, {vr(SD[0],16)}',
    f'{mm} {vr(SP[1],16)}, {vr(KB0+4,4)}, {vr(QB0+4,4)}, {vr(MB_PREV,16)}',
    f'{mm} {vr(SP[1],16)}, {ar(AKB1,4)}, {vr(QB1+4,4)}, {vr(SP[1],16)}',
    f'{mm} {vr(SD[1],16)}, {vr(KB0+8,4)}, {vr(QB0+4,4)}, {vr(MB_DIAG,16)}',
    f'{mm} {vr(SD[1],16)}, {ar(AKB1+4,4)}, {vr(QB1+4,4)}, {vr(SD[1],16)}')]
st = Stream(); st.wait(tokVB)
for u in range(2): st(f'ds_read_b64_tr_b16 {ar(VB+2*u,2)}, {v_vh} offset:{128*u}')
for t in range(2):
    for kk in range(2):
        for u in range(2): st(f'ds_read_b64_tr_b16 {ar(VB+4+8*t+4*kk+2*u,2)}, {v_vb} offset:{512*t+256*kk+128*u}')
vbr = st.l
e0, _ = epi2(0, 0, OA[0], True); e1, tokOA = epi2(0, 1, OA[1], True)
S.l += e0 + e1
st2('epiA')
adr = Stream()
adr(f'''
v_lshrrev_b32 v14, 4, {v_lane}
v_and_b32 v15, 15, {v_lane}
v_lshlrev_b32 v5, 15, v14
v_lshl_add_u32 v5, v15, 4, v5
''')
for rho in range(4):
    adr(f'''
    s_add_u32 {s_t0}, {s_w}, {rho}
    s_and_b32 {s_t0}, {s_t0}, 3
    s_lshl_b32 s{56+rho}, {s_t0}, 8
    v_add_u32 v{V4+rho}, s{56+rho}, v5
    ''')
adr2 = Stream()
for rho in range(4):
    adr2(f's_mul_i32 {s_t1}, s{56+rho}, 60')
    if rho: adr2(f's_add_u32 {s_t1}, {s_t1}, {(rho-1)*5120}\nv_add_u32 v{VRW+rho-1}, {s_t1}, {v_l16}')
    else: adr2(f'v_add_u32 {v_rr}, {s_t1}, {v_l16}')
adr2(f'''
v_mul_u32_u24 v15, 1280, v15
v_mad_u32_u24 v15, v14, 40, v15
s_lshl_b32 {s_t0}, {s_R}, 2
s_add_u32 {s_t0}, {s_t0}, {s_w}
s_mul_i32 {s_t0}, {s_t0}, {16*1280}
s_mul_i32 {s_t1}, {s_C}, 160
s_add_u32 {s_t0}, {s_t0}, {s_t1}
v_add_u32 {v_out}, {s_t0}, v15
''')
for s_ in range(2, 5): adr2(f's_add_u32 s{SX0+5+s_}, s{SX0}, {QKV[1] + 4*s_*GRP}')
weave(qkB, vbr, 2, 6)
NWOB = max(NWO2, opt('nwob', 44))
if NWOB > NWO2: weave(qkB, wo_loads(NWO2, NWOB), 0, 6)
weave(qkB, adr.l, 0, 8)
for g in qkB[:6]: S.l += g
st2('qkB')
def softB(q):
    st = Stream()
    b = SP[q] + 8
    assert SD[q] == SP[q] + 16
    st(f'v_max3_f32 {v_t3}, v{b}, v{b+1}, v{b+2}')
    st(f'v_max3_f32 {v_t4}, v{b+3}, v{b+4}, v{b+5}')
    for i in range(6, 22, 4):
        st(f'v_max3_f32 {v_t3}, {v_t3}, v{b+i}, v{b+i+1}')
        st(f'v_max3_f32 {v_t4}, {v_t4}, v{b+i+2}, v{b+i+3}')
    st(f'v_max3_f32 {v_t3}, {v_t3}, v{b+22}, v{b+23}')
    st(f'v_max_f32 {v_t3}, {v_t3}, {v_t4}')
    st(f'v_mov_b32 {v_t4}, {v_t3}')
    st(f'v_permlane32_swap_b32 {v_t3}, {v_t4}')
    st(f'v_max_f32 {v_t3}, {v_t3}, {v_t4}')
    for i in range(0, 24, 2): st(f'v_pk_add_f32 {vr(b+i,2)}, {vr(b+i,2)}, {vr(24,2)} op_sel_hi:[1,0] neg_lo:[0,1] neg_hi:[0,1]')
    vop = [VB if q == 0 else VB + 8, VB + 4 + 8 * q, VB + 8 + 8 * q]
    for c in range(3):
        for i in range(8): st(f'v_exp_f32 v{b+8*c+i}, v{b+8*c+i}')
        if c: st(f'{mm} {vr(OB[q],16)}, {ar(vop[c-1],4)}, {vr(b+8*(c-1),4)}, {"0" if c == 1 else vr(OB[q],16)}')
        for i in range(4): st(f'v_cvt_pk_bf16_f32 v{b+8*c+i}, v{b+8*c+2*i}, v{b+8*c+2*i+1}')
    return st.l, Ins(f'{mm} {vr(OB[q],16)}, {ar(vop[2],4)}, {vr(b+16,4)}, {vr(OB[q],16)}')
l0, m0_ = softB(0); l1, m1_ = softB(1)
lb = l0[:5] + qkB[6] + l0[5:10] + qkB[7] + l0[10:] + l1[:2] + [m0_] + l1[2:]
def o_load(br, s_, rho):
    b = OF[br][s_] + 4 * rho
    return L(f'buffer_load_dwordx4 {vr(b,4)}, v{V4+rho}, {sWS}, s{SX0+5*br+s_} offen sc1')
order = (1, 2, 3, 0)
ogrp = [[(0, s_, rho) for rho in range(4)] for s_ in range(5)] + [[(1, s_, rho) for s_ in range(5)] for rho in order]
ol = [x for g in ogrp for e in g for x in o_load(*e)]
e0, _ = epi2(1, 0, OB[0]); e1, tokOB = epi2(1, 1, OB[1], True)
lb += e0[:2] + [m1_] + e0[2:] + e1
NO0 = opt('no0', 12); NOE = opt('noe', 0); OE = opt('oe', 1)
if NOE:
    k_ = [i for i, x in enumerate(lb) if x.kind == 'mfma'][-OE]
    lb[k_ + 1:k_ + 1] = ol[:NOE]
BST = opt('bst', 1)
bst = []
if BST:
    bst = [x for x in lb if x.kind == 'vm' and 'store' in x.mn]
    lb = [x for x in lb if x not in bst]
    if BST > 1:
        lb += L(f'v_mov_b32 v6, {v_q4}\nv_mov_b32 v7, {v_qe}')
        bst = [Ins(x.text.replace(v_q4 + ',', 'v6,').replace(v_qe + ',', 'v7,')) for x in bst]
S.l += lb
stamp('epiB')
S.l += ol[NOE:NO0]
if BST == 1: S.l += bst
S.l += adr2.l
NWO4 = max(NWOB, opt('nwo4', 44))
for g in wo_loads(NWOB, NWO4): S.l += g
st2('oiss')

def o_check(i):
    regs = [OF[br][s_] + 4 * rho + j for br, s_, rho in ogrp[i] for j in (0, 2)]
    def tree():
        st = Stream()
        for k in range(0, len(regs), 2): st(f'v_bitop3_b32 v1, {"v1" if k else "1"}, v{regs[k]}, v{regs[k+1]} bitop3:0x80')
        st('v_cmp_eq_u32 vcc, 0, v1')
        return st.l
    l = lab('again'); b = lab('fresh')
    tail('@reset')
    tail(f'{l}:\ns_mov_b32 {s_cnt}, 0\n{l}_a:')
    for e in ogrp[i]: tail.l += o_load(*e)
    tail(f's_add_u32 {s_cnt}, {s_cnt}, 1')
    if STAMPS: tail(f'v_writelane_b32 v0, {s_cnt}, {60 + (i >= 5)}')
    tail('s_waitcnt vmcnt(0)')
    tail.l += tree()
    tail(f's_cbranch_vccz {b}\ns_cmp_lt_u32 {s_cnt}, 0x40000\ns_cbranch_scc1 {l}_a\ns_branch {b}')
    t = tree()
    return t[:-1] + [t[-1:] + L(f's_cbranch_vccnz {l}\n{b}:')]
def mf3(br, s_, rho, ct):
    acc = vr(AC3 + 20 * rho + 4 * ct, 4)
    return [Ins(f'v_mfma_f32_16x16x32_bf16 {acc}, {ar(100*br+20*s_+4*ct,4)}, {vr(OF[br][s_]+4*rho,4)}, {"0" if br == 0 and s_ == 0 else acc}')]
sl = [mf3(*e, ct) for g in ogrp for e in g for ct in range(5)]
PB0 = opt('pb0', 40); PB1 = opt('pb1', 55)
if NO0 < 20: weave(sl, ol[NO0:20], 0, PB0)
if BST > 1: weave(sl, bst, BST, BST + 8)
if NWO4 < 50:
    S(f'v_mov_b32 v15, {v_l16}')
    weave(sl, wo_loads(NWO4, 50, 'v15'), PB0, PB1)
weave(sl, ol[20:], PB1, opt('no1', 140))
for it in o_check(0): S.l += it if isinstance(it, list) else [it]
stamp('poll4')
gstart = [20 * i for i in range(5)] + [100 + 25 * i for i in range(4)]
for i in range(1, 9): weave(sl, o_check(i), gstart[i] - opt('chk', 6), gstart[i])
for k, g in enumerate(sl):
    for it in g[1:]:
        if it.kind == 'vm': assert not any(it.defs & x.uses for j in range(k + 1) for x in sl[j] if x.kind != 'vm'), it.text
for i, rho in enumerate((1, 2, 3)):
    wr = [Ins(f'ds_write_b128 v{VRW+rho-1}, {vr(AC3+20*rho+4*ct,4)} offset:{1024*ct}') for ct in range(5)]
    lo = 125 + 25 * i + 3
    weave(sl, wr, lo, lo + (15 if i < 2 else 5))
sl[189] += L('s_waitcnt lgkmcnt(0)\ns_barrier')
rd = [Ins(f'ds_read_b128 {vr(RED+20*k+4*ct,4)}, {v_rr} offset:{5120*k+1024*ct}') for ct in range(5) for k in range(3)]
weave(sl, rd, 190, 200)
for k, g in enumerate(sl):
    S.l += mem_first(g)
    if k == 99: stamp('mf3A')
    elif k in (0, 19, 39, 59, 79, 124, 149, 174, 188, 189): st2('m%d' % k)
stamp('mf3')
for i in range(0, 20, 2):
    S(f'v_pk_add_f32 {vr(RED+i,2)}, {vr(RED+i,2)}, {vr(RED+20+i,2)}')
    S(f'v_pk_add_f32 {vr(AC3+i,2)}, {vr(AC3+i,2)}, {vr(RED+40+i,2)}')
for i in range(0, 20, 2):
    S(f'v_pk_add_f32 {vr(AC3+i,2)}, {vr(AC3+i,2)}, {vr(RED+i,2)}')
for i in range(10):
    S(f'v_cvt_pk_bf16_f32 v{AC3+i}, v{AC3+2*i}, v{AC3+2*i+1}')
S(f'''
buffer_store_dwordx4 {vr(AC3,4)}, {v_out}, {sOUT}, 0 offen
buffer_store_dwordx4 {vr(AC3+4,4)}, {v_out}, {sOUT}, 0 offen offset:16
buffer_store_dwordx2 {vr(AC3+8,2)}, {v_out}, {sOUT}, 0 offen offset:32
''')
if AMP:
    S('s_waitcnt vmcnt(0)')
    stamp('end')
    S(f'''
    s_cmp_lg_u32 s2, {opt('ampwg', 9)}
    s_cbranch_scc1 L_end
    s_memrealtime s[84:85]
    s_waitcnt lgkmcnt(0)
    s_sub_u32 s80, s82, s80
    s_lshl_b32 s80, s80, 2
    s_min_u32 s80, s80, 100000
    {('s_mov_b32 s80, %d' % opt('ampc', 0)) if opt('ampc', 0) else ''}
    L_amp:
    s_memrealtime s[86:87]
    s_waitcnt lgkmcnt(0)
    s_sub_u32 s86, s86, s84
    s_cmp_lt_u32 s86, s80
    s_cbranch_scc1 L_amp
    ''')
if STAMPS:
    stamp('red')
    S('s_waitcnt vmcnt(0)')
    stamp('end')
    S(f'''
    s_waitcnt lgkmcnt(0)
    s_cmp_lg_u32 {s_w}, 0
    s_cbranch_scc1 L_end
    v_writelane_b32 v0, s{ST0+2*((nstamp[0]-1)&1)}, {nstamp[0]-1}
    s_lshl_b32 {s_t0}, s2, 8
    s_add_u32 {s_t0}, {s_t0}, {STAMP_OFF}
    v_mbcnt_lo_u32_b32 v3, -1, 0
    v_mbcnt_hi_u32_b32 v3, -1, v3
    v_lshlrev_b32 v3, 2, v3
    buffer_store_dword v0, v3, {sWS}, {s_t0} offen
    ''')
    assert nstamp[0] <= 56, nstamp[0]
    open(OUT + '.stamps', 'w').write(' '.join(n or str(i) for i, n in enumerate(stamp_names)))
S('s_endpgm')

T = Stream()
nstamp[0] = 1
T('@reset')
T(f'''
L_spare:
s_waitcnt lgkmcnt(0)
s_load_dwordx2 s[56:57], s[0:1], 16
s_load_dwordx2 s[58:59], s[0:1], 40
s_load_dwordx2 s[8:9], s[0:1], 48
s_mov_b32 s30, {640*1280}
s_mov_b32 s10, 1280
''')
common_consts(T)
T(f'''
v_mov_b32 v64, 0
v_mov_b32 v65, 0
v_mov_b32 v66, 0
v_mov_b32 v67, 0
v_lshlrev_b32 {v_t1}, 4, v0
s_lshl_b32 {s_t2}, {s_rb}, 12
s_add_u32 {s_t2}, {s_t2}, {FLG}
''')
tokz = T.vm(f'buffer_store_dwordx4 v[64:67], {v_t1}, {sWS}, {s_t2} offen sc1')
def handshake():
    T.wait(tokz)
    T(f'''
    s_barrier
    s_lshl_b32 {s_t1}, {s_rb}, 2
    buffer_store_dword {v_one}, {v_flag}, {sDBG}, {s_t1} offen sc1
    ''')
STB = opt('stb', 0)
if STB:
    T(f'''
    s_mov_b32 s14, {640*3840}
    s_mov_b32 s15, 0x20000
    s_lshl_b32 {s_t0}, {s_rb}, 2
    s_add_u32 {s_t0}, {s_t0}, {s_w}
    s_mul_i32 {s_t0}, {s_t0}, {300*128}
    v_min_u32 {v_t1}, 59, {v_lane}
    v_lshlrev_b32 {v_t1}, 7, {v_t1}
    ''')
    for i in range(5):
        T(f'buffer_load_dword v{68+i}, {v_t1}, {sWB}, {s_t0} offen\ns_add_u32 {s_t0}, {s_t0}, {60*128}')
        if i == 2: handshake()
T(f'''
s_and_b32 {s_e0}, {s_rb}, 1
s_lshl_b32 {s_e0}, {s_e0}, 2
s_add_u32 {s_e0}, {s_e0}, {s_w}
s_bfe_u32 {s_e1}, {s_rb}, 0x20001
s_mul_i32 {s_t2}, {s_e0}, 160
s_mul_i32 {s_t1}, {s_e1}, {160*1280}
s_add_u32 {s_t2}, {s_t2}, {s_t1}
s_mov_b32 {s_t0}, {(1<<32)//10+1}
''')
for i in range(5):
    T(f'''
    v_add_u32 {v_t1}, {64*i}, {v_lane}
    v_mul_hi_u32 {v_t2}, {v_t1}, {s_t0}
    v_mul_u32_u24 {v_t3}, 10, {v_t2}
    v_sub_u32 {v_t1}, {v_t1}, {v_t3}
    v_mul_u32_u24 {v_t2}, 1280, {v_t2}
    v_lshl_add_u32 {v_t2}, {v_t1}, 4, {v_t2}
    v_add_u32 v{2+i}, {s_t2}, {v_t2}
    ''')
T(f'''
s_mul_i32 {s_mW}, {s_w}, 25600
s_waitcnt lgkmcnt(0)
s_cmp_ge_u32 {s_rb}, 8
s_cselect_b32 s28, s58, s56
s_cselect_b32 s29, s59, s57
''')
wtok = {}
def wo_dma(b):
    T(f's_mov_b32 {s_t3}, {b*32*1280}')
    for i in range(5):
        T(f's_add_u32 m0, {s_mW}, {1024*(5*b+i)}')
        wtok[5 * b + i] = T.vm(f'buffer_load_dwordx4 v{2+i}, {sTMP}, {s_t3} offen lds')
wo_dma(0); wo_dma(1)
T(f'''
v_lshrrev_b32 {v_t1}, 4, {v_lane}
v_bfe_u32 {v_t2}, {v_lane}, 2, 2
v_and_b32 {v_t3}, 3, {v_lane}
v_mul_u32_u24 {v_t3}, 40, {v_t3}
v_add_u32 {v_t3}, {s_mW}, {v_t3}
v_lshl_add_u32 {v_t2}, {v_t1}, 3, {v_t2}
v_mul_u32_u24 {v_t2}, 160, {v_t2}
v_add_u32 v7, {v_t2}, {v_t3}
s_lshr_b32 {s_t0}, {s_rb}, 3
s_lshl_b32 {s_t0}, {s_t0}, 3
s_add_u32 {s_t0}, {s_t0}, {s_e0}
s_lshl_b32 {s_t0}, {s_t0}, 2
s_add_u32 {s_t0}, {s_t0}, {s_e1}
s_mul_i32 {s_stb}, {s_t0}, 25600
v_and_b32 v9, 15, {v_lane}
v_lshlrev_b32 v9, 4, v9
v_mul_u32_u24 v10, 1280, {v_t1}
v_add_u32 v10, v10, v9
v_cmp_eq_u32 vcc, 0, v9
v_lshlrev_b32 {v_t1}, 2, {v_t1}
s_lshl_b32 {s_rot}, {s_rb}, 2
s_add_u32 {s_rot}, {s_rot}, {s_w}
v_cndmask_b32 v11, {v_big}, {v_t1}, vcc
''')
stamp('', T)
setup2(T)
wo_dma(2)
stamp('', T)
for s_ in range(5):
    T.wait(wtok[5 * s_ + 4])
    if s_ == 0 and not STB: handshake()
    for ct in range(5):
        f = 5 * s_ + ct
        for u in range(2):
            T(f'ds_read_b64_tr_b16 {vr(140+4*f+2*u,2)}, v7 offset:{(32*s_+4*u)*160+8*ct}')
    if s_ + 3 < 5: wo_dma(s_ + 3)
    if s_ == 2: poll_issue(T, v_pres, v_zero, sDBG, '0')
    for ct in range(5):
        f = 5 * s_ + ct
        if f % 4 == 0: T(f's_add_u32 {s_t1}, {s_stb}, {WOF + f*1024}')
        tokw = T.vm(f'buffer_store_dwordx4 {vr(140+4*f,4)}, {v_l16}, {sWS}, {s_t1} offen offset:{(f%4)*1024} sc1')
    if s_ == 2: tokw2 = tokw
    if FINE: stamp('', T)
poll_check(T, v_pres, v_zero, sDBG, '0')
stamp('', T)
GW = 224; GA = 48
T(f's_mul_i32 {s_t1}, {s_rot}, {32*1280}')
for j in range(5): T(f'buffer_load_dwordx4 {vr(GW+4*j,4)}, v9, {sWA}, 0 offen offset:{256*j}')
for i in range(8):
    for j in range(5): T(f'buffer_load_dwordx4 {vr(64+20*i+4*j,4)}, v10, {sX}, {s_t1} offen offset:{256*j}')
    T(f's_add_u32 {s_t1}, {s_t1}, {4*1280}')
    if i == 1:
        T.wait(tokw)
        T('s_barrier')
        set_flag(T, v_flag, s_f1, 0)
        stamp('', T)
poll_issue(T, v_pres, v_p1, sWS, s_F1A)
T(f's_lshl_b32 {s_rot}, {s_rot}, 7\ns_add_u32 {s_rot}, {s_rot}, {G_OFF}')
for i in range(8):
    T(f'v_mov_b32 v{GA+i}, 0')
    for k in range(20): T(f'v_dot2c_f32_bf16 v{GA+i}, v{64+20*i+k}, v{GW+k}')
for sh in (8, 4, 2, 1):
    for i in range(8): T(f'v_add_f32_dpp v{GA+i}, v{GA+i}, v{GA+i} row_ror:{sh} row_mask:0xf bank_mask:0xf')
for i in range(8): T(f'v_mul_f32 v{GA+i}, {f32(-math.log2(math.e))}, v{GA+i}')
for i in range(8): T(f'v_exp_f32 v{GA+i}, v{GA+i}')
for i in range(8): T(f'v_add_f32 v{GA+i}, 1.0, v{GA+i}')
for i in range(8): T(f'v_rcp_f32 v{GA+i}, v{GA+i}')
T.l += setup_late()
for i in range(8): tokg = T.vm(f'buffer_store_dword v{GA+i}, v11, {sWS}, {s_rot} offen offset:{16*i} sc1')
stamp('', T)
T.l += mask_far() + zero_pads()
poll_check(T, v_pres, v_p1, sWS, s_F1A)
stamp('', T)
kv, _ = kvq_loads()
for g in kv: T.l += g
for g in wo_loads(0, NWO1): T.l += g
if WT > KV0:
    a_, b_ = wo_touch(); T.l += a_ + b_
T('s_waitcnt vmcnt(0) lgkmcnt(0)\ns_barrier')
T.l += att_pre()
T(qka(0)); T(qkb(0))
T.l += mask_rest()[:8]
T('s_nop 7')
assert nstamp[0] <= nst_join
while nstamp[0] < nst_join: stamp('', T)
T('s_waitcnt lgkmcnt(0)')
T('s_branch L_join')

def undef_check(l, name):
    d = {'v0', 's0', 's1', 's2', 'exec'}; bad = []
    for i in l:
        u = i.uses - d if i.kind not in ('pseudo', 'label', 'none') else set()
        if u: bad.append((sorted(u), i.text))
        d |= i.defs | u
    if bad: print('USE BEFORE DEF in', name, bad)
ib = next(k for k, i in enumerate(S.l) if 'L_spare' in i.text); ij = next(k for k, i in enumerate(S.l) if i.text == 'L_join:')
undef_check(S.l, 'main'); undef_check(S.l[:ib] + T.l + S.l[ij:], 'spare')
S.extend(T); S.extend(tail)
S('L_end:\ns_endpgm')
S.extend(FBK)

XP = opt('xp', 0)
if XP:
    def drop(i):
        if i.kind != 'vm': return False
        t = i.text
        if XP & 1 and s_e2 in i.uses and 'load' in t: return True
        if XP & 2 and 'load' in t and i.uses & {'v%d' % r for r in range(2, 10)} and 's16' in i.uses and 'lds' not in t and i.uses & {'s%d' % r for r in list(range(60, 66)) + list(range(70, 76))} and 'v8' not in i.uses - {None} | set() or False: return True
        if XP & 4 and 'load' in t and 's16' in i.uses and (v_q4 in i.uses or v_qe in i.uses or v_qo in i.uses or v_kb1 in i.uses) and i.uses & {'s60', 's61', 's62', 's63'}: return True
        if XP & 8 and 'store' in t and v_st in i.uses and 's16' in i.uses and i.tok not in (tokA, tokB): return True
        if XP & 16 and 'lds' in t and s_e1 in i.uses and i.tok is not tokKV: return True
        return False
    S.l = [i for i in S.l if not drop(i)]
stats = []
body = finalize(S, stats)
hdr = open('cdna_kernels/%s.s.ref' % NAME).read().split('; Override')[0]
K = NAME + '_kernel'
txt = hdr + f'''; Generated by a hand-written generator script: one persistent workgroup per CU, phases chained by flags in d_ws.
; @launch grid=(256,1,1) block=(256,1,1) lds={LDS_BYTES}
.amdgcn_target "amdgcn-amd-amdhsa--gfx950"
.text
.globl {K}
.p2align 8
.type {K},@function
{K}:
''' + '\n'.join(body) + f'''
.section .rodata,"a"
.p2align 6
.amdhsa_kernel {K}
  .amdhsa_next_free_vgpr 512
  .amdhsa_next_free_sgpr 102
  .amdhsa_accum_offset 256
  .amdhsa_group_segment_fixed_size 0
  .amdhsa_kernarg_size 80
  .amdhsa_user_sgpr_count 2
  .amdhsa_user_sgpr_kernarg_segment_ptr 1
  .amdhsa_system_sgpr_workgroup_id_x 1
  .amdhsa_float_denorm_mode_32 3
.end_amdhsa_kernel
'''
open(OUT, 'w').write(txt)
print('instructions:', len(body), ' nops:', len(stats), sum(s[0] for s in stats), ' overflow slots', over, 'WS_SIZE', WS_SIZE)
if '--nops' in ARGS:
    for s in stats: print(s)
```

```python
import sys, math, struct
from fw import *

NAME = "gated_mix__sliding_block__sliding_local_dilated__prompt"
ARGS = sys.argv[1:]
STAMPS = '--stamps' in ARGS
FINE = '--fine' in ARGS
FINE2 = '--fine2' in ARGS
def opt(name, default):
    for a in ARGS:
        if a.startswith('--' + name + '='): return int(a.split('=')[1])
    return default
OUT = [a for a in ARGS if not a.startswith('--')]
OUT = OUT[0] if OUT else 'k.s'

GRP = 2048 * 16
QKV = [0, 240 * GRP]
WOF = 480 * GRP
G_OFF = WOF + 64 * 25600
FLG = G_OFF + 8192
F1 = [FLG, FLG + 32768]
WS_SIZE = FLG + 65536
STAMP_OFF = WS_SIZE
BIG = 0x40000000
L_X = 65536
GS = 8192 + 64
L_KA = L_X + 16384; L_VA = L_KA + 3 * GS
L_VB = 131072 + 512; VBW = 4608
L_ONE = L_VB + 4 * VBW + ((L_VA + 3 * GS) % 256)
L_TAB = L_VB + 4 * VBW + 8192 + 256
LDS_BYTES = 160 * 1024
assert L_TAB + 1024 <= LDS_BYTES and L_VA + 3 * GS <= L_VB

def f32(x): return '0x%08x' % struct.unpack('<I', struct.pack('<f', x))[0]
QSCALE = (20 ** -0.5) * math.log2(math.e)
NEGINF = '0xff800000'

sX, sWA, sWB, sWS, sOUT, sDBG, sTMP = 's[4:7]', 's[8:11]', 's[12:15]', 's[16:19]', 's[20:23]', 's[24:27]', 's[28:31]'
s_xcd, s_t, s_rb, s_cb, s_w = 's32', 's33', 's34', 's35', 's36'
s_t0, s_t1, s_t2, s_t3 = 's37', 's38', 's39', 's40'
s_stb, s_scale, s_inv, s_mW, s_mX = 's41', 's42', 's43', 's44', 's45'
s_hd, s_r2, s_so, s_q0 = 's46', 's47', 's48', 's49'
s_cnt, s_f1, s_tag, s_rnd, s_k1, s_wob = 's50', 's51', 's52', 's53', 's54', 's55'
SW0, SX0 = 60, 70
ST0 = 80
s_bF, s_bS, s_dF, s_dS, s_mK, s_mV, s_gb, s_rot = 's84', 's85', 's86', 's87', 's88', 's89', 's90', 's91'
s_e0, s_e1, s_e2, s_e3 = 's92', 's93', 's94', 's95'
s_F1A, s_F1B, s_F2, s_q0z, s_R, s_C = 's96', 's97', 's98', 's99', 's100', 's101'
ROWMAP = opt('rowmap', 0); QRND = opt('qrnd', 0)
v_lane = 'v1'
VWD, VXD, VWR, VXR = 2, 6, 10, 12
v_dma, v_gad, v_kb0, v_k1 = 'v6', 'v7', 'v8', 'v9'
v_st, v_flag, v_one, v_pres, v_l16, v_big = 'v16', 'v17', 'v18', 'v19', 'v20', 'v21'
v_t1, v_t2, v_t3, v_t4, v_tmp, v_zero = 'v22', 'v23', 'v24', 'v25', 'v26', 'v27'
(v_p1, v_p2, v_p3, v_q4, v_qe, v_qo, v_k0, v_v, v_vb, v_vh, v_kb1, v_halo, v_mA, v_mB0, v_flagw, v_o4, v_o2, v_h, v_r, v_tabc) = ['v%d' % i for i in range(28, 48)]
WRING = 48
ACC = [64, 128]
XV = 192
E0, P0 = 48, 56
SB = [64, 192]; M_FAR, M_DIAG = 80, 208; QA0, QA1 = 96, 104; OA = [224, 240]
QB0, QB1, KB0 = 128, 136, 144
v_g = ['v46', 'v47']
MB_DIAG, MB_PREV, MB_PREV0 = 160, 168, 176
SP = [64, 192]; SD = [80, 208]; OB = [96, 112]
V4, V2, VRW, v_rr, v_out, v_p4 = 2, 6, 10, 'v13', 'v14', 'v15'
AC3 = 16; OF = [[128, 144, 160, 176, 224], [96, 112, 192, 208, 240]]; RED = 128
AK0, AK1, AV, AKB1 = 200, 208, 216, 232
VB = 200

def vr(b, n): return 'v[%d:%d]' % (b, b + n - 1)
def ar(b, n): return 'a[%d:%d]' % (b, b + n - 1)
mm = 'v_mfma_f32_32x32x16_bf16'

S = Stream()
tail = Stream()
nstamp = [0]; stamp_names = []
AMP = [a.split('=')[1].split(',') for a in ARGS if a.startswith('--amp=')]
AMP = AMP[0] if AMP else None
def stamp(name='', st=None):
    if AMP and name in AMP and st is None: S('s_memrealtime s[%d:%d]' % (ST0 + 2 * AMP.index(name), ST0 + 2 * AMP.index(name) + 1))
    if STAMPS:
        st = st or S
        k = nstamp[0]
        if k == 1:
            for i in range(56, 64): st('v_writelane_b32 v0, 0, %d' % i)
        if k > 0: st('v_writelane_b32 v0, s%d, %d' % (ST0 + 2 * ((k - 1) & 1), k - 1))
        st('s_memrealtime s[%d:%d]' % (ST0 + 2 * (k & 1), ST0 + 2 * (k & 1) + 1))
    stamp_names.append(name)
    nstamp[0] += 1
def st2(n):
    if FINE2: stamp(n)
nlab = [0]
def lab(p):
    nlab[0] += 1
    return 'L_%s_%d' % (p, nlab[0])

PIDX = {v_zero: 0, v_p1: 1, v_p2: 2, v_p3: 3, v_p4: 4}
def poll_issue(st, res, adr, srd, soff, off=0):
    st('buffer_load_dword %s, %s, %s, %s offen offset:%d sc1' % (res, adr, srd, soff, off))
def poll_check(st, res, adr, srd, soff, off=0):
    l = lab('poll'); b = lab('back')
    st('v_cmp_ne_u32 vcc, 1, %s' % res)
    st('s_cbranch_vccnz %s' % l)
    st(b + ':')
    tail('@reset')
    tail(f'''
    {l}:
    s_mov_b32 {s_cnt}, 0
    {l}_a:
    buffer_load_dword {res}, {adr}, {srd}, {soff} offen offset:{off} sc1
    s_add_u32 {s_cnt}, {s_cnt}, 1
    {('v_writelane_b32 v0, %s, %d' % (s_cnt, 56 + PIDX[adr] + off // 4)) if STAMPS else ''}
    s_waitcnt vmcnt(0)
    v_cmp_ne_u32 vcc, 1, {res}
    s_cbranch_vccz {b}
    s_cmp_lt_u32 {s_cnt}, 0x40000
    s_cbranch_scc1 {l}_a
    s_branch {b}
    ''')
def poll(st, res, adr, srd, soff):
    poll_issue(st, res, adr, srd, soff); poll_check(st, res, adr, srd, soff)
def set_flag(st, vf, base, off):
    st(f'buffer_store_dword {v_one}, {vf}, {sWS}, {base} offen offset:{off} sc1')
def mk(fn, *a):
    st = Stream(); fn(st, *a); return st.l
def L(txt):
    st = Stream(); st(txt); return st.l

def setup2(st):
    st(f'''
    s_mov_b32 s14, {640*3840}
    s_mov_b32 s15, 0x20000
    s_mov_b32 s22, {2048*1280}
    s_mov_b32 s23, 0x20000
    s_mov_b32 {s_F1A}, {F1[0]}
    s_mov_b32 {s_F1B}, {F1[1]}
    s_and_b32 {s_C}, {s_t}, 7
    s_lshr_b32 {s_t2}, {s_t}, 3
    s_lshl_b32 {s_t0}, {s_xcd}, 2
    s_add_u32 {s_R}, {s_t0}, {s_t2}
    s_mov_b32 {s_r2}, {s_xcd if ROWMAP else s_C}
    s_mov_b32 {s_hd}, {s_t if ROWMAP else s_R}
    ''')
    if opt('map3', 1) == 1:
        st(f'''
        s_lshr_b32 {s_R}, {s_xcd}, 1
        s_lshl_b32 {s_R}, {s_R}, 3
        s_lshr_b32 {s_t0}, {s_t}, 2
        s_add_u32 {s_R}, {s_R}, {s_t0}
        s_and_b32 {s_C}, {s_xcd}, 1
        s_lshl_b32 {s_C}, {s_C}, 2
        s_and_b32 {s_t0}, {s_t}, 3
        s_add_u32 {s_C}, {s_C}, {s_t0}
        ''')
    st(f'''
    s_lshl_b32 {s_q0}, {s_r2}, 8
    s_lshl_b32 {s_t0}, {s_w}, 6
    s_add_u32 {s_q0}, {s_q0}, {s_t0}
    s_mul_i32 {s_e0}, {s_hd}, 5
    s_lshr_b32 {s_e0}, {s_e0}, 1
    s_and_b32 {s_t3}, {s_hd}, 1
    s_add_u32 {s_e1}, {s_e0}, {s_t3}
    s_lshl_b32 {s_so}, {s_t3}, 3
    s_lshl_b32 {s_t3}, {s_t3}, 1
    s_add_u32 {s_e2}, {s_e0}, 2
    s_sub_u32 {s_e2}, {s_e2}, {s_t3}
    s_lshl_b32 {s_e1}, {s_e1}, 15
    s_lshl_b32 {s_e2}, {s_e2}, 15
    s_lshl_b32 {s_t0}, {s_q0}, 4
    s_add_u32 {s_bF}, {s_e1}, {s_t0}
    s_add_u32 {s_bS}, {s_e2}, {s_t0}
    s_lshl_b32 {s_e3}, {s_r2}, 1
    s_add_u32 {s_e3}, {s_e3}, {s_w}
    s_lshl_b32 {s_t0}, {s_e3}, 11
    s_add_u32 {s_dF}, {s_e1}, {s_t0}
    s_add_u32 {s_dS}, {s_e2}, {s_t0}
    s_lshl_b32 {s_mK}, {s_w}, 11
    s_mul_i32 {s_mV}, {s_w}, {VBW}
    s_add_u32 {s_mV}, {s_mV}, {L_VB}
    s_lshl_b32 {s_gb}, {s_q0}, 2
    s_add_u32 {s_gb}, {s_gb}, {G_OFF}
    s_lshl_b32 {s_f1}, {s_rb}, 11
    s_lshl_b32 {s_t0}, {s_cb}, 7
    s_add_u32 {s_f1}, {s_f1}, {s_t0}
    s_add_u32 {s_f1}, {s_f1}, {F1[0]}
    s_lshl_b32 {s_wob}, {s_C}, 2
    s_add_u32 {s_wob}, {s_wob}, {s_w}
    s_mul_i32 {s_wob}, {s_wob}, 25600
    v_and_b32 {v_zero}, 60, {v_lane}
    v_lshrrev_b32 {v_h}, 5, {v_lane}
    v_and_b32 {v_r}, 31, {v_lane}
    v_bfe_u32 {v_t1}, {v_lane}, 2, 1
    v_lshl_add_u32 {v_t1}, {v_t1}, 1, {s_e0}
    v_lshrrev_b32 {v_t1}, 4, {v_t1}
    v_and_b32 {v_t2}, 3, {v_lane}
    v_min_u32 {v_t3}, 2, {v_t2}
    v_mad_u32_u24 {v_t4}, {v_t3}, 5, {v_t1}
    v_mad_u32_u24 {v_tmp}, {v_t2}, 5, {v_t1}
    v_min_u32 {v_tmp}, 15, {v_tmp}
    s_sub_u32 {s_t1}, {s_e3}, 2
    s_max_i32 {s_t1}, {s_t1}, 0
    s_lshl_b32 {s_t1}, {s_t1}, 11
    s_andn2_b32 {s_t2}, {s_q0}, 127
    s_lshl_b32 {s_t2}, {s_t2}, 4
    v_cmp_eq_u32 vcc, 0, {v_t2}
    v_mov_b32 {v_t1}, {s_t1}
    v_mov_b32 {v_t3}, {s_t2}
    v_cndmask_b32 {v_t1}, {v_t1}, {v_t3}, vcc
    v_lshl_add_u32 {v_p1}, {v_t4}, 7, {v_t1}
    s_sub_u32 {s_t1}, {s_q0}, 32
    s_max_i32 {s_t1}, {s_t1}, 0
    s_andn2_b32 {s_t1}, {s_t1}, 127
    s_lshl_b32 {s_t1}, {s_t1}, 4
    v_and_b32 {v_t2}, 8, {v_lane}
    v_cmp_eq_u32 vcc, 0, {v_t2}
    v_mov_b32 {v_t1}, {s_t1}
    v_and_b32 {v_t2}, 1, {v_lane}
    v_cndmask_b32 {v_t1}, {v_t1}, {v_t3}, vcc
    v_lshl_add_u32 {v_p3}, {v_tmp}, 7, {v_t1}
    v_cmp_gt_u32 s[38:39], 32, {v_lane}
    s_lshr_b32 {s_t0}, {s_R}, 1
    s_lshl_b32 {s_t0}, {s_t0}, 4
    s_add_u32 {s_t0}, {s_t0}, {s_w}
    v_add_lshl_u32 {v_t1}, {v_t2}, {s_t0}, 7
    v_cndmask_b32 {v_p3}, {v_t1}, {v_p3}, s[38:39]
    s_lshl_b32 {s_t0}, {s_w}, 1
    s_lshr_b32 {s_t1}, {s_C}, 2
    s_add_u32 {s_t0}, {s_t0}, {s_t1}
    s_lshl_b32 {s_t0}, {s_t0}, 11
    s_add_u32 {s_t0}, {s_t0}, {15*128}
    v_lshl_add_u32 {v_p2}, {v_t2}, 14, {s_t0}
    v_cndmask_b32 {v_p1}, {v_p2}, {v_p1}, vcc
    ''')
    st(f'''
    s_cmp_ge_u32 {s_e3}, 2
    s_cselect_b32 {s_inv}, 0, {BIG}
    s_cselect_b32 {s_t2}, 0x3f803f80, 0
    v_mov_b32 v128, {s_t2}
    v_mov_b32 v129, {s_t2}
    v_mov_b32 v130, {s_t2}
    v_mov_b32 v131, {s_t2}
    s_add_u32 {s_t1}, {s_mK}, {L_ONE}
    v_add_u32 {v_t1}, {s_t1}, {v_l16}
    ds_write_b128 {v_t1}, v[128:131]
    ds_write_b128 {v_t1}, v[128:131] offset:1024
    ''')
    st(f'''
    v_lshlrev_b32 {v_q4}, 15, {v_h}
    v_lshl_add_u32 {v_q4}, {v_r}, 4, {v_q4}
    v_cmp_eq_u32 vcc, 0, {v_h}
    v_lshl_add_u32 {v_t1}, {v_r}, 4, {s_so}
    s_cmp_eq_u32 {s_q0}, 0
    s_cselect_b32 {s_q0z}, {BIG}, 0
    v_cndmask_b32 {v_qe}, {v_big}, {v_t1}, vcc
    v_cndmask_b32 {v_qo}, {v_t1}, {v_big}, vcc
    v_mov_b32 {v_t2}, {s_q0z}
    v_cndmask_b32 {v_t2}, 0, {v_t2}, vcc
    v_add3_u32 {v_kb1}, {v_t2}, {v_l16}, {s_so}
    v_and_b32 {v_t2}, 15, {v_lane}
    v_mov_b32 {v_o4}, 0x10000
    v_lshrrev_b32 {v_t1}, 4, {v_lane}
    v_lshl_add_u32 {v_t3}, {v_t1}, 15, {s_bF}
    v_cmp_eq_u32 vcc, 2, {v_t1}
    v_mov_b32 {v_t4}, {s_bS}
    s_add_u32 {s_t3}, {s_q0z}, {QKV[1] + 160*GRP - 256}
    v_cndmask_b32 {v_t3}, {v_t3}, {v_t4}, vcc
    v_cmp_eq_u32 vcc, 3, {v_t1}
    v_lshl_add_u32 {v_t3}, {v_t2}, 4, {v_t3}
    v_add_u32 {v_t3}, {s_t3}, {v_t3}
    v_cndmask_b32 {v_halo}, {v_t3}, {v_big}, vcc
    ''')
    st(f'''
    s_lshl_b32 {s_t0}, {s_w}, 10
    v_mul_u32_u24 {v_t1}, {GS}, {v_h}
    v_lshl_add_u32 {v_t1}, {v_r}, 4, {v_t1}
    s_add_u32 {s_t1}, {s_t0}, {L_KA}
    v_add_u32 {v_k0}, {s_t1}, {v_t1}
    s_add_u32 {s_k1}, {s_t0}, {L_KA + 2*GS}
    s_add_u32 {s_k1}, {s_k1}, {s_so}
    v_bfe_u32 {v_t1}, {v_lane}, 2, 2
    v_lshl_add_u32 {v_t1}, {v_h}, 2, {v_t1}
    v_lshlrev_b32 {v_t1}, 4, {v_t1}
    v_and_b32 {v_pres}, 16, {v_lane}
    v_cmp_eq_u32 vcc, 0, {v_pres}
    v_and_b32 {v_t2}, 1, {v_lane}
    v_bfe_u32 {v_t3}, {v_lane}, 1, 1
    v_add_u32 {v_t4}, 2, {v_t3}
    v_lshlrev_b32 {v_t3}, 3, {v_t3}
    v_mov_b32 {v_tmp}, {s_so}
    v_cndmask_b32 {v_t2}, {v_t4}, {v_t2}, vcc
    v_cndmask_b32 {v_t3}, {v_tmp}, {v_t3}, vcc
    v_cmp_eq_u32 vcc, 3, {v_t2}
    v_add_u32 {v_t1}, {v_t1}, {v_t3}
    s_add_u32 {s_t1}, {s_t0}, {L_VA}
    v_mul_u32_u24 {v_t3}, {GS}, {v_t2}
    v_add3_u32 {v_v}, {v_t1}, {v_t3}, {s_t1}
    v_mul_u32_u24 {v_t3}, 1088, {v_t2}
    v_add3_u32 {v_vb}, {v_t1}, {v_t3}, {s_mV}
    s_add_u32 {s_t1}, {s_mV}, {3*1088}
    v_lshlrev_b32 {v_t3}, 8, {v_t2}
    v_add3_u32 {v_vh}, {v_t1}, {v_t3}, {s_t1}
    s_add_u32 {s_t1}, {s_t0}, {L_ONE}
    v_add_u32 {v_t3}, {s_t1}, {v_t1}
    v_add_u32 {v_t1}, {L_ONE + 4096}, {v_t1}
    v_cndmask_b32 {v_v}, {v_v}, {v_t3}, vcc
    v_cndmask_b32 {v_vb}, {v_vb}, {v_t1}, vcc
    v_cndmask_b32 {v_vh}, {v_vh}, {v_t1}, vcc
    ''')
    mk_ = [0, 0, 0, 0]
    for e in range(256):
        ok = (e - 32 <= 0) if e < 64 else (e - 96 > 0) if e < 128 else (0 <= 191 - e <= 14 and (191 - e) % 2 == 0)
        if ok: mk_[e >> 6] |= 1 << (e & 63)
    assert mk_[3] == 0 and mk_[1] & 0xffffffff == 0 and mk_[2] & 0xffffffff == 0
    st(f'''
    s_cmp_eq_u32 {s_w}, 0
    s_cselect_b32 s38, 0x{mk_[0] & 0xffffffff:x}, 0
    s_cselect_b32 s39, 0x{mk_[0] >> 32:x}, 0
    s_cmp_eq_u32 {s_w}, 1
    s_cselect_b32 s39, 0x{mk_[1] >> 32:x}, s39
    s_cmp_eq_u32 {s_w}, 2
    s_cselect_b32 s39, 0x{mk_[2] >> 32:x}, s39
    v_mov_b32 {v_tmp}, {NEGINF}
    s_lshl_b32 {s_t0}, {s_w}, 8
    s_add_u32 {s_t0}, {s_t0}, {L_TAB}
    v_cndmask_b32 {v_tmp}, {v_tmp}, 0, s[38:39]
    v_lshl_add_u32 {v_t1}, {v_lane}, 2, {s_t0}
    ds_write_b32 {v_t1}, {v_tmp}
    v_lshlrev_b32 {v_t1}, 2, {v_h}
    v_sub_u32 {v_t1}, {v_t1}, {v_r}
    v_lshlrev_b32 {v_t1}, 2, {v_t1}
    v_add_u32 {v_mA}, {L_TAB + 128}, {v_t1}
    s_cmp_eq_u32 {s_q0}, 0
    s_cselect_b64 vcc, -1, 0
    v_mov_b32 {v_t1}, {L_TAB + 4*64}
    v_cndmask_b32 {v_mB0}, {v_mA}, {v_t1}, vcc
    ''')
def setup_late():
    return L(f'''
    v_add_u32 {v_dma}, {s_inv}, {v_l16}
    v_lshlrev_b32 {v_gad}, 2, {v_r}
    v_add_u32 {v_kb0}, {s_q0z}, {v_q4}
    v_add_u32 {v_k1}, {s_k1}, {v_l16}
    ''')
def zero_pads():
    return L('\n'.join(f'v_accvgpr_write_b32 a{b}, 0' for b in (AK1 + 2, AK1 + 3, AK1 + 6, AK1 + 7, AKB1 + 2, AKB1 + 3, AKB1 + 6, AKB1 + 7))
             + f'\nv_mov_b32 v{QA1+8}, 0\nv_mov_b32 v{QA1+9}, 0')

def mask_reads(reg, adr, base, a0=0):
    l = []
    for a in range(a0, 4):
        for b in (0, 2):
            k = base + 8 * a + b
            l.append(Ins(f'ds_read2_b32 {vr(reg+4*a+b,2)}, {adr} offset0:{k} offset1:{k+1}'))
    return l
def mask_far(): return mask_reads(M_FAR, v_mA, 64)
def mask_rest(): return mask_reads(M_DIAG, v_mA, 0) + mask_reads(MB_DIAG, v_mA, 159) + mask_reads(MB_PREV, v_mA, 127, 2) + mask_reads(MB_PREV0, v_mB0, 127, 2)

def kvq_loads():
    g = []
    for ty in (1, 2):
        for gi in range(3):
            g.append(L(f's_add_u32 m0, {s_mK}, {(L_KA if ty == 1 else L_VA) + gi*GS}\n'
                       f's_add_u32 {s_e1}, {s_dS if gi == 2 else s_dF}, {QKV[0] + (80*ty + (gi if gi < 2 else 0))*GRP - 4096}'))
            g.append(L(f'buffer_load_dwordx4 {v_dma}, {sWS}, {s_e1} offen sc1 lds'))
            st = Stream()
            tok = st.vm(f'buffer_load_dwordx4 {v_dma}, {sWS}, {s_e1} offen offset:1024 sc1 lds')
            g.append(st.l)
    for x in (f'buffer_load_dwordx4 {vr(QA0,4)}, {v_q4}, {sWS}, {s_bF} offen sc1',
              f'buffer_load_dwordx2 {vr(QA1,2)}, {v_qe}, {sWS}, {s_bS} offen sc1',
              f'buffer_load_dwordx2 {vr(QA1+2,2)}, {v_qo}, {sWS}, {s_bS} offen sc1',
              f'buffer_load_dwordx4 {vr(QA0+4,4)}, {v_q4}, {sWS}, {s_bF} offen offset:512 sc1',
              f'buffer_load_dwordx2 {vr(QA1+4,2)}, {v_qe}, {sWS}, {s_bS} offen offset:512 sc1',
              f'buffer_load_dwordx2 {vr(QA1+6,2)}, {v_qo}, {sWS}, {s_bS} offen offset:512 sc1'):
        g.append([Ins(x)])
    return g, tok
def wo_loads(f0, f1, adr=v_l16):
    g = []
    for F in range(f0, f1):
        br, f = F // 25, F % 25
        if f % 4 == 0 or F == f0: g.append(L(f's_add_u32 {s_e2}, {s_wob}, {WOF + br*32*25600 + (f & ~3)*1024}'))
        g.append(L(f'buffer_load_dwordx4 {ar(4*F,4)}, {adr}, {sWS}, {s_e2} offen offset:{(f%4)*1024} sc1'))
    return g

steps = [(0, 0)] + [(j, q) for j in range(1, 9) for q in range(2)] + [(9, 1)]
def k0_read(j): return Ins(f'ds_read_b128 {ar(AK0+4*(j&1),4)}, {v_k0} offset:{512*j}')
def k1_read(j): return Ins(f'ds_read_b64 {ar(AK1+4*((j>>1)&1),2)}, {v_k1} offset:{512*j}')
def v_read(j, kk, u): return Ins(f'ds_read_b64_tr_b16 {ar(AV+8*(j&1)+4*kk+2*u,2)}, {v_v} offset:{512*j+256*kk+128*u}')
def qka(n):
    j, q = steps[n]
    c = vr(M_FAR, 16) if j == q else vr(M_DIAG, 16) if j == 8 + q else '0'
    return f'{mm} {vr(SB[n&1],16)}, {ar(AK0+4*(j&1),4)}, {vr(QA0+4*q,4)}, {c}'
def qkb(n):
    j, q = steps[n]
    return f'{mm} {vr(SB[n&1],16)}, {ar(AK1+4*((j>>1)&1),4)}, {vr(QA1+4*q+2*(j&1),4)}, {vr(SB[n&1],16)}'
def pv(n, kk):
    j, q = steps[n]
    c = '0' if (j == q and kk == 0) else vr(OA[q], 16)
    return f'{mm} {vr(OA[q],16)}, {ar(AV+8*(j&1)+4*kk,4)}, {vr(P0+4*kk,4)}, {c}'
def exps(n, g): return [f'v_exp_f32 v{E0+4*(g&1)+i}, v{SB[n&1]+4*g+i}' for i in range(4)]
def cvts(g): return [f'v_cvt_pk_bf16_f32 v{P0+2*g+i}, v{E0+4*(g&1)+2*i}, v{E0+4*(g&1)+2*i+1}' for i in range(2)]
def att_pre(): return [k0_read(0), k1_read(0), k0_read(1)] + [v_read(0, kk, u) for kk in range(2) for u in range(2)]

S(f'''
s_cmp_ge_u32 s2, 0x100
s_cbranch_scc1 L_end
s_load_dwordx2 s[4:5], s[0:1], 0
s_load_dwordx2 s[8:9], s[0:1], 8
s_load_dwordx2 s[12:13], s[0:1], 32
s_load_dwordx2 s[16:17], s[0:1], 72
s_load_dwordx2 s[20:21], s[0:1], 56
s_load_dwordx2 s[24:25], s[0:1], 64
''')
stamp('start')
if opt('cpf', 1):
    S(f'''
    s_getpc_b64 s[28:29]
    L_pc:
    s_mov_b32 s30, L_end-L_pc
    s_mov_b32 s31, 0x20000
    s_andn2_b32 {s_t0}, s2, 7
    v_min_u32 v132, 7, v0
    v_add_lshl_u32 v132, v132, {s_t0}, 7
    buffer_load_dword v133, v132, {sTMP}, 0 offen
    ''')
S(f'''
v_lshrrev_b32 {v_tmp}, 6, v0
v_and_b32 {v_lane}, 63, v0
v_readfirstlane_b32 {s_w}, {v_tmp}
s_and_b32 {s_xcd}, s2, 7
{('s_xor_b32 %s, %s, %d' % (s_xcd, s_xcd, opt('xmap', 0))) if opt('xmap', 0) else ''}
s_lshr_b32 {s_t}, s2, 3
s_and_b32 {s_t0}, {s_xcd}, 1
s_lshl_b32 {s_t0}, {s_t0}, 3
s_and_b32 {s_t1}, {s_t}, 7
s_add_u32 {s_rb}, {s_t0}, {s_t1}
s_lshr_b32 {s_t0}, {s_xcd}, 1
s_lshl_b32 {s_t0}, {s_t0}, 2
s_lshr_b32 {s_t2}, {s_t}, 3
s_add_u32 {s_cb}, {s_t0}, {s_t2}
s_mov_b32 s6, {2048*1280}
s_mov_b32 s7, 0x20000
s_mov_b32 s11, 0x20000
s_cmp_eq_u32 {s_cb}, 15
s_cbranch_scc1 L_spare
s_mov_b32 s10, {640*3840}
s_lshl_b32 {s_rot}, {s_t2}, 1
s_add_u32 {s_rot}, {s_rot}, {s_t1}
''')
if opt('rot', 8) == 8:
    S(f's_and_b32 {s_rot}, {s_rot}, 7\ns_mul_i32 {s_rot}, {s_rot}, 5\ns_lshr_b32 {s_rot}, {s_rot}, 2')
else:
    S(f'''
    s_lshl_b32 {s_rot}, {s_rot}, 1
    s_add_u32 {s_t0}, {s_xcd}, 1
    s_lshr_b32 {s_t0}, {s_t0}, 1
    s_add_u32 {s_rot}, {s_rot}, {s_t0}
    s_and_b32 {s_rot}, {s_rot}, 15
    s_mul_i32 {s_rot}, {s_rot}, 5
    s_lshr_b32 {s_rot}, {s_rot}, 3
    ''')
def rot(st, n):
    if n >= 1: st(f's_cmp_eq_u32 {s_rot}, 10\ns_cselect_b32 {s_rot}, 0, {s_rot}')
    st(f'''
    s_mul_i32 s{SW0+n}, {s_rot}, {64*3840}
    s_lshl_b32 s{SX0+n}, {s_rot}, 7
    s_add_u32 {s_rot}, {s_rot}, 1
    ''')
rot(S, 0)
S(f'''
v_lshrrev_b32 {v_t1}, 4, {v_lane}
v_lshrrev_b32 {v_t2}, 3, {v_lane}
v_mul_u32_u24 {v_t2}, 1280, {v_t2}
v_and_b32 {v_t3}, 7, {v_lane}
v_xor_b32 {v_t3}, {v_t3}, {v_t1}
s_lshl_b32 {s_t2}, {s_rb}, 2
s_add_u32 {s_t2}, {s_t2}, {s_w}
s_mul_i32 {s_t2}, {s_t2}, {32*1280}
v_add_u32 {v_t2}, {s_t2}, {v_t2}
v_lshl_add_u32 v{VXD}, {v_t3}, 4, {v_t2}
v_xor_b32 {v_t3}, 4, {v_t3}
v_lshl_add_u32 v{VXD+1}, {v_t3}, 4, {v_t2}
v_add_u32 v{VXD+2}, {2*(8*1280-1024)}, v{VXD}
v_add_u32 v{VXD+3}, {3*(8*1280-1024)}, v{VXD+1}
v_add_u32 v{VXD+1}, {8*1280-1024}, v{VXD+1}
s_lshl_b32 {s_mW}, {s_w}, 12
s_add_u32 {s_mX}, {s_mW}, {L_X}
v_and_b32 {v_t2}, 15, {v_lane}
v_lshlrev_b32 {v_t3}, 2, {v_t1}
v_xor_b32 {v_t2}, {v_t2}, {v_t3}
v_mul_u32_u24 {v_t3}, 3840, {v_t1}
v_lshl_add_u32 {v_t3}, {v_t2}, 4, {v_t3}
s_mul_i32 {s_t1}, {s_w}, {16*3840}
s_lshl_b32 {s_t2}, {s_cb}, 8
s_add_u32 {s_t1}, {s_t1}, {s_t2}
v_add_u32 v{VWD}, {s_t1}, {v_t3}
''')
for i in range(1, 4):
    S(f'v_add_u32 v{VWD+i}, {i*(4*3840-1024)}, v{VWD}')
rot(S, 1)
S('s_waitcnt lgkmcnt(0)')

dma_tok = {}
WSLOT = [n % 4 for n in range(10)] + [2, 6, 3, 7, 0, 4, 1, 2, 3, 0]
WISS = {n: n - 2 for n in range(2, 11)}
WISS.update({11: 8, 12: 9, 13: 9, 14: 10, 15: 13, 16: 13, 17: 14, 18: 14, 19: 16})
for a_ in ARGS:
    if a_.startswith('--wiss='): WISS.update({11 + i: int(x) for i, x in enumerate(a_[7:].split(','))})
CTM = opt('ctm', 4)
def dma_stage(n):
    p, ns, slot = n // 10, n % 10, WSLOT[n]
    g = []
    if p == 0:
        g.append(L(f's_add_u32 m0, {s_mX}, {slot*16384}'))
        for i in range(4):
            g.append(L(f'buffer_load_dwordx4 v{VXD+i}, {sX}, s{SX0+ns} offen offset:{1024*i} lds'))
        g[-1] += L(f's_add_u32 m0, {s_mW}, {slot*16384}')
    else:
        g.append(L(f's_add_u32 m0, {s_mW}, {slot*16384}'))
    for i in range(4):
        st = Stream()
        dma_tok[n] = st.vm(f'buffer_load_dwordx4 v{VWD+i}, {sWB if p else sWA}, s{SW0+ns} offen offset:{1024*i} lds')
        g.append(st.l)
    return g

def common_consts(st):
    st(f'''
    s_mov_b32 s18, {WS_SIZE + (65536 if STAMPS else 0)}
    s_mov_b32 s19, 0x20000
    s_mov_b32 s26, 256
    s_mov_b32 s27, 0x20000
    s_mov_b32 s31, 0x20000
    v_cmp_eq_u32 vcc, 0, v0
    v_mov_b32 {v_big}, {BIG}
    v_mov_b32 {v_one}, 1
    v_lshlrev_b32 {v_l16}, 4, {v_lane}
    v_cndmask_b32 {v_flag}, {v_big}, 0, vcc
    ''')

for g in dma_stage(0): S.extend(g)
common_consts(S)
stamp('iss0')
d1 = dma_stage(1)
PRE = opt('pre', 5)
for g in d1[:PRE]: S.extend(g)
pre = Stream()
for n in range(2, 4): rot(pre, n)
pre(f'''
v_lshrrev_b32 {v_t1}, 5, {v_lane}
v_bfe_u32 {v_t2}, {v_lane}, 2, 2
v_lshl_add_u32 {v_t3}, {v_t1}, 3, {v_t2}
v_lshlrev_b32 {v_t3}, 8, {v_t3}
v_bfe_u32 {v_tmp}, {v_lane}, 4, 1
v_lshl_add_u32 {v_t3}, {v_tmp}, 5, {v_t3}
v_and_b32 {v_tmp}, 1, {v_lane}
v_lshl_add_u32 {v_t3}, {v_tmp}, 4, {v_t3}
v_bfe_u32 {v_tmp}, {v_lane}, 1, 1
v_lshl_add_u32 {v_t3}, {v_tmp}, 3, {v_t3}
v_lshl_add_u32 {v_t3}, {v_t2}, 6, {v_t3}
s_and_b32 {s_t0}, {s_w}, 1
s_lshr_b32 {s_t1}, {s_w}, 1
s_lshl_b32 {s_t2}, {s_t0}, 7
v_xor_b32 v{VWR}, {s_t2}, {v_t3}
v_xor_b32 v{VWR+1}, 64, v{VWR}
v_and_b32 {v_t2}, 31, {v_lane}
v_bfe_u32 {v_t3}, {v_lane}, 1, 3
v_xor_b32 {v_t3}, {v_t3}, {v_t1}
v_lshlrev_b32 {v_t3}, 4, {v_t3}
v_lshl_add_u32 {v_t3}, {v_t2}, 7, {v_t3}
s_lshl_b32 {s_t2}, {s_t1}, 13
s_add_u32 {s_t2}, {s_t2}, {L_X}
v_add_u32 v{VXR}, {s_t2}, {v_t3}
''')
for s_ in range(1, 4):
    pre(f'v_xor_b32 v{VXR+s_}, {s_*32}, v{VXR}')
pre(f'''
s_lshl_b32 {s_t2}, {s_rb}, 1
s_add_u32 {s_t2}, {s_t2}, {s_t1}
s_lshl_b32 {s_t2}, {s_t2}, 10
v_lshlrev_b32 {v_t1}, 15, {v_t1}
v_lshl_add_u32 {v_t1}, {v_t2}, 4, {v_t1}
v_add_u32 {v_st}, {s_t2}, {v_t1}
s_lshl_b32 {s_stb}, {s_cb}, 1
s_add_u32 {s_stb}, {s_stb}, {s_t0}
s_lshl_b32 {s_stb}, {s_stb}, 18
s_cmp_lt_u32 {s_cb}, 5
s_cselect_b32 {s_scale}, {f32(QSCALE)}, 1.0
s_cselect_b32 {s_tag}, {'0xfffe0000' if QRND else '-2'}, -1
s_cselect_b32 {s_rnd}, 0x10000, 0
''')
TB = opt('tb', 10); TBH = opt('tbh', 1)
if TB >= 0:
    nl = 20 if TBH else 40
    pre(f'''
    s_mov_b32 s14, {640*3840}
    s_mov_b32 s15, 0x20000
    v_lshrrev_b32 v134, 1, {v_lane}
    v_mul_u32_u24 v134, 3840, v134
    v_and_b32 v135, 1, {v_lane}
    v_lshl_add_u32 v134, v135, 7, v134
    v_cmp_gt_u32 vcc, {nl}, {v_lane}
    s_and_b32 s56, {s_rb}, {15 if TBH else 7}
    s_lshl_b32 s56, s56, 2
    s_add_u32 s56, s56, {s_w}
    v_cndmask_b32 v134, {v_big}, v134, vcc
    s_mul_i32 s56, s56, {nl//2*3840}
    s_lshl_b32 s57, {s_cb}, 8
    s_add_u32 s56, s56, s57
    ''')
    if TBH == 2:
        pre(f'''
        v_lshrrev_b32 v134, 1, {v_lane}
        v_mul_u32_u24 v134, 3840, v134
        v_lshl_add_u32 v134, v135, 7, v134
        s_lshr_b32 s56, {s_t}, 3
        s_lshl_b32 s56, s56, 1
        s_add_u32 s56, s56, {s_t}
        s_bitcmp1_b32 s56, 1
        s_cselect_b32 s58, 0, 40
        v_cmp_gt_u32 vcc, s58, {v_lane}
        s_bfe_u32 s58, s56, 0x10002
        s_lshl_b32 s58, s58, 1
        s_and_b32 s56, s56, 1
        v_cndmask_b32 v134, {v_big}, v134, vcc
        s_add_u32 s56, s56, s58
        s_lshr_b32 s58, {s_rb}, 3
        s_lshl_b32 s58, s58, 2
        s_add_u32 s56, s56, s58
        s_lshl_b32 s56, s56, 2
        s_add_u32 s56, s56, {s_w}
        s_mul_i32 s56, s56, {20*3840}
        s_add_u32 s56, s56, s57
        ''')
    touch = Ins(f'buffer_load_dword v135, v134, {sWB}, s56 offen')
    if TB == 0: pre.l.append(touch)
if opt('wot', 0):
    S.l.insert(2, Ins('s_load_dwordx2 s[56:57], s[0:1], 16')); S.l.insert(2, Ins('s_load_dwordx2 s[58:59], s[0:1], 40'))
    S(f'''
    s_cmp_ge_u32 {s_rb}, 8
    s_cselect_b32 s28, s58, s56
    s_cselect_b32 s29, s59, s57
    s_mov_b32 s30, {640*1280}
    s_and_b32 {s_t0}, {s_rb}, 7
    s_mul_i32 {s_t0}, {s_t0}, 15
    s_add_u32 {s_t0}, {s_t0}, {s_cb}
    s_lshl_b32 {s_t0}, {s_t0}, 2
    s_add_u32 {s_t0}, {s_t0}, {s_w}
    s_mul_i32 {s_t0}, {s_t0}, {14*128}
    v_min_u32 v137, 13, {v_lane}
    v_lshlrev_b32 v137, 7, v137
    buffer_load_dword v136, v137, {sTMP}, {s_t0} offen
    ''')
npre = len(atomize(pre.l))
for n in range(4, 10): rot(pre, n)
setup2(pre)
pre = atomize(pre.l)
SPLIT = min(npre + opt('split', 1000), len(pre))
pre, su_post = pre[:SPLIT], pre[SPLIT:]
if d1[PRE:]: weave(pre, d1[PRE:], opt('pre0', 20), min(len(pre), opt('pre1', 120)))
for g in pre: S.extend(g)
stamp('setup')

seq = []
def tilewise(ns, k2):
    ns = list(ns); m = len(ns) - k2
    l = [(n, s_, 0, rt) for n in ns for s_ in range(4) for rt in range(2)]
    l += [(n, s_, 1, rt) for n in ns[:m] for s_ in range(4) for rt in range(2)]
    for rt in range(2): l += [(n, s_, 1, rt) for n in ns[m:] for s_ in range(4)]
    return l
for n in range(20 - CTM):
    if n == 9: seq += tilewise([9], 0)
    else: seq += [(n, s_, c, rt) for s_ in range(4) for c in range(2) for rt in range(2)]
seq += tilewise(range(20 - CTM, 20), opt('ct2', 2))
NG = len(seq)
def xreg(n, s_, rt):
    n %= 10
    return ar(32 * n + 8 * s_ + 4 * rt, 4) if n < 8 else vr(XV + 32 * (n - 8) + 8 * s_ + 4 * rt, 4)
BO = opt('bo', 5)
firstuse = {}; lastuse = {}
for k, e in enumerate(seq): firstuse.setdefault(e[0], k); lastuse[e[0]] = k
BARS = list(range(1, 21 - CTM)) + ([19] if CTM > 2 else [])
def bar_of(n): return max(b for b in [0] + BARS if b <= n)
def bar_gap(n): return firstuse[bar_of(n)] - BO
for n in range(4, 20):
    prev = [m for m in range(n) if WSLOT[m] == WSLOT[n] or (m < 10 and WSLOT[n] == 4 + m % 4)]
    assert WISS[n] in BARS and lastuse[prev[-1]] < bar_gap(WISS[n]), n
frag = []; fidx = []
for k, e in enumerate(seq):
    if k == 0 or seq[k - 1][:3] != e[:3]: frag.append([e[:3], k, k])
    frag[-1][2] = k; fidx.append(len(frag) - 1)
reads = []; xseen = set(); first_reads = []
for j, ((n, s_, c), u0, u1) in enumerate(frag):
    lo = max(frag[j - 4][2] if j >= 4 else -1, bar_gap(n))
    sl_ = WSLOT[n]; buf = WRING + 4 * (j & 3)
    l = [Ins(f'ds_read_b64_tr_b16 {vr(buf+2*u,2)}, v{(VXR if sl_ >= 4 else VWR)+c} offset:{(sl_%4)*16384+(16*s_+4*u)*256}') for u in range(2)]
    if n < 10 and (n, s_) not in xseen:
        xseen.add((n, s_))
        l = [Ins(f'ds_read_b128 {xreg(n,s_,rt)}, v{VXR+s_} offset:{(n%4)*16384+rt*4096}') for rt in range(2)] + l
    if j < 2: first_reads += l
    else: reads += [Item(x, lo, u0 - (3 if u0 - 3 >= lo else 2)) for x in l]
mf = []
for k, (n, s_, c, rt) in enumerate(seq):
    acc = vr(ACC[n // 10] + 16 * (2 * c + rt), 16)
    mf.append(Ins(f'{mm} {acc}, {vr(WRING+4*(fidx[k]&3),4)}, {xreg(n,s_,rt)}, {"0" if n % 10 == 0 and s_ == 0 else acc}'))
done = {}
for k, (n, s_, c, rt) in enumerate(seq): done[(n // 10, 2 * c + rt)] = k
def epi1_tile(p, T):
    g = []; c, rt = T >> 1, T & 1
    for u in range(2):
        b = ACC[p] + 16 * T + 8 * u
        g.append(L(f's_add_u32 {s_e0}, {s_stb}, {QKV[p]+(4*c+2*u)*GRP}'))
        for i in range(8): g.append(L(f'v_mul_f32 v{b+i}, {s_scale}, v{b+i}'))
        if QRND:
            for i in (0, 4): g.append(L(f'v_add_u32 v{b+i}, {s_rnd}, v{b+i}'))
            for i in (0, 4): g.append(L(f'v_and_b32 v{b+i}, {s_tag}, v{b+i}'))
        for i in range(4): g.append(L(f'v_cvt_pk_bf16_f32 v{b+i}, v{b+2*i}, v{b+2*i+1}'))
        if not QRND:
            for i in (0, 2): g.append(L(f'v_and_b32 v{b+i}, {s_tag}, v{b+i}'))
        st = Stream(); tok = st.vm(f'buffer_store_dwordx4 {vr(b,4)}, {v_st}, {sWS}, {s_e0} offen offset:{512*rt} sc1')
        g.append(st.l)
    return g, tok

cap = [6 - (1 if k + 1 < NG and fidx[k + 1] != fidx[k] else 0) for k in range(NG)]
fixed = {}
FLAGA = opt('flagA', 14)
for n in BARS:
    fixed[bar_gap(n)] = [('BAR', n)]; cap[bar_gap(n)] -= 2 + (2.5 if n == FLAGA else 0)
dmas = []
for b in range(0, 17):
    l = [g for n in range(2, 20) if WISS[n] == b for g in dma_stage(n)]
    if l:
        lo = max(bar_gap(b), 0)
        dmas += paced(l, lo, lo + (opt('dsp', 14) if len(l) > 5 else 7), 2)
KV0 = opt('kv0', 262); KV1 = opt('kv1', 290); KVB = opt('kvb', 312)
assert KV0 > bar_gap(16) + 9
kv, tokKV = kvq_loads()
dmas += [Item(mk(poll_check, v_pres, v_p1, sWS, s_F1A) + [('ST', 'pc1')], KV0 - 1, KV0 - 1)] + paced(kv, KV0, KV1, 2)
epi = []
EA1 = opt('epiAend', 190)
for T in range(4):
    g, tokA = epi1_tile(0, T)
    lo = done[(0, T)] + 3
    it = asap(g, lo, lo + 1)
    for i, x in enumerate(it): x.hi = max(lo, 154 + (len(g) * T + i) * (EA1 - 154) // (4 * len(g))) + 2
    epi += it
for T in range(3):
    g, tokB = epi1_tile(1, T)
    lo = done[(1, T)] + 3
    it = asap(g, lo, lo + 1)
    e0 = done[(1, 0)] + 3; e1 = done[(1, 2)] + 3
    for i, x in enumerate(it): x.hi = max(lo, e0 + (len(g) * T + i) * (e1 - e0) // (2 * len(g))) + 1 if T < 2 else NG
    epi += it
NWO1 = opt('nwo1', 0); NA = 0
WO0 = opt('wo0', 222); WO1 = opt('wo1', 258)
misc = []
if TB > 0: misc.append(Item(touch, TB, TB + 2))
SU1 = opt('su1', 112)
sus = asap(su_post, 0, SU1) if su_post else []
for it in sus: it.hi += 4
misc += [Item(mk(poll_issue, v_pres, v_zero, sDBG, '0'), SU1 + 5, SU1 + 7), Item(mk(poll_check, v_pres, v_zero, sDBG, '0'), 146, 148)]
misc += paced(setup_late(), 148, 152, 4)
if NA: misc += [Item(mk(poll_issue, v_pres, v_p2, sWS, s_F1A), opt('p2i', 148), opt('p2i', 148) + 2)]
misc += paced([Ins(f'v_add_u32 v{VXR+c}, {L_X}, v{VWR+c}') for c in range(2)], 156, 160, 3)
if NA: misc += [Item(mk(poll_check, v_pres, v_p2, sWS, s_F1A) + [('ST', 'pc2')], WO0 - 1, WO0 - 1)]
wl = paced(wo_loads(0, NA), WO0, WO1, 3) if NA else []
P1I = KV0 - opt('p1d', 20)
misc += [x for x in wl if x.lo < P1I] + [Item(mk(poll_issue, v_pres, v_p1, sWS, s_F1A), P1I, P1I + 2)] + [x for x in wl if x.lo >= P1I]
if NWO1: misc += paced(wo_loads(0, NWO1), KV1, NG - 2, 2)
WT = opt('wt', 0)
def wo_touch():
    if opt('map3', 1):
        a_ = L(f'''
        v_min_u32 v114, 24, {v_r}
        v_lshlrev_b32 v114, 7, v114
        v_mul_u32_u24 v115, {32*25600}, {v_h}
        s_and_b32 s56, {s_R}, 7
        s_mul_i32 s56, s56, 3200
        v_add_u32 v114, v114, v115
        s_add_u32 s56, s56, {s_wob}
        s_add_u32 s56, s56, {WOF}
        ''')
        return a_, L(f'buffer_load_dword v115, v114, {sWS}, s56 offen sc1')
    a_ = L(f'''
    v_min_u32 v114, 49, {v_lane}
    v_lshlrev_b32 v114, 7, v114
    s_and_b32 s56, {s_R}, 3
    s_mul_i32 s56, s56, 6400
    s_add_u32 s56, s56, {s_wob}
    s_add_u32 s56, s56, {WOF}
    s_add_u32 s57, s56, {32*25600}
    ''')
    return a_, L(f'buffer_load_dword v115, v114, {sWS}, s56 offen sc1\nbuffer_load_dword v116, v114, {sWS}, s57 offen sc1')
if WT > KV0:
    a_, b_ = wo_touch()
    misc += paced(a_, KV0 + 2, KV0 + 12, 3) + paced(b_, WT, WT + opt('wtn', 4), 2)
elif WT:
    a_, b_ = wo_touch()
    assert WT + 6 < P1I
    it = [Item(mk(poll_issue, v_pres, v_p2, sWS, s_F1A), WT - 20, WT - 18)] + paced(a_, WT - 14, WT - 4, 2)
    it += [Item(mk(poll_check, v_pres, v_p2, sWS, s_F1A), WT - 1, WT - 1)] + paced(b_, WT, WT + 2, 2)
    k_ = next(i for i, x in enumerate(misc) if x.lo == P1I)
    misc[k_:k_] = it
misc2 = paced(mask_far(), 244, 256, 4) + paced(zero_pads(), lastuse[17] + 1, lastuse[17] + 6, 2)
st = Stream(); st.wait(tokKV); st('s_barrier'); fixed[KVB] = st.l + [('ST', 'kvb')]; cap[KVB] -= 2
misc2 += paced(att_pre(), KVB, NG - 2, 1)
rep_ = []
gaps, over = schedule(NG, cap, [reads, dmas, epi, misc, misc2, sus], rep_)
if '--sched' in ARGS:
    for n in range(20): print(n, ' '.join('%4.1f' % x for x in rep_[16 * n:16 * n + 16]))
last_def = {}; last_use = {}
for k, m in enumerate(mf):
    for r in m.defs: last_def[r] = k
    for r in m.srcab: last_use[r] = k
for k, g in enumerate(gaps):
    for it in g:
        if isinstance(it, tuple): continue
        if it.kind in ('valu', 'vm') or (it.kind == 'ds' and k > 200):
            for r in it.uses | it.defs: assert last_def.get(r, -1) <= k or k < 150, (k, it.text)
            if 'tr_b16 v' not in it.text:
                for r in it.defs: assert last_use.get(r, -1) <= k, (k, it.text)

S.wait(dma_tok[0])
if opt('waitall', 0): S('s_waitcnt vmcnt(0)')
S('s_barrier')
stamp('first')
S.l += first_reads
for k in range(NG):
    if k + 1 < NG and fidx[k + 1] == fidx[k]: S.use(mf[k].srcab | mf[k + 1].srcab)
    S.l.append(mf[k])
    if opt('slow', 0) and opt('slow0', 0) <= k < opt('slow1', 160): S('s_nop %d' % opt('slow', 0))
    for it in fixed.get(k, []) + mem_first(gaps[k]):
        if isinstance(it, tuple) and it[0] == 'ST':
            if FINE: stamp(it[1])
        elif isinstance(it, tuple):
            n2 = it[1]
            tk = [dma_tok[m] for m in range(20) if bar_of(m) == n2]
            if n2 == FLAGA: tk.append(tokA)
            S.wait(*tk)
            S('s_barrier')
            if n2 == FLAGA: set_flag(S, v_flag, s_f1, 0)
            if FINE or n2 in (10, 14, 16): stamp('b%d' % n2)
        else:
            S.l.append(it)
stamp('p1end')
S(qka(0)); S(qkb(0))
mrest = mask_rest()
S.l += mrest[:8]
g, tokB = epi1_tile(1, 3)
for x in g: S.l += x
S('L_join:')
stamp('join')
nst_join = nstamp[0] - 1

N = len(steps)
groups = []
for n in range(N):
    for g in range(4):
        st = Stream()
        if g == 0 and n + 1 < N: st(qka(n + 1))
        if g == 1 and n > 0: st(pv(n - 1, 1))
        if g == 2 and n + 1 < N: st(qkb(n + 1))
        if g == 3: st(pv(n, 0))
        if g > 0 or n > 0:
            for x in cvts((g - 1) & 3): st(x)
        for x in exps(n, g): st(x)
        groups.append(st.l)
first = {}
for n, (j, q) in enumerate(steps): first.setdefault(j, n)
last = {j: n for n, (j, q) in enumerate(steps)}
for j in range(1, 10):
    base = 4 * (last[j-2] + 1) + 1 if j >= 2 else 0
    for kk in range(2):
        for u in range(2): groups[base + kk].append(v_read(j, kk, u))
    if j + 1 < 10:
        groups[base + 3].append(k0_read(j + 1))
        if (j + 1) % 2 == 0: groups[base + 3].append(k1_read(j + 1))
    need = set(x for kk in range(2) for u in range(2) for x in v_read(j, kk, u).defs)
    if j + 1 < 10: need |= k0_read(j + 1).defs | (k1_read(j + 1).defs if (j + 1) % 2 == 0 else set())
    st = Stream(); st.use(need); groups[4 * first[j] + 3][0:0] = st.l
weave(groups, mrest[8:], 4, 36)
FB = opt('fb', 4)
st = Stream(); st.wait(tokB); st('s_barrier'); set_flag(st, v_flag, s_f1, 0); groups[4 * FB - 1] += st.l
groups[0] += L(f's_add_u32 {s_f1}, {s_f1}, 32768')
P3S = opt('p3s', 11); P3D = opt('p3d', 2)
NWO2 = opt('nwo2', 44)
NWOM = min(NWO2, opt('nwom', 44))
if NWOM > NWO1: weave(groups, wo_loads(NWO1, NWOM), opt('wo0g', 1), 4 * (P3S - P3D) - 1)
if NWO2 > NWOM: weave(groups, wo_loads(NWOM, NWO2), 4 * P3S + opt('bln', 12), 72)
groups[4 * (P3S - P3D) - 1] += mk(poll_issue, v_pres, v_p3, sWS, s_F1B)
groups[4 * P3S - 2] += L(f'''
s_add_u32 s60, {s_bF}, {QKV[1]}
s_add_u32 s61, {s_bS}, {QKV[1]}
s_add_u32 s62, {s_bF}, {QKV[1] + 80*GRP - 512}
s_add_u32 s63, {s_bS}, {QKV[1] + 80*GRP - 512}
''')
groups[4 * P3S - 3] += L(f'''
s_add_u32 s64, {s_bF}, {QKV[1] + 160*GRP}
s_add_u32 s65, {s_bF}, {QKV[1] + 161*GRP - 1088}
s_add_u32 s66, {s_bS}, {QKV[1] + 160*GRP - 2176}
s_mov_b32 m0, {s_mV}
''')
groups[4 * P3S - 1] += mk(poll_check, v_pres, v_p3, sWS, s_F1B)
bl = L(f'''
buffer_load_dword {v_g[0]}, {v_gad}, {sWS}, {s_gb} offen sc1
buffer_load_dword {v_g[1]}, {v_gad}, {sWS}, {s_gb} offen offset:128 sc1
buffer_load_dwordx4 {vr(QB0,4)}, {v_q4}, {sWS}, s60 offen sc1
buffer_load_dwordx4 {vr(KB0,4)}, {v_kb0}, {sWS}, s62 offen sc1
buffer_load_dwordx2 {vr(QB1,2)}, {v_qe}, {sWS}, s61 offen sc1
buffer_load_dwordx2 {vr(QB1+2,2)}, {v_qo}, {sWS}, s61 offen sc1
buffer_load_dwordx2 {ar(AKB1,2)}, {v_kb1}, {sWS}, s63 offen sc1
buffer_load_dwordx4 {vr(KB0+4,4)}, {v_q4}, {sWS}, s62 offen offset:512 sc1
buffer_load_dwordx4 {vr(QB0+4,4)}, {v_q4}, {sWS}, s60 offen offset:512 sc1
buffer_load_dwordx2 {vr(QB1+4,2)}, {v_qo}, {sWS}, s61 offen offset:512 sc1
buffer_load_dwordx4 {vr(KB0+8,4)}, {v_q4}, {sWS}, s62 offen offset:1024 sc1
buffer_load_dwordx2 {ar(AKB1+4,2)}, {v_qo}, {sWS}, s63 offen offset:1024 sc1
buffer_load_dwordx4 {v_l16}, {sWS}, s64 offen sc1 lds
buffer_load_dwordx4 {v_l16}, {sWS}, s65 offen offset:1088 sc1 lds
buffer_load_dwordx4 {v_l16}, {sWS}, s66 offen offset:2176 sc1 lds
''')
st = Stream(); st(f's_add_u32 m0, {s_mV}, 3264\nv_mov_b32 v{QB1+6}, 0\nv_mov_b32 v{QB1+7}, 0')
tokVB = st.vm(f'buffer_load_dwordx4 {v_halo}, {sWS}, 0 offen sc1 lds'); bl.append(st.l)
weave(groups, bl, 4 * P3S, 4 * P3S + opt('bln', 12))
for k, g in enumerate(groups):
    S.l += mem_first(g)
    if FINE and k % 8 == 7: stamp('a%d' % (k // 4))
for x in cvts(3): S(x)
S('s_nop 1')
S(pv(N - 1, 1))
stamp('attA')
S(f'''
s_lshl_b32 {s_t0}, {s_R}, 10
s_mul_i32 {s_t1}, {s_w}, {20*GRP}
s_add_u32 s{SX0}, {s_t0}, {s_t1}
s_mov_b32 {s_tag}, 0xfffe0000
''')
for s_ in range(1, 5): S(f's_add_u32 s{SX0+s_}, s{SX0}, {4*s_*GRP}')
for s_ in range(2): S(f's_add_u32 s{SX0+5+s_}, s{SX0}, {QKV[1] + 4*s_*GRP}')
S(f'''
s_mov_b32 {s_t1}, {hex(64 << 23)}
v_subrev_u32 {v_t1}, {hex(95 << 23)}, v{OA[0]+12}
v_subrev_u32 {v_t2}, {hex(95 << 23)}, v{OA[1]+12}
v_max_u32 {v_t1}, {v_t1}, {v_t2}
v_cmp_le_u32 vcc, {s_t1}, {v_t1}
s_cbranch_vccnz L_truemax
L_Aok:
''')
FBK = Stream()
FBK('@reset')
FBK(f'''
L_truemax:
s_lshr_b32 {s_t1}, {s_q0}, 5
s_sub_u32 {s_t1}, 8, {s_t1}
s_nop 7
''')
def fb_qk(j, q):
    c = vr(M_FAR, 16) if j == q else vr(M_DIAG, 16) if j == 8 + q else '0'
    FBK(f'''
    ds_read_b128 {ar(AK0,4)}, {v_k0} offset:{512*j}
    ds_read_b64 {ar(AK1,2)}, {v_k1} offset:{512*(j & ~1)}
    {mm} {vr(SB[0],16)}, {ar(AK0,4)}, {vr(QA0+4*q,4)}, {c}
    {mm} {vr(SB[0],16)}, {ar(AK1,4)}, {vr(QA1+4*q+2*(j&1),4)}, {vr(SB[0],16)}
    ''')
for q in range(2):
    FBK(f'v_mov_b32 {v_t3}, {NEGINF}')
    for i in range(16): FBK(f'v_mov_b32 v{OA[q]+i}, 0')
    for ps in range(2):
        for j in range(q, q + 9):
            l = lab('skip')
            FBK(f's_cmp_gt_i32 {s_t1}, {j}\ns_cbranch_scc1 {l}')
            if ps == 1:
                for kk in range(2):
                    for u in range(2): FBK(f'ds_read_b64_tr_b16 {ar(AV+4*kk+2*u,2)}, {v_v} offset:{512*j+256*kk+128*u}')
            fb_qk(j, q)
            if ps == 0:
                for i in range(0, 16, 2): FBK(f'v_max3_f32 {v_t3}, {v_t3}, v{SB[0]+i}, v{SB[0]+i+1}')
            else:
                for i in range(16): FBK(f'v_sub_f32 v{SB[0]+i}, v{SB[0]+i}, {v_t3}')
                for i in range(16): FBK(f'v_exp_f32 v{SB[0]+i}, v{SB[0]+i}')
                for i in range(8): FBK(f'v_cvt_pk_bf16_f32 v{P0+i}, v{SB[0]+2*i}, v{SB[0]+2*i+1}')
                for kk in range(2): FBK(f'{mm} {vr(OA[q],16)}, {ar(AV+4*kk,4)}, {vr(P0+4*kk,4)}, {vr(OA[q],16)}')
                FBK('s_nop 7')
            FBK(l + ':')
        if ps == 0:
            FBK(f'''
            s_nop 1
            v_mov_b32 {v_t4}, {v_t3}
            v_permlane32_swap_b32 {v_t3}, {v_t4}
            v_max_f32 {v_t3}, {v_t3}, {v_t4}
            ''')
FBK('s_nop 15\ns_branch L_Aok')

OSC = '' if opt('local', 0) else ' sc1'
def epi2(br, q, o, pk=False):
    st = Stream()
    st(f'v_rcp_f32 {v_t1}, v{o+12}')
    if br: st(f'v_sub_f32 {v_g[q]}, 1.0, {v_g[q]}')
    st(f'v_mul_f32 {v_t1}, {v_g[q]}, {v_t1}')
    if pk:
        for i in range(0, 12, 2): st(f'v_pk_mul_f32 {vr(o+i,2)}, {vr(o+i,2)}, {vr(22,2)} op_sel_hi:[1,0]')
    else:
        for i in range(12): st(f'v_mul_f32 v{o+i}, {v_t1}, v{o+i}')
    for i in (0, 4, 8): st(f'v_and_or_b32 v{o+i}, v{o+i}, {s_tag}, {v_o4}')
    for i in range(6): st(f'v_cvt_pk_bf16_f32 v{o+i}, v{o+2*i}, v{o+2*i+1}')
    st(f'buffer_store_dwordx4 {vr(o,4)}, {v_q4}, {sWS}, {"s60" if br else s_bF} offen offset:{512*q} sc1')
    tok = st.vm(f'buffer_store_dwordx2 {vr(o+4,2)}, {v_qe}, {sWS}, {"s61" if br else s_bS} offen offset:{512*q} sc1')
    return st.l, tok
qkB = [[Ins(x)] for x in (
    f'{mm} {vr(SP[0],16)}, {vr(KB0,4)}, {vr(QB0,4)}, {vr(MB_PREV0,16)}',
    f'{mm} {vr(SP[0],16)}, {ar(AKB1,4)}, {vr(QB1,4)}, {vr(SP[0],16)}',
    f'{mm} {vr(SD[0],16)}, {vr(KB0+4,4)}, {vr(QB0,4)}, {vr(MB_DIAG,16)}',
    f'{mm} {vr(SD[0],16)}, {ar(AKB1,4)}, {vr(QB1+2,4)}, {vr(SD[0],16)}',
    f'{mm} {vr(SP[1],16)}, {vr(KB0+4,4)}, {vr(QB0+4,4)}, {vr(MB_PREV,16)}',
    f'{mm} {vr(SP[1],16)}, {ar(AKB1,4)}, {vr(QB1+4,4)}, {vr(SP[1],16)}',
    f'{mm} {vr(SD[1],16)}, {vr(KB0+8,4)}, {vr(QB0+4,4)}, {vr(MB_DIAG,16)}',
    f'{mm} {vr(SD[1],16)}, {ar(AKB1+4,4)}, {vr(QB1+4,4)}, {vr(SD[1],16)}')]
st = Stream(); st.wait(tokVB)
for u in range(2): st(f'ds_read_b64_tr_b16 {ar(VB+2*u,2)}, {v_vh} offset:{128*u}')
for t in range(2):
    for kk in range(2):
        for u in range(2): st(f'ds_read_b64_tr_b16 {ar(VB+4+8*t+4*kk+2*u,2)}, {v_vb} offset:{512*t+256*kk+128*u}')
vbr = st.l
e0, _ = epi2(0, 0, OA[0], True); e1, tokOA = epi2(0, 1, OA[1], True)
S.l += e0 + e1
st2('epiA')
adr = Stream()
adr(f'''
v_lshrrev_b32 v14, 4, {v_lane}
v_and_b32 v15, 15, {v_lane}
v_lshlrev_b32 v5, 15, v14
v_lshl_add_u32 v5, v15, 4, v5
''')
for rho in range(4):
    adr(f'''
    s_add_u32 {s_t0}, {s_w}, {rho}
    s_and_b32 {s_t0}, {s_t0}, 3
    s_lshl_b32 s{56+rho}, {s_t0}, 8
    v_add_u32 v{V4+rho}, s{56+rho}, v5
    ''')
adr2 = Stream()
for rho in range(4):
    adr2(f's_mul_i32 {s_t1}, s{56+rho}, 60')
    if rho: adr2(f's_add_u32 {s_t1}, {s_t1}, {(rho-1)*5120}\nv_add_u32 v{VRW+rho-1}, {s_t1}, {v_l16}')
    else: adr2(f'v_add_u32 {v_rr}, {s_t1}, {v_l16}')
adr2(f'''
v_mul_u32_u24 v15, 1280, v15
v_mad_u32_u24 v15, v14, 40, v15
s_lshl_b32 {s_t0}, {s_R}, 2
s_add_u32 {s_t0}, {s_t0}, {s_w}
s_mul_i32 {s_t0}, {s_t0}, {16*1280}
s_mul_i32 {s_t1}, {s_C}, 160
s_add_u32 {s_t0}, {s_t0}, {s_t1}
v_add_u32 {v_out}, {s_t0}, v15
''')
for s_ in range(2, 5): adr2(f's_add_u32 s{SX0+5+s_}, s{SX0}, {QKV[1] + 4*s_*GRP}')
weave(qkB, vbr, 2, 6)
NWOB = max(NWO2, opt('nwob', 44))
if NWOB > NWO2: weave(qkB, wo_loads(NWO2, NWOB), 0, 6)
weave(qkB, adr.l, 0, 8)
for g in qkB[:6]: S.l += g
st2('qkB')
def softB(q):
    st = Stream()
    b = SP[q] + 8
    assert SD[q] == SP[q] + 16
    st(f'v_max3_f32 {v_t3}, v{b}, v{b+1}, v{b+2}')
    st(f'v_max3_f32 {v_t4}, v{b+3}, v{b+4}, v{b+5}')
    for i in range(6, 22, 4):
        st(f'v_max3_f32 {v_t3}, {v_t3}, v{b+i}, v{b+i+1}')
        st(f'v_max3_f32 {v_t4}, {v_t4}, v{b+i+2}, v{b+i+3}')
    st(f'v_max3_f32 {v_t3}, {v_t3}, v{b+22}, v{b+23}')
    st(f'v_max_f32 {v_t3}, {v_t3}, {v_t4}')
    st(f'v_mov_b32 {v_t4}, {v_t3}')
    st(f'v_permlane32_swap_b32 {v_t3}, {v_t4}')
    st(f'v_max_f32 {v_t3}, {v_t3}, {v_t4}')
    for i in range(0, 24, 2): st(f'v_pk_add_f32 {vr(b+i,2)}, {vr(b+i,2)}, {vr(24,2)} op_sel_hi:[1,0] neg_lo:[0,1] neg_hi:[0,1]')
    vop = [VB if q == 0 else VB + 8, VB + 4 + 8 * q, VB + 8 + 8 * q]
    for c in range(3):
        for i in range(8): st(f'v_exp_f32 v{b+8*c+i}, v{b+8*c+i}')
        if c: st(f'{mm} {vr(OB[q],16)}, {ar(vop[c-1],4)}, {vr(b+8*(c-1),4)}, {"0" if c == 1 else vr(OB[q],16)}')
        for i in range(4): st(f'v_cvt_pk_bf16_f32 v{b+8*c+i}, v{b+8*c+2*i}, v{b+8*c+2*i+1}')
    return st.l, Ins(f'{mm} {vr(OB[q],16)}, {ar(vop[2],4)}, {vr(b+16,4)}, {vr(OB[q],16)}')
l0, m0_ = softB(0); l1, m1_ = softB(1)
lb = l0[:5] + qkB[6] + l0[5:10] + qkB[7] + l0[10:] + l1[:2] + [m0_] + l1[2:]
def o_load(br, s_, rho):
    b = OF[br][s_] + 4 * rho
    return L(f'buffer_load_dwordx4 {vr(b,4)}, v{V4+rho}, {sWS}, s{SX0+5*br+s_} offen sc1')
order = (1, 2, 3, 0)
ogrp = [[(0, s_, rho) for rho in range(4)] for s_ in range(5)] + [[(1, s_, rho) for s_ in range(5)] for rho in order]
ol = [x for g in ogrp for e in g for x in o_load(*e)]
e0, _ = epi2(1, 0, OB[0]); e1, tokOB = epi2(1, 1, OB[1], True)
lb += e0[:2] + [m1_] + e0[2:] + e1
NO0 = opt('no0', 12); NOE = opt('noe', 0); OE = opt('oe', 1)
if NOE:
    k_ = [i for i, x in enumerate(lb) if x.kind == 'mfma'][-OE]
    lb[k_ + 1:k_ + 1] = ol[:NOE]
BST = opt('bst', 1)
bst = []
if BST:
    bst = [x for x in lb if x.kind == 'vm' and 'store' in x.mn]
    lb = [x for x in lb if x not in bst]
    if BST > 1:
        lb += L(f'v_mov_b32 v6, {v_q4}\nv_mov_b32 v7, {v_qe}')
        bst = [Ins(x.text.replace(v_q4 + ',', 'v6,').replace(v_qe + ',', 'v7,')) for x in bst]
S.l += lb
stamp('epiB')
S.l += ol[NOE:NO0]
if BST == 1: S.l += bst
S.l += adr2.l
NWO4 = max(NWOB, opt('nwo4', 44))
for g in wo_loads(NWOB, NWO4): S.l += g
st2('oiss')

def o_check(i):
    regs = [OF[br][s_] + 4 * rho + j for br, s_, rho in ogrp[i] for j in (0, 2)]
    def tree():
        st = Stream()
        for k in range(0, len(regs), 2): st(f'v_bitop3_b32 v1, {"v1" if k else "1"}, v{regs[k]}, v{regs[k+1]} bitop3:0x80')
        st('v_cmp_eq_u32 vcc, 0, v1')
        return st.l
    l = lab('again'); b = lab('fresh')
    tail('@reset')
    tail(f'{l}:\ns_mov_b32 {s_cnt}, 0\n{l}_a:')
    for e in ogrp[i]: tail.l += o_load(*e)
    tail(f's_add_u32 {s_cnt}, {s_cnt}, 1')
    if STAMPS: tail(f'v_writelane_b32 v0, {s_cnt}, {60 + (i >= 5)}')
    tail('s_waitcnt vmcnt(0)')
    tail.l += tree()
    tail(f's_cbranch_vccz {b}\ns_cmp_lt_u32 {s_cnt}, 0x40000\ns_cbranch_scc1 {l}_a\ns_branch {b}')
    t = tree()
    return t[:-1] + [t[-1:] + L(f's_cbranch_vccnz {l}\n{b}:')]
def mf3(br, s_, rho, ct):
    acc = vr(AC3 + 20 * rho + 4 * ct, 4)
    return [Ins(f'v_mfma_f32_16x16x32_bf16 {acc}, {ar(100*br+20*s_+4*ct,4)}, {vr(OF[br][s_]+4*rho,4)}, {"0" if br == 0 and s_ == 0 else acc}')]
sl = [mf3(*e, ct) for g in ogrp for e in g for ct in range(5)]
PB0 = opt('pb0', 40); PB1 = opt('pb1', 55)
if NO0 < 20: weave(sl, ol[NO0:20], 0, PB0)
if BST > 1: weave(sl, bst, BST, BST + 8)
if NWO4 < 50:
    S(f'v_mov_b32 v15, {v_l16}')
    weave(sl, wo_loads(NWO4, 50, 'v15'), PB0, PB1)
weave(sl, ol[20:], PB1, opt('no1', 140))
for it in o_check(0): S.l += it if isinstance(it, list) else [it]
stamp('poll4')
gstart = [20 * i for i in range(5)] + [100 + 25 * i for i in range(4)]
for i in range(1, 9): weave(sl, o_check(i), gstart[i] - opt('chk', 6), gstart[i])
for k, g in enumerate(sl):
    for it in g[1:]:
        if it.kind == 'vm': assert not any(it.defs & x.uses for j in range(k + 1) for x in sl[j] if x.kind != 'vm'), it.text
for i, rho in enumerate((1, 2, 3)):
    wr = [Ins(f'ds_write_b128 v{VRW+rho-1}, {vr(AC3+20*rho+4*ct,4)} offset:{1024*ct}') for ct in range(5)]
    lo = 125 + 25 * i + 3
    weave(sl, wr, lo, lo + (15 if i < 2 else 5))
sl[189] += L('s_waitcnt lgkmcnt(0)\ns_barrier')
rd = [Ins(f'ds_read_b128 {vr(RED+20*k+4*ct,4)}, {v_rr} offset:{5120*k+1024*ct}') for ct in range(5) for k in range(3)]
weave(sl, rd, 190, 200)
for k, g in enumerate(sl):
    S.l += mem_first(g)
    if k == 99: stamp('mf3A')
    elif k in (0, 19, 39, 59, 79, 124, 149, 174, 188, 189): st2('m%d' % k)
stamp('mf3')
for i in range(0, 20, 2):
    S(f'v_pk_add_f32 {vr(RED+i,2)}, {vr(RED+i,2)}, {vr(RED+20+i,2)}')
    S(f'v_pk_add_f32 {vr(AC3+i,2)}, {vr(AC3+i,2)}, {vr(RED+40+i,2)}')
for i in range(0, 20, 2):
    S(f'v_pk_add_f32 {vr(AC3+i,2)}, {vr(AC3+i,2)}, {vr(RED+i,2)}')
for i in range(10):
    S(f'v_cvt_pk_bf16_f32 v{AC3+i}, v{AC3+2*i}, v{AC3+2*i+1}')
S(f'''
buffer_store_dwordx4 {vr(AC3,4)}, {v_out}, {sOUT}, 0 offen
buffer_store_dwordx4 {vr(AC3+4,4)}, {v_out}, {sOUT}, 0 offen offset:16
buffer_store_dwordx2 {vr(AC3+8,2)}, {v_out}, {sOUT}, 0 offen offset:32
''')
if AMP:
    S('s_waitcnt vmcnt(0)')
    stamp('end')
    S(f'''
    s_cmp_lg_u32 s2, {opt('ampwg', 9)}
    s_cbranch_scc1 L_end
    s_memrealtime s[84:85]
    s_waitcnt lgkmcnt(0)
    s_sub_u32 s80, s82, s80
    s_lshl_b32 s80, s80, 2
    s_min_u32 s80, s80, 100000
    {('s_mov_b32 s80, %d' % opt('ampc', 0)) if opt('ampc', 0) else ''}
    L_amp:
    s_memrealtime s[86:87]
    s_waitcnt lgkmcnt(0)
    s_sub_u32 s86, s86, s84
    s_cmp_lt_u32 s86, s80
    s_cbranch_scc1 L_amp
    ''')
if STAMPS:
    stamp('red')
    S('s_waitcnt vmcnt(0)')
    stamp('end')
    S(f'''
    s_waitcnt lgkmcnt(0)
    s_cmp_lg_u32 {s_w}, 0
    s_cbranch_scc1 L_end
    v_writelane_b32 v0, s{ST0+2*((nstamp[0]-1)&1)}, {nstamp[0]-1}
    s_lshl_b32 {s_t0}, s2, 8
    s_add_u32 {s_t0}, {s_t0}, {STAMP_OFF}
    v_mbcnt_lo_u32_b32 v3, -1, 0
    v_mbcnt_hi_u32_b32 v3, -1, v3
    v_lshlrev_b32 v3, 2, v3
    buffer_store_dword v0, v3, {sWS}, {s_t0} offen
    ''')
    assert nstamp[0] <= 56, nstamp[0]
    open(OUT + '.stamps', 'w').write(' '.join(n or str(i) for i, n in enumerate(stamp_names)))
S('s_endpgm')

T = Stream()
nstamp[0] = 1
T('@reset')
T(f'''
L_spare:
s_waitcnt lgkmcnt(0)
s_load_dwordx2 s[56:57], s[0:1], 16
s_load_dwordx2 s[58:59], s[0:1], 40
s_load_dwordx2 s[8:9], s[0:1], 48
s_mov_b32 s30, {640*1280}
s_mov_b32 s10, 1280
''')
common_consts(T)
T(f'''
v_mov_b32 v64, 0
v_mov_b32 v65, 0
v_mov_b32 v66, 0
v_mov_b32 v67, 0
v_lshlrev_b32 {v_t1}, 4, v0
s_lshl_b32 {s_t2}, {s_rb}, 12
s_add_u32 {s_t2}, {s_t2}, {FLG}
''')
tokz = T.vm(f'buffer_store_dwordx4 v[64:67], {v_t1}, {sWS}, {s_t2} offen sc1')
def handshake():
    T.wait(tokz)
    T(f'''
    s_barrier
    s_lshl_b32 {s_t1}, {s_rb}, 2
    buffer_store_dword {v_one}, {v_flag}, {sDBG}, {s_t1} offen sc1
    ''')
STB = opt('stb', 0)
if STB:
    T(f'''
    s_mov_b32 s14, {640*3840}
    s_mov_b32 s15, 0x20000
    s_lshl_b32 {s_t0}, {s_rb}, 2
    s_add_u32 {s_t0}, {s_t0}, {s_w}
    s_mul_i32 {s_t0}, {s_t0}, {300*128}
    v_min_u32 {v_t1}, 59, {v_lane}
    v_lshlrev_b32 {v_t1}, 7, {v_t1}
    ''')
    for i in range(5):
        T(f'buffer_load_dword v{68+i}, {v_t1}, {sWB}, {s_t0} offen\ns_add_u32 {s_t0}, {s_t0}, {60*128}')
        if i == 2: handshake()
T(f'''
s_and_b32 {s_e0}, {s_rb}, 1
s_lshl_b32 {s_e0}, {s_e0}, 2
s_add_u32 {s_e0}, {s_e0}, {s_w}
s_bfe_u32 {s_e1}, {s_rb}, 0x20001
s_mul_i32 {s_t2}, {s_e0}, 160
s_mul_i32 {s_t1}, {s_e1}, {160*1280}
s_add_u32 {s_t2}, {s_t2}, {s_t1}
s_mov_b32 {s_t0}, {(1<<32)//10+1}
''')
for i in range(5):
    T(f'''
    v_add_u32 {v_t1}, {64*i}, {v_lane}
    v_mul_hi_u32 {v_t2}, {v_t1}, {s_t0}
    v_mul_u32_u24 {v_t3}, 10, {v_t2}
    v_sub_u32 {v_t1}, {v_t1}, {v_t3}
    v_mul_u32_u24 {v_t2}, 1280, {v_t2}
    v_lshl_add_u32 {v_t2}, {v_t1}, 4, {v_t2}
    v_add_u32 v{2+i}, {s_t2}, {v_t2}
    ''')
T(f'''
s_mul_i32 {s_mW}, {s_w}, 25600
s_waitcnt lgkmcnt(0)
s_cmp_ge_u32 {s_rb}, 8
s_cselect_b32 s28, s58, s56
s_cselect_b32 s29, s59, s57
''')
wtok = {}
def wo_dma(b):
    T(f's_mov_b32 {s_t3}, {b*32*1280}')
    for i in range(5):
        T(f's_add_u32 m0, {s_mW}, {1024*(5*b+i)}')
        wtok[5 * b + i] = T.vm(f'buffer_load_dwordx4 v{2+i}, {sTMP}, {s_t3} offen lds')
wo_dma(0); wo_dma(1)
T(f'''
v_lshrrev_b32 {v_t1}, 4, {v_lane}
v_bfe_u32 {v_t2}, {v_lane}, 2, 2
v_and_b32 {v_t3}, 3, {v_lane}
v_mul_u32_u24 {v_t3}, 40, {v_t3}
v_add_u32 {v_t3}, {s_mW}, {v_t3}
v_lshl_add_u32 {v_t2}, {v_t1}, 3, {v_t2}
v_mul_u32_u24 {v_t2}, 160, {v_t2}
v_add_u32 v7, {v_t2}, {v_t3}
s_lshr_b32 {s_t0}, {s_rb}, 3
s_lshl_b32 {s_t0}, {s_t0}, 3
s_add_u32 {s_t0}, {s_t0}, {s_e0}
s_lshl_b32 {s_t0}, {s_t0}, 2
s_add_u32 {s_t0}, {s_t0}, {s_e1}
s_mul_i32 {s_stb}, {s_t0}, 25600
v_and_b32 v9, 15, {v_lane}
v_lshlrev_b32 v9, 4, v9
v_mul_u32_u24 v10, 1280, {v_t1}
v_add_u32 v10, v10, v9
v_cmp_eq_u32 vcc, 0, v9
v_lshlrev_b32 {v_t1}, 2, {v_t1}
s_lshl_b32 {s_rot}, {s_rb}, 2
s_add_u32 {s_rot}, {s_rot}, {s_w}
v_cndmask_b32 v11, {v_big}, {v_t1}, vcc
''')
stamp('', T)
setup2(T)
wo_dma(2)
stamp('', T)
for s_ in range(5):
    T.wait(wtok[5 * s_ + 4])
    if s_ == 0 and not STB: handshake()
    for ct in range(5):
        f = 5 * s_ + ct
        for u in range(2):
            T(f'ds_read_b64_tr_b16 {vr(140+4*f+2*u,2)}, v7 offset:{(32*s_+4*u)*160+8*ct}')
    if s_ + 3 < 5: wo_dma(s_ + 3)
    if s_ == 2: poll_issue(T, v_pres, v_zero, sDBG, '0')
    for ct in range(5):
        f = 5 * s_ + ct
        if f % 4 == 0: T(f's_add_u32 {s_t1}, {s_stb}, {WOF + f*1024}')
        tokw = T.vm(f'buffer_store_dwordx4 {vr(140+4*f,4)}, {v_l16}, {sWS}, {s_t1} offen offset:{(f%4)*1024} sc1')
    if s_ == 2: tokw2 = tokw
    if FINE: stamp('', T)
poll_check(T, v_pres, v_zero, sDBG, '0')
stamp('', T)
GW = 224; GA = 48
T(f's_mul_i32 {s_t1}, {s_rot}, {32*1280}')
for j in range(5): T(f'buffer_load_dwordx4 {vr(GW+4*j,4)}, v9, {sWA}, 0 offen offset:{256*j}')
for i in range(8):
    for j in range(5): T(f'buffer_load_dwordx4 {vr(64+20*i+4*j,4)}, v10, {sX}, {s_t1} offen offset:{256*j}')
    T(f's_add_u32 {s_t1}, {s_t1}, {4*1280}')
    if i == 1:
        T.wait(tokw)
        T('s_barrier')
        set_flag(T, v_flag, s_f1, 0)
        stamp('', T)
poll_issue(T, v_pres, v_p1, sWS, s_F1A)
T(f's_lshl_b32 {s_rot}, {s_rot}, 7\ns_add_u32 {s_rot}, {s_rot}, {G_OFF}')
for i in range(8):
    T(f'v_mov_b32 v{GA+i}, 0')
    for k in range(20): T(f'v_dot2c_f32_bf16 v{GA+i}, v{64+20*i+k}, v{GW+k}')
for sh in (8, 4, 2, 1):
    for i in range(8): T(f'v_add_f32_dpp v{GA+i}, v{GA+i}, v{GA+i} row_ror:{sh} row_mask:0xf bank_mask:0xf')
for i in range(8): T(f'v_mul_f32 v{GA+i}, {f32(-math.log2(math.e))}, v{GA+i}')
for i in range(8): T(f'v_exp_f32 v{GA+i}, v{GA+i}')
for i in range(8): T(f'v_add_f32 v{GA+i}, 1.0, v{GA+i}')
for i in range(8): T(f'v_rcp_f32 v{GA+i}, v{GA+i}')
T.l += setup_late()
for i in range(8): tokg = T.vm(f'buffer_store_dword v{GA+i}, v11, {sWS}, {s_rot} offen offset:{16*i} sc1')
stamp('', T)
T.l += mask_far() + zero_pads()
poll_check(T, v_pres, v_p1, sWS, s_F1A)
stamp('', T)
kv, _ = kvq_loads()
for g in kv: T.l += g
for g in wo_loads(0, NWO1): T.l += g
if WT > KV0:
    a_, b_ = wo_touch(); T.l += a_ + b_
T('s_waitcnt vmcnt(0) lgkmcnt(0)\ns_barrier')
T.l += att_pre()
T(qka(0)); T(qkb(0))
T.l += mask_rest()[:8]
T('s_nop 7')
assert nstamp[0] <= nst_join
while nstamp[0] < nst_join: stamp('', T)
T('s_waitcnt lgkmcnt(0)')
T('s_branch L_join')

def undef_check(l, name):
    d = {'v0', 's0', 's1', 's2', 'exec'}; bad = []
    for i in l:
        u = i.uses - d if i.kind not in ('pseudo', 'label', 'none') else set()
        if u: bad.append((sorted(u), i.text))
        d |= i.defs | u
    if bad: print('USE BEFORE DEF in', name, bad)
ib = next(k for k, i in enumerate(S.l) if 'L_spare' in i.text); ij = next(k for k, i in enumerate(S.l) if i.text == 'L_join:')
undef_check(S.l, 'main'); undef_check(S.l[:ib] + T.l + S.l[ij:], 'spare')
S.extend(T); S.extend(tail)
S('L_end:\ns_endpgm')
S.extend(FBK)

XP = opt('xp', 0)
if XP:
    def drop(i):
        if i.kind != 'vm': return False
        t = i.text
        if XP & 1 and s_e2 in i.uses and 'load' in t: return True
        if XP & 2 and 'load' in t and i.uses & {'v%d' % r for r in range(2, 10)} and 's16' in i.uses and 'lds' not in t and i.uses & {'s%d' % r for r in list(range(60, 66)) + list(range(70, 76))} and 'v8' not in i.uses - {None} | set() or False: return True
        if XP & 4 and 'load' in t and 's16' in i.uses and (v_q4 in i.uses or v_qe in i.uses or v_qo in i.uses or v_kb1 in i.uses) and i.uses & {'s60', 's61', 's62', 's63'}: return True
        if XP & 8 and 'store' in t and v_st in i.uses and 's16' in i.uses and i.tok not in (tokA, tokB): return True
        if XP & 16 and 'lds' in t and s_e1 in i.uses and i.tok is not tokKV: return True
        return False
    S.l = [i for i in S.l if not drop(i)]
stats = []
body = finalize(S, stats)
hdr = open('cdna_kernels/%s.s.ref' % NAME).read().split('; Override')[0]
K = NAME + '_kernel'
txt = hdr + f'''; Generated by a hand-written generator script: one persistent workgroup per CU, phases chained by flags in d_ws.
; @launch grid=(256,1,1) block=(256,1,1) lds={LDS_BYTES}
.amdgcn_target "amdgcn-amd-amdhsa--gfx950"
.text
.globl {K}
.p2align 8
.type {K},@function
{K}:
''' + '\n'.join(body) + f'''
.section .rodata,"a"
.p2align 6
.amdhsa_kernel {K}
  .amdhsa_next_free_vgpr 512
  .amdhsa_next_free_sgpr 102
  .amdhsa_accum_offset 256
  .amdhsa_group_segment_fixed_size 0
  .amdhsa_kernarg_size 80
  .amdhsa_user_sgpr_count 2
  .amdhsa_user_sgpr_kernarg_segment_ptr 1
  .amdhsa_system_sgpr_workgroup_id_x 1
  .amdhsa_float_denorm_mode_32 3
.end_amdhsa_kernel
'''
open(OUT, 'w').write(txt)
print('instructions:', len(body), ' nops:', len(stats), sum(s[0] for s in stats), ' overflow slots', over, 'WS_SIZE', WS_SIZE)
if '--nops' in ARGS:
    for s in stats: print(s)
```

```python
import sys, math, struct
from fw import *

NAME = "gated_mix__sliding_block__sliding_local_dilated__prompt"
ARGS = sys.argv[1:]
STAMPS = '--stamps' in ARGS
FINE = '--fine' in ARGS
FINE2 = '--fine2' in ARGS
def opt(name, default):
    for a in ARGS:
        if a.startswith('--' + name + '='): return int(a.split('=')[1])
    return default
OUT = [a for a in ARGS if not a.startswith('--')]
OUT = OUT[0] if OUT else 'k.s'

GRP = 2048 * 16
QKV = [0, 240 * GRP]
WOF = 480 * GRP
G_OFF = WOF + 64 * 25600
FLG = G_OFF + 8192
F1 = [FLG, FLG + 32768]
WS_SIZE = FLG + 65536
STAMP_OFF = WS_SIZE
BIG = 0x40000000
L_X = 65536
GS = 8192 + 64
L_KA = L_X + 16384; L_VA = L_KA + 3 * GS
L_VB = 131072 + 512; VBW = 4608
L_ONE = L_VB + 4 * VBW + ((L_VA + 3 * GS) % 256)
L_TAB = L_VB + 4 * VBW + 8192 + 256
LDS_BYTES = 160 * 1024
assert L_TAB + 1024 <= LDS_BYTES and L_VA + 3 * GS <= L_VB

def f32(x): return '0x%08x' % struct.unpack('<I', struct.pack('<f', x))[0]
QSCALE = (20 ** -0.5) * math.log2(math.e)
NEGINF = '0xff800000'

sX, sWA, sWB, sWS, sOUT, sDBG, sTMP = 's[4:7]', 's[8:11]', 's[12:15]', 's[16:19]', 's[20:23]', 's[24:27]', 's[28:31]'
s_xcd, s_t, s_rb, s_cb, s_w = 's32', 's33', 's34', 's35', 's36'
s_t0, s_t1, s_t2, s_t3 = 's37', 's38', 's39', 's40'
s_stb, s_scale, s_inv, s_mW, s_mX = 's41', 's42', 's43', 's44', 's45'
s_hd, s_r2, s_so, s_q0 = 's46', 's47', 's48', 's49'
s_cnt, s_f1, s_tag, s_rnd, s_k1, s_wob = 's50', 's51', 's52', 's53', 's54', 's55'
SW0, SX0 = 60, 70
ST0 = 80
s_bF, s_bS, s_dF, s_dS, s_mK, s_mV, s_gb, s_rot = 's84', 's85', 's86', 's87', 's88', 's89', 's90', 's91'
s_e0, s_e1, s_e2, s_e3 = 's92', 's93', 's94', 's95'
s_F1A, s_F1B, s_F2, s_q0z, s_R, s_C = 's96', 's97', 's98', 's99', 's100', 's101'
ROWMAP = opt('rowmap', 0); QRND = opt('qrnd', 0)
v_lane = 'v1'
VWD, VXD, VWR, VXR = 2, 6, 10, 12
v_dma, v_gad, v_kb0, v_k1 = 'v6', 'v7', 'v8', 'v9'
v_st, v_flag, v_one, v_pres, v_l16, v_big = 'v16', 'v17', 'v18', 'v19', 'v20', 'v21'
v_t1, v_t2, v_t3, v_t4, v_tmp, v_zero = 'v22', 'v23', 'v24', 'v25', 'v26', 'v27'
(v_p1, v_p2, v_p3, v_q4, v_qe, v_qo, v_k0, v_v, v_vb, v_vh, v_kb1, v_halo, v_mA, v_mB0, v_flagw, v_o4, v_o2, v_h, v_r, v_tabc) = ['v%d' % i for i in range(28, 48)]
WRING = 48
ACC = [64, 128]
XV = 192
E0, P0 = 48, 56
SB = [64, 192]; M_FAR, M_DIAG = 80, 208; QA0, QA1 = 96, 104; OA = [224, 240]
QB0, QB1, KB0 = 128, 136, 144
v_g = ['v46', 'v47']
MB_DIAG, MB_PREV, MB_PREV0 = 160, 168, 176
SP = [64, 192]; SD = [80, 208]; OB = [96, 112]
V4, V2, VRW, v_rr, v_out, v_p4 = 2, 6, 10, 'v13', 'v14', 'v15'
AC3 = 16; OF = [[128, 144, 160, 176, 224], [96, 112, 192, 208, 240]]; RED = 128
AK0, AK1, AV, AKB1 = 200, 208, 216, 232
VB = 200

def vr(b, n): return 'v[%d:%d]' % (b, b + n - 1)
def ar(b, n): return 'a[%d:%d]' % (b, b + n - 1)
mm = 'v_mfma_f32_32x32x16_bf16'

S = Stream()
tail = Stream()
nstamp = [0]; stamp_names = []
AMP = [a.split('=')[1].split(',') for a in ARGS if a.startswith('--amp=')]
AMP = AMP[0] if AMP else None
def stamp(name='', st=None):
    if AMP and name in AMP and st is None: S('s_memrealtime s[%d:%d]' % (ST0 + 2 * AMP.index(name), ST0 + 2 * AMP.index(name) + 1))
    if STAMPS:
        st = st or S
        k = nstamp[0]
        if k == 1:
            for i in range(56, 64): st('v_writelane_b32 v0, 0, %d' % i)
        if k > 0: st('v_writelane_b32 v0, s%d, %d' % (ST0 + 2 * ((k - 1) & 1), k - 1))
        st('s_memrealtime s[%d:%d]' % (ST0 + 2 * (k & 1), ST0 + 2 * (k & 1) + 1))
    stamp_names.append(name)
    nstamp[0] += 1
def st2(n):
    if FINE2: stamp(n)
nlab = [0]
def lab(p):
    nlab[0] += 1
    return 'L_%s_%d' % (p, nlab[0])

PIDX = {v_zero: 0, v_p1: 1, v_p2: 2, v_p3: 3, v_p4: 4}
def poll_issue(st, res, adr, srd, soff, off=0):
    st('buffer_load_dword %s, %s, %s, %s offen offset:%d sc1' % (res, adr, srd, soff, off))
def poll_check(st, res, adr, srd, soff, off=0):
    l = lab('poll'); b = lab('back')
    st('v_cmp_ne_u32 vcc, 1, %s' % res)
    st('s_cbranch_vccnz %s' % l)
    st(b + ':')
    tail('@reset')
    tail(f'''
    {l}:
    s_mov_b32 {s_cnt}, 0
    {l}_a:
    buffer_load_dword {res}, {adr}, {srd}, {soff} offen offset:{off} sc1
    s_add_u32 {s_cnt}, {s_cnt}, 1
    {('v_writelane_b32 v0, %s, %d' % (s_cnt, 56 + PIDX[adr] + off // 4)) if STAMPS else ''}
    s_waitcnt vmcnt(0)
    v_cmp_ne_u32 vcc, 1, {res}
    s_cbranch_vccz {b}
    s_cmp_lt_u32 {s_cnt}, 0x40000
    s_cbranch_scc1 {l}_a
    s_branch {b}
    ''')
def poll(st, res, adr, srd, soff):
    poll_issue(st, res, adr, srd, soff); poll_check(st, res, adr, srd, soff)
def set_flag(st, vf, base, off):
    st(f'buffer_store_dword {v_one}, {vf}, {sWS}, {base} offen offset:{off} sc1')
def mk(fn, *a):
    st = Stream(); fn(st, *a); return st.l
def L(txt):
    st = Stream(); st(txt); return st.l

def setup2(st):
    st(f'''
    s_mov_b32 s14, {640*3840}
    s_mov_b32 s15, 0x20000
    s_mov_b32 s22, {2048*1280}
    s_mov_b32 s23, 0x20000
    s_mov_b32 {s_F1A}, {F1[0]}
    s_mov_b32 {s_F1B}, {F1[1]}
    s_and_b32 {s_C}, {s_t}, 7
    s_lshr_b32 {s_t2}, {s_t}, 3
    s_lshl_b32 {s_t0}, {s_xcd}, 2
    s_add_u32 {s_R}, {s_t0}, {s_t2}
    s_mov_b32 {s_r2}, {s_xcd if ROWMAP else s_C}
    s_mov_b32 {s_hd}, {s_t if ROWMAP else s_R}
    ''')
    if opt('map3', 1) == 1:
        st(f'''
        s_lshr_b32 {s_R}, {s_xcd}, 1
        s_lshl_b32 {s_R}, {s_R}, 3
        s_lshr_b32 {s_t0}, {s_t}, 2
        s_add_u32 {s_R}, {s_R}, {s_t0}
        s_and_b32 {s_C}, {s_xcd}, 1
        s_lshl_b32 {s_C}, {s_C}, 2
        s_and_b32 {s_t0}, {s_t}, 3
        s_add_u32 {s_C}, {s_C}, {s_t0}
        ''')
    st(f'''
    s_lshl_b32 {s_q0}, {s_r2}, 8
    s_lshl_b32 {s_t0}, {s_w}, 6
    s_add_u32 {s_q0}, {s_q0}, {s_t0}
    s_mul_i32 {s_e0}, {s_hd}, 5
    s_lshr_b32 {s_e0}, {s_e0}, 1
    s_and_b32 {s_t3}, {s_hd}, 1
    s_add_u32 {s_e1}, {s_e0}, {s_t3}
    s_lshl_b32 {s_so}, {s_t3}, 3
    s_lshl_b32 {s_t3}, {s_t3}, 1
    s_add_u32 {s_e2}, {s_e0}, 2
    s_sub_u32 {s_e2}, {s_e2}, {s_t3}
    s_lshl_b32 {s_e1}, {s_e1}, 15
    s_lshl_b32 {s_e2}, {s_e2}, 15
    s_lshl_b32 {s_t0}, {s_q0}, 4
    s_add_u32 {s_bF}, {s_e1}, {s_t0}
    s_add_u32 {s_bS}, {s_e2}, {s_t0}
    s_lshl_b32 {s_e3}, {s_r2}, 1
    s_add_u32 {s_e3}, {s_e3}, {s_w}
    s_lshl_b32 {s_t0}, {s_e3}, 11
    s_add_u32 {s_dF}, {s_e1}, {s_t0}
    s_add_u32 {s_dS}, {s_e2}, {s_t0}
    s_lshl_b32 {s_mK}, {s_w}, 11
    s_mul_i32 {s_mV}, {s_w}, {VBW}
    s_add_u32 {s_mV}, {s_mV}, {L_VB}
    s_lshl_b32 {s_gb}, {s_q0}, 2
    s_add_u32 {s_gb}, {s_gb}, {G_OFF}
    s_lshl_b32 {s_f1}, {s_rb}, 11
    s_lshl_b32 {s_t0}, {s_cb}, 7
    s_add_u32 {s_f1}, {s_f1}, {s_t0}
    s_add_u32 {s_f1}, {s_f1}, {F1[0]}
    s_lshl_b32 {s_wob}, {s_C}, 2
    s_add_u32 {s_wob}, {s_wob}, {s_w}
    s_mul_i32 {s_wob}, {s_wob}, 25600
    v_and_b32 {v_zero}, 60, {v_lane}
    v_lshrrev_b32 {v_h}, 5, {v_lane}
    v_and_b32 {v_r}, 31, {v_lane}
    v_bfe_u32 {v_t1}, {v_lane}, 2, 1
    v_lshl_add_u32 {v_t1}, {v_t1}, 1, {s_e0}
    v_lshrrev_b32 {v_t1}, 4, {v_t1}
    v_and_b32 {v_t2}, 3, {v_lane}
    v_min_u32 {v_t3}, 2, {v_t2}
    v_mad_u32_u24 {v_t4}, {v_t3}, 5, {v_t1}
    v_mad_u32_u24 {v_tmp}, {v_t2}, 5, {v_t1}
    v_min_u32 {v_tmp}, 15, {v_tmp}
    s_sub_u32 {s_t1}, {s_e3}, 2
    s_max_i32 {s_t1}, {s_t1}, 0
    s_lshl_b32 {s_t1}, {s_t1}, 11
    s_andn2_b32 {s_t2}, {s_q0}, 127
    s_lshl_b32 {s_t2}, {s_t2}, 4
    v_cmp_eq_u32 vcc, 0, {v_t2}
    v_mov_b32 {v_t1}, {s_t1}
    v_mov_b32 {v_t3}, {s_t2}
    v_cndmask_b32 {v_t1}, {v_t1}, {v_t3}, vcc
    v_lshl_add_u32 {v_p1}, {v_t4}, 7, {v_t1}
    s_sub_u32 {s_t1}, {s_q0}, 32
    s_max_i32 {s_t1}, {s_t1}, 0
    s_andn2_b32 {s_t1}, {s_t1}, 127
    s_lshl_b32 {s_t1}, {s_t1}, 4
    v_and_b32 {v_t2}, 8, {v_lane}
    v_cmp_eq_u32 vcc, 0, {v_t2}
    v_mov_b32 {v_t1}, {s_t1}
    v_and_b32 {v_t2}, 1, {v_lane}
    v_cndmask_b32 {v_t1}, {v_t1}, {v_t3}, vcc
    v_lshl_add_u32 {v_p3}, {v_tmp}, 7, {v_t1}
    v_cmp_gt_u32 s[38:39], 32, {v_lane}
    s_lshr_b32 {s_t0}, {s_R}, 1
    s_lshl_b32 {s_t0}, {s_t0}, 4
    s_add_u32 {s_t0}, {s_t0}, {s_w}
    v_add_lshl_u32 {v_t1}, {v_t2}, {s_t0}, 7
    v_cndmask_b32 {v_p3}, {v_t1}, {v_p3}, s[38:39]
    s_lshl_b32 {s_t0}, {s_w}, 1
    s_lshr_b32 {s_t1}, {s_C}, 2
    s_add_u32 {s_t0}, {s_t0}, {s_t1}
    s_lshl_b32 {s_t0}, {s_t0}, 11
    s_add_u32 {s_t0}, {s_t0}, {15*128}
    v_lshl_add_u32 {v_p2}, {v_t2}, 14, {s_t0}
    v_cndmask_b32 {v_p1}, {v_p2}, {v_p1}, vcc
    ''')
    st(f'''
    s_cmp_ge_u32 {s_e3}, 2
    s_cselect_b32 {s_inv}, 0, {BIG}
    s_cselect_b32 {s_t2}, 0x3f803f80, 0
    v_mov_b32 v128, {s_t2}
    v_mov_b32 v129, {s_t2}
    v_mov_b32 v130, {s_t2}
    v_mov_b32 v131, {s_t2}
    s_add_u32 {s_t1}, {s_mK}, {L_ONE}
    v_add_u32 {v_t1}, {s_t1}, {v_l16}
    ds_write_b128 {v_t1}, v[128:131]
    ds_write_b128 {v_t1}, v[128:131] offset:1024
    ''')
    st(f'''
    v_lshlrev_b32 {v_q4}, 15, {v_h}
    v_lshl_add_u32 {v_q4}, {v_r}, 4, {v_q4}
    v_cmp_eq_u32 vcc, 0, {v_h}
    v_lshl_add_u32 {v_t1}, {v_r}, 4, {s_so}
    s_cmp_eq_u32 {s_q0}, 0
    s_cselect_b32 {s_q0z}, {BIG}, 0
    v_cndmask_b32 {v_qe}, {v_big}, {v_t1}, vcc
    v_cndmask_b32 {v_qo}, {v_t1}, {v_big}, vcc
    v_mov_b32 {v_t2}, {s_q0z}
    v_cndmask_b32 {v_t2}, 0, {v_t2}, vcc
    v_add3_u32 {v_kb1}, {v_t2}, {v_l16}, {s_so}
    v_and_b32 {v_t2}, 15, {v_lane}
    v_mov_b32 {v_o4}, 0x10000
    v_lshrrev_b32 {v_t1}, 4, {v_lane}
    v_lshl_add_u32 {v_t3}, {v_t1}, 15, {s_bF}
    v_cmp_eq_u32 vcc, 2, {v_t1}
    v_mov_b32 {v_t4}, {s_bS}
    s_add_u32 {s_t3}, {s_q0z}, {QKV[1] + 160*GRP - 256}
    v_cndmask_b32 {v_t3}, {v_t3}, {v_t4}, vcc
    v_cmp_eq_u32 vcc, 3, {v_t1}
    v_lshl_add_u32 {v_t3}, {v_t2}, 4, {v_t3}
    v_add_u32 {v_t3}, {s_t3}, {v_t3}
    v_cndmask_b32 {v_halo}, {v_t3}, {v_big}, vcc
    ''')
    st(f'''
    s_lshl_b32 {s_t0}, {s_w}, 10
    v_mul_u32_u24 {v_t1}, {GS}, {v_h}
    v_lshl_add_u32 {v_t1}, {v_r}, 4, {v_t1}
    s_add_u32 {s_t1}, {s_t0}, {L_KA}
    v_add_u32 {v_k0}, {s_t1}, {v_t1}
    s_add_u32 {s_k1}, {s_t0}, {L_KA + 2*GS}
    s_add_u32 {s_k1}, {s_k1}, {s_so}
    v_bfe_u32 {v_t1}, {v_lane}, 2, 2
    v_lshl_add_u32 {v_t1}, {v_h}, 2, {v_t1}
    v_lshlrev_b32 {v_t1}, 4, {v_t1}
    v_and_b32 {v_pres}, 16, {v_lane}
    v_cmp_eq_u32 vcc, 0, {v_pres}
    v_and_b32 {v_t2}, 1, {v_lane}
    v_bfe_u32 {v_t3}, {v_lane}, 1, 1
    v_add_u32 {v_t4}, 2, {v_t3}
    v_lshlrev_b32 {v_t3}, 3, {v_t3}
    v_mov_b32 {v_tmp}, {s_so}
    v_cndmask_b32 {v_t2}, {v_t4}, {v_t2}, vcc
    v_cndmask_b32 {v_t3}, {v_tmp}, {v_t3}, vcc
    v_cmp_eq_u32 vcc, 3, {v_t2}
    v_add_u32 {v_t1}, {v_t1}, {v_t3}
    s_add_u32 {s_t1}, {s_t0}, {L_VA}
    v_mul_u32_u24 {v_t3}, {GS}, {v_t2}
    v_add3_u32 {v_v}, {v_t1}, {v_t3}, {s_t1}
    v_mul_u32_u24 {v_t3}, 1088, {v_t2}
    v_add3_u32 {v_vb}, {v_t1}, {v_t3}, {s_mV}
    s_add_u32 {s_t1}, {s_mV}, {3*1088}
    v_lshlrev_b32 {v_t3}, 8, {v_t2}
    v_add3_u32 {v_vh}, {v_t1}, {v_t3}, {s_t1}
    s_add_u32 {s_t1}, {s_t0}, {L_ONE}
    v_add_u32 {v_t3}, {s_t1}, {v_t1}
    v_add_u32 {v_t1}, {L_ONE + 4096}, {v_t1}
    v_cndmask_b32 {v_v}, {v_v}, {v_t3}, vcc
    v_cndmask_b32 {v_vb}, {v_vb}, {v_t1}, vcc
    v_cndmask_b32 {v_vh}, {v_vh}, {v_t1}, vcc
    ''')
    mk_ = [0, 0, 0, 0]
    for e in range(256):
        ok = (e - 32 <= 0) if e < 64 else (e - 96 > 0) if e < 128 else (0 <= 191 - e <= 14 and (191 - e) % 2 == 0)
        if ok: mk_[e >> 6] |= 1 << (e & 63)
    assert mk_[3] == 0 and mk_[1] & 0xffffffff == 0 and mk_[2] & 0xffffffff == 0
    st(f'''
    s_cmp_eq_u32 {s_w}, 0
    s_cselect_b32 s38, 0x{mk_[0] & 0xffffffff:x}, 0
    s_cselect_b32 s39, 0x{mk_[0] >> 32:x}, 0
    s_cmp_eq_u32 {s_w}, 1
    s_cselect_b32 s39, 0x{mk_[1] >> 32:x}, s39
    s_cmp_eq_u32 {s_w}, 2
    s_cselect_b32 s39, 0x{mk_[2] >> 32:x}, s39
    v_mov_b32 {v_tmp}, {NEGINF}
    s_lshl_b32 {s_t0}, {s_w}, 8
    s_add_u32 {s_t0}, {s_t0}, {L_TAB}
    v_cndmask_b32 {v_tmp}, {v_tmp}, 0, s[38:39]
    v_lshl_add_u32 {v_t1}, {v_lane}, 2, {s_t0}
    ds_write_b32 {v_t1}, {v_tmp}
    v_lshlrev_b32 {v_t1}, 2, {v_h}
    v_sub_u32 {v_t1}, {v_t1}, {v_r}
    v_lshlrev_b32 {v_t1}, 2, {v_t1}
    v_add_u32 {v_mA}, {L_TAB + 128}, {v_t1}
    s_cmp_eq_u32 {s_q0}, 0
    s_cselect_b64 vcc, -1, 0
    v_mov_b32 {v_t1}, {L_TAB + 4*64}
    v_cndmask_b32 {v_mB0}, {v_mA}, {v_t1}, vcc
    ''')
def setup_late():
    return L(f'''
    v_add_u32 {v_dma}, {s_inv}, {v_l16}
    v_lshlrev_b32 {v_gad}, 2, {v_r}
    v_add_u32 {v_kb0}, {s_q0z}, {v_q4}
    v_add_u32 {v_k1}, {s_k1}, {v_l16}
    ''')
def zero_pads():
    return L('\n'.join(f'v_accvgpr_write_b32 a{b}, 0' for b in (AK1 + 2, AK1 + 3, AK1 + 6, AK1 + 7, AKB1 + 2, AKB1 + 3, AKB1 + 6, AKB1 + 7))
             + f'\nv_mov_b32 v{QA1+8}, 0\nv_mov_b32 v{QA1+9}, 0')

def mask_reads(reg, adr, base, a0=0):
    l = []
    for a in range(a0, 4):
        for b in (0, 2):
            k = base + 8 * a + b
            l.append(Ins(f'ds_read2_b32 {vr(reg+4*a+b,2)}, {adr} offset0:{k} offset1:{k+1}'))
    return l
def mask_far(): return mask_reads(M_FAR, v_mA, 64)
def mask_rest(): return mask_reads(M_DIAG, v_mA, 0) + mask_reads(MB_DIAG, v_mA, 159) + mask_reads(MB_PREV, v_mA, 127, 2) + mask_reads(MB_PREV0, v_mB0, 127, 2)

def kvq_loads():
    g = []
    for ty in (1, 2):
        for gi in range(3):
            g.append(L(f's_add_u32 m0, {s_mK}, {(L_KA if ty == 1 else L_VA) + gi*GS}\n'
                       f's_add_u32 {s_e1}, {s_dS if gi == 2 else s_dF}, {QKV[0] + (80*ty + (gi if gi < 2 else 0))*GRP - 4096}'))
            g.append(L(f'buffer_load_dwordx4 {v_dma}, {sWS}, {s_e1} offen sc1 lds'))
            st = Stream()
            tok = st.vm(f'buffer_load_dwordx4 {v_dma}, {sWS}, {s_e1} offen offset:1024 sc1 lds')
            g.append(st.l)
    for x in (f'buffer_load_dwordx4 {vr(QA0,4)}, {v_q4}, {sWS}, {s_bF} offen sc1',
              f'buffer_load_dwordx2 {vr(QA1,2)}, {v_qe}, {sWS}, {s_bS} offen sc1',
              f'buffer_load_dwordx2 {vr(QA1+2,2)}, {v_qo}, {sWS}, {s_bS} offen sc1',
              f'buffer_load_dwordx4 {vr(QA0+4,4)}, {v_q4}, {sWS}, {s_bF} offen offset:512 sc1',
              f'buffer_load_dwordx2 {vr(QA1+4,2)}, {v_qe}, {sWS}, {s_bS} offen offset:512 sc1',
              f'buffer_load_dwordx2 {vr(QA1+6,2)}, {v_qo}, {sWS}, {s_bS} offen offset:512 sc1'):
        g.append([Ins(x)])
    return g, tok
def wo_loads(f0, f1, adr=v_l16):
    g = []
    for F in range(f0, f1):
        br, f = F // 25, F % 25
        if f % 4 == 0 or F == f0: g.append(L(f's_add_u32 {s_e2}, {s_wob}, {WOF + br*32*25600 + (f & ~3)*1024}'))
        g.append(L(f'buffer_load_dwordx4 {ar(4*F,4)}, {adr}, {sWS}, {s_e2} offen offset:{(f%4)*1024} sc1'))
    return g

steps = [(0, 0)] + [(j, q) for j in range(1, 9) for q in range(2)] + [(9, 1)]
def k0_read(j): return Ins(f'ds_read_b128 {ar(AK0+4*(j&1),4)}, {v_k0} offset:{512*j}')
def k1_read(j): return Ins(f'ds_read_b64 {ar(AK1+4*((j>>1)&1),2)}, {v_k1} offset:{512*j}')
def v_read(j, kk, u): return Ins(f'ds_read_b64_tr_b16 {ar(AV+8*(j&1)+4*kk+2*u,2)}, {v_v} offset:{512*j+256*kk+128*u}')
def qka(n):
    j, q = steps[n]
    c = vr(M_FAR, 16) if j == q else vr(M_DIAG, 16) if j == 8 + q else '0'
    return f'{mm} {vr(SB[n&1],16)}, {ar(AK0+4*(j&1),4)}, {vr(QA0+4*q,4)}, {c}'
def qkb(n):
    j, q = steps[n]
    return f'{mm} {vr(SB[n&1],16)}, {ar(AK1+4*((j>>1)&1),4)}, {vr(QA1+4*q+2*(j&1),4)}, {vr(SB[n&1],16)}'
def pv(n, kk):
    j, q = steps[n]
    c = '0' if (j == q and kk == 0) else vr(OA[q], 16)
    return f'{mm} {vr(OA[q],16)}, {ar(AV+8*(j&1)+4*kk,4)}, {vr(P0+4*kk,4)}, {c}'
def exps(n, g): return [f'v_exp_f32 v{E0+4*(g&1)+i}, v{SB[n&1]+4*g+i}' for i in range(4)]
def cvts(g): return [f'v_cvt_pk_bf16_f32 v{P0+2*g+i}, v{E0+4*(g&1)+2*i}, v{E0+4*(g&1)+2*i+1}' for i in range(2)]
def att_pre(): return [k0_read(0), k1_read(0), k0_read(1)] + [v_read(0, kk, u) for kk in range(2) for u in range(2)]

S(f'''
s_cmp_ge_u32 s2, 0x100
s_cbranch_scc1 L_end
s_load_dwordx2 s[4:5], s[0:1], 0
s_load_dwordx2 s[8:9], s[0:1], 8
s_load_dwordx2 s[12:13], s[0:1], 32
s_load_dwordx2 s[16:17], s[0:1], 72
s_load_dwordx2 s[20:21], s[0:1], 56
s_load_dwordx2 s[24:25], s[0:1], 64
''')
stamp('start')
if opt('cpf', 1):
    S(f'''
    s_getpc_b64 s[28:29]
    L_pc:
    s_mov_b32 s30, L_end-L_pc
    s_mov_b32 s31, 0x20000
    s_andn2_b32 {s_t0}, s2, 7
    v_min_u32 v132, 7, v0
    v_add_lshl_u32 v132, v132, {s_t0}, 7
    buffer_load_dword v133, v132, {sTMP}, 0 offen
    ''')
S(f'''
v_lshrrev_b32 {v_tmp}, 6, v0
v_and_b32 {v_lane}, 63, v0
v_readfirstlane_b32 {s_w}, {v_tmp}
s_and_b32 {s_xcd}, s2, 7
{('s_xor_b32 %s, %s, %d' % (s_xcd, s_xcd, opt('xmap', 0))) if opt('xmap', 0) else ''}
s_lshr_b32 {s_t}, s2, 3
s_and_b32 {s_t0}, {s_xcd}, 1
s_lshl_b32 {s_t0}, {s_t0}, 3
s_and_b32 {s_t1}, {s_t}, 7
s_add_u32 {s_rb}, {s_t0}, {s_t1}
s_lshr_b32 {s_t0}, {s_xcd}, 1
s_lshl_b32 {s_t0}, {s_t0}, 2
s_lshr_b32 {s_t2}, {s_t}, 3
s_add_u32 {s_cb}, {s_t0}, {s_t2}
s_mov_b32 s6, {2048*1280}
s_mov_b32 s7, 0x20000
s_mov_b32 s11, 0x20000
s_cmp_eq_u32 {s_cb}, 15
s_cbranch_scc1 L_spare
s_mov_b32 s10, {640*3840}
s_lshl_b32 {s_rot}, {s_t2}, 1
s_add_u32 {s_rot}, {s_rot}, {s_t1}
''')
if opt('rot', 8) == 8:
    S(f's_and_b32 {s_rot}, {s_rot}, 7\ns_mul_i32 {s_rot}, {s_rot}, 5\ns_lshr_b32 {s_rot}, {s_rot}, 2')
else:
    S(f'''
    s_lshl_b32 {s_rot}, {s_rot}, 1
    s_add_u32 {s_t0}, {s_xcd}, 1
    s_lshr_b32 {s_t0}, {s_t0}, 1
    s_add_u32 {s_rot}, {s_rot}, {s_t0}
    s_and_b32 {s_rot}, {s_rot}, 15
    s_mul_i32 {s_rot}, {s_rot}, 5
    s_lshr_b32 {s_rot}, {s_rot}, 3
    ''')
def rot(st, n):
    if n >= 1: st(f's_cmp_eq_u32 {s_rot}, 10\ns_cselect_b32 {s_rot}, 0, {s_rot}')
    st(f'''
    s_mul_i32 s{SW0+n}, {s_rot}, {64*3840}
    s_lshl_b32 s{SX0+n}, {s_rot}, 7
    s_add_u32 {s_rot}, {s_rot}, 1
    ''')
rot(S, 0)
S(f'''
v_lshrrev_b32 {v_t1}, 4, {v_lane}
v_lshrrev_b32 {v_t2}, 3, {v_lane}
v_mul_u32_u24 {v_t2}, 1280, {v_t2}
v_and_b32 {v_t3}, 7, {v_lane}
v_xor_b32 {v_t3}, {v_t3}, {v_t1}
s_lshl_b32 {s_t2}, {s_rb}, 2
s_add_u32 {s_t2}, {s_t2}, {s_w}
s_mul_i32 {s_t2}, {s_t2}, {32*1280}
v_add_u32 {v_t2}, {s_t2}, {v_t2}
v_lshl_add_u32 v{VXD}, {v_t3}, 4, {v_t2}
v_xor_b32 {v_t3}, 4, {v_t3}
v_lshl_add_u32 v{VXD+1}, {v_t3}, 4, {v_t2}
v_add_u32 v{VXD+2}, {2*(8*1280-1024)}, v{VXD}
v_add_u32 v{VXD+3}, {3*(8*1280-1024)}, v{VXD+1}
v_add_u32 v{VXD+1}, {8*1280-1024}, v{VXD+1}
s_lshl_b32 {s_mW}, {s_w}, 12
s_add_u32 {s_mX}, {s_mW}, {L_X}
v_and_b32 {v_t2}, 15, {v_lane}
v_lshlrev_b32 {v_t3}, 2, {v_t1}
v_xor_b32 {v_t2}, {v_t2}, {v_t3}
v_mul_u32_u24 {v_t3}, 3840, {v_t1}
v_lshl_add_u32 {v_t3}, {v_t2}, 4, {v_t3}
s_mul_i32 {s_t1}, {s_w}, {16*3840}
s_lshl_b32 {s_t2}, {s_cb}, 8
s_add_u32 {s_t1}, {s_t1}, {s_t2}
v_add_u32 v{VWD}, {s_t1}, {v_t3}
''')
for i in range(1, 4):
    S(f'v_add_u32 v{VWD+i}, {i*(4*3840-1024)}, v{VWD}')
rot(S, 1)
S('s_waitcnt lgkmcnt(0)')

dma_tok = {}
WSLOT = [n % 4 for n in range(10)] + [2, 6, 3, 7, 0, 4, 1, 2, 3, 0]
WISS = {n: n - 2 for n in range(2, 11)}
WISS.update({11: 8, 12: 9, 13: 9, 14: 10, 15: 13, 16: 13, 17: 14, 18: 14, 19: 16})
for a_ in ARGS:
    if a_.startswith('--wiss='): WISS.update({11 + i: int(x) for i, x in enumerate(a_[7:].split(','))})
CTM = opt('ctm', 4)
def dma_stage(n):
    p, ns, slot = n // 10, n % 10, WSLOT[n]
    g = []
    if p == 0:
        g.append(L(f's_add_u32 m0, {s_mX}, {slot*16384}'))
        for i in range(4):
            g.append(L(f'buffer_load_dwordx4 v{VXD+i}, {sX}, s{SX0+ns} offen offset:{1024*i} lds'))
        g[-1] += L(f's_add_u32 m0, {s_mW}, {slot*16384}')
    else:
        g.append(L(f's_add_u32 m0, {s_mW}, {slot*16384}'))
    for i in range(4):
        st = Stream()
        dma_tok[n] = st.vm(f'buffer_load_dwordx4 v{VWD+i}, {sWB if p else sWA}, s{SW0+ns} offen offset:{1024*i} lds')
        g.append(st.l)
    return g

def common_consts(st):
    st(f'''
    s_mov_b32 s18, {WS_SIZE + (65536 if STAMPS else 0)}
    s_mov_b32 s19, 0x20000
    s_mov_b32 s26, 256
    s_mov_b32 s27, 0x20000
    s_mov_b32 s31, 0x20000
    v_cmp_eq_u32 vcc, 0, v0
    v_mov_b32 {v_big}, {BIG}
    v_mov_b32 {v_one}, 1
    v_lshlrev_b32 {v_l16}, 4, {v_lane}
    v_cndmask_b32 {v_flag}, {v_big}, 0, vcc
    ''')

for g in dma_stage(0): S.extend(g)
common_consts(S)
stamp('iss0')
d1 = dma_stage(1)
PRE = opt('pre', 5)
for g in d1[:PRE]: S.extend(g)
pre = Stream()
for n in range(2, 4): rot(pre, n)
pre(f'''
v_lshrrev_b32 {v_t1}, 5, {v_lane}
v_bfe_u32 {v_t2}, {v_lane}, 2, 2
v_lshl_add_u32 {v_t3}, {v_t1}, 3, {v_t2}
v_lshlrev_b32 {v_t3}, 8, {v_t3}
v_bfe_u32 {v_tmp}, {v_lane}, 4, 1
v_lshl_add_u32 {v_t3}, {v_tmp}, 5, {v_t3}
v_and_b32 {v_tmp}, 1, {v_lane}
v_lshl_add_u32 {v_t3}, {v_tmp}, 4, {v_t3}
v_bfe_u32 {v_tmp}, {v_lane}, 1, 1
v_lshl_add_u32 {v_t3}, {v_tmp}, 3, {v_t3}
v_lshl_add_u32 {v_t3}, {v_t2}, 6, {v_t3}
s_and_b32 {s_t0}, {s_w}, 1
s_lshr_b32 {s_t1}, {s_w}, 1
s_lshl_b32 {s_t2}, {s_t0}, 7
v_xor_b32 v{VWR}, {s_t2}, {v_t3}
v_xor_b32 v{VWR+1}, 64, v{VWR}
v_and_b32 {v_t2}, 31, {v_lane}
v_bfe_u32 {v_t3}, {v_lane}, 1, 3
v_xor_b32 {v_t3}, {v_t3}, {v_t1}
v_lshlrev_b32 {v_t3}, 4, {v_t3}
v_lshl_add_u32 {v_t3}, {v_t2}, 7, {v_t3}
s_lshl_b32 {s_t2}, {s_t1}, 13
s_add_u32 {s_t2}, {s_t2}, {L_X}
v_add_u32 v{VXR}, {s_t2}, {v_t3}
''')
for s_ in range(1, 4):
    pre(f'v_xor_b32 v{VXR+s_}, {s_*32}, v{VXR}')
pre(f'''
s_lshl_b32 {s_t2}, {s_rb}, 1
s_add_u32 {s_t2}, {s_t2}, {s_t1}
s_lshl_b32 {s_t2}, {s_t2}, 10
v_lshlrev_b32 {v_t1}, 15, {v_t1}
v_lshl_add_u32 {v_t1}, {v_t2}, 4, {v_t1}
v_add_u32 {v_st}, {s_t2}, {v_t1}
s_lshl_b32 {s_stb}, {s_cb}, 1
s_add_u32 {s_stb}, {s_stb}, {s_t0}
s_lshl_b32 {s_stb}, {s_stb}, 18
s_cmp_lt_u32 {s_cb}, 5
s_cselect_b32 {s_scale}, {f32(QSCALE)}, 1.0
s_cselect_b32 {s_tag}, {'0xfffe0000' if QRND else '-2'}, -1
s_cselect_b32 {s_rnd}, 0x10000, 0
''')
TB = opt('tb', 10); TBH = opt('tbh', 1)
if TB >= 0:
    nl = 20 if TBH else 40
    pre(f'''
    s_mov_b32 s14, {640*3840}
    s_mov_b32 s15, 0x20000
    v_lshrrev_b32 v134, 1, {v_lane}
    v_mul_u32_u24 v134, 3840, v134
    v_and_b32 v135, 1, {v_lane}
    v_lshl_add_u32 v134, v135, 7, v134
    v_cmp_gt_u32 vcc, {nl}, {v_lane}
    s_and_b32 s56, {s_rb}, {15 if TBH else 7}
    s_lshl_b32 s56, s56, 2
    s_add_u32 s56, s56, {s_w}
    v_cndmask_b32 v134, {v_big}, v134, vcc
    s_mul_i32 s56, s56, {nl//2*3840}
    s_lshl_b32 s57, {s_cb}, 8
    s_add_u32 s56, s56, s57
    ''')
    if TBH == 2:
        pre(f'''
        v_lshrrev_b32 v134, 1, {v_lane}
        v_mul_u32_u24 v134, 3840, v134
        v_lshl_add_u32 v134, v135, 7, v134
        s_lshr_b32 s56, {s_t}, 3
        s_lshl_b32 s56, s56, 1
        s_add_u32 s56, s56, {s_t}
        s_bitcmp1_b32 s56, 1
        s_cselect_b32 s58, 0, 40
        v_cmp_gt_u32 vcc, s58, {v_lane}
        s_bfe_u32 s58, s56, 0x10002
        s_lshl_b32 s58, s58, 1
        s_and_b32 s56, s56, 1
        v_cndmask_b32 v134, {v_big}, v134, vcc
        s_add_u32 s56, s56, s58
        s_lshr_b32 s58, {s_rb}, 3
        s_lshl_b32 s58, s58, 2
        s_add_u32 s56, s56, s58
        s_lshl_b32 s56, s56, 2
        s_add_u32 s56, s56, {s_w}
        s_mul_i32 s56, s56, {20*3840}
        s_add_u32 s56, s56, s57
        ''')
    touch = Ins(f'buffer_load_dword v135, v134, {sWB}, s56 offen')
    if TB == 0: pre.l.append(touch)
if opt('wot', 0):
    S.l.insert(2, Ins('s_load_dwordx2 s[56:57], s[0:1], 16')); S.l.insert(2, Ins('s_load_dwordx2 s[58:59], s[0:1], 40'))
    S(f'''
    s_cmp_ge_u32 {s_rb}, 8
    s_cselect_b32 s28, s58, s56
    s_cselect_b32 s29, s59, s57
    s_mov_b32 s30, {640*1280}
    s_and_b32 {s_t0}, {s_rb}, 7
    s_mul_i32 {s_t0}, {s_t0}, 15
    s_add_u32 {s_t0}, {s_t0}, {s_cb}
    s_lshl_b32 {s_t0}, {s_t0}, 2
    s_add_u32 {s_t0}, {s_t0}, {s_w}
    s_mul_i32 {s_t0}, {s_t0}, {14*128}
    v_min_u32 v137, 13, {v_lane}
    v_lshlrev_b32 v137, 7, v137
    buffer_load_dword v136, v137, {sTMP}, {s_t0} offen
    ''')
npre = len(atomize(pre.l))
for n in range(4, 10): rot(pre, n)
setup2(pre)
pre = atomize(pre.l)
SPLIT = min(npre + opt('split', 100), len(pre))
pre, su_post = pre[:SPLIT], pre[SPLIT:]
if d1[PRE:]: weave(pre, d1[PRE:], opt('pre0', 20), min(len(pre), opt('pre1', 120)))
for g in pre: S.extend(g)
stamp('setup')

seq = []
def tilewise(ns, k2):
    ns = list(ns); m = len(ns) - k2
    l = [(n, s_, 0, rt) for n in ns for s_ in range(4) for rt in range(2)]
    l += [(n, s_, 1, rt) for n in ns[:m] for s_ in range(4) for rt in range(2)]
    for rt in range(2): l += [(n, s_, 1, rt) for n in ns[m:] for s_ in range(4)]
    return l
for n in range(20 - CTM):
    if n == 9: seq += tilewise([9], 0)
    else: seq += [(n, s_, c, rt) for s_ in range(4) for c in range(2) for rt in range(2)]
seq += tilewise(range(20 - CTM, 20), opt('ct2', 2))
NG = len(seq)
def xreg(n, s_, rt):
    n %= 10
    return ar(32 * n + 8 * s_ + 4 * rt, 4) if n < 8 else vr(XV + 32 * (n - 8) + 8 * s_ + 4 * rt, 4)
BO = opt('bo', 5)
firstuse = {}; lastuse = {}
for k, e in enumerate(seq): firstuse.setdefault(e[0], k); lastuse[e[0]] = k
BARS = list(range(1, 21 - CTM)) + ([19] if CTM > 2 else [])
def bar_of(n): return max(b for b in [0] + BARS if b <= n)
def bar_gap(n): return firstuse[bar_of(n)] - BO
for n in range(4, 20):
    prev = [m for m in range(n) if WSLOT[m] == WSLOT[n] or (m < 10 and WSLOT[n] == 4 + m % 4)]
    assert WISS[n] in BARS and lastuse[prev[-1]] < bar_gap(WISS[n]), n
frag = []; fidx = []
for k, e in enumerate(seq):
    if k == 0 or seq[k - 1][:3] != e[:3]: frag.append([e[:3], k, k])
    frag[-1][2] = k; fidx.append(len(frag) - 1)
reads = []; xseen = set(); first_reads = []
for j, ((n, s_, c), u0, u1) in enumerate(frag):
    lo = max(frag[j - 4][2] if j >= 4 else -1, bar_gap(n))
    sl_ = WSLOT[n]; buf = WRING + 4 * (j & 3)
    l = [Ins(f'ds_read_b64_tr_b16 {vr(buf+2*u,2)}, v{(VXR if sl_ >= 4 else VWR)+c} offset:{(sl_%4)*16384+(16*s_+4*u)*256}') for u in range(2)]
    if n < 10 and (n, s_) not in xseen:
        xseen.add((n, s_))
        l = [Ins(f'ds_read_b128 {xreg(n,s_,rt)}, v{VXR+s_} offset:{(n%4)*16384+rt*4096}') for rt in range(2)] + l
    if j < 2: first_reads += l
    else: reads += [Item(x, lo, u0 - (3 if u0 - 3 >= lo else 2)) for x in l]
mf = []
for k, (n, s_, c, rt) in enumerate(seq):
    acc = vr(ACC[n // 10] + 16 * (2 * c + rt), 16)
    mf.append(Ins(f'{mm} {acc}, {vr(WRING+4*(fidx[k]&3),4)}, {xreg(n,s_,rt)}, {"0" if n % 10 == 0 and s_ == 0 else acc}'))
done = {}
for k, (n, s_, c, rt) in enumerate(seq): done[(n // 10, 2 * c + rt)] = k
def epi1_tile(p, T):
    g = []; c, rt = T >> 1, T & 1
    for u in range(2):
        b = ACC[p] + 16 * T + 8 * u
        g.append(L(f's_add_u32 {s_e0}, {s_stb}, {QKV[p]+(4*c+2*u)*GRP}'))
        for i in range(8): g.append(L(f'v_mul_f32 v{b+i}, {s_scale}, v{b+i}'))
        if QRND:
            for i in (0, 4): g.append(L(f'v_add_u32 v{b+i}, {s_rnd}, v{b+i}'))
            for i in (0, 4): g.append(L(f'v_and_b32 v{b+i}, {s_tag}, v{b+i}'))
        for i in range(4): g.append(L(f'v_cvt_pk_bf16_f32 v{b+i}, v{b+2*i}, v{b+2*i+1}'))
        if not QRND:
            for i in (0, 2): g.append(L(f'v_and_b32 v{b+i}, {s_tag}, v{b+i}'))
        st = Stream(); tok = st.vm(f'buffer_store_dwordx4 {vr(b,4)}, {v_st}, {sWS}, {s_e0} offen offset:{512*rt} sc1')
        g.append(st.l)
    return g, tok

cap = [6 - (1 if k + 1 < NG and fidx[k + 1] != fidx[k] else 0) for k in range(NG)]
fixed = {}
FLAGA = opt('flagA', 13)
for n in BARS:
    fixed[bar_gap(n)] = [('BAR', n)]; cap[bar_gap(n)] -= 2 + (2.5 if n == FLAGA else 0)
dmas = []
for b in range(0, 17):
    l = [g for n in range(2, 20) if WISS[n] == b for g in dma_stage(n)]
    if l:
        lo = max(bar_gap(b), 0)
        dmas += paced(l, lo, lo + (opt('dsp', 14) if len(l) > 5 else 7), 2)
KV0 = opt('kv0', 262); KV1 = opt('kv1', 290); KVB = opt('kvb', 312)
assert KV0 > bar_gap(16) + 9
kv, tokKV = kvq_loads()
dmas += [Item(mk(poll_check, v_pres, v_p1, sWS, s_F1A) + [('ST', 'pc1')], KV0 - 1, KV0 - 1)] + paced(kv, KV0, KV1, 2)
epi = []
EA1 = opt('epiAend', 182)
for T in range(4):
    g, tokA = epi1_tile(0, T)
    lo = done[(0, T)] + 3
    it = asap(g, lo, lo + 1)
    for i, x in enumerate(it): x.hi = max(lo, 154 + (len(g) * T + i) * (EA1 - 154) // (4 * len(g))) + 2
    epi += it
for T in range(3):
    g, tokB = epi1_tile(1, T)
    lo = done[(1, T)] + 3
    it = asap(g, lo, lo + 1)
    e0 = done[(1, 0)] + 3; e1 = done[(1, 2)] + 3
    for i, x in enumerate(it): x.hi = max(lo, e0 + (len(g) * T + i) * (e1 - e0) // (2 * len(g))) + 1 if T < 2 else NG
    epi += it
NWO1 = opt('nwo1', 0); NA = 0
WO0 = opt('wo0', 222); WO1 = opt('wo1', 258)
misc = []
if TB > 0: misc.append(Item(touch, TB, TB + 2))
SU1 = opt('su1', 44)
sus = asap(su_post, 0, SU1) if su_post else []
for it in sus: it.hi += 4
misc += [Item(mk(poll_issue, v_pres, v_zero, sDBG, '0'), max(SU1 + 5, 110), max(SU1 + 7, 112)), Item(mk(poll_check, v_pres, v_zero, sDBG, '0'), 146, 148)]
misc += paced(setup_late(), 148, 152, 4)
if NA: misc += [Item(mk(poll_issue, v_pres, v_p2, sWS, s_F1A), opt('p2i', 148), opt('p2i', 148) + 2)]
misc += paced([Ins(f'v_add_u32 v{VXR+c}, {L_X}, v{VWR+c}') for c in range(2)], 156, 160, 3)
if NA: misc += [Item(mk(poll_check, v_pres, v_p2, sWS, s_F1A) + [('ST', 'pc2')], WO0 - 1, WO0 - 1)]
wl = paced(wo_loads(0, NA), WO0, WO1, 3) if NA else []
P1I = KV0 - opt('p1d', 20)
misc += [x for x in wl if x.lo < P1I] + [Item(mk(poll_issue, v_pres, v_p1, sWS, s_F1A), P1I, P1I + 2)] + [x for x in wl if x.lo >= P1I]
if NWO1: misc += paced(wo_loads(0, NWO1), KV1, NG - 2, 2)
WT = opt('wt', 0)
def wo_touch():
    if opt('map3', 1):
        a_ = L(f'''
        v_min_u32 v114, 24, {v_r}
        v_lshlrev_b32 v114, 7, v114
        v_mul_u32_u24 v115, {32*25600}, {v_h}
        s_and_b32 s56, {s_R}, 7
        s_mul_i32 s56, s56, 3200
        v_add_u32 v114, v114, v115
        s_add_u32 s56, s56, {s_wob}
        s_add_u32 s56, s56, {WOF}
        ''')
        return a_, L(f'buffer_load_dword v115, v114, {sWS}, s56 offen sc1')
    a_ = L(f'''
    v_min_u32 v114, 49, {v_lane}
    v_lshlrev_b32 v114, 7, v114
    s_and_b32 s56, {s_R}, 3
    s_mul_i32 s56, s56, 6400
    s_add_u32 s56, s56, {s_wob}
    s_add_u32 s56, s56, {WOF}
    s_add_u32 s57, s56, {32*25600}
    ''')
    return a_, L(f'buffer_load_dword v115, v114, {sWS}, s56 offen sc1\nbuffer_load_dword v116, v114, {sWS}, s57 offen sc1')
if WT > KV0:
    a_, b_ = wo_touch()
    misc += paced(a_, KV0 + 2, KV0 + 12, 3) + paced(b_, WT, WT + opt('wtn', 4), 2)
elif WT:
    a_, b_ = wo_touch()
    assert WT + 6 < P1I
    it = [Item(mk(poll_issue, v_pres, v_p2, sWS, s_F1A), WT - 20, WT - 18)] + paced(a_, WT - 14, WT - 4, 2)
    it += [Item(mk(poll_check, v_pres, v_p2, sWS, s_F1A), WT - 1, WT - 1)] + paced(b_, WT, WT + 2, 2)
    k_ = next(i for i, x in enumerate(misc) if x.lo == P1I)
    misc[k_:k_] = it
misc2 = paced(mask_far(), 244, 256, 4) + paced(zero_pads(), lastuse[17] + 1, lastuse[17] + 6, 2)
st = Stream(); st.wait(tokKV); st('s_barrier'); fixed[KVB] = st.l + [('ST', 'kvb')]; cap[KVB] -= 2
misc2 += paced(att_pre(), KVB, NG - 2, 1)
rep_ = []
gaps, over = schedule(NG, cap, [reads, dmas, epi, misc, misc2, sus], rep_)
if '--sched' in ARGS:
    for n in range(20): print(n, ' '.join('%4.1f' % x for x in rep_[16 * n:16 * n + 16]))
last_def = {}; last_use = {}
for k, m in enumerate(mf):
    for r in m.defs: last_def[r] = k
    for r in m.srcab: last_use[r] = k
for k, g in enumerate(gaps):
    for it in g:
        if isinstance(it, tuple): continue
        if it.kind in ('valu', 'vm') or (it.kind == 'ds' and k > 200):
            for r in it.uses | it.defs: assert last_def.get(r, -1) <= k or k < 150, (k, it.text)
            if 'tr_b16 v' not in it.text:
                for r in it.defs: assert last_use.get(r, -1) <= k, (k, it.text)

S.wait(dma_tok[0])
if opt('waitall', 0): S('s_waitcnt vmcnt(0)')
S('s_barrier')
stamp('first')
S.l += first_reads
for k in range(NG):
    if k + 1 < NG and fidx[k + 1] == fidx[k]: S.use(mf[k].srcab | mf[k + 1].srcab)
    S.l.append(mf[k])
    if opt('slow', 0) and opt('slow0', 0) <= k < opt('slow1', 160): S('s_nop %d' % opt('slow', 0))
    for it in fixed.get(k, []) + mem_first(gaps[k]):
        if isinstance(it, tuple) and it[0] == 'ST':
            if FINE: stamp(it[1])
        elif isinstance(it, tuple):
            n2 = it[1]
            tk = [dma_tok[m] for m in range(20) if bar_of(m) == n2]
            if n2 == FLAGA: tk.append(tokA)
            S.wait(*tk)
            S('s_barrier')
            if n2 == FLAGA: set_flag(S, v_flag, s_f1, 0)
            if FINE or n2 in (10, 14, 16): stamp('b%d' % n2)
        else:
            S.l.append(it)
stamp('p1end')
S(qka(0)); S(qkb(0))
mrest = mask_rest()
S.l += mrest[:8]
g, tokB = epi1_tile(1, 3)
for x in g: S.l += x
S('L_join:')
stamp('join')
nst_join = nstamp[0] - 1

N = len(steps)
groups = []
for n in range(N):
    for g in range(4):
        st = Stream()
        if g == 0 and n + 1 < N: st(qka(n + 1))
        if g == 1 and n > 0: st(pv(n - 1, 1))
        if g == 2 and n + 1 < N: st(qkb(n + 1))
        if g == 3: st(pv(n, 0))
        if g > 0 or n > 0:
            for x in cvts((g - 1) & 3): st(x)
        for x in exps(n, g): st(x)
        groups.append(st.l)
first = {}
for n, (j, q) in enumerate(steps): first.setdefault(j, n)
last = {j: n for n, (j, q) in enumerate(steps)}
for j in range(1, 10):
    base = 4 * (last[j-2] + 1) + 1 if j >= 2 else 0
    for kk in range(2):
        for u in range(2): groups[base + kk].append(v_read(j, kk, u))
    if j + 1 < 10:
        groups[base + 3].append(k0_read(j + 1))
        if (j + 1) % 2 == 0: groups[base + 3].append(k1_read(j + 1))
    need = set(x for kk in range(2) for u in range(2) for x in v_read(j, kk, u).defs)
    if j + 1 < 10: need |= k0_read(j + 1).defs | (k1_read(j + 1).defs if (j + 1) % 2 == 0 else set())
    st = Stream(); st.use(need); groups[4 * first[j] + 3][0:0] = st.l
weave(groups, mrest[8:], 4, 36)
FB = opt('fb', 4)
st = Stream(); st.wait(tokB); st('s_barrier'); set_flag(st, v_flag, s_f1, 0); groups[4 * FB - 1] += st.l
groups[0] += L(f's_add_u32 {s_f1}, {s_f1}, 32768')
P3S = opt('p3s', 11); P3D = opt('p3d', 2)
NWO2 = opt('nwo2', 38)
NWOM = min(NWO2, opt('nwom', 30))
if NWOM > NWO1: weave(groups, wo_loads(NWO1, NWOM), opt('wo0g', 1), 4 * (P3S - P3D) - 1)
if NWO2 > NWOM: weave(groups, wo_loads(NWOM, NWO2), 4 * P3S + opt('bln', 12), 72)
groups[4 * (P3S - P3D) - 1] += mk(poll_issue, v_pres, v_p3, sWS, s_F1B)
groups[4 * P3S - 2] += L(f'''
s_add_u32 s60, {s_bF}, {QKV[1]}
s_add_u32 s61, {s_bS}, {QKV[1]}
s_add_u32 s62, {s_bF}, {QKV[1] + 80*GRP - 512}
s_add_u32 s63, {s_bS}, {QKV[1] + 80*GRP - 512}
''')
groups[4 * P3S - 3] += L(f'''
s_add_u32 s64, {s_bF}, {QKV[1] + 160*GRP}
s_add_u32 s65, {s_bF}, {QKV[1] + 161*GRP - 1088}
s_add_u32 s66, {s_bS}, {QKV[1] + 160*GRP - 2176}
s_mov_b32 m0, {s_mV}
''')
groups[4 * P3S - 1] += mk(poll_check, v_pres, v_p3, sWS, s_F1B)
bl = L(f'''
buffer_load_dword {v_g[0]}, {v_gad}, {sWS}, {s_gb} offen sc1
buffer_load_dword {v_g[1]}, {v_gad}, {sWS}, {s_gb} offen offset:128 sc1
buffer_load_dwordx4 {vr(QB0,4)}, {v_q4}, {sWS}, s60 offen sc1
buffer_load_dwordx4 {vr(KB0,4)}, {v_kb0}, {sWS}, s62 offen sc1
buffer_load_dwordx2 {vr(QB1,2)}, {v_qe}, {sWS}, s61 offen sc1
buffer_load_dwordx2 {vr(QB1+2,2)}, {v_qo}, {sWS}, s61 offen sc1
buffer_load_dwordx2 {ar(AKB1,2)}, {v_kb1}, {sWS}, s63 offen sc1
buffer_load_dwordx4 {vr(KB0+4,4)}, {v_q4}, {sWS}, s62 offen offset:512 sc1
buffer_load_dwordx4 {vr(QB0+4,4)}, {v_q4}, {sWS}, s60 offen offset:512 sc1
buffer_load_dwordx2 {vr(QB1+4,2)}, {v_qo}, {sWS}, s61 offen offset:512 sc1
buffer_load_dwordx4 {vr(KB0+8,4)}, {v_q4}, {sWS}, s62 offen offset:1024 sc1
buffer_load_dwordx2 {ar(AKB1+4,2)}, {v_qo}, {sWS}, s63 offen offset:1024 sc1
buffer_load_dwordx4 {v_l16}, {sWS}, s64 offen sc1 lds
buffer_load_dwordx4 {v_l16}, {sWS}, s65 offen offset:1088 sc1 lds
buffer_load_dwordx4 {v_l16}, {sWS}, s66 offen offset:2176 sc1 lds
''')
st = Stream(); st(f's_add_u32 m0, {s_mV}, 3264\nv_mov_b32 v{QB1+6}, 0\nv_mov_b32 v{QB1+7}, 0')
tokVB = st.vm(f'buffer_load_dwordx4 {v_halo}, {sWS}, 0 offen sc1 lds'); bl.append(st.l)
weave(groups, bl, 4 * P3S, 4 * P3S + opt('bln', 12))
for k, g in enumerate(groups):
    S.l += mem_first(g)
    if FINE and k % 8 == 7: stamp('a%d' % (k // 4))
for x in cvts(3): S(x)
S('s_nop 1')
S(pv(N - 1, 1))
stamp('attA')
S(f'''
s_lshl_b32 {s_t0}, {s_R}, 10
s_mul_i32 {s_t1}, {s_w}, {20*GRP}
s_add_u32 s{SX0}, {s_t0}, {s_t1}
s_mov_b32 {s_tag}, 0xfffe0000
''')
for s_ in range(1, 5): S(f's_add_u32 s{SX0+s_}, s{SX0}, {4*s_*GRP}')
for s_ in range(2): S(f's_add_u32 s{SX0+5+s_}, s{SX0}, {QKV[1] + 4*s_*GRP}')
S(f'''
s_mov_b32 {s_t1}, {hex(64 << 23)}
v_subrev_u32 {v_t1}, {hex(95 << 23)}, v{OA[0]+12}
v_subrev_u32 {v_t2}, {hex(95 << 23)}, v{OA[1]+12}
v_max_u32 {v_t1}, {v_t1}, {v_t2}
v_cmp_le_u32 vcc, {s_t1}, {v_t1}
s_cbranch_vccnz L_truemax
L_Aok:
''')
FBK = Stream()
FBK('@reset')
FBK(f'''
L_truemax:
s_lshr_b32 {s_t1}, {s_q0}, 5
s_sub_u32 {s_t1}, 8, {s_t1}
s_nop 7
''')
def fb_qk(j, q):
    c = vr(M_FAR, 16) if j == q else vr(M_DIAG, 16) if j == 8 + q else '0'
    FBK(f'''
    ds_read_b128 {ar(AK0,4)}, {v_k0} offset:{512*j}
    ds_read_b64 {ar(AK1,2)}, {v_k1} offset:{512*(j & ~1)}
    {mm} {vr(SB[0],16)}, {ar(AK0,4)}, {vr(QA0+4*q,4)}, {c}
    {mm} {vr(SB[0],16)}, {ar(AK1,4)}, {vr(QA1+4*q+2*(j&1),4)}, {vr(SB[0],16)}
    ''')
for q in range(2):
    FBK(f'v_mov_b32 {v_t3}, {NEGINF}')
    for i in range(16): FBK(f'v_mov_b32 v{OA[q]+i}, 0')
    for ps in range(2):
        for j in range(q, q + 9):
            l = lab('skip')
            FBK(f's_cmp_gt_i32 {s_t1}, {j}\ns_cbranch_scc1 {l}')
            if ps == 1:
                for kk in range(2):
                    for u in range(2): FBK(f'ds_read_b64_tr_b16 {ar(AV+4*kk+2*u,2)}, {v_v} offset:{512*j+256*kk+128*u}')
            fb_qk(j, q)
            if ps == 0:
                for i in range(0, 16, 2): FBK(f'v_max3_f32 {v_t3}, {v_t3}, v{SB[0]+i}, v{SB[0]+i+1}')
            else:
                for i in range(16): FBK(f'v_sub_f32 v{SB[0]+i}, v{SB[0]+i}, {v_t3}')
                for i in range(16): FBK(f'v_exp_f32 v{SB[0]+i}, v{SB[0]+i}')
                for i in range(8): FBK(f'v_cvt_pk_bf16_f32 v{P0+i}, v{SB[0]+2*i}, v{SB[0]+2*i+1}')
                for kk in range(2): FBK(f'{mm} {vr(OA[q],16)}, {ar(AV+4*kk,4)}, {vr(P0+4*kk,4)}, {vr(OA[q],16)}')
                FBK('s_nop 7')
            FBK(l + ':')
        if ps == 0:
            FBK(f'''
            s_nop 1
            v_mov_b32 {v_t4}, {v_t3}
            v_permlane32_swap_b32 {v_t3}, {v_t4}
            v_max_f32 {v_t3}, {v_t3}, {v_t4}
            ''')
FBK('s_nop 15\ns_branch L_Aok')

OSC = '' if opt('local', 0) else ' sc1'
def epi2(br, q, o, pk=False):
    st = Stream()
    st(f'v_rcp_f32 {v_t1}, v{o+12}')
    if br: st(f'v_sub_f32 {v_g[q]}, 1.0, {v_g[q]}')
    st(f'v_mul_f32 {v_t1}, {v_g[q]}, {v_t1}')
    if pk:
        for i in range(0, 12, 2): st(f'v_pk_mul_f32 {vr(o+i,2)}, {vr(o+i,2)}, {vr(22,2)} op_sel_hi:[1,0]')
    else:
        for i in range(12): st(f'v_mul_f32 v{o+i}, {v_t1}, v{o+i}')
    for i in (0, 4, 8): st(f'v_and_or_b32 v{o+i}, v{o+i}, {s_tag}, {v_o4}')
    for i in range(6): st(f'v_cvt_pk_bf16_f32 v{o+i}, v{o+2*i}, v{o+2*i+1}')
    st(f'buffer_store_dwordx4 {vr(o,4)}, {v_q4}, {sWS}, {"s60" if br else s_bF} offen offset:{512*q} sc1')
    tok = st.vm(f'buffer_store_dwordx2 {vr(o+4,2)}, {v_qe}, {sWS}, {"s61" if br else s_bS} offen offset:{512*q} sc1')
    return st.l, tok
qkB = [[Ins(x)] for x in (
    f'{mm} {vr(SP[0],16)}, {vr(KB0,4)}, {vr(QB0,4)}, {vr(MB_PREV0,16)}',
    f'{mm} {vr(SP[0],16)}, {ar(AKB1,4)}, {vr(QB1,4)}, {vr(SP[0],16)}',
    f'{mm} {vr(SD[0],16)}, {vr(KB0+4,4)}, {vr(QB0,4)}, {vr(MB_DIAG,16)}',
    f'{mm} {vr(SD[0],16)}, {ar(AKB1,4)}, {vr(QB1+2,4)}, {vr(SD[0],16)}',
    f'{mm} {vr(SP[1],16)}, {vr(KB0+4,4)}, {vr(QB0+4,4)}, {vr(MB_PREV,16)}',
    f'{mm} {vr(SP[1],16)}, {ar(AKB1,4)}, {vr(QB1+4,4)}, {vr(SP[1],16)}',
    f'{mm} {vr(SD[1],16)}, {vr(KB0+8,4)}, {vr(QB0+4,4)}, {vr(MB_DIAG,16)}',
    f'{mm} {vr(SD[1],16)}, {ar(AKB1+4,4)}, {vr(QB1+4,4)}, {vr(SD[1],16)}')]
st = Stream(); st.wait(tokVB)
for u in range(2): st(f'ds_read_b64_tr_b16 {ar(VB+2*u,2)}, {v_vh} offset:{128*u}')
for t in range(2):
    for kk in range(2):
        for u in range(2): st(f'ds_read_b64_tr_b16 {ar(VB+4+8*t+4*kk+2*u,2)}, {v_vb} offset:{512*t+256*kk+128*u}')
vbr = st.l
e0, _ = epi2(0, 0, OA[0], True); e1, tokOA = epi2(0, 1, OA[1], True)
S.l += e0 + e1
st2('epiA')
adr = Stream()
adr(f'''
v_lshrrev_b32 v14, 4, {v_lane}
v_and_b32 v15, 15, {v_lane}
v_lshlrev_b32 v5, 15, v14
v_lshl_add_u32 v5, v15, 4, v5
''')
for rho in range(4):
    adr(f'''
    s_add_u32 {s_t0}, {s_w}, {rho}
    s_and_b32 {s_t0}, {s_t0}, 3
    s_lshl_b32 s{56+rho}, {s_t0}, 8
    v_add_u32 v{V4+rho}, s{56+rho}, v5
    ''')
adr2 = Stream()
for rho in range(4):
    adr2(f's_mul_i32 {s_t1}, s{56+rho}, 60')
    if rho: adr2(f's_add_u32 {s_t1}, {s_t1}, {(rho-1)*5120}\nv_add_u32 v{VRW+rho-1}, {s_t1}, {v_l16}')
    else: adr2(f'v_add_u32 {v_rr}, {s_t1}, {v_l16}')
adr2(f'''
v_mul_u32_u24 v15, 1280, v15
v_mad_u32_u24 v15, v14, 40, v15
s_lshl_b32 {s_t0}, {s_R}, 2
s_add_u32 {s_t0}, {s_t0}, {s_w}
s_mul_i32 {s_t0}, {s_t0}, {16*1280}
s_mul_i32 {s_t1}, {s_C}, 160
s_add_u32 {s_t0}, {s_t0}, {s_t1}
v_add_u32 {v_out}, {s_t0}, v15
''')
for s_ in range(2, 5): adr2(f's_add_u32 s{SX0+5+s_}, s{SX0}, {QKV[1] + 4*s_*GRP}')
weave(qkB, vbr, 2, 6)
NWOB = max(NWO2, opt('nwob', 44))
if NWOB > NWO2: weave(qkB, wo_loads(NWO2, NWOB), 0, 6)
weave(qkB, adr.l, 0, 8)
for g in qkB[:6]: S.l += g
st2('qkB')
def softB(q):
    st = Stream()
    b = SP[q] + 8
    assert SD[q] == SP[q] + 16
    st(f'v_max3_f32 {v_t3}, v{b}, v{b+1}, v{b+2}')
    st(f'v_max3_f32 {v_t4}, v{b+3}, v{b+4}, v{b+5}')
    for i in range(6, 22, 4):
        st(f'v_max3_f32 {v_t3}, {v_t3}, v{b+i}, v{b+i+1}')
        st(f'v_max3_f32 {v_t4}, {v_t4}, v{b+i+2}, v{b+i+3}')
    st(f'v_max3_f32 {v_t3}, {v_t3}, v{b+22}, v{b+23}')
    st(f'v_max_f32 {v_t3}, {v_t3}, {v_t4}')
    st(f'v_mov_b32 {v_t4}, {v_t3}')
    st(f'v_permlane32_swap_b32 {v_t3}, {v_t4}')
    st(f'v_max_f32 {v_t3}, {v_t3}, {v_t4}')
    for i in range(0, 24, 2): st(f'v_pk_add_f32 {vr(b+i,2)}, {vr(b+i,2)}, {vr(24,2)} op_sel_hi:[1,0] neg_lo:[0,1] neg_hi:[0,1]')
    vop = [VB if q == 0 else VB + 8, VB + 4 + 8 * q, VB + 8 + 8 * q]
    for c in range(3):
        for i in range(8): st(f'v_exp_f32 v{b+8*c+i}, v{b+8*c+i}')
        if c: st(f'{mm} {vr(OB[q],16)}, {ar(vop[c-1],4)}, {vr(b+8*(c-1),4)}, {"0" if c == 1 else vr(OB[q],16)}')
        for i in range(4): st(f'v_cvt_pk_bf16_f32 v{b+8*c+i}, v{b+8*c+2*i}, v{b+8*c+2*i+1}')
    return st.l, Ins(f'{mm} {vr(OB[q],16)}, {ar(vop[2],4)}, {vr(b+16,4)}, {vr(OB[q],16)}')
l0, m0_ = softB(0); l1, m1_ = softB(1)
lb = l0[:5] + qkB[6] + l0[5:10] + qkB[7] + l0[10:] + l1[:2] + [m0_] + l1[2:]
def o_load(br, s_, rho):
    b = OF[br][s_] + 4 * rho
    return L(f'buffer_load_dwordx4 {vr(b,4)}, v{V4+rho}, {sWS}, s{SX0+5*br+s_} offen sc1')
order = (1, 2, 3, 0)
ogrp = [[(0, s_, rho) for rho in range(4)] for s_ in range(5)] + [[(1, s_, rho) for s_ in range(5)] for rho in order]
ol = [x for g in ogrp for e in g for x in o_load(*e)]
e0, _ = epi2(1, 0, OB[0]); e1, tokOB = epi2(1, 1, OB[1], True)
lb += e0[:2] + [m1_] + e0[2:] + e1
NO0 = opt('no0', 8); NOE = opt('noe', 0); OE = opt('oe', 1)
if NOE:
    k_ = [i for i, x in enumerate(lb) if x.kind == 'mfma'][-OE]
    lb[k_ + 1:k_ + 1] = ol[:NOE]
BST = opt('bst', 1)
bst = []
if BST:
    bst = [x for x in lb if x.kind == 'vm' and 'store' in x.mn]
    lb = [x for x in lb if x not in bst]
    if BST > 1:
        lb += L(f'v_mov_b32 v6, {v_q4}\nv_mov_b32 v7, {v_qe}')
        bst = [Ins(x.text.replace(v_q4 + ',', 'v6,').replace(v_qe + ',', 'v7,')) for x in bst]
S.l += lb
stamp('epiB')
S.l += ol[NOE:NO0]
if BST == 1: S.l += bst
S.l += adr2.l
NWO4 = max(NWOB, opt('nwo4', 44))
for g in wo_loads(NWOB, NWO4): S.l += g
st2('oiss')

def o_check(i):
    regs = [OF[br][s_] + 4 * rho + j for br, s_, rho in ogrp[i] for j in (0, 2)]
    def tree():
        st = Stream()
        for k in range(0, len(regs), 2): st(f'v_bitop3_b32 v1, {"v1" if k else "1"}, v{regs[k]}, v{regs[k+1]} bitop3:0x80')
        st('v_cmp_eq_u32 vcc, 0, v1')
        return st.l
    l = lab('again'); b = lab('fresh')
    tail('@reset')
    tail(f'{l}:\ns_mov_b32 {s_cnt}, 0\n{l}_a:')
    for e in ogrp[i]: tail.l += o_load(*e)
    tail(f's_add_u32 {s_cnt}, {s_cnt}, 1')
    if STAMPS: tail(f'v_writelane_b32 v0, {s_cnt}, {60 + (i >= 5)}')
    tail('s_waitcnt vmcnt(0)')
    tail.l += tree()
    tail(f's_cbranch_vccz {b}\ns_cmp_lt_u32 {s_cnt}, 0x40000\ns_cbranch_scc1 {l}_a\ns_branch {b}')
    t = tree()
    return t[:-1] + [t[-1:] + L(f's_cbranch_vccnz {l}\n{b}:')]
def mf3(br, s_, rho, ct):
    acc = vr(AC3 + 20 * rho + 4 * ct, 4)
    return [Ins(f'v_mfma_f32_16x16x32_bf16 {acc}, {ar(100*br+20*s_+4*ct,4)}, {vr(OF[br][s_]+4*rho,4)}, {"0" if br == 0 and s_ == 0 else acc}')]
sl = [mf3(*e, ct) for g in ogrp for e in g for ct in range(5)]
PB0 = opt('pb0', 36); PB1 = opt('pb1', 55)
if NO0 < 20: weave(sl, ol[NO0:20], 0, PB0)
if BST > 1: weave(sl, bst, BST, BST + 8)
if NWO4 < 50:
    S(f'v_mov_b32 v15, {v_l16}')
    weave(sl, wo_loads(NWO4, 50, 'v15'), PB0, PB1)
weave(sl, ol[20:], PB1, opt('no1', 140))
for it in o_check(0): S.l += it if isinstance(it, list) else [it]
stamp('poll4')
gstart = [20 * i for i in range(5)] + [100 + 25 * i for i in range(4)]
for i in range(1, 9): weave(sl, o_check(i), gstart[i] - opt('chk', 6), gstart[i])
for k, g in enumerate(sl):
    for it in g[1:]:
        if it.kind == 'vm': assert not any(it.defs & x.uses for j in range(k + 1) for x in sl[j] if x.kind != 'vm'), it.text
for i, rho in enumerate((1, 2, 3)):
    wr = [Ins(f'ds_write_b128 v{VRW+rho-1}, {vr(AC3+20*rho+4*ct,4)} offset:{1024*ct}') for ct in range(5)]
    lo = 125 + 25 * i + 3
    weave(sl, wr, lo, lo + (15 if i < 2 else 5))
sl[189] += L('s_waitcnt lgkmcnt(0)\ns_barrier')
rd = [Ins(f'ds_read_b128 {vr(RED+20*k+4*ct,4)}, {v_rr} offset:{5120*k+1024*ct}') for ct in range(5) for k in range(3)]
weave(sl, rd, 190, 200)
for k, g in enumerate(sl):
    S.l += mem_first(g)
    if k == 99: stamp('mf3A')
    elif k in (0, 19, 39, 59, 79, 124, 149, 174, 188, 189): st2('m%d' % k)
stamp('mf3')
for i in range(0, 20, 2):
    S(f'v_pk_add_f32 {vr(RED+i,2)}, {vr(RED+i,2)}, {vr(RED+20+i,2)}')
    S(f'v_pk_add_f32 {vr(AC3+i,2)}, {vr(AC3+i,2)}, {vr(RED+40+i,2)}')
for i in range(0, 20, 2):
    S(f'v_pk_add_f32 {vr(AC3+i,2)}, {vr(AC3+i,2)}, {vr(RED+i,2)}')
for i in range(10):
    S(f'v_cvt_pk_bf16_f32 v{AC3+i}, v{AC3+2*i}, v{AC3+2*i+1}')
S(f'''
buffer_store_dwordx4 {vr(AC3,4)}, {v_out}, {sOUT}, 0 offen
buffer_store_dwordx4 {vr(AC3+4,4)}, {v_out}, {sOUT}, 0 offen offset:16
buffer_store_dwordx2 {vr(AC3+8,2)}, {v_out}, {sOUT}, 0 offen offset:32
''')
if AMP:
    S('s_waitcnt vmcnt(0)')
    stamp('end')
    S(f'''
    s_cmp_lg_u32 s2, {opt('ampwg', 9)}
    s_cbranch_scc1 L_end
    s_memrealtime s[84:85]
    s_waitcnt lgkmcnt(0)
    s_sub_u32 s80, s82, s80
    s_lshl_b32 s80, s80, 2
    s_min_u32 s80, s80, 100000
    {('s_mov_b32 s80, %d' % opt('ampc', 0)) if opt('ampc', 0) else ''}
    L_amp:
    s_memrealtime s[86:87]
    s_waitcnt lgkmcnt(0)
    s_sub_u32 s86, s86, s84
    s_cmp_lt_u32 s86, s80
    s_cbranch_scc1 L_amp
    ''')
if STAMPS:
    stamp('red')
    S('s_waitcnt vmcnt(0)')
    stamp('end')
    S(f'''
    s_waitcnt lgkmcnt(0)
    s_cmp_lg_u32 {s_w}, 0
    s_cbranch_scc1 L_end
    v_writelane_b32 v0, s{ST0+2*((nstamp[0]-1)&1)}, {nstamp[0]-1}
    s_lshl_b32 {s_t0}, s2, 8
    s_add_u32 {s_t0}, {s_t0}, {STAMP_OFF}
    v_mbcnt_lo_u32_b32 v3, -1, 0
    v_mbcnt_hi_u32_b32 v3, -1, v3
    v_lshlrev_b32 v3, 2, v3
    buffer_store_dword v0, v3, {sWS}, {s_t0} offen
    ''')
    assert nstamp[0] <= 56, nstamp[0]
    open(OUT + '.stamps', 'w').write(' '.join(n or str(i) for i, n in enumerate(stamp_names)))
S('s_endpgm')

T = Stream()
nstamp[0] = 1
T('@reset')
T(f'''
L_spare:
s_waitcnt lgkmcnt(0)
s_load_dwordx2 s[56:57], s[0:1], 16
s_load_dwordx2 s[58:59], s[0:1], 40
s_load_dwordx2 s[8:9], s[0:1], 48
s_mov_b32 s30, {640*1280}
s_mov_b32 s10, 1280
''')
common_consts(T)
T(f'''
v_mov_b32 v64, 0
v_mov_b32 v65, 0
v_mov_b32 v66, 0
v_mov_b32 v67, 0
v_lshlrev_b32 {v_t1}, 4, v0
s_lshl_b32 {s_t2}, {s_rb}, 12
s_add_u32 {s_t2}, {s_t2}, {FLG}
''')
tokz = T.vm(f'buffer_store_dwordx4 v[64:67], {v_t1}, {sWS}, {s_t2} offen sc1')
def handshake():
    T.wait(tokz)
    T(f'''
    s_barrier
    s_lshl_b32 {s_t1}, {s_rb}, 2
    buffer_store_dword {v_one}, {v_flag}, {sDBG}, {s_t1} offen sc1
    ''')
STB = opt('stb', 0)
if STB:
    T(f'''
    s_mov_b32 s14, {640*3840}
    s_mov_b32 s15, 0x20000
    s_lshl_b32 {s_t0}, {s_rb}, 2
    s_add_u32 {s_t0}, {s_t0}, {s_w}
    s_mul_i32 {s_t0}, {s_t0}, {300*128}
    v_min_u32 {v_t1}, 59, {v_lane}
    v_lshlrev_b32 {v_t1}, 7, {v_t1}
    ''')
    for i in range(5):
        T(f'buffer_load_dword v{68+i}, {v_t1}, {sWB}, {s_t0} offen\ns_add_u32 {s_t0}, {s_t0}, {60*128}')
        if i == 2: handshake()
T(f'''
s_and_b32 {s_e0}, {s_rb}, 1
s_lshl_b32 {s_e0}, {s_e0}, 2
s_add_u32 {s_e0}, {s_e0}, {s_w}
s_bfe_u32 {s_e1}, {s_rb}, 0x20001
s_mul_i32 {s_t2}, {s_e0}, 160
s_mul_i32 {s_t1}, {s_e1}, {160*1280}
s_add_u32 {s_t2}, {s_t2}, {s_t1}
s_mov_b32 {s_t0}, {(1<<32)//10+1}
''')
for i in range(5):
    T(f'''
    v_add_u32 {v_t1}, {64*i}, {v_lane}
    v_mul_hi_u32 {v_t2}, {v_t1}, {s_t0}
    v_mul_u32_u24 {v_t3}, 10, {v_t2}
    v_sub_u32 {v_t1}, {v_t1}, {v_t3}
    v_mul_u32_u24 {v_t2}, 1280, {v_t2}
    v_lshl_add_u32 {v_t2}, {v_t1}, 4, {v_t2}
    v_add_u32 v{2+i}, {s_t2}, {v_t2}
    ''')
T(f'''
s_mul_i32 {s_mW}, {s_w}, 25600
s_waitcnt lgkmcnt(0)
s_cmp_ge_u32 {s_rb}, 8
s_cselect_b32 s28, s58, s56
s_cselect_b32 s29, s59, s57
''')
wtok = {}
def wo_dma(b):
    T(f's_mov_b32 {s_t3}, {b*32*1280}')
    for i in range(5):
        T(f's_add_u32 m0, {s_mW}, {1024*(5*b+i)}')
        wtok[5 * b + i] = T.vm(f'buffer_load_dwordx4 v{2+i}, {sTMP}, {s_t3} offen lds')
wo_dma(0); wo_dma(1)
T(f'''
v_lshrrev_b32 {v_t1}, 4, {v_lane}
v_bfe_u32 {v_t2}, {v_lane}, 2, 2
v_and_b32 {v_t3}, 3, {v_lane}
v_mul_u32_u24 {v_t3}, 40, {v_t3}
v_add_u32 {v_t3}, {s_mW}, {v_t3}
v_lshl_add_u32 {v_t2}, {v_t1}, 3, {v_t2}
v_mul_u32_u24 {v_t2}, 160, {v_t2}
v_add_u32 v7, {v_t2}, {v_t3}
s_lshr_b32 {s_t0}, {s_rb}, 3
s_lshl_b32 {s_t0}, {s_t0}, 3
s_add_u32 {s_t0}, {s_t0}, {s_e0}
s_lshl_b32 {s_t0}, {s_t0}, 2
s_add_u32 {s_t0}, {s_t0}, {s_e1}
s_mul_i32 {s_stb}, {s_t0}, 25600
v_and_b32 v9, 15, {v_lane}
v_lshlrev_b32 v9, 4, v9
v_mul_u32_u24 v10, 1280, {v_t1}
v_add_u32 v10, v10, v9
v_cmp_eq_u32 vcc, 0, v9
v_lshlrev_b32 {v_t1}, 2, {v_t1}
s_lshl_b32 {s_rot}, {s_rb}, 2
s_add_u32 {s_rot}, {s_rot}, {s_w}
v_cndmask_b32 v11, {v_big}, {v_t1}, vcc
''')
stamp('', T)
setup2(T)
wo_dma(2)
stamp('', T)
for s_ in range(5):
    T.wait(wtok[5 * s_ + 4])
    if s_ == 0 and not STB: handshake()
    for ct in range(5):
        f = 5 * s_ + ct
        for u in range(2):
            T(f'ds_read_b64_tr_b16 {vr(140+4*f+2*u,2)}, v7 offset:{(32*s_+4*u)*160+8*ct}')
    if s_ + 3 < 5: wo_dma(s_ + 3)
    if s_ == 2: poll_issue(T, v_pres, v_zero, sDBG, '0')
    for ct in range(5):
        f = 5 * s_ + ct
        if f % 4 == 0: T(f's_add_u32 {s_t1}, {s_stb}, {WOF + f*1024}')
        tokw = T.vm(f'buffer_store_dwordx4 {vr(140+4*f,4)}, {v_l16}, {sWS}, {s_t1} offen offset:{(f%4)*1024} sc1')
    if s_ == 2: tokw2 = tokw
    if FINE: stamp('', T)
poll_check(T, v_pres, v_zero, sDBG, '0')
stamp('', T)
GW = 224; GA = 48
T(f's_mul_i32 {s_t1}, {s_rot}, {32*1280}')
for j in range(5): T(f'buffer_load_dwordx4 {vr(GW+4*j,4)}, v9, {sWA}, 0 offen offset:{256*j}')
for i in range(8):
    for j in range(5): T(f'buffer_load_dwordx4 {vr(64+20*i+4*j,4)}, v10, {sX}, {s_t1} offen offset:{256*j}')
    T(f's_add_u32 {s_t1}, {s_t1}, {4*1280}')
    if i == 1:
        T.wait(tokw)
        T('s_barrier')
        set_flag(T, v_flag, s_f1, 0)
        stamp('', T)
poll_issue(T, v_pres, v_p1, sWS, s_F1A)
T(f's_lshl_b32 {s_rot}, {s_rot}, 7\ns_add_u32 {s_rot}, {s_rot}, {G_OFF}')
for i in range(8):
    T(f'v_mov_b32 v{GA+i}, 0')
    for k in range(20): T(f'v_dot2c_f32_bf16 v{GA+i}, v{64+20*i+k}, v{GW+k}')
for sh in (8, 4, 2, 1):
    for i in range(8): T(f'v_add_f32_dpp v{GA+i}, v{GA+i}, v{GA+i} row_ror:{sh} row_mask:0xf bank_mask:0xf')
for i in range(8): T(f'v_mul_f32 v{GA+i}, {f32(-math.log2(math.e))}, v{GA+i}')
for i in range(8): T(f'v_exp_f32 v{GA+i}, v{GA+i}')
for i in range(8): T(f'v_add_f32 v{GA+i}, 1.0, v{GA+i}')
for i in range(8): T(f'v_rcp_f32 v{GA+i}, v{GA+i}')
T.l += setup_late()
for i in range(8): tokg = T.vm(f'buffer_store_dword v{GA+i}, v11, {sWS}, {s_rot} offen offset:{16*i} sc1')
stamp('', T)
T.l += mask_far() + zero_pads()
poll_check(T, v_pres, v_p1, sWS, s_F1A)
stamp('', T)
kv, _ = kvq_loads()
for g in kv: T.l += g
for g in wo_loads(0, NWO1): T.l += g
if WT > KV0:
    a_, b_ = wo_touch(); T.l += a_ + b_
T('s_waitcnt vmcnt(0) lgkmcnt(0)\ns_barrier')
T.l += att_pre()
T(qka(0)); T(qkb(0))
T.l += mask_rest()[:8]
T('s_nop 7')
assert nstamp[0] <= nst_join
while nstamp[0] < nst_join: stamp('', T)
T('s_waitcnt lgkmcnt(0)')
T('s_branch L_join')

def undef_check(l, name):
    d = {'v0', 's0', 's1', 's2', 'exec'}; bad = []
    for i in l:
        u = i.uses - d if i.kind not in ('pseudo', 'label', 'none') else set()
        if u: bad.append((sorted(u), i.text))
        d |= i.defs | u
    if bad: print('USE BEFORE DEF in', name, bad)
ib = next(k for k, i in enumerate(S.l) if 'L_spare' in i.text); ij = next(k for k, i in enumerate(S.l) if i.text == 'L_join:')
undef_check(S.l, 'main'); undef_check(S.l[:ib] + T.l + S.l[ij:], 'spare')
S.extend(T); S.extend(tail)
S('L_end:\ns_endpgm')
S.extend(FBK)

XP = opt('xp', 0)
if XP:
    def drop(i):
        if XP & 96 and 's_cbranch_vccnz L_again' in i.text: return True
        if XP & 32 and 'store_dwordx2' in i.text and 's16' in i.uses: return True
        if XP & 128 and 'store' in i.text and 's16' in i.uses and (v_q4 in i.uses or v_qe in i.uses): return True
        if i.kind != 'vm': return False
        t = i.text
        if XP & 1 and s_e2 in i.uses and 'load' in t: return True
        if XP & 2 and 'load' in t and i.uses & {'v%d' % r for r in range(2, 10)} and 's16' in i.uses and 'lds' not in t and i.uses & {'s%d' % r for r in list(range(60, 66)) + list(range(70, 76))} and 'v8' not in i.uses - {None} | set() or False: return True
        if XP & 4 and 'load' in t and 's16' in i.uses and (v_q4 in i.uses or v_qe in i.uses or v_qo in i.uses or v_kb1 in i.uses) and i.uses & {'s60', 's61', 's62', 's63'}: return True
        if XP & 8 and 'store' in t and v_st in i.uses and 's16' in i.uses and i.tok not in (tokA, tokB): return True
        if XP & 16 and 'lds' in t and s_e1 in i.uses and i.tok is not tokKV: return True
        return False
    S.l = [i for i in S.l if not drop(i)]
stats = []
body = finalize(S, stats)
hdr = open('cdna_kernels/%s.s.ref' % NAME).read().split('; Override')[0]
K = NAME + '_kernel'
txt = hdr + f'''; Generated by a hand-written generator script: one persistent workgroup per CU, phases chained by flags in d_ws.
; @launch grid=(256,1,1) block=(256,1,1) lds={LDS_BYTES}
.amdgcn_target "amdgcn-amd-amdhsa--gfx950"
.text
.globl {K}
.p2align 8
.type {K},@function
{K}:
''' + '\n'.join(body) + f'''
.section .rodata,"a"
.p2align 6
.amdhsa_kernel {K}
  .amdhsa_next_free_vgpr 512
  .amdhsa_next_free_sgpr 102
  .amdhsa_accum_offset 256
  .amdhsa_group_segment_fixed_size 0
  .amdhsa_kernarg_size 80
  .amdhsa_user_sgpr_count 2
  .amdhsa_user_sgpr_kernarg_segment_ptr 1
  .amdhsa_system_sgpr_workgroup_id_x 1
  .amdhsa_float_denorm_mode_32 3
.end_amdhsa_kernel
'''
open(OUT, 'w').write(txt)
print('instructions:', len(body), ' nops:', len(stats), sum(s[0] for s in stats), ' overflow slots', over, 'WS_SIZE', WS_SIZE)
if '--nops' in ARGS:
    for s in stats: print(s)
```

```python
import re
REG_RE = re.compile(r'(?<![\w.])([vas])\[(\d+):(\d+)\]|(?<![\w.])([vas])(\d+)(?![\w\[])|(?<![\w.])(vcc|exec|m0)(?:_lo|_hi)?(?![\w])')
TRANS = ('v_exp_', 'v_log_', 'v_rcp_', 'v_rsq_', 'v_sqrt_', 'v_sin_', 'v_cos_')

def regs_of(op):
    out = []
    for m in REG_RE.finditer(op):
        if m.group(1):
            out += [m.group(1) + str(i) for i in range(int(m.group(2)), int(m.group(3)) + 1)]
        elif m.group(4):
            out.append(m.group(4) + m.group(5))
        else:
            out.append(m.group(6))
    return out

def split_ops(s):
    ops, depth, cur = [], 0, ''
    for ch in s:
        if ch in '[(': depth += 1
        if ch in '])': depth -= 1
        if ch == ',' and depth == 0:
            ops.append(cur.strip()); cur = ''
        else:
            cur += ch
    if cur.strip(): ops.append(cur.strip())
    return ops

class Ins:
    __slots__ = ('text', 'mn', 'kind', 'defs', 'uses', 'tok', 'passes', 'srcc', 'srcab', 'wide_data', 'dpp', 'lds')
    def __init__(self, text, tok=None):
        self.text = text; self.tok = tok
        self.defs = set(); self.uses = set(); self.passes = 0; self.srcc = (); self.srcab = set(); self.wide_data = set(); self.dpp = False; self.lds = False
        t = text.split(';')[0].strip()
        if not t or t.startswith('.'):
            self.kind = 'none'; self.mn = ''; return
        if t.endswith(':'):
            self.kind = 'label'; self.mn = ''; return
        if t.startswith('@'):
            self.kind = 'pseudo'; self.mn = t.split()[0]; return
        p = t.split(None, 1); mn = p[0]; self.mn = mn
        ops = split_ops(p[1]) if len(p) > 1 else []
        R = [regs_of(o) for o in ops]
        allr = lambda l: set(x for r in l for x in r)
        if mn.startswith('v_mfma'):
            self.kind = 'mfma'; self.defs = set(R[0]); self.uses = allr(R[1:]); self.srcc = tuple(R[3]); self.srcab = set(R[1]) | set(R[2])
            self.passes = 8 if '32x32' in mn else 4
        elif mn.startswith('v_'):
            self.kind = 'trans' if mn.startswith(TRANS) else 'valu'
            self.dpp = ('row_' in t or 'quad_perm' in t or 'wave_' in t)
            if mn.startswith('v_permlane') and 'swap' in mn:
                self.defs = allr(R[:2]); self.uses = allr(R[:2])
            elif mn.startswith(('v_add_co', 'v_sub_co', 'v_addc_co', 'v_subb_co')):
                self.defs = allr(R[:2]); self.uses = allr(R[2:])
            elif mn == 'v_nop':
                pass
            else:
                self.defs = set(R[0]); self.uses = allr(R[1:])
                if mn.startswith(('v_fmac', 'v_dot2c', 'v_writelane')) or self.dpp: self.uses |= self.defs
            self.uses.add('exec')
        elif mn.startswith('ds_'):
            self.kind = 'ds'
            if mn.startswith(('ds_read', 'ds_bpermute', 'ds_swizzle')):
                self.defs = set(R[0]); self.uses = allr(R[1:])
            else:
                self.uses = allr(R)
        elif mn.startswith(('buffer_', 'global_')):
            self.kind = 'vm'
            if mn.startswith(('buffer_inv', 'buffer_wbl2')):
                pass
            elif 'load' in mn:
                if re.search(r'\blds\b', t):
                    self.lds = True; self.uses = allr(R) | {'m0'}
                else:
                    self.defs = set(R[0]); self.uses = allr(R[1:])
            else:
                self.uses = allr(R)
                if 'x4' in mn or 'x3' in mn:
                    self.wide_data = set(R[0] if mn.startswith('buffer_') else R[1])
        elif mn.startswith(('s_load', 's_memtime', 's_memrealtime', 's_buffer_load')):
            self.kind = 'smem'; self.defs = set(R[0]); self.uses = allr(R[1:])
        elif mn == 's_waitcnt':
            self.kind = 'wait'
        elif mn == 's_nop':
            self.kind = 'nop'
        elif mn.startswith(('s_cbranch', 's_branch', 's_endpgm', 's_setpc', 's_barrier', 's_sleep', 's_setprio')):
            self.kind = 'ctl'
        elif mn.startswith('s_'):
            self.kind = 'salu'
            if mn.startswith(('s_cmp', 's_bitcmp')):
                self.uses = allr(R)
            else:
                self.defs = set(R[0]); self.uses = allr(R[1:])
                if 'saveexec' in mn: self.defs.add('exec')
        else:
            raise ValueError('unknown instr: ' + text)

class Tok:
    pass

class Stream:
    def __init__(self): self.l = []
    def __call__(self, s, tok=None):
        lines = [x.strip() for x in s.strip('\n').split('\n')]
        lines = [x for x in lines if x]
        for x in lines:
            self.l.append(Ins(x, tok))
        return self
    def vm(self, s):
        t = Tok(); self.l.append(Ins(s.strip(), t)); return t
    def wait(self, *toks):
        i = Ins('@wait'); i.tok = toks; self.l.append(i)
    def use(self, regs):
        i = Ins('@use'); i.uses = set(regs); self.l.append(i)
    def extend(self, o):
        self.l += o.l if isinstance(o, Stream) else o
    def drain(self):
        self('s_waitcnt vmcnt(0) lgkmcnt(0)')

def parse_wait(text):
    vm = re.search(r'vmcnt\((\d+)\)', text); lg = re.search(r'lgkmcnt\((\d+)\)', text)
    return (int(vm.group(1)) if vm else None, int(lg.group(1)) if lg else None)

def resolve_waits(l):
    out = []; vq = []; dq = []; smem = []
    for ins in l:
        nv = nd = None
        def need(q, pred):
            for k in range(len(q) - 1, -1, -1):
                if pred(q[k]): return len(q) - 1 - k
            return None
        if ins.kind == 'pseudo':
            if ins.mn == '@wait':
                toks = ins.tok
                nv = need(vq, lambda o: o.tok in toks); nd = need(dq, lambda o: o.tok in toks)
            elif ins.mn == '@use':
                touched = ins.uses
                nv = need(vq, lambda o: o.defs & touched); nd = need(dq, lambda o: o.defs & touched)
            elif ins.mn == '@reset':
                vq.clear(); dq.clear(); smem.clear(); out.append(ins); continue
            else:
                out.append(ins); continue
        elif ins.kind == 'wait':
            a, b = parse_wait(ins.text)
            if a is not None: del vq[:max(0, len(vq) - a)]
            if b is not None:
                if b == 0: smem.clear()
                del dq[:max(0, len(dq) - b)]
            out.append(ins); continue
        elif ins.kind in ('none', 'label', 'nop'):
            out.append(ins); continue
        else:
            touched = ins.uses | ins.defs
            nv = need(vq, lambda o: o.defs & touched); nd = need(dq, lambda o: o.defs & touched)
            if any(o.defs & touched for o in smem): nd = 0
        if nd is not None and smem: nd = 0
        if nv is not None or nd is not None:
            w = 's_waitcnt'
            if nv is not None:
                nv = min(nv, 63); w += ' vmcnt(%d)' % nv; del vq[:max(0, len(vq) - nv)]
            if nd is not None:
                nd = min(nd, 15); w += ' lgkmcnt(%d)' % nd; del dq[:max(0, len(dq) - nd)]
                if nd == 0: smem.clear()
            out.append(Ins(w))
        if ins.kind == 'pseudo': continue
        out.append(ins)
        if ins.kind == 'vm': vq.append(ins)
        elif ins.kind == 'ds': dq.append(ins)
        elif ins.kind == 'smem': smem.append(ins)
    return out

def is_sg(r): return r[0] == 's' or r == 'vcc'
def required(p, c):
    n = 0
    pv = p.kind in ('valu', 'trans'); cv = c.kind in ('valu', 'trans')
    if pv:
        vd = {r for r in p.defs if r[0] in 'va' and r != 'vcc'}
        sd = {r for r in p.defs if is_sg(r)}
        if c.kind == 'mfma' and vd & c.uses: n = max(n, 2)
        if cv and vd & c.uses:
            if c.mn.startswith(('v_readlane', 'v_readfirstlane')): n = max(n, 1)
            if c.mn.startswith('v_permlane') or c.dpp: n = max(n, 2)
            if p.kind == 'trans' and c.kind != 'trans': n = max(n, 1)
            if p.mn.startswith('v_dot'):
                n = max(n, 0 if (c.mn == p.mn and not (vd & (c.uses - c.defs))) else 3)
        if cv and p.mn.startswith('v_dot') and vd & c.defs and c.mn != p.mn: n = max(n, 3)
        if sd & c.uses:
            if cv: n = max(n, 4 if c.mn.startswith(('v_readlane', 'v_writelane')) else 2)
            if c.kind == 'vm': n = max(n, 5)
        if 'exec' in p.defs: n = max(n, 5)
    elif p.kind == 'mfma':
        big = {4: 8, 8: 12}[p.passes]
        if c.kind == 'mfma':
            if p.defs & c.srcab: n = max(n, big)
            if p.defs & set(c.srcc):
                if not (set(c.srcc) == p.defs and c.passes == p.passes): n = max(n, big - 2)
            elif p.defs & c.defs and not (p.defs == c.defs and c.passes == p.passes): n = max(n, big - 2)
        elif c.kind in ('valu', 'trans', 'vm', 'ds'):
            if p.defs & (c.uses | c.defs): n = max(n, big)
            if cv and set(p.srcc) & c.defs: n = max(n, {4: 3, 8: 7}[p.passes])
    elif p.kind == 'salu':
        if 'm0' in p.defs and c.kind == 'vm' and c.lds: n = max(n, 1)
        if 'm0' in p.defs and c.mn.startswith(('v_writelane', 'v_readlane')) and 'm0' in c.uses: n = max(n, 1)
    elif p.kind == 'vm':
        if p.wide_data & c.defs: n = max(n, 2 if cv or c.kind == 'mfma' else 1)
    return n

def pad_hazards(l, stats=None):
    out = []
    for ins in l:
        if ins.kind in ('none', 'label', 'pseudo'):
            out.append(ins); continue
        dist = 0; need = 0
        for p in reversed(out):
            if p.kind in ('none', 'label', 'pseudo'): continue
            if dist >= 12: break
            r = required(p, ins)
            need = max(need, r - dist)
            dist += (int(p.text.split()[1]) + 1) if p.kind == 'nop' else 1
        if need > 0:
            out.append(Ins('s_nop %d' % (need - 1)))
            if stats is not None: stats.append((need, ins.text))
        out.append(ins)
    return out

def finalize(stream, stats=None):
    l = resolve_waits(stream.l)
    l = pad_hazards(l, stats)
    return [('' if i.kind == 'label' else '    ') + i.text for i in l if i.kind != 'pseudo']

def weave(slots, side, lo=0, hi=None, per=None):
    items = side.l if isinstance(side, Stream) else side
    if hi is None: hi = len(slots)
    n = hi - lo; m = len(items)
    for k, it in enumerate(items):
        s = lo + (k * n // m if per is None else k // per)
        assert s < hi, "side stream does not fit"
        if isinstance(it, list): slots[s] += it
        else: slots[s].append(it)

def atomize(l):
    out = []
    for i in l:
        if i.mn.startswith('s_cselect'): out[-1].append(i)
        else: out.append([i])
    return out

COST = {'valu': 1, 'trans': 2, 'salu': 1, 'ds': 1, 'vm': 2.5, 'ctl': 1, 'wait': 1, 'nop': 1, 'smem': 1}
class Item:
    def __init__(self, ins, lo, hi, sep=False):
        self.ins = ins if isinstance(ins, list) else [ins]
        self.lo = lo; self.hi = hi; self.sep = sep
        self.cost = sum(COST.get(i.kind, 0) if isinstance(i, Ins) else 0 for i in self.ins)
        self.cost += sum(1 for i in self.ins if isinstance(i, Ins) and i.mn == '@wait')
        self.vm = any(isinstance(i, Ins) and i.kind == 'vm' for i in self.ins)
        self.ds = any(isinstance(i, Ins) and i.kind == 'ds' for i in self.ins)
def paced(groups, a, b, slack=3):
    out = []; m = len(groups); prev = None
    for k, g in enumerate(groups):
        g = g if isinstance(g, list) else [g]
        t = a + k * (b - a) // m
        sep = bool(prev) and g[0].kind == 'vm' and any(p.defs & (g[0].uses - {'exec'}) for p in prev)
        out.append(Item(g, t, t + slack, sep)); prev = g
    return out
def asap(groups, a, b):
    out = paced(groups, a, b, 0)
    for it in out: it.lo = a
    return out
def schedule(n, cap, streams, report=None, one_ds=False):
    gaps = [[] for _ in range(n)]; pos = [0] * len(streams); lastgap = [-1] * len(streams); over = 0
    for k in range(n):
        used = 0; nvm = 0; nds = 0
        while True:
            best = None
            for si, st in enumerate(streams):
                if pos[si] >= len(st): continue
                it = st[pos[si]]
                if it.lo > k and k < n - 1: continue
                dl = min(x.hi for x in st[pos[si]:pos[si] + 4])
                forced = dl <= k or k == n - 1
                if it.sep and lastgap[si] == k and k < n - 1 and it.hi > k - 1: continue
                if not forced and (used + it.cost > cap[k] or (it.vm and nvm) or (one_ds and it.ds and nds)): continue
                if best is None or dl < best[0]: best = (dl, si)
            if best is None: break
            si = best[1]; it = streams[si][pos[si]]
            gaps[k] += it.ins; used += it.cost; nvm += it.vm; nds += it.ds; pos[si] += 1; lastgap[si] = k
        over += max(0, used - cap[k])
        if report is not None: report.append(used - cap[k])
    return gaps, over

def mem_first(l):
    out = []
    for it in l:
        k = len(out)
        if isinstance(it, Ins) and it.kind in ('ds', 'vm'):
            while k > 0:
                p = out[k - 1]
                if not isinstance(p, Ins) or p.kind not in ('valu', 'trans', 'salu'): break
                if p.defs & (it.uses | it.defs) or it.defs & p.uses or 'vcc' in p.defs: break
                k -= 1
        out.insert(k, it)
    return out
```

```python
import sys, math, struct
from fw import *

NAME = "gated_mix__sliding_block__sliding_local_dilated__prompt"
ARGS = sys.argv[1:]
STAMPS = '--stamps' in ARGS
FINE = '--fine' in ARGS
FINE2 = '--fine2' in ARGS
def opt(name, default):
    for a in ARGS:
        if a.startswith('--' + name + '='): return int(a.split('=')[1])
    return default
OUT = [a for a in ARGS if not a.startswith('--')]
OUT = OUT[0] if OUT else 'k.s'

GRP = 2048 * 16
QKV = [0, 240 * GRP]
WOF = 480 * GRP
G_OFF = WOF + 64 * 25600
FLG = G_OFF + 8192
F1 = [FLG, FLG + 32768]
WS_SIZE = FLG + 65536
STAMP_OFF = WS_SIZE
BIG = 0x40000000
L_X = 65536
GS = 8192 + 64
L_KA = L_X + 16384; L_VA = L_KA + 3 * GS
L_VB = 131072 + 512; VBW = 4608
L_ONE = L_VB + 4 * VBW + ((L_VA + 3 * GS) % 256)
L_TAB = L_VB + 4 * VBW + 8192 + 256
LDS_BYTES = 160 * 1024
assert L_TAB + 1024 <= LDS_BYTES and L_VA + 3 * GS <= L_VB

def f32(x): return '0x%08x' % struct.unpack('<I', struct.pack('<f', x))[0]
QSCALE = (20 ** -0.5) * math.log2(math.e)
NEGINF = '0xff800000'

sX, sWA, sWB, sWS, sOUT, sDBG, sTMP = 's[4:7]', 's[8:11]', 's[12:15]', 's[16:19]', 's[20:23]', 's[24:27]', 's[28:31]'
s_xcd, s_t, s_rb, s_cb, s_w = 's32', 's33', 's34', 's35', 's36'
s_t0, s_t1, s_t2, s_t3 = 's37', 's38', 's39', 's40'
s_stb, s_scale, s_inv, s_mW, s_mX = 's41', 's42', 's43', 's44', 's45'
s_hd, s_r2, s_so, s_q0 = 's46', 's47', 's48', 's49'
s_cnt, s_f1, s_tag, s_rnd, s_k1, s_wob = 's50', 's51', 's52', 's53', 's54', 's55'
SW0, SX0 = 60, 70
ST0 = 80
s_bF, s_bS, s_dF, s_dS, s_mK, s_mV, s_gb, s_rot = 's84', 's85', 's86', 's87', 's88', 's89', 's90', 's91'
s_e0, s_e1, s_e2, s_e3 = 's92', 's93', 's94', 's95'
s_F1A, s_F1B, s_F2, s_q0z, s_R, s_C = 's96', 's97', 's98', 's99', 's100', 's101'
ROWMAP = opt('rowmap', 0); QRND = opt('qrnd', 0)
v_lane = 'v1'
VWD, VXD, VWR, VXR = 2, 6, 10, 14
VWX = [14, 15, 42, 44]
v_dma, v_gad, v_kb0, v_k1 = 'v6', 'v7', 'v8', 'v9'
v_st, v_flag, v_one, v_pres, v_l16, v_big = 'v16', 'v17', 'v18', 'v19', 'v20', 'v21'
v_t1, v_t2, v_t3, v_t4, v_tmp, v_zero = 'v22', 'v23', 'v24', 'v25', 'v26', 'v27'
(v_p1, v_p2, v_p3, v_q4, v_qe, v_qo, v_k0, v_v, v_vb, v_vh, v_kb1, v_halo, v_mA, v_mB0, v_flagw, v_o4, v_o2, v_h, v_r, v_tabc) = ['v%d' % i for i in range(28, 48)]
WRING = 48
ACC = [64, 128]
XV = 192
E0, P0 = 48, 56
SB = [64, 192]; M_FAR, M_DIAG = 80, 208; QA0, QA1 = 96, 104; OA = [224, 240]
QB0, QB1, KB0 = 128, 136, 144
v_g = ['v46', 'v47']
MB_DIAG, MB_PREV, MB_PREV0 = 160, 168, 176
SP = [64, 192]; SD = [80, 208]; OB = [96, 112]
V4, V2, VRW, v_rr, v_out, v_p4 = 2, 6, 10, 'v13', 'v14', 'v15'
AC3 = 16; OF = [[128, 144, 160, 176, 224], [96, 112, 192, 208, 240]]; RED = 128
AK0, AK1, AV, AKB1 = 200, 208, 216, 232
VB = 200

def vr(b, n): return 'v[%d:%d]' % (b, b + n - 1)
def ar(b, n): return 'a[%d:%d]' % (b, b + n - 1)
mm = 'v_mfma_f32_32x32x16_bf16'

S = Stream()
tail = Stream()
nstamp = [0]; stamp_names = []
AMP = [a.split('=')[1].split(',') for a in ARGS if a.startswith('--amp=')]
AMP = AMP[0] if AMP else None
def stamp(name='', st=None):
    if AMP and name in AMP and st is None: S('s_memrealtime s[%d:%d]' % (ST0 + 2 * AMP.index(name), ST0 + 2 * AMP.index(name) + 1))
    if STAMPS:
        st = st or S
        k = nstamp[0]
        if k == 1:
            for i in range(56, 64): st('v_writelane_b32 v0, 0, %d' % i)
        if k > 0: st('v_writelane_b32 v0, s%d, %d' % (ST0 + 2 * ((k - 1) & 1), k - 1))
        st('s_memrealtime s[%d:%d]' % (ST0 + 2 * (k & 1), ST0 + 2 * (k & 1) + 1))
        if '--clk' in ARGS and st is S and 3 <= k <= 24:
            if k > 3: st('v_writelane_b32 v0, s%d, %d' % (28 + 2 * ((k - 1) & 1), 30 + k - 1))
            st('s_memtime s[%d:%d]' % (28 + 2 * (k & 1), 29 + 2 * (k & 1)))
    stamp_names.append(name)
    nstamp[0] += 1
def st2(n):
    if FINE2: stamp(n)
nlab = [0]
def lab(p):
    nlab[0] += 1
    return 'L_%s_%d' % (p, nlab[0])

PIDX = {v_zero: 0, v_p1: 1, v_p2: 2, v_p3: 3, v_p4: 4}
def poll_issue(st, res, adr, srd, soff, off=0):
    st('buffer_load_dword %s, %s, %s, %s offen offset:%d sc1' % (res, adr, srd, soff, off))
def poll_check(st, res, adr, srd, soff, off=0):
    l = lab('poll'); b = lab('back')
    st('v_cmp_ne_u32 vcc, 1, %s' % res)
    st('s_cbranch_vccnz %s' % l)
    st(b + ':')
    tail('@reset')
    tail(f'''
    {l}:
    s_mov_b32 {s_cnt}, 0
    {l}_a:
    buffer_load_dword {res}, {adr}, {srd}, {soff} offen offset:{off} sc1
    s_add_u32 {s_cnt}, {s_cnt}, 1
    {('v_writelane_b32 v0, %s, %d' % (s_cnt, 56 + PIDX[adr] + off // 4)) if STAMPS else ''}
    s_waitcnt vmcnt(0)
    v_cmp_ne_u32 vcc, 1, {res}
    s_cbranch_vccz {b}
    s_cmp_lt_u32 {s_cnt}, 0x40000
    s_cbranch_scc1 {l}_a
    s_branch {b}
    ''')
def poll(st, res, adr, srd, soff):
    poll_issue(st, res, adr, srd, soff); poll_check(st, res, adr, srd, soff)
def set_flag(st, vf, base, off):
    st(f'buffer_store_dword {v_one}, {vf}, {sWS}, {base} offen offset:{off} sc1')
def mk(fn, *a):
    st = Stream(); fn(st, *a); return st.l
def L(txt):
    st = Stream(); st(txt); return st.l

def setup2(st):
    st(f'''
    s_mov_b32 s14, {640*3840}
    s_mov_b32 s15, 0x20000
    s_mov_b32 s22, {2048*1280}
    s_mov_b32 s23, 0x20000
    s_mov_b32 {s_F1A}, {F1[0]}
    s_mov_b32 {s_F1B}, {F1[1]}
    s_and_b32 {s_C}, {s_t}, 7
    s_lshr_b32 {s_t2}, {s_t}, 3
    s_lshl_b32 {s_t0}, {s_xcd}, 2
    s_add_u32 {s_R}, {s_t0}, {s_t2}
    s_mov_b32 {s_r2}, {s_xcd if ROWMAP else s_C}
    s_mov_b32 {s_hd}, {s_t if ROWMAP else s_R}
    ''')
    if opt('map3', 1) == 1:
        st(f'''
        s_lshr_b32 {s_R}, {s_xcd}, 1
        s_lshl_b32 {s_R}, {s_R}, 3
        s_lshr_b32 {s_t0}, {s_t}, 2
        s_add_u32 {s_R}, {s_R}, {s_t0}
        s_and_b32 {s_C}, {s_xcd}, 1
        s_lshl_b32 {s_C}, {s_C}, 2
        s_and_b32 {s_t0}, {s_t}, 3
        s_add_u32 {s_C}, {s_C}, {s_t0}
        ''')
    st(f'''
    s_lshl_b32 {s_q0}, {s_r2}, 8
    s_lshl_b32 {s_t0}, {s_w}, 6
    s_add_u32 {s_q0}, {s_q0}, {s_t0}
    s_mul_i32 {s_e0}, {s_hd}, 5
    s_lshr_b32 {s_e0}, {s_e0}, 1
    s_and_b32 {s_t3}, {s_hd}, 1
    s_add_u32 {s_e1}, {s_e0}, {s_t3}
    s_lshl_b32 {s_so}, {s_t3}, 3
    s_lshl_b32 {s_t3}, {s_t3}, 1
    s_add_u32 {s_e2}, {s_e0}, 2
    s_sub_u32 {s_e2}, {s_e2}, {s_t3}
    s_lshl_b32 {s_e1}, {s_e1}, 15
    s_lshl_b32 {s_e2}, {s_e2}, 15
    s_lshl_b32 {s_t0}, {s_q0}, 4
    s_add_u32 {s_bF}, {s_e1}, {s_t0}
    s_add_u32 {s_bS}, {s_e2}, {s_t0}
    s_lshl_b32 {s_e3}, {s_r2}, 1
    s_add_u32 {s_e3}, {s_e3}, {s_w}
    s_lshl_b32 {s_t0}, {s_e3}, 11
    s_add_u32 {s_dF}, {s_e1}, {s_t0}
    s_add_u32 {s_dS}, {s_e2}, {s_t0}
    s_lshl_b32 {s_mK}, {s_w}, 11
    s_mul_i32 {s_mV}, {s_w}, {VBW}
    s_add_u32 {s_mV}, {s_mV}, {L_VB}
    s_lshl_b32 {s_gb}, {s_q0}, 2
    s_add_u32 {s_gb}, {s_gb}, {G_OFF}
    s_lshl_b32 {s_f1}, {s_rb}, 11
    s_lshl_b32 {s_t0}, {s_cb}, 7
    s_add_u32 {s_f1}, {s_f1}, {s_t0}
    s_add_u32 {s_f1}, {s_f1}, {F1[0]}
    s_lshl_b32 {s_wob}, {s_C}, 2
    s_add_u32 {s_wob}, {s_wob}, {s_w}
    s_mul_i32 {s_wob}, {s_wob}, 25600
    v_and_b32 {v_zero}, 60, {v_lane}
    v_lshrrev_b32 {v_h}, 5, {v_lane}
    v_and_b32 {v_r}, 31, {v_lane}
    v_bfe_u32 {v_t1}, {v_lane}, 2, 1
    v_lshl_add_u32 {v_t1}, {v_t1}, 1, {s_e0}
    v_lshrrev_b32 {v_t1}, 4, {v_t1}
    v_and_b32 {v_t2}, 3, {v_lane}
    v_min_u32 {v_t3}, 2, {v_t2}
    v_mad_u32_u24 {v_t4}, {v_t3}, 5, {v_t1}
    v_mad_u32_u24 {v_tmp}, {v_t2}, 5, {v_t1}
    v_min_u32 {v_tmp}, 15, {v_tmp}
    s_sub_u32 {s_t1}, {s_e3}, 2
    s_max_i32 {s_t1}, {s_t1}, 0
    s_lshl_b32 {s_t1}, {s_t1}, 11
    s_andn2_b32 {s_t2}, {s_q0}, 127
    s_lshl_b32 {s_t2}, {s_t2}, 4
    v_cmp_eq_u32 vcc, 0, {v_t2}
    v_mov_b32 {v_t1}, {s_t1}
    v_mov_b32 {v_t3}, {s_t2}
    v_cndmask_b32 {v_t1}, {v_t1}, {v_t3}, vcc
    v_lshl_add_u32 {v_p1}, {v_t4}, 7, {v_t1}
    s_sub_u32 {s_t1}, {s_q0}, 32
    s_max_i32 {s_t1}, {s_t1}, 0
    s_andn2_b32 {s_t1}, {s_t1}, 127
    s_lshl_b32 {s_t1}, {s_t1}, 4
    v_and_b32 {v_t2}, 8, {v_lane}
    v_cmp_eq_u32 vcc, 0, {v_t2}
    v_mov_b32 {v_t1}, {s_t1}
    v_and_b32 {v_t2}, 1, {v_lane}
    v_cndmask_b32 {v_t1}, {v_t1}, {v_t3}, vcc
    v_lshl_add_u32 {v_p3}, {v_tmp}, 7, {v_t1}
    v_cmp_gt_u32 s[38:39], 32, {v_lane}
    s_lshr_b32 {s_t0}, {s_R}, 1
    s_lshl_b32 {s_t0}, {s_t0}, 4
    s_add_u32 {s_t0}, {s_t0}, {s_w}
    v_add_lshl_u32 {v_t1}, {v_t2}, {s_t0}, 7
    v_cndmask_b32 {v_p3}, {v_t1}, {v_p3}, s[38:39]
    s_lshl_b32 {s_t0}, {s_w}, 1
    s_lshr_b32 {s_t1}, {s_C}, 2
    s_add_u32 {s_t0}, {s_t0}, {s_t1}
    s_lshl_b32 {s_t0}, {s_t0}, 11
    s_add_u32 {s_t0}, {s_t0}, {15*128}
    v_lshl_add_u32 {v_p2}, {v_t2}, 14, {s_t0}
    v_cndmask_b32 {v_p1}, {v_p2}, {v_p1}, vcc
    ''')
    st(f'''
    v_lshlrev_b32 {v_q4}, 15, {v_h}
    v_lshl_add_u32 {v_q4}, {v_r}, 4, {v_q4}
    v_cmp_eq_u32 vcc, 0, {v_h}
    v_lshl_add_u32 {v_t1}, {v_r}, 4, {s_so}
    s_cmp_eq_u32 {s_q0}, 0
    s_cselect_b32 {s_q0z}, {BIG}, 0
    v_cndmask_b32 {v_qe}, {v_big}, {v_t1}, vcc
    v_cndmask_b32 {v_qo}, {v_t1}, {v_big}, vcc
    v_mov_b32 {v_t2}, {s_q0z}
    v_cndmask_b32 {v_t2}, 0, {v_t2}, vcc
    v_add3_u32 {v_kb1}, {v_t2}, {v_l16}, {s_so}
    v_and_b32 {v_t2}, 15, {v_lane}
    v_mov_b32 {v_o4}, 0x10000
    v_lshrrev_b32 {v_t1}, 4, {v_lane}
    v_lshl_add_u32 {v_t3}, {v_t1}, 15, {s_bF}
    v_cmp_eq_u32 vcc, 2, {v_t1}
    v_mov_b32 {v_t4}, {s_bS}
    s_add_u32 {s_t3}, {s_q0z}, {QKV[1] + 160*GRP - 256}
    v_cndmask_b32 {v_t3}, {v_t3}, {v_t4}, vcc
    v_cmp_eq_u32 vcc, 3, {v_t1}
    v_lshl_add_u32 {v_t3}, {v_t2}, 4, {v_t3}
    v_add_u32 {v_t3}, {s_t3}, {v_t3}
    v_cndmask_b32 {v_halo}, {v_t3}, {v_big}, vcc
    ''')
    st(f'''
    s_lshl_b32 {s_t0}, {s_w}, 10
    v_mul_u32_u24 {v_t1}, {GS}, {v_h}
    v_lshl_add_u32 {v_t1}, {v_r}, 4, {v_t1}
    s_add_u32 {s_t1}, {s_t0}, {L_KA}
    v_add_u32 {v_k0}, {s_t1}, {v_t1}
    s_add_u32 {s_k1}, {s_t0}, {L_KA + 2*GS}
    s_add_u32 {s_k1}, {s_k1}, {s_so}
    v_bfe_u32 {v_t1}, {v_lane}, 2, 2
    v_lshl_add_u32 {v_t1}, {v_h}, 2, {v_t1}
    v_lshlrev_b32 {v_t1}, 4, {v_t1}
    v_and_b32 {v_pres}, 16, {v_lane}
    v_cmp_eq_u32 vcc, 0, {v_pres}
    v_and_b32 {v_t2}, 1, {v_lane}
    v_bfe_u32 {v_t3}, {v_lane}, 1, 1
    v_add_u32 {v_t4}, 2, {v_t3}
    v_lshlrev_b32 {v_t3}, 3, {v_t3}
    v_mov_b32 {v_tmp}, {s_so}
    v_cndmask_b32 {v_t2}, {v_t4}, {v_t2}, vcc
    v_cndmask_b32 {v_t3}, {v_tmp}, {v_t3}, vcc
    v_cmp_eq_u32 vcc, 3, {v_t2}
    v_add_u32 {v_t1}, {v_t1}, {v_t3}
    s_add_u32 {s_t1}, {s_t0}, {L_VA}
    v_mul_u32_u24 {v_t3}, {GS}, {v_t2}
    v_add3_u32 {v_v}, {v_t1}, {v_t3}, {s_t1}
    v_mul_u32_u24 {v_t3}, 1088, {v_t2}
    v_add3_u32 {v_vb}, {v_t1}, {v_t3}, {s_mV}
    s_add_u32 {s_t1}, {s_mV}, {3*1088}
    v_lshlrev_b32 {v_t3}, 8, {v_t2}
    v_add3_u32 {v_vh}, {v_t1}, {v_t3}, {s_t1}
    s_add_u32 {s_t1}, {s_t0}, {L_ONE}
    v_add_u32 {v_t3}, {s_t1}, {v_t1}
    v_add_u32 {v_t1}, {L_ONE + 4096}, {v_t1}
    v_cndmask_b32 {v_v}, {v_v}, {v_t3}, vcc
    v_cndmask_b32 {v_vb}, {v_vb}, {v_t1}, vcc
    v_cndmask_b32 {v_vh}, {v_vh}, {v_t1}, vcc
    ''')
    st(f'''
    v_lshlrev_b32 {v_t1}, 2, {v_h}
    v_sub_u32 {v_t1}, {v_t1}, {v_r}
    v_lshlrev_b32 {v_t1}, 2, {v_t1}
    v_add_u32 {v_mA}, {L_TAB + 128}, {v_t1}
    s_cmp_eq_u32 {s_q0}, 0
    s_cselect_b64 vcc, -1, 0
    v_mov_b32 {v_t1}, {L_TAB + 4*64}
    v_cndmask_b32 {v_mB0}, {v_mA}, {v_t1}, vcc
    ''')
def setup_lds(st):
    st(f'''
    s_and_b32 {s_cnt}, {s_xcd if ROWMAP else s_t}, 7
    s_lshl_b32 {s_cnt}, {s_cnt}, 1
    s_add_u32 {s_cnt}, {s_cnt}, {s_w}
    s_cmp_ge_u32 {s_cnt}, 2
    s_cselect_b32 {s_inv}, 0, {BIG}
    s_cselect_b32 {s_cnt}, 0x3f803f80, 0
    v_mov_b32 v128, {s_cnt}
    v_mov_b32 v129, {s_cnt}
    v_mov_b32 v130, {s_cnt}
    v_mov_b32 v131, {s_cnt}
    s_lshl_b32 {s_cnt}, {s_w}, 11
    s_add_u32 {s_cnt}, {s_cnt}, {L_ONE}
    v_add_u32 v132, {s_cnt}, {v_l16}
    ds_write_b128 v132, v[128:131]
    ds_write_b128 v132, v[128:131] offset:1024
    ''')
    mk_ = [0, 0, 0, 0]
    for e in range(256):
        ok = (e - 32 <= 0) if e < 64 else (e - 96 > 0) if e < 128 else (0 <= 191 - e <= 14 and (191 - e) % 2 == 0)
        if ok: mk_[e >> 6] |= 1 << (e & 63)
    assert mk_[3] == 0 and mk_[1] & 0xffffffff == 0 and mk_[2] & 0xffffffff == 0
    st(f'''
    s_cmp_eq_u32 {s_w}, 0
    s_cselect_b32 s58, 0x{mk_[0] & 0xffffffff:x}, 0
    s_cselect_b32 s59, 0x{mk_[0] >> 32:x}, 0
    s_cmp_eq_u32 {s_w}, 1
    s_cselect_b32 s59, 0x{mk_[1] >> 32:x}, s59
    s_cmp_eq_u32 {s_w}, 2
    s_cselect_b32 s59, 0x{mk_[2] >> 32:x}, s59
    v_mov_b32 v138, {NEGINF}
    s_lshl_b32 {s_cnt}, {s_w}, 8
    s_add_u32 {s_cnt}, {s_cnt}, {L_TAB}
    v_cndmask_b32 v138, v138, 0, s[58:59]
    v_lshl_add_u32 v139, {v_lane}, 2, {s_cnt}
    ds_write_b32 v139, v138
    ''')
def setup_late():
    return L(f'''
    v_add_u32 {v_dma}, {s_inv}, {v_l16}
    v_lshlrev_b32 {v_gad}, 2, {v_r}
    v_add_u32 {v_kb0}, {s_q0z}, {v_q4}
    v_add_u32 {v_k1}, {s_k1}, {v_l16}
    ''')
def zero_pads():
    return L('\n'.join(f'v_accvgpr_write_b32 a{b}, 0' for b in (AK1 + 2, AK1 + 3, AK1 + 6, AK1 + 7, AKB1 + 2, AKB1 + 3, AKB1 + 6, AKB1 + 7))
             + f'\nv_mov_b32 v{QA1+8}, 0\nv_mov_b32 v{QA1+9}, 0')

def mask_reads(reg, adr, base, a0=0):
    l = []
    for a in range(a0, 4):
        for b in (0, 2):
            k = base + 8 * a + b
            l.append(Ins(f'ds_read2_b32 {vr(reg+4*a+b,2)}, {adr} offset0:{k} offset1:{k+1}'))
    return l
def mask_far(): return mask_reads(M_FAR, v_mA, 64)
def mask_rest(): return mask_reads(M_DIAG, v_mA, 0) + mask_reads(MB_DIAG, v_mA, 159) + mask_reads(MB_PREV, v_mA, 127, 2) + mask_reads(MB_PREV0, v_mB0, 127, 2)

def kvq_loads():
    g = []
    for ty in (1, 2):
        for gi in range(3):
            g.append(L(f's_add_u32 m0, {s_mK}, {(L_KA if ty == 1 else L_VA) + gi*GS}\n'
                       f's_add_u32 {s_e1}, {s_dS if gi == 2 else s_dF}, {QKV[0] + (80*ty + (gi if gi < 2 else 0))*GRP - 4096}'))
            g.append(L(f'buffer_load_dwordx4 {v_dma}, {sWS}, {s_e1} offen sc1 lds'))
            st = Stream()
            tok = st.vm(f'buffer_load_dwordx4 {v_dma}, {sWS}, {s_e1} offen offset:1024 sc1 lds')
            g.append(st.l)
    for x in (f'buffer_load_dwordx4 {vr(QA0,4)}, {v_q4}, {sWS}, {s_bF} offen sc1',
              f'buffer_load_dwordx2 {vr(QA1,2)}, {v_qe}, {sWS}, {s_bS} offen sc1',
              f'buffer_load_dwordx2 {vr(QA1+2,2)}, {v_qo}, {sWS}, {s_bS} offen sc1',
              f'buffer_load_dwordx4 {vr(QA0+4,4)}, {v_q4}, {sWS}, {s_bF} offen offset:512 sc1',
              f'buffer_load_dwordx2 {vr(QA1+4,2)}, {v_qe}, {sWS}, {s_bS} offen offset:512 sc1',
              f'buffer_load_dwordx2 {vr(QA1+6,2)}, {v_qo}, {sWS}, {s_bS} offen offset:512 sc1'):
        g.append([Ins(x)])
    return g, tok
def wo_loads(f0, f1, adr=v_l16):
    g = []
    for F in range(f0, f1):
        br, f = F // 25, F % 25
        if f % 4 == 0 or F == f0: g.append(L(f's_add_u32 {s_e2}, {s_wob}, {WOF + br*32*25600 + (f & ~3)*1024}'))
        g.append(L(f'buffer_load_dwordx4 {ar(4*F,4)}, {adr}, {sWS}, {s_e2} offen offset:{(f%4)*1024} sc1'))
    return g

steps = [(0, 0)] + [(j, q) for j in range(1, 9) for q in range(2)] + [(9, 1)]
def k0_read(j): return Ins(f'ds_read_b128 {ar(AK0+4*(j&1),4)}, {v_k0} offset:{512*j}')
def k1_read(j): return Ins(f'ds_read_b64 {ar(AK1+4*((j>>1)&1),2)}, {v_k1} offset:{512*j}')
def v_read(j, kk, u): return Ins(f'ds_read_b64_tr_b16 {ar(AV+8*(j&1)+4*kk+2*u,2)}, {v_v} offset:{512*j+256*kk+128*u}')
def qka(n):
    j, q = steps[n]
    c = vr(M_FAR, 16) if j == q else vr(M_DIAG, 16) if j == 8 + q else '0'
    return f'{mm} {vr(SB[n&1],16)}, {ar(AK0+4*(j&1),4)}, {vr(QA0+4*q,4)}, {c}'
def qkb(n):
    j, q = steps[n]
    return f'{mm} {vr(SB[n&1],16)}, {ar(AK1+4*((j>>1)&1),4)}, {vr(QA1+4*q+2*(j&1),4)}, {vr(SB[n&1],16)}'
def pv(n, kk):
    j, q = steps[n]
    c = '0' if (j == q and kk == 0) else vr(OA[q], 16)
    return f'{mm} {vr(OA[q],16)}, {ar(AV+8*(j&1)+4*kk,4)}, {vr(P0+4*kk,4)}, {c}'
def exps(n, g): return [f'v_exp_f32 v{E0+4*(g&1)+i}, v{SB[n&1]+4*g+i}' for i in range(4)]
def cvts(g): return [f'v_cvt_pk_bf16_f32 v{P0+2*g+i}, v{E0+4*(g&1)+2*i}, v{E0+4*(g&1)+2*i+1}' for i in range(2)]
def att_pre(): return [k0_read(0), k1_read(0), k0_read(1)] + [v_read(0, kk, u) for kk in range(2) for u in range(2)]

S(f'''
s_cmp_ge_u32 s2, 0x100
s_cbranch_scc1 L_end
s_load_dwordx2 s[4:5], s[0:1], 0
s_load_dwordx2 s[8:9], s[0:1], 8
s_load_dwordx2 s[12:13], s[0:1], 32
s_load_dwordx2 s[16:17], s[0:1], 72
s_load_dwordx2 s[20:21], s[0:1], 56
s_load_dwordx2 s[24:25], s[0:1], 64
''')
stamp('start')
if opt('cpf', 1):
    S(f'''
    s_getpc_b64 s[28:29]
    L_pc:
    s_mov_b32 s30, L_end-L_pc
    s_mov_b32 s31, 0x20000
    s_andn2_b32 {s_t0}, s2, 7
    v_min_u32 v132, 7, v0
    v_add_lshl_u32 v132, v132, {s_t0}, 7
    buffer_load_dword v133, v132, {sTMP}, 0 offen
    ''')
S(f'''
v_lshrrev_b32 {v_tmp}, 6, v0
v_and_b32 {v_lane}, 63, v0
v_readfirstlane_b32 {s_w}, {v_tmp}
s_and_b32 {s_xcd}, s2, 7
{('s_xor_b32 %s, %s, %d' % (s_xcd, s_xcd, opt('xmap', 0))) if opt('xmap', 0) else ''}
s_lshr_b32 {s_t}, s2, 3
s_and_b32 {s_t0}, {s_xcd}, 1
s_lshl_b32 {s_t0}, {s_t0}, 3
s_and_b32 {s_t1}, {s_t}, 7
s_add_u32 {s_rb}, {s_t0}, {s_t1}
s_lshr_b32 {s_t0}, {s_xcd}, 1
s_lshl_b32 {s_t0}, {s_t0}, 2
s_lshr_b32 {s_t2}, {s_t}, 3
s_add_u32 {s_cb}, {s_t0}, {s_t2}
s_mov_b32 s6, {2048*1280}
s_mov_b32 s7, 0x20000
s_mov_b32 s11, 0x20000
s_cmp_eq_u32 {s_cb}, 15
s_cbranch_scc1 L_spare
s_mov_b32 s10, {640*3840}
s_lshl_b32 {s_rot}, {s_t2}, 1
s_add_u32 {s_rot}, {s_rot}, {s_t1}
''')
if opt('rot', 8) == 8:
    S(f's_and_b32 {s_rot}, {s_rot}, 7\ns_mul_i32 {s_rot}, {s_rot}, 5\ns_lshr_b32 {s_rot}, {s_rot}, 2')
else:
    S(f'''
    s_lshl_b32 {s_rot}, {s_rot}, 1
    s_add_u32 {s_t0}, {s_xcd}, 1
    s_lshr_b32 {s_t0}, {s_t0}, 1
    s_add_u32 {s_rot}, {s_rot}, {s_t0}
    s_and_b32 {s_rot}, {s_rot}, 15
    s_mul_i32 {s_rot}, {s_rot}, 5
    s_lshr_b32 {s_rot}, {s_rot}, 3
    ''')
def rot(st, n):
    if n >= 1: st(f's_cmp_eq_u32 {s_rot}, 10\ns_cselect_b32 {s_rot}, 0, {s_rot}')
    st(f'''
    s_mul_i32 s{SW0+n}, {s_rot}, {64*3840}
    s_lshl_b32 s{SX0+n}, {s_rot}, 7
    s_add_u32 {s_rot}, {s_rot}, 1
    ''')
rot(S, 0)
S(f'''
v_lshrrev_b32 {v_t1}, 4, {v_lane}
v_lshrrev_b32 {v_t2}, 3, {v_lane}
v_mul_u32_u24 {v_t2}, 1280, {v_t2}
v_and_b32 {v_t3}, 7, {v_lane}
v_xor_b32 {v_t3}, {v_t3}, {v_t1}
s_lshl_b32 {s_t2}, {s_rb}, 2
s_add_u32 {s_t2}, {s_t2}, {s_w}
s_mul_i32 {s_t2}, {s_t2}, {32*1280}
v_add_u32 {v_t2}, {s_t2}, {v_t2}
v_lshl_add_u32 v{VXD}, {v_t3}, 4, {v_t2}
v_xor_b32 {v_t3}, 4, {v_t3}
v_lshl_add_u32 v{VXD+1}, {v_t3}, 4, {v_t2}
v_add_u32 v{VXD+2}, {2*(8*1280-1024)}, v{VXD}
v_add_u32 v{VXD+3}, {3*(8*1280-1024)}, v{VXD+1}
v_add_u32 v{VXD+1}, {8*1280-1024}, v{VXD+1}
s_lshl_b32 {s_mW}, {s_w}, 12
s_add_u32 {s_mX}, {s_mW}, {L_X}
v_and_b32 {v_t2}, 15, {v_lane}
v_lshlrev_b32 {v_t3}, 1, {v_t1}
v_xor_b32 {v_t2}, {v_t2}, {v_t3}
v_mul_u32_u24 {v_t3}, 3840, {v_t1}
v_lshl_add_u32 {v_t3}, {v_t2}, 4, {v_t3}
s_mul_i32 {s_t1}, {s_w}, {16*3840}
s_lshl_b32 {s_t2}, {s_cb}, 8
s_add_u32 {s_t1}, {s_t1}, {s_t2}
v_add_u32 v{VWD}, {s_t1}, {v_t3}
''')
S(f'''
v_xor_b32 v{VWD+2}, 128, v{VWD}
v_add_u32 v{VWD+1}, {4*3840-1024}, v{VWD}
v_add_u32 v{VWD+3}, {3*(4*3840-1024)}, v{VWD+2}
v_add_u32 v{VWD+2}, {2*(4*3840-1024)}, v{VWD+2}
''')
rot(S, 1)
S('s_waitcnt lgkmcnt(0)')

dma_tok = {}
WSLOT = [n % 4 for n in range(10)] + [2, 6, 3, 7, 0, 4, 1, 2, 3, 0]
WISS = {n: n - 2 for n in range(2, 11)}
WISS.update({11: 8, 12: 9, 13: 9, 14: 10, 15: 13, 16: 13, 17: 14, 18: 14, 19: 16})
for a_ in ARGS:
    if a_.startswith('--wiss='): WISS.update({11 + i: int(x) for i, x in enumerate(a_[7:].split(','))})
CTM = opt('ctm', 4)
def dma_stage(n):
    p, ns, slot = n // 10, n % 10, WSLOT[n]
    g = []
    if p == 0:
        g.append(L(f's_add_u32 m0, {s_mX}, {slot*16384}'))
        for i in range(4):
            g.append(L(f'buffer_load_dwordx4 v{VXD+i}, {sX}, s{SX0+ns} offen offset:{1024*i} lds'))
        g[-1] += L(f's_add_u32 m0, {s_mW}, {slot*16384}')
    else:
        g.append(L(f's_add_u32 m0, {s_mW}, {slot*16384}'))
    for i in range(4):
        st = Stream()
        dma_tok[n] = st.vm(f'buffer_load_dwordx4 v{VWD+i}, {sWB if p else sWA}, s{SW0+ns} offen offset:{1024*i} lds')
        g.append(st.l)
    return g

def common_consts(st):
    st(f'''
    s_mov_b32 s18, {WS_SIZE + (65536 if STAMPS else 0)}
    s_mov_b32 s19, 0x20000
    s_mov_b32 s26, 256
    s_mov_b32 s27, 0x20000
    s_mov_b32 s31, 0x20000
    v_cmp_eq_u32 vcc, 0, v0
    v_mov_b32 {v_big}, {BIG}
    v_mov_b32 {v_one}, 1
    v_lshlrev_b32 {v_l16}, 4, {v_lane}
    v_cndmask_b32 {v_flag}, {v_big}, 0, vcc
    ''')

for g in dma_stage(0): S.extend(g)
common_consts(S)
stamp('iss0')
d1 = dma_stage(1)
PRE = opt('pre', 5)
for g in d1[:PRE]: S.extend(g)
pre = Stream()
for n in range(2, 4): rot(pre, n)
pre(f'''
v_lshrrev_b32 {v_t1}, 4, {v_lane}
v_bfe_u32 {v_t2}, {v_lane}, 2, 2
v_lshl_add_u32 {v_t3}, {v_t1}, 3, {v_t2}
v_lshlrev_b32 {v_t3}, 8, {v_t3}
v_bfe_u32 {v_tmp}, {v_lane}, 2, 3
v_lshl_add_u32 {v_t3}, {v_tmp}, 5, {v_t3}
v_and_b32 {v_tmp}, 3, {v_lane}
v_lshl_add_u32 {v_t3}, {v_tmp}, 3, {v_t3}
s_and_b32 {s_t0}, {s_w}, 1
s_lshr_b32 {s_t1}, {s_w}, 1
s_lshl_b32 {s_t2}, {s_t0}, 7
v_xor_b32 v{VWR}, {s_t2}, {v_t3}
v_xor_b32 v{VWR+1}, 32, v{VWR}
v_xor_b32 v{VWR+2}, 64, v{VWR}
v_xor_b32 v{VWR+3}, 96, v{VWR}
v_and_b32 {v_t2}, 15, {v_lane}
v_bfe_u32 {v_t3}, {v_lane}, 1, 3
v_xor_b32 {v_t3}, {v_t3}, {v_t1}
v_lshlrev_b32 {v_t3}, 4, {v_t3}
v_lshl_add_u32 {v_t3}, {v_t2}, 7, {v_t3}
s_lshl_b32 {s_t2}, {s_t1}, 13
s_add_u32 {s_t2}, {s_t2}, {L_X}
v_add_u32 v{VXR}, {s_t2}, {v_t3}
v_xor_b32 v{VXR+1}, 64, v{VXR}
s_lshl_b32 {s_t2}, {s_rb}, 1
s_add_u32 {s_t2}, {s_t2}, {s_t1}
s_lshl_b32 {s_t2}, {s_t2}, 10
v_and_b32 {v_t3}, 1, {v_t1}
v_lshrrev_b32 {v_t1}, 1, {v_t1}
v_lshl_add_u32 {v_t1}, {v_t3}, 1, {v_t1}
v_lshlrev_b32 {v_t1}, 15, {v_t1}
v_lshl_add_u32 {v_t1}, {v_t2}, 4, {v_t1}
v_add_u32 {v_st}, {s_t2}, {v_t1}
s_lshl_b32 {s_stb}, {s_cb}, 1
s_add_u32 {s_stb}, {s_stb}, {s_t0}
s_lshl_b32 {s_stb}, {s_stb}, 18
s_cmp_lt_u32 {s_cb}, 5
s_cselect_b32 {s_scale}, {f32(QSCALE)}, 1.0
s_cselect_b32 {s_tag}, {'0xfffe0000' if QRND else '-2'}, -1
s_cselect_b32 {s_rnd}, 0x10000, 0
''')
TB = opt('tb', 10); TBH = opt('tbh', 1)
if TB >= 0:
    nl = 20 if TBH else 40
    pre(f'''
    s_mov_b32 s14, {640*3840}
    s_mov_b32 s15, 0x20000
    v_lshrrev_b32 v134, 1, {v_lane}
    v_mul_u32_u24 v134, 3840, v134
    v_and_b32 v135, 1, {v_lane}
    v_lshl_add_u32 v134, v135, 7, v134
    v_cmp_gt_u32 vcc, {nl}, {v_lane}
    s_and_b32 s56, {s_rb}, {15 if TBH else 7}
    s_lshl_b32 s56, s56, 2
    s_add_u32 s56, s56, {s_w}
    v_cndmask_b32 v134, {v_big}, v134, vcc
    s_mul_i32 s56, s56, {nl//2*3840}
    s_lshl_b32 s57, {s_cb}, 8
    s_add_u32 s56, s56, s57
    ''')
    if TBH == 2:
        pre(f'''
        v_lshrrev_b32 v134, 1, {v_lane}
        v_mul_u32_u24 v134, 3840, v134
        v_lshl_add_u32 v134, v135, 7, v134
        s_lshr_b32 s56, {s_t}, 3
        s_lshl_b32 s56, s56, 1
        s_add_u32 s56, s56, {s_t}
        s_bitcmp1_b32 s56, 1
        s_cselect_b32 s58, 0, 40
        v_cmp_gt_u32 vcc, s58, {v_lane}
        s_bfe_u32 s58, s56, 0x10002
        s_lshl_b32 s58, s58, 1
        s_and_b32 s56, s56, 1
        v_cndmask_b32 v134, {v_big}, v134, vcc
        s_add_u32 s56, s56, s58
        s_lshr_b32 s58, {s_rb}, 3
        s_lshl_b32 s58, s58, 2
        s_add_u32 s56, s56, s58
        s_lshl_b32 s56, s56, 2
        s_add_u32 s56, s56, {s_w}
        s_mul_i32 s56, s56, {20*3840}
        s_add_u32 s56, s56, s57
        ''')
    touch = Ins(f'buffer_load_dword v135, v134, {sWB}, s56 offen')
    if TB == 0: pre.l.append(touch)
if opt('wot', 0):
    S.l.insert(2, Ins('s_load_dwordx2 s[56:57], s[0:1], 16')); S.l.insert(2, Ins('s_load_dwordx2 s[58:59], s[0:1], 40'))
    S(f'''
    s_cmp_ge_u32 {s_rb}, 8
    s_cselect_b32 s28, s58, s56
    s_cselect_b32 s29, s59, s57
    s_mov_b32 s30, {640*1280}
    s_and_b32 {s_t0}, {s_rb}, 7
    s_mul_i32 {s_t0}, {s_t0}, 15
    s_add_u32 {s_t0}, {s_t0}, {s_cb}
    s_lshl_b32 {s_t0}, {s_t0}, 2
    s_add_u32 {s_t0}, {s_t0}, {s_w}
    s_mul_i32 {s_t0}, {s_t0}, {14*128}
    v_min_u32 v137, 13, {v_lane}
    v_lshlrev_b32 v137, 7, v137
    buffer_load_dword v136, v137, {sTMP}, {s_t0} offen
    ''')
DSW = opt('dsw', -1)
lds_init = mk(setup_lds)
dsw = [x for x in lds_init if x.kind == 'ds']
pre.l += lds_init if DSW < 0 else [x for x in lds_init if x.kind != 'ds']
npre = len(atomize(pre.l))
for n in range(4, 10): rot(pre, n)
setup2(pre)
pre = atomize(pre.l)
SPLIT = min(npre + opt('split', 1000), len(pre))
pre, su_post = pre[:SPLIT], pre[SPLIT:]
if d1[PRE:]: weave(pre, d1[PRE:], opt('pre0', 20), min(len(pre), opt('pre1', 120)))
for g in pre: S.extend(g)
stamp('setup')

CTA = opt('cta', 1)
seq = []
def tilewise(ns, k2):
    ns = list(ns); m = len(ns) - k2
    l = [(n, s_, t, rt) for n in ns for s_ in range(2) for t in (0, 1) for rt in range(4)]
    l += [(n, s_, t, rt) for n in ns[:m] for s_ in range(2) for t in (2, 3) for rt in range(4)]
    for rh in range(2): l += [(n, s_, t, rt) for n in ns[m:] for s_ in range(2) for t in (2, 3) for rt in (2 * rh, 2 * rh + 1)]
    return l
for n in range(20 - CTM):
    if n == 10 - CTA: seq += tilewise(range(n, 10), 0)
    elif 10 - CTA < n < 10: pass
    else: seq += [(n, s_, t, rt) for s_ in range(2) for t in range(4) for rt in range(4)]
seq += tilewise(range(20 - CTM, 20), opt('ct2', 1))
if opt('snake', 0):
    for k in range(0, len(seq), 8):
        if len(set(e[:3] for e in seq[k + 4:k + 8])) == 1: seq[k + 4:k + 8] = seq[k + 4:k + 8][::-1]
NG = len(seq)
def G(name, d): return 2 * opt(name, d)
def xreg(n, s_, rt):
    n %= 10
    return ar(32 * n + 16 * s_ + 4 * rt, 4) if n < 8 else vr(XV + 32 * (n - 8) + 16 * s_ + 4 * rt, 4)
BO = opt('bo', 14)
firstuse = {}; lastuse = {}
for k, e in enumerate(seq): firstuse.setdefault(e[0], k); lastuse[e[0]] = k
BARS = list(range(1, 21 - CTM)) + ([19] if CTM > 2 else [])
def bar_of(n): return max(b for b in [0] + BARS if b <= n)
def bar_gap(n): return firstuse[bar_of(n)] - BO
for n in range(4, 20):
    prev = [m for m in range(n) if WSLOT[m] == WSLOT[n] or (m < 10 and WSLOT[n] == 4 + m % 4)]
    assert WISS[n] in BARS and lastuse[prev[-1]] < bar_gap(WISS[n]), n
frag = []; fidx = []
for k, e in enumerate(seq):
    if k == 0 or seq[k - 1][:3] != e[:3]: frag.append([e[:3], k, k])
    frag[-1][2] = k; fidx.append(len(frag) - 1)
reads = []; xreads = []; xseen = set(); first_reads = []
LEAD = opt('lead', 4)
for j, ((n, s_, t), u0, u1) in enumerate(frag):
    lo = max(frag[j - 4][2] if j >= 4 else -1, bar_gap(n))
    sl_ = WSLOT[n]; buf = WRING + 4 * (j & 3)
    l = [Ins(f'ds_read_b64_tr_b16 {vr(buf+2*u,2)}, v{VWX[t] if sl_ >= 4 else VWR+t} offset:{(sl_%4)*16384+(32*s_+4*u)*256}') for u in range(2)]
    if n < 10 and (n, s_) not in xseen:
        xseen.add((n, s_))
        xl = [Ins(f'ds_read_b128 {xreg(n,s_,rt)}, v{VXR+s_} offset:{(n%4)*16384+rt*2048}') for rt in range(4)]
        if j == 0: first_reads += xl
        else: xreads += [Item(x, max(bar_gap(n), u0 - 22 + 2 * i), u0 - LEAD - 3 + i) for i, x in enumerate(xl)]
    if j < 2: first_reads += l
    elif opt('oneds', 1): reads += [Item(x, lo, max(lo, u0 - LEAD - 1 + i)) for i, x in enumerate(l)]
    else: reads.append(Item(l, lo, max(lo, u0 - LEAD)))
mf = []
for k, (n, s_, t, rt) in enumerate(seq):
    acc = vr(ACC[n // 10] + 8 * (4 * (t >> 1) + rt) + 4 * (t & 1), 4)
    mf.append(Ins(f'v_mfma_f32_16x16x32_bf16 {acc}, {vr(WRING+4*(fidx[k]&3),4)}, {xreg(n,s_,rt)}, {"0" if n % 10 == 0 and s_ == 0 else acc}'))
done = {}
for k, (n, s_, t, rt) in enumerate(seq): done[(n // 10, 2 * (t >> 1) + (rt >> 1))] = k
def epi1_tile(p, T):
    g = []
    if T % 2 == 0: g.append(L(f's_add_u32 {s_e0}, {s_stb}, {QKV[p]+2*T*GRP}'))
    for u in range(2):
        b = ACC[p] + 16 * T + 8 * u
        for i in range(8): g.append(L(f'v_mul_f32 v{b+i}, {s_scale}, v{b+i}'))
        for i in range(4): g.append(L(f'v_cvt_pk_bf16_f32 v{b+i}, v{b+2*i}, v{b+2*i+1}'))
        for i in (0, 2): g.append(L(f'v_and_b32 v{b+i}, {s_tag}, v{b+i}'))
    for u in range(2):
        b = ACC[p] + 16 * T + 8 * u
        for i in (1, 0): g.append(L(f'v_permlane16_swap_b32 v{b+i}, v{b+2+i}'))
        st = Stream(); tok = st.vm(f'buffer_store_dwordx4 {vr(b,4)}, {v_st}, {sWS}, {s_e0} offen offset:{256*(2*(T&1)+u)} sc1')
        g.append(st.l)
    return g, tok
assert not QRND
COST['vm'] = 2
cap = [2 - (1 if k + 1 < NG and fidx[k + 1] != fidx[k] else 0) for k in range(NG)]
fixed = {}
FLAGA = opt('flagA', 13)
for n in BARS:
    fixed[bar_gap(n)] = [('BAR', n)]; cap[bar_gap(n)] -= 2 + (2 if n == FLAGA else 0)
dmas = []
def split_salu(l):
    out = []
    for g in l:
        if len(g) > 1 and g[0].kind == 'vm': out += [g[:1], g[1:]]
        else: out.append(g)
    return out
for b in range(0, 17):
    l = split_salu([g for n in range(2, 20) if WISS[n] == b for g in dma_stage(n)])
    if l:
        lo = max(bar_gap(b), 0)
        dmas += paced(l, lo, lo + (G('dsp', 14) if len(l) > 5 else 14), 5)
KV0 = G('kv0', 262); KV1 = G('kv1', 290); KVB = G('kvb', 312)
assert KV0 > bar_gap(16) + 20
kv, tokKV = kvq_loads()
dmas += [Item(mk(poll_check, v_pres, v_p1, sWS, s_F1A) + [('ST', 'pc1')], KV0 - 1, KV0 - 1)] + paced(kv, KV0, KV1, 4)
epi = []
EA1 = G('epiAend', 180); EA0 = done[(0, 0)] + 4
for T in range(4):
    g, tokA = epi1_tile(0, T)
    lo = done[(0, T)] + 4
    it = asap(g, lo, lo + 1)
    for i, x in enumerate(it): x.hi = max(lo, EA0 + (len(g) * T + i) * (EA1 - EA0) // (4 * len(g))) + 2
    epi += it
for T in range(3):
    g, tokB = epi1_tile(1, T)
    lo = done[(1, T)] + 4
    it = asap(g, lo, lo + 1)
    e0 = done[(1, 0)] + 4; e1 = done[(1, 2)] + 4
    for i, x in enumerate(it): x.hi = max(lo, e0 + (len(g) * T + i) * (e1 - e0) // (2 * len(g))) + 1 if T < 2 else NG
    epi += it
NWO1 = opt('nwo1', 0); NA = 0; WT = 0
misc = []
if TB > 0: misc.append(Item(touch, 2 * TB, 2 * TB + 4))
SU1 = G('su1', 44); SU0 = G('su0', 0); assert SU0 == 0 or opt('split', 1000) >= 24
sus = asap(su_post, SU0, SU1) if su_post else []
misc += [Item(mk(poll_issue, v_pres, v_zero, sDBG, '0'), max(SU1 + 5, 220), max(SU1 + 9, 224)), Item(mk(poll_check, v_pres, v_zero, sDBG, '0'), 284, 290)]
misc += paced(setup_late(), 290, 298, 6)
misc += paced([Ins(f'v_add_u32 v{VWX[t]}, {L_X}, v{VWR+t}') for t in range(4)], 300, 308, 6)
P1I = KV0 - G('p1d', 20)
misc += [Item(mk(poll_issue, v_pres, v_p1, sWS, s_F1A), P1I, P1I + 4)]
if NWO1: misc += paced(wo_loads(0, NWO1), KV1, NG - 4, 4)
misc2 = (paced(dsw, 2 * DSW, 2 * DSW + G('dswn', 3), 0) if DSW >= 0 else []) + paced(mask_far(), 460, 490, 8) + paced(zero_pads(), lastuse[17] + 1, lastuse[17] + 12, 4)
st = Stream(); st.wait(tokKV); st('s_barrier'); fixed[KVB] = st.l + [('ST', 'kvb')]; cap[KVB] -= 2
misc2 += paced(att_pre(), KVB, NG - 4, 2)
rep_ = []
gaps, over = schedule(NG, cap, [reads, xreads, dmas, epi, misc, misc2, sus], rep_, opt('oneds', 1))
if '--sched' in ARGS:
    for n in range(20): print(n, ' '.join('%2d' % x for x in rep_[32 * n:32 * n + 32]))
last_def = {}; last_use = {}
for k, m in enumerate(mf):
    for r in m.defs: last_def[r] = k
    for r in m.srcab: last_use[r] = k
lastx = max(k for k, g in enumerate(gaps) for it in g if not isinstance(it, tuple) and it.mn == 'ds_read_b128' and it.uses & {'v14', 'v15'})
assert lastx < 300
for k, g in enumerate(gaps):
    for it in g:
        if isinstance(it, tuple): continue
        if it.kind in ('valu', 'vm') or (it.kind == 'ds' and k > 400):
            for r in it.uses | it.defs: assert last_def.get(r, -1) <= k or k < 200, (k, it.text)
            if 'tr_b16 v' not in it.text:
                for r in it.defs: assert last_use.get(r, -1) <= k, (k, it.text)

S.wait(dma_tok[0])
if opt('waitall', 0): S('s_waitcnt vmcnt(0)')
S('s_barrier')
stamp('first')
S.l += first_reads
for k in range(NG):
    if k == 0 or fidx[k - 1] != fidx[k]: S.use(set().union(*[mf[j].srcab for j in range(k, frag[fidx[k]][2] + 1)]))
    S.l.append(mf[k])
    if opt('slow', 0) and G('slow0', 0) <= k < G('slow1', 160): S('s_nop %d' % opt('slow', 0))
    for it in fixed.get(k, []) + mem_first(gaps[k]):
        if isinstance(it, tuple) and it[0] == 'ST':
            if FINE: stamp(it[1])
        elif isinstance(it, tuple):
            n2 = it[1]
            tk = [dma_tok[m] for m in range(20) if bar_of(m) == n2]
            if n2 == FLAGA: tk.append(tokA)
            S.wait(*tk)
            S('s_barrier')
            if n2 == FLAGA: set_flag(S, v_flag, s_f1, 0)
            if FINE or '--clk' in ARGS or n2 in (10, 14, 16): stamp('b%d' % n2)
        else:
            S.l.append(it)
stamp('p1end')
S(qka(0)); S(qkb(0))
mrest = mask_rest()
S.l += mrest[:8]
g, tokB = epi1_tile(1, 3)
for x in g: S.l += x
S('L_join:')
stamp('join')
nst_join = nstamp[0] - 1

N = len(steps)
groups = []
for n in range(N):
    for g in range(4):
        st = Stream()
        if g == 0 and n + 1 < N: st(qka(n + 1))
        if g == 1 and n > 0: st(pv(n - 1, 1))
        if g == 2 and n + 1 < N: st(qkb(n + 1))
        if g == 3: st(pv(n, 0))
        if g > 0 or n > 0:
            for x in cvts((g - 1) & 3): st(x)
        for x in exps(n, g): st(x)
        groups.append(st.l)
first = {}
for n, (j, q) in enumerate(steps): first.setdefault(j, n)
last = {j: n for n, (j, q) in enumerate(steps)}
for j in range(1, 10):
    base = 4 * (last[j-2] + 1) + 1 if j >= 2 else 0
    for kk in range(2):
        for u in range(2): groups[base + kk].append(v_read(j, kk, u))
    if j + 1 < 10:
        groups[base + 3].append(k0_read(j + 1))
        if (j + 1) % 2 == 0: groups[base + 3].append(k1_read(j + 1))
    need = set(x for kk in range(2) for u in range(2) for x in v_read(j, kk, u).defs)
    if j + 1 < 10: need |= k0_read(j + 1).defs | (k1_read(j + 1).defs if (j + 1) % 2 == 0 else set())
    st = Stream(); st.use(need); groups[4 * first[j] + 3][0:0] = st.l
weave(groups, mrest[8:], 4, 36)
FB = opt('fb', 4)
st = Stream(); st.wait(tokB); st('s_barrier'); set_flag(st, v_flag, s_f1, 0); groups[4 * FB - 1] += st.l
groups[0] += L(f's_add_u32 {s_f1}, {s_f1}, 32768')
P3S = opt('p3s', 11); P3D = opt('p3d', 2)
NWO2 = opt('nwo2', 38)
NWOM = min(NWO2, opt('nwom', 30))
if NWOM > NWO1: weave(groups, wo_loads(NWO1, NWOM), opt('wo0g', 1), 4 * (P3S - P3D) - 1)
if NWO2 > NWOM: weave(groups, wo_loads(NWOM, NWO2), 4 * P3S + opt('bln', 12), 72)
groups[4 * (P3S - P3D) - 1] += mk(poll_issue, v_pres, v_p3, sWS, s_F1B)
groups[4 * P3S - 2] += L(f'''
s_add_u32 s60, {s_bF}, {QKV[1]}
s_add_u32 s61, {s_bS}, {QKV[1]}
s_add_u32 s62, {s_bF}, {QKV[1] + 80*GRP - 512}
s_add_u32 s63, {s_bS}, {QKV[1] + 80*GRP - 512}
''')
groups[4 * P3S - 3] += L(f'''
s_add_u32 s64, {s_bF}, {QKV[1] + 160*GRP}
s_add_u32 s65, {s_bF}, {QKV[1] + 161*GRP - 1088}
s_add_u32 s66, {s_bS}, {QKV[1] + 160*GRP - 2176}
s_mov_b32 m0, {s_mV}
''')
groups[4 * P3S - 1] += mk(poll_check, v_pres, v_p3, sWS, s_F1B)
bl = L(f'''
buffer_load_dword {v_g[0]}, {v_gad}, {sWS}, {s_gb} offen sc1
buffer_load_dword {v_g[1]}, {v_gad}, {sWS}, {s_gb} offen offset:128 sc1
buffer_load_dwordx4 {vr(QB0,4)}, {v_q4}, {sWS}, s60 offen sc1
buffer_load_dwordx4 {vr(KB0,4)}, {v_kb0}, {sWS}, s62 offen sc1
buffer_load_dwordx2 {vr(QB1,2)}, {v_qe}, {sWS}, s61 offen sc1
buffer_load_dwordx2 {vr(QB1+2,2)}, {v_qo}, {sWS}, s61 offen sc1
buffer_load_dwordx2 {ar(AKB1,2)}, {v_kb1}, {sWS}, s63 offen sc1
buffer_load_dwordx4 {vr(KB0+4,4)}, {v_q4}, {sWS}, s62 offen offset:512 sc1
buffer_load_dwordx4 {vr(QB0+4,4)}, {v_q4}, {sWS}, s60 offen offset:512 sc1
buffer_load_dwordx2 {vr(QB1+4,2)}, {v_qo}, {sWS}, s61 offen offset:512 sc1
buffer_load_dwordx4 {vr(KB0+8,4)}, {v_q4}, {sWS}, s62 offen offset:1024 sc1
buffer_load_dwordx2 {ar(AKB1+4,2)}, {v_qo}, {sWS}, s63 offen offset:1024 sc1
buffer_load_dwordx4 {v_l16}, {sWS}, s64 offen sc1 lds
buffer_load_dwordx4 {v_l16}, {sWS}, s65 offen offset:1088 sc1 lds
buffer_load_dwordx4 {v_l16}, {sWS}, s66 offen offset:2176 sc1 lds
''')
st = Stream(); st(f's_add_u32 m0, {s_mV}, 3264\nv_mov_b32 v{QB1+6}, 0\nv_mov_b32 v{QB1+7}, 0')
tokVB = st.vm(f'buffer_load_dwordx4 {v_halo}, {sWS}, 0 offen sc1 lds'); bl.append(st.l)
weave(groups, bl, 4 * P3S, 4 * P3S + opt('bln', 12))
for k, g in enumerate(groups):
    S.l += mem_first(g)
    if FINE and k % 8 == 7: stamp('a%d' % (k // 4))
for x in cvts(3): S(x)
S('s_nop 1')
S(pv(N - 1, 1))
stamp('attA')
S(f'''
s_lshl_b32 {s_t0}, {s_R}, 10
s_mul_i32 {s_t1}, {s_w}, {20*GRP}
s_add_u32 s{SX0}, {s_t0}, {s_t1}
s_mov_b32 {s_tag}, 0xfffe0000
''')
for s_ in range(1, 5): S(f's_add_u32 s{SX0+s_}, s{SX0}, {4*s_*GRP}')
for s_ in range(2): S(f's_add_u32 s{SX0+5+s_}, s{SX0}, {QKV[1] + 4*s_*GRP}')
S(f'''
s_mov_b32 {s_t1}, {hex(64 << 23)}
v_subrev_u32 {v_t1}, {hex(95 << 23)}, v{OA[0]+12}
v_subrev_u32 {v_t2}, {hex(95 << 23)}, v{OA[1]+12}
v_max_u32 {v_t1}, {v_t1}, {v_t2}
v_cmp_le_u32 vcc, {s_t1}, {v_t1}
s_cbranch_vccnz L_truemax
L_Aok:
''')
FBK = Stream()
FBK('@reset')
FBK(f'''
L_truemax:
s_lshr_b32 {s_t1}, {s_q0}, 5
s_sub_u32 {s_t1}, 8, {s_t1}
s_nop 7
''')
def fb_qk(j, q):
    c = vr(M_FAR, 16) if j == q else vr(M_DIAG, 16) if j == 8 + q else '0'
    FBK(f'''
    ds_read_b128 {ar(AK0,4)}, {v_k0} offset:{512*j}
    ds_read_b64 {ar(AK1,2)}, {v_k1} offset:{512*(j & ~1)}
    {mm} {vr(SB[0],16)}, {ar(AK0,4)}, {vr(QA0+4*q,4)}, {c}
    {mm} {vr(SB[0],16)}, {ar(AK1,4)}, {vr(QA1+4*q+2*(j&1),4)}, {vr(SB[0],16)}
    ''')
for q in range(2):
    FBK(f'v_mov_b32 {v_t3}, {NEGINF}')
    for i in range(16): FBK(f'v_mov_b32 v{OA[q]+i}, 0')
    for ps in range(2):
        for j in range(q, q + 9):
            l = lab('skip')
            FBK(f's_cmp_gt_i32 {s_t1}, {j}\ns_cbranch_scc1 {l}')
            if ps == 1:
                for kk in range(2):
                    for u in range(2): FBK(f'ds_read_b64_tr_b16 {ar(AV+4*kk+2*u,2)}, {v_v} offset:{512*j+256*kk+128*u}')
            fb_qk(j, q)
            if ps == 0:
                for i in range(0, 16, 2): FBK(f'v_max3_f32 {v_t3}, {v_t3}, v{SB[0]+i}, v{SB[0]+i+1}')
            else:
                for i in range(16): FBK(f'v_sub_f32 v{SB[0]+i}, v{SB[0]+i}, {v_t3}')
                for i in range(16): FBK(f'v_exp_f32 v{SB[0]+i}, v{SB[0]+i}')
                for i in range(8): FBK(f'v_cvt_pk_bf16_f32 v{P0+i}, v{SB[0]+2*i}, v{SB[0]+2*i+1}')
                for kk in range(2): FBK(f'{mm} {vr(OA[q],16)}, {ar(AV+4*kk,4)}, {vr(P0+4*kk,4)}, {vr(OA[q],16)}')
                FBK('s_nop 7')
            FBK(l + ':')
        if ps == 0:
            FBK(f'''
            s_nop 1
            v_mov_b32 {v_t4}, {v_t3}
            v_permlane32_swap_b32 {v_t3}, {v_t4}
            v_max_f32 {v_t3}, {v_t3}, {v_t4}
            ''')
FBK('s_nop 15\ns_branch L_Aok')

OSC = '' if opt('local', 0) else ' sc1'
def epi2(br, q, o, pk=False):
    st = Stream()
    st(f'v_rcp_f32 {v_t1}, v{o+12}')
    if br: st(f'v_sub_f32 {v_g[q]}, 1.0, {v_g[q]}')
    st(f'v_mul_f32 {v_t1}, {v_g[q]}, {v_t1}')
    if pk:
        for i in range(0, 12, 2): st(f'v_pk_mul_f32 {vr(o+i,2)}, {vr(o+i,2)}, {vr(22,2)} op_sel_hi:[1,0]')
    else:
        for i in range(12): st(f'v_mul_f32 v{o+i}, {v_t1}, v{o+i}')
    for i in (0, 4, 8): st(f'v_and_or_b32 v{o+i}, v{o+i}, {s_tag}, {v_o4}')
    for i in range(6): st(f'v_cvt_pk_bf16_f32 v{o+i}, v{o+2*i}, v{o+2*i+1}')
    st(f'buffer_store_dwordx4 {vr(o,4)}, {v_q4}, {sWS}, {"s60" if br else s_bF} offen offset:{512*q} sc1')
    tok = st.vm(f'buffer_store_dwordx2 {vr(o+4,2)}, {v_qe}, {sWS}, {"s61" if br else s_bS} offen offset:{512*q} sc1')
    return st.l, tok
qkB = [[Ins(x)] for x in (
    f'{mm} {vr(SP[0],16)}, {vr(KB0,4)}, {vr(QB0,4)}, {vr(MB_PREV0,16)}',
    f'{mm} {vr(SP[0],16)}, {ar(AKB1,4)}, {vr(QB1,4)}, {vr(SP[0],16)}',
    f'{mm} {vr(SD[0],16)}, {vr(KB0+4,4)}, {vr(QB0,4)}, {vr(MB_DIAG,16)}',
    f'{mm} {vr(SD[0],16)}, {ar(AKB1,4)}, {vr(QB1+2,4)}, {vr(SD[0],16)}',
    f'{mm} {vr(SP[1],16)}, {vr(KB0+4,4)}, {vr(QB0+4,4)}, {vr(MB_PREV,16)}',
    f'{mm} {vr(SP[1],16)}, {ar(AKB1,4)}, {vr(QB1+4,4)}, {vr(SP[1],16)}',
    f'{mm} {vr(SD[1],16)}, {vr(KB0+8,4)}, {vr(QB0+4,4)}, {vr(MB_DIAG,16)}',
    f'{mm} {vr(SD[1],16)}, {ar(AKB1+4,4)}, {vr(QB1+4,4)}, {vr(SD[1],16)}')]
st = Stream(); st.wait(tokVB)
for u in range(2): st(f'ds_read_b64_tr_b16 {ar(VB+2*u,2)}, {v_vh} offset:{128*u}')
for t in range(2):
    for kk in range(2):
        for u in range(2): st(f'ds_read_b64_tr_b16 {ar(VB+4+8*t+4*kk+2*u,2)}, {v_vb} offset:{512*t+256*kk+128*u}')
vbr = st.l
e0, _ = epi2(0, 0, OA[0], True); e1, tokOA = epi2(0, 1, OA[1], True)
S.l += e0 + e1
st2('epiA')
adr = Stream()
adr(f'''
v_lshrrev_b32 v14, 4, {v_lane}
v_and_b32 v15, 15, {v_lane}
v_lshlrev_b32 v5, 15, v14
v_lshl_add_u32 v5, v15, 4, v5
''')
for rho in range(4):
    adr(f'''
    s_add_u32 {s_t0}, {s_w}, {rho}
    s_and_b32 {s_t0}, {s_t0}, 3
    s_lshl_b32 s{56+rho}, {s_t0}, 8
    v_add_u32 v{V4+rho}, s{56+rho}, v5
    ''')
adr2 = Stream()
for rho in range(4):
    adr2(f's_mul_i32 {s_t1}, s{56+rho}, 60')
    if rho: adr2(f's_add_u32 {s_t1}, {s_t1}, {(rho-1)*5120}\nv_add_u32 v{VRW+rho-1}, {s_t1}, {v_l16}')
    else: adr2(f'v_add_u32 {v_rr}, {s_t1}, {v_l16}')
adr2(f'''
v_mul_u32_u24 v15, 1280, v15
v_mad_u32_u24 v15, v14, 40, v15
s_lshl_b32 {s_t0}, {s_R}, 2
s_add_u32 {s_t0}, {s_t0}, {s_w}
s_mul_i32 {s_t0}, {s_t0}, {16*1280}
s_mul_i32 {s_t1}, {s_C}, 160
s_add_u32 {s_t0}, {s_t0}, {s_t1}
v_add_u32 {v_out}, {s_t0}, v15
''')
for s_ in range(2, 5): adr2(f's_add_u32 s{SX0+5+s_}, s{SX0}, {QKV[1] + 4*s_*GRP}')
weave(qkB, vbr, 2, 6)
NWOB = max(NWO2, opt('nwob', 44))
if NWOB > NWO2: weave(qkB, wo_loads(NWO2, NWOB), 0, 6)
weave(qkB, adr.l, 0, 8)
for g in qkB[:6]: S.l += g
st2('qkB')
def softB(q):
    st = Stream()
    b = SP[q] + 8
    assert SD[q] == SP[q] + 16
    st(f'v_max3_f32 {v_t3}, v{b}, v{b+1}, v{b+2}')
    st(f'v_max3_f32 {v_t4}, v{b+3}, v{b+4}, v{b+5}')
    for i in range(6, 22, 4):
        st(f'v_max3_f32 {v_t3}, {v_t3}, v{b+i}, v{b+i+1}')
        st(f'v_max3_f32 {v_t4}, {v_t4}, v{b+i+2}, v{b+i+3}')
    st(f'v_max3_f32 {v_t3}, {v_t3}, v{b+22}, v{b+23}')
    st(f'v_max_f32 {v_t3}, {v_t3}, {v_t4}')
    st(f'v_mov_b32 {v_t4}, {v_t3}')
    st(f'v_permlane32_swap_b32 {v_t3}, {v_t4}')
    st(f'v_max_f32 {v_t3}, {v_t3}, {v_t4}')
    for i in range(0, 24, 2): st(f'v_pk_add_f32 {vr(b+i,2)}, {vr(b+i,2)}, {vr(24,2)} op_sel_hi:[1,0] neg_lo:[0,1] neg_hi:[0,1]')
    vop = [VB if q == 0 else VB + 8, VB + 4 + 8 * q, VB + 8 + 8 * q]
    for c in range(3):
        for i in range(8): st(f'v_exp_f32 v{b+8*c+i}, v{b+8*c+i}')
        if c: st(f'{mm} {vr(OB[q],16)}, {ar(vop[c-1],4)}, {vr(b+8*(c-1),4)}, {"0" if c == 1 else vr(OB[q],16)}')
        for i in range(4): st(f'v_cvt_pk_bf16_f32 v{b+8*c+i}, v{b+8*c+2*i}, v{b+8*c+2*i+1}')
    return st.l, Ins(f'{mm} {vr(OB[q],16)}, {ar(vop[2],4)}, {vr(b+16,4)}, {vr(OB[q],16)}')
l0, m0_ = softB(0); l1, m1_ = softB(1)
lb = l0[:5] + qkB[6] + l0[5:10] + qkB[7] + l0[10:] + l1[:2] + [m0_] + l1[2:]
def o_load(br, s_, rho):
    b = OF[br][s_] + 4 * rho
    return L(f'buffer_load_dwordx4 {vr(b,4)}, v{V4+rho}, {sWS}, s{SX0+5*br+s_} offen sc1')
order = (1, 2, 3, 0)
ogrp = [[(0, s_, rho) for rho in range(4)] for s_ in range(5)] + [[(1, s_, rho) for s_ in range(5)] for rho in order]
ol = [x for g in ogrp for e in g for x in o_load(*e)]
e0, _ = epi2(1, 0, OB[0]); e1, tokOB = epi2(1, 1, OB[1], True)
lb += e0[:2] + [m1_] + e0[2:] + e1
NO0 = opt('no0', 8); NOE = opt('noe', 0); OE = opt('oe', 1)
if NOE:
    k_ = [i for i, x in enumerate(lb) if x.kind == 'mfma'][-OE]
    lb[k_ + 1:k_ + 1] = ol[:NOE]
BST = opt('bst', 1)
bst = []
if BST:
    bst = [x for x in lb if x.kind == 'vm' and 'store' in x.mn]
    lb = [x for x in lb if x not in bst]
    if BST > 1:
        lb += L(f'v_mov_b32 v6, {v_q4}\nv_mov_b32 v7, {v_qe}')
        bst = [Ins(x.text.replace(v_q4 + ',', 'v6,').replace(v_qe + ',', 'v7,')) for x in bst]
S.l += lb
stamp('epiB')
S.l += ol[NOE:NO0]
if BST == 1: S.l += bst
S.l += adr2.l
NWO4 = max(NWOB, opt('nwo4', 44))
for g in wo_loads(NWOB, NWO4): S.l += g
st2('oiss')

def o_check(i):
    regs = [OF[br][s_] + 4 * rho + j for br, s_, rho in ogrp[i] for j in (0, 2)]
    def tree():
        st = Stream()
        for k in range(0, len(regs), 2): st(f'v_bitop3_b32 v1, {"v1" if k else "1"}, v{regs[k]}, v{regs[k+1]} bitop3:0x80')
        st('v_cmp_eq_u32 vcc, 0, v1')
        return st.l
    l = lab('again'); b = lab('fresh')
    tail('@reset')
    tail(f'{l}:\ns_mov_b32 {s_cnt}, 0\n{l}_a:')
    for e in ogrp[i]: tail.l += o_load(*e)
    tail(f's_add_u32 {s_cnt}, {s_cnt}, 1')
    if STAMPS: tail(f'v_writelane_b32 v0, {s_cnt}, {60 + (i >= 5)}')
    tail('s_waitcnt vmcnt(0)')
    tail.l += tree()
    tail(f's_cbranch_vccz {b}\ns_cmp_lt_u32 {s_cnt}, 0x40000\ns_cbranch_scc1 {l}_a\ns_branch {b}')
    t = tree()
    return t[:-1] + [t[-1:] + L(f's_cbranch_vccnz {l}\n{b}:')]
def mf3(br, s_, rho, ct):
    acc = vr(AC3 + 20 * rho + 4 * ct, 4)
    return [Ins(f'v_mfma_f32_16x16x32_bf16 {acc}, {ar(100*br+20*s_+4*ct,4)}, {vr(OF[br][s_]+4*rho,4)}, {"0" if br == 0 and s_ == 0 else acc}')]
sl = [mf3(*e, ct) for g in ogrp for e in g for ct in range(5)]
PB0 = opt('pb0', 36); PB1 = opt('pb1', 55)
if NO0 < 20: weave(sl, ol[NO0:20], 0, PB0)
if BST > 1: weave(sl, bst, BST, BST + 8)
if NWO4 < 50:
    S(f'v_mov_b32 v15, {v_l16}')
    weave(sl, wo_loads(NWO4, 50, 'v15'), PB0, PB1)
weave(sl, ol[20:], PB1, opt('no1', 140))
for it in o_check(0): S.l += it if isinstance(it, list) else [it]
stamp('poll4')
gstart = [20 * i for i in range(5)] + [100 + 25 * i for i in range(4)]
for i in range(1, 9): weave(sl, o_check(i), gstart[i] - opt('chk', 6), gstart[i])
for k, g in enumerate(sl):
    for it in g[1:]:
        if it.kind == 'vm': assert not any(it.defs & x.uses for j in range(k + 1) for x in sl[j] if x.kind != 'vm'), it.text
for i, rho in enumerate((1, 2, 3)):
    wr = [Ins(f'ds_write_b128 v{VRW+rho-1}, {vr(AC3+20*rho+4*ct,4)} offset:{1024*ct}') for ct in range(5)]
    lo = 125 + 25 * i + 3
    weave(sl, wr, lo, lo + (15 if i < 2 else 5))
sl[189] += L('s_waitcnt lgkmcnt(0)\ns_barrier')
rd = [Ins(f'ds_read_b128 {vr(RED+20*k+4*ct,4)}, {v_rr} offset:{5120*k+1024*ct}') for ct in range(5) for k in range(3)]
weave(sl, rd, 190, 200)
for k, g in enumerate(sl):
    S.l += mem_first(g)
    if k == 99: stamp('mf3A')
    elif k in (0, 19, 39, 59, 79, 124, 149, 174, 188, 189): st2('m%d' % k)
stamp('mf3')
for i in range(0, 20, 2):
    S(f'v_pk_add_f32 {vr(RED+i,2)}, {vr(RED+i,2)}, {vr(RED+20+i,2)}')
    S(f'v_pk_add_f32 {vr(AC3+i,2)}, {vr(AC3+i,2)}, {vr(RED+40+i,2)}')
for i in range(0, 20, 2):
    S(f'v_pk_add_f32 {vr(AC3+i,2)}, {vr(AC3+i,2)}, {vr(RED+i,2)}')
for i in range(10):
    S(f'v_cvt_pk_bf16_f32 v{AC3+i}, v{AC3+2*i}, v{AC3+2*i+1}')
S(f'''
buffer_store_dwordx4 {vr(AC3,4)}, {v_out}, {sOUT}, 0 offen
buffer_store_dwordx4 {vr(AC3+4,4)}, {v_out}, {sOUT}, 0 offen offset:16
buffer_store_dwordx2 {vr(AC3+8,2)}, {v_out}, {sOUT}, 0 offen offset:32
''')
if AMP:
    S('s_waitcnt vmcnt(0)')
    stamp('end')
    S(f'''
    s_cmp_lg_u32 s2, {opt('ampwg', 9)}
    s_cbranch_scc1 L_end
    s_memrealtime s[84:85]
    s_waitcnt lgkmcnt(0)
    s_sub_u32 s80, s82, s80
    s_lshl_b32 s80, s80, 2
    s_min_u32 s80, s80, 100000
    {('s_mov_b32 s80, %d' % opt('ampc', 0)) if opt('ampc', 0) else ''}
    L_amp:
    s_memrealtime s[86:87]
    s_waitcnt lgkmcnt(0)
    s_sub_u32 s86, s86, s84
    s_cmp_lt_u32 s86, s80
    s_cbranch_scc1 L_amp
    ''')
if STAMPS:
    stamp('red')
    S('s_waitcnt vmcnt(0)')
    stamp('end')
    S(f'''
    s_waitcnt lgkmcnt(0)
    s_cmp_lg_u32 {s_w}, 0
    s_cbranch_scc1 L_end
    v_writelane_b32 v0, s{ST0+2*((nstamp[0]-1)&1)}, {nstamp[0]-1}
    s_lshl_b32 {s_t0}, s2, 8
    s_add_u32 {s_t0}, {s_t0}, {STAMP_OFF}
    v_mbcnt_lo_u32_b32 v3, -1, 0
    v_mbcnt_hi_u32_b32 v3, -1, v3
    v_lshlrev_b32 v3, 2, v3
    buffer_store_dword v0, v3, {sWS}, {s_t0} offen
    ''')
    assert nstamp[0] <= 56, nstamp[0]
    open(OUT + '.stamps', 'w').write(' '.join(n or str(i) for i, n in enumerate(stamp_names)))
S('s_endpgm')

T = Stream()
nstamp[0] = 1
T('@reset')
T(f'''
L_spare:
s_waitcnt lgkmcnt(0)
s_load_dwordx2 s[56:57], s[0:1], 16
s_load_dwordx2 s[58:59], s[0:1], 40
s_load_dwordx2 s[8:9], s[0:1], 48
s_mov_b32 s30, {640*1280}
s_mov_b32 s10, 1280
''')
common_consts(T)
T(f'''
v_mov_b32 v64, 0
v_mov_b32 v65, 0
v_mov_b32 v66, 0
v_mov_b32 v67, 0
v_lshlrev_b32 {v_t1}, 4, v0
s_lshl_b32 {s_t2}, {s_rb}, 12
s_add_u32 {s_t2}, {s_t2}, {FLG}
''')
tokz = T.vm(f'buffer_store_dwordx4 v[64:67], {v_t1}, {sWS}, {s_t2} offen sc1')
def handshake():
    T.wait(tokz)
    T(f'''
    s_barrier
    s_lshl_b32 {s_t1}, {s_rb}, 2
    buffer_store_dword {v_one}, {v_flag}, {sDBG}, {s_t1} offen sc1
    ''')
STB = opt('stb', 0)
if STB:
    T(f'''
    s_mov_b32 s14, {640*3840}
    s_mov_b32 s15, 0x20000
    s_lshl_b32 {s_t0}, {s_rb}, 2
    s_add_u32 {s_t0}, {s_t0}, {s_w}
    s_mul_i32 {s_t0}, {s_t0}, {300*128}
    v_min_u32 {v_t1}, 59, {v_lane}
    v_lshlrev_b32 {v_t1}, 7, {v_t1}
    ''')
    for i in range(5):
        T(f'buffer_load_dword v{68+i}, {v_t1}, {sWB}, {s_t0} offen\ns_add_u32 {s_t0}, {s_t0}, {60*128}')
        if i == 2: handshake()
T(f'''
s_and_b32 {s_e0}, {s_rb}, 1
s_lshl_b32 {s_e0}, {s_e0}, 2
s_add_u32 {s_e0}, {s_e0}, {s_w}
s_bfe_u32 {s_e1}, {s_rb}, 0x20001
s_mul_i32 {s_t2}, {s_e0}, 160
s_mul_i32 {s_t1}, {s_e1}, {160*1280}
s_add_u32 {s_t2}, {s_t2}, {s_t1}
s_mov_b32 {s_t0}, {(1<<32)//10+1}
''')
for i in range(5):
    T(f'''
    v_add_u32 {v_t1}, {64*i}, {v_lane}
    v_mul_hi_u32 {v_t2}, {v_t1}, {s_t0}
    v_mul_u32_u24 {v_t3}, 10, {v_t2}
    v_sub_u32 {v_t1}, {v_t1}, {v_t3}
    v_mul_u32_u24 {v_t2}, 1280, {v_t2}
    v_lshl_add_u32 {v_t2}, {v_t1}, 4, {v_t2}
    v_add_u32 v{2+i}, {s_t2}, {v_t2}
    ''')
T(f'''
s_mul_i32 {s_mW}, {s_w}, 25600
s_waitcnt lgkmcnt(0)
s_cmp_ge_u32 {s_rb}, 8
s_cselect_b32 s28, s58, s56
s_cselect_b32 s29, s59, s57
''')
wtok = {}
def wo_dma(b):
    T(f's_mov_b32 {s_t3}, {b*32*1280}')
    for i in range(5):
        T(f's_add_u32 m0, {s_mW}, {1024*(5*b+i)}')
        wtok[5 * b + i] = T.vm(f'buffer_load_dwordx4 v{2+i}, {sTMP}, {s_t3} offen lds')
wo_dma(0); wo_dma(1)
T(f'''
v_lshrrev_b32 {v_t1}, 4, {v_lane}
v_bfe_u32 {v_t2}, {v_lane}, 2, 2
v_and_b32 {v_t3}, 3, {v_lane}
v_mul_u32_u24 {v_t3}, 40, {v_t3}
v_add_u32 {v_t3}, {s_mW}, {v_t3}
v_lshl_add_u32 {v_t2}, {v_t1}, 3, {v_t2}
v_mul_u32_u24 {v_t2}, 160, {v_t2}
v_add_u32 v7, {v_t2}, {v_t3}
s_lshr_b32 {s_t0}, {s_rb}, 3
s_lshl_b32 {s_t0}, {s_t0}, 3
s_add_u32 {s_t0}, {s_t0}, {s_e0}
s_lshl_b32 {s_t0}, {s_t0}, 2
s_add_u32 {s_t0}, {s_t0}, {s_e1}
s_mul_i32 {s_stb}, {s_t0}, 25600
v_and_b32 v9, 15, {v_lane}
v_lshlrev_b32 v9, 4, v9
v_mul_u32_u24 v10, 1280, {v_t1}
v_add_u32 v10, v10, v9
v_cmp_eq_u32 vcc, 0, v9
v_lshlrev_b32 {v_t1}, 2, {v_t1}
s_lshl_b32 {s_rot}, {s_rb}, 2
s_add_u32 {s_rot}, {s_rot}, {s_w}
v_cndmask_b32 v11, {v_big}, {v_t1}, vcc
''')
stamp('', T)
setup2(T); setup_lds(T)
wo_dma(2)
stamp('', T)
for s_ in range(5):
    T.wait(wtok[5 * s_ + 4])
    if s_ == 0 and not STB: handshake()
    for ct in range(5):
        f = 5 * s_ + ct
        for u in range(2):
            T(f'ds_read_b64_tr_b16 {vr(140+4*f+2*u,2)}, v7 offset:{(32*s_+4*u)*160+8*ct}')
    if s_ + 3 < 5: wo_dma(s_ + 3)
    if s_ == 2: poll_issue(T, v_pres, v_zero, sDBG, '0')
    for ct in range(5):
        f = 5 * s_ + ct
        if f % 4 == 0: T(f's_add_u32 {s_t1}, {s_stb}, {WOF + f*1024}')
        tokw = T.vm(f'buffer_store_dwordx4 {vr(140+4*f,4)}, {v_l16}, {sWS}, {s_t1} offen offset:{(f%4)*1024} sc1')
    if s_ == 2: tokw2 = tokw
    if FINE: stamp('', T)
poll_check(T, v_pres, v_zero, sDBG, '0')
stamp('', T)
GW = 224; GA = 48
T(f's_mul_i32 {s_t1}, {s_rot}, {32*1280}')
for j in range(5): T(f'buffer_load_dwordx4 {vr(GW+4*j,4)}, v9, {sWA}, 0 offen offset:{256*j}')
for i in range(8):
    for j in range(5): T(f'buffer_load_dwordx4 {vr(64+20*i+4*j,4)}, v10, {sX}, {s_t1} offen offset:{256*j}')
    T(f's_add_u32 {s_t1}, {s_t1}, {4*1280}')
    if i == 1:
        T.wait(tokw)
        T('s_barrier')
        set_flag(T, v_flag, s_f1, 0)
        stamp('', T)
poll_issue(T, v_pres, v_p1, sWS, s_F1A)
T(f's_lshl_b32 {s_rot}, {s_rot}, 7\ns_add_u32 {s_rot}, {s_rot}, {G_OFF}')
for i in range(8):
    T(f'v_mov_b32 v{GA+i}, 0')
    for k in range(20): T(f'v_dot2c_f32_bf16 v{GA+i}, v{64+20*i+k}, v{GW+k}')
for sh in (8, 4, 2, 1):
    for i in range(8): T(f'v_add_f32_dpp v{GA+i}, v{GA+i}, v{GA+i} row_ror:{sh} row_mask:0xf bank_mask:0xf')
for i in range(8): T(f'v_mul_f32 v{GA+i}, {f32(-math.log2(math.e))}, v{GA+i}')
for i in range(8): T(f'v_exp_f32 v{GA+i}, v{GA+i}')
for i in range(8): T(f'v_add_f32 v{GA+i}, 1.0, v{GA+i}')
for i in range(8): T(f'v_rcp_f32 v{GA+i}, v{GA+i}')
T.l += setup_late()
for i in range(8): tokg = T.vm(f'buffer_store_dword v{GA+i}, v11, {sWS}, {s_rot} offen offset:{16*i} sc1')
stamp('', T)
T.l += mask_far() + zero_pads()
poll_check(T, v_pres, v_p1, sWS, s_F1A)
stamp('', T)
kv, _ = kvq_loads()
for g in kv: T.l += g
for g in wo_loads(0, NWO1): T.l += g
if WT > KV0:
    a_, b_ = wo_touch(); T.l += a_ + b_
T('s_waitcnt vmcnt(0) lgkmcnt(0)\ns_barrier')
T.l += att_pre()
T(qka(0)); T(qkb(0))
T.l += mask_rest()[:8]
T('s_nop 7')
assert nstamp[0] <= nst_join
while nstamp[0] < nst_join: stamp('', T)
T('s_waitcnt lgkmcnt(0)')
T('s_branch L_join')

def undef_check(l, name):
    d = {'v0', 's0', 's1', 's2', 'exec'}; bad = []
    for i in l:
        u = i.uses - d if i.kind not in ('pseudo', 'label', 'none') else set()
        if u: bad.append((sorted(u), i.text))
        d |= i.defs | u
    if bad: print('USE BEFORE DEF in', name, bad)
ib = next(k for k, i in enumerate(S.l) if 'L_spare' in i.text); ij = next(k for k, i in enumerate(S.l) if i.text == 'L_join:')
undef_check(S.l, 'main'); undef_check(S.l[:ib] + T.l + S.l[ij:], 'spare')
S.extend(T); S.extend(tail)
S('L_end:\ns_endpgm')
S.extend(FBK)

XP = opt('xp', 0)
if XP:
    def drop(i):
        if XP & 96 and 's_cbranch_vccnz L_again' in i.text: return True
        if XP & 32 and 'store_dwordx2' in i.text and 's16' in i.uses: return True
        if XP & 128 and 'store' in i.text and 's16' in i.uses and (v_q4 in i.uses or v_qe in i.uses): return True
        if i.kind != 'vm': return False
        t = i.text
        if XP & 1 and s_e2 in i.uses and 'load' in t: return True
        if XP & 2 and 'load' in t and i.uses & {'v%d' % r for r in range(2, 10)} and 's16' in i.uses and 'lds' not in t and i.uses & {'s%d' % r for r in list(range(60, 66)) + list(range(70, 76))} and 'v8' not in i.uses - {None} | set() or False: return True
        if XP & 4 and 'load' in t and 's16' in i.uses and (v_q4 in i.uses or v_qe in i.uses or v_qo in i.uses or v_kb1 in i.uses) and i.uses & {'s60', 's61', 's62', 's63'}: return True
        if XP & 8 and 'store' in t and v_st in i.uses and 's16' in i.uses and i.tok not in (tokA, tokB): return True
        if XP & 16 and 'lds' in t and s_e1 in i.uses and i.tok is not tokKV: return True
        return False
    S.l = [i for i in S.l if not drop(i)]
stats = []
body = finalize(S, stats)
hdr = open('cdna_kernels/%s.s.ref' % NAME).read().split('; Override')[0]
K = NAME + '_kernel'
txt = hdr + f'''; Generated by a hand-written generator script: one persistent workgroup per CU, phases chained by flags in d_ws.
; @launch grid=(256,1,1) block=(256,1,1) lds={LDS_BYTES}
.amdgcn_target "amdgcn-amd-amdhsa--gfx950"
.text
.globl {K}
.p2align 8
.type {K},@function
{K}:
''' + '\n'.join(body) + f'''
.section .rodata,"a"
.p2align 6
.amdhsa_kernel {K}
  .amdhsa_next_free_vgpr 512
  .amdhsa_next_free_sgpr 102
  .amdhsa_accum_offset 256
  .amdhsa_group_segment_fixed_size 0
  .amdhsa_kernarg_size 80
  .amdhsa_user_sgpr_count 2
  .amdhsa_user_sgpr_kernarg_segment_ptr 1
  .amdhsa_system_sgpr_workgroup_id_x 1
  .amdhsa_float_denorm_mode_32 3
.end_amdhsa_kernel
'''
open(OUT, 'w').write(txt)
print('instructions:', len(body), ' nops:', len(stats), sum(s[0] for s in stats), ' overflow slots', over, 'WS_SIZE', WS_SIZE)
if '--nops' in ARGS:
    for s in stats: print(s)
```

```python
import sys, math, struct
from fw import *

NAME = "gated_mix__sliding_block__sliding_local_dilated__prompt"
ARGS = sys.argv[1:]
STAMPS = '--stamps' in ARGS
FINE = '--fine' in ARGS
FINE2 = '--fine2' in ARGS
def opt(name, default):
    for a in ARGS:
        if a.startswith('--' + name + '='): return int(a.split('=')[1])
    return default
OUT = [a for a in ARGS if not a.startswith('--')]
OUT = OUT[0] if OUT else 'k.s'

GRP = 2048 * 16
QKV = [0, 240 * GRP]
WOF = 480 * GRP
G_OFF = WOF + 64 * 25600
FLG = G_OFF + 8192
F1 = [FLG, FLG + 32768]
WS_SIZE = FLG + 65536
STAMP_OFF = WS_SIZE
BIG = 0x40000000
L_X = 65536
GS = 8192 + 64
L_KA = L_X + 16384; L_VA = L_KA + 3 * GS
L_VB = 131072 + 512; VBW = 4608
L_ONE = L_VB + 4 * VBW + ((L_VA + 3 * GS) % 256)
L_TAB = L_VB + 4 * VBW + 8192 + 256
LDS_BYTES = 160 * 1024
assert L_TAB + 1024 <= LDS_BYTES and L_VA + 3 * GS <= L_VB

def f32(x): return '0x%08x' % struct.unpack('<I', struct.pack('<f', x))[0]
QSCALE = (20 ** -0.5) * math.log2(math.e)
NEGINF = '0xff800000'

sX, sWA, sWB, sWS, sOUT, sDBG, sTMP = 's[4:7]', 's[8:11]', 's[12:15]', 's[16:19]', 's[20:23]', 's[24:27]', 's[28:31]'
s_xcd, s_t, s_rb, s_cb, s_w = 's32', 's33', 's34', 's35', 's36'
s_t0, s_t1, s_t2, s_t3 = 's37', 's38', 's39', 's40'
s_stb, s_scale, s_inv, s_mW, s_mX = 's41', 's42', 's43', 's44', 's45'
s_hd, s_r2, s_so, s_q0 = 's46', 's47', 's48', 's49'
s_cnt, s_f1, s_tag, s_rnd, s_k1, s_wob = 's50', 's51', 's52', 's53', 's54', 's55'
SW0, SX0 = 60, 70
ST0 = 80
s_bF, s_bS, s_dF, s_dS, s_mK, s_mV, s_gb, s_rot = 's84', 's85', 's86', 's87', 's88', 's89', 's90', 's91'
s_e0, s_e1, s_e2, s_e3 = 's92', 's93', 's94', 's95'
s_F1A, s_F1B, s_F2, s_q0z, s_R, s_C = 's96', 's97', 's98', 's99', 's100', 's101'
ROWMAP = opt('rowmap', 0); QRND = opt('qrnd', 0)
v_lane = 'v1'
VWD, VXD, VWR, VXR = 2, 6, 10, 14
VWX = [14, 15, 42, 44]
v_dma, v_gad, v_kb0, v_k1 = 'v6', 'v7', 'v8', 'v9'
v_st, v_flag, v_one, v_pres, v_l16, v_big = 'v16', 'v17', 'v18', 'v19', 'v20', 'v21'
v_t1, v_t2, v_t3, v_t4, v_tmp, v_zero = 'v22', 'v23', 'v24', 'v25', 'v26', 'v27'
(v_p1, v_p2, v_p3, v_q4, v_qe, v_qo, v_k0, v_v, v_vb, v_vh, v_kb1, v_halo, v_mA, v_mB0, v_flagw, v_o4, v_o2, v_h, v_r, v_tabc) = ['v%d' % i for i in range(28, 48)]
WRING = 48
ACC = [64, 128]
XV = 192
E0, P0 = 48, 56
SB = [64, 192]; M_FAR, M_DIAG = 80, 208; QA0, QA1 = 96, 104; OA = [224, 240]
QB0, QB1, KB0 = 128, 136, 144
v_g = ['v46', 'v47']
MB_DIAG, MB_PREV, MB_PREV0 = 160, 168, 176
SP = [64, 192]; SD = [80, 208]; OB = [96, 112]
V4, V2, VRW, v_rr, v_out, v_p4 = 2, 6, 10, 'v13', 'v14', 'v15'
AC3 = 16; OF = [[128, 144, 160, 176, 224], [96, 112, 192, 208, 240]]; RED = 128
AK0, AK1, AV, AKB1 = 200, 208, 216, 232
VB = 200

def vr(b, n): return 'v[%d:%d]' % (b, b + n - 1)
def ar(b, n): return 'a[%d:%d]' % (b, b + n - 1)
mm = 'v_mfma_f32_32x32x16_bf16'

S = Stream()
tail = Stream()
nstamp = [0]; stamp_names = []
AMP = [a.split('=')[1].split(',') for a in ARGS if a.startswith('--amp=')]
AMP = AMP[0] if AMP else None
def stamp(name='', st=None):
    if AMP and name in AMP and st is None: S('s_memrealtime s[%d:%d]' % (ST0 + 2 * AMP.index(name), ST0 + 2 * AMP.index(name) + 1))
    if STAMPS:
        st = st or S
        k = nstamp[0]
        if k == 1:
            for i in range(56, 64): st('v_writelane_b32 v0, 0, %d' % i)
        if k > 0: st('v_writelane_b32 v0, s%d, %d' % (ST0 + 2 * ((k - 1) & 1), k - 1))
        st('s_memrealtime s[%d:%d]' % (ST0 + 2 * (k & 1), ST0 + 2 * (k & 1) + 1))
        if '--clk' in ARGS and st is S and 3 <= k <= 24:
            if k > 3: st('v_writelane_b32 v0, s%d, %d' % (28 + 2 * ((k - 1) & 1), 30 + k - 1))
            st('s_memtime s[%d:%d]' % (28 + 2 * (k & 1), 29 + 2 * (k & 1)))
    stamp_names.append(name)
    nstamp[0] += 1
def st2(n):
    if FINE2: stamp(n)
nlab = [0]
def lab(p):
    nlab[0] += 1
    return 'L_%s_%d' % (p, nlab[0])

PIDX = {v_zero: 0, v_p1: 1, v_p2: 2, v_p3: 3, v_p4: 4}
def poll_issue(st, res, adr, srd, soff, off=0):
    st('buffer_load_dword %s, %s, %s, %s offen offset:%d sc1' % (res, adr, srd, soff, off))
def poll_check(st, res, adr, srd, soff, off=0):
    l = lab('poll'); b = lab('back')
    st('v_cmp_ne_u32 vcc, 1, %s' % res)
    st('s_cbranch_vccnz %s' % l)
    st(b + ':')
    tail('@reset')
    tail(f'''
    {l}:
    s_mov_b32 {s_cnt}, 0
    {l}_a:
    buffer_load_dword {res}, {adr}, {srd}, {soff} offen offset:{off} sc1
    s_add_u32 {s_cnt}, {s_cnt}, 1
    {('v_writelane_b32 v0, %s, %d' % (s_cnt, 56 + PIDX[adr] + off // 4)) if STAMPS else ''}
    s_waitcnt vmcnt(0)
    v_cmp_ne_u32 vcc, 1, {res}
    s_cbranch_vccz {b}
    s_cmp_lt_u32 {s_cnt}, 0x40000
    s_cbranch_scc1 {l}_a
    s_branch {b}
    ''')
def poll(st, res, adr, srd, soff):
    poll_issue(st, res, adr, srd, soff); poll_check(st, res, adr, srd, soff)
def set_flag(st, vf, base, off):
    st(f'buffer_store_dword {v_one}, {vf}, {sWS}, {base} offen offset:{off} sc1')
def mk(fn, *a):
    st = Stream(); fn(st, *a); return st.l
def L(txt):
    st = Stream(); st(txt); return st.l

def setup2(st):
    st(f'''
    s_mov_b32 s14, {640*3840}
    s_mov_b32 s15, 0x20000
    s_mov_b32 s22, {2048*1280}
    s_mov_b32 s23, 0x20000
    s_mov_b32 {s_F1A}, {F1[0]}
    s_mov_b32 {s_F1B}, {F1[1]}
    s_and_b32 {s_C}, {s_t}, 7
    s_lshr_b32 {s_t2}, {s_t}, 3
    s_lshl_b32 {s_t0}, {s_xcd}, 2
    s_add_u32 {s_R}, {s_t0}, {s_t2}
    s_mov_b32 {s_r2}, {s_xcd if ROWMAP else s_C}
    s_mov_b32 {s_hd}, {s_t if ROWMAP else s_R}
    ''')
    if opt('map3', 1) == 1:
        st(f'''
        s_lshr_b32 {s_R}, {s_xcd}, 1
        s_lshl_b32 {s_R}, {s_R}, 3
        s_lshr_b32 {s_t0}, {s_t}, 2
        s_add_u32 {s_R}, {s_R}, {s_t0}
        s_and_b32 {s_C}, {s_xcd}, 1
        s_lshl_b32 {s_C}, {s_C}, 2
        s_and_b32 {s_t0}, {s_t}, 3
        s_add_u32 {s_C}, {s_C}, {s_t0}
        ''')
    st(f'''
    s_lshl_b32 {s_q0}, {s_r2}, 8
    s_lshl_b32 {s_t0}, {s_w}, 6
    s_add_u32 {s_q0}, {s_q0}, {s_t0}
    s_mul_i32 {s_e0}, {s_hd}, 5
    s_lshr_b32 {s_e0}, {s_e0}, 1
    s_and_b32 {s_t3}, {s_hd}, 1
    s_add_u32 {s_e1}, {s_e0}, {s_t3}
    s_lshl_b32 {s_so}, {s_t3}, 3
    s_lshl_b32 {s_t3}, {s_t3}, 1
    s_add_u32 {s_e2}, {s_e0}, 2
    s_sub_u32 {s_e2}, {s_e2}, {s_t3}
    s_lshl_b32 {s_e1}, {s_e1}, 15
    s_lshl_b32 {s_e2}, {s_e2}, 15
    s_lshl_b32 {s_t0}, {s_q0}, 4
    s_add_u32 {s_bF}, {s_e1}, {s_t0}
    s_add_u32 {s_bS}, {s_e2}, {s_t0}
    s_lshl_b32 {s_e3}, {s_r2}, 1
    s_add_u32 {s_e3}, {s_e3}, {s_w}
    s_lshl_b32 {s_t0}, {s_e3}, 11
    s_add_u32 {s_dF}, {s_e1}, {s_t0}
    s_add_u32 {s_dS}, {s_e2}, {s_t0}
    s_lshl_b32 {s_mK}, {s_w}, 11
    s_mul_i32 {s_mV}, {s_w}, {VBW}
    s_add_u32 {s_mV}, {s_mV}, {L_VB}
    s_lshl_b32 {s_gb}, {s_q0}, 2
    s_add_u32 {s_gb}, {s_gb}, {G_OFF}
    s_lshl_b32 {s_f1}, {s_rb}, 11
    s_lshl_b32 {s_t0}, {s_cb}, 7
    s_add_u32 {s_f1}, {s_f1}, {s_t0}
    s_add_u32 {s_f1}, {s_f1}, {F1[0]}
    s_lshl_b32 {s_wob}, {s_C}, 2
    s_add_u32 {s_wob}, {s_wob}, {s_w}
    s_mul_i32 {s_wob}, {s_wob}, 25600
    v_and_b32 {v_zero}, 60, {v_lane}
    v_lshrrev_b32 {v_h}, 5, {v_lane}
    v_and_b32 {v_r}, 31, {v_lane}
    v_bfe_u32 {v_t1}, {v_lane}, 2, 1
    v_lshl_add_u32 {v_t1}, {v_t1}, 1, {s_e0}
    v_lshrrev_b32 {v_t1}, 4, {v_t1}
    v_and_b32 {v_t2}, 3, {v_lane}
    v_min_u32 {v_t3}, 2, {v_t2}
    v_mad_u32_u24 {v_t4}, {v_t3}, 5, {v_t1}
    v_mad_u32_u24 {v_tmp}, {v_t2}, 5, {v_t1}
    v_min_u32 {v_tmp}, 15, {v_tmp}
    s_sub_u32 {s_t1}, {s_e3}, 2
    s_max_i32 {s_t1}, {s_t1}, 0
    s_lshl_b32 {s_t1}, {s_t1}, 11
    s_andn2_b32 {s_t2}, {s_q0}, 127
    s_lshl_b32 {s_t2}, {s_t2}, 4
    v_cmp_eq_u32 vcc, 0, {v_t2}
    v_mov_b32 {v_t1}, {s_t1}
    v_mov_b32 {v_t3}, {s_t2}
    v_cndmask_b32 {v_t1}, {v_t1}, {v_t3}, vcc
    v_lshl_add_u32 {v_p1}, {v_t4}, 7, {v_t1}
    s_sub_u32 {s_t1}, {s_q0}, 32
    s_max_i32 {s_t1}, {s_t1}, 0
    s_andn2_b32 {s_t1}, {s_t1}, 127
    s_lshl_b32 {s_t1}, {s_t1}, 4
    v_and_b32 {v_t2}, 8, {v_lane}
    v_cmp_eq_u32 vcc, 0, {v_t2}
    v_mov_b32 {v_t1}, {s_t1}
    v_and_b32 {v_t2}, 1, {v_lane}
    v_cndmask_b32 {v_t1}, {v_t1}, {v_t3}, vcc
    v_lshl_add_u32 {v_p3}, {v_tmp}, 7, {v_t1}
    v_cmp_gt_u32 s[38:39], 32, {v_lane}
    s_lshr_b32 {s_t0}, {s_R}, 1
    s_lshl_b32 {s_t0}, {s_t0}, 4
    s_add_u32 {s_t0}, {s_t0}, {s_w}
    v_add_lshl_u32 {v_t1}, {v_t2}, {s_t0}, 7
    v_cndmask_b32 {v_p3}, {v_t1}, {v_p3}, s[38:39]
    s_lshl_b32 {s_t0}, {s_w}, 1
    s_lshr_b32 {s_t1}, {s_C}, 2
    s_add_u32 {s_t0}, {s_t0}, {s_t1}
    s_lshl_b32 {s_t0}, {s_t0}, 11
    s_add_u32 {s_t0}, {s_t0}, {15*128}
    v_lshl_add_u32 {v_p2}, {v_t2}, 14, {s_t0}
    v_cndmask_b32 {v_p1}, {v_p2}, {v_p1}, vcc
    ''')
    st(f'''
    v_lshlrev_b32 {v_q4}, 15, {v_h}
    v_lshl_add_u32 {v_q4}, {v_r}, 4, {v_q4}
    v_cmp_eq_u32 vcc, 0, {v_h}
    v_lshl_add_u32 {v_t1}, {v_r}, 4, {s_so}
    s_cmp_eq_u32 {s_q0}, 0
    s_cselect_b32 {s_q0z}, {BIG}, 0
    v_cndmask_b32 {v_qe}, {v_big}, {v_t1}, vcc
    v_cndmask_b32 {v_qo}, {v_t1}, {v_big}, vcc
    v_mov_b32 {v_t2}, {s_q0z}
    v_cndmask_b32 {v_t2}, 0, {v_t2}, vcc
    v_add3_u32 {v_kb1}, {v_t2}, {v_l16}, {s_so}
    v_and_b32 {v_t2}, 15, {v_lane}
    v_mov_b32 {v_o4}, 0x10000
    v_lshrrev_b32 {v_t1}, 4, {v_lane}
    v_lshl_add_u32 {v_t3}, {v_t1}, 15, {s_bF}
    v_cmp_eq_u32 vcc, 2, {v_t1}
    v_mov_b32 {v_t4}, {s_bS}
    s_add_u32 {s_t3}, {s_q0z}, {QKV[1] + 160*GRP - 256}
    v_cndmask_b32 {v_t3}, {v_t3}, {v_t4}, vcc
    v_cmp_eq_u32 vcc, 3, {v_t1}
    v_lshl_add_u32 {v_t3}, {v_t2}, 4, {v_t3}
    v_add_u32 {v_t3}, {s_t3}, {v_t3}
    v_cndmask_b32 {v_halo}, {v_t3}, {v_big}, vcc
    ''')
    st(f'''
    s_lshl_b32 {s_t0}, {s_w}, 10
    v_mul_u32_u24 {v_t1}, {GS}, {v_h}
    v_lshl_add_u32 {v_t1}, {v_r}, 4, {v_t1}
    s_add_u32 {s_t1}, {s_t0}, {L_KA}
    v_add_u32 {v_k0}, {s_t1}, {v_t1}
    s_add_u32 {s_k1}, {s_t0}, {L_KA + 2*GS}
    s_add_u32 {s_k1}, {s_k1}, {s_so}
    v_bfe_u32 {v_t1}, {v_lane}, 2, 2
    v_lshl_add_u32 {v_t1}, {v_h}, 2, {v_t1}
    v_lshlrev_b32 {v_t1}, 4, {v_t1}
    v_and_b32 {v_pres}, 16, {v_lane}
    v_cmp_eq_u32 vcc, 0, {v_pres}
    v_and_b32 {v_t2}, 1, {v_lane}
    v_bfe_u32 {v_t3}, {v_lane}, 1, 1
    v_add_u32 {v_t4}, 2, {v_t3}
    v_lshlrev_b32 {v_t3}, 3, {v_t3}
    v_mov_b32 {v_tmp}, {s_so}
    v_cndmask_b32 {v_t2}, {v_t4}, {v_t2}, vcc
    v_cndmask_b32 {v_t3}, {v_tmp}, {v_t3}, vcc
    v_cmp_eq_u32 vcc, 3, {v_t2}
    v_add_u32 {v_t1}, {v_t1}, {v_t3}
    s_add_u32 {s_t1}, {s_t0}, {L_VA}
    v_mul_u32_u24 {v_t3}, {GS}, {v_t2}
    v_add3_u32 {v_v}, {v_t1}, {v_t3}, {s_t1}
    v_mul_u32_u24 {v_t3}, 1088, {v_t2}
    v_add3_u32 {v_vb}, {v_t1}, {v_t3}, {s_mV}
    s_add_u32 {s_t1}, {s_mV}, {3*1088}
    v_lshlrev_b32 {v_t3}, 8, {v_t2}
    v_add3_u32 {v_vh}, {v_t1}, {v_t3}, {s_t1}
    s_add_u32 {s_t1}, {s_t0}, {L_ONE}
    v_add_u32 {v_t3}, {s_t1}, {v_t1}
    v_add_u32 {v_t1}, {L_ONE + 4096}, {v_t1}
    v_cndmask_b32 {v_v}, {v_v}, {v_t3}, vcc
    v_cndmask_b32 {v_vb}, {v_vb}, {v_t1}, vcc
    v_cndmask_b32 {v_vh}, {v_vh}, {v_t1}, vcc
    ''')
    st(f'''
    v_lshlrev_b32 {v_t1}, 2, {v_h}
    v_sub_u32 {v_t1}, {v_t1}, {v_r}
    v_lshlrev_b32 {v_t1}, 2, {v_t1}
    v_add_u32 {v_mA}, {L_TAB + 128}, {v_t1}
    s_cmp_eq_u32 {s_q0}, 0
    s_cselect_b64 vcc, -1, 0
    v_mov_b32 {v_t1}, {L_TAB + 4*64}
    v_cndmask_b32 {v_mB0}, {v_mA}, {v_t1}, vcc
    ''')
def setup_lds(st):
    st(f'''
    s_and_b32 {s_cnt}, {s_xcd if ROWMAP else s_t}, 7
    s_lshl_b32 {s_cnt}, {s_cnt}, 1
    s_add_u32 {s_cnt}, {s_cnt}, {s_w}
    s_cmp_ge_u32 {s_cnt}, 2
    s_cselect_b32 {s_inv}, 0, {BIG}
    s_cselect_b32 {s_cnt}, 0x3f803f80, 0
    v_mov_b32 v128, {s_cnt}
    v_mov_b32 v129, {s_cnt}
    v_mov_b32 v130, {s_cnt}
    v_mov_b32 v131, {s_cnt}
    s_lshl_b32 {s_cnt}, {s_w}, 11
    s_add_u32 {s_cnt}, {s_cnt}, {L_ONE}
    v_add_u32 v132, {s_cnt}, {v_l16}
    ds_write_b128 v132, v[128:131]
    ds_write_b128 v132, v[128:131] offset:1024
    ''')
    mk_ = [0, 0, 0, 0]
    for e in range(256):
        ok = (e - 32 <= 0) if e < 64 else (e - 96 > 0) if e < 128 else (0 <= 191 - e <= 14 and (191 - e) % 2 == 0)
        if ok: mk_[e >> 6] |= 1 << (e & 63)
    assert mk_[3] == 0 and mk_[1] & 0xffffffff == 0 and mk_[2] & 0xffffffff == 0
    st(f'''
    s_cmp_eq_u32 {s_w}, 0
    s_cselect_b32 s58, 0x{mk_[0] & 0xffffffff:x}, 0
    s_cselect_b32 s59, 0x{mk_[0] >> 32:x}, 0
    s_cmp_eq_u32 {s_w}, 1
    s_cselect_b32 s59, 0x{mk_[1] >> 32:x}, s59
    s_cmp_eq_u32 {s_w}, 2
    s_cselect_b32 s59, 0x{mk_[2] >> 32:x}, s59
    v_mov_b32 v138, {NEGINF}
    s_lshl_b32 {s_cnt}, {s_w}, 8
    s_add_u32 {s_cnt}, {s_cnt}, {L_TAB}
    v_cndmask_b32 v138, v138, 0, s[58:59]
    v_lshl_add_u32 v139, {v_lane}, 2, {s_cnt}
    ds_write_b32 v139, v138
    ''')
def setup_late():
    return L(f'''
    v_add_u32 {v_dma}, {s_inv}, {v_l16}
    v_lshlrev_b32 {v_gad}, 2, {v_r}
    v_add_u32 {v_kb0}, {s_q0z}, {v_q4}
    v_add_u32 {v_k1}, {s_k1}, {v_l16}
    ''')
def zero_pads():
    return L('\n'.join(f'v_accvgpr_write_b32 a{b}, 0' for b in (AK1 + 2, AK1 + 3, AK1 + 6, AK1 + 7, AKB1 + 2, AKB1 + 3, AKB1 + 6, AKB1 + 7))
             + f'\nv_mov_b32 v{QA1+8}, 0\nv_mov_b32 v{QA1+9}, 0')

def mask_reads(reg, adr, base, a0=0):
    l = []
    for a in range(a0, 4):
        for b in (0, 2):
            k = base + 8 * a + b
            l.append(Ins(f'ds_read2_b32 {vr(reg+4*a+b,2)}, {adr} offset0:{k} offset1:{k+1}'))
    return l
def mask_far(): return mask_reads(M_FAR, v_mA, 64)
def mask_rest(): return mask_reads(M_DIAG, v_mA, 0) + mask_reads(MB_DIAG, v_mA, 159) + mask_reads(MB_PREV, v_mA, 127, 2) + mask_reads(MB_PREV0, v_mB0, 127, 2)

def kvq_loads():
    g = []
    for ty in (1, 2):
        for gi in range(3):
            g.append(L(f's_add_u32 m0, {s_mK}, {(L_KA if ty == 1 else L_VA) + gi*GS}\n'
                       f's_add_u32 {s_e1}, {s_dS if gi == 2 else s_dF}, {QKV[0] + (80*ty + (gi if gi < 2 else 0))*GRP - 4096}'))
            g.append(L(f'buffer_load_dwordx4 {v_dma}, {sWS}, {s_e1} offen sc1 lds'))
            st = Stream()
            tok = st.vm(f'buffer_load_dwordx4 {v_dma}, {sWS}, {s_e1} offen offset:1024 sc1 lds')
            g.append(st.l)
    for x in (f'buffer_load_dwordx4 {vr(QA0,4)}, {v_q4}, {sWS}, {s_bF} offen sc1',
              f'buffer_load_dwordx2 {vr(QA1,2)}, {v_qe}, {sWS}, {s_bS} offen sc1',
              f'buffer_load_dwordx2 {vr(QA1+2,2)}, {v_qo}, {sWS}, {s_bS} offen sc1',
              f'buffer_load_dwordx4 {vr(QA0+4,4)}, {v_q4}, {sWS}, {s_bF} offen offset:512 sc1',
              f'buffer_load_dwordx2 {vr(QA1+4,2)}, {v_qe}, {sWS}, {s_bS} offen offset:512 sc1',
              f'buffer_load_dwordx2 {vr(QA1+6,2)}, {v_qo}, {sWS}, {s_bS} offen offset:512 sc1'):
        g.append([Ins(x)])
    return g, tok
def wo_loads(f0, f1, adr=v_l16):
    g = []
    for F in range(f0, f1):
        br, f = F // 25, F % 25
        if f % 4 == 0 or F == f0: g.append(L(f's_add_u32 {s_e2}, {s_wob}, {WOF + br*32*25600 + (f & ~3)*1024}'))
        g.append(L(f'buffer_load_dwordx4 {ar(4*F,4)}, {adr}, {sWS}, {s_e2} offen offset:{(f%4)*1024} sc1'))
    return g

steps = [(0, 0)] + [(j, q) for j in range(1, 9) for q in range(2)] + [(9, 1)]
def k0_read(j): return Ins(f'ds_read_b128 {ar(AK0+4*(j&1),4)}, {v_k0} offset:{512*j}')
def k1_read(j): return Ins(f'ds_read_b64 {ar(AK1+4*((j>>1)&1),2)}, {v_k1} offset:{512*j}')
def v_read(j, kk, u): return Ins(f'ds_read_b64_tr_b16 {ar(AV+8*(j&1)+4*kk+2*u,2)}, {v_v} offset:{512*j+256*kk+128*u}')
def qka(n):
    j, q = steps[n]
    c = vr(M_FAR, 16) if j == q else vr(M_DIAG, 16) if j == 8 + q else '0'
    return f'{mm} {vr(SB[n&1],16)}, {ar(AK0+4*(j&1),4)}, {vr(QA0+4*q,4)}, {c}'
def qkb(n):
    j, q = steps[n]
    return f'{mm} {vr(SB[n&1],16)}, {ar(AK1+4*((j>>1)&1),4)}, {vr(QA1+4*q+2*(j&1),4)}, {vr(SB[n&1],16)}'
def pv(n, kk):
    j, q = steps[n]
    c = '0' if (j == q and kk == 0) else vr(OA[q], 16)
    return f'{mm} {vr(OA[q],16)}, {ar(AV+8*(j&1)+4*kk,4)}, {vr(P0+4*kk,4)}, {c}'
def exps(n, g): return [f'v_exp_f32 v{E0+4*(g&1)+i}, v{SB[n&1]+4*g+i}' for i in range(4)]
def cvts(g): return [f'v_cvt_pk_bf16_f32 v{P0+2*g+i}, v{E0+4*(g&1)+2*i}, v{E0+4*(g&1)+2*i+1}' for i in range(2)]
def att_pre(): return [k0_read(0), k1_read(0), k0_read(1)] + [v_read(0, kk, u) for kk in range(2) for u in range(2)]

S(f'''
s_cmp_ge_u32 s2, 0x100
s_cbranch_scc1 L_end
s_load_dwordx2 s[4:5], s[0:1], 0
s_load_dwordx2 s[8:9], s[0:1], 8
s_load_dwordx2 s[12:13], s[0:1], 32
s_load_dwordx2 s[16:17], s[0:1], 72
s_load_dwordx2 s[20:21], s[0:1], 56
s_load_dwordx2 s[24:25], s[0:1], 64
''')
stamp('start')
if opt('cpf', 1):
    S(f'''
    s_getpc_b64 s[28:29]
    L_pc:
    s_mov_b32 s30, L_end-L_pc
    s_mov_b32 s31, 0x20000
    s_andn2_b32 {s_t0}, s2, 7
    v_min_u32 v132, 7, v0
    v_add_lshl_u32 v132, v132, {s_t0}, 7
    buffer_load_dword v133, v132, {sTMP}, 0 offen
    ''')
S(f'''
v_lshrrev_b32 {v_tmp}, 6, v0
v_and_b32 {v_lane}, 63, v0
v_readfirstlane_b32 {s_w}, {v_tmp}
s_and_b32 {s_xcd}, s2, 7
{('s_xor_b32 %s, %s, %d' % (s_xcd, s_xcd, opt('xmap', 0))) if opt('xmap', 0) else ''}
s_lshr_b32 {s_t}, s2, 3
s_and_b32 {s_t0}, {s_xcd}, 1
s_lshl_b32 {s_t0}, {s_t0}, 3
s_and_b32 {s_t1}, {s_t}, 7
s_add_u32 {s_rb}, {s_t0}, {s_t1}
s_lshr_b32 {s_t0}, {s_xcd}, 1
s_lshl_b32 {s_t0}, {s_t0}, 2
s_lshr_b32 {s_t2}, {s_t}, 3
s_add_u32 {s_cb}, {s_t0}, {s_t2}
s_mov_b32 s6, {2048*1280}
s_mov_b32 s7, 0x20000
s_mov_b32 s11, 0x20000
s_cmp_eq_u32 {s_cb}, 15
s_cbranch_scc1 L_spare
s_mov_b32 s10, {640*3840}
s_lshl_b32 {s_rot}, {s_t2}, 1
s_add_u32 {s_rot}, {s_rot}, {s_t1}
''')
if opt('rot', 24) == 8:
    S(f's_and_b32 {s_rot}, {s_rot}, 7\ns_mul_i32 {s_rot}, {s_rot}, 5\ns_lshr_b32 {s_rot}, {s_rot}, 2')
elif opt('rot', 24) == 1:
    S(f's_mov_b32 {s_rot}, 0')
elif opt('rot', 24) == 2:
    S(f's_add_u32 {s_rot}, {s_t1}, {s_t2}\ns_and_b32 {s_rot}, {s_rot}, 1\ns_mul_i32 {s_rot}, {s_rot}, 5')
elif opt('rot', 24) == 3:
    S(f's_add_u32 {s_rot}, {s_t1}, {s_t2}\ns_mul_i32 {s_t0}, {s_rot}, 86\ns_lshr_b32 {s_t0}, {s_t0}, 8\ns_mul_i32 {s_t0}, {s_t0}, 3\ns_sub_u32 {s_rot}, {s_rot}, {s_t0}\ns_mul_i32 {s_rot}, {s_rot}, 7\ns_lshr_b32 {s_rot}, {s_rot}, 1')
elif opt('rot', 24) == 4:
    S(f's_add_u32 {s_rot}, {s_t1}, {s_t2}\ns_and_b32 {s_rot}, {s_rot}, 3\ns_mul_i32 {s_rot}, {s_rot}, 5\ns_lshr_b32 {s_rot}, {s_rot}, 1')
elif opt('rot', 24) in (22, 24):
    m_ = 1 if opt('rot', 24) == 22 else 3
    S(f'''
    s_add_u32 {s_rot}, {s_t1}, {s_t2}
    s_and_b32 {s_rot}, {s_rot}, 1
    s_mul_i32 {s_rot}, {s_rot}, {m_ + 1}
    s_and_b32 {s_t0}, {s_xcd}, 1
    s_mul_i32 {s_t0}, {s_t0}, {(m_ + 1) // 2}
    s_lshr_b32 {s_t3}, {s_xcd}, 1
    s_add_u32 {s_t0}, {s_t0}, {s_t3}
    s_and_b32 {s_t0}, {s_t0}, {m_}
    s_add_u32 {s_rot}, {s_rot}, {s_t0}
    s_mul_i32 {s_rot}, {s_rot}, 5
    s_lshr_b32 {s_rot}, {s_rot}, {1 if m_ == 1 else 2}
    ''')
elif opt('rot', 24) == 14:
    S(f'''
    s_and_b32 {s_t0}, {s_xcd}, 1
    s_lshl_b32 {s_t0}, {s_t0}, 1
    s_lshr_b32 {s_t3}, {s_xcd}, 1
    s_add_u32 {s_t0}, {s_t0}, {s_t3}
    s_and_b32 {s_rot}, {s_t0}, 3
    s_mul_i32 {s_rot}, {s_rot}, 5
    s_lshr_b32 {s_rot}, {s_rot}, 1
    ''')
else:
    S(f'''
    s_lshl_b32 {s_rot}, {s_rot}, 1
    s_add_u32 {s_t0}, {s_xcd}, 1
    s_lshr_b32 {s_t0}, {s_t0}, 1
    s_add_u32 {s_rot}, {s_rot}, {s_t0}
    s_and_b32 {s_rot}, {s_rot}, 15
    s_mul_i32 {s_rot}, {s_rot}, 5
    s_lshr_b32 {s_rot}, {s_rot}, 3
    ''')
def rot(st, n):
    if n >= 1: st(f's_cmp_eq_u32 {s_rot}, 10\ns_cselect_b32 {s_rot}, 0, {s_rot}')
    st(f'''
    s_mul_i32 s{SW0+n}, {s_rot}, {64*3840}
    s_lshl_b32 s{SX0+n}, {s_rot}, 7
    s_add_u32 {s_rot}, {s_rot}, 1
    ''')
rot(S, 0)
S(f'''
v_lshrrev_b32 {v_t1}, 4, {v_lane}
v_lshrrev_b32 {v_t2}, 3, {v_lane}
v_mul_u32_u24 {v_t2}, 1280, {v_t2}
v_and_b32 {v_t3}, 7, {v_lane}
v_xor_b32 {v_t3}, {v_t3}, {v_t1}
s_lshl_b32 {s_t2}, {s_rb}, 2
s_add_u32 {s_t2}, {s_t2}, {s_w}
s_mul_i32 {s_t2}, {s_t2}, {32*1280}
v_add_u32 {v_t2}, {s_t2}, {v_t2}
v_lshl_add_u32 v{VXD}, {v_t3}, 4, {v_t2}
v_xor_b32 {v_t3}, 4, {v_t3}
v_lshl_add_u32 v{VXD+1}, {v_t3}, 4, {v_t2}
v_add_u32 v{VXD+2}, {2*(8*1280-1024)}, v{VXD}
v_add_u32 v{VXD+3}, {3*(8*1280-1024)}, v{VXD+1}
v_add_u32 v{VXD+1}, {8*1280-1024}, v{VXD+1}
s_lshl_b32 {s_mW}, {s_w}, 12
s_add_u32 {s_mX}, {s_mW}, {L_X}
v_and_b32 {v_t2}, 15, {v_lane}
v_lshlrev_b32 {v_t3}, 1, {v_t1}
v_xor_b32 {v_t2}, {v_t2}, {v_t3}
v_mul_u32_u24 {v_t3}, 3840, {v_t1}
v_lshl_add_u32 {v_t3}, {v_t2}, 4, {v_t3}
s_mul_i32 {s_t1}, {s_w}, {16*3840}
s_lshl_b32 {s_t2}, {s_cb}, 8
s_add_u32 {s_t1}, {s_t1}, {s_t2}
v_add_u32 v{VWD}, {s_t1}, {v_t3}
''')
S(f'''
v_xor_b32 v{VWD+2}, 128, v{VWD}
v_add_u32 v{VWD+1}, {4*3840-1024}, v{VWD}
v_add_u32 v{VWD+3}, {3*(4*3840-1024)}, v{VWD+2}
v_add_u32 v{VWD+2}, {2*(4*3840-1024)}, v{VWD+2}
''')
rot(S, 1)
S('s_waitcnt lgkmcnt(0)')

dma_tok = {}
WSLOT = [n % 4 for n in range(10)] + [2, 6, 3, 7, 0, 4, 1, 2, 3, 0]
WISS = {n: n - 2 for n in range(2, 11)}
WISS.update({11: 8, 12: 9, 13: 9, 14: 10, 15: 12, 16: 12, 17: 13, 18: 14, 19: 16})
for a_ in ARGS:
    if a_.startswith('--wiss='): WISS.update({11 + i: int(x) for i, x in enumerate(a_[7:].split(','))})
CTM = opt('ctm', 4)
def dma_stage(n):
    p, ns, slot = n // 10, n % 10, WSLOT[n]
    g = []
    if p == 0:
        g.append(L(f's_add_u32 m0, {s_mX}, {slot*16384}'))
        for i in range(4):
            g.append(L(f'buffer_load_dwordx4 v{VXD+i}, {sX}, s{SX0+ns} offen offset:{1024*i} lds'))
        g[-1] += L(f's_add_u32 m0, {s_mW}, {slot*16384}')
    else:
        g.append(L(f's_add_u32 m0, {s_mW}, {slot*16384}'))
    for i in range(4):
        st = Stream()
        dma_tok[n] = st.vm(f'buffer_load_dwordx4 v{VWD+i}, {sWB if p else sWA}, s{SW0+ns} offen offset:{1024*i} lds')
        g.append(st.l)
    return g

def common_consts(st):
    st(f'''
    s_mov_b32 s18, {WS_SIZE + (65536 if STAMPS else 0)}
    s_mov_b32 s19, 0x20000
    s_mov_b32 s26, 256
    s_mov_b32 s27, 0x20000
    s_mov_b32 s31, 0x20000
    v_cmp_eq_u32 vcc, 0, v0
    v_mov_b32 {v_big}, {BIG}
    v_mov_b32 {v_one}, 1
    v_lshlrev_b32 {v_l16}, 4, {v_lane}
    v_cndmask_b32 {v_flag}, {v_big}, 0, vcc
    ''')

for g in dma_stage(0): S.extend(g)
common_consts(S)
stamp('iss0')
d1 = dma_stage(1)
PRE = opt('pre', 5)
for g in d1[:PRE]: S.extend(g)
pre = Stream()
for n in range(2, 4): rot(pre, n)
pre(f'''
v_lshrrev_b32 {v_t1}, 4, {v_lane}
v_bfe_u32 {v_t2}, {v_lane}, 2, 2
v_lshl_add_u32 {v_t3}, {v_t1}, 3, {v_t2}
v_lshlrev_b32 {v_t3}, 8, {v_t3}
v_bfe_u32 {v_tmp}, {v_lane}, 2, 3
v_lshl_add_u32 {v_t3}, {v_tmp}, 5, {v_t3}
v_and_b32 {v_tmp}, 3, {v_lane}
v_lshl_add_u32 {v_t3}, {v_tmp}, 3, {v_t3}
s_and_b32 {s_t0}, {s_w}, 1
s_lshr_b32 {s_t1}, {s_w}, 1
s_lshl_b32 {s_t2}, {s_t0}, 7
v_xor_b32 v{VWR}, {s_t2}, {v_t3}
v_xor_b32 v{VWR+1}, 32, v{VWR}
v_xor_b32 v{VWR+2}, 64, v{VWR}
v_xor_b32 v{VWR+3}, 96, v{VWR}
v_and_b32 {v_t2}, 15, {v_lane}
v_bfe_u32 {v_t3}, {v_lane}, 1, 3
v_xor_b32 {v_t3}, {v_t3}, {v_t1}
v_lshlrev_b32 {v_t3}, 4, {v_t3}
v_lshl_add_u32 {v_t3}, {v_t2}, 7, {v_t3}
s_lshl_b32 {s_t2}, {s_t1}, 13
s_add_u32 {s_t2}, {s_t2}, {L_X}
v_add_u32 v{VXR}, {s_t2}, {v_t3}
v_xor_b32 v{VXR+1}, 64, v{VXR}
s_lshl_b32 {s_t2}, {s_rb}, 1
s_add_u32 {s_t2}, {s_t2}, {s_t1}
s_lshl_b32 {s_t2}, {s_t2}, 10
v_and_b32 {v_t3}, 1, {v_t1}
v_lshrrev_b32 {v_t1}, 1, {v_t1}
v_lshl_add_u32 {v_t1}, {v_t3}, 1, {v_t1}
v_lshlrev_b32 {v_t1}, 15, {v_t1}
v_lshl_add_u32 {v_t1}, {v_t2}, 4, {v_t1}
v_add_u32 {v_st}, {s_t2}, {v_t1}
s_lshl_b32 {s_stb}, {s_cb}, 1
s_add_u32 {s_stb}, {s_stb}, {s_t0}
s_lshl_b32 {s_stb}, {s_stb}, 18
s_cmp_lt_u32 {s_cb}, 5
s_cselect_b32 {s_scale}, {f32(QSCALE)}, 1.0
s_cselect_b32 {s_tag}, {'0xfffe0000' if QRND else '-2'}, -1
s_cselect_b32 {s_rnd}, 0x10000, 0
''')
TB = opt('tb', 34); TBH = opt('tbh', 1)
if TB >= 0:
    nl = 20 if TBH else 40
    pre(f'''
    s_mov_b32 s14, {640*3840}
    s_mov_b32 s15, 0x20000
    v_lshrrev_b32 v134, 1, {v_lane}
    v_mul_u32_u24 v134, 3840, v134
    v_and_b32 v135, 1, {v_lane}
    v_lshl_add_u32 v134, v135, 7, v134
    v_cmp_gt_u32 vcc, {nl}, {v_lane}
    s_and_b32 s56, {s_rb}, {15 if TBH else 7}
    s_lshl_b32 s56, s56, 2
    s_add_u32 s56, s56, {s_w}
    v_cndmask_b32 v134, {v_big}, v134, vcc
    s_mul_i32 s56, s56, {nl//2*3840}
    s_lshl_b32 s57, {s_cb}, 8
    s_add_u32 s56, s56, s57
    ''')
    if TBH == 2:
        pre(f'''
        v_lshrrev_b32 v134, 1, {v_lane}
        v_mul_u32_u24 v134, 3840, v134
        v_lshl_add_u32 v134, v135, 7, v134
        s_lshr_b32 s56, {s_t}, 3
        s_lshl_b32 s56, s56, 1
        s_add_u32 s56, s56, {s_t}
        s_bitcmp1_b32 s56, 1
        s_cselect_b32 s58, 0, 40
        v_cmp_gt_u32 vcc, s58, {v_lane}
        s_bfe_u32 s58, s56, 0x10002
        s_lshl_b32 s58, s58, 1
        s_and_b32 s56, s56, 1
        v_cndmask_b32 v134, {v_big}, v134, vcc
        s_add_u32 s56, s56, s58
        s_lshr_b32 s58, {s_rb}, 3
        s_lshl_b32 s58, s58, 2
        s_add_u32 s56, s56, s58
        s_lshl_b32 s56, s56, 2
        s_add_u32 s56, s56, {s_w}
        s_mul_i32 s56, s56, {20*3840}
        s_add_u32 s56, s56, s57
        ''')
    touch = Ins(f'buffer_load_dword v135, v134, {sWB}, s56 offen')
    if TB == 0: pre.l.append(touch)
if opt('wot', 0):
    S.l.insert(2, Ins('s_load_dwordx2 s[56:57], s[0:1], 16')); S.l.insert(2, Ins('s_load_dwordx2 s[58:59], s[0:1], 40'))
    S(f'''
    s_cmp_ge_u32 {s_rb}, 8
    s_cselect_b32 s28, s58, s56
    s_cselect_b32 s29, s59, s57
    s_mov_b32 s30, {640*1280}
    s_and_b32 {s_t0}, {s_rb}, 7
    s_mul_i32 {s_t0}, {s_t0}, 15
    s_add_u32 {s_t0}, {s_t0}, {s_cb}
    s_lshl_b32 {s_t0}, {s_t0}, 2
    s_add_u32 {s_t0}, {s_t0}, {s_w}
    s_mul_i32 {s_t0}, {s_t0}, {14*128}
    v_min_u32 v137, 13, {v_lane}
    v_lshlrev_b32 v137, 7, v137
    buffer_load_dword v136, v137, {sTMP}, {s_t0} offen
    ''')
DSW = opt('dsw', -1)
lds_init = mk(setup_lds)
dsw = [x for x in lds_init if x.kind == 'ds']
pre.l += lds_init if DSW < 0 else [x for x in lds_init if x.kind != 'ds']
npre = len(atomize(pre.l))
for n in range(4, 10): rot(pre, n)
setup2(pre)
pre = atomize(pre.l)
SPLIT = min(npre + opt('split', 40), len(pre))
pre, su_post = pre[:SPLIT], pre[SPLIT:]
if d1[PRE:]: weave(pre, d1[PRE:], opt('pre0', 20), min(len(pre), opt('pre1', 120)))
for g in pre: S.extend(g)
stamp('setup')

CTA = opt('cta', 1)
seq = []
def tilewise(ns, k2):
    ns = list(ns); m = len(ns) - k2
    l = [(n, s_, t, rt) for n in ns for s_ in range(2) for t in (0, 1) for rt in range(4)]
    l += [(n, s_, t, rt) for n in ns[:m] for s_ in range(2) for t in (2, 3) for rt in range(4)]
    for rh in range(2): l += [(n, s_, t, rt) for n in ns[m:] for s_ in range(2) for t in (2, 3) for rt in (2 * rh, 2 * rh + 1)]
    return l
for n in range(20 - CTM):
    if n == 10 - CTA: seq += tilewise(range(n, 10), 0)
    elif 10 - CTA < n < 10: pass
    else: seq += [(n, s_, t, rt) for s_ in range(2) for t in range(4) for rt in range(4)]
seq += tilewise(range(20 - CTM, 20), opt('ct2', 1))
if opt('snake', 1):
    for k in range(0, len(seq), 8):
        if len(set(e[:3] for e in seq[k + 4:k + 8])) == 1: seq[k + 4:k + 8] = seq[k + 4:k + 8][::-1]
NG = len(seq)
def G(name, d): return 2 * opt(name, d)
def xreg(n, s_, rt):
    n %= 10
    return ar(32 * n + 16 * s_ + 4 * rt, 4) if n < 8 else vr(XV + 32 * (n - 8) + 16 * s_ + 4 * rt, 4)
BO = opt('bo', 14)
firstuse = {}; lastuse = {}
for k, e in enumerate(seq): firstuse.setdefault(e[0], k); lastuse[e[0]] = k
BARS = list(range(1, 21 - CTM)) + ([19] if CTM > 2 else [])
def bar_of(n): return max(b for b in [0] + BARS if b <= n)
def bar_gap(n): return firstuse[bar_of(n)] - BO
for n in range(4, 20):
    prev = [m for m in range(n) if WSLOT[m] == WSLOT[n] or (m < 10 and WSLOT[n] == 4 + m % 4)]
    assert WISS[n] in BARS and lastuse[prev[-1]] < bar_gap(WISS[n]), n
frag = []; fidx = []
for k, e in enumerate(seq):
    if k == 0 or seq[k - 1][:3] != e[:3]: frag.append([e[:3], k, k])
    frag[-1][2] = k; fidx.append(len(frag) - 1)
reads = []; xreads = []; xseen = set(); first_reads = []
LEAD = opt('lead', 4)
for j, ((n, s_, t), u0, u1) in enumerate(frag):
    lo = max(frag[j - 4][2] if j >= 4 else -1, bar_gap(n))
    sl_ = WSLOT[n]; buf = WRING + 4 * (j & 3)
    l = [Ins(f'ds_read_b64_tr_b16 {vr(buf+2*u,2)}, v{VWX[t] if sl_ >= 4 else VWR+t} offset:{(sl_%4)*16384+(32*s_+4*u)*256}') for u in range(2)]
    if n < 10 and (n, s_) not in xseen:
        xseen.add((n, s_))
        xl = [Ins(f'ds_read_b128 {xreg(n,s_,rt)}, v{VXR+s_} offset:{(n%4)*16384+rt*2048}') for rt in range(4)]
        if j == 0: first_reads += xl
        else: xreads += [Item(x, max(bar_gap(n), u0 - 22 + 2 * i), u0 - LEAD - 3 + i) for i, x in enumerate(xl)]
    if j < 2: first_reads += l
    elif opt('oneds', 1): reads += [Item(x, lo, max(lo, u0 - LEAD - 1 + i)) for i, x in enumerate(l)]
    else: reads.append(Item(l, lo, max(lo, u0 - LEAD)))
mf = []
for k, (n, s_, t, rt) in enumerate(seq):
    acc = vr(ACC[n // 10] + 8 * (4 * (t >> 1) + rt) + 4 * (t & 1), 4)
    mf.append(Ins(f'v_mfma_f32_16x16x32_bf16 {acc}, {vr(WRING+4*(fidx[k]&3),4)}, {xreg(n,s_,rt)}, {"0" if n % 10 == 0 and s_ == 0 else acc}'))
done = {}
for k, (n, s_, t, rt) in enumerate(seq): done[(n // 10, 2 * (t >> 1) + (rt >> 1))] = k
def epi1_tile(p, T):
    g = []
    if T % 2 == 0: g.append(L(f's_add_u32 {s_e0}, {s_stb}, {QKV[p]+2*T*GRP}'))
    for u in range(2):
        b = ACC[p] + 16 * T + 8 * u
        for i in range(8): g.append(L(f'v_mul_f32 v{b+i}, {s_scale}, v{b+i}'))
        for i in range(4): g.append(L(f'v_cvt_pk_bf16_f32 v{b+i}, v{b+2*i}, v{b+2*i+1}'))
        for i in (0, 2): g.append(L(f'v_and_b32 v{b+i}, {s_tag}, v{b+i}'))
    for u in range(2):
        b = ACC[p] + 16 * T + 8 * u
        for i in (1, 0): g.append(L(f'v_permlane16_swap_b32 v{b+i}, v{b+2+i}'))
        st = Stream(); tok = st.vm(f'buffer_store_dwordx4 {vr(b,4)}, {v_st}, {sWS}, {s_e0} offen offset:{256*(2*(T&1)+u)} sc1')
        g.append(st.l)
    return g, tok
assert not QRND
COST['vm'] = 2
cap = [2 - (1 if k + 1 < NG and fidx[k + 1] != fidx[k] else 0) for k in range(NG)]
fixed = {}
FLAGA = opt('flagA', 13)
for n in BARS:
    fixed[bar_gap(n)] = [('BAR', n)]; cap[bar_gap(n)] -= 2 + (2 if n == FLAGA else 0)
dmas = []
def split_salu(l):
    out = []
    for g in l:
        if len(g) > 1 and g[0].kind == 'vm': out += [g[:1], g[1:]]
        else: out.append(g)
    return out
for b in range(0, 17):
    l = split_salu([g for n in range(2, 20) if WISS[n] == b for g in dma_stage(n)])
    if l:
        lo = max(bar_gap(b), 0)
        dmas += paced(l, lo, lo + (G('dsp', 14) if len(l) > 5 else 14), 5)
KV0 = G('kv0', 262); KV1 = G('kv1', 290); KVB = G('kvb', 312)
assert KV0 > bar_gap(16) + 20
kv, tokKV = kvq_loads()
dmas += [Item(mk(poll_check, v_pres, v_p1, sWS, s_F1A) + [('ST', 'pc1')], KV0 - 1, KV0 - 1)] + paced(kv, KV0, KV1, 4)
epi = []
EA1 = G('epiAend', 180); EA0 = done[(0, 0)] + 4
for T in range(4):
    g, tokA = epi1_tile(0, T)
    lo = done[(0, T)] + 4
    it = asap(g, lo, lo + 1)
    for i, x in enumerate(it): x.hi = max(lo, EA0 + (len(g) * T + i) * (EA1 - EA0) // (4 * len(g))) + 2
    epi += it
for T in range(3):
    g, tokB = epi1_tile(1, T)
    lo = done[(1, T)] + 4
    it = asap(g, lo, lo + 1)
    e0 = done[(1, 0)] + 4; e1 = done[(1, 2)] + 4
    for i, x in enumerate(it): x.hi = max(lo, e0 + (len(g) * T + i) * (e1 - e0) // (2 * len(g))) + 1 if T < 2 else NG
    epi += it
NA = opt('na', 20); NWO1 = max(NA, opt('nwo1', 0)); WT = 0
misc = []
if TB > 0: misc.append(Item(touch, 2 * TB, 2 * TB + 4))
SU1 = G('su1', 44); SU0 = G('su0', 0); assert SU0 == 0 or opt('split', 40) >= 24
sus = asap(su_post, SU0, SU1) if su_post else []
misc += [Item(mk(poll_issue, v_pres, v_zero, sDBG, '0'), max(SU1 + 5, 220), max(SU1 + 9, 224)), Item(mk(poll_check, v_pres, v_zero, sDBG, '0'), 284, 290)]
misc += paced(setup_late(), 290, 298, 6)
misc += paced([Ins(f'v_add_u32 v{VWX[t]}, {L_X}, v{VWR+t}') for t in range(4)], 300, 308, 6)
P1I = KV0 - G('p1d', 20)
wl = []
if NA:
    WO0 = bar_gap(FLAGA) + 2
    misc += [Item(mk(poll_issue, v_pres, v_p2, sWS, s_F1A), G('p2i', 184), G('p2i', 184) + 4), Item(mk(poll_check, v_pres, v_p2, sWS, s_F1A), WO0 - 1, WO0 - 1)]
    wl = paced(wo_loads(0, NA), WO0, G('wo1', 290), 5)
misc += [x for x in wl if x.lo < P1I] + [Item(mk(poll_issue, v_pres, v_p1, sWS, s_F1A), P1I, P1I + 4)] + [x for x in wl if x.lo >= P1I]
if NWO1 > NA: misc += paced(wo_loads(NA, NWO1), KV1, NG - 4, 4)
misc2 = (paced(dsw, 2 * DSW, 2 * DSW + G('dswn', 3), 0) if DSW >= 0 else []) + paced(mask_far(), 460, 490, 8) + paced(zero_pads(), lastuse[17] + 1, lastuse[17] + 12, 4)
st = Stream(); st.wait(tokKV); st('s_barrier'); fixed[KVB] = st.l + [('ST', 'kvb')]; cap[KVB] -= 2
misc2 += paced(att_pre(), KVB, NG - 4, 2)
rep_ = []
gaps, over = schedule(NG, cap, [reads, xreads, dmas, epi, misc, misc2, sus], rep_, opt('oneds', 1))
if '--sched' in ARGS:
    for n in range(20): print(n, ' '.join('%2d' % x for x in rep_[32 * n:32 * n + 32]))
last_def = {}; last_use = {}
for k, m in enumerate(mf):
    for r in m.defs: last_def[r] = k
    for r in m.srcab: last_use[r] = k
lastx = max(k for k, g in enumerate(gaps) for it in g if not isinstance(it, tuple) and it.mn == 'ds_read_b128' and it.uses & {'v14', 'v15'})
assert lastx < 300
for k, g in enumerate(gaps):
    for it in g:
        if isinstance(it, tuple): continue
        if it.kind in ('valu', 'vm') or (it.kind == 'ds' and k > 400):
            for r in it.uses | it.defs: assert last_def.get(r, -1) <= k or k < 200, (k, it.text)
            if 'tr_b16 v' not in it.text:
                for r in it.defs: assert last_use.get(r, -1) <= k, (k, it.text)

S.wait(dma_tok[0])
if opt('waitall', 0): S('s_waitcnt vmcnt(0)')
S('s_barrier')
stamp('first')
S.l += first_reads
for k in range(NG):
    if k == 0 or fidx[k - 1] != fidx[k]: S.use(set().union(*[mf[j].srcab for j in range(k, frag[fidx[k]][2] + 1)]))
    S.l.append(mf[k])
    if opt('slow', 0) and G('slow0', 0) <= k < G('slow1', 160): S('s_nop %d' % opt('slow', 0))
    for it in fixed.get(k, []) + mem_first(gaps[k]):
        if isinstance(it, tuple) and it[0] == 'ST':
            if FINE: stamp(it[1])
        elif isinstance(it, tuple):
            n2 = it[1]
            tk = [dma_tok[m] for m in range(20) if bar_of(m) == n2]
            if n2 == FLAGA: tk.append(tokA)
            S.wait(*tk)
            S('s_barrier')
            if n2 == FLAGA: set_flag(S, v_flag, s_f1, 0)
            if FINE or '--clk' in ARGS or n2 in (10, 14, 16): stamp('b%d' % n2)
        else:
            S.l.append(it)
stamp('p1end')
S(qka(0)); S(qkb(0))
mrest = mask_rest()
S.l += mrest[:8]
g, tokB = epi1_tile(1, 3)
for x in g: S.l += x
S('L_join:')
stamp('join')
nst_join = nstamp[0] - 1

N = len(steps)
groups = []
for n in range(N):
    for g in range(4):
        st = Stream()
        if g == 0 and n + 1 < N: st(qka(n + 1))
        if g == 1 and n > 0: st(pv(n - 1, 1))
        if g == 2 and n + 1 < N: st(qkb(n + 1))
        if g == 3: st(pv(n, 0))
        if g > 0 or n > 0:
            for x in cvts((g - 1) & 3): st(x)
        for x in exps(n, g): st(x)
        groups.append(st.l)
first = {}
for n, (j, q) in enumerate(steps): first.setdefault(j, n)
last = {j: n for n, (j, q) in enumerate(steps)}
for j in range(1, 10):
    base = 4 * (last[j-2] + 1) + 1 if j >= 2 else 0
    for kk in range(2):
        for u in range(2): groups[base + kk].append(v_read(j, kk, u))
    if j + 1 < 10:
        groups[base + 3].append(k0_read(j + 1))
        if (j + 1) % 2 == 0: groups[base + 3].append(k1_read(j + 1))
    need = set(x for kk in range(2) for u in range(2) for x in v_read(j, kk, u).defs)
    if j + 1 < 10: need |= k0_read(j + 1).defs | (k1_read(j + 1).defs if (j + 1) % 2 == 0 else set())
    st = Stream(); st.use(need); groups[4 * first[j] + 3][0:0] = st.l
weave(groups, mrest[8:], 4, 36)
FB = opt('fb', 4)
st = Stream(); st.wait(tokB); st('s_barrier'); set_flag(st, v_flag, s_f1, 0); groups[4 * FB - 1] += st.l
groups[0] += L(f's_add_u32 {s_f1}, {s_f1}, 32768')
P3S = opt('p3s', 11); P3D = opt('p3d', 2)
NWO2 = opt('nwo2', 44)
NWOM = min(NWO2, opt('nwom', 44))
if NWOM > NWO1: weave(groups, wo_loads(NWO1, NWOM), opt('wo0g', 1), 4 * (P3S - P3D) - 1)
if NWO2 > NWOM: weave(groups, wo_loads(NWOM, NWO2), 4 * P3S + opt('bln', 12), 72)
groups[4 * (P3S - P3D) - 1] += mk(poll_issue, v_pres, v_p3, sWS, s_F1B)
groups[4 * P3S - 2] += L(f'''
s_add_u32 s60, {s_bF}, {QKV[1]}
s_add_u32 s61, {s_bS}, {QKV[1]}
s_add_u32 s62, {s_bF}, {QKV[1] + 80*GRP - 512}
s_add_u32 s63, {s_bS}, {QKV[1] + 80*GRP - 512}
''')
groups[4 * P3S - 3] += L(f'''
s_add_u32 s64, {s_bF}, {QKV[1] + 160*GRP}
s_add_u32 s65, {s_bF}, {QKV[1] + 161*GRP - 1088}
s_add_u32 s66, {s_bS}, {QKV[1] + 160*GRP - 2176}
s_mov_b32 m0, {s_mV}
''')
groups[4 * P3S - 1] += mk(poll_check, v_pres, v_p3, sWS, s_F1B)
bl = L(f'''
buffer_load_dword {v_g[0]}, {v_gad}, {sWS}, {s_gb} offen sc1
buffer_load_dword {v_g[1]}, {v_gad}, {sWS}, {s_gb} offen offset:128 sc1
buffer_load_dwordx4 {vr(QB0,4)}, {v_q4}, {sWS}, s60 offen sc1
buffer_load_dwordx4 {vr(KB0,4)}, {v_kb0}, {sWS}, s62 offen sc1
buffer_load_dwordx2 {vr(QB1,2)}, {v_qe}, {sWS}, s61 offen sc1
buffer_load_dwordx2 {vr(QB1+2,2)}, {v_qo}, {sWS}, s61 offen sc1
buffer_load_dwordx2 {ar(AKB1,2)}, {v_kb1}, {sWS}, s63 offen sc1
buffer_load_dwordx4 {vr(KB0+4,4)}, {v_q4}, {sWS}, s62 offen offset:512 sc1
buffer_load_dwordx4 {vr(QB0+4,4)}, {v_q4}, {sWS}, s60 offen offset:512 sc1
buffer_load_dwordx2 {vr(QB1+4,2)}, {v_qo}, {sWS}, s61 offen offset:512 sc1
buffer_load_dwordx4 {vr(KB0+8,4)}, {v_q4}, {sWS}, s62 offen offset:1024 sc1
buffer_load_dwordx2 {ar(AKB1+4,2)}, {v_qo}, {sWS}, s63 offen offset:1024 sc1
buffer_load_dwordx4 {v_l16}, {sWS}, s64 offen sc1 lds
buffer_load_dwordx4 {v_l16}, {sWS}, s65 offen offset:1088 sc1 lds
buffer_load_dwordx4 {v_l16}, {sWS}, s66 offen offset:2176 sc1 lds
''')
st = Stream(); st(f's_add_u32 m0, {s_mV}, 3264\nv_mov_b32 v{QB1+6}, 0\nv_mov_b32 v{QB1+7}, 0')
tokVB = st.vm(f'buffer_load_dwordx4 {v_halo}, {sWS}, 0 offen sc1 lds'); bl.append(st.l)
weave(groups, bl, 4 * P3S, 4 * P3S + opt('bln', 12))
for k, g in enumerate(groups):
    S.l += mem_first(g)
    if FINE and k % 8 == 7: stamp('a%d' % (k // 4))
for x in cvts(3): S(x)
S('s_nop 1')
S(pv(N - 1, 1))
stamp('attA')
S(f'''
s_lshl_b32 {s_t0}, {s_R}, 10
s_mul_i32 {s_t1}, {s_w}, {20*GRP}
s_add_u32 s{SX0}, {s_t0}, {s_t1}
s_mov_b32 {s_tag}, 0xfffe0000
''')
for s_ in range(1, 5): S(f's_add_u32 s{SX0+s_}, s{SX0}, {4*s_*GRP}')
for s_ in range(2): S(f's_add_u32 s{SX0+5+s_}, s{SX0}, {QKV[1] + 4*s_*GRP}')
S(f'''
s_mov_b32 {s_t1}, {hex(64 << 23)}
v_subrev_u32 {v_t1}, {hex(95 << 23)}, v{OA[0]+12}
v_subrev_u32 {v_t2}, {hex(95 << 23)}, v{OA[1]+12}
v_max_u32 {v_t1}, {v_t1}, {v_t2}
v_cmp_le_u32 vcc, {s_t1}, {v_t1}
s_cbranch_vccnz L_truemax
L_Aok:
''')
FBK = Stream()
FBK('@reset')
FBK(f'''
L_truemax:
s_lshr_b32 {s_t1}, {s_q0}, 5
s_sub_u32 {s_t1}, 8, {s_t1}
s_nop 7
''')
def fb_qk(j, q):
    c = vr(M_FAR, 16) if j == q else vr(M_DIAG, 16) if j == 8 + q else '0'
    FBK(f'''
    ds_read_b128 {ar(AK0,4)}, {v_k0} offset:{512*j}
    ds_read_b64 {ar(AK1,2)}, {v_k1} offset:{512*(j & ~1)}
    {mm} {vr(SB[0],16)}, {ar(AK0,4)}, {vr(QA0+4*q,4)}, {c}
    {mm} {vr(SB[0],16)}, {ar(AK1,4)}, {vr(QA1+4*q+2*(j&1),4)}, {vr(SB[0],16)}
    ''')
for q in range(2):
    FBK(f'v_mov_b32 {v_t3}, {NEGINF}')
    for i in range(16): FBK(f'v_mov_b32 v{OA[q]+i}, 0')
    for ps in range(2):
        for j in range(q, q + 9):
            l = lab('skip')
            FBK(f's_cmp_gt_i32 {s_t1}, {j}\ns_cbranch_scc1 {l}')
            if ps == 1:
                for kk in range(2):
                    for u in range(2): FBK(f'ds_read_b64_tr_b16 {ar(AV+4*kk+2*u,2)}, {v_v} offset:{512*j+256*kk+128*u}')
            fb_qk(j, q)
            if ps == 0:
                for i in range(0, 16, 2): FBK(f'v_max3_f32 {v_t3}, {v_t3}, v{SB[0]+i}, v{SB[0]+i+1}')
            else:
                for i in range(16): FBK(f'v_sub_f32 v{SB[0]+i}, v{SB[0]+i}, {v_t3}')
                for i in range(16): FBK(f'v_exp_f32 v{SB[0]+i}, v{SB[0]+i}')
                for i in range(8): FBK(f'v_cvt_pk_bf16_f32 v{P0+i}, v{SB[0]+2*i}, v{SB[0]+2*i+1}')
                for kk in range(2): FBK(f'{mm} {vr(OA[q],16)}, {ar(AV+4*kk,4)}, {vr(P0+4*kk,4)}, {vr(OA[q],16)}')
                FBK('s_nop 7')
            FBK(l + ':')
        if ps == 0:
            FBK(f'''
            s_nop 1
            v_mov_b32 {v_t4}, {v_t3}
            v_permlane32_swap_b32 {v_t3}, {v_t4}
            v_max_f32 {v_t3}, {v_t3}, {v_t4}
            ''')
FBK('s_nop 15\ns_branch L_Aok')

OSC = '' if opt('local', 0) else ' sc1'
def epi2(br, q, o, pk=False):
    st = Stream()
    st(f'v_rcp_f32 {v_t1}, v{o+12}')
    if br: st(f'v_sub_f32 {v_g[q]}, 1.0, {v_g[q]}')
    st(f'v_mul_f32 {v_t1}, {v_g[q]}, {v_t1}')
    if pk:
        for i in range(0, 12, 2): st(f'v_pk_mul_f32 {vr(o+i,2)}, {vr(o+i,2)}, {vr(22,2)} op_sel_hi:[1,0]')
    else:
        for i in range(12): st(f'v_mul_f32 v{o+i}, {v_t1}, v{o+i}')
    for i in (0, 4, 8): st(f'v_and_or_b32 v{o+i}, v{o+i}, {s_tag}, {v_o4}')
    for i in range(6): st(f'v_cvt_pk_bf16_f32 v{o+i}, v{o+2*i}, v{o+2*i+1}')
    st(f'buffer_store_dwordx4 {vr(o,4)}, {v_q4}, {sWS}, {"s60" if br else s_bF} offen offset:{512*q} sc1')
    tok = st.vm(f'buffer_store_dwordx2 {vr(o+4,2)}, {v_qe}, {sWS}, {"s61" if br else s_bS} offen offset:{512*q} sc1')
    return st.l, tok
qkB = [[Ins(x)] for x in (
    f'{mm} {vr(SP[0],16)}, {vr(KB0,4)}, {vr(QB0,4)}, {vr(MB_PREV0,16)}',
    f'{mm} {vr(SP[0],16)}, {ar(AKB1,4)}, {vr(QB1,4)}, {vr(SP[0],16)}',
    f'{mm} {vr(SD[0],16)}, {vr(KB0+4,4)}, {vr(QB0,4)}, {vr(MB_DIAG,16)}',
    f'{mm} {vr(SD[0],16)}, {ar(AKB1,4)}, {vr(QB1+2,4)}, {vr(SD[0],16)}',
    f'{mm} {vr(SP[1],16)}, {vr(KB0+4,4)}, {vr(QB0+4,4)}, {vr(MB_PREV,16)}',
    f'{mm} {vr(SP[1],16)}, {ar(AKB1,4)}, {vr(QB1+4,4)}, {vr(SP[1],16)}',
    f'{mm} {vr(SD[1],16)}, {vr(KB0+8,4)}, {vr(QB0+4,4)}, {vr(MB_DIAG,16)}',
    f'{mm} {vr(SD[1],16)}, {ar(AKB1+4,4)}, {vr(QB1+4,4)}, {vr(SD[1],16)}')]
st = Stream(); st.wait(tokVB)
for u in range(2): st(f'ds_read_b64_tr_b16 {ar(VB+2*u,2)}, {v_vh} offset:{128*u}')
for t in range(2):
    for kk in range(2):
        for u in range(2): st(f'ds_read_b64_tr_b16 {ar(VB+4+8*t+4*kk+2*u,2)}, {v_vb} offset:{512*t+256*kk+128*u}')
vbr = st.l
e0, _ = epi2(0, 0, OA[0], True); e1, tokOA = epi2(0, 1, OA[1], True)
S.l += e0 + e1
st2('epiA')
adr = Stream()
adr(f'''
v_lshrrev_b32 v14, 4, {v_lane}
v_and_b32 v15, 15, {v_lane}
v_lshlrev_b32 v5, 15, v14
v_lshl_add_u32 v5, v15, 4, v5
''')
for rho in range(4):
    adr(f'''
    s_add_u32 {s_t0}, {s_w}, {rho}
    s_and_b32 {s_t0}, {s_t0}, 3
    s_lshl_b32 s{56+rho}, {s_t0}, 8
    v_add_u32 v{V4+rho}, s{56+rho}, v5
    ''')
adr2 = Stream()
for rho in range(4):
    adr2(f's_mul_i32 {s_t1}, s{56+rho}, 60')
    if rho: adr2(f's_add_u32 {s_t1}, {s_t1}, {(rho-1)*5120}\nv_add_u32 v{VRW+rho-1}, {s_t1}, {v_l16}')
    else: adr2(f'v_add_u32 {v_rr}, {s_t1}, {v_l16}')
adr2(f'''
v_mul_u32_u24 v15, 1280, v15
v_mad_u32_u24 v15, v14, 40, v15
s_lshl_b32 {s_t0}, {s_R}, 2
s_add_u32 {s_t0}, {s_t0}, {s_w}
s_mul_i32 {s_t0}, {s_t0}, {16*1280}
s_mul_i32 {s_t1}, {s_C}, 160
s_add_u32 {s_t0}, {s_t0}, {s_t1}
v_add_u32 {v_out}, {s_t0}, v15
''')
for s_ in range(2, 5): adr2(f's_add_u32 s{SX0+5+s_}, s{SX0}, {QKV[1] + 4*s_*GRP}')
weave(qkB, vbr, 2, 6)
NWOB = max(NWO2, opt('nwob', 44))
if NWOB > NWO2: weave(qkB, wo_loads(NWO2, NWOB), 0, 6)
weave(qkB, adr.l, 0, 8)
for g in qkB[:6]: S.l += g
st2('qkB')
def softB(q):
    st = Stream()
    b = SP[q] + 8
    assert SD[q] == SP[q] + 16
    st(f'v_max3_f32 {v_t3}, v{b}, v{b+1}, v{b+2}')
    st(f'v_max3_f32 {v_t4}, v{b+3}, v{b+4}, v{b+5}')
    for i in range(6, 22, 4):
        st(f'v_max3_f32 {v_t3}, {v_t3}, v{b+i}, v{b+i+1}')
        st(f'v_max3_f32 {v_t4}, {v_t4}, v{b+i+2}, v{b+i+3}')
    st(f'v_max3_f32 {v_t3}, {v_t3}, v{b+22}, v{b+23}')
    st(f'v_max_f32 {v_t3}, {v_t3}, {v_t4}')
    st(f'v_mov_b32 {v_t4}, {v_t3}')
    st(f'v_permlane32_swap_b32 {v_t3}, {v_t4}')
    st(f'v_max_f32 {v_t3}, {v_t3}, {v_t4}')
    for i in range(0, 24, 2): st(f'v_pk_add_f32 {vr(b+i,2)}, {vr(b+i,2)}, {vr(24,2)} op_sel_hi:[1,0] neg_lo:[0,1] neg_hi:[0,1]')
    vop = [VB if q == 0 else VB + 8, VB + 4 + 8 * q, VB + 8 + 8 * q]
    for c in range(3):
        for i in range(8): st(f'v_exp_f32 v{b+8*c+i}, v{b+8*c+i}')
        if c: st(f'{mm} {vr(OB[q],16)}, {ar(vop[c-1],4)}, {vr(b+8*(c-1),4)}, {"0" if c == 1 else vr(OB[q],16)}')
        for i in range(4): st(f'v_cvt_pk_bf16_f32 v{b+8*c+i}, v{b+8*c+2*i}, v{b+8*c+2*i+1}')
    return st.l, Ins(f'{mm} {vr(OB[q],16)}, {ar(vop[2],4)}, {vr(b+16,4)}, {vr(OB[q],16)}')
l0, m0_ = softB(0); l1, m1_ = softB(1)
lb = l0[:5] + qkB[6] + l0[5:10] + qkB[7] + l0[10:] + l1[:2] + [m0_] + l1[2:]
def o_load(br, s_, rho):
    b = OF[br][s_] + 4 * rho
    return L(f'buffer_load_dwordx4 {vr(b,4)}, v{V4+rho}, {sWS}, s{SX0+5*br+s_} offen sc1')
order = (1, 2, 3, 0)
ogrp = [[(0, s_, rho) for rho in range(4)] for s_ in range(5)] + [[(1, s_, rho) for s_ in range(5)] for rho in order]
ol = [x for g in ogrp for e in g for x in o_load(*e)]
e0, _ = epi2(1, 0, OB[0]); e1, tokOB = epi2(1, 1, OB[1], True)
lb += e0[:2] + [m1_] + e0[2:] + e1
NO0 = opt('no0', 8); NOE = opt('noe', 4); OE = opt('oe', 1)
if NOE:
    k_ = [i for i, x in enumerate(lb) if x.kind == 'mfma'][-OE]
    lb[k_ + 1:k_ + 1] = ol[:NOE]
BST = opt('bst', 1)
bst = []
if BST:
    bst = [x for x in lb if x.kind == 'vm' and 'store' in x.mn]
    lb = [x for x in lb if x not in bst]
    if BST > 1:
        lb += L(f'v_mov_b32 v6, {v_q4}\nv_mov_b32 v7, {v_qe}')
        bst = [Ins(x.text.replace(v_q4 + ',', 'v6,').replace(v_qe + ',', 'v7,')) for x in bst]
S.l += lb
stamp('epiB')
S.l += ol[NOE:NO0]
if BST == 1: S.l += bst
S.l += adr2.l
NWO4 = max(NWOB, opt('nwo4', 44))
for g in wo_loads(NWOB, NWO4): S.l += g
st2('oiss')

def o_check(i):
    regs = [OF[br][s_] + 4 * rho + j for br, s_, rho in ogrp[i] for j in (0, 2)]
    def tree():
        st = Stream()
        for k in range(0, len(regs), 2): st(f'v_bitop3_b32 v1, {"v1" if k else "1"}, v{regs[k]}, v{regs[k+1]} bitop3:0x80')
        st('v_cmp_eq_u32 vcc, 0, v1')
        return st.l
    l = lab('again'); b = lab('fresh')
    tail('@reset')
    tail(f'{l}:\ns_mov_b32 {s_cnt}, 0\n{l}_a:')
    for e in ogrp[i]: tail.l += o_load(*e)
    tail(f's_add_u32 {s_cnt}, {s_cnt}, 1')
    if STAMPS: tail(f'v_writelane_b32 v0, {s_cnt}, {60 + (i >= 5)}')
    tail('s_waitcnt vmcnt(0)')
    tail.l += tree()
    tail(f's_cbranch_vccz {b}\ns_cmp_lt_u32 {s_cnt}, 0x40000\ns_cbranch_scc1 {l}_a\ns_branch {b}')
    t = tree()
    return t[:-1] + [t[-1:] + L(f's_cbranch_vccnz {l}\n{b}:')]
def mf3(br, s_, rho, ct):
    acc = vr(AC3 + 20 * rho + 4 * ct, 4)
    return [Ins(f'v_mfma_f32_16x16x32_bf16 {acc}, {ar(100*br+20*s_+4*ct,4)}, {vr(OF[br][s_]+4*rho,4)}, {"0" if br == 0 and s_ == 0 else acc}')]
sl = [mf3(*e, ct) for g in ogrp for e in g for ct in range(5)]
PB0 = opt('pb0', 36); PB1 = opt('pb1', 55)
if NO0 < 20: weave(sl, ol[NO0:20], 0, PB0)
if BST > 1: weave(sl, bst, BST, BST + 8)
if NWO4 < 50:
    S(f'v_mov_b32 v15, {v_l16}')
    weave(sl, wo_loads(NWO4, 50, 'v15'), PB0, PB1)
weave(sl, ol[20:], PB1, opt('no1', 140))
for it in o_check(0): S.l += it if isinstance(it, list) else [it]
stamp('poll4')
gstart = [20 * i for i in range(5)] + [100 + 25 * i for i in range(4)]
for i in range(1, 9): weave(sl, o_check(i), gstart[i] - opt('chk', 6), gstart[i])
for k, g in enumerate(sl):
    for it in g[1:]:
        if it.kind == 'vm': assert not any(it.defs & x.uses for j in range(k + 1) for x in sl[j] if x.kind != 'vm'), it.text
for i, rho in enumerate((1, 2, 3)):
    wr = [Ins(f'ds_write_b128 v{VRW+rho-1}, {vr(AC3+20*rho+4*ct,4)} offset:{1024*ct}') for ct in range(5)]
    lo = 125 + 25 * i + 3
    weave(sl, wr, lo, lo + (15 if i < 2 else 5))
sl[189] += L('s_waitcnt lgkmcnt(0)\ns_barrier')
rd = [Ins(f'ds_read_b128 {vr(RED+20*k+4*ct,4)}, {v_rr} offset:{5120*k+1024*ct}') for ct in range(5) for k in range(3)]
weave(sl, rd, 190, 200)
for k, g in enumerate(sl):
    S.l += mem_first(g)
    if k == 99: stamp('mf3A')
    elif k in (0, 19, 39, 59, 79, 124, 149, 174, 188, 189): st2('m%d' % k)
stamp('mf3')
for i in range(0, 20, 2):
    S(f'v_pk_add_f32 {vr(RED+i,2)}, {vr(RED+i,2)}, {vr(RED+20+i,2)}')
    S(f'v_pk_add_f32 {vr(AC3+i,2)}, {vr(AC3+i,2)}, {vr(RED+40+i,2)}')
for i in range(0, 20, 2):
    S(f'v_pk_add_f32 {vr(AC3+i,2)}, {vr(AC3+i,2)}, {vr(RED+i,2)}')
for i in range(10):
    S(f'v_cvt_pk_bf16_f32 v{AC3+i}, v{AC3+2*i}, v{AC3+2*i+1}')
S(f'''
buffer_store_dwordx4 {vr(AC3,4)}, {v_out}, {sOUT}, 0 offen
buffer_store_dwordx4 {vr(AC3+4,4)}, {v_out}, {sOUT}, 0 offen offset:16
buffer_store_dwordx2 {vr(AC3+8,2)}, {v_out}, {sOUT}, 0 offen offset:32
''')
if AMP:
    S('s_waitcnt vmcnt(0)')
    stamp('end')
    S(f'''
    s_cmp_lg_u32 s2, {opt('ampwg', 9)}
    s_cbranch_scc1 L_end
    s_memrealtime s[84:85]
    s_waitcnt lgkmcnt(0)
    s_sub_u32 s80, s82, s80
    s_lshl_b32 s80, s80, 2
    s_min_u32 s80, s80, 100000
    {('s_mov_b32 s80, %d' % opt('ampc', 0)) if opt('ampc', 0) else ''}
    L_amp:
    s_memrealtime s[86:87]
    s_waitcnt lgkmcnt(0)
    s_sub_u32 s86, s86, s84
    s_cmp_lt_u32 s86, s80
    s_cbranch_scc1 L_amp
    ''')
if STAMPS:
    stamp('red')
    S('s_waitcnt vmcnt(0)')
    stamp('end')
    S(f'''
    s_waitcnt lgkmcnt(0)
    s_cmp_lg_u32 {s_w}, 0
    s_cbranch_scc1 L_end
    v_writelane_b32 v0, s{ST0+2*((nstamp[0]-1)&1)}, {nstamp[0]-1}
    s_lshl_b32 {s_t0}, s2, 8
    s_add_u32 {s_t0}, {s_t0}, {STAMP_OFF}
    v_mbcnt_lo_u32_b32 v3, -1, 0
    v_mbcnt_hi_u32_b32 v3, -1, v3
    v_lshlrev_b32 v3, 2, v3
    buffer_store_dword v0, v3, {sWS}, {s_t0} offen
    ''')
    assert nstamp[0] <= 56, nstamp[0]
    open(OUT + '.stamps', 'w').write(' '.join(n or str(i) for i, n in enumerate(stamp_names)))
S('s_endpgm')

T = Stream()
nstamp[0] = 1
T('@reset')
T(f'''
L_spare:
s_waitcnt lgkmcnt(0)
s_load_dwordx2 s[56:57], s[0:1], 16
s_load_dwordx2 s[58:59], s[0:1], 40
s_load_dwordx2 s[8:9], s[0:1], 48
s_mov_b32 s30, {640*1280}
s_mov_b32 s10, 1280
''')
common_consts(T)
T(f'''
v_mov_b32 v64, 0
v_mov_b32 v65, 0
v_mov_b32 v66, 0
v_mov_b32 v67, 0
v_lshlrev_b32 {v_t1}, 4, v0
s_lshl_b32 {s_t2}, {s_rb}, 12
s_add_u32 {s_t2}, {s_t2}, {FLG}
''')
tokz = T.vm(f'buffer_store_dwordx4 v[64:67], {v_t1}, {sWS}, {s_t2} offen sc1')
def handshake():
    T.wait(tokz)
    T(f'''
    s_barrier
    s_lshl_b32 {s_t1}, {s_rb}, 2
    buffer_store_dword {v_one}, {v_flag}, {sDBG}, {s_t1} offen sc1
    ''')
STB = opt('stb', 0)
if STB:
    T(f'''
    s_mov_b32 s14, {640*3840}
    s_mov_b32 s15, 0x20000
    s_lshl_b32 {s_t0}, {s_rb}, 2
    s_add_u32 {s_t0}, {s_t0}, {s_w}
    s_mul_i32 {s_t0}, {s_t0}, {300*128}
    v_min_u32 {v_t1}, 59, {v_lane}
    v_lshlrev_b32 {v_t1}, 7, {v_t1}
    ''')
    for i in range(5):
        T(f'buffer_load_dword v{68+i}, {v_t1}, {sWB}, {s_t0} offen\ns_add_u32 {s_t0}, {s_t0}, {60*128}')
        if i == 2: handshake()
T(f'''
s_and_b32 {s_e0}, {s_rb}, 1
s_lshl_b32 {s_e0}, {s_e0}, 2
s_add_u32 {s_e0}, {s_e0}, {s_w}
s_bfe_u32 {s_e1}, {s_rb}, 0x20001
s_mul_i32 {s_t2}, {s_e0}, 160
s_mul_i32 {s_t1}, {s_e1}, {160*1280}
s_add_u32 {s_t2}, {s_t2}, {s_t1}
s_mov_b32 {s_t0}, {(1<<32)//10+1}
''')
for i in range(5):
    T(f'''
    v_add_u32 {v_t1}, {64*i}, {v_lane}
    v_mul_hi_u32 {v_t2}, {v_t1}, {s_t0}
    v_mul_u32_u24 {v_t3}, 10, {v_t2}
    v_sub_u32 {v_t1}, {v_t1}, {v_t3}
    v_mul_u32_u24 {v_t2}, 1280, {v_t2}
    v_lshl_add_u32 {v_t2}, {v_t1}, 4, {v_t2}
    v_add_u32 v{2+i}, {s_t2}, {v_t2}
    ''')
T(f'''
s_mul_i32 {s_mW}, {s_w}, 25600
s_waitcnt lgkmcnt(0)
s_cmp_ge_u32 {s_rb}, 8
s_cselect_b32 s28, s58, s56
s_cselect_b32 s29, s59, s57
''')
wtok = {}
def wo_dma(b):
    T(f's_mov_b32 {s_t3}, {b*32*1280}')
    for i in range(5):
        T(f's_add_u32 m0, {s_mW}, {1024*(5*b+i)}')
        wtok[5 * b + i] = T.vm(f'buffer_load_dwordx4 v{2+i}, {sTMP}, {s_t3} offen lds')
wo_dma(0); wo_dma(1)
T(f'''
v_lshrrev_b32 {v_t1}, 4, {v_lane}
v_bfe_u32 {v_t2}, {v_lane}, 2, 2
v_and_b32 {v_t3}, 3, {v_lane}
v_mul_u32_u24 {v_t3}, 40, {v_t3}
v_add_u32 {v_t3}, {s_mW}, {v_t3}
v_lshl_add_u32 {v_t2}, {v_t1}, 3, {v_t2}
v_mul_u32_u24 {v_t2}, 160, {v_t2}
v_add_u32 v7, {v_t2}, {v_t3}
s_lshr_b32 {s_t0}, {s_rb}, 3
s_lshl_b32 {s_t0}, {s_t0}, 3
s_add_u32 {s_t0}, {s_t0}, {s_e0}
s_lshl_b32 {s_t0}, {s_t0}, 2
s_add_u32 {s_t0}, {s_t0}, {s_e1}
s_mul_i32 {s_stb}, {s_t0}, 25600
v_and_b32 v9, 15, {v_lane}
v_lshlrev_b32 v9, 4, v9
v_mul_u32_u24 v10, 1280, {v_t1}
v_add_u32 v10, v10, v9
v_cmp_eq_u32 vcc, 0, v9
v_lshlrev_b32 {v_t1}, 2, {v_t1}
s_lshl_b32 {s_rot}, {s_rb}, 2
s_add_u32 {s_rot}, {s_rot}, {s_w}
v_cndmask_b32 v11, {v_big}, {v_t1}, vcc
''')
stamp('', T)
setup2(T); setup_lds(T)
wo_dma(2)
stamp('', T)
for s_ in range(5):
    T.wait(wtok[5 * s_ + 4])
    if s_ == 0 and not STB: handshake()
    for ct in range(5):
        f = 5 * s_ + ct
        for u in range(2):
            T(f'ds_read_b64_tr_b16 {vr(140+4*f+2*u,2)}, v7 offset:{(32*s_+4*u)*160+8*ct}')
    if s_ + 3 < 5: wo_dma(s_ + 3)
    if s_ == 2: poll_issue(T, v_pres, v_zero, sDBG, '0')
    for ct in range(5):
        f = 5 * s_ + ct
        if f % 4 == 0: T(f's_add_u32 {s_t1}, {s_stb}, {WOF + f*1024}')
        tokw = T.vm(f'buffer_store_dwordx4 {vr(140+4*f,4)}, {v_l16}, {sWS}, {s_t1} offen offset:{(f%4)*1024} sc1')
    if s_ == 2: tokw2 = tokw
    if FINE: stamp('', T)
poll_check(T, v_pres, v_zero, sDBG, '0')
stamp('', T)
GW = 224; GA = 48
T(f's_mul_i32 {s_t1}, {s_rot}, {32*1280}')
for j in range(5): T(f'buffer_load_dwordx4 {vr(GW+4*j,4)}, v9, {sWA}, 0 offen offset:{256*j}')
for i in range(8):
    for j in range(5): T(f'buffer_load_dwordx4 {vr(64+20*i+4*j,4)}, v10, {sX}, {s_t1} offen offset:{256*j}')
    T(f's_add_u32 {s_t1}, {s_t1}, {4*1280}')
    if i == 1:
        T.wait(tokw)
        T('s_barrier')
        set_flag(T, v_flag, s_f1, 0)
        stamp('', T)
poll_issue(T, v_pres, v_p1, sWS, s_F1A)
T(f's_lshl_b32 {s_rot}, {s_rot}, 7\ns_add_u32 {s_rot}, {s_rot}, {G_OFF}')
for i in range(8):
    T(f'v_mov_b32 v{GA+i}, 0')
    for k in range(20): T(f'v_dot2c_f32_bf16 v{GA+i}, v{64+20*i+k}, v{GW+k}')
for sh in (8, 4, 2, 1):
    for i in range(8): T(f'v_add_f32_dpp v{GA+i}, v{GA+i}, v{GA+i} row_ror:{sh} row_mask:0xf bank_mask:0xf')
for i in range(8): T(f'v_mul_f32 v{GA+i}, {f32(-math.log2(math.e))}, v{GA+i}')
for i in range(8): T(f'v_exp_f32 v{GA+i}, v{GA+i}')
for i in range(8): T(f'v_add_f32 v{GA+i}, 1.0, v{GA+i}')
for i in range(8): T(f'v_rcp_f32 v{GA+i}, v{GA+i}')
T.l += setup_late()
for i in range(8): tokg = T.vm(f'buffer_store_dword v{GA+i}, v11, {sWS}, {s_rot} offen offset:{16*i} sc1')
stamp('', T)
T.l += mask_far() + zero_pads()
if NA:
    poll(T, v_t1, v_p2, sWS, s_F1A)
    for g in wo_loads(0, NA): T.l += g
poll_check(T, v_pres, v_p1, sWS, s_F1A)
stamp('', T)
kv, _ = kvq_loads()
for g in kv: T.l += g
for g in wo_loads(NA, NWO1): T.l += g
if WT > KV0:
    a_, b_ = wo_touch(); T.l += a_ + b_
T('s_waitcnt vmcnt(0) lgkmcnt(0)\ns_barrier')
T.l += att_pre()
T(qka(0)); T(qkb(0))
T.l += mask_rest()[:8]
T('s_nop 7')
assert nstamp[0] <= nst_join
while nstamp[0] < nst_join: stamp('', T)
T('s_waitcnt lgkmcnt(0)')
T('s_branch L_join')

def undef_check(l, name):
    d = {'v0', 's0', 's1', 's2', 'exec'}; bad = []
    for i in l:
        u = i.uses - d if i.kind not in ('pseudo', 'label', 'none') else set()
        if u: bad.append((sorted(u), i.text))
        d |= i.defs | u
    if bad: print('USE BEFORE DEF in', name, bad)
ib = next(k for k, i in enumerate(S.l) if 'L_spare' in i.text); ij = next(k for k, i in enumerate(S.l) if i.text == 'L_join:')
undef_check(S.l, 'main'); undef_check(S.l[:ib] + T.l + S.l[ij:], 'spare')
S.extend(T); S.extend(tail)
S('L_end:\ns_endpgm')
S.extend(FBK)

XP = opt('xp', 0)
if XP:
    def drop(i):
        if XP & 96 and 's_cbranch_vccnz L_again' in i.text: return True
        if XP & 32 and 'store_dwordx2' in i.text and 's16' in i.uses: return True
        if XP & 128 and 'store' in i.text and 's16' in i.uses and (v_q4 in i.uses or v_qe in i.uses): return True
        if i.kind != 'vm': return False
        t = i.text
        if XP & 1 and s_e2 in i.uses and 'load' in t: return True
        if XP & 2 and 'load' in t and i.uses & {'v%d' % r for r in range(2, 10)} and 's16' in i.uses and 'lds' not in t and i.uses & {'s%d' % r for r in list(range(60, 66)) + list(range(70, 76))} and 'v8' not in i.uses - {None} | set() or False: return True
        if XP & 4 and 'load' in t and 's16' in i.uses and (v_q4 in i.uses or v_qe in i.uses or v_qo in i.uses or v_kb1 in i.uses) and i.uses & {'s60', 's61', 's62', 's63'}: return True
        if XP & 8 and 'store' in t and v_st in i.uses and 's16' in i.uses and i.tok not in (tokA, tokB): return True
        if XP & 16 and 'lds' in t and s_e1 in i.uses and i.tok is not tokKV: return True
        return False
    S.l = [i for i in S.l if not drop(i)]
stats = []
body = finalize(S, stats)
hdr = open('cdna_kernels/%s.s.ref' % NAME).read().split('; Override')[0]
K = NAME + '_kernel'
txt = hdr + f'''; Generated by a hand-written generator script: one persistent workgroup per CU, phases chained by flags in d_ws.
; @launch grid=(256,1,1) block=(256,1,1) lds={LDS_BYTES}
.amdgcn_target "amdgcn-amd-amdhsa--gfx950"
.text
.globl {K}
.p2align 8
.type {K},@function
{K}:
''' + '\n'.join(body) + f'''
.section .rodata,"a"
.p2align 6
.amdhsa_kernel {K}
  .amdhsa_next_free_vgpr 512
  .amdhsa_next_free_sgpr 102
  .amdhsa_accum_offset 256
  .amdhsa_group_segment_fixed_size 0
  .amdhsa_kernarg_size 80
  .amdhsa_user_sgpr_count 2
  .amdhsa_user_sgpr_kernarg_segment_ptr 1
  .amdhsa_system_sgpr_workgroup_id_x 1
  .amdhsa_float_denorm_mode_32 3
.end_amdhsa_kernel
'''
open(OUT, 'w').write(txt)
print('instructions:', len(body), ' nops:', len(stats), sum(s[0] for s in stats), ' overflow slots', over, 'WS_SIZE', WS_SIZE)
if '--nops' in ARGS:
    for s in stats: print(s)
```

```python
import sys, math, struct
from fw import *

NAME = "gated_mix__sliding_block__sliding_local_dilated__prompt"
ARGS = sys.argv[1:]
STAMPS = '--stamps' in ARGS
FINE = '--fine' in ARGS
FINE2 = '--fine2' in ARGS
def opt(name, default):
    for a in ARGS:
        if a.startswith('--' + name + '='): return int(a.split('=')[1])
    return default
OUT = [a for a in ARGS if not a.startswith('--')]
OUT = OUT[0] if OUT else 'k.s'

GRP = 2048 * 16
QKV = [0, 240 * GRP]
WOF = 480 * GRP
G_OFF = WOF + 64 * 25600
FLG = G_OFF + 8192
F1 = [FLG, FLG + 32768]
WS_SIZE = FLG + 65536
STAMP_OFF = WS_SIZE
BIG = 0x40000000
L_X = 65536
GS = 8192 + 64
L_KA = L_X + 16384; L_VA = L_KA + 3 * GS
L_VB = 131072 + 512; VBW = 4608
L_ONE = L_VB + 4 * VBW + ((L_VA + 3 * GS) % 256)
L_TAB = L_VB + 4 * VBW + 8192 + 256
LDS_BYTES = 160 * 1024
assert L_TAB + 1024 <= LDS_BYTES and L_VA + 3 * GS <= L_VB

def f32(x): return '0x%08x' % struct.unpack('<I', struct.pack('<f', x))[0]
QSCALE = (20 ** -0.5) * math.log2(math.e)
NEGINF = '0xff800000'

sX, sWA, sWB, sWS, sOUT, sDBG, sTMP = 's[4:7]', 's[8:11]', 's[12:15]', 's[16:19]', 's[20:23]', 's[24:27]', 's[28:31]'
s_xcd, s_t, s_rb, s_cb, s_w = 's32', 's33', 's34', 's35', 's36'
s_t0, s_t1, s_t2, s_t3 = 's37', 's38', 's39', 's40'
s_stb, s_scale, s_inv, s_mW, s_mX = 's41', 's42', 's43', 's44', 's45'
s_hd, s_r2, s_so, s_q0 = 's46', 's47', 's48', 's49'
s_cnt, s_f1, s_tag, s_rnd, s_k1, s_wob = 's50', 's51', 's52', 's53', 's54', 's55'
SW0, SX0 = 60, 70
ST0 = 80
s_bF, s_bS, s_dF, s_dS, s_mK, s_mV, s_gb, s_rot = 's84', 's85', 's86', 's87', 's88', 's89', 's90', 's91'
s_e0, s_e1, s_e2, s_e3 = 's92', 's93', 's94', 's95'
s_F1A, s_F1B, s_F2, s_q0z, s_R, s_C = 's96', 's97', 's98', 's99', 's100', 's101'
ROWMAP = opt('rowmap', 0); QRND = opt('qrnd', 0)
v_lane = 'v1'
VWD, VXD, VWR, VXR = 2, 6, 10, 14
VWX = [14, 15, 42, 44]
v_dma, v_gad, v_kb0, v_k1 = 'v6', 'v7', 'v8', 'v9'
v_st, v_flag, v_one, v_pres, v_l16, v_big = 'v16', 'v17', 'v18', 'v19', 'v20', 'v21'
v_t1, v_t2, v_t3, v_t4, v_tmp, v_zero = 'v22', 'v23', 'v24', 'v25', 'v26', 'v27'
(v_p1, v_p2, v_p3, v_q4, v_qe, v_qo, v_k0, v_v, v_vb, v_vh, v_kb1, v_halo, v_mA, v_mB0, v_flagw, v_o4, v_o2, v_h, v_r, v_tabc) = ['v%d' % i for i in range(28, 48)]
WRING = 48
ACC = [64, 128]
XV = 192
E0, P0 = 48, 56
SB = [64, 192]; M_FAR, M_DIAG = 80, 208; QA0, QA1 = 96, 104; OA = [224, 240]
QB0, QB1, KB0 = 128, 136, 144
v_g = ['v46', 'v47']
MB_DIAG, MB_PREV, MB_PREV0 = 160, 168, 176
SP = [64, 192]; SD = [80, 208]; OB = [96, 112]
V4, V2, VRW, v_rr, v_out, v_p4 = 2, 6, 10, 'v13', 'v14', 'v15'
AC3 = 16; OF = [[128, 144, 160, 176, 224], [96, 112, 192, 208, 240]]; RED = 128
AK0, AK1, AV, AKB1 = 200, 208, 216, 232
VB = 200

def vr(b, n): return 'v[%d:%d]' % (b, b + n - 1)
def ar(b, n): return 'a[%d:%d]' % (b, b + n - 1)
mm = 'v_mfma_f32_32x32x16_bf16'

S = Stream()
tail = Stream()
nstamp = [0]; stamp_names = []
AMP = [a.split('=')[1].split(',') for a in ARGS if a.startswith('--amp=')]
AMP = AMP[0] if AMP else None
def stamp(name='', st=None):
    if AMP and name in AMP and st is None: S('s_memrealtime s[%d:%d]' % (ST0 + 2 * AMP.index(name), ST0 + 2 * AMP.index(name) + 1))
    if STAMPS:
        st = st or S
        k = nstamp[0]
        if k == 1:
            for i in range(56, 64): st('v_writelane_b32 v0, 0, %d' % i)
        if k > 0: st('v_writelane_b32 v0, s%d, %d' % (ST0 + 2 * ((k - 1) & 1), k - 1))
        st('s_memrealtime s[%d:%d]' % (ST0 + 2 * (k & 1), ST0 + 2 * (k & 1) + 1))
        if '--clk' in ARGS and st is S and 3 <= k <= 24:
            if k > 3: st('v_writelane_b32 v0, s%d, %d' % (28 + 2 * ((k - 1) & 1), 30 + k - 1))
            st('s_memtime s[%d:%d]' % (28 + 2 * (k & 1), 29 + 2 * (k & 1)))
    stamp_names.append(name)
    nstamp[0] += 1
def st2(n):
    if FINE2: stamp(n)
nlab = [0]
def lab(p):
    nlab[0] += 1
    return 'L_%s_%d' % (p, nlab[0])

PIDX = {v_zero: 0, v_p1: 1, v_p2: 2, v_p3: 3, v_p4: 4}
def poll_issue(st, res, adr, srd, soff, off=0):
    st('buffer_load_dword %s, %s, %s, %s offen offset:%d sc1' % (res, adr, srd, soff, off))
def poll_check(st, res, adr, srd, soff, off=0):
    l = lab('poll'); b = lab('back')
    st('v_cmp_ne_u32 vcc, 1, %s' % res)
    st('s_cbranch_vccnz %s' % l)
    st(b + ':')
    tail('@reset')
    tail(f'''
    {l}:
    s_mov_b32 {s_cnt}, 0
    {l}_a:
    buffer_load_dword {res}, {adr}, {srd}, {soff} offen offset:{off} sc1
    s_add_u32 {s_cnt}, {s_cnt}, 1
    {('v_writelane_b32 v0, %s, %d' % (s_cnt, 56 + PIDX[adr] + off // 4)) if STAMPS else ''}
    s_waitcnt vmcnt(0)
    v_cmp_ne_u32 vcc, 1, {res}
    s_cbranch_vccz {b}
    s_cmp_lt_u32 {s_cnt}, 0x40000
    s_cbranch_scc1 {l}_a
    s_branch {b}
    ''')
def poll(st, res, adr, srd, soff):
    poll_issue(st, res, adr, srd, soff); poll_check(st, res, adr, srd, soff)
def set_flag(st, vf, base, off):
    st(f'buffer_store_dword {v_one}, {vf}, {sWS}, {base} offen offset:{off} sc1')
def mk(fn, *a):
    st = Stream(); fn(st, *a); return st.l
def L(txt):
    st = Stream(); st(txt); return st.l

def setup2(st):
    st(f'''
    s_mov_b32 s14, {640*3840}
    s_mov_b32 s15, 0x20000
    s_mov_b32 s22, {2048*1280}
    s_mov_b32 s23, 0x20000
    s_mov_b32 {s_F1A}, {F1[0]}
    s_mov_b32 {s_F1B}, {F1[1]}
    s_and_b32 {s_C}, {s_t}, 7
    s_lshr_b32 {s_t2}, {s_t}, 3
    s_lshl_b32 {s_t0}, {s_xcd}, 2
    s_add_u32 {s_R}, {s_t0}, {s_t2}
    s_mov_b32 {s_r2}, {s_xcd if ROWMAP else s_C}
    s_mov_b32 {s_hd}, {s_t if ROWMAP else s_R}
    ''')
    if opt('map3', 1) == 1:
        st(f'''
        s_lshr_b32 {s_R}, {s_xcd}, 1
        s_lshl_b32 {s_R}, {s_R}, 3
        s_lshr_b32 {s_t0}, {s_t}, 2
        s_add_u32 {s_R}, {s_R}, {s_t0}
        s_and_b32 {s_C}, {s_xcd}, 1
        s_lshl_b32 {s_C}, {s_C}, 2
        s_and_b32 {s_t0}, {s_t}, 3
        s_add_u32 {s_C}, {s_C}, {s_t0}
        ''')
    st(f'''
    s_lshl_b32 {s_q0}, {s_r2}, 8
    s_lshl_b32 {s_t0}, {s_w}, 6
    s_add_u32 {s_q0}, {s_q0}, {s_t0}
    s_mul_i32 {s_e0}, {s_hd}, 5
    s_lshr_b32 {s_e0}, {s_e0}, 1
    s_and_b32 {s_t3}, {s_hd}, 1
    s_add_u32 {s_e1}, {s_e0}, {s_t3}
    s_lshl_b32 {s_so}, {s_t3}, 3
    s_lshl_b32 {s_t3}, {s_t3}, 1
    s_add_u32 {s_e2}, {s_e0}, 2
    s_sub_u32 {s_e2}, {s_e2}, {s_t3}
    s_lshl_b32 {s_e1}, {s_e1}, 15
    s_lshl_b32 {s_e2}, {s_e2}, 15
    s_lshl_b32 {s_t0}, {s_q0}, 4
    s_add_u32 {s_bF}, {s_e1}, {s_t0}
    s_add_u32 {s_bS}, {s_e2}, {s_t0}
    s_lshl_b32 {s_e3}, {s_r2}, 1
    s_add_u32 {s_e3}, {s_e3}, {s_w}
    s_lshl_b32 {s_t0}, {s_e3}, 11
    s_add_u32 {s_dF}, {s_e1}, {s_t0}
    s_add_u32 {s_dS}, {s_e2}, {s_t0}
    s_lshl_b32 {s_mK}, {s_w}, 11
    s_mul_i32 {s_mV}, {s_w}, {VBW}
    s_add_u32 {s_mV}, {s_mV}, {L_VB}
    s_lshl_b32 {s_gb}, {s_q0}, 2
    s_add_u32 {s_gb}, {s_gb}, {G_OFF}
    s_lshl_b32 {s_f1}, {s_rb}, 11
    s_lshl_b32 {s_t0}, {s_cb}, 7
    s_add_u32 {s_f1}, {s_f1}, {s_t0}
    s_add_u32 {s_f1}, {s_f1}, {F1[0]}
    s_lshl_b32 {s_wob}, {s_C}, 2
    s_add_u32 {s_wob}, {s_wob}, {s_w}
    s_mul_i32 {s_wob}, {s_wob}, 25600
    v_and_b32 {v_zero}, 60, {v_lane}
    v_lshrrev_b32 {v_h}, 5, {v_lane}
    v_and_b32 {v_r}, 31, {v_lane}
    v_bfe_u32 {v_t1}, {v_lane}, 2, 1
    v_lshl_add_u32 {v_t1}, {v_t1}, 1, {s_e0}
    v_lshrrev_b32 {v_t1}, 4, {v_t1}
    v_and_b32 {v_t2}, 3, {v_lane}
    v_min_u32 {v_t3}, 2, {v_t2}
    v_mad_u32_u24 {v_t4}, {v_t3}, 5, {v_t1}
    v_mad_u32_u24 {v_tmp}, {v_t2}, 5, {v_t1}
    v_min_u32 {v_tmp}, 15, {v_tmp}
    s_sub_u32 {s_t1}, {s_e3}, 2
    s_max_i32 {s_t1}, {s_t1}, 0
    s_lshl_b32 {s_t1}, {s_t1}, 11
    s_andn2_b32 {s_t2}, {s_q0}, 127
    s_lshl_b32 {s_t2}, {s_t2}, 4
    v_cmp_eq_u32 vcc, 0, {v_t2}
    v_mov_b32 {v_t1}, {s_t1}
    v_mov_b32 {v_t3}, {s_t2}
    v_cndmask_b32 {v_t1}, {v_t1}, {v_t3}, vcc
    v_lshl_add_u32 {v_p1}, {v_t4}, 7, {v_t1}
    s_sub_u32 {s_t1}, {s_q0}, 32
    s_max_i32 {s_t1}, {s_t1}, 0
    s_andn2_b32 {s_t1}, {s_t1}, 127
    s_lshl_b32 {s_t1}, {s_t1}, 4
    v_and_b32 {v_t2}, 8, {v_lane}
    v_cmp_eq_u32 vcc, 0, {v_t2}
    v_mov_b32 {v_t1}, {s_t1}
    v_and_b32 {v_t2}, 1, {v_lane}
    v_cndmask_b32 {v_t1}, {v_t1}, {v_t3}, vcc
    v_lshl_add_u32 {v_p3}, {v_tmp}, 7, {v_t1}
    v_cmp_gt_u32 s[38:39], 32, {v_lane}
    s_lshr_b32 {s_t0}, {s_R}, 1
    s_lshl_b32 {s_t0}, {s_t0}, 4
    s_add_u32 {s_t0}, {s_t0}, {s_w}
    v_add_lshl_u32 {v_t1}, {v_t2}, {s_t0}, 7
    v_cndmask_b32 {v_p3}, {v_t1}, {v_p3}, s[38:39]
    s_lshl_b32 {s_t0}, {s_w}, 1
    s_lshr_b32 {s_t1}, {s_C}, 2
    s_add_u32 {s_t0}, {s_t0}, {s_t1}
    s_lshl_b32 {s_t0}, {s_t0}, 11
    s_add_u32 {s_t0}, {s_t0}, {15*128}
    v_lshl_add_u32 {v_p2}, {v_t2}, 14, {s_t0}
    v_cndmask_b32 {v_p1}, {v_p2}, {v_p1}, vcc
    ''')
    st(f'''
    v_lshlrev_b32 {v_q4}, 15, {v_h}
    v_lshl_add_u32 {v_q4}, {v_r}, 4, {v_q4}
    v_cmp_eq_u32 vcc, 0, {v_h}
    v_lshl_add_u32 {v_t1}, {v_r}, 4, {s_so}
    s_cmp_eq_u32 {s_q0}, 0
    s_cselect_b32 {s_q0z}, {BIG}, 0
    v_cndmask_b32 {v_qe}, {v_big}, {v_t1}, vcc
    v_cndmask_b32 {v_qo}, {v_t1}, {v_big}, vcc
    v_mov_b32 {v_t2}, {s_q0z}
    v_cndmask_b32 {v_t2}, 0, {v_t2}, vcc
    v_add3_u32 {v_kb1}, {v_t2}, {v_l16}, {s_so}
    v_and_b32 {v_t2}, 15, {v_lane}
    v_mov_b32 {v_o4}, 0x10000
    v_lshrrev_b32 {v_t1}, 4, {v_lane}
    v_lshl_add_u32 {v_t3}, {v_t1}, 15, {s_bF}
    v_cmp_eq_u32 vcc, 2, {v_t1}
    v_mov_b32 {v_t4}, {s_bS}
    s_add_u32 {s_t3}, {s_q0z}, {QKV[1] + 160*GRP - 256}
    v_cndmask_b32 {v_t3}, {v_t3}, {v_t4}, vcc
    v_cmp_eq_u32 vcc, 3, {v_t1}
    v_lshl_add_u32 {v_t3}, {v_t2}, 4, {v_t3}
    v_add_u32 {v_t3}, {s_t3}, {v_t3}
    v_cndmask_b32 {v_halo}, {v_t3}, {v_big}, vcc
    ''')
    st(f'''
    s_lshl_b32 {s_t0}, {s_w}, 10
    v_mul_u32_u24 {v_t1}, {GS}, {v_h}
    v_lshl_add_u32 {v_t1}, {v_r}, 4, {v_t1}
    s_add_u32 {s_t1}, {s_t0}, {L_KA}
    v_add_u32 {v_k0}, {s_t1}, {v_t1}
    s_add_u32 {s_k1}, {s_t0}, {L_KA + 2*GS}
    s_add_u32 {s_k1}, {s_k1}, {s_so}
    v_bfe_u32 {v_t1}, {v_lane}, 2, 2
    v_lshl_add_u32 {v_t1}, {v_h}, 2, {v_t1}
    v_lshlrev_b32 {v_t1}, 4, {v_t1}
    v_and_b32 {v_pres}, 16, {v_lane}
    v_cmp_eq_u32 vcc, 0, {v_pres}
    v_and_b32 {v_t2}, 1, {v_lane}
    v_bfe_u32 {v_t3}, {v_lane}, 1, 1
    v_add_u32 {v_t4}, 2, {v_t3}
    v_lshlrev_b32 {v_t3}, 3, {v_t3}
    v_mov_b32 {v_tmp}, {s_so}
    v_cndmask_b32 {v_t2}, {v_t4}, {v_t2}, vcc
    v_cndmask_b32 {v_t3}, {v_tmp}, {v_t3}, vcc
    v_cmp_eq_u32 vcc, 3, {v_t2}
    v_add_u32 {v_t1}, {v_t1}, {v_t3}
    s_add_u32 {s_t1}, {s_t0}, {L_VA}
    v_mul_u32_u24 {v_t3}, {GS}, {v_t2}
    v_add3_u32 {v_v}, {v_t1}, {v_t3}, {s_t1}
    v_mul_u32_u24 {v_t3}, 1088, {v_t2}
    v_add3_u32 {v_vb}, {v_t1}, {v_t3}, {s_mV}
    s_add_u32 {s_t1}, {s_mV}, {3*1088}
    v_lshlrev_b32 {v_t3}, 8, {v_t2}
    v_add3_u32 {v_vh}, {v_t1}, {v_t3}, {s_t1}
    s_add_u32 {s_t1}, {s_t0}, {L_ONE}
    v_add_u32 {v_t3}, {s_t1}, {v_t1}
    v_add_u32 {v_t1}, {L_ONE + 4096}, {v_t1}
    v_cndmask_b32 {v_v}, {v_v}, {v_t3}, vcc
    v_cndmask_b32 {v_vb}, {v_vb}, {v_t1}, vcc
    v_cndmask_b32 {v_vh}, {v_vh}, {v_t1}, vcc
    ''')
    st(f'''
    v_lshlrev_b32 {v_t1}, 2, {v_h}
    v_sub_u32 {v_t1}, {v_t1}, {v_r}
    v_lshlrev_b32 {v_t1}, 2, {v_t1}
    v_add_u32 {v_mA}, {L_TAB + 128}, {v_t1}
    s_cmp_eq_u32 {s_q0}, 0
    s_cselect_b64 vcc, -1, 0
    v_mov_b32 {v_t1}, {L_TAB + 4*64}
    v_cndmask_b32 {v_mB0}, {v_mA}, {v_t1}, vcc
    ''')
def setup_lds(st):
    st(f'''
    s_and_b32 {s_cnt}, {s_xcd if ROWMAP else s_t}, 7
    s_lshl_b32 {s_cnt}, {s_cnt}, 1
    s_add_u32 {s_cnt}, {s_cnt}, {s_w}
    s_cmp_ge_u32 {s_cnt}, 2
    s_cselect_b32 {s_inv}, 0, {BIG}
    s_cselect_b32 {s_cnt}, 0x3f803f80, 0
    v_mov_b32 v128, {s_cnt}
    v_mov_b32 v129, {s_cnt}
    v_mov_b32 v130, {s_cnt}
    v_mov_b32 v131, {s_cnt}
    s_lshl_b32 {s_cnt}, {s_w}, 11
    s_add_u32 {s_cnt}, {s_cnt}, {L_ONE}
    v_add_u32 v132, {s_cnt}, {v_l16}
    ds_write_b128 v132, v[128:131]
    ds_write_b128 v132, v[128:131] offset:1024
    ''')
    mk_ = [0, 0, 0, 0]
    for e in range(256):
        ok = (e - 32 <= 0) if e < 64 else (e - 96 > 0) if e < 128 else (0 <= 191 - e <= 14 and (191 - e) % 2 == 0)
        if ok: mk_[e >> 6] |= 1 << (e & 63)
    assert mk_[3] == 0 and mk_[1] & 0xffffffff == 0 and mk_[2] & 0xffffffff == 0
    st(f'''
    s_cmp_eq_u32 {s_w}, 0
    s_cselect_b32 s58, 0x{mk_[0] & 0xffffffff:x}, 0
    s_cselect_b32 s59, 0x{mk_[0] >> 32:x}, 0
    s_cmp_eq_u32 {s_w}, 1
    s_cselect_b32 s59, 0x{mk_[1] >> 32:x}, s59
    s_cmp_eq_u32 {s_w}, 2
    s_cselect_b32 s59, 0x{mk_[2] >> 32:x}, s59
    v_mov_b32 v138, {NEGINF}
    s_lshl_b32 {s_cnt}, {s_w}, 8
    s_add_u32 {s_cnt}, {s_cnt}, {L_TAB}
    v_cndmask_b32 v138, v138, 0, s[58:59]
    v_lshl_add_u32 v139, {v_lane}, 2, {s_cnt}
    ds_write_b32 v139, v138
    ''')
def setup_late():
    return L(f'''
    v_add_u32 {v_dma}, {s_inv}, {v_l16}
    v_lshlrev_b32 {v_gad}, 2, {v_r}
    v_add_u32 {v_kb0}, {s_q0z}, {v_q4}
    v_add_u32 {v_k1}, {s_k1}, {v_l16}
    ''')
def zero_pads():
    return L('\n'.join(f'v_accvgpr_write_b32 a{b}, 0' for b in (AK1 + 2, AK1 + 3, AK1 + 6, AK1 + 7, AKB1 + 2, AKB1 + 3, AKB1 + 6, AKB1 + 7))
             + f'\nv_mov_b32 v{QA1+8}, 0\nv_mov_b32 v{QA1+9}, 0')

def mask_reads(reg, adr, base, a0=0):
    l = []
    for a in range(a0, 4):
        for b in (0, 2):
            k = base + 8 * a + b
            l.append(Ins(f'ds_read2_b32 {vr(reg+4*a+b,2)}, {adr} offset0:{k} offset1:{k+1}'))
    return l
def mask_far(): return mask_reads(M_FAR, v_mA, 64)
def mask_rest(): return mask_reads(M_DIAG, v_mA, 0) + mask_reads(MB_DIAG, v_mA, 159) + mask_reads(MB_PREV, v_mA, 127, 2) + mask_reads(MB_PREV0, v_mB0, 127, 2)

def kvq_loads():
    g = []
    for ty in (1, 2):
        for gi in range(3):
            g.append(L(f's_add_u32 m0, {s_mK}, {(L_KA if ty == 1 else L_VA) + gi*GS}\n'
                       f's_add_u32 {s_e1}, {s_dS if gi == 2 else s_dF}, {QKV[0] + (80*ty + (gi if gi < 2 else 0))*GRP - 4096}'))
            g.append(L(f'buffer_load_dwordx4 {v_dma}, {sWS}, {s_e1} offen sc1 lds'))
            st = Stream()
            tok = st.vm(f'buffer_load_dwordx4 {v_dma}, {sWS}, {s_e1} offen offset:1024 sc1 lds')
            g.append(st.l)
    for x in (f'buffer_load_dwordx4 {vr(QA0,4)}, {v_q4}, {sWS}, {s_bF} offen sc1',
              f'buffer_load_dwordx2 {vr(QA1,2)}, {v_qe}, {sWS}, {s_bS} offen sc1',
              f'buffer_load_dwordx2 {vr(QA1+2,2)}, {v_qo}, {sWS}, {s_bS} offen sc1',
              f'buffer_load_dwordx4 {vr(QA0+4,4)}, {v_q4}, {sWS}, {s_bF} offen offset:512 sc1',
              f'buffer_load_dwordx2 {vr(QA1+4,2)}, {v_qe}, {sWS}, {s_bS} offen offset:512 sc1',
              f'buffer_load_dwordx2 {vr(QA1+6,2)}, {v_qo}, {sWS}, {s_bS} offen offset:512 sc1'):
        g.append([Ins(x)])
    return g, tok
def wo_loads(f0, f1, adr=v_l16):
    g = []
    for F in range(f0, f1):
        br, f = F // 25, F % 25
        if f % 4 == 0 or F == f0: g.append(L(f's_add_u32 {s_e2}, {s_wob}, {WOF + br*32*25600 + (f & ~3)*1024}'))
        g.append(L(f'buffer_load_dwordx4 {ar(4*F,4)}, {adr}, {sWS}, {s_e2} offen offset:{(f%4)*1024} sc1'))
    return g

steps = [(0, 0)] + [(j, q) for j in range(1, 9) for q in range(2)] + [(9, 1)]
def k0_read(j): return Ins(f'ds_read_b128 {ar(AK0+4*(j&1),4)}, {v_k0} offset:{512*j}')
def k1_read(j): return Ins(f'ds_read_b64 {ar(AK1+4*((j>>1)&1),2)}, {v_k1} offset:{512*j}')
def v_read(j, kk, u): return Ins(f'ds_read_b64_tr_b16 {ar(AV+8*(j&1)+4*kk+2*u,2)}, {v_v} offset:{512*j+256*kk+128*u}')
def qka(n):
    j, q = steps[n]
    c = vr(M_FAR, 16) if j == q else vr(M_DIAG, 16) if j == 8 + q else '0'
    return f'{mm} {vr(SB[n&1],16)}, {ar(AK0+4*(j&1),4)}, {vr(QA0+4*q,4)}, {c}'
def qkb(n):
    j, q = steps[n]
    return f'{mm} {vr(SB[n&1],16)}, {ar(AK1+4*((j>>1)&1),4)}, {vr(QA1+4*q+2*(j&1),4)}, {vr(SB[n&1],16)}'
def pv(n, kk):
    j, q = steps[n]
    c = '0' if (j == q and kk == 0) else vr(OA[q], 16)
    return f'{mm} {vr(OA[q],16)}, {ar(AV+8*(j&1)+4*kk,4)}, {vr(P0+4*kk,4)}, {c}'
def exps(n, g): return [f'v_exp_f32 v{E0+4*(g&1)+i}, v{SB[n&1]+4*g+i}' for i in range(4)]
def cvts(g): return [f'v_cvt_pk_bf16_f32 v{P0+2*g+i}, v{E0+4*(g&1)+2*i}, v{E0+4*(g&1)+2*i+1}' for i in range(2)]
def att_pre(): return [k0_read(0), k1_read(0), k0_read(1)] + [v_read(0, kk, u) for kk in range(2) for u in range(2)]

S(f'''
s_cmp_ge_u32 s2, 0x100
s_cbranch_scc1 L_end
s_load_dwordx2 s[4:5], s[0:1], 0
s_load_dwordx2 s[8:9], s[0:1], 8
s_load_dwordx2 s[12:13], s[0:1], 32
s_load_dwordx2 s[16:17], s[0:1], 72
s_load_dwordx2 s[20:21], s[0:1], 56
s_load_dwordx2 s[24:25], s[0:1], 64
''')
stamp('start')
if opt('cpf', 1):
    S(f'''
    s_getpc_b64 s[28:29]
    L_pc:
    s_mov_b32 s30, L_end-L_pc
    s_mov_b32 s31, 0x20000
    s_andn2_b32 {s_t0}, s2, 7
    v_min_u32 v132, 7, v0
    v_add_lshl_u32 v132, v132, {s_t0}, 7
    buffer_load_dword v133, v132, {sTMP}, 0 offen
    ''')
if opt('kick', 0):
    S(f'''
    s_mov_b32 s6, {2048*1280}
    s_mov_b32 s7, 0x20000
    s_mov_b32 s10, {640*3840}
    s_mov_b32 s11, 0x20000
    v_lshlrev_b32 v146, 21, v0
    s_waitcnt lgkmcnt(0)
    buffer_load_dword v147, v146, {sX}, 0 offen
    buffer_load_dword v148, v146, {sWA}, 0 offen
    ''')
S(f'''
v_lshrrev_b32 {v_tmp}, 6, v0
v_and_b32 {v_lane}, 63, v0
v_readfirstlane_b32 {s_w}, {v_tmp}
s_and_b32 {s_xcd}, s2, 7
{('s_xor_b32 %s, %s, %d' % (s_xcd, s_xcd, opt('xmap', 0))) if opt('xmap', 0) else ''}
s_lshr_b32 {s_t}, s2, 3
s_and_b32 {s_t0}, {s_xcd}, 1
s_lshl_b32 {s_t0}, {s_t0}, 3
s_and_b32 {s_t1}, {s_t}, 7
s_add_u32 {s_rb}, {s_t0}, {s_t1}
s_lshr_b32 {s_t0}, {s_xcd}, 1
s_lshl_b32 {s_t0}, {s_t0}, 2
s_lshr_b32 {s_t2}, {s_t}, 3
s_add_u32 {s_cb}, {s_t0}, {s_t2}
s_mov_b32 s6, {2048*1280}
s_mov_b32 s7, 0x20000
s_mov_b32 s11, 0x20000
s_cmp_eq_u32 {s_cb}, 15
s_cbranch_scc1 L_spare
s_mov_b32 s10, {640*3840}
s_lshl_b32 {s_rot}, {s_t2}, 1
s_add_u32 {s_rot}, {s_rot}, {s_t1}
''')
if opt('rot', 24) == 8:
    S(f's_and_b32 {s_rot}, {s_rot}, 7\ns_mul_i32 {s_rot}, {s_rot}, 5\ns_lshr_b32 {s_rot}, {s_rot}, 2')
elif opt('rot', 24) == 1:
    S(f's_mov_b32 {s_rot}, 0')
elif opt('rot', 24) == 2:
    S(f's_add_u32 {s_rot}, {s_t1}, {s_t2}\ns_and_b32 {s_rot}, {s_rot}, 1\ns_mul_i32 {s_rot}, {s_rot}, 5')
elif opt('rot', 24) == 3:
    S(f's_add_u32 {s_rot}, {s_t1}, {s_t2}\ns_mul_i32 {s_t0}, {s_rot}, 86\ns_lshr_b32 {s_t0}, {s_t0}, 8\ns_mul_i32 {s_t0}, {s_t0}, 3\ns_sub_u32 {s_rot}, {s_rot}, {s_t0}\ns_mul_i32 {s_rot}, {s_rot}, 7\ns_lshr_b32 {s_rot}, {s_rot}, 1')
elif opt('rot', 24) == 4:
    S(f's_add_u32 {s_rot}, {s_t1}, {s_t2}\ns_and_b32 {s_rot}, {s_rot}, 3\ns_mul_i32 {s_rot}, {s_rot}, 5\ns_lshr_b32 {s_rot}, {s_rot}, 1')
elif opt('rot', 24) in (22, 24):
    m_ = 1 if opt('rot', 24) == 22 else 3
    S(f'''
    s_add_u32 {s_rot}, {s_t1}, {s_t2}
    s_and_b32 {s_rot}, {s_rot}, 1
    s_mul_i32 {s_rot}, {s_rot}, {m_ + 1}
    s_and_b32 {s_t0}, {s_xcd}, 1
    s_mul_i32 {s_t0}, {s_t0}, {(m_ + 1) // 2}
    s_lshr_b32 {s_t3}, {s_xcd}, 1
    s_add_u32 {s_t0}, {s_t0}, {s_t3}
    s_and_b32 {s_t0}, {s_t0}, {m_}
    s_add_u32 {s_rot}, {s_rot}, {s_t0}
    s_mul_i32 {s_rot}, {s_rot}, 5
    s_lshr_b32 {s_rot}, {s_rot}, {1 if m_ == 1 else 2}
    ''')
elif opt('rot', 24) == 14:
    S(f'''
    s_and_b32 {s_t0}, {s_xcd}, 1
    s_lshl_b32 {s_t0}, {s_t0}, 1
    s_lshr_b32 {s_t3}, {s_xcd}, 1
    s_add_u32 {s_t0}, {s_t0}, {s_t3}
    s_and_b32 {s_rot}, {s_t0}, 3
    s_mul_i32 {s_rot}, {s_rot}, 5
    s_lshr_b32 {s_rot}, {s_rot}, 1
    ''')
else:
    S(f'''
    s_lshl_b32 {s_rot}, {s_rot}, 1
    s_add_u32 {s_t0}, {s_xcd}, 1
    s_lshr_b32 {s_t0}, {s_t0}, 1
    s_add_u32 {s_rot}, {s_rot}, {s_t0}
    s_and_b32 {s_rot}, {s_rot}, 15
    s_mul_i32 {s_rot}, {s_rot}, 5
    s_lshr_b32 {s_rot}, {s_rot}, 3
    ''')
def rot(st, n):
    if n >= 1: st(f's_cmp_eq_u32 {s_rot}, 10\ns_cselect_b32 {s_rot}, 0, {s_rot}')
    st(f'''
    s_mul_i32 s{SW0+n}, {s_rot}, {64*3840}
    s_lshl_b32 s{SX0+n}, {s_rot}, 7
    s_add_u32 {s_rot}, {s_rot}, 1
    ''')
rot(S, 0)
S(f'''
v_lshrrev_b32 {v_t1}, 4, {v_lane}
v_lshrrev_b32 {v_t2}, 3, {v_lane}
v_mul_u32_u24 {v_t2}, 1280, {v_t2}
v_and_b32 {v_t3}, 7, {v_lane}
v_xor_b32 {v_t3}, {v_t3}, {v_t1}
s_lshl_b32 {s_t2}, {s_rb}, 2
s_add_u32 {s_t2}, {s_t2}, {s_w}
s_mul_i32 {s_t2}, {s_t2}, {32*1280}
v_add_u32 {v_t2}, {s_t2}, {v_t2}
v_lshl_add_u32 v{VXD}, {v_t3}, 4, {v_t2}
v_xor_b32 {v_t3}, 4, {v_t3}
v_lshl_add_u32 v{VXD+1}, {v_t3}, 4, {v_t2}
v_add_u32 v{VXD+2}, {2*(8*1280-1024)}, v{VXD}
v_add_u32 v{VXD+3}, {3*(8*1280-1024)}, v{VXD+1}
v_add_u32 v{VXD+1}, {8*1280-1024}, v{VXD+1}
s_lshl_b32 {s_mW}, {s_w}, 12
s_add_u32 {s_mX}, {s_mW}, {L_X}
v_and_b32 {v_t2}, 15, {v_lane}
v_lshlrev_b32 {v_t3}, 1, {v_t1}
v_xor_b32 {v_t2}, {v_t2}, {v_t3}
v_mul_u32_u24 {v_t3}, 3840, {v_t1}
v_lshl_add_u32 {v_t3}, {v_t2}, 4, {v_t3}
s_mul_i32 {s_t1}, {s_w}, {16*3840}
s_lshl_b32 {s_t2}, {s_cb}, 8
s_add_u32 {s_t1}, {s_t1}, {s_t2}
v_add_u32 v{VWD}, {s_t1}, {v_t3}
''')
S(f'''
v_xor_b32 v{VWD+2}, 128, v{VWD}
v_add_u32 v{VWD+1}, {4*3840-1024}, v{VWD}
v_add_u32 v{VWD+3}, {3*(4*3840-1024)}, v{VWD+2}
v_add_u32 v{VWD+2}, {2*(4*3840-1024)}, v{VWD+2}
''')
rot(S, 1)
S('s_waitcnt lgkmcnt(0)')

dma_tok = {}
WSLOT = [n % 4 for n in range(10)] + [2, 6, 3, 7, 0, 4, 1, 2, 3, 0]
WISS = {n: n - 2 for n in range(2, 11)}
WISS.update({11: 8, 12: 9, 13: 9, 14: 10, 15: 12, 16: 12, 17: 13, 18: 14, 19: 16})
for a_ in ARGS:
    if a_.startswith('--wiss='): WISS.update({11 + i: int(x) for i, x in enumerate(a_[7:].split(','))})
CTM = opt('ctm', 4)
def dma_stage(n):
    p, ns, slot = n // 10, n % 10, WSLOT[n]
    g = []
    if p == 0:
        g.append(L(f's_add_u32 m0, {s_mX}, {slot*16384}'))
        for i in range(4):
            g.append(L(f'buffer_load_dwordx4 v{VXD+i}, {sX}, s{SX0+ns} offen offset:{1024*i} lds'))
        g[-1] += L(f's_add_u32 m0, {s_mW}, {slot*16384}')
    else:
        g.append(L(f's_add_u32 m0, {s_mW}, {slot*16384}'))
    for i in range(4):
        st = Stream()
        dma_tok[n] = st.vm(f'buffer_load_dwordx4 v{VWD+i}, {sWB if p else sWA}, s{SW0+ns} offen offset:{1024*i} lds')
        g.append(st.l)
    return g

def common_consts(st):
    st(f'''
    s_mov_b32 s18, {WS_SIZE + (65536 if STAMPS else 0)}
    s_mov_b32 s19, 0x20000
    s_mov_b32 s26, 256
    s_mov_b32 s27, 0x20000
    s_mov_b32 s31, 0x20000
    v_cmp_eq_u32 vcc, 0, v0
    v_mov_b32 {v_big}, {BIG}
    v_mov_b32 {v_one}, 1
    v_lshlrev_b32 {v_l16}, 4, {v_lane}
    v_cndmask_b32 {v_flag}, {v_big}, 0, vcc
    ''')

for g in dma_stage(0): S.extend(g)
common_consts(S)
if opt('tlb', 0):
    S(f'''
    v_lshlrev_b32 v140, 20, {v_lane}
    s_mov_b32 s14, {640*3840}
    s_mov_b32 s15, 0x20000
    s_mov_b32 s22, {2048*1280}
    s_mov_b32 s23, 0x20000
    buffer_load_dword v141, v140, {sWS}, 0 offen
    buffer_load_dword v142, v140, {sWB}, 0 offen
    buffer_load_dword v143, v140, {sOUT}, 0 offen
    buffer_load_dword v144, v140, {sX}, 0 offen
    buffer_load_dword v145, v140, {sWA}, 0 offen
    ''')
stamp('iss0')
d1 = dma_stage(1)
PRE = opt('pre', 5)
for g in d1[:PRE]: S.extend(g)
pre = Stream()
for n in range(2, 4): rot(pre, n)
pre(f'''
v_lshrrev_b32 {v_t1}, 4, {v_lane}
v_bfe_u32 {v_t2}, {v_lane}, 2, 2
v_lshl_add_u32 {v_t3}, {v_t1}, 3, {v_t2}
v_lshlrev_b32 {v_t3}, 8, {v_t3}
v_bfe_u32 {v_tmp}, {v_lane}, 2, 3
v_lshl_add_u32 {v_t3}, {v_tmp}, 5, {v_t3}
v_and_b32 {v_tmp}, 3, {v_lane}
v_lshl_add_u32 {v_t3}, {v_tmp}, 3, {v_t3}
s_and_b32 {s_t0}, {s_w}, 1
s_lshr_b32 {s_t1}, {s_w}, 1
s_lshl_b32 {s_t2}, {s_t0}, 7
v_xor_b32 v{VWR}, {s_t2}, {v_t3}
v_xor_b32 v{VWR+1}, 32, v{VWR}
v_xor_b32 v{VWR+2}, 64, v{VWR}
v_xor_b32 v{VWR+3}, 96, v{VWR}
v_and_b32 {v_t2}, 15, {v_lane}
v_bfe_u32 {v_t3}, {v_lane}, 1, 3
v_xor_b32 {v_t3}, {v_t3}, {v_t1}
v_lshlrev_b32 {v_t3}, 4, {v_t3}
v_lshl_add_u32 {v_t3}, {v_t2}, 7, {v_t3}
s_lshl_b32 {s_t2}, {s_t1}, 13
s_add_u32 {s_t2}, {s_t2}, {L_X}
v_add_u32 v{VXR}, {s_t2}, {v_t3}
v_xor_b32 v{VXR+1}, 64, v{VXR}
s_lshl_b32 {s_t2}, {s_rb}, 1
s_add_u32 {s_t2}, {s_t2}, {s_t1}
s_lshl_b32 {s_t2}, {s_t2}, 10
v_and_b32 {v_t3}, 1, {v_t1}
v_lshrrev_b32 {v_t1}, 1, {v_t1}
v_lshl_add_u32 {v_t1}, {v_t3}, 1, {v_t1}
v_lshlrev_b32 {v_t1}, 15, {v_t1}
v_lshl_add_u32 {v_t1}, {v_t2}, 4, {v_t1}
v_add_u32 {v_st}, {s_t2}, {v_t1}
s_lshl_b32 {s_stb}, {s_cb}, 1
s_add_u32 {s_stb}, {s_stb}, {s_t0}
s_lshl_b32 {s_stb}, {s_stb}, 18
s_cmp_lt_u32 {s_cb}, 5
s_cselect_b32 {s_scale}, {f32(QSCALE)}, 1.0
s_cselect_b32 {s_tag}, {'0xfffe0000' if QRND else '-2'}, -1
s_cselect_b32 {s_rnd}, 0x10000, 0
''')
TB = opt('tb', 34); TBH = opt('tbh', 1)
if TB >= 0:
    nl = 20 if TBH else 40
    pre(f'''
    s_mov_b32 s14, {640*3840}
    s_mov_b32 s15, 0x20000
    v_lshrrev_b32 v134, 1, {v_lane}
    v_mul_u32_u24 v134, 3840, v134
    v_and_b32 v135, 1, {v_lane}
    v_lshl_add_u32 v134, v135, 7, v134
    v_cmp_gt_u32 vcc, {nl}, {v_lane}
    s_and_b32 s56, {s_rb}, {15 if TBH else 7}
    s_lshl_b32 s56, s56, 2
    s_add_u32 s56, s56, {s_w}
    v_cndmask_b32 v134, {v_big}, v134, vcc
    s_mul_i32 s56, s56, {nl//2*3840}
    s_lshl_b32 s57, {s_cb}, 8
    s_add_u32 s56, s56, s57
    ''')
    if TBH == 2:
        pre(f'''
        v_lshrrev_b32 v134, 1, {v_lane}
        v_mul_u32_u24 v134, 3840, v134
        v_lshl_add_u32 v134, v135, 7, v134
        s_lshr_b32 s56, {s_t}, 3
        s_lshl_b32 s56, s56, 1
        s_add_u32 s56, s56, {s_t}
        s_bitcmp1_b32 s56, 1
        s_cselect_b32 s58, 0, 40
        v_cmp_gt_u32 vcc, s58, {v_lane}
        s_bfe_u32 s58, s56, 0x10002
        s_lshl_b32 s58, s58, 1
        s_and_b32 s56, s56, 1
        v_cndmask_b32 v134, {v_big}, v134, vcc
        s_add_u32 s56, s56, s58
        s_lshr_b32 s58, {s_rb}, 3
        s_lshl_b32 s58, s58, 2
        s_add_u32 s56, s56, s58
        s_lshl_b32 s56, s56, 2
        s_add_u32 s56, s56, {s_w}
        s_mul_i32 s56, s56, {20*3840}
        s_add_u32 s56, s56, s57
        ''')
    touch = Ins(f'buffer_load_dword v135, v134, {sWB}, s56 offen')
    if TB == 0: pre.l.append(touch)
if opt('wot', 0):
    S.l.insert(2, Ins('s_load_dwordx2 s[56:57], s[0:1], 16')); S.l.insert(2, Ins('s_load_dwordx2 s[58:59], s[0:1], 40'))
    S(f'''
    s_cmp_ge_u32 {s_rb}, 8
    s_cselect_b32 s28, s58, s56
    s_cselect_b32 s29, s59, s57
    s_mov_b32 s30, {640*1280}
    s_and_b32 {s_t0}, {s_rb}, 7
    s_mul_i32 {s_t0}, {s_t0}, 15
    s_add_u32 {s_t0}, {s_t0}, {s_cb}
    s_lshl_b32 {s_t0}, {s_t0}, 2
    s_add_u32 {s_t0}, {s_t0}, {s_w}
    s_mul_i32 {s_t0}, {s_t0}, {14*128}
    v_min_u32 v137, 13, {v_lane}
    v_lshlrev_b32 v137, 7, v137
    buffer_load_dword v136, v137, {sTMP}, {s_t0} offen
    ''')
DSW = opt('dsw', -1)
lds_init = mk(setup_lds)
dsw = [x for x in lds_init if x.kind == 'ds']
pre.l += lds_init if DSW < 0 else [x for x in lds_init if x.kind != 'ds']
npre = len(atomize(pre.l))
for n in range(4, 10): rot(pre, n)
setup2(pre)
pre = atomize(pre.l)
SPLIT = min(npre + opt('split', 40), len(pre))
pre, su_post = pre[:SPLIT], pre[SPLIT:]
if d1[PRE:]: weave(pre, d1[PRE:], opt('pre0', 20), min(len(pre), opt('pre1', 120)))
for g in pre: S.extend(g)
stamp('setup')

CTA = opt('cta', 1)
seq = []
def tilewise(ns, k2):
    ns = list(ns); m = len(ns) - k2
    l = [(n, s_, t, rt) for n in ns for s_ in range(2) for t in (0, 1) for rt in range(4)]
    l += [(n, s_, t, rt) for n in ns[:m] for s_ in range(2) for t in (2, 3) for rt in range(4)]
    for rh in range(2): l += [(n, s_, t, rt) for n in ns[m:] for s_ in range(2) for t in (2, 3) for rt in (2 * rh, 2 * rh + 1)]
    return l
for n in range(20 - CTM):
    if n == 10 - CTA: seq += tilewise(range(n, 10), 0)
    elif 10 - CTA < n < 10: pass
    else: seq += [(n, s_, t, rt) for s_ in range(2) for t in range(4) for rt in range(4)]
seq += tilewise(range(20 - CTM, 20), opt('ct2', 1))
if opt('snake', 1):
    for k in range(0, len(seq), 8):
        if len(set(e[:3] for e in seq[k + 4:k + 8])) == 1: seq[k + 4:k + 8] = seq[k + 4:k + 8][::-1]
NG = len(seq)
def G(name, d): return 2 * opt(name, d)
def xreg(n, s_, rt):
    n %= 10
    return ar(32 * n + 16 * s_ + 4 * rt, 4) if n < 8 else vr(XV + 32 * (n - 8) + 16 * s_ + 4 * rt, 4)
BO = opt('bo', 14)
firstuse = {}; lastuse = {}
for k, e in enumerate(seq): firstuse.setdefault(e[0], k); lastuse[e[0]] = k
BARS = list(range(1, 21 - CTM)) + ([19] if CTM > 2 else [])
def bar_of(n): return max(b for b in [0] + BARS if b <= n)
def bar_gap(n): return firstuse[bar_of(n)] - BO
for n in range(4, 20):
    prev = [m for m in range(n) if WSLOT[m] == WSLOT[n] or (m < 10 and WSLOT[n] == 4 + m % 4)]
    assert WISS[n] in BARS and lastuse[prev[-1]] < bar_gap(WISS[n]), n
frag = []; fidx = []
for k, e in enumerate(seq):
    if k == 0 or seq[k - 1][:3] != e[:3]: frag.append([e[:3], k, k])
    frag[-1][2] = k; fidx.append(len(frag) - 1)
reads = []; xreads = []; xseen = set(); first_reads = []
LEAD = opt('lead', 4)
for j, ((n, s_, t), u0, u1) in enumerate(frag):
    lo = max(frag[j - 4][2] if j >= 4 else -1, bar_gap(n))
    sl_ = WSLOT[n]; buf = WRING + 4 * (j & 3)
    l = [Ins(f'ds_read_b64_tr_b16 {vr(buf+2*u,2)}, v{VWX[t] if sl_ >= 4 else VWR+t} offset:{(sl_%4)*16384+(32*s_+4*u)*256}') for u in range(2)]
    if n < 10 and (n, s_) not in xseen:
        xseen.add((n, s_))
        xl = [Ins(f'ds_read_b128 {xreg(n,s_,rt)}, v{VXR+s_} offset:{(n%4)*16384+rt*2048}') for rt in range(4)]
        if j == 0: first_reads += xl
        else: xreads += [Item(x, max(bar_gap(n), u0 - 22 + 2 * i), u0 - LEAD - 3 + i) for i, x in enumerate(xl)]
    if j < 2: first_reads += l
    elif opt('oneds', 1): reads += [Item(x, lo, max(lo, u0 - LEAD - 1 + i)) for i, x in enumerate(l)]
    else: reads.append(Item(l, lo, max(lo, u0 - LEAD)))
mf = []
for k, (n, s_, t, rt) in enumerate(seq):
    acc = vr(ACC[n // 10] + 8 * (4 * (t >> 1) + rt) + 4 * (t & 1), 4)
    mf.append(Ins(f'v_mfma_f32_16x16x32_bf16 {acc}, {vr(WRING+4*(fidx[k]&3),4)}, {xreg(n,s_,rt)}, {"0" if n % 10 == 0 and s_ == 0 else acc}'))
done = {}
for k, (n, s_, t, rt) in enumerate(seq): done[(n // 10, 2 * (t >> 1) + (rt >> 1))] = k
def epi1_tile(p, T):
    g = []
    if T % 2 == 0: g.append(L(f's_add_u32 {s_e0}, {s_stb}, {QKV[p]+2*T*GRP}'))
    for u in range(2):
        b = ACC[p] + 16 * T + 8 * u
        for i in range(8): g.append(L(f'v_mul_f32 v{b+i}, {s_scale}, v{b+i}'))
        for i in range(4): g.append(L(f'v_cvt_pk_bf16_f32 v{b+i}, v{b+2*i}, v{b+2*i+1}'))
        for i in (0, 2): g.append(L(f'v_and_b32 v{b+i}, {s_tag}, v{b+i}'))
    for u in range(2):
        b = ACC[p] + 16 * T + 8 * u
        for i in (1, 0): g.append(L(f'v_permlane16_swap_b32 v{b+i}, v{b+2+i}'))
        st = Stream(); tok = st.vm(f'buffer_store_dwordx4 {vr(b,4)}, {v_st}, {sWS}, {s_e0} offen offset:{256*(2*(T&1)+u)} sc1')
        g.append(st.l)
    return g, tok
assert not QRND
COST['vm'] = 2
cap = [2 - (1 if k + 1 < NG and fidx[k + 1] != fidx[k] else 0) for k in range(NG)]
fixed = {}
FLAGA = opt('flagA', 13)
for n in BARS:
    fixed[bar_gap(n)] = [('BAR', n)]; cap[bar_gap(n)] -= 2 + (2 if n == FLAGA else 0)
dmas = []
def split_salu(l):
    out = []
    for g in l:
        if len(g) > 1 and g[0].kind == 'vm': out += [g[:1], g[1:]]
        else: out.append(g)
    return out
for b in range(0, 17):
    l = split_salu([g for n in range(2, 20) if WISS[n] == b for g in dma_stage(n)])
    if l:
        lo = max(bar_gap(b), 0)
        dmas += paced(l, lo, lo + (G('dsp', 14) if len(l) > 5 else 14), 5)
KV0 = G('kv0', 262); KV1 = G('kv1', 290); KVB = G('kvb', 312)
assert KV0 > bar_gap(16) + 20
kv, tokKV = kvq_loads()
dmas += [Item(mk(poll_check, v_pres, v_p1, sWS, s_F1A) + [('ST', 'pc1')], KV0 - 1, KV0 - 1)] + paced(kv, KV0, KV1, 4)
epi = []
EA1 = G('epiAend', 180); EA0 = done[(0, 0)] + 4
for T in range(4):
    g, tokA = epi1_tile(0, T)
    lo = done[(0, T)] + 4
    it = asap(g, lo, lo + 1)
    for i, x in enumerate(it): x.hi = max(lo, EA0 + (len(g) * T + i) * (EA1 - EA0) // (4 * len(g))) + 2
    epi += it
for T in range(3):
    g, tokB = epi1_tile(1, T)
    lo = done[(1, T)] + 4
    it = asap(g, lo, lo + 1)
    e0 = done[(1, 0)] + 4; e1 = done[(1, 2)] + 4
    for i, x in enumerate(it): x.hi = max(lo, e0 + (len(g) * T + i) * (e1 - e0) // (2 * len(g))) + 1 if T < 2 else NG
    epi += it
NA = opt('na', 20); NWO1 = max(NA, opt('nwo1', 0)); WT = 0
misc = []
TL = opt('tl', 0)
if TL:
    tl_ = L(f'''
    v_lshlrev_b32 v140, 21, {v_lane}
    buffer_load_dword v141, v140, {sWS}, 0 offen
    buffer_load_dword v143, v140, {sOUT}, 0 offen
    ''')
    if TL < TB: misc += paced(tl_, 2 * TL, 2 * TL + 6, 3)
if TB > 0: misc.append(Item(touch, 2 * TB, 2 * TB + 4))
if TL and TL >= TB: misc += paced(tl_, 2 * TL, 2 * TL + 6, 3)
SU1 = G('su1', 44); SU0 = G('su0', 0); assert SU0 == 0 or opt('split', 40) >= 24
sus = asap(su_post, SU0, SU1) if su_post else []
misc += [Item(mk(poll_issue, v_pres, v_zero, sDBG, '0'), max(SU1 + 5, 220), max(SU1 + 9, 224)), Item(mk(poll_check, v_pres, v_zero, sDBG, '0'), 284, 290)]
misc += paced(setup_late(), 290, 298, 6)
misc += paced([Ins(f'v_add_u32 v{VWX[t]}, {L_X}, v{VWR+t}') for t in range(4)], 300, 308, 6)
P1I = KV0 - G('p1d', 20)
wl = []
if NA:
    WO0 = bar_gap(FLAGA) + 2
    misc += [Item(mk(poll_issue, v_pres, v_p2, sWS, s_F1A), G('p2i', 184), G('p2i', 184) + 4), Item(mk(poll_check, v_pres, v_p2, sWS, s_F1A), WO0 - 1, WO0 - 1)]
    wl = paced(wo_loads(0, NA), WO0, G('wo1', 290), 5)
misc += [x for x in wl if x.lo < P1I] + [Item(mk(poll_issue, v_pres, v_p1, sWS, s_F1A), P1I, P1I + 4)] + [x for x in wl if x.lo >= P1I]
if NWO1 > NA: misc += paced(wo_loads(NA, NWO1), KV1, NG - 4, 4)
misc2 = (paced(dsw, 2 * DSW, 2 * DSW + G('dswn', 3), 0) if DSW >= 0 else []) + paced(mask_far(), 460, 490, 8) + paced(zero_pads(), lastuse[17] + 1, lastuse[17] + 12, 4)
st = Stream(); st.wait(tokKV); st('s_barrier'); fixed[KVB] = st.l + [('ST', 'kvb')]; cap[KVB] -= 2
misc2 += paced(att_pre(), KVB, NG - 4, 2)
rep_ = []
gaps, over = schedule(NG, cap, [reads, xreads, dmas, epi, misc, misc2, sus], rep_, opt('oneds', 1))
if '--sched' in ARGS:
    for n in range(20): print(n, ' '.join('%2d' % x for x in rep_[32 * n:32 * n + 32]))
last_def = {}; last_use = {}
for k, m in enumerate(mf):
    for r in m.defs: last_def[r] = k
    for r in m.srcab: last_use[r] = k
lastx = max(k for k, g in enumerate(gaps) for it in g if not isinstance(it, tuple) and it.mn == 'ds_read_b128' and it.uses & {'v14', 'v15'})
assert lastx < 300
for k, g in enumerate(gaps):
    for it in g:
        if isinstance(it, tuple): continue
        if it.kind in ('valu', 'vm') or (it.kind == 'ds' and k > 400):
            for r in it.uses | it.defs: assert last_def.get(r, -1) <= k or k < 200, (k, it.text)
            if 'tr_b16 v' not in it.text:
                for r in it.defs: assert last_use.get(r, -1) <= k, (k, it.text)

S.wait(dma_tok[0])
if opt('waitall', 0): S('s_waitcnt vmcnt(0)')
S('s_barrier')
stamp('first')
S.l += first_reads
for k in range(NG):
    if k == 0 or fidx[k - 1] != fidx[k]: S.use(set().union(*[mf[j].srcab for j in range(k, frag[fidx[k]][2] + 1)]))
    S.l.append(mf[k])
    if opt('slow', 0) and G('slow0', 0) <= k < G('slow1', 160): S('s_nop %d' % opt('slow', 0))
    for it in fixed.get(k, []) + mem_first(gaps[k]):
        if isinstance(it, tuple) and it[0] == 'ST':
            if FINE: stamp(it[1])
        elif isinstance(it, tuple):
            n2 = it[1]
            tk = [dma_tok[m] for m in range(20) if bar_of(m) == n2]
            if n2 == FLAGA: tk.append(tokA)
            S.wait(*tk)
            S('s_barrier')
            if n2 == FLAGA: set_flag(S, v_flag, s_f1, 0)
            if FINE or '--clk' in ARGS or n2 in (10, 14, 16): stamp('b%d' % n2)
        else:
            S.l.append(it)
stamp('p1end')
S(qka(0)); S(qkb(0))
mrest = mask_rest()
S.l += mrest[:8]
g, tokB = epi1_tile(1, 3)
for x in g: S.l += x
S('L_join:')
stamp('join')
nst_join = nstamp[0] - 1

N = len(steps)
groups = []
for n in range(N):
    for g in range(4):
        st = Stream()
        if g == 0 and n + 1 < N: st(qka(n + 1))
        if g == 1 and n > 0: st(pv(n - 1, 1))
        if g == 2 and n + 1 < N: st(qkb(n + 1))
        if g == 3: st(pv(n, 0))
        if g > 0 or n > 0:
            for x in cvts((g - 1) & 3): st(x)
        for x in exps(n, g): st(x)
        groups.append(st.l)
first = {}
for n, (j, q) in enumerate(steps): first.setdefault(j, n)
last = {j: n for n, (j, q) in enumerate(steps)}
for j in range(1, 10):
    base = 4 * (last[j-2] + 1) + 1 if j >= 2 else 0
    for kk in range(2):
        for u in range(2): groups[base + kk].append(v_read(j, kk, u))
    if j + 1 < 10:
        groups[base + 3].append(k0_read(j + 1))
        if (j + 1) % 2 == 0: groups[base + 3].append(k1_read(j + 1))
    need = set(x for kk in range(2) for u in range(2) for x in v_read(j, kk, u).defs)
    if j + 1 < 10: need |= k0_read(j + 1).defs | (k1_read(j + 1).defs if (j + 1) % 2 == 0 else set())
    st = Stream(); st.use(need); groups[4 * first[j] + 3][0:0] = st.l
weave(groups, mrest[8:], 4, 36)
FB = opt('fb', 4)
st = Stream(); st.wait(tokB); st('s_barrier'); set_flag(st, v_flag, s_f1, 0); groups[4 * FB - 1] += st.l
groups[0] += L(f's_add_u32 {s_f1}, {s_f1}, 32768')
P3S = opt('p3s', 11); P3D = opt('p3d', 2)
NWO2 = opt('nwo2', 44)
NWOM = min(NWO2, opt('nwom', 44))
if NWOM > NWO1: weave(groups, wo_loads(NWO1, NWOM), opt('wo0g', 1), 4 * (P3S - P3D) - 1)
if NWO2 > NWOM: weave(groups, wo_loads(NWOM, NWO2), 4 * P3S + opt('bln', 12), 72)
groups[4 * (P3S - P3D) - 1] += mk(poll_issue, v_pres, v_p3, sWS, s_F1B)
groups[4 * P3S - 2] += L(f'''
s_add_u32 s60, {s_bF}, {QKV[1]}
s_add_u32 s61, {s_bS}, {QKV[1]}
s_add_u32 s62, {s_bF}, {QKV[1] + 80*GRP - 512}
s_add_u32 s63, {s_bS}, {QKV[1] + 80*GRP - 512}
''')
groups[4 * P3S - 3] += L(f'''
s_add_u32 s64, {s_bF}, {QKV[1] + 160*GRP}
s_add_u32 s65, {s_bF}, {QKV[1] + 161*GRP - 1088}
s_add_u32 s66, {s_bS}, {QKV[1] + 160*GRP - 2176}
s_mov_b32 m0, {s_mV}
''')
groups[4 * P3S - 1] += mk(poll_check, v_pres, v_p3, sWS, s_F1B)
bl = L(f'''
buffer_load_dword {v_g[0]}, {v_gad}, {sWS}, {s_gb} offen sc1
buffer_load_dword {v_g[1]}, {v_gad}, {sWS}, {s_gb} offen offset:128 sc1
buffer_load_dwordx4 {vr(QB0,4)}, {v_q4}, {sWS}, s60 offen sc1
buffer_load_dwordx4 {vr(KB0,4)}, {v_kb0}, {sWS}, s62 offen sc1
buffer_load_dwordx2 {vr(QB1,2)}, {v_qe}, {sWS}, s61 offen sc1
buffer_load_dwordx2 {vr(QB1+2,2)}, {v_qo}, {sWS}, s61 offen sc1
buffer_load_dwordx2 {ar(AKB1,2)}, {v_kb1}, {sWS}, s63 offen sc1
buffer_load_dwordx4 {vr(KB0+4,4)}, {v_q4}, {sWS}, s62 offen offset:512 sc1
buffer_load_dwordx4 {vr(QB0+4,4)}, {v_q4}, {sWS}, s60 offen offset:512 sc1
buffer_load_dwordx2 {vr(QB1+4,2)}, {v_qo}, {sWS}, s61 offen offset:512 sc1
buffer_load_dwordx4 {vr(KB0+8,4)}, {v_q4}, {sWS}, s62 offen offset:1024 sc1
buffer_load_dwordx2 {ar(AKB1+4,2)}, {v_qo}, {sWS}, s63 offen offset:1024 sc1
buffer_load_dwordx4 {v_l16}, {sWS}, s64 offen sc1 lds
buffer_load_dwordx4 {v_l16}, {sWS}, s65 offen offset:1088 sc1 lds
buffer_load_dwordx4 {v_l16}, {sWS}, s66 offen offset:2176 sc1 lds
''')
st = Stream(); st(f's_add_u32 m0, {s_mV}, 3264\nv_mov_b32 v{QB1+6}, 0\nv_mov_b32 v{QB1+7}, 0')
tokVB = st.vm(f'buffer_load_dwordx4 {v_halo}, {sWS}, 0 offen sc1 lds'); bl.append(st.l)
weave(groups, bl, 4 * P3S, 4 * P3S + opt('bln', 12))
for k, g in enumerate(groups):
    S.l += mem_first(g)
    if FINE and k % 8 == 7: stamp('a%d' % (k // 4))
for x in cvts(3): S(x)
S('s_nop 1')
S(pv(N - 1, 1))
stamp('attA')
S(f'''
s_lshl_b32 {s_t0}, {s_R}, 10
s_mul_i32 {s_t1}, {s_w}, {20*GRP}
s_add_u32 s{SX0}, {s_t0}, {s_t1}
s_mov_b32 {s_tag}, 0xfffe0000
''')
for s_ in range(1, 5): S(f's_add_u32 s{SX0+s_}, s{SX0}, {4*s_*GRP}')
for s_ in range(2): S(f's_add_u32 s{SX0+5+s_}, s{SX0}, {QKV[1] + 4*s_*GRP}')
S(f'''
s_mov_b32 {s_t1}, {hex(64 << 23)}
v_subrev_u32 {v_t1}, {hex(95 << 23)}, v{OA[0]+12}
v_subrev_u32 {v_t2}, {hex(95 << 23)}, v{OA[1]+12}
v_max_u32 {v_t1}, {v_t1}, {v_t2}
v_cmp_le_u32 vcc, {s_t1}, {v_t1}
s_cbranch_vccnz L_truemax
L_Aok:
''')
FBK = Stream()
FBK('@reset')
FBK(f'''
L_truemax:
s_lshr_b32 {s_t1}, {s_q0}, 5
s_sub_u32 {s_t1}, 8, {s_t1}
s_nop 7
''')
def fb_qk(j, q):
    c = vr(M_FAR, 16) if j == q else vr(M_DIAG, 16) if j == 8 + q else '0'
    FBK(f'''
    ds_read_b128 {ar(AK0,4)}, {v_k0} offset:{512*j}
    ds_read_b64 {ar(AK1,2)}, {v_k1} offset:{512*(j & ~1)}
    {mm} {vr(SB[0],16)}, {ar(AK0,4)}, {vr(QA0+4*q,4)}, {c}
    {mm} {vr(SB[0],16)}, {ar(AK1,4)}, {vr(QA1+4*q+2*(j&1),4)}, {vr(SB[0],16)}
    ''')
for q in range(2):
    FBK(f'v_mov_b32 {v_t3}, {NEGINF}')
    for i in range(16): FBK(f'v_mov_b32 v{OA[q]+i}, 0')
    for ps in range(2):
        for j in range(q, q + 9):
            l = lab('skip')
            FBK(f's_cmp_gt_i32 {s_t1}, {j}\ns_cbranch_scc1 {l}')
            if ps == 1:
                for kk in range(2):
                    for u in range(2): FBK(f'ds_read_b64_tr_b16 {ar(AV+4*kk+2*u,2)}, {v_v} offset:{512*j+256*kk+128*u}')
            fb_qk(j, q)
            if ps == 0:
                for i in range(0, 16, 2): FBK(f'v_max3_f32 {v_t3}, {v_t3}, v{SB[0]+i}, v{SB[0]+i+1}')
            else:
                for i in range(16): FBK(f'v_sub_f32 v{SB[0]+i}, v{SB[0]+i}, {v_t3}')
                for i in range(16): FBK(f'v_exp_f32 v{SB[0]+i}, v{SB[0]+i}')
                for i in range(8): FBK(f'v_cvt_pk_bf16_f32 v{P0+i}, v{SB[0]+2*i}, v{SB[0]+2*i+1}')
                for kk in range(2): FBK(f'{mm} {vr(OA[q],16)}, {ar(AV+4*kk,4)}, {vr(P0+4*kk,4)}, {vr(OA[q],16)}')
                FBK('s_nop 7')
            FBK(l + ':')
        if ps == 0:
            FBK(f'''
            s_nop 1
            v_mov_b32 {v_t4}, {v_t3}
            v_permlane32_swap_b32 {v_t3}, {v_t4}
            v_max_f32 {v_t3}, {v_t3}, {v_t4}
            ''')
FBK('s_nop 15\ns_branch L_Aok')

OSC = '' if opt('local', 0) else ' sc1'
def epi2(br, q, o, pk=False):
    st = Stream()
    st(f'v_rcp_f32 {v_t1}, v{o+12}')
    if br: st(f'v_sub_f32 {v_g[q]}, 1.0, {v_g[q]}')
    st(f'v_mul_f32 {v_t1}, {v_g[q]}, {v_t1}')
    if pk:
        for i in range(0, 12, 2): st(f'v_pk_mul_f32 {vr(o+i,2)}, {vr(o+i,2)}, {vr(22,2)} op_sel_hi:[1,0]')
    else:
        for i in range(12): st(f'v_mul_f32 v{o+i}, {v_t1}, v{o+i}')
    for i in (0, 4, 8): st(f'v_and_or_b32 v{o+i}, v{o+i}, {s_tag}, {v_o4}')
    for i in range(6): st(f'v_cvt_pk_bf16_f32 v{o+i}, v{o+2*i}, v{o+2*i+1}')
    st(f'buffer_store_dwordx4 {vr(o,4)}, {v_q4}, {sWS}, {"s60" if br else s_bF} offen offset:{512*q} sc1')
    tok = st.vm(f'buffer_store_dwordx2 {vr(o+4,2)}, {v_qe}, {sWS}, {"s61" if br else s_bS} offen offset:{512*q} sc1')
    return st.l, tok
qkB = [[Ins(x)] for x in (
    f'{mm} {vr(SP[0],16)}, {vr(KB0,4)}, {vr(QB0,4)}, {vr(MB_PREV0,16)}',
    f'{mm} {vr(SP[0],16)}, {ar(AKB1,4)}, {vr(QB1,4)}, {vr(SP[0],16)}',
    f'{mm} {vr(SD[0],16)}, {vr(KB0+4,4)}, {vr(QB0,4)}, {vr(MB_DIAG,16)}',
    f'{mm} {vr(SD[0],16)}, {ar(AKB1,4)}, {vr(QB1+2,4)}, {vr(SD[0],16)}',
    f'{mm} {vr(SP[1],16)}, {vr(KB0+4,4)}, {vr(QB0+4,4)}, {vr(MB_PREV,16)}',
    f'{mm} {vr(SP[1],16)}, {ar(AKB1,4)}, {vr(QB1+4,4)}, {vr(SP[1],16)}',
    f'{mm} {vr(SD[1],16)}, {vr(KB0+8,4)}, {vr(QB0+4,4)}, {vr(MB_DIAG,16)}',
    f'{mm} {vr(SD[1],16)}, {ar(AKB1+4,4)}, {vr(QB1+4,4)}, {vr(SD[1],16)}')]
st = Stream(); st.wait(tokVB)
for u in range(2): st(f'ds_read_b64_tr_b16 {ar(VB+2*u,2)}, {v_vh} offset:{128*u}')
for t in range(2):
    for kk in range(2):
        for u in range(2): st(f'ds_read_b64_tr_b16 {ar(VB+4+8*t+4*kk+2*u,2)}, {v_vb} offset:{512*t+256*kk+128*u}')
vbr = st.l
e0, _ = epi2(0, 0, OA[0], True); e1, tokOA = epi2(0, 1, OA[1], True)
S.l += e0 + e1
st2('epiA')
adr = Stream()
adr(f'''
v_lshrrev_b32 v14, 4, {v_lane}
v_and_b32 v15, 15, {v_lane}
v_lshlrev_b32 v5, 15, v14
v_lshl_add_u32 v5, v15, 4, v5
''')
for rho in range(4):
    adr(f'''
    s_add_u32 {s_t0}, {s_w}, {rho}
    s_and_b32 {s_t0}, {s_t0}, 3
    s_lshl_b32 s{56+rho}, {s_t0}, 8
    v_add_u32 v{V4+rho}, s{56+rho}, v5
    ''')
adr2 = Stream()
for rho in range(4):
    adr2(f's_mul_i32 {s_t1}, s{56+rho}, 60')
    if rho: adr2(f's_add_u32 {s_t1}, {s_t1}, {(rho-1)*5120}\nv_add_u32 v{VRW+rho-1}, {s_t1}, {v_l16}')
    else: adr2(f'v_add_u32 {v_rr}, {s_t1}, {v_l16}')
adr2(f'''
v_mul_u32_u24 v15, 1280, v15
v_mad_u32_u24 v15, v14, 40, v15
s_lshl_b32 {s_t0}, {s_R}, 2
s_add_u32 {s_t0}, {s_t0}, {s_w}
s_mul_i32 {s_t0}, {s_t0}, {16*1280}
s_mul_i32 {s_t1}, {s_C}, 160
s_add_u32 {s_t0}, {s_t0}, {s_t1}
v_add_u32 {v_out}, {s_t0}, v15
''')
for s_ in range(2, 5): adr2(f's_add_u32 s{SX0+5+s_}, s{SX0}, {QKV[1] + 4*s_*GRP}')
weave(qkB, vbr, 2, 6)
NWOB = max(NWO2, opt('nwob', 44))
if NWOB > NWO2: weave(qkB, wo_loads(NWO2, NWOB), 0, 6)
weave(qkB, adr.l, 0, 8)
for g in qkB[:6]: S.l += g
st2('qkB')
def softB(q):
    st = Stream()
    b = SP[q] + 8
    assert SD[q] == SP[q] + 16
    st(f'v_max3_f32 {v_t3}, v{b}, v{b+1}, v{b+2}')
    st(f'v_max3_f32 {v_t4}, v{b+3}, v{b+4}, v{b+5}')
    for i in range(6, 22, 4):
        st(f'v_max3_f32 {v_t3}, {v_t3}, v{b+i}, v{b+i+1}')
        st(f'v_max3_f32 {v_t4}, {v_t4}, v{b+i+2}, v{b+i+3}')
    st(f'v_max3_f32 {v_t3}, {v_t3}, v{b+22}, v{b+23}')
    st(f'v_max_f32 {v_t3}, {v_t3}, {v_t4}')
    st(f'v_mov_b32 {v_t4}, {v_t3}')
    st(f'v_permlane32_swap_b32 {v_t3}, {v_t4}')
    st(f'v_max_f32 {v_t3}, {v_t3}, {v_t4}')
    for i in range(0, 24, 2): st(f'v_pk_add_f32 {vr(b+i,2)}, {vr(b+i,2)}, {vr(24,2)} op_sel_hi:[1,0] neg_lo:[0,1] neg_hi:[0,1]')
    vop = [VB if q == 0 else VB + 8, VB + 4 + 8 * q, VB + 8 + 8 * q]
    for c in range(3):
        for i in range(8): st(f'v_exp_f32 v{b+8*c+i}, v{b+8*c+i}')
        if c: st(f'{mm} {vr(OB[q],16)}, {ar(vop[c-1],4)}, {vr(b+8*(c-1),4)}, {"0" if c == 1 else vr(OB[q],16)}')
        for i in range(4): st(f'v_cvt_pk_bf16_f32 v{b+8*c+i}, v{b+8*c+2*i}, v{b+8*c+2*i+1}')
    return st.l, Ins(f'{mm} {vr(OB[q],16)}, {ar(vop[2],4)}, {vr(b+16,4)}, {vr(OB[q],16)}')
l0, m0_ = softB(0); l1, m1_ = softB(1)
lb = l0[:5] + qkB[6] + l0[5:10] + qkB[7] + l0[10:] + l1[:2] + [m0_] + l1[2:]
def o_load(br, s_, rho):
    b = OF[br][s_] + 4 * rho
    return L(f'buffer_load_dwordx4 {vr(b,4)}, v{V4+rho}, {sWS}, s{SX0+5*br+s_} offen sc1')
order = (1, 2, 3, 0)
ogrp = [[(0, s_, rho) for rho in range(4)] for s_ in range(5)] + [[(1, s_, rho) for s_ in range(5)] for rho in order]
ol = [x for g in ogrp for e in g for x in o_load(*e)]
e0, _ = epi2(1, 0, OB[0]); e1, tokOB = epi2(1, 1, OB[1], True)
lb += e0[:2] + [m1_] + e0[2:] + e1
NO0 = opt('no0', 8); NOE = opt('noe', 4); OE = opt('oe', 1)
if NOE:
    k_ = [i for i, x in enumerate(lb) if x.kind == 'mfma'][-OE]
    lb[k_ + 1:k_ + 1] = ol[:NOE]
BST = opt('bst', 1)
bst = []
if BST:
    bst = [x for x in lb if x.kind == 'vm' and 'store' in x.mn]
    lb = [x for x in lb if x not in bst]
    if BST > 1:
        lb += L(f'v_mov_b32 v6, {v_q4}\nv_mov_b32 v7, {v_qe}')
        bst = [Ins(x.text.replace(v_q4 + ',', 'v6,').replace(v_qe + ',', 'v7,')) for x in bst]
S.l += lb
stamp('epiB')
S.l += ol[NOE:NO0]
if BST == 1: S.l += bst
S.l += adr2.l
NWO4 = max(NWOB, opt('nwo4', 44))
for g in wo_loads(NWOB, NWO4): S.l += g
st2('oiss')

def o_check(i):
    regs = [OF[br][s_] + 4 * rho + j for br, s_, rho in ogrp[i] for j in (0, 2)]
    def tree():
        st = Stream()
        for k in range(0, len(regs), 2): st(f'v_bitop3_b32 v1, {"v1" if k else "1"}, v{regs[k]}, v{regs[k+1]} bitop3:0x80')
        st('v_cmp_eq_u32 vcc, 0, v1')
        return st.l
    l = lab('again'); b = lab('fresh')
    tail('@reset')
    tail(f'{l}:\ns_mov_b32 {s_cnt}, 0\n{l}_a:')
    for e in ogrp[i]: tail.l += o_load(*e)
    tail(f's_add_u32 {s_cnt}, {s_cnt}, 1')
    if STAMPS: tail(f'v_writelane_b32 v0, {s_cnt}, {60 + (i >= 5)}')
    tail('s_waitcnt vmcnt(0)')
    tail.l += tree()
    tail(f's_cbranch_vccz {b}\ns_cmp_lt_u32 {s_cnt}, 0x40000\ns_cbranch_scc1 {l}_a\ns_branch {b}')
    t = tree()
    return t[:-1] + [t[-1:] + L(f's_cbranch_vccnz {l}\n{b}:')]
def mf3(br, s_, rho, ct):
    acc = vr(AC3 + 20 * rho + 4 * ct, 4)
    return [Ins(f'v_mfma_f32_16x16x32_bf16 {acc}, {ar(100*br+20*s_+4*ct,4)}, {vr(OF[br][s_]+4*rho,4)}, {"0" if br == 0 and s_ == 0 else acc}')]
sl = [mf3(*e, ct) for g in ogrp for e in g for ct in range(5)]
PB0 = opt('pb0', 36); PB1 = opt('pb1', 55)
if NO0 < 20: weave(sl, ol[NO0:20], 0, PB0)
if BST > 1: weave(sl, bst, BST, BST + 8)
if NWO4 < 50:
    S(f'v_mov_b32 v15, {v_l16}')
    weave(sl, wo_loads(NWO4, 50, 'v15'), PB0, PB1)
weave(sl, ol[20:], PB1, opt('no1', 140))
for it in o_check(0): S.l += it if isinstance(it, list) else [it]
stamp('poll4')
gstart = [20 * i for i in range(5)] + [100 + 25 * i for i in range(4)]
for i in range(1, 9): weave(sl, o_check(i), gstart[i] - opt('chk', 6), gstart[i])
for k, g in enumerate(sl):
    for it in g[1:]:
        if it.kind == 'vm': assert not any(it.defs & x.uses for j in range(k + 1) for x in sl[j] if x.kind != 'vm'), it.text
for i, rho in enumerate((1, 2, 3)):
    wr = [Ins(f'ds_write_b128 v{VRW+rho-1}, {vr(AC3+20*rho+4*ct,4)} offset:{1024*ct}') for ct in range(5)]
    lo = 125 + 25 * i + 3
    weave(sl, wr, lo, lo + (15 if i < 2 else 5))
sl[189] += L('s_waitcnt lgkmcnt(0)\ns_barrier')
rd = [Ins(f'ds_read_b128 {vr(RED+20*k+4*ct,4)}, {v_rr} offset:{5120*k+1024*ct}') for ct in range(5) for k in range(3)]
weave(sl, rd, 190, 200)
for k, g in enumerate(sl):
    S.l += mem_first(g)
    if k == 99: stamp('mf3A')
    elif k in (0, 19, 39, 59, 79, 124, 149, 174, 188, 189): st2('m%d' % k)
stamp('mf3')
for i in range(0, 20, 2):
    S(f'v_pk_add_f32 {vr(RED+i,2)}, {vr(RED+i,2)}, {vr(RED+20+i,2)}')
    S(f'v_pk_add_f32 {vr(AC3+i,2)}, {vr(AC3+i,2)}, {vr(RED+40+i,2)}')
for i in range(0, 20, 2):
    S(f'v_pk_add_f32 {vr(AC3+i,2)}, {vr(AC3+i,2)}, {vr(RED+i,2)}')
for i in range(10):
    S(f'v_cvt_pk_bf16_f32 v{AC3+i}, v{AC3+2*i}, v{AC3+2*i+1}')
S(f'''
buffer_store_dwordx4 {vr(AC3,4)}, {v_out}, {sOUT}, 0 offen
buffer_store_dwordx4 {vr(AC3+4,4)}, {v_out}, {sOUT}, 0 offen offset:16
buffer_store_dwordx2 {vr(AC3+8,2)}, {v_out}, {sOUT}, 0 offen offset:32
''')
if AMP:
    S('s_waitcnt vmcnt(0)')
    stamp('end')
    S(f'''
    s_cmp_lg_u32 s2, {opt('ampwg', 9)}
    s_cbranch_scc1 L_end
    s_memrealtime s[84:85]
    s_waitcnt lgkmcnt(0)
    s_sub_u32 s80, s82, s80
    s_lshl_b32 s80, s80, 2
    s_min_u32 s80, s80, 100000
    {('s_mov_b32 s80, %d' % opt('ampc', 0)) if opt('ampc', 0) else ''}
    L_amp:
    s_memrealtime s[86:87]
    s_waitcnt lgkmcnt(0)
    s_sub_u32 s86, s86, s84
    s_cmp_lt_u32 s86, s80
    s_cbranch_scc1 L_amp
    ''')
if STAMPS:
    stamp('red')
    S('s_waitcnt vmcnt(0)')
    stamp('end')
    S(f'''
    s_waitcnt lgkmcnt(0)
    s_cmp_lg_u32 {s_w}, 0
    s_cbranch_scc1 L_end
    v_writelane_b32 v0, s{ST0+2*((nstamp[0]-1)&1)}, {nstamp[0]-1}
    s_lshl_b32 {s_t0}, s2, 8
    s_add_u32 {s_t0}, {s_t0}, {STAMP_OFF}
    v_mbcnt_lo_u32_b32 v3, -1, 0
    v_mbcnt_hi_u32_b32 v3, -1, v3
    v_lshlrev_b32 v3, 2, v3
    buffer_store_dword v0, v3, {sWS}, {s_t0} offen
    ''')
    assert nstamp[0] <= 56, nstamp[0]
    open(OUT + '.stamps', 'w').write(' '.join(n or str(i) for i, n in enumerate(stamp_names)))
S('s_endpgm')

T = Stream()
nstamp[0] = 1
T('@reset')
T(f'''
L_spare:
s_waitcnt lgkmcnt(0)
s_load_dwordx2 s[56:57], s[0:1], 16
s_load_dwordx2 s[58:59], s[0:1], 40
s_load_dwordx2 s[8:9], s[0:1], 48
s_mov_b32 s30, {640*1280}
s_mov_b32 s10, 1280
''')
common_consts(T)
T(f'''
v_mov_b32 v64, 0
v_mov_b32 v65, 0
v_mov_b32 v66, 0
v_mov_b32 v67, 0
v_lshlrev_b32 {v_t1}, 4, v0
s_lshl_b32 {s_t2}, {s_rb}, 12
s_add_u32 {s_t2}, {s_t2}, {FLG}
''')
tokz = T.vm(f'buffer_store_dwordx4 v[64:67], {v_t1}, {sWS}, {s_t2} offen sc1')
def handshake():
    T.wait(tokz)
    T(f'''
    s_barrier
    s_lshl_b32 {s_t1}, {s_rb}, 2
    buffer_store_dword {v_one}, {v_flag}, {sDBG}, {s_t1} offen sc1
    ''')
STB = opt('stb', 0)
if STB:
    T(f'''
    s_mov_b32 s14, {640*3840}
    s_mov_b32 s15, 0x20000
    s_lshl_b32 {s_t0}, {s_rb}, 2
    s_add_u32 {s_t0}, {s_t0}, {s_w}
    s_mul_i32 {s_t0}, {s_t0}, {300*128}
    v_min_u32 {v_t1}, 59, {v_lane}
    v_lshlrev_b32 {v_t1}, 7, {v_t1}
    ''')
    for i in range(5):
        T(f'buffer_load_dword v{68+i}, {v_t1}, {sWB}, {s_t0} offen\ns_add_u32 {s_t0}, {s_t0}, {60*128}')
        if i == 2: handshake()
T(f'''
s_and_b32 {s_e0}, {s_rb}, 1
s_lshl_b32 {s_e0}, {s_e0}, 2
s_add_u32 {s_e0}, {s_e0}, {s_w}
s_bfe_u32 {s_e1}, {s_rb}, 0x20001
s_mul_i32 {s_t2}, {s_e0}, 160
s_mul_i32 {s_t1}, {s_e1}, {160*1280}
s_add_u32 {s_t2}, {s_t2}, {s_t1}
s_mov_b32 {s_t0}, {(1<<32)//10+1}
''')
for i in range(5):
    T(f'''
    v_add_u32 {v_t1}, {64*i}, {v_lane}
    v_mul_hi_u32 {v_t2}, {v_t1}, {s_t0}
    v_mul_u32_u24 {v_t3}, 10, {v_t2}
    v_sub_u32 {v_t1}, {v_t1}, {v_t3}
    v_mul_u32_u24 {v_t2}, 1280, {v_t2}
    v_lshl_add_u32 {v_t2}, {v_t1}, 4, {v_t2}
    v_add_u32 v{2+i}, {s_t2}, {v_t2}
    ''')
T(f'''
s_mul_i32 {s_mW}, {s_w}, 25600
s_waitcnt lgkmcnt(0)
s_cmp_ge_u32 {s_rb}, 8
s_cselect_b32 s28, s58, s56
s_cselect_b32 s29, s59, s57
''')
wtok = {}
def wo_dma(b):
    T(f's_mov_b32 {s_t3}, {b*32*1280}')
    for i in range(5):
        T(f's_add_u32 m0, {s_mW}, {1024*(5*b+i)}')
        wtok[5 * b + i] = T.vm(f'buffer_load_dwordx4 v{2+i}, {sTMP}, {s_t3} offen lds')
wo_dma(0); wo_dma(1)
T(f'''
v_lshrrev_b32 {v_t1}, 4, {v_lane}
v_bfe_u32 {v_t2}, {v_lane}, 2, 2
v_and_b32 {v_t3}, 3, {v_lane}
v_mul_u32_u24 {v_t3}, 40, {v_t3}
v_add_u32 {v_t3}, {s_mW}, {v_t3}
v_lshl_add_u32 {v_t2}, {v_t1}, 3, {v_t2}
v_mul_u32_u24 {v_t2}, 160, {v_t2}
v_add_u32 v7, {v_t2}, {v_t3}
s_lshr_b32 {s_t0}, {s_rb}, 3
s_lshl_b32 {s_t0}, {s_t0}, 3
s_add_u32 {s_t0}, {s_t0}, {s_e0}
s_lshl_b32 {s_t0}, {s_t0}, 2
s_add_u32 {s_t0}, {s_t0}, {s_e1}
s_mul_i32 {s_stb}, {s_t0}, 25600
v_and_b32 v9, 15, {v_lane}
v_lshlrev_b32 v9, 4, v9
v_mul_u32_u24 v10, 1280, {v_t1}
v_add_u32 v10, v10, v9
v_cmp_eq_u32 vcc, 0, v9
v_lshlrev_b32 {v_t1}, 2, {v_t1}
s_lshl_b32 {s_rot}, {s_rb}, 2
s_add_u32 {s_rot}, {s_rot}, {s_w}
v_cndmask_b32 v11, {v_big}, {v_t1}, vcc
''')
stamp('', T)
setup2(T); setup_lds(T)
wo_dma(2)
stamp('', T)
for s_ in range(5):
    T.wait(wtok[5 * s_ + 4])
    if s_ == 0 and not STB: handshake()
    for ct in range(5):
        f = 5 * s_ + ct
        for u in range(2):
            T(f'ds_read_b64_tr_b16 {vr(140+4*f+2*u,2)}, v7 offset:{(32*s_+4*u)*160+8*ct}')
    if s_ + 3 < 5: wo_dma(s_ + 3)
    if s_ == 2: poll_issue(T, v_pres, v_zero, sDBG, '0')
    for ct in range(5):
        f = 5 * s_ + ct
        if f % 4 == 0: T(f's_add_u32 {s_t1}, {s_stb}, {WOF + f*1024}')
        tokw = T.vm(f'buffer_store_dwordx4 {vr(140+4*f,4)}, {v_l16}, {sWS}, {s_t1} offen offset:{(f%4)*1024} sc1')
    if s_ == 2: tokw2 = tokw
    if FINE: stamp('', T)
poll_check(T, v_pres, v_zero, sDBG, '0')
stamp('', T)
GW = 224; GA = 48
T(f's_mul_i32 {s_t1}, {s_rot}, {32*1280}')
for j in range(5): T(f'buffer_load_dwordx4 {vr(GW+4*j,4)}, v9, {sWA}, 0 offen offset:{256*j}')
for i in range(8):
    for j in range(5): T(f'buffer_load_dwordx4 {vr(64+20*i+4*j,4)}, v10, {sX}, {s_t1} offen offset:{256*j}')
    T(f's_add_u32 {s_t1}, {s_t1}, {4*1280}')
    if i == 1:
        T.wait(tokw)
        T('s_barrier')
        set_flag(T, v_flag, s_f1, 0)
        stamp('', T)
poll_issue(T, v_pres, v_p1, sWS, s_F1A)
T(f's_lshl_b32 {s_rot}, {s_rot}, 7\ns_add_u32 {s_rot}, {s_rot}, {G_OFF}')
for i in range(8):
    T(f'v_mov_b32 v{GA+i}, 0')
    for k in range(20): T(f'v_dot2c_f32_bf16 v{GA+i}, v{64+20*i+k}, v{GW+k}')
for sh in (8, 4, 2, 1):
    for i in range(8): T(f'v_add_f32_dpp v{GA+i}, v{GA+i}, v{GA+i} row_ror:{sh} row_mask:0xf bank_mask:0xf')
for i in range(8): T(f'v_mul_f32 v{GA+i}, {f32(-math.log2(math.e))}, v{GA+i}')
for i in range(8): T(f'v_exp_f32 v{GA+i}, v{GA+i}')
for i in range(8): T(f'v_add_f32 v{GA+i}, 1.0, v{GA+i}')
for i in range(8): T(f'v_rcp_f32 v{GA+i}, v{GA+i}')
T.l += setup_late()
for i in range(8): tokg = T.vm(f'buffer_store_dword v{GA+i}, v11, {sWS}, {s_rot} offen offset:{16*i} sc1')
stamp('', T)
T.l += mask_far() + zero_pads()
if NA:
    poll(T, v_t1, v_p2, sWS, s_F1A)
    for g in wo_loads(0, NA): T.l += g
poll_check(T, v_pres, v_p1, sWS, s_F1A)
stamp('', T)
kv, _ = kvq_loads()
for g in kv: T.l += g
for g in wo_loads(NA, NWO1): T.l += g
if WT > KV0:
    a_, b_ = wo_touch(); T.l += a_ + b_
T('s_waitcnt vmcnt(0) lgkmcnt(0)\ns_barrier')
T.l += att_pre()
T(qka(0)); T(qkb(0))
T.l += mask_rest()[:8]
T('s_nop 7')
assert nstamp[0] <= nst_join
while nstamp[0] < nst_join: stamp('', T)
T('s_waitcnt lgkmcnt(0)')
T('s_branch L_join')

def undef_check(l, name):
    d = {'v0', 's0', 's1', 's2', 'exec'}; bad = []
    for i in l:
        u = i.uses - d if i.kind not in ('pseudo', 'label', 'none') else set()
        if u: bad.append((sorted(u), i.text))
        d |= i.defs | u
    if bad: print('USE BEFORE DEF in', name, bad)
ib = next(k for k, i in enumerate(S.l) if 'L_spare' in i.text); ij = next(k for k, i in enumerate(S.l) if i.text == 'L_join:')
undef_check(S.l, 'main'); undef_check(S.l[:ib] + T.l + S.l[ij:], 'spare')
S.extend(T); S.extend(tail)
S('L_end:\ns_endpgm')
S.extend(FBK)

XP = opt('xp', 0)
if XP:
    def drop(i):
        if XP & 96 and 's_cbranch_vccnz L_again' in i.text: return True
        if XP & 32 and 'store_dwordx2' in i.text and 's16' in i.uses: return True
        if XP & 128 and 'store' in i.text and 's16' in i.uses and (v_q4 in i.uses or v_qe in i.uses): return True
        if i.kind != 'vm': return False
        t = i.text
        if XP & 1 and s_e2 in i.uses and 'load' in t: return True
        if XP & 2 and 'load' in t and i.uses & {'v%d' % r for r in range(2, 10)} and 's16' in i.uses and 'lds' not in t and i.uses & {'s%d' % r for r in list(range(60, 66)) + list(range(70, 76))} and 'v8' not in i.uses - {None} | set() or False: return True
        if XP & 4 and 'load' in t and 's16' in i.uses and (v_q4 in i.uses or v_qe in i.uses or v_qo in i.uses or v_kb1 in i.uses) and i.uses & {'s60', 's61', 's62', 's63'}: return True
        if XP & 8 and 'store' in t and v_st in i.uses and 's16' in i.uses and i.tok not in (tokA, tokB): return True
        if XP & 16 and 'lds' in t and s_e1 in i.uses and i.tok is not tokKV: return True
        return False
    S.l = [i for i in S.l if not drop(i)]
stats = []
body = finalize(S, stats)
hdr = open('cdna_kernels/%s.s.ref' % NAME).read().split('; Override')[0]
K = NAME + '_kernel'
txt = hdr + f'''; Generated by a hand-written generator script: one persistent workgroup per CU, phases chained by flags in d_ws.
; @launch grid=(256,1,1) block=(256,1,1) lds={LDS_BYTES}
.amdgcn_target "amdgcn-amd-amdhsa--gfx950"
.text
.globl {K}
.p2align 8
.type {K},@function
{K}:
''' + '\n'.join(body) + f'''
.section .rodata,"a"
.p2align 6
.amdhsa_kernel {K}
  .amdhsa_next_free_vgpr 512
  .amdhsa_next_free_sgpr 102
  .amdhsa_accum_offset 256
  .amdhsa_group_segment_fixed_size 0
  .amdhsa_kernarg_size 80
  .amdhsa_user_sgpr_count 2
  .amdhsa_user_sgpr_kernarg_segment_ptr 1
  .amdhsa_system_sgpr_workgroup_id_x 1
  .amdhsa_float_denorm_mode_32 3
.end_amdhsa_kernel
'''
open(OUT, 'w').write(txt)
print('instructions:', len(body), ' nops:', len(stats), sum(s[0] for s in stats), ' overflow slots', over, 'WS_SIZE', WS_SIZE)
if '--nops' in ARGS:
    for s in stats: print(s)
```

```python
import sys, math, struct
from fw import *

NAME = "gated_mix__sliding_block__sliding_local_dilated__prompt"
ARGS = sys.argv[1:]
STAMPS = '--stamps' in ARGS
FINE = '--fine' in ARGS
FINE2 = '--fine2' in ARGS
def opt(name, default):
    for a in ARGS:
        if a.startswith('--' + name + '='): return int(a.split('=')[1])
    return default
OUT = [a for a in ARGS if not a.startswith('--')]
OUT = OUT[0] if OUT else 'k.s'

GRP = 2048 * 16
QKV = [0, 240 * GRP]
WOF = 480 * GRP
G_OFF = WOF + 64 * 25600
FLG = G_OFF + 8192
F1 = [FLG, FLG + 32768]
WS_SIZE = FLG + 65536
STAMP_OFF = WS_SIZE
BIG = 0x40000000
L_X = 65536
GS = 8192 + 64
L_KA = L_X + 16384; L_VA = L_KA + 3 * GS
L_VB = 131072 + 512; VBW = 4608
L_ONE = L_VB + 4 * VBW + ((L_VA + 3 * GS) % 256)
L_TAB = L_VB + 4 * VBW + 8192 + 256
LDS_BYTES = 160 * 1024
assert L_TAB + 1024 <= LDS_BYTES and L_VA + 3 * GS <= L_VB

def f32(x): return '0x%08x' % struct.unpack('<I', struct.pack('<f', x))[0]
QSCALE = (20 ** -0.5) * math.log2(math.e)
NEGINF = '0xff800000'

sX, sWA, sWB, sWS, sOUT, sDBG, sTMP = 's[4:7]', 's[8:11]', 's[12:15]', 's[16:19]', 's[20:23]', 's[24:27]', 's[28:31]'
s_xcd, s_t, s_rb, s_cb, s_w = 's32', 's33', 's34', 's35', 's36'
s_t0, s_t1, s_t2, s_t3 = 's37', 's38', 's39', 's40'
s_stb, s_scale, s_inv, s_mW, s_mX = 's41', 's42', 's43', 's44', 's45'
s_hd, s_r2, s_so, s_q0 = 's46', 's47', 's48', 's49'
s_cnt, s_f1, s_tag, s_rnd, s_k1, s_wob = 's50', 's51', 's52', 's53', 's54', 's55'
SW0, SX0 = 60, 70
ST0 = 80
s_bF, s_bS, s_dF, s_dS, s_mK, s_mV, s_gb, s_rot = 's84', 's85', 's86', 's87', 's88', 's89', 's90', 's91'
s_e0, s_e1, s_e2, s_e3 = 's92', 's93', 's94', 's95'
s_F1A, s_F1B, s_F2, s_q0z, s_R, s_C = 's96', 's97', 's98', 's99', 's100', 's101'
ROWMAP = opt('rowmap', 0); QRND = opt('qrnd', 0)
v_lane = 'v1'
VWD, VXD, VWR, VXR = 2, 6, 10, 14
VWX = [14, 15, 42, 44]
v_dma, v_gad, v_kb0, v_k1 = 'v6', 'v7', 'v8', 'v9'
v_st, v_flag, v_one, v_pres, v_l16, v_big = 'v16', 'v17', 'v18', 'v19', 'v20', 'v21'
v_t1, v_t2, v_t3, v_t4, v_tmp, v_zero = 'v22', 'v23', 'v24', 'v25', 'v26', 'v27'
(v_p1, v_p2, v_p3, v_q4, v_qe, v_qo, v_k0, v_v, v_vb, v_vh, v_kb1, v_halo, v_mA, v_mB0, v_flagw, v_o4, v_o2, v_h, v_r, v_tabc) = ['v%d' % i for i in range(28, 48)]
WRING = 48
ACC = [64, 128]
XV = 192
E0, P0 = 48, 56
SB = [64, 192]; M_FAR, M_DIAG = 80, 208; QA0, QA1 = 96, 104; OA = [224, 240]
QB0, QB1, KB0 = 128, 136, 144
v_g = ['v46', 'v47']
MB_DIAG, MB_PREV, MB_PREV0 = 160, 168, 176
SP = [64, 192]; SD = [80, 208]; OB = [96, 112]
V4, V2, VRW, v_rr, v_out, v_p4 = 2, 6, 10, 'v13', 'v14', 'v15'
AC3 = 16; OF = [[128, 144, 160, 176, 224], [96, 112, 192, 208, 240]]; RED = 128
AK0, AK1, AV, AKB1 = 200, 208, 216, 232
VB = 200

def vr(b, n): return 'v[%d:%d]' % (b, b + n - 1)
def ar(b, n): return 'a[%d:%d]' % (b, b + n - 1)
mm = 'v_mfma_f32_32x32x16_bf16'

S = Stream()
tail = Stream()
nstamp = [0]; stamp_names = []
AMP = [a.split('=')[1].split(',') for a in ARGS if a.startswith('--amp=')]
AMP = AMP[0] if AMP else None
def stamp(name='', st=None):
    if AMP and name in AMP and st is None: S('s_memrealtime s[%d:%d]' % (ST0 + 2 * AMP.index(name), ST0 + 2 * AMP.index(name) + 1))
    if STAMPS:
        st = st or S
        k = nstamp[0]
        if k == 1:
            for i in range(56, 64): st('v_writelane_b32 v0, 0, %d' % i)
        if k > 0: st('v_writelane_b32 v0, s%d, %d' % (ST0 + 2 * ((k - 1) & 1), k - 1))
        st('s_memrealtime s[%d:%d]' % (ST0 + 2 * (k & 1), ST0 + 2 * (k & 1) + 1))
        if '--clk' in ARGS and st is S and 3 <= k <= 24:
            if k > 3: st('v_writelane_b32 v0, s%d, %d' % (28 + 2 * ((k - 1) & 1), 30 + k - 1))
            st('s_memtime s[%d:%d]' % (28 + 2 * (k & 1), 29 + 2 * (k & 1)))
    stamp_names.append(name)
    nstamp[0] += 1
def st2(n):
    if FINE2: stamp(n)
nlab = [0]
def lab(p):
    nlab[0] += 1
    return 'L_%s_%d' % (p, nlab[0])

PIDX = {v_zero: 0, v_p1: 1, v_p2: 2, v_p3: 3, v_p4: 4}
def poll_issue(st, res, adr, srd, soff, off=0):
    st('buffer_load_dword %s, %s, %s, %s offen offset:%d sc1' % (res, adr, srd, soff, off))
def poll_check(st, res, adr, srd, soff, off=0):
    l = lab('poll'); b = lab('back')
    st('v_cmp_ne_u32 vcc, 1, %s' % res)
    st('s_cbranch_vccnz %s' % l)
    st(b + ':')
    tail('@reset')
    tail(f'''
    {l}:
    s_mov_b32 {s_cnt}, 0
    {l}_a:
    buffer_load_dword {res}, {adr}, {srd}, {soff} offen offset:{off} sc1
    s_add_u32 {s_cnt}, {s_cnt}, 1
    {('v_writelane_b32 v0, %s, %d' % (s_cnt, 56 + PIDX[adr] + off // 4)) if STAMPS else ''}
    s_waitcnt vmcnt(0)
    v_cmp_ne_u32 vcc, 1, {res}
    s_cbranch_vccz {b}
    s_cmp_lt_u32 {s_cnt}, 0x40000
    s_cbranch_scc1 {l}_a
    s_branch {b}
    ''')
def poll(st, res, adr, srd, soff):
    poll_issue(st, res, adr, srd, soff); poll_check(st, res, adr, srd, soff)
def set_flag(st, vf, base, off):
    st(f'buffer_store_dword {v_one}, {vf}, {sWS}, {base} offen offset:{off} sc1')
def mk(fn, *a):
    st = Stream(); fn(st, *a); return st.l
def L(txt):
    st = Stream(); st(txt); return st.l

def setup2(st):
    st(f'''
    s_mov_b32 s14, {640*3840}
    s_mov_b32 s15, 0x20000
    s_mov_b32 s22, {2048*1280}
    s_mov_b32 s23, 0x20000
    s_mov_b32 {s_F1A}, {F1[0]}
    s_mov_b32 {s_F1B}, {F1[1]}
    s_and_b32 {s_C}, {s_t}, 7
    s_lshr_b32 {s_t2}, {s_t}, 3
    s_lshl_b32 {s_t0}, {s_xcd}, 2
    s_add_u32 {s_R}, {s_t0}, {s_t2}
    s_mov_b32 {s_r2}, {s_xcd if ROWMAP else s_C}
    s_mov_b32 {s_hd}, {s_t if ROWMAP else s_R}
    ''')
    if opt('map3', 1) == 1:
        st(f'''
        s_lshr_b32 {s_R}, {s_xcd}, 1
        s_lshl_b32 {s_R}, {s_R}, 3
        s_lshr_b32 {s_t0}, {s_t}, 2
        s_add_u32 {s_R}, {s_R}, {s_t0}
        s_and_b32 {s_C}, {s_xcd}, 1
        s_lshl_b32 {s_C}, {s_C}, 2
        s_and_b32 {s_t0}, {s_t}, 3
        s_add_u32 {s_C}, {s_C}, {s_t0}
        ''')
    st(f'''
    s_lshl_b32 {s_q0}, {s_r2}, 8
    s_lshl_b32 {s_t0}, {s_w}, 6
    s_add_u32 {s_q0}, {s_q0}, {s_t0}
    s_mul_i32 {s_e0}, {s_hd}, 5
    s_lshr_b32 {s_e0}, {s_e0}, 1
    s_and_b32 {s_t3}, {s_hd}, 1
    s_add_u32 {s_e1}, {s_e0}, {s_t3}
    s_lshl_b32 {s_so}, {s_t3}, 3
    s_lshl_b32 {s_t3}, {s_t3}, 1
    s_add_u32 {s_e2}, {s_e0}, 2
    s_sub_u32 {s_e2}, {s_e2}, {s_t3}
    s_lshl_b32 {s_e1}, {s_e1}, 15
    s_lshl_b32 {s_e2}, {s_e2}, 15
    s_lshl_b32 {s_t0}, {s_q0}, 4
    s_add_u32 {s_bF}, {s_e1}, {s_t0}
    s_add_u32 {s_bS}, {s_e2}, {s_t0}
    s_lshl_b32 {s_e3}, {s_r2}, 1
    s_add_u32 {s_e3}, {s_e3}, {s_w}
    s_lshl_b32 {s_t0}, {s_e3}, 11
    s_add_u32 {s_dF}, {s_e1}, {s_t0}
    s_add_u32 {s_dS}, {s_e2}, {s_t0}
    s_lshl_b32 {s_mK}, {s_w}, 11
    s_mul_i32 {s_mV}, {s_w}, {VBW}
    s_add_u32 {s_mV}, {s_mV}, {L_VB}
    s_lshl_b32 {s_gb}, {s_q0}, 2
    s_add_u32 {s_gb}, {s_gb}, {G_OFF}
    s_lshl_b32 {s_f1}, {s_rb}, 11
    s_lshl_b32 {s_t0}, {s_cb}, 7
    s_add_u32 {s_f1}, {s_f1}, {s_t0}
    s_add_u32 {s_f1}, {s_f1}, {F1[0]}
    s_lshl_b32 {s_wob}, {s_C}, 2
    s_add_u32 {s_wob}, {s_wob}, {s_w}
    s_mul_i32 {s_wob}, {s_wob}, 25600
    v_and_b32 {v_zero}, 60, {v_lane}
    v_lshrrev_b32 {v_h}, 5, {v_lane}
    v_and_b32 {v_r}, 31, {v_lane}
    v_bfe_u32 {v_t1}, {v_lane}, 2, 1
    v_lshl_add_u32 {v_t1}, {v_t1}, 1, {s_e0}
    v_lshrrev_b32 {v_t1}, 4, {v_t1}
    v_and_b32 {v_t2}, 3, {v_lane}
    v_min_u32 {v_t3}, 2, {v_t2}
    v_mad_u32_u24 {v_t4}, {v_t3}, 5, {v_t1}
    v_mad_u32_u24 {v_tmp}, {v_t2}, 5, {v_t1}
    v_min_u32 {v_tmp}, 15, {v_tmp}
    s_sub_u32 {s_t1}, {s_e3}, 2
    s_max_i32 {s_t1}, {s_t1}, 0
    s_lshl_b32 {s_t1}, {s_t1}, 11
    s_andn2_b32 {s_t2}, {s_q0}, 127
    s_lshl_b32 {s_t2}, {s_t2}, 4
    v_cmp_eq_u32 vcc, 0, {v_t2}
    v_mov_b32 {v_t1}, {s_t1}
    v_mov_b32 {v_t3}, {s_t2}
    v_cndmask_b32 {v_t1}, {v_t1}, {v_t3}, vcc
    v_lshl_add_u32 {v_p1}, {v_t4}, 7, {v_t1}
    s_sub_u32 {s_t1}, {s_q0}, 32
    s_max_i32 {s_t1}, {s_t1}, 0
    s_andn2_b32 {s_t1}, {s_t1}, 127
    s_lshl_b32 {s_t1}, {s_t1}, 4
    v_and_b32 {v_t2}, 8, {v_lane}
    v_cmp_eq_u32 vcc, 0, {v_t2}
    v_mov_b32 {v_t1}, {s_t1}
    v_and_b32 {v_t2}, 1, {v_lane}
    v_cndmask_b32 {v_t1}, {v_t1}, {v_t3}, vcc
    v_lshl_add_u32 {v_p3}, {v_tmp}, 7, {v_t1}
    v_cmp_gt_u32 s[38:39], 32, {v_lane}
    s_lshr_b32 {s_t0}, {s_R}, 1
    s_lshl_b32 {s_t0}, {s_t0}, 4
    s_add_u32 {s_t0}, {s_t0}, {s_w}
    v_add_lshl_u32 {v_t1}, {v_t2}, {s_t0}, 7
    v_cndmask_b32 {v_p3}, {v_t1}, {v_p3}, s[38:39]
    s_lshl_b32 {s_t0}, {s_w}, 1
    s_lshr_b32 {s_t1}, {s_C}, 2
    s_add_u32 {s_t0}, {s_t0}, {s_t1}
    s_lshl_b32 {s_t0}, {s_t0}, 11
    s_add_u32 {s_t0}, {s_t0}, {15*128}
    v_lshl_add_u32 {v_p2}, {v_t2}, 14, {s_t0}
    v_cndmask_b32 {v_p1}, {v_p2}, {v_p1}, vcc
    ''')
    st(f'''
    v_lshlrev_b32 {v_q4}, 15, {v_h}
    v_lshl_add_u32 {v_q4}, {v_r}, 4, {v_q4}
    v_cmp_eq_u32 vcc, 0, {v_h}
    v_lshl_add_u32 {v_t1}, {v_r}, 4, {s_so}
    s_cmp_eq_u32 {s_q0}, 0
    s_cselect_b32 {s_q0z}, {BIG}, 0
    v_cndmask_b32 {v_qe}, {v_big}, {v_t1}, vcc
    v_cndmask_b32 {v_qo}, {v_t1}, {v_big}, vcc
    v_mov_b32 {v_t2}, {s_q0z}
    v_cndmask_b32 {v_t2}, 0, {v_t2}, vcc
    v_add3_u32 {v_kb1}, {v_t2}, {v_l16}, {s_so}
    v_and_b32 {v_t2}, 15, {v_lane}
    v_mov_b32 {v_o4}, 0x10000
    v_lshrrev_b32 {v_t1}, 4, {v_lane}
    v_lshl_add_u32 {v_t3}, {v_t1}, 15, {s_bF}
    v_cmp_eq_u32 vcc, 2, {v_t1}
    v_mov_b32 {v_t4}, {s_bS}
    s_add_u32 {s_t3}, {s_q0z}, {QKV[1] + 160*GRP - 256}
    v_cndmask_b32 {v_t3}, {v_t3}, {v_t4}, vcc
    v_cmp_eq_u32 vcc, 3, {v_t1}
    v_lshl_add_u32 {v_t3}, {v_t2}, 4, {v_t3}
    v_add_u32 {v_t3}, {s_t3}, {v_t3}
    v_cndmask_b32 {v_halo}, {v_t3}, {v_big}, vcc
    ''')
    st(f'''
    s_lshl_b32 {s_t0}, {s_w}, 10
    v_mul_u32_u24 {v_t1}, {GS}, {v_h}
    v_lshl_add_u32 {v_t1}, {v_r}, 4, {v_t1}
    s_add_u32 {s_t1}, {s_t0}, {L_KA}
    v_add_u32 {v_k0}, {s_t1}, {v_t1}
    s_add_u32 {s_k1}, {s_t0}, {L_KA + 2*GS}
    s_add_u32 {s_k1}, {s_k1}, {s_so}
    v_bfe_u32 {v_t1}, {v_lane}, 2, 2
    v_lshl_add_u32 {v_t1}, {v_h}, 2, {v_t1}
    v_lshlrev_b32 {v_t1}, 4, {v_t1}
    v_and_b32 {v_pres}, 16, {v_lane}
    v_cmp_eq_u32 vcc, 0, {v_pres}
    v_and_b32 {v_t2}, 1, {v_lane}
    v_bfe_u32 {v_t3}, {v_lane}, 1, 1
    v_add_u32 {v_t4}, 2, {v_t3}
    v_lshlrev_b32 {v_t3}, 3, {v_t3}
    v_mov_b32 {v_tmp}, {s_so}
    v_cndmask_b32 {v_t2}, {v_t4}, {v_t2}, vcc
    v_cndmask_b32 {v_t3}, {v_tmp}, {v_t3}, vcc
    v_cmp_eq_u32 vcc, 3, {v_t2}
    v_add_u32 {v_t1}, {v_t1}, {v_t3}
    s_add_u32 {s_t1}, {s_t0}, {L_VA}
    v_mul_u32_u24 {v_t3}, {GS}, {v_t2}
    v_add3_u32 {v_v}, {v_t1}, {v_t3}, {s_t1}
    v_mul_u32_u24 {v_t3}, 1088, {v_t2}
    v_add3_u32 {v_vb}, {v_t1}, {v_t3}, {s_mV}
    s_add_u32 {s_t1}, {s_mV}, {3*1088}
    v_lshlrev_b32 {v_t3}, 8, {v_t2}
    v_add3_u32 {v_vh}, {v_t1}, {v_t3}, {s_t1}
    s_add_u32 {s_t1}, {s_t0}, {L_ONE}
    v_add_u32 {v_t3}, {s_t1}, {v_t1}
    v_add_u32 {v_t1}, {L_ONE + 4096}, {v_t1}
    v_cndmask_b32 {v_v}, {v_v}, {v_t3}, vcc
    v_cndmask_b32 {v_vb}, {v_vb}, {v_t1}, vcc
    v_cndmask_b32 {v_vh}, {v_vh}, {v_t1}, vcc
    ''')
    st(f'''
    v_lshlrev_b32 {v_t1}, 2, {v_h}
    v_sub_u32 {v_t1}, {v_t1}, {v_r}
    v_lshlrev_b32 {v_t1}, 2, {v_t1}
    v_add_u32 {v_mA}, {L_TAB + 128}, {v_t1}
    s_cmp_eq_u32 {s_q0}, 0
    s_cselect_b64 vcc, -1, 0
    v_mov_b32 {v_t1}, {L_TAB + 4*64}
    v_cndmask_b32 {v_mB0}, {v_mA}, {v_t1}, vcc
    ''')
def setup_lds(st):
    st(f'''
    s_and_b32 {s_cnt}, {s_xcd if ROWMAP else s_t}, 7
    s_lshl_b32 {s_cnt}, {s_cnt}, 1
    s_add_u32 {s_cnt}, {s_cnt}, {s_w}
    s_cmp_ge_u32 {s_cnt}, 2
    s_cselect_b32 {s_inv}, 0, {BIG}
    s_cselect_b32 {s_cnt}, 0x3f803f80, 0
    v_mov_b32 v128, {s_cnt}
    v_mov_b32 v129, {s_cnt}
    v_mov_b32 v130, {s_cnt}
    v_mov_b32 v131, {s_cnt}
    s_lshl_b32 {s_cnt}, {s_w}, 11
    s_add_u32 {s_cnt}, {s_cnt}, {L_ONE}
    v_add_u32 v132, {s_cnt}, {v_l16}
    ds_write_b128 v132, v[128:131]
    ds_write_b128 v132, v[128:131] offset:1024
    ''')
    mk_ = [0, 0, 0, 0]
    for e in range(256):
        ok = (e - 32 <= 0) if e < 64 else (e - 96 > 0) if e < 128 else (0 <= 191 - e <= 14 and (191 - e) % 2 == 0)
        if ok: mk_[e >> 6] |= 1 << (e & 63)
    assert mk_[3] == 0 and mk_[1] & 0xffffffff == 0 and mk_[2] & 0xffffffff == 0
    st(f'''
    s_cmp_eq_u32 {s_w}, 0
    s_cselect_b32 s58, 0x{mk_[0] & 0xffffffff:x}, 0
    s_cselect_b32 s59, 0x{mk_[0] >> 32:x}, 0
    s_cmp_eq_u32 {s_w}, 1
    s_cselect_b32 s59, 0x{mk_[1] >> 32:x}, s59
    s_cmp_eq_u32 {s_w}, 2
    s_cselect_b32 s59, 0x{mk_[2] >> 32:x}, s59
    v_mov_b32 v138, {NEGINF}
    s_lshl_b32 {s_cnt}, {s_w}, 8
    s_add_u32 {s_cnt}, {s_cnt}, {L_TAB}
    v_cndmask_b32 v138, v138, 0, s[58:59]
    v_lshl_add_u32 v139, {v_lane}, 2, {s_cnt}
    ds_write_b32 v139, v138
    ''')
def setup_late():
    return L(f'''
    v_add_u32 {v_dma}, {s_inv}, {v_l16}
    v_lshlrev_b32 {v_gad}, 2, {v_r}
    v_add_u32 {v_kb0}, {s_q0z}, {v_q4}
    v_add_u32 {v_k1}, {s_k1}, {v_l16}
    ''')
def zero_pads():
    return L('\n'.join(f'v_accvgpr_write_b32 a{b}, 0' for b in (AK1 + 2, AK1 + 3, AK1 + 6, AK1 + 7, AKB1 + 2, AKB1 + 3, AKB1 + 6, AKB1 + 7))
             + f'\nv_mov_b32 v{QA1+8}, 0\nv_mov_b32 v{QA1+9}, 0')

def mask_reads(reg, adr, base, a0=0):
    l = []
    for a in range(a0, 4):
        for b in (0, 2):
            k = base + 8 * a + b
            l.append(Ins(f'ds_read2_b32 {vr(reg+4*a+b,2)}, {adr} offset0:{k} offset1:{k+1}'))
    return l
def mask_far(): return mask_reads(M_FAR, v_mA, 64)
def mask_rest(): return mask_reads(M_DIAG, v_mA, 0) + mask_reads(MB_DIAG, v_mA, 159) + mask_reads(MB_PREV, v_mA, 127, 2) + mask_reads(MB_PREV0, v_mB0, 127, 2)

def kvq_loads():
    g = []
    for ty in (1, 2):
        for gi in range(3):
            g.append(L(f's_add_u32 m0, {s_mK}, {(L_KA if ty == 1 else L_VA) + gi*GS}\n'
                       f's_add_u32 {s_e1}, {s_dS if gi == 2 else s_dF}, {QKV[0] + (80*ty + (gi if gi < 2 else 0))*GRP - 4096}'))
            g.append(L(f'buffer_load_dwordx4 {v_dma}, {sWS}, {s_e1} offen sc1 lds'))
            st = Stream()
            tok = st.vm(f'buffer_load_dwordx4 {v_dma}, {sWS}, {s_e1} offen offset:1024 sc1 lds')
            g.append(st.l)
    for x in (f'buffer_load_dwordx4 {vr(QA0,4)}, {v_q4}, {sWS}, {s_bF} offen sc1',
              f'buffer_load_dwordx2 {vr(QA1,2)}, {v_qe}, {sWS}, {s_bS} offen sc1',
              f'buffer_load_dwordx2 {vr(QA1+2,2)}, {v_qo}, {sWS}, {s_bS} offen sc1',
              f'buffer_load_dwordx4 {vr(QA0+4,4)}, {v_q4}, {sWS}, {s_bF} offen offset:512 sc1',
              f'buffer_load_dwordx2 {vr(QA1+4,2)}, {v_qe}, {sWS}, {s_bS} offen offset:512 sc1',
              f'buffer_load_dwordx2 {vr(QA1+6,2)}, {v_qo}, {sWS}, {s_bS} offen offset:512 sc1'):
        g.append([Ins(x)])
    return g, tok
def wo_loads(f0, f1, adr=v_l16):
    g = []
    for F in range(f0, f1):
        br, f = F // 25, F % 25
        if f % 4 == 0 or F == f0: g.append(L(f's_add_u32 {s_e2}, {s_wob}, {WOF + br*32*25600 + (f & ~3)*1024}'))
        g.append(L(f'buffer_load_dwordx4 {ar(4*F,4)}, {adr}, {sWS}, {s_e2} offen offset:{(f%4)*1024} sc1'))
    return g

steps = [(0, 0)] + [(j, q) for j in range(1, 9) for q in range(2)] + [(9, 1)]
def k0_read(j): return Ins(f'ds_read_b128 {ar(AK0+4*(j&1),4)}, {v_k0} offset:{512*j}')
def k1_read(j): return Ins(f'ds_read_b64 {ar(AK1+4*((j>>1)&1),2)}, {v_k1} offset:{512*j}')
def v_read(j, kk, u): return Ins(f'ds_read_b64_tr_b16 {ar(AV+8*(j&1)+4*kk+2*u,2)}, {v_v} offset:{512*j+256*kk+128*u}')
def qka(n):
    j, q = steps[n]
    c = vr(M_FAR, 16) if j == q else vr(M_DIAG, 16) if j == 8 + q else '0'
    return f'{mm} {vr(SB[n&1],16)}, {ar(AK0+4*(j&1),4)}, {vr(QA0+4*q,4)}, {c}'
def qkb(n):
    j, q = steps[n]
    return f'{mm} {vr(SB[n&1],16)}, {ar(AK1+4*((j>>1)&1),4)}, {vr(QA1+4*q+2*(j&1),4)}, {vr(SB[n&1],16)}'
def pv(n, kk):
    j, q = steps[n]
    c = '0' if (j == q and kk == 0) else vr(OA[q], 16)
    return f'{mm} {vr(OA[q],16)}, {ar(AV+8*(j&1)+4*kk,4)}, {vr(P0+4*kk,4)}, {c}'
def exps(n, g): return [f'v_exp_f32 v{E0+4*(g&1)+i}, v{SB[n&1]+4*g+i}' for i in range(4)]
def cvts(g): return [f'v_cvt_pk_bf16_f32 v{P0+2*g+i}, v{E0+4*(g&1)+2*i}, v{E0+4*(g&1)+2*i+1}' for i in range(2)]
def att_pre(): return [k0_read(0), k1_read(0), k0_read(1)] + [v_read(0, kk, u) for kk in range(2) for u in range(2)]

S(f'''
s_cmp_ge_u32 s2, 0x100
s_cbranch_scc1 L_end
s_load_dwordx2 s[4:5], s[0:1], 0
s_load_dwordx2 s[8:9], s[0:1], 8
s_load_dwordx2 s[12:13], s[0:1], 32
s_load_dwordx2 s[16:17], s[0:1], 72
s_load_dwordx2 s[20:21], s[0:1], 56
s_load_dwordx2 s[24:25], s[0:1], 64
''')
stamp('start')
if opt('cpf', 1):
    S(f'''
    s_getpc_b64 s[28:29]
    L_pc:
    s_mov_b32 s30, L_end-L_pc
    s_mov_b32 s31, 0x20000
    s_andn2_b32 {s_t0}, s2, 7
    v_min_u32 v132, 7, v0
    v_add_lshl_u32 v132, v132, {s_t0}, 7
    buffer_load_dword v133, v132, {sTMP}, 0 offen
    ''')
if opt('kick', 1):
    S(f'''
    s_mov_b32 s6, {2048*1280}
    s_mov_b32 s7, 0x20000
    s_mov_b32 s10, {640*3840}
    s_mov_b32 s11, 0x20000
    v_lshlrev_b32 v146, 21, v0
    s_lshl_b32 {s_t1}, s2, {10 if opt('kick', 1) == 2 else 0}
    s_waitcnt lgkmcnt(0)
    buffer_load_dword v147, v146, {sX}, {s_t1 if opt('kick', 1) == 2 else 0} offen
    buffer_load_dword v148, v146, {sWA}, {s_t1 if opt('kick', 1) == 2 else 0} offen
    ''')
    if AMP: stamp('sl')
S(f'''
v_lshrrev_b32 {v_tmp}, 6, v0
v_and_b32 {v_lane}, 63, v0
v_readfirstlane_b32 {s_w}, {v_tmp}
s_and_b32 {s_xcd}, s2, 7
{('s_xor_b32 %s, %s, %d' % (s_xcd, s_xcd, opt('xmap', 0))) if opt('xmap', 0) else ''}
s_lshr_b32 {s_t}, s2, 3
s_and_b32 {s_t0}, {s_xcd}, 1
s_lshl_b32 {s_t0}, {s_t0}, 3
s_and_b32 {s_t1}, {s_t}, 7
s_add_u32 {s_rb}, {s_t0}, {s_t1}
s_lshr_b32 {s_t0}, {s_xcd}, 1
s_lshl_b32 {s_t0}, {s_t0}, 2
s_lshr_b32 {s_t2}, {s_t}, 3
s_add_u32 {s_cb}, {s_t0}, {s_t2}
s_mov_b32 s6, {2048*1280}
s_mov_b32 s7, 0x20000
s_mov_b32 s11, 0x20000
s_cmp_eq_u32 {s_cb}, 15
s_cbranch_scc1 L_spare
s_mov_b32 s10, {640*3840}
s_lshl_b32 {s_rot}, {s_t2}, 1
s_add_u32 {s_rot}, {s_rot}, {s_t1}
''')
if opt('rot', 24) == 8:
    S(f's_and_b32 {s_rot}, {s_rot}, 7\ns_mul_i32 {s_rot}, {s_rot}, 5\ns_lshr_b32 {s_rot}, {s_rot}, 2')
elif opt('rot', 24) == 1:
    S(f's_mov_b32 {s_rot}, 0')
elif opt('rot', 24) == 2:
    S(f's_add_u32 {s_rot}, {s_t1}, {s_t2}\ns_and_b32 {s_rot}, {s_rot}, 1\ns_mul_i32 {s_rot}, {s_rot}, 5')
elif opt('rot', 24) == 3:
    S(f's_add_u32 {s_rot}, {s_t1}, {s_t2}\ns_mul_i32 {s_t0}, {s_rot}, 86\ns_lshr_b32 {s_t0}, {s_t0}, 8\ns_mul_i32 {s_t0}, {s_t0}, 3\ns_sub_u32 {s_rot}, {s_rot}, {s_t0}\ns_mul_i32 {s_rot}, {s_rot}, 7\ns_lshr_b32 {s_rot}, {s_rot}, 1')
elif opt('rot', 24) == 4:
    S(f's_add_u32 {s_rot}, {s_t1}, {s_t2}\ns_and_b32 {s_rot}, {s_rot}, 3\ns_mul_i32 {s_rot}, {s_rot}, 5\ns_lshr_b32 {s_rot}, {s_rot}, 1')
elif opt('rot', 24) in (22, 24):
    m_ = 1 if opt('rot', 24) == 22 else 3
    S(f'''
    s_add_u32 {s_rot}, {s_t1}, {s_t2}
    s_and_b32 {s_rot}, {s_rot}, 1
    s_mul_i32 {s_rot}, {s_rot}, {m_ + 1}
    s_and_b32 {s_t0}, {s_xcd}, 1
    s_mul_i32 {s_t0}, {s_t0}, {(m_ + 1) // 2}
    s_lshr_b32 {s_t3}, {s_xcd}, 1
    s_add_u32 {s_t0}, {s_t0}, {s_t3}
    s_and_b32 {s_t0}, {s_t0}, {m_}
    s_add_u32 {s_rot}, {s_rot}, {s_t0}
    s_mul_i32 {s_rot}, {s_rot}, 5
    s_lshr_b32 {s_rot}, {s_rot}, {1 if m_ == 1 else 2}
    ''')
elif opt('rot', 24) == 14:
    S(f'''
    s_and_b32 {s_t0}, {s_xcd}, 1
    s_lshl_b32 {s_t0}, {s_t0}, 1
    s_lshr_b32 {s_t3}, {s_xcd}, 1
    s_add_u32 {s_t0}, {s_t0}, {s_t3}
    s_and_b32 {s_rot}, {s_t0}, 3
    s_mul_i32 {s_rot}, {s_rot}, 5
    s_lshr_b32 {s_rot}, {s_rot}, 1
    ''')
else:
    S(f'''
    s_lshl_b32 {s_rot}, {s_rot}, 1
    s_add_u32 {s_t0}, {s_xcd}, 1
    s_lshr_b32 {s_t0}, {s_t0}, 1
    s_add_u32 {s_rot}, {s_rot}, {s_t0}
    s_and_b32 {s_rot}, {s_rot}, 15
    s_mul_i32 {s_rot}, {s_rot}, 5
    s_lshr_b32 {s_rot}, {s_rot}, 3
    ''')
def rot(st, n):
    if n >= 1: st(f's_cmp_eq_u32 {s_rot}, 10\ns_cselect_b32 {s_rot}, 0, {s_rot}')
    st(f'''
    s_mul_i32 s{SW0+n}, {s_rot}, {64*3840}
    s_lshl_b32 s{SX0+n}, {s_rot}, 7
    s_add_u32 {s_rot}, {s_rot}, 1
    ''')
rot(S, 0)
S(f'''
v_lshrrev_b32 {v_t1}, 4, {v_lane}
v_lshrrev_b32 {v_t2}, 3, {v_lane}
v_mul_u32_u24 {v_t2}, 1280, {v_t2}
v_and_b32 {v_t3}, 7, {v_lane}
v_xor_b32 {v_t3}, {v_t3}, {v_t1}
s_lshl_b32 {s_t2}, {s_rb}, 2
s_add_u32 {s_t2}, {s_t2}, {s_w}
s_mul_i32 {s_t2}, {s_t2}, {32*1280}
v_add_u32 {v_t2}, {s_t2}, {v_t2}
v_lshl_add_u32 v{VXD}, {v_t3}, 4, {v_t2}
v_xor_b32 {v_t3}, 4, {v_t3}
v_lshl_add_u32 v{VXD+1}, {v_t3}, 4, {v_t2}
v_add_u32 v{VXD+2}, {2*(8*1280-1024)}, v{VXD}
v_add_u32 v{VXD+3}, {3*(8*1280-1024)}, v{VXD+1}
v_add_u32 v{VXD+1}, {8*1280-1024}, v{VXD+1}
s_lshl_b32 {s_mW}, {s_w}, 12
s_add_u32 {s_mX}, {s_mW}, {L_X}
v_and_b32 {v_t2}, 15, {v_lane}
v_lshlrev_b32 {v_t3}, 1, {v_t1}
v_xor_b32 {v_t2}, {v_t2}, {v_t3}
v_mul_u32_u24 {v_t3}, 3840, {v_t1}
v_lshl_add_u32 {v_t3}, {v_t2}, 4, {v_t3}
s_mul_i32 {s_t1}, {s_w}, {16*3840}
s_lshl_b32 {s_t2}, {s_cb}, 8
s_add_u32 {s_t1}, {s_t1}, {s_t2}
v_add_u32 v{VWD}, {s_t1}, {v_t3}
''')
S(f'''
v_xor_b32 v{VWD+2}, 128, v{VWD}
v_add_u32 v{VWD+1}, {4*3840-1024}, v{VWD}
v_add_u32 v{VWD+3}, {3*(4*3840-1024)}, v{VWD+2}
v_add_u32 v{VWD+2}, {2*(4*3840-1024)}, v{VWD+2}
''')
rot(S, 1)
S('s_waitcnt lgkmcnt(0)')

dma_tok = {}
WSLOT = [n % 4 for n in range(10)] + [2, 6, 3, 7, 0, 4, 1, 2, 3, 0]
WISS = {n: n - 2 for n in range(2, 11)}
WISS.update({11: 8, 12: 9, 13: 9, 14: 10, 15: 12, 16: 12, 17: 13, 18: 14, 19: 16})
for a_ in ARGS:
    if a_.startswith('--wiss='): WISS.update({11 + i: int(x) for i, x in enumerate(a_[7:].split(','))})
CTM = opt('ctm', 4)
def dma_stage(n):
    p, ns, slot = n // 10, n % 10, WSLOT[n]
    g = []
    if p == 0:
        g.append(L(f's_add_u32 m0, {s_mX}, {slot*16384}'))
        for i in range(4):
            g.append(L(f'buffer_load_dwordx4 v{VXD+i}, {sX}, s{SX0+ns} offen offset:{1024*i} lds'))
        g[-1] += L(f's_add_u32 m0, {s_mW}, {slot*16384}')
    else:
        g.append(L(f's_add_u32 m0, {s_mW}, {slot*16384}'))
    for i in range(4):
        st = Stream()
        dma_tok[n] = st.vm(f'buffer_load_dwordx4 v{VWD+i}, {sWB if p else sWA}, s{SW0+ns} offen offset:{1024*i} lds')
        g.append(st.l)
    return g

def common_consts(st):
    st(f'''
    s_mov_b32 s18, {WS_SIZE + (65536 if STAMPS else 0)}
    s_mov_b32 s19, 0x20000
    s_mov_b32 s26, 256
    s_mov_b32 s27, 0x20000
    s_mov_b32 s31, 0x20000
    v_cmp_eq_u32 vcc, 0, v0
    v_mov_b32 {v_big}, {BIG}
    v_mov_b32 {v_one}, 1
    v_lshlrev_b32 {v_l16}, 4, {v_lane}
    v_cndmask_b32 {v_flag}, {v_big}, 0, vcc
    ''')

for g in dma_stage(0): S.extend(g)
common_consts(S)
if opt('tlb', 0):
    S(f'''
    v_lshlrev_b32 v140, 20, {v_lane}
    s_mov_b32 s14, {640*3840}
    s_mov_b32 s15, 0x20000
    s_mov_b32 s22, {2048*1280}
    s_mov_b32 s23, 0x20000
    buffer_load_dword v141, v140, {sWS}, 0 offen
    buffer_load_dword v142, v140, {sWB}, 0 offen
    buffer_load_dword v143, v140, {sOUT}, 0 offen
    buffer_load_dword v144, v140, {sX}, 0 offen
    buffer_load_dword v145, v140, {sWA}, 0 offen
    ''')
SK = opt('skick', 7)
if SK:
    S(f's_and_b32 {s_t0}, {s_t}, 1\ns_lshl_b32 {s_t0}, {s_t0}, 21')
    if SK & 1: S(f's_load_dword s3, s[12:13], {s_t0}')
    if SK & 2: S(f's_load_dword s98, s[20:21], {s_t0}')
    if SK & 4: S(f's_and_b32 {s_t1}, {s_t}, 15\ns_min_u32 {s_t1}, {s_t1}, 8\ns_lshl_b32 {s_t1}, {s_t1}, 21\ns_load_dword s53, s[16:17], {s_t1}')
stamp('iss0')
d1 = dma_stage(1)
PRE = opt('pre', 5)
for g in d1[:PRE]: S.extend(g)
pre = Stream()
for n in range(2, 4): rot(pre, n)
pre(f'''
v_lshrrev_b32 {v_t1}, 4, {v_lane}
v_bfe_u32 {v_t2}, {v_lane}, 2, 2
v_lshl_add_u32 {v_t3}, {v_t1}, 3, {v_t2}
v_lshlrev_b32 {v_t3}, 8, {v_t3}
v_bfe_u32 {v_tmp}, {v_lane}, 2, 3
v_lshl_add_u32 {v_t3}, {v_tmp}, 5, {v_t3}
v_and_b32 {v_tmp}, 3, {v_lane}
v_lshl_add_u32 {v_t3}, {v_tmp}, 3, {v_t3}
s_and_b32 {s_t0}, {s_w}, 1
s_lshr_b32 {s_t1}, {s_w}, 1
s_lshl_b32 {s_t2}, {s_t0}, 7
v_xor_b32 v{VWR}, {s_t2}, {v_t3}
v_xor_b32 v{VWR+1}, 32, v{VWR}
v_xor_b32 v{VWR+2}, 64, v{VWR}
v_xor_b32 v{VWR+3}, 96, v{VWR}
v_and_b32 {v_t2}, 15, {v_lane}
v_bfe_u32 {v_t3}, {v_lane}, 1, 3
v_xor_b32 {v_t3}, {v_t3}, {v_t1}
v_lshlrev_b32 {v_t3}, 4, {v_t3}
v_lshl_add_u32 {v_t3}, {v_t2}, 7, {v_t3}
s_lshl_b32 {s_t2}, {s_t1}, 13
s_add_u32 {s_t2}, {s_t2}, {L_X}
v_add_u32 v{VXR}, {s_t2}, {v_t3}
v_xor_b32 v{VXR+1}, 64, v{VXR}
s_lshl_b32 {s_t2}, {s_rb}, 1
s_add_u32 {s_t2}, {s_t2}, {s_t1}
s_lshl_b32 {s_t2}, {s_t2}, 10
v_and_b32 {v_t3}, 1, {v_t1}
v_lshrrev_b32 {v_t1}, 1, {v_t1}
v_lshl_add_u32 {v_t1}, {v_t3}, 1, {v_t1}
v_lshlrev_b32 {v_t1}, 15, {v_t1}
v_lshl_add_u32 {v_t1}, {v_t2}, 4, {v_t1}
v_add_u32 {v_st}, {s_t2}, {v_t1}
s_lshl_b32 {s_stb}, {s_cb}, 1
s_add_u32 {s_stb}, {s_stb}, {s_t0}
s_lshl_b32 {s_stb}, {s_stb}, 18
s_cmp_lt_u32 {s_cb}, 5
s_cselect_b32 {s_scale}, {f32(QSCALE)}, 1.0
s_cselect_b32 {s_tag}, {'0xfffe0000' if QRND else '-2'}, -1
''')
TB = opt('tb', 34); TBH = opt('tbh', 1)
if TB >= 0:
    nl = 20 if TBH else 40
    pre(f'''
    s_mov_b32 s14, {640*3840}
    s_mov_b32 s15, 0x20000
    v_lshrrev_b32 v134, 1, {v_lane}
    v_mul_u32_u24 v134, 3840, v134
    v_and_b32 v135, 1, {v_lane}
    v_lshl_add_u32 v134, v135, 7, v134
    v_cmp_gt_u32 vcc, {nl}, {v_lane}
    s_and_b32 s56, {s_rb}, {15 if TBH else 7}
    s_lshl_b32 s56, s56, 2
    s_add_u32 s56, s56, {s_w}
    v_cndmask_b32 v134, {v_big}, v134, vcc
    s_mul_i32 s56, s56, {nl//2*3840}
    s_lshl_b32 s57, {s_cb}, 8
    s_add_u32 s56, s56, s57
    ''')
    if TBH == 2:
        pre(f'''
        v_lshrrev_b32 v134, 1, {v_lane}
        v_mul_u32_u24 v134, 3840, v134
        v_lshl_add_u32 v134, v135, 7, v134
        s_lshr_b32 s56, {s_t}, 3
        s_lshl_b32 s56, s56, 1
        s_add_u32 s56, s56, {s_t}
        s_bitcmp1_b32 s56, 1
        s_cselect_b32 s58, 0, 40
        v_cmp_gt_u32 vcc, s58, {v_lane}
        s_bfe_u32 s58, s56, 0x10002
        s_lshl_b32 s58, s58, 1
        s_and_b32 s56, s56, 1
        v_cndmask_b32 v134, {v_big}, v134, vcc
        s_add_u32 s56, s56, s58
        s_lshr_b32 s58, {s_rb}, 3
        s_lshl_b32 s58, s58, 2
        s_add_u32 s56, s56, s58
        s_lshl_b32 s56, s56, 2
        s_add_u32 s56, s56, {s_w}
        s_mul_i32 s56, s56, {20*3840}
        s_add_u32 s56, s56, s57
        ''')
    touch = Ins(f'buffer_load_dword v135, v134, {sWB}, s56 offen')
    if TB == 0: pre.l.append(touch)
if opt('wot', 0):
    S.l.insert(2, Ins('s_load_dwordx2 s[56:57], s[0:1], 16')); S.l.insert(2, Ins('s_load_dwordx2 s[58:59], s[0:1], 40'))
    S(f'''
    s_cmp_ge_u32 {s_rb}, 8
    s_cselect_b32 s28, s58, s56
    s_cselect_b32 s29, s59, s57
    s_mov_b32 s30, {640*1280}
    s_and_b32 {s_t0}, {s_rb}, 7
    s_mul_i32 {s_t0}, {s_t0}, 15
    s_add_u32 {s_t0}, {s_t0}, {s_cb}
    s_lshl_b32 {s_t0}, {s_t0}, 2
    s_add_u32 {s_t0}, {s_t0}, {s_w}
    s_mul_i32 {s_t0}, {s_t0}, {14*128}
    v_min_u32 v137, 13, {v_lane}
    v_lshlrev_b32 v137, 7, v137
    buffer_load_dword v136, v137, {sTMP}, {s_t0} offen
    ''')
DSW = opt('dsw', -1)
lds_init = mk(setup_lds)
dsw = [x for x in lds_init if x.kind == 'ds']
pre.l += lds_init if DSW < 0 else [x for x in lds_init if x.kind != 'ds']
npre = len(atomize(pre.l))
for n in range(4, 10): rot(pre, n)
setup2(pre)
pre = atomize(pre.l)
SPLIT = min(npre + opt('split', 40), len(pre))
pre, su_post = pre[:SPLIT], pre[SPLIT:]
if d1[PRE:]: weave(pre, d1[PRE:], opt('pre0', 20), min(len(pre), opt('pre1', 120)))
for g in pre: S.extend(g)
stamp('setup')

CTA = opt('cta', 1)
seq = []
def tilewise(ns, k2):
    ns = list(ns); m = len(ns) - k2
    l = [(n, s_, t, rt) for n in ns for s_ in range(2) for t in (0, 1) for rt in range(4)]
    l += [(n, s_, t, rt) for n in ns[:m] for s_ in range(2) for t in (2, 3) for rt in range(4)]
    for rh in range(2): l += [(n, s_, t, rt) for n in ns[m:] for s_ in range(2) for t in (2, 3) for rt in (2 * rh, 2 * rh + 1)]
    return l
for n in range(20 - CTM):
    if n == 10 - CTA: seq += tilewise(range(n, 10), 0)
    elif 10 - CTA < n < 10: pass
    else: seq += [(n, s_, t, rt) for s_ in range(2) for t in range(4) for rt in range(4)]
seq += tilewise(range(20 - CTM, 20), opt('ct2', 1))
if opt('snake', 1):
    for k in range(0, len(seq), 8):
        if len(set(e[:3] for e in seq[k + 4:k + 8])) == 1: seq[k + 4:k + 8] = seq[k + 4:k + 8][::-1]
NG = len(seq)
def G(name, d): return 2 * opt(name, d)
def xreg(n, s_, rt):
    n %= 10
    return ar(32 * n + 16 * s_ + 4 * rt, 4) if n < 8 else vr(XV + 32 * (n - 8) + 16 * s_ + 4 * rt, 4)
BO = opt('bo', 10)
firstuse = {}; lastuse = {}
for k, e in enumerate(seq): firstuse.setdefault(e[0], k); lastuse[e[0]] = k
BARS = list(range(1, 21 - CTM)) + ([19] if CTM > 2 else [])
def bar_of(n): return max(b for b in [0] + BARS if b <= n)
def bar_gap(n): return firstuse[bar_of(n)] - BO
for n in range(4, 20):
    prev = [m for m in range(n) if WSLOT[m] == WSLOT[n] or (m < 10 and WSLOT[n] == 4 + m % 4)]
    assert WISS[n] in BARS and lastuse[prev[-1]] < bar_gap(WISS[n]), n
frag = []; fidx = []
for k, e in enumerate(seq):
    if k == 0 or seq[k - 1][:3] != e[:3]: frag.append([e[:3], k, k])
    frag[-1][2] = k; fidx.append(len(frag) - 1)
reads = []; xreads = []; xseen = set(); first_reads = []
LEAD = opt('lead', 4)
for j, ((n, s_, t), u0, u1) in enumerate(frag):
    lo = max(frag[j - 4][2] if j >= 4 else -1, bar_gap(n))
    sl_ = WSLOT[n]; buf = WRING + 4 * (j & 3)
    l = [Ins(f'ds_read_b64_tr_b16 {vr(buf+2*u,2)}, v{VWX[t] if sl_ >= 4 else VWR+t} offset:{(sl_%4)*16384+(32*s_+4*u)*256}') for u in range(2)]
    if n < 10 and (n, s_) not in xseen:
        xseen.add((n, s_))
        xl = [Ins(f'ds_read_b128 {xreg(n,s_,rt)}, v{VXR+s_} offset:{(n%4)*16384+rt*2048}') for rt in range(4)]
        if j == 0: first_reads += xl
        else: xreads += [Item(x, max(bar_gap(n), u0 - 22 + 2 * i), u0 - LEAD - 3 + i) for i, x in enumerate(xl)]
    if j < 2: first_reads += l
    elif opt('oneds', 0): reads += [Item(x, lo, max(lo, u0 - LEAD - 1 + i)) for i, x in enumerate(l)]
    else: reads.append(Item(l, lo, max(lo, u0 - LEAD)))
mf = []
for k, (n, s_, t, rt) in enumerate(seq):
    acc = vr(ACC[n // 10] + 8 * (4 * (t >> 1) + rt) + 4 * (t & 1), 4)
    mf.append(Ins(f'v_mfma_f32_16x16x32_bf16 {acc}, {vr(WRING+4*(fidx[k]&3),4)}, {xreg(n,s_,rt)}, {"0" if n % 10 == 0 and s_ == 0 else acc}'))
done = {}
for k, (n, s_, t, rt) in enumerate(seq): done[(n // 10, 2 * (t >> 1) + (rt >> 1))] = k
def epi1_tile(p, T):
    g = []
    if T % 2 == 0: g.append(L(f's_add_u32 {s_e0}, {s_stb}, {QKV[p]+2*T*GRP}'))
    for u in range(2):
        b = ACC[p] + 16 * T + 8 * u
        for i in range(8): g.append(L(f'v_mul_f32 v{b+i}, {s_scale}, v{b+i}'))
        for i in range(4): g.append(L(f'v_cvt_pk_bf16_f32 v{b+i}, v{b+2*i}, v{b+2*i+1}'))
        for i in (0, 2): g.append(L(f'v_and_b32 v{b+i}, {s_tag}, v{b+i}'))
    for u in range(2):
        b = ACC[p] + 16 * T + 8 * u
        for i in (1, 0): g.append(L(f'v_permlane16_swap_b32 v{b+i}, v{b+2+i}'))
        st = Stream(); tok = st.vm(f'buffer_store_dwordx4 {vr(b,4)}, {v_st}, {sWS}, {s_e0} offen offset:{256*(2*(T&1)+u)} sc1')
        g.append(st.l)
    return g, tok
assert not QRND
COST['vm'] = 2
cap = [2 - (1 if k + 1 < NG and fidx[k + 1] != fidx[k] else 0) for k in range(NG)]
fixed = {}
FLAGA = opt('flagA', 13)
for n in BARS:
    fixed[bar_gap(n)] = [('BAR', n)]; cap[bar_gap(n)] -= 2 + (2 if n == FLAGA else 0)
dmas = []
def split_salu(l):
    out = []
    for g in l:
        if len(g) > 1 and g[0].kind == 'vm': out += [g[:1], g[1:]]
        else: out.append(g)
    return out
for b in range(0, 17):
    l = split_salu([g for n in range(2, 20) if WISS[n] == b for g in dma_stage(n)])
    if l:
        lo = max(bar_gap(b), 0)
        dmas += paced(l, lo, lo + (G('dsp', 14) if len(l) > 5 else 14), 5)
KV0 = G('kv0', 262); KV1 = G('kv1', 290); KVB = G('kvb', 312)
assert KV0 > bar_gap(16) + 20
kv, tokKV = kvq_loads()
dmas += [Item(mk(poll_check, v_pres, v_p1, sWS, s_F1A) + [('ST', 'pc1')], KV0 - 1, KV0 - 1)] + paced(kv, KV0, KV1, 4)
epi = []
EA1 = G('epiAend', 180); EA0 = done[(0, 0)] + 4
for T in range(4):
    g, tokA = epi1_tile(0, T)
    lo = done[(0, T)] + 4
    it = asap(g, lo, lo + 1)
    for i, x in enumerate(it): x.hi = max(lo, EA0 + (len(g) * T + i) * (EA1 - EA0) // (4 * len(g))) + 2
    epi += it
for T in range(3):
    g, tokB = epi1_tile(1, T)
    lo = done[(1, T)] + 4
    it = asap(g, lo, lo + 1)
    e0 = done[(1, 0)] + 4; e1 = done[(1, 2)] + 4
    for i, x in enumerate(it): x.hi = max(lo, e0 + (len(g) * T + i) * (e1 - e0) // (2 * len(g))) + 1 if T < 2 else NG
    epi += it
NA = opt('na', 20); NWO1 = max(NA, opt('nwo1', 0)); WT = 0
misc = []
TL = opt('tl', 0)
if TL:
    tl_ = L(f'''
    v_lshlrev_b32 v140, 21, {v_lane}
    buffer_load_dword v141, v140, {sWS}, 0 offen
    buffer_load_dword v143, v140, {sOUT}, 0 offen
    ''')
    if TL < TB: misc += paced(tl_, 2 * TL, 2 * TL + 6, 3)
if TB > 0: misc.append(Item(touch, 2 * TB, 2 * TB + 4))
if TL and TL >= TB: misc += paced(tl_, 2 * TL, 2 * TL + 6, 3)
SU1 = G('su1', 44); SU0 = G('su0', 0); assert SU0 == 0 or opt('split', 40) >= 24
sus = asap(su_post, SU0, SU1) if su_post else []
misc += [Item(mk(poll_issue, v_pres, v_zero, sDBG, '0'), max(SU1 + 5, 220), max(SU1 + 9, 224)), Item(mk(poll_check, v_pres, v_zero, sDBG, '0'), 284, 290)]
misc += paced(setup_late(), 290, 298, 6)
misc += paced([Ins(f'v_add_u32 v{VWX[t]}, {L_X}, v{VWR+t}') for t in range(4)], 300, 308, 6)
P1I = KV0 - G('p1d', 20)
wl = []
if NA:
    WO0 = bar_gap(FLAGA) + 2
    misc += [Item(mk(poll_issue, v_pres, v_p2, sWS, s_F1A), G('p2i', 184), G('p2i', 184) + 4), Item(mk(poll_check, v_pres, v_p2, sWS, s_F1A), WO0 - 1, WO0 - 1)]
    wl = paced(wo_loads(0, NA), WO0, G('wo1', 290), 5)
misc += [x for x in wl if x.lo < P1I] + [Item(mk(poll_issue, v_pres, v_p1, sWS, s_F1A), P1I, P1I + 4)] + [x for x in wl if x.lo >= P1I]
if NWO1 > NA: misc += paced(wo_loads(NA, NWO1), KV1, NG - 4, 4)
misc2 = (paced(dsw, 2 * DSW, 2 * DSW + G('dswn', 3), 0) if DSW >= 0 else []) + paced(mask_far(), 460, 490, 8) + paced(zero_pads(), lastuse[17] + 1, lastuse[17] + 12, 4)
st = Stream(); st.wait(tokKV); st('s_barrier'); fixed[KVB] = st.l + [('ST', 'kvb')]; cap[KVB] -= 2
misc2 += paced(att_pre(), KVB, NG - 4, 2)
rep_ = []
gaps, over = schedule(NG, cap, [reads, xreads, dmas, epi, misc, misc2, sus], rep_, opt('oneds', 0))
if '--sched' in ARGS:
    for n in range(20): print(n, ' '.join('%2d' % x for x in rep_[32 * n:32 * n + 32]))
last_def = {}; last_use = {}
for k, m in enumerate(mf):
    for r in m.defs: last_def[r] = k
    for r in m.srcab: last_use[r] = k
lastx = max(k for k, g in enumerate(gaps) for it in g if not isinstance(it, tuple) and it.mn == 'ds_read_b128' and it.uses & {'v14', 'v15'})
assert lastx < 300
for k, g in enumerate(gaps):
    for it in g:
        if isinstance(it, tuple): continue
        if it.kind in ('valu', 'vm') or (it.kind == 'ds' and k > 400):
            for r in it.uses | it.defs: assert last_def.get(r, -1) <= k or k < 200, (k, it.text)
            if 'tr_b16 v' not in it.text:
                for r in it.defs: assert last_use.get(r, -1) <= k, (k, it.text)

S.wait(dma_tok[0])
if opt('waitall', 0): S('s_waitcnt vmcnt(0)')
S('s_barrier')
stamp('first')
S.l += first_reads
for k in range(NG):
    if k == 0 or fidx[k - 1] != fidx[k]: S.use(set().union(*[mf[j].srcab for j in range(k, frag[fidx[k]][2] + 1)]))
    S.l.append(mf[k])
    if opt('slow', 0) and G('slow0', 0) <= k < G('slow1', 160): S('s_nop %d' % opt('slow', 0))
    for it in fixed.get(k, []) + mem_first(gaps[k]):
        if isinstance(it, tuple) and it[0] == 'ST':
            if FINE: stamp(it[1])
        elif isinstance(it, tuple):
            n2 = it[1]
            tk = [dma_tok[m] for m in range(20) if bar_of(m) == n2]
            if n2 == FLAGA: tk.append(tokA)
            S.wait(*tk)
            S('s_barrier')
            if n2 == FLAGA: set_flag(S, v_flag, s_f1, 0)
            if FINE or '--clk' in ARGS or n2 in (10, 14, 16): stamp('b%d' % n2)
        else:
            S.l.append(it)
stamp('p1end')
S(qka(0)); S(qkb(0))
mrest = mask_rest()
S.l += mrest[:8]
g, tokB = epi1_tile(1, 3)
for x in g: S.l += x
S('L_join:')
stamp('join')
nst_join = nstamp[0] - 1

N = len(steps)
groups = []
for n in range(N):
    for g in range(4):
        st = Stream()
        if g == 0 and n + 1 < N: st(qka(n + 1))
        if g == 1 and n > 0: st(pv(n - 1, 1))
        if g == 2 and n + 1 < N: st(qkb(n + 1))
        if g == 3: st(pv(n, 0))
        if g > 0 or n > 0:
            for x in cvts((g - 1) & 3): st(x)
        for x in exps(n, g): st(x)
        groups.append(st.l)
first = {}
for n, (j, q) in enumerate(steps): first.setdefault(j, n)
last = {j: n for n, (j, q) in enumerate(steps)}
for j in range(1, 10):
    base = 4 * (last[j-2] + 1) + 1 if j >= 2 else 0
    for kk in range(2):
        for u in range(2): groups[base + kk].append(v_read(j, kk, u))
    if j + 1 < 10:
        groups[base + 3].append(k0_read(j + 1))
        if (j + 1) % 2 == 0: groups[base + 3].append(k1_read(j + 1))
    need = set(x for kk in range(2) for u in range(2) for x in v_read(j, kk, u).defs)
    if j + 1 < 10: need |= k0_read(j + 1).defs | (k1_read(j + 1).defs if (j + 1) % 2 == 0 else set())
    st = Stream(); st.use(need); groups[4 * first[j] + 3][0:0] = st.l
weave(groups, mrest[8:], 4, 36)
FB = opt('fb', 4)
st = Stream(); st.wait(tokB); st('s_barrier'); set_flag(st, v_flag, s_f1, 0); groups[4 * FB - 1] += st.l
groups[0] += L(f's_add_u32 {s_f1}, {s_f1}, 32768')
P3S = opt('p3s', 11); P3D = opt('p3d', 2)
NWO2 = opt('nwo2', 44)
NWOM = min(NWO2, opt('nwom', 44))
if NWOM > NWO1: weave(groups, wo_loads(NWO1, NWOM), opt('wo0g', 1), 4 * (P3S - P3D) - 1)
if NWO2 > NWOM: weave(groups, wo_loads(NWOM, NWO2), 4 * P3S + opt('bln', 12), 72)
groups[4 * (P3S - P3D) - 1] += mk(poll_issue, v_pres, v_p3, sWS, s_F1B)
groups[4 * P3S - 2] += L(f'''
s_add_u32 s60, {s_bF}, {QKV[1]}
s_add_u32 s61, {s_bS}, {QKV[1]}
s_add_u32 s62, {s_bF}, {QKV[1] + 80*GRP - 512}
s_add_u32 s63, {s_bS}, {QKV[1] + 80*GRP - 512}
''')
groups[4 * P3S - 3] += L(f'''
s_add_u32 s64, {s_bF}, {QKV[1] + 160*GRP}
s_add_u32 s65, {s_bF}, {QKV[1] + 161*GRP - 1088}
s_add_u32 s66, {s_bS}, {QKV[1] + 160*GRP - 2176}
s_mov_b32 m0, {s_mV}
''')
groups[4 * P3S - 1] += mk(poll_check, v_pres, v_p3, sWS, s_F1B)
bl = L(f'''
buffer_load_dword {v_g[0]}, {v_gad}, {sWS}, {s_gb} offen sc1
buffer_load_dword {v_g[1]}, {v_gad}, {sWS}, {s_gb} offen offset:128 sc1
buffer_load_dwordx4 {vr(QB0,4)}, {v_q4}, {sWS}, s60 offen sc1
buffer_load_dwordx4 {vr(KB0,4)}, {v_kb0}, {sWS}, s62 offen sc1
buffer_load_dwordx2 {vr(QB1,2)}, {v_qe}, {sWS}, s61 offen sc1
buffer_load_dwordx2 {vr(QB1+2,2)}, {v_qo}, {sWS}, s61 offen sc1
buffer_load_dwordx2 {ar(AKB1,2)}, {v_kb1}, {sWS}, s63 offen sc1
buffer_load_dwordx4 {vr(KB0+4,4)}, {v_q4}, {sWS}, s62 offen offset:512 sc1
buffer_load_dwordx4 {vr(QB0+4,4)}, {v_q4}, {sWS}, s60 offen offset:512 sc1
buffer_load_dwordx2 {vr(QB1+4,2)}, {v_qo}, {sWS}, s61 offen offset:512 sc1
buffer_load_dwordx4 {vr(KB0+8,4)}, {v_q4}, {sWS}, s62 offen offset:1024 sc1
buffer_load_dwordx2 {ar(AKB1+4,2)}, {v_qo}, {sWS}, s63 offen offset:1024 sc1
buffer_load_dwordx4 {v_l16}, {sWS}, s64 offen sc1 lds
buffer_load_dwordx4 {v_l16}, {sWS}, s65 offen offset:1088 sc1 lds
buffer_load_dwordx4 {v_l16}, {sWS}, s66 offen offset:2176 sc1 lds
''')
st = Stream(); st(f's_add_u32 m0, {s_mV}, 3264\nv_mov_b32 v{QB1+6}, 0\nv_mov_b32 v{QB1+7}, 0')
tokVB = st.vm(f'buffer_load_dwordx4 {v_halo}, {sWS}, 0 offen sc1 lds'); bl.append(st.l)
weave(groups, bl, 4 * P3S, 4 * P3S + opt('bln', 12))
for k, g in enumerate(groups):
    S.l += mem_first(g)
    if FINE and k % 8 == 7: stamp('a%d' % (k // 4))
for x in cvts(3): S(x)
S('s_nop 1')
S(pv(N - 1, 1))
stamp('attA')
S(f'''
s_lshl_b32 {s_t0}, {s_R}, 10
s_mul_i32 {s_t1}, {s_w}, {20*GRP}
s_add_u32 s{SX0}, {s_t0}, {s_t1}
s_mov_b32 {s_tag}, 0xfffe0000
''')
for s_ in range(1, 5): S(f's_add_u32 s{SX0+s_}, s{SX0}, {4*s_*GRP}')
for s_ in range(2): S(f's_add_u32 s{SX0+5+s_}, s{SX0}, {QKV[1] + 4*s_*GRP}')
S(f'''
s_mov_b32 {s_t1}, {hex(64 << 23)}
v_subrev_u32 {v_t1}, {hex(95 << 23)}, v{OA[0]+12}
v_subrev_u32 {v_t2}, {hex(95 << 23)}, v{OA[1]+12}
v_max_u32 {v_t1}, {v_t1}, {v_t2}
v_cmp_le_u32 vcc, {s_t1}, {v_t1}
s_cbranch_vccnz L_truemax
L_Aok:
''')
FBK = Stream()
FBK('@reset')
FBK(f'''
L_truemax:
s_lshr_b32 {s_t1}, {s_q0}, 5
s_sub_u32 {s_t1}, 8, {s_t1}
s_nop 7
''')
def fb_qk(j, q):
    c = vr(M_FAR, 16) if j == q else vr(M_DIAG, 16) if j == 8 + q else '0'
    FBK(f'''
    ds_read_b128 {ar(AK0,4)}, {v_k0} offset:{512*j}
    ds_read_b64 {ar(AK1,2)}, {v_k1} offset:{512*(j & ~1)}
    {mm} {vr(SB[0],16)}, {ar(AK0,4)}, {vr(QA0+4*q,4)}, {c}
    {mm} {vr(SB[0],16)}, {ar(AK1,4)}, {vr(QA1+4*q+2*(j&1),4)}, {vr(SB[0],16)}
    ''')
for q in range(2):
    FBK(f'v_mov_b32 {v_t3}, {NEGINF}')
    for i in range(16): FBK(f'v_mov_b32 v{OA[q]+i}, 0')
    for ps in range(2):
        for j in range(q, q + 9):
            l = lab('skip')
            FBK(f's_cmp_gt_i32 {s_t1}, {j}\ns_cbranch_scc1 {l}')
            if ps == 1:
                for kk in range(2):
                    for u in range(2): FBK(f'ds_read_b64_tr_b16 {ar(AV+4*kk+2*u,2)}, {v_v} offset:{512*j+256*kk+128*u}')
            fb_qk(j, q)
            if ps == 0:
                for i in range(0, 16, 2): FBK(f'v_max3_f32 {v_t3}, {v_t3}, v{SB[0]+i}, v{SB[0]+i+1}')
            else:
                for i in range(16): FBK(f'v_sub_f32 v{SB[0]+i}, v{SB[0]+i}, {v_t3}')
                for i in range(16): FBK(f'v_exp_f32 v{SB[0]+i}, v{SB[0]+i}')
                for i in range(8): FBK(f'v_cvt_pk_bf16_f32 v{P0+i}, v{SB[0]+2*i}, v{SB[0]+2*i+1}')
                for kk in range(2): FBK(f'{mm} {vr(OA[q],16)}, {ar(AV+4*kk,4)}, {vr(P0+4*kk,4)}, {vr(OA[q],16)}')
                FBK('s_nop 7')
            FBK(l + ':')
        if ps == 0:
            FBK(f'''
            s_nop 1
            v_mov_b32 {v_t4}, {v_t3}
            v_permlane32_swap_b32 {v_t3}, {v_t4}
            v_max_f32 {v_t3}, {v_t3}, {v_t4}
            ''')
FBK('s_nop 15\ns_branch L_Aok')

OSC = '' if opt('local', 0) else ' sc1'
def epi2(br, q, o, pk=False):
    st = Stream()
    st(f'v_rcp_f32 {v_t1}, v{o+12}')
    if br: st(f'v_sub_f32 {v_g[q]}, 1.0, {v_g[q]}')
    st(f'v_mul_f32 {v_t1}, {v_g[q]}, {v_t1}')
    if pk:
        for i in range(0, 12, 2): st(f'v_pk_mul_f32 {vr(o+i,2)}, {vr(o+i,2)}, {vr(22,2)} op_sel_hi:[1,0]')
    else:
        for i in range(12): st(f'v_mul_f32 v{o+i}, {v_t1}, v{o+i}')
    for i in (0, 4, 8): st(f'v_and_or_b32 v{o+i}, v{o+i}, {s_tag}, {v_o4}')
    for i in range(6): st(f'v_cvt_pk_bf16_f32 v{o+i}, v{o+2*i}, v{o+2*i+1}')
    st(f'buffer_store_dwordx4 {vr(o,4)}, {v_q4}, {sWS}, {"s60" if br else s_bF} offen offset:{512*q} sc1')
    tok = st.vm(f'buffer_store_dwordx2 {vr(o+4,2)}, {v_qe}, {sWS}, {"s61" if br else s_bS} offen offset:{512*q} sc1')
    return st.l, tok
qkB = [[Ins(x)] for x in (
    f'{mm} {vr(SP[0],16)}, {vr(KB0,4)}, {vr(QB0,4)}, {vr(MB_PREV0,16)}',
    f'{mm} {vr(SP[0],16)}, {ar(AKB1,4)}, {vr(QB1,4)}, {vr(SP[0],16)}',
    f'{mm} {vr(SD[0],16)}, {vr(KB0+4,4)}, {vr(QB0,4)}, {vr(MB_DIAG,16)}',
    f'{mm} {vr(SD[0],16)}, {ar(AKB1,4)}, {vr(QB1+2,4)}, {vr(SD[0],16)}',
    f'{mm} {vr(SP[1],16)}, {vr(KB0+4,4)}, {vr(QB0+4,4)}, {vr(MB_PREV,16)}',
    f'{mm} {vr(SP[1],16)}, {ar(AKB1,4)}, {vr(QB1+4,4)}, {vr(SP[1],16)}',
    f'{mm} {vr(SD[1],16)}, {vr(KB0+8,4)}, {vr(QB0+4,4)}, {vr(MB_DIAG,16)}',
    f'{mm} {vr(SD[1],16)}, {ar(AKB1+4,4)}, {vr(QB1+4,4)}, {vr(SD[1],16)}')]
st = Stream(); st.wait(tokVB)
for u in range(2): st(f'ds_read_b64_tr_b16 {ar(VB+2*u,2)}, {v_vh} offset:{128*u}')
for t in range(2):
    for kk in range(2):
        for u in range(2): st(f'ds_read_b64_tr_b16 {ar(VB+4+8*t+4*kk+2*u,2)}, {v_vb} offset:{512*t+256*kk+128*u}')
vbr = st.l
e0, _ = epi2(0, 0, OA[0], True); e1, tokOA = epi2(0, 1, OA[1], True)
S.l += e0 + e1
st2('epiA')
adr = Stream()
adr(f'''
v_lshrrev_b32 v14, 4, {v_lane}
v_and_b32 v15, 15, {v_lane}
v_lshlrev_b32 v5, 15, v14
v_lshl_add_u32 v5, v15, 4, v5
''')
for rho in range(4):
    adr(f'''
    s_add_u32 {s_t0}, {s_w}, {rho}
    s_and_b32 {s_t0}, {s_t0}, 3
    s_lshl_b32 s{56+rho}, {s_t0}, 8
    v_add_u32 v{V4+rho}, s{56+rho}, v5
    ''')
adr2 = Stream()
for rho in range(4):
    adr2(f's_mul_i32 {s_t1}, s{56+rho}, 60')
    if rho: adr2(f's_add_u32 {s_t1}, {s_t1}, {(rho-1)*5120}\nv_add_u32 v{VRW+rho-1}, {s_t1}, {v_l16}')
    else: adr2(f'v_add_u32 {v_rr}, {s_t1}, {v_l16}')
adr2(f'''
v_mul_u32_u24 v15, 1280, v15
v_mad_u32_u24 v15, v14, 40, v15
s_lshl_b32 {s_t0}, {s_R}, 2
s_add_u32 {s_t0}, {s_t0}, {s_w}
s_mul_i32 {s_t0}, {s_t0}, {16*1280}
s_mul_i32 {s_t1}, {s_C}, 160
s_add_u32 {s_t0}, {s_t0}, {s_t1}
v_add_u32 {v_out}, {s_t0}, v15
''')
for s_ in range(2, 5): adr2(f's_add_u32 s{SX0+5+s_}, s{SX0}, {QKV[1] + 4*s_*GRP}')
weave(qkB, vbr, 2, 6)
NWOB = max(NWO2, opt('nwob', 44))
if NWOB > NWO2: weave(qkB, wo_loads(NWO2, NWOB), 0, 6)
weave(qkB, adr.l, 0, 8)
for g in qkB[:6]: S.l += g
st2('qkB')
def softB(q):
    st = Stream()
    b = SP[q] + 8
    assert SD[q] == SP[q] + 16
    st(f'v_max3_f32 {v_t3}, v{b}, v{b+1}, v{b+2}')
    st(f'v_max3_f32 {v_t4}, v{b+3}, v{b+4}, v{b+5}')
    for i in range(6, 22, 4):
        st(f'v_max3_f32 {v_t3}, {v_t3}, v{b+i}, v{b+i+1}')
        st(f'v_max3_f32 {v_t4}, {v_t4}, v{b+i+2}, v{b+i+3}')
    st(f'v_max3_f32 {v_t3}, {v_t3}, v{b+22}, v{b+23}')
    st(f'v_max_f32 {v_t3}, {v_t3}, {v_t4}')
    st(f'v_mov_b32 {v_t4}, {v_t3}')
    st(f'v_permlane32_swap_b32 {v_t3}, {v_t4}')
    st(f'v_max_f32 {v_t3}, {v_t3}, {v_t4}')
    for i in range(0, 24, 2): st(f'v_pk_add_f32 {vr(b+i,2)}, {vr(b+i,2)}, {vr(24,2)} op_sel_hi:[1,0] neg_lo:[0,1] neg_hi:[0,1]')
    vop = [VB if q == 0 else VB + 8, VB + 4 + 8 * q, VB + 8 + 8 * q]
    for c in range(3):
        for i in range(8): st(f'v_exp_f32 v{b+8*c+i}, v{b+8*c+i}')
        if c: st(f'{mm} {vr(OB[q],16)}, {ar(vop[c-1],4)}, {vr(b+8*(c-1),4)}, {"0" if c == 1 else vr(OB[q],16)}')
        for i in range(4): st(f'v_cvt_pk_bf16_f32 v{b+8*c+i}, v{b+8*c+2*i}, v{b+8*c+2*i+1}')
    return st.l, Ins(f'{mm} {vr(OB[q],16)}, {ar(vop[2],4)}, {vr(b+16,4)}, {vr(OB[q],16)}')
l0, m0_ = softB(0); l1, m1_ = softB(1)
lb = l0[:5] + qkB[6] + l0[5:10] + qkB[7] + l0[10:] + l1[:2] + [m0_] + l1[2:]
def o_load(br, s_, rho):
    b = OF[br][s_] + 4 * rho
    return L(f'buffer_load_dwordx4 {vr(b,4)}, v{V4+rho}, {sWS}, s{SX0+5*br+s_} offen sc1')
order = (1, 2, 3, 0)
ogrp = [[(0, s_, rho) for rho in range(4)] for s_ in range(5)] + [[(1, s_, rho) for s_ in range(5)] for rho in order]
ol = [x for g in ogrp for e in g for x in o_load(*e)]
e0, _ = epi2(1, 0, OB[0]); e1, tokOB = epi2(1, 1, OB[1], True)
lb += e0[:2] + [m1_] + e0[2:] + e1
NO0 = opt('no0', 8); NOE = opt('noe', 4); OE = opt('oe', 1)
if NOE:
    k_ = [i for i, x in enumerate(lb) if x.kind == 'mfma'][-OE]
    lb[k_ + 1:k_ + 1] = ol[:NOE]
BST = opt('bst', 1)
bst = []
if BST:
    bst = [x for x in lb if x.kind == 'vm' and 'store' in x.mn]
    lb = [x for x in lb if x not in bst]
    if BST > 1:
        lb += L(f'v_mov_b32 v6, {v_q4}\nv_mov_b32 v7, {v_qe}')
        bst = [Ins(x.text.replace(v_q4 + ',', 'v6,').replace(v_qe + ',', 'v7,')) for x in bst]
S.l += lb
stamp('epiB')
S.l += ol[NOE:NO0]
if BST == 1: S.l += bst
S.l += adr2.l
NWO4 = max(NWOB, opt('nwo4', 44))
for g in wo_loads(NWOB, NWO4): S.l += g
st2('oiss')

def o_check(i):
    regs = [OF[br][s_] + 4 * rho + j for br, s_, rho in ogrp[i] for j in (0, 2)]
    def tree():
        st = Stream()
        for k in range(0, len(regs), 2): st(f'v_bitop3_b32 v1, {"v1" if k else "1"}, v{regs[k]}, v{regs[k+1]} bitop3:0x80')
        st('v_cmp_eq_u32 vcc, 0, v1')
        return st.l
    l = lab('again'); b = lab('fresh')
    tail('@reset')
    tail(f'{l}:\ns_mov_b32 {s_cnt}, 0\n{l}_a:')
    for e in ogrp[i]: tail.l += o_load(*e)
    tail(f's_add_u32 {s_cnt}, {s_cnt}, 1')
    if STAMPS: tail(f'v_writelane_b32 v0, {s_cnt}, {60 + (i >= 5)}')
    tail('s_waitcnt vmcnt(0)')
    tail.l += tree()
    tail(f's_cbranch_vccz {b}\ns_cmp_lt_u32 {s_cnt}, 0x40000\ns_cbranch_scc1 {l}_a\ns_branch {b}')
    t = tree()
    return t[:-1] + [t[-1:] + L(f's_cbranch_vccnz {l}\n{b}:')]
def mf3(br, s_, rho, ct):
    acc = vr(AC3 + 20 * rho + 4 * ct, 4)
    return [Ins(f'v_mfma_f32_16x16x32_bf16 {acc}, {ar(100*br+20*s_+4*ct,4)}, {vr(OF[br][s_]+4*rho,4)}, {"0" if br == 0 and s_ == 0 else acc}')]
sl = [mf3(*e, ct) for g in ogrp for e in g for ct in range(5)]
PB0 = opt('pb0', 36); PB1 = opt('pb1', 55)
if NO0 < 20: weave(sl, ol[NO0:20], 0, PB0)
if BST > 1: weave(sl, bst, BST, BST + 8)
if NWO4 < 50:
    S(f'v_mov_b32 v15, {v_l16}')
    weave(sl, wo_loads(NWO4, 50, 'v15'), PB0, PB1)
weave(sl, ol[20:], PB1, opt('no1', 140))
for it in o_check(0): S.l += it if isinstance(it, list) else [it]
stamp('poll4')
gstart = [20 * i for i in range(5)] + [100 + 25 * i for i in range(4)]
for i in range(1, 9): weave(sl, o_check(i), gstart[i] - opt('chk', 6), gstart[i])
for k, g in enumerate(sl):
    for it in g[1:]:
        if it.kind == 'vm': assert not any(it.defs & x.uses for j in range(k + 1) for x in sl[j] if x.kind != 'vm'), it.text
for i, rho in enumerate((1, 2, 3)):
    wr = [Ins(f'ds_write_b128 v{VRW+rho-1}, {vr(AC3+20*rho+4*ct,4)} offset:{1024*ct}') for ct in range(5)]
    lo = 125 + 25 * i + 3
    weave(sl, wr, lo, lo + (15 if i < 2 else 5))
sl[189] += L('s_waitcnt lgkmcnt(0)\ns_barrier')
rd = [Ins(f'ds_read_b128 {vr(RED+20*k+4*ct,4)}, {v_rr} offset:{5120*k+1024*ct}') for ct in range(5) for k in range(3)]
weave(sl, rd, 190, 200)
for k, g in enumerate(sl):
    S.l += mem_first(g)
    if k == 99: stamp('mf3A')
    elif k in (0, 19, 39, 59, 79, 124, 149, 174, 188, 189): st2('m%d' % k)
stamp('mf3')
for i in range(0, 20, 2):
    S(f'v_pk_add_f32 {vr(RED+i,2)}, {vr(RED+i,2)}, {vr(RED+20+i,2)}')
    S(f'v_pk_add_f32 {vr(AC3+i,2)}, {vr(AC3+i,2)}, {vr(RED+40+i,2)}')
for i in range(0, 20, 2):
    S(f'v_pk_add_f32 {vr(AC3+i,2)}, {vr(AC3+i,2)}, {vr(RED+i,2)}')
for i in range(10):
    S(f'v_cvt_pk_bf16_f32 v{AC3+i}, v{AC3+2*i}, v{AC3+2*i+1}')
S(f'''
buffer_store_dwordx4 {vr(AC3,4)}, {v_out}, {sOUT}, 0 offen
buffer_store_dwordx4 {vr(AC3+4,4)}, {v_out}, {sOUT}, 0 offen offset:16
buffer_store_dwordx2 {vr(AC3+8,2)}, {v_out}, {sOUT}, 0 offen offset:32
''')
if AMP:
    S('s_waitcnt vmcnt(0)')
    stamp('end')
    S(f'''
    s_cmp_lg_u32 s2, {opt('ampwg', 9)}
    s_cbranch_scc1 L_end
    s_memrealtime s[84:85]
    s_waitcnt lgkmcnt(0)
    s_sub_u32 s80, s82, s80
    s_lshl_b32 s80, s80, 2
    s_min_u32 s80, s80, 100000
    {('s_mov_b32 s80, %d' % opt('ampc', 0)) if opt('ampc', 0) else ''}
    L_amp:
    s_memrealtime s[86:87]
    s_waitcnt lgkmcnt(0)
    s_sub_u32 s86, s86, s84
    s_cmp_lt_u32 s86, s80
    s_cbranch_scc1 L_amp
    ''')
if STAMPS:
    stamp('red')
    S('s_waitcnt vmcnt(0)')
    stamp('end')
    S(f'''
    s_waitcnt lgkmcnt(0)
    s_cmp_lg_u32 {s_w}, 0
    s_cbranch_scc1 L_end
    v_writelane_b32 v0, s{ST0+2*((nstamp[0]-1)&1)}, {nstamp[0]-1}
    s_lshl_b32 {s_t0}, s2, 8
    s_add_u32 {s_t0}, {s_t0}, {STAMP_OFF}
    v_mbcnt_lo_u32_b32 v3, -1, 0
    v_mbcnt_hi_u32_b32 v3, -1, v3
    v_lshlrev_b32 v3, 2, v3
    buffer_store_dword v0, v3, {sWS}, {s_t0} offen
    ''')
    assert nstamp[0] <= 56, nstamp[0]
    open(OUT + '.stamps', 'w').write(' '.join(n or str(i) for i, n in enumerate(stamp_names)))
S('s_endpgm')

T = Stream()
nstamp[0] = 1
T('@reset')
T(f'''
L_spare:
s_waitcnt lgkmcnt(0)
s_load_dwordx2 s[56:57], s[0:1], 16
s_load_dwordx2 s[58:59], s[0:1], 40
s_load_dwordx2 s[8:9], s[0:1], 48
s_mov_b32 s30, {640*1280}
s_mov_b32 s10, 1280
''')
common_consts(T)
T(f'''
v_mov_b32 v64, 0
v_mov_b32 v65, 0
v_mov_b32 v66, 0
v_mov_b32 v67, 0
v_lshlrev_b32 {v_t1}, 4, v0
s_lshl_b32 {s_t2}, {s_rb}, 12
s_add_u32 {s_t2}, {s_t2}, {FLG}
''')
tokz = T.vm(f'buffer_store_dwordx4 v[64:67], {v_t1}, {sWS}, {s_t2} offen sc1')
def handshake():
    T.wait(tokz)
    T(f'''
    s_barrier
    s_lshl_b32 {s_t1}, {s_rb}, 2
    buffer_store_dword {v_one}, {v_flag}, {sDBG}, {s_t1} offen sc1
    ''')
STB = opt('stb', 0)
if STB:
    T(f'''
    s_mov_b32 s14, {640*3840}
    s_mov_b32 s15, 0x20000
    s_lshl_b32 {s_t0}, {s_rb}, 2
    s_add_u32 {s_t0}, {s_t0}, {s_w}
    s_mul_i32 {s_t0}, {s_t0}, {300*128}
    v_min_u32 {v_t1}, 59, {v_lane}
    v_lshlrev_b32 {v_t1}, 7, {v_t1}
    ''')
    for i in range(5):
        T(f'buffer_load_dword v{68+i}, {v_t1}, {sWB}, {s_t0} offen\ns_add_u32 {s_t0}, {s_t0}, {60*128}')
        if i == 2: handshake()
T(f'''
s_and_b32 {s_e0}, {s_rb}, 1
s_lshl_b32 {s_e0}, {s_e0}, 2
s_add_u32 {s_e0}, {s_e0}, {s_w}
s_bfe_u32 {s_e1}, {s_rb}, 0x20001
s_mul_i32 {s_t2}, {s_e0}, 160
s_mul_i32 {s_t1}, {s_e1}, {160*1280}
s_add_u32 {s_t2}, {s_t2}, {s_t1}
s_mov_b32 {s_t0}, {(1<<32)//10+1}
''')
for i in range(5):
    T(f'''
    v_add_u32 {v_t1}, {64*i}, {v_lane}
    v_mul_hi_u32 {v_t2}, {v_t1}, {s_t0}
    v_mul_u32_u24 {v_t3}, 10, {v_t2}
    v_sub_u32 {v_t1}, {v_t1}, {v_t3}
    v_mul_u32_u24 {v_t2}, 1280, {v_t2}
    v_lshl_add_u32 {v_t2}, {v_t1}, 4, {v_t2}
    v_add_u32 v{2+i}, {s_t2}, {v_t2}
    ''')
T(f'''
s_mul_i32 {s_mW}, {s_w}, 25600
s_waitcnt lgkmcnt(0)
s_cmp_ge_u32 {s_rb}, 8
s_cselect_b32 s28, s58, s56
s_cselect_b32 s29, s59, s57
''')
wtok = {}
def wo_dma(b):
    T(f's_mov_b32 {s_t3}, {b*32*1280}')
    for i in range(5):
        T(f's_add_u32 m0, {s_mW}, {1024*(5*b+i)}')
        wtok[5 * b + i] = T.vm(f'buffer_load_dwordx4 v{2+i}, {sTMP}, {s_t3} offen lds')
wo_dma(0); wo_dma(1)
T(f'''
v_lshrrev_b32 {v_t1}, 4, {v_lane}
v_bfe_u32 {v_t2}, {v_lane}, 2, 2
v_and_b32 {v_t3}, 3, {v_lane}
v_mul_u32_u24 {v_t3}, 40, {v_t3}
v_add_u32 {v_t3}, {s_mW}, {v_t3}
v_lshl_add_u32 {v_t2}, {v_t1}, 3, {v_t2}
v_mul_u32_u24 {v_t2}, 160, {v_t2}
v_add_u32 v7, {v_t2}, {v_t3}
s_lshr_b32 {s_t0}, {s_rb}, 3
s_lshl_b32 {s_t0}, {s_t0}, 3
s_add_u32 {s_t0}, {s_t0}, {s_e0}
s_lshl_b32 {s_t0}, {s_t0}, 2
s_add_u32 {s_t0}, {s_t0}, {s_e1}
s_mul_i32 {s_stb}, {s_t0}, 25600
v_and_b32 v9, 15, {v_lane}
v_lshlrev_b32 v9, 4, v9
v_mul_u32_u24 v10, 1280, {v_t1}
v_add_u32 v10, v10, v9
v_cmp_eq_u32 vcc, 0, v9
v_lshlrev_b32 {v_t1}, 2, {v_t1}
s_lshl_b32 {s_rot}, {s_rb}, 2
s_add_u32 {s_rot}, {s_rot}, {s_w}
v_cndmask_b32 v11, {v_big}, {v_t1}, vcc
''')
stamp('', T)
setup2(T); setup_lds(T)
wo_dma(2)
stamp('', T)
for s_ in range(5):
    T.wait(wtok[5 * s_ + 4])
    if s_ == 0 and not STB: handshake()
    for ct in range(5):
        f = 5 * s_ + ct
        for u in range(2):
            T(f'ds_read_b64_tr_b16 {vr(140+4*f+2*u,2)}, v7 offset:{(32*s_+4*u)*160+8*ct}')
    if s_ + 3 < 5: wo_dma(s_ + 3)
    if s_ == 2: poll_issue(T, v_pres, v_zero, sDBG, '0')
    for ct in range(5):
        f = 5 * s_ + ct
        if f % 4 == 0: T(f's_add_u32 {s_t1}, {s_stb}, {WOF + f*1024}')
        tokw = T.vm(f'buffer_store_dwordx4 {vr(140+4*f,4)}, {v_l16}, {sWS}, {s_t1} offen offset:{(f%4)*1024} sc1')
    if s_ == 2: tokw2 = tokw
    if FINE: stamp('', T)
poll_check(T, v_pres, v_zero, sDBG, '0')
stamp('', T)
GW = 224; GA = 48
T(f's_mul_i32 {s_t1}, {s_rot}, {32*1280}')
for j in range(5): T(f'buffer_load_dwordx4 {vr(GW+4*j,4)}, v9, {sWA}, 0 offen offset:{256*j}')
for i in range(8):
    for j in range(5): T(f'buffer_load_dwordx4 {vr(64+20*i+4*j,4)}, v10, {sX}, {s_t1} offen offset:{256*j}')
    T(f's_add_u32 {s_t1}, {s_t1}, {4*1280}')
    if i == 1:
        T.wait(tokw)
        T('s_barrier')
        set_flag(T, v_flag, s_f1, 0)
        stamp('', T)
poll_issue(T, v_pres, v_p1, sWS, s_F1A)
T(f's_lshl_b32 {s_rot}, {s_rot}, 7\ns_add_u32 {s_rot}, {s_rot}, {G_OFF}')
for i in range(8):
    T(f'v_mov_b32 v{GA+i}, 0')
    for k in range(20): T(f'v_dot2c_f32_bf16 v{GA+i}, v{64+20*i+k}, v{GW+k}')
for sh in (8, 4, 2, 1):
    for i in range(8): T(f'v_add_f32_dpp v{GA+i}, v{GA+i}, v{GA+i} row_ror:{sh} row_mask:0xf bank_mask:0xf')
for i in range(8): T(f'v_mul_f32 v{GA+i}, {f32(-math.log2(math.e))}, v{GA+i}')
for i in range(8): T(f'v_exp_f32 v{GA+i}, v{GA+i}')
for i in range(8): T(f'v_add_f32 v{GA+i}, 1.0, v{GA+i}')
for i in range(8): T(f'v_rcp_f32 v{GA+i}, v{GA+i}')
T.l += setup_late()
for i in range(8): tokg = T.vm(f'buffer_store_dword v{GA+i}, v11, {sWS}, {s_rot} offen offset:{16*i} sc1')
stamp('', T)
T.l += mask_far() + zero_pads()
if NA:
    poll(T, v_t1, v_p2, sWS, s_F1A)
    for g in wo_loads(0, NA): T.l += g
poll_check(T, v_pres, v_p1, sWS, s_F1A)
stamp('', T)
kv, _ = kvq_loads()
for g in kv: T.l += g
for g in wo_loads(NA, NWO1): T.l += g
if WT > KV0:
    a_, b_ = wo_touch(); T.l += a_ + b_
T('s_waitcnt vmcnt(0) lgkmcnt(0)\ns_barrier')
T.l += att_pre()
T(qka(0)); T(qkb(0))
T.l += mask_rest()[:8]
T('s_nop 7')
assert nstamp[0] <= nst_join
while nstamp[0] < nst_join: stamp('', T)
T('s_waitcnt lgkmcnt(0)')
T('s_branch L_join')

def undef_check(l, name):
    d = {'v0', 's0', 's1', 's2', 'exec'}; bad = []
    for i in l:
        u = i.uses - d if i.kind not in ('pseudo', 'label', 'none') else set()
        if u: bad.append((sorted(u), i.text))
        d |= i.defs | u
    if bad: print('USE BEFORE DEF in', name, bad)
ib = next(k for k, i in enumerate(S.l) if 'L_spare' in i.text); ij = next(k for k, i in enumerate(S.l) if i.text == 'L_join:')
undef_check(S.l, 'main'); undef_check(S.l[:ib] + T.l + S.l[ij:], 'spare')
S.extend(T); S.extend(tail)
S('L_end:\ns_endpgm')
S.extend(FBK)

XP = opt('xp', 0)
if XP:
    def drop(i):
        if XP & 96 and 's_cbranch_vccnz L_again' in i.text: return True
        if XP & 32 and 'store_dwordx2' in i.text and 's16' in i.uses: return True
        if XP & 128 and 'store' in i.text and 's16' in i.uses and (v_q4 in i.uses or v_qe in i.uses): return True
        if i.kind != 'vm': return False
        t = i.text
        if XP & 1 and s_e2 in i.uses and 'load' in t: return True
        if XP & 2 and 'load' in t and i.uses & {'v%d' % r for r in range(2, 10)} and 's16' in i.uses and 'lds' not in t and i.uses & {'s%d' % r for r in list(range(60, 66)) + list(range(70, 76))} and 'v8' not in i.uses - {None} | set() or False: return True
        if XP & 4 and 'load' in t and 's16' in i.uses and (v_q4 in i.uses or v_qe in i.uses or v_qo in i.uses or v_kb1 in i.uses) and i.uses & {'s60', 's61', 's62', 's63'}: return True
        if XP & 8 and 'store' in t and v_st in i.uses and 's16' in i.uses and i.tok not in (tokA, tokB): return True
        if XP & 16 and 'lds' in t and s_e1 in i.uses and i.tok is not tokKV: return True
        return False
    S.l = [i for i in S.l if not drop(i)]
stats = []
body = finalize(S, stats)
hdr = open('cdna_kernels/%s.s.ref' % NAME).read().split('; Override')[0]
K = NAME + '_kernel'
txt = hdr + f'''; Generated by a hand-written generator script: one persistent workgroup per CU, phases chained by flags in d_ws.
; @launch grid=(256,1,1) block=(256,1,1) lds={LDS_BYTES}
.amdgcn_target "amdgcn-amd-amdhsa--gfx950"
.text
.globl {K}
.p2align 8
.type {K},@function
{K}:
''' + '\n'.join(body) + f'''
.section .rodata,"a"
.p2align 6
.amdhsa_kernel {K}
  .amdhsa_next_free_vgpr 512
  .amdhsa_next_free_sgpr 102
  .amdhsa_accum_offset 256
  .amdhsa_group_segment_fixed_size 0
  .amdhsa_kernarg_size 80
  .amdhsa_user_sgpr_count 2
  .amdhsa_user_sgpr_kernarg_segment_ptr 1
  .amdhsa_system_sgpr_workgroup_id_x 1
  .amdhsa_float_denorm_mode_32 3
.end_amdhsa_kernel
'''
open(OUT, 'w').write(txt)
print('instructions:', len(body), ' nops:', len(stats), sum(s[0] for s in stats), ' overflow slots', over, 'WS_SIZE', WS_SIZE)
if '--nops' in ARGS:
    for s in stats: print(s)
```

```python
import sys, math, struct
from fw import *

NAME = "gated_mix__sliding_block__sliding_local_dilated__prompt"
ARGS = sys.argv[1:]
STAMPS = '--stamps' in ARGS
FINE = '--fine' in ARGS
FINE2 = '--fine2' in ARGS
def opt(name, default):
    for a in ARGS:
        if a.startswith('--' + name + '='): return int(a.split('=')[1])
    return default
OUT = [a for a in ARGS if not a.startswith('--')]
OUT = OUT[0] if OUT else 'k.s'

GRP = 2048 * 16
QKV = [0, 240 * GRP]
WOF = 480 * GRP
G_OFF = WOF + 64 * 25600
FLG = G_OFF + 8192
F1 = [FLG, FLG + 32768]
WS_SIZE = FLG + 65536
STAMP_OFF = WS_SIZE
BIG = 0x40000000
L_X = 65536
GS = 8192 + 64
L_KA = L_X + 16384; L_VA = L_KA + 3 * GS
L_VB = 131072 + 512; VBW = 4608
L_ONE = L_VB + 4 * VBW + ((L_VA + 3 * GS) % 256)
L_TAB = L_VB + 4 * VBW + 8192 + 256
LDS_BYTES = 160 * 1024
assert L_TAB + 1024 <= LDS_BYTES and L_VA + 3 * GS <= L_VB

def f32(x): return '0x%08x' % struct.unpack('<I', struct.pack('<f', x))[0]
QSCALE = (20 ** -0.5) * math.log2(math.e)
NEGINF = '0xff800000'

sX, sWA, sWB, sWS, sOUT, sDBG, sTMP = 's[4:7]', 's[8:11]', 's[12:15]', 's[16:19]', 's[20:23]', 's[24:27]', 's[28:31]'
s_xcd, s_t, s_rb, s_cb, s_w = 's32', 's33', 's34', 's35', 's36'
s_t0, s_t1, s_t2, s_t3 = 's37', 's38', 's39', 's40'
s_stb, s_scale, s_inv, s_mW, s_mX = 's41', 's42', 's43', 's44', 's45'
s_hd, s_r2, s_so, s_q0 = 's46', 's47', 's48', 's49'
s_cnt, s_f1, s_tag, s_rnd, s_k1, s_wob = 's50', 's51', 's52', 's53', 's54', 's55'
SW0, SX0 = 60, 70
ST0 = 80
s_bF, s_bS, s_dF, s_dS, s_mK, s_mV, s_gb, s_rot = 's84', 's85', 's86', 's87', 's88', 's89', 's90', 's91'
s_e0, s_e1, s_e2, s_e3 = 's92', 's93', 's94', 's95'
s_F1A, s_F1B, s_F2, s_q0z, s_R, s_C = 's96', 's97', 's98', 's99', 's100', 's101'
ROWMAP = opt('rowmap', 0); QRND = opt('qrnd', 0)
v_lane = 'v1'
VWD, VXD, VWR, VXR = 2, 6, 10, 14
VWX = [14, 15, 42, 44]
v_dma, v_gad, v_kb0, v_k1 = 'v6', 'v7', 'v8', 'v9'
v_st, v_flag, v_one, v_pres, v_l16, v_big = 'v16', 'v17', 'v18', 'v19', 'v20', 'v21'
v_t1, v_t2, v_t3, v_t4, v_tmp, v_zero = 'v22', 'v23', 'v24', 'v25', 'v26', 'v27'
(v_p1, v_p2, v_p3, v_q4, v_qe, v_qo, v_k0, v_v, v_vb, v_vh, v_kb1, v_halo, v_mA, v_mB0, v_flagw, v_o4, v_o2, v_h, v_r, v_tabc) = ['v%d' % i for i in range(28, 48)]
WRING = 48
ACC = [64, 128]
XV = 192
E0, P0 = 48, 56
SB = [64, 192]; M_FAR, M_DIAG = 80, 208; QA0, QA1 = 96, 104; OA = [224, 240]
QB0, QB1, KB0 = 128, 136, 144
v_g = ['v46', 'v47']
MB_DIAG, MB_PREV, MB_PREV0 = 160, 168, 176
SP = [64, 192]; SD = [80, 208]; OB = [96, 112]
V4, V2, VRW, v_rr, v_out, v_p4 = 2, 6, 10, 'v13', 'v14', 'v15'
AC3 = 16; OF = [[128, 144, 160, 176, 224], [96, 112, 192, 208, 240]]; RED = 128
AK0, AK1, AV, AKB1 = 200, 208, 216, 232
VB = 200

def vr(b, n): return 'v[%d:%d]' % (b, b + n - 1)
def ar(b, n): return 'a[%d:%d]' % (b, b + n - 1)
mm = 'v_mfma_f32_32x32x16_bf16'

S = Stream()
tail = Stream()
nstamp = [0]; stamp_names = []
AMP = [a.split('=')[1].split(',') for a in ARGS if a.startswith('--amp=')]
AMP = AMP[0] if AMP else None
def stamp(name='', st=None):
    if AMP and name in AMP and st is None: S('s_memrealtime s[%d:%d]' % (ST0 + 2 * AMP.index(name), ST0 + 2 * AMP.index(name) + 1))
    if STAMPS:
        st = st or S
        k = nstamp[0]
        if k == 1:
            for i in range(56, 64): st('v_writelane_b32 v0, 0, %d' % i)
        if k > 0: st('v_writelane_b32 v0, s%d, %d' % (ST0 + 2 * ((k - 1) & 1), k - 1))
        st('s_memrealtime s[%d:%d]' % (ST0 + 2 * (k & 1), ST0 + 2 * (k & 1) + 1))
        if '--clk' in ARGS and st is S and 3 <= k <= 24:
            if k > 3: st('v_writelane_b32 v0, s%d, %d' % (28 + 2 * ((k - 1) & 1), 30 + k - 1))
            st('s_memtime s[%d:%d]' % (28 + 2 * (k & 1), 29 + 2 * (k & 1)))
    stamp_names.append(name)
    nstamp[0] += 1
def st2(n):
    if FINE2: stamp(n)
nlab = [0]
def lab(p):
    nlab[0] += 1
    return 'L_%s_%d' % (p, nlab[0])

PIDX = {v_zero: 0, v_p1: 1, v_p2: 2, v_p3: 3, v_p4: 4}
def poll_issue(st, res, adr, srd, soff, off=0):
    st('buffer_load_dword %s, %s, %s, %s offen offset:%d sc1' % (res, adr, srd, soff, off))
def poll_check(st, res, adr, srd, soff, off=0):
    l = lab('poll'); b = lab('back')
    st('v_cmp_ne_u32 vcc, 1, %s' % res)
    st('s_cbranch_vccnz %s' % l)
    st(b + ':')
    tail('@reset')
    tail(f'''
    {l}:
    s_mov_b32 {s_cnt}, 0
    {l}_a:
    buffer_load_dword {res}, {adr}, {srd}, {soff} offen offset:{off} sc1
    s_add_u32 {s_cnt}, {s_cnt}, 1
    {('v_writelane_b32 v0, %s, %d' % (s_cnt, 56 + PIDX[adr] + off // 4)) if STAMPS else ''}
    s_waitcnt vmcnt(0)
    v_cmp_ne_u32 vcc, 1, {res}
    s_cbranch_vccz {b}
    s_cmp_lt_u32 {s_cnt}, 0x40000
    s_cbranch_scc1 {l}_a
    s_branch {b}
    ''')
def poll(st, res, adr, srd, soff):
    poll_issue(st, res, adr, srd, soff); poll_check(st, res, adr, srd, soff)
def set_flag(st, vf, base, off):
    st(f'buffer_store_dword {v_one}, {vf}, {sWS}, {base} offen offset:{off} sc1')
def mk(fn, *a):
    st = Stream(); fn(st, *a); return st.l
def L(txt):
    st = Stream(); st(txt); return st.l

def setup2(st):
    st(f'''
    s_mov_b32 s14, {640*3840}
    s_mov_b32 s15, 0x20000
    s_mov_b32 s22, {2048*1280}
    s_mov_b32 s23, 0x20000
    s_mov_b32 {s_F1A}, {F1[0]}
    s_mov_b32 {s_F1B}, {F1[1]}
    s_and_b32 {s_C}, {s_t}, 7
    s_lshr_b32 {s_t2}, {s_t}, 3
    s_lshl_b32 {s_t0}, {s_xcd}, 2
    s_add_u32 {s_R}, {s_t0}, {s_t2}
    s_mov_b32 {s_r2}, {s_xcd if ROWMAP else s_C}
    s_mov_b32 {s_hd}, {s_t if ROWMAP else s_R}
    ''')
    if opt('map3', 1) == 1:
        st(f'''
        s_lshr_b32 {s_R}, {s_xcd}, 1
        s_lshl_b32 {s_R}, {s_R}, 3
        s_lshr_b32 {s_t0}, {s_t}, 2
        s_add_u32 {s_R}, {s_R}, {s_t0}
        s_and_b32 {s_C}, {s_xcd}, 1
        s_lshl_b32 {s_C}, {s_C}, 2
        s_and_b32 {s_t0}, {s_t}, 3
        s_add_u32 {s_C}, {s_C}, {s_t0}
        ''')
    st(f'''
    s_lshl_b32 {s_q0}, {s_r2}, 8
    s_lshl_b32 {s_t0}, {s_w}, 6
    s_add_u32 {s_q0}, {s_q0}, {s_t0}
    s_mul_i32 {s_e0}, {s_hd}, 5
    s_lshr_b32 {s_e0}, {s_e0}, 1
    s_and_b32 {s_t3}, {s_hd}, 1
    s_add_u32 {s_e1}, {s_e0}, {s_t3}
    s_lshl_b32 {s_so}, {s_t3}, 3
    s_lshl_b32 {s_t3}, {s_t3}, 1
    s_add_u32 {s_e2}, {s_e0}, 2
    s_sub_u32 {s_e2}, {s_e2}, {s_t3}
    s_lshl_b32 {s_e1}, {s_e1}, 15
    s_lshl_b32 {s_e2}, {s_e2}, 15
    s_lshl_b32 {s_t0}, {s_q0}, 4
    s_add_u32 {s_bF}, {s_e1}, {s_t0}
    s_add_u32 {s_bS}, {s_e2}, {s_t0}
    s_lshl_b32 {s_e3}, {s_r2}, 1
    s_add_u32 {s_e3}, {s_e3}, {s_w}
    s_lshl_b32 {s_t0}, {s_e3}, 11
    s_add_u32 {s_dF}, {s_e1}, {s_t0}
    s_add_u32 {s_dS}, {s_e2}, {s_t0}
    s_lshl_b32 {s_mK}, {s_w}, 11
    s_mul_i32 {s_mV}, {s_w}, {VBW}
    s_add_u32 {s_mV}, {s_mV}, {L_VB}
    s_lshl_b32 {s_gb}, {s_q0}, 2
    s_add_u32 {s_gb}, {s_gb}, {G_OFF}
    s_lshl_b32 {s_f1}, {s_rb}, 11
    s_lshl_b32 {s_t0}, {s_cb}, 7
    s_add_u32 {s_f1}, {s_f1}, {s_t0}
    s_add_u32 {s_f1}, {s_f1}, {F1[0]}
    s_lshl_b32 {s_wob}, {s_C}, 2
    s_add_u32 {s_wob}, {s_wob}, {s_w}
    s_mul_i32 {s_wob}, {s_wob}, 25600
    v_and_b32 {v_zero}, 60, {v_lane}
    v_lshrrev_b32 {v_h}, 5, {v_lane}
    v_and_b32 {v_r}, 31, {v_lane}
    v_bfe_u32 {v_t1}, {v_lane}, 2, 1
    v_lshl_add_u32 {v_t1}, {v_t1}, 1, {s_e0}
    v_lshrrev_b32 {v_t1}, 4, {v_t1}
    v_and_b32 {v_t2}, 3, {v_lane}
    v_min_u32 {v_t3}, 2, {v_t2}
    v_mad_u32_u24 {v_t4}, {v_t3}, 5, {v_t1}
    v_mad_u32_u24 {v_tmp}, {v_t2}, 5, {v_t1}
    v_min_u32 {v_tmp}, 15, {v_tmp}
    s_sub_u32 {s_t1}, {s_e3}, 2
    s_max_i32 {s_t1}, {s_t1}, 0
    s_lshl_b32 {s_t1}, {s_t1}, 11
    s_andn2_b32 {s_t2}, {s_q0}, 127
    s_lshl_b32 {s_t2}, {s_t2}, 4
    v_cmp_eq_u32 vcc, 0, {v_t2}
    v_mov_b32 {v_t1}, {s_t1}
    v_mov_b32 {v_t3}, {s_t2}
    v_cndmask_b32 {v_t1}, {v_t1}, {v_t3}, vcc
    v_lshl_add_u32 {v_p1}, {v_t4}, 7, {v_t1}
    s_sub_u32 {s_t1}, {s_q0}, 32
    s_max_i32 {s_t1}, {s_t1}, 0
    s_andn2_b32 {s_t1}, {s_t1}, 127
    s_lshl_b32 {s_t1}, {s_t1}, 4
    v_and_b32 {v_t2}, 8, {v_lane}
    v_cmp_eq_u32 vcc, 0, {v_t2}
    v_mov_b32 {v_t1}, {s_t1}
    v_and_b32 {v_t2}, 1, {v_lane}
    v_cndmask_b32 {v_t1}, {v_t1}, {v_t3}, vcc
    v_lshl_add_u32 {v_p3}, {v_tmp}, 7, {v_t1}
    v_cmp_gt_u32 s[38:39], 32, {v_lane}
    s_lshr_b32 {s_t0}, {s_R}, 1
    s_lshl_b32 {s_t0}, {s_t0}, 4
    s_add_u32 {s_t0}, {s_t0}, {s_w}
    v_add_lshl_u32 {v_t1}, {v_t2}, {s_t0}, 7
    v_cndmask_b32 {v_p3}, {v_t1}, {v_p3}, s[38:39]
    s_lshl_b32 {s_t0}, {s_w}, 1
    s_lshr_b32 {s_t1}, {s_C}, 2
    s_add_u32 {s_t0}, {s_t0}, {s_t1}
    s_lshl_b32 {s_t0}, {s_t0}, 11
    s_add_u32 {s_t0}, {s_t0}, {15*128}
    v_lshl_add_u32 {v_p2}, {v_t2}, 14, {s_t0}
    v_cndmask_b32 {v_p1}, {v_p2}, {v_p1}, vcc
    ''')
    st(f'''
    v_lshlrev_b32 {v_q4}, 15, {v_h}
    v_lshl_add_u32 {v_q4}, {v_r}, 4, {v_q4}
    v_cmp_eq_u32 vcc, 0, {v_h}
    v_lshl_add_u32 {v_t1}, {v_r}, 4, {s_so}
    s_cmp_eq_u32 {s_q0}, 0
    s_cselect_b32 {s_q0z}, {BIG}, 0
    v_cndmask_b32 {v_qe}, {v_big}, {v_t1}, vcc
    v_cndmask_b32 {v_qo}, {v_t1}, {v_big}, vcc
    v_mov_b32 {v_t2}, {s_q0z}
    v_cndmask_b32 {v_t2}, 0, {v_t2}, vcc
    v_add3_u32 {v_kb1}, {v_t2}, {v_l16}, {s_so}
    v_and_b32 {v_t2}, 15, {v_lane}
    v_mov_b32 {v_o4}, 0x10000
    v_lshrrev_b32 {v_t1}, 4, {v_lane}
    v_lshl_add_u32 {v_t3}, {v_t1}, 15, {s_bF}
    v_cmp_eq_u32 vcc, 2, {v_t1}
    v_mov_b32 {v_t4}, {s_bS}
    s_add_u32 {s_t3}, {s_q0z}, {QKV[1] + 160*GRP - 256}
    v_cndmask_b32 {v_t3}, {v_t3}, {v_t4}, vcc
    v_cmp_eq_u32 vcc, 3, {v_t1}
    v_lshl_add_u32 {v_t3}, {v_t2}, 4, {v_t3}
    v_add_u32 {v_t3}, {s_t3}, {v_t3}
    v_cndmask_b32 {v_halo}, {v_t3}, {v_big}, vcc
    ''')
    st(f'''
    s_lshl_b32 {s_t0}, {s_w}, 10
    v_mul_u32_u24 {v_t1}, {GS}, {v_h}
    v_lshl_add_u32 {v_t1}, {v_r}, 4, {v_t1}
    s_add_u32 {s_t1}, {s_t0}, {L_KA}
    v_add_u32 {v_k0}, {s_t1}, {v_t1}
    s_add_u32 {s_k1}, {s_t0}, {L_KA + 2*GS}
    s_add_u32 {s_k1}, {s_k1}, {s_so}
    v_bfe_u32 {v_t1}, {v_lane}, 2, 2
    v_lshl_add_u32 {v_t1}, {v_h}, 2, {v_t1}
    v_lshlrev_b32 {v_t1}, 4, {v_t1}
    v_and_b32 {v_pres}, 16, {v_lane}
    v_cmp_eq_u32 vcc, 0, {v_pres}
    v_and_b32 {v_t2}, 1, {v_lane}
    v_bfe_u32 {v_t3}, {v_lane}, 1, 1
    v_add_u32 {v_t4}, 2, {v_t3}
    v_lshlrev_b32 {v_t3}, 3, {v_t3}
    v_mov_b32 {v_tmp}, {s_so}
    v_cndmask_b32 {v_t2}, {v_t4}, {v_t2}, vcc
    v_cndmask_b32 {v_t3}, {v_tmp}, {v_t3}, vcc
    v_cmp_eq_u32 vcc, 3, {v_t2}
    v_add_u32 {v_t1}, {v_t1}, {v_t3}
    s_add_u32 {s_t1}, {s_t0}, {L_VA}
    v_mul_u32_u24 {v_t3}, {GS}, {v_t2}
    v_add3_u32 {v_v}, {v_t1}, {v_t3}, {s_t1}
    v_mul_u32_u24 {v_t3}, 1088, {v_t2}
    v_add3_u32 {v_vb}, {v_t1}, {v_t3}, {s_mV}
    s_add_u32 {s_t1}, {s_mV}, {3*1088}
    v_lshlrev_b32 {v_t3}, 8, {v_t2}
    v_add3_u32 {v_vh}, {v_t1}, {v_t3}, {s_t1}
    s_add_u32 {s_t1}, {s_t0}, {L_ONE}
    v_add_u32 {v_t3}, {s_t1}, {v_t1}
    v_add_u32 {v_t1}, {L_ONE + 4096}, {v_t1}
    v_cndmask_b32 {v_v}, {v_v}, {v_t3}, vcc
    v_cndmask_b32 {v_vb}, {v_vb}, {v_t1}, vcc
    v_cndmask_b32 {v_vh}, {v_vh}, {v_t1}, vcc
    ''')
    st(f'''
    v_lshlrev_b32 {v_t1}, 2, {v_h}
    v_sub_u32 {v_t1}, {v_t1}, {v_r}
    v_lshlrev_b32 {v_t1}, 2, {v_t1}
    v_add_u32 {v_mA}, {L_TAB + 128}, {v_t1}
    s_cmp_eq_u32 {s_q0}, 0
    s_cselect_b64 vcc, -1, 0
    v_mov_b32 {v_t1}, {L_TAB + 4*64}
    v_cndmask_b32 {v_mB0}, {v_mA}, {v_t1}, vcc
    ''')
def setup_lds(st):
    st(f'''
    s_and_b32 {s_cnt}, {s_xcd if ROWMAP else s_t}, 7
    s_lshl_b32 {s_cnt}, {s_cnt}, 1
    s_add_u32 {s_cnt}, {s_cnt}, {s_w}
    s_cmp_ge_u32 {s_cnt}, 2
    s_cselect_b32 {s_inv}, 0, {BIG}
    s_cselect_b32 {s_cnt}, 0x3f803f80, 0
    v_mov_b32 v128, {s_cnt}
    v_mov_b32 v129, {s_cnt}
    v_mov_b32 v130, {s_cnt}
    v_mov_b32 v131, {s_cnt}
    s_lshl_b32 {s_cnt}, {s_w}, 11
    s_add_u32 {s_cnt}, {s_cnt}, {L_ONE}
    v_add_u32 v132, {s_cnt}, {v_l16}
    ds_write_b128 v132, v[128:131]
    ds_write_b128 v132, v[128:131] offset:1024
    ''')
    mk_ = [0, 0, 0, 0]
    for e in range(256):
        ok = (e - 32 <= 0) if e < 64 else (e - 96 > 0) if e < 128 else (0 <= 191 - e <= 14 and (191 - e) % 2 == 0)
        if ok: mk_[e >> 6] |= 1 << (e & 63)
    assert mk_[3] == 0 and mk_[1] & 0xffffffff == 0 and mk_[2] & 0xffffffff == 0
    st(f'''
    s_cmp_eq_u32 {s_w}, 0
    s_cselect_b32 s58, 0x{mk_[0] & 0xffffffff:x}, 0
    s_cselect_b32 s59, 0x{mk_[0] >> 32:x}, 0
    s_cmp_eq_u32 {s_w}, 1
    s_cselect_b32 s59, 0x{mk_[1] >> 32:x}, s59
    s_cmp_eq_u32 {s_w}, 2
    s_cselect_b32 s59, 0x{mk_[2] >> 32:x}, s59
    v_mov_b32 v138, {NEGINF}
    s_lshl_b32 {s_cnt}, {s_w}, 8
    s_add_u32 {s_cnt}, {s_cnt}, {L_TAB}
    v_cndmask_b32 v138, v138, 0, s[58:59]
    v_lshl_add_u32 v139, {v_lane}, 2, {s_cnt}
    ds_write_b32 v139, v138
    ''')
def setup_late():
    return L(f'''
    v_add_u32 {v_dma}, {s_inv}, {v_l16}
    v_lshlrev_b32 {v_gad}, 2, {v_r}
    v_add_u32 {v_kb0}, {s_q0z}, {v_q4}
    v_add_u32 {v_k1}, {s_k1}, {v_l16}
    ''')
def zero_pads():
    return L('\n'.join(f'v_accvgpr_write_b32 a{b}, 0' for b in (AK1 + 2, AK1 + 3, AK1 + 6, AK1 + 7, AKB1 + 2, AKB1 + 3, AKB1 + 6, AKB1 + 7))
             + f'\nv_mov_b32 v{QA1+8}, 0\nv_mov_b32 v{QA1+9}, 0')

def mask_reads(reg, adr, base, a0=0):
    l = []
    for a in range(a0, 4):
        for b in (0, 2):
            k = base + 8 * a + b
            l.append(Ins(f'ds_read2_b32 {vr(reg+4*a+b,2)}, {adr} offset0:{k} offset1:{k+1}'))
    return l
def mask_far(): return mask_reads(M_FAR, v_mA, 64)
def mask_rest(): return mask_reads(M_DIAG, v_mA, 0) + mask_reads(MB_DIAG, v_mA, 159) + mask_reads(MB_PREV, v_mA, 127, 2) + mask_reads(MB_PREV0, v_mB0, 127, 2)

def kvq_loads():
    g = []
    for ty in (1, 2):
        for gi in range(3):
            g.append(L(f's_add_u32 m0, {s_mK}, {(L_KA if ty == 1 else L_VA) + gi*GS}\n'
                       f's_add_u32 {s_e1}, {s_dS if gi == 2 else s_dF}, {QKV[0] + (80*ty + (gi if gi < 2 else 0))*GRP - 4096}'))
            g.append(L(f'buffer_load_dwordx4 {v_dma}, {sWS}, {s_e1} offen sc1 lds'))
            st = Stream()
            tok = st.vm(f'buffer_load_dwordx4 {v_dma}, {sWS}, {s_e1} offen offset:1024 sc1 lds')
            g.append(st.l)
    for x in (f'buffer_load_dwordx4 {vr(QA0,4)}, {v_q4}, {sWS}, {s_bF} offen sc1',
              f'buffer_load_dwordx2 {vr(QA1,2)}, {v_qe}, {sWS}, {s_bS} offen sc1',
              f'buffer_load_dwordx2 {vr(QA1+2,2)}, {v_qo}, {sWS}, {s_bS} offen sc1',
              f'buffer_load_dwordx4 {vr(QA0+4,4)}, {v_q4}, {sWS}, {s_bF} offen offset:512 sc1',
              f'buffer_load_dwordx2 {vr(QA1+4,2)}, {v_qe}, {sWS}, {s_bS} offen offset:512 sc1',
              f'buffer_load_dwordx2 {vr(QA1+6,2)}, {v_qo}, {sWS}, {s_bS} offen offset:512 sc1'):
        g.append([Ins(x)])
    return g, tok
def wo_loads(f0, f1, adr=v_l16):
    g = []
    for F in range(f0, f1):
        br, f = F // 25, F % 25
        if f % 4 == 0 or F == f0: g.append(L(f's_add_u32 {s_e2}, {s_wob}, {WOF + br*32*25600 + (f & ~3)*1024}'))
        g.append(L(f'buffer_load_dwordx4 {ar(4*F,4)}, {adr}, {sWS}, {s_e2} offen offset:{(f%4)*1024} sc1'))
    return g

steps = [(0, 0)] + [(j, q) for j in range(1, 9) for q in range(2)] + [(9, 1)]
def k0_read(j): return Ins(f'ds_read_b128 {ar(AK0+4*(j&1),4)}, {v_k0} offset:{512*j}')
def k1_read(j): return Ins(f'ds_read_b64 {ar(AK1+4*((j>>1)&1),2)}, {v_k1} offset:{512*j}')
def v_read(j, kk, u): return Ins(f'ds_read_b64_tr_b16 {ar(AV+8*(j&1)+4*kk+2*u,2)}, {v_v} offset:{512*j+256*kk+128*u}')
def qka(n):
    j, q = steps[n]
    c = vr(M_FAR, 16) if j == q else vr(M_DIAG, 16) if j == 8 + q else '0'
    return f'{mm} {vr(SB[n&1],16)}, {ar(AK0+4*(j&1),4)}, {vr(QA0+4*q,4)}, {c}'
def qkb(n):
    j, q = steps[n]
    return f'{mm} {vr(SB[n&1],16)}, {ar(AK1+4*((j>>1)&1),4)}, {vr(QA1+4*q+2*(j&1),4)}, {vr(SB[n&1],16)}'
def pv(n, kk):
    j, q = steps[n]
    c = '0' if (j == q and kk == 0) else vr(OA[q], 16)
    return f'{mm} {vr(OA[q],16)}, {ar(AV+8*(j&1)+4*kk,4)}, {vr(P0+4*kk,4)}, {c}'
def exps(n, g): return [f'v_exp_f32 v{E0+4*(g&1)+i}, v{SB[n&1]+4*g+i}' for i in range(4)]
def cvts(g): return [f'v_cvt_pk_bf16_f32 v{P0+2*g+i}, v{E0+4*(g&1)+2*i}, v{E0+4*(g&1)+2*i+1}' for i in range(2)]
def att_pre(): return [k0_read(0), k1_read(0), k0_read(1)] + [v_read(0, kk, u) for kk in range(2) for u in range(2)]

S(f'''
s_cmp_ge_u32 s2, 0x100
s_cbranch_scc1 L_end
s_load_dwordx2 s[4:5], s[0:1], 0
s_load_dwordx2 s[8:9], s[0:1], 8
s_load_dwordx2 s[12:13], s[0:1], 32
s_load_dwordx2 s[16:17], s[0:1], 72
s_load_dwordx2 s[20:21], s[0:1], 56
s_load_dwordx2 s[24:25], s[0:1], 64
''')
stamp('start')
if opt('cpf', 1):
    S(f'''
    s_getpc_b64 s[28:29]
    L_pc:
    s_mov_b32 s30, L_end-L_pc
    s_mov_b32 s31, 0x20000
    s_andn2_b32 {s_t0}, s2, 7
    v_min_u32 v132, 7, v0
    v_add_lshl_u32 v132, v132, {s_t0}, 7
    buffer_load_dword v133, v132, {sTMP}, 0 offen
    ''')
if opt('kick', 0):
    S(f'''
    s_mov_b32 s6, {2048*1280}
    s_mov_b32 s7, 0x20000
    s_mov_b32 s10, {640*3840}
    s_mov_b32 s11, 0x20000
    v_lshlrev_b32 v146, 21, v0
    s_lshl_b32 {s_t1}, s2, {10 if opt('kick', 1) == 2 else 0}
    s_waitcnt lgkmcnt(0)
    buffer_load_dword v147, v146, {sX}, {s_t1 if opt('kick', 1) == 2 else 0} offen
    buffer_load_dword v148, v146, {sWA}, {s_t1 if opt('kick', 1) == 2 else 0} offen
    ''')
    if AMP: stamp('sl')
S(f'''
v_lshrrev_b32 {v_tmp}, 6, v0
v_and_b32 {v_lane}, 63, v0
v_readfirstlane_b32 {s_w}, {v_tmp}
s_and_b32 {s_xcd}, s2, 7
{('s_xor_b32 %s, %s, %d' % (s_xcd, s_xcd, opt('xmap', 0))) if opt('xmap', 0) else ''}
s_lshr_b32 {s_t}, s2, 3
s_and_b32 {s_t0}, {s_xcd}, 1
s_lshl_b32 {s_t0}, {s_t0}, 3
s_and_b32 {s_t1}, {s_t}, 7
s_add_u32 {s_rb}, {s_t0}, {s_t1}
s_lshr_b32 {s_t0}, {s_xcd}, 1
s_lshl_b32 {s_t0}, {s_t0}, 2
s_lshr_b32 {s_t2}, {s_t}, 3
s_add_u32 {s_cb}, {s_t0}, {s_t2}
s_mov_b32 s6, {2048*1280}
s_mov_b32 s7, 0x20000
s_mov_b32 s11, 0x20000
s_cmp_eq_u32 {s_cb}, 15
s_cbranch_scc1 L_spare
s_mov_b32 s10, {640*3840}
s_lshl_b32 {s_rot}, {s_t2}, 1
s_add_u32 {s_rot}, {s_rot}, {s_t1}
''')
if opt('rot', 24) == 8:
    S(f's_and_b32 {s_rot}, {s_rot}, 7\ns_mul_i32 {s_rot}, {s_rot}, 5\ns_lshr_b32 {s_rot}, {s_rot}, 2')
elif opt('rot', 24) == 1:
    S(f's_mov_b32 {s_rot}, 0')
elif opt('rot', 24) == 2:
    S(f's_add_u32 {s_rot}, {s_t1}, {s_t2}\ns_and_b32 {s_rot}, {s_rot}, 1\ns_mul_i32 {s_rot}, {s_rot}, 5')
elif opt('rot', 24) == 3:
    S(f's_add_u32 {s_rot}, {s_t1}, {s_t2}\ns_mul_i32 {s_t0}, {s_rot}, 86\ns_lshr_b32 {s_t0}, {s_t0}, 8\ns_mul_i32 {s_t0}, {s_t0}, 3\ns_sub_u32 {s_rot}, {s_rot}, {s_t0}\ns_mul_i32 {s_rot}, {s_rot}, 7\ns_lshr_b32 {s_rot}, {s_rot}, 1')
elif opt('rot', 24) == 4:
    S(f's_add_u32 {s_rot}, {s_t1}, {s_t2}\ns_and_b32 {s_rot}, {s_rot}, 3\ns_mul_i32 {s_rot}, {s_rot}, 5\ns_lshr_b32 {s_rot}, {s_rot}, 1')
elif opt('rot', 24) in (22, 24):
    m_ = 1 if opt('rot', 24) == 22 else 3
    S(f'''
    s_add_u32 {s_rot}, {s_t1}, {s_t2}
    s_and_b32 {s_rot}, {s_rot}, 1
    s_mul_i32 {s_rot}, {s_rot}, {m_ + 1}
    s_and_b32 {s_t0}, {s_xcd}, 1
    s_mul_i32 {s_t0}, {s_t0}, {(m_ + 1) // 2}
    s_lshr_b32 {s_t3}, {s_xcd}, 1
    s_add_u32 {s_t0}, {s_t0}, {s_t3}
    s_and_b32 {s_t0}, {s_t0}, {m_}
    s_add_u32 {s_rot}, {s_rot}, {s_t0}
    s_mul_i32 {s_rot}, {s_rot}, 5
    s_lshr_b32 {s_rot}, {s_rot}, {1 if m_ == 1 else 2}
    ''')
elif opt('rot', 24) == 14:
    S(f'''
    s_and_b32 {s_t0}, {s_xcd}, 1
    s_lshl_b32 {s_t0}, {s_t0}, 1
    s_lshr_b32 {s_t3}, {s_xcd}, 1
    s_add_u32 {s_t0}, {s_t0}, {s_t3}
    s_and_b32 {s_rot}, {s_t0}, 3
    s_mul_i32 {s_rot}, {s_rot}, 5
    s_lshr_b32 {s_rot}, {s_rot}, 1
    ''')
else:
    S(f'''
    s_lshl_b32 {s_rot}, {s_rot}, 1
    s_add_u32 {s_t0}, {s_xcd}, 1
    s_lshr_b32 {s_t0}, {s_t0}, 1
    s_add_u32 {s_rot}, {s_rot}, {s_t0}
    s_and_b32 {s_rot}, {s_rot}, 15
    s_mul_i32 {s_rot}, {s_rot}, 5
    s_lshr_b32 {s_rot}, {s_rot}, 3
    ''')
def rot(st, n):
    if n >= 1: st(f's_cmp_eq_u32 {s_rot}, 10\ns_cselect_b32 {s_rot}, 0, {s_rot}')
    st(f'''
    s_mul_i32 s{SW0+n}, {s_rot}, {64*3840}
    s_lshl_b32 s{SX0+n}, {s_rot}, 7
    s_add_u32 {s_rot}, {s_rot}, 1
    ''')
rot(S, 0)
S(f'''
v_lshrrev_b32 {v_t1}, 4, {v_lane}
v_lshrrev_b32 {v_t2}, 3, {v_lane}
v_mul_u32_u24 {v_t2}, 1280, {v_t2}
v_and_b32 {v_t3}, 7, {v_lane}
v_xor_b32 {v_t3}, {v_t3}, {v_t1}
s_lshl_b32 {s_t2}, {s_rb}, 2
s_add_u32 {s_t2}, {s_t2}, {s_w}
s_mul_i32 {s_t2}, {s_t2}, {32*1280}
v_add_u32 {v_t2}, {s_t2}, {v_t2}
v_lshl_add_u32 v{VXD}, {v_t3}, 4, {v_t2}
v_xor_b32 {v_t3}, 4, {v_t3}
v_lshl_add_u32 v{VXD+1}, {v_t3}, 4, {v_t2}
v_add_u32 v{VXD+2}, {2*(8*1280-1024)}, v{VXD}
v_add_u32 v{VXD+3}, {3*(8*1280-1024)}, v{VXD+1}
v_add_u32 v{VXD+1}, {8*1280-1024}, v{VXD+1}
s_lshl_b32 {s_mW}, {s_w}, 12
s_add_u32 {s_mX}, {s_mW}, {L_X}
v_and_b32 {v_t2}, 15, {v_lane}
v_lshlrev_b32 {v_t3}, 1, {v_t1}
v_xor_b32 {v_t2}, {v_t2}, {v_t3}
v_mul_u32_u24 {v_t3}, 3840, {v_t1}
v_lshl_add_u32 {v_t3}, {v_t2}, 4, {v_t3}
s_mul_i32 {s_t1}, {s_w}, {16*3840}
s_lshl_b32 {s_t2}, {s_cb}, 8
s_add_u32 {s_t1}, {s_t1}, {s_t2}
v_add_u32 v{VWD}, {s_t1}, {v_t3}
''')
S(f'''
v_xor_b32 v{VWD+2}, 128, v{VWD}
v_add_u32 v{VWD+1}, {4*3840-1024}, v{VWD}
v_add_u32 v{VWD+3}, {3*(4*3840-1024)}, v{VWD+2}
v_add_u32 v{VWD+2}, {2*(4*3840-1024)}, v{VWD+2}
''')
rot(S, 1)
S('s_waitcnt lgkmcnt(0)')

dma_tok = {}
WSLOT = [n % 4 for n in range(10)] + [2, 6, 3, 7, 0, 4, 1, 2, 3, 0]
WISS = {n: n - 2 for n in range(2, 11)}
WISS.update({11: 8, 12: 9, 13: 9, 14: 10, 15: 12, 16: 12, 17: 13, 18: 14, 19: 16})
for a_ in ARGS:
    if a_.startswith('--wiss='): WISS.update({11 + i: int(x) for i, x in enumerate(a_[7:].split(','))})
CTM = opt('ctm', 4)
def dma_stage(n):
    p, ns, slot = n // 10, n % 10, WSLOT[n]
    g = []
    if p == 0:
        g.append(L(f's_add_u32 m0, {s_mX}, {slot*16384}'))
        for i in range(4):
            g.append(L(f'buffer_load_dwordx4 v{VXD+i}, {sX}, s{SX0+ns} offen offset:{1024*i} lds'))
        g[-1] += L(f's_add_u32 m0, {s_mW}, {slot*16384}')
    else:
        g.append(L(f's_add_u32 m0, {s_mW}, {slot*16384}'))
    for i in range(4):
        st = Stream()
        dma_tok[n] = st.vm(f'buffer_load_dwordx4 v{VWD+i}, {sWB if p else sWA}, s{SW0+ns} offen offset:{1024*i} lds')
        g.append(st.l)
    return g

def common_consts(st):
    st(f'''
    s_mov_b32 s18, {WS_SIZE + (65536 if STAMPS else 0)}
    s_mov_b32 s19, 0x20000
    s_mov_b32 s26, 256
    s_mov_b32 s27, 0x20000
    s_mov_b32 s31, 0x20000
    v_cmp_eq_u32 vcc, 0, v0
    v_mov_b32 {v_big}, {BIG}
    v_mov_b32 {v_one}, 1
    v_lshlrev_b32 {v_l16}, 4, {v_lane}
    v_cndmask_b32 {v_flag}, {v_big}, 0, vcc
    ''')

for g in dma_stage(0): S.extend(g)
common_consts(S)
if opt('tlb', 0):
    S(f'''
    v_lshlrev_b32 v140, 20, {v_lane}
    s_mov_b32 s14, {640*3840}
    s_mov_b32 s15, 0x20000
    s_mov_b32 s22, {2048*1280}
    s_mov_b32 s23, 0x20000
    buffer_load_dword v141, v140, {sWS}, 0 offen
    buffer_load_dword v142, v140, {sWB}, 0 offen
    buffer_load_dword v143, v140, {sOUT}, 0 offen
    buffer_load_dword v144, v140, {sX}, 0 offen
    buffer_load_dword v145, v140, {sWA}, 0 offen
    ''')
SK = opt('skick', 0)
if SK:
    S(f's_and_b32 {s_t0}, {s_t}, 1\ns_lshl_b32 {s_t0}, {s_t0}, 21')
    if SK & 1: S(f's_load_dword s3, s[12:13], {s_t0}')
    if SK & 2: S(f's_load_dword s98, s[20:21], {s_t0}')
    if SK & 4: S(f's_and_b32 {s_t1}, {s_t}, 15\ns_min_u32 {s_t1}, {s_t1}, 8\ns_lshl_b32 {s_t1}, {s_t1}, 21\ns_load_dword s53, s[16:17], {s_t1}')
stamp('iss0')
d1 = dma_stage(1)
PRE = opt('pre', 5)
for g in d1[:PRE]: S.extend(g)
pre = Stream()
for n in range(2, 4): rot(pre, n)
pre(f'''
v_lshrrev_b32 {v_t1}, 4, {v_lane}
v_bfe_u32 {v_t2}, {v_lane}, 2, 2
v_lshl_add_u32 {v_t3}, {v_t1}, 3, {v_t2}
v_lshlrev_b32 {v_t3}, 8, {v_t3}
v_bfe_u32 {v_tmp}, {v_lane}, 2, 3
v_lshl_add_u32 {v_t3}, {v_tmp}, 5, {v_t3}
v_and_b32 {v_tmp}, 3, {v_lane}
v_lshl_add_u32 {v_t3}, {v_tmp}, 3, {v_t3}
s_and_b32 {s_t0}, {s_w}, 1
s_lshr_b32 {s_t1}, {s_w}, 1
s_lshl_b32 {s_t2}, {s_t0}, 7
v_xor_b32 v{VWR}, {s_t2}, {v_t3}
v_xor_b32 v{VWR+1}, 32, v{VWR}
v_xor_b32 v{VWR+2}, 64, v{VWR}
v_xor_b32 v{VWR+3}, 96, v{VWR}
v_and_b32 {v_t2}, 15, {v_lane}
v_bfe_u32 {v_t3}, {v_lane}, 1, 3
v_xor_b32 {v_t3}, {v_t3}, {v_t1}
v_lshlrev_b32 {v_t3}, 4, {v_t3}
v_lshl_add_u32 {v_t3}, {v_t2}, 7, {v_t3}
s_lshl_b32 {s_t2}, {s_t1}, 13
s_add_u32 {s_t2}, {s_t2}, {L_X}
v_add_u32 v{VXR}, {s_t2}, {v_t3}
v_xor_b32 v{VXR+1}, 64, v{VXR}
s_lshl_b32 {s_t2}, {s_rb}, 1
s_add_u32 {s_t2}, {s_t2}, {s_t1}
s_lshl_b32 {s_t2}, {s_t2}, 10
v_and_b32 {v_t3}, 1, {v_t1}
v_lshrrev_b32 {v_t1}, 1, {v_t1}
v_lshl_add_u32 {v_t1}, {v_t3}, 1, {v_t1}
v_lshlrev_b32 {v_t1}, 15, {v_t1}
v_lshl_add_u32 {v_t1}, {v_t2}, 4, {v_t1}
v_add_u32 {v_st}, {s_t2}, {v_t1}
s_lshl_b32 {s_stb}, {s_cb}, 1
s_add_u32 {s_stb}, {s_stb}, {s_t0}
s_lshl_b32 {s_stb}, {s_stb}, 18
s_cmp_lt_u32 {s_cb}, 5
s_cselect_b32 {s_scale}, {f32(QSCALE)}, 1.0
s_cselect_b32 {s_tag}, {'0xfffe0000' if QRND else '-2'}, -1
''')
TB = opt('tb', 34); TBH = opt('tbh', 1)
if TB >= 0:
    nl = 20 if TBH else 40
    pre(f'''
    s_mov_b32 s14, {640*3840}
    s_mov_b32 s15, 0x20000
    v_lshrrev_b32 v134, 1, {v_lane}
    v_mul_u32_u24 v134, 3840, v134
    v_and_b32 v135, 1, {v_lane}
    v_lshl_add_u32 v134, v135, 7, v134
    v_cmp_gt_u32 vcc, {nl}, {v_lane}
    s_and_b32 s56, {s_rb}, {15 if TBH else 7}
    s_lshl_b32 s56, s56, 2
    s_add_u32 s56, s56, {s_w}
    v_cndmask_b32 v134, {v_big}, v134, vcc
    s_mul_i32 s56, s56, {nl//2*3840}
    s_lshl_b32 s57, {s_cb}, 8
    s_add_u32 s56, s56, s57
    ''')
    if TBH == 2:
        pre(f'''
        v_lshrrev_b32 v134, 1, {v_lane}
        v_mul_u32_u24 v134, 3840, v134
        v_lshl_add_u32 v134, v135, 7, v134
        s_lshr_b32 s56, {s_t}, 3
        s_lshl_b32 s56, s56, 1
        s_add_u32 s56, s56, {s_t}
        s_bitcmp1_b32 s56, 1
        s_cselect_b32 s58, 0, 40
        v_cmp_gt_u32 vcc, s58, {v_lane}
        s_bfe_u32 s58, s56, 0x10002
        s_lshl_b32 s58, s58, 1
        s_and_b32 s56, s56, 1
        v_cndmask_b32 v134, {v_big}, v134, vcc
        s_add_u32 s56, s56, s58
        s_lshr_b32 s58, {s_rb}, 3
        s_lshl_b32 s58, s58, 2
        s_add_u32 s56, s56, s58
        s_lshl_b32 s56, s56, 2
        s_add_u32 s56, s56, {s_w}
        s_mul_i32 s56, s56, {20*3840}
        s_add_u32 s56, s56, s57
        ''')
    touch = Ins(f'buffer_load_dword v135, v134, {sWB}, s56 offen')
    if TB == 0: pre.l.append(touch)
if opt('wot', 0):
    S.l.insert(2, Ins('s_load_dwordx2 s[56:57], s[0:1], 16')); S.l.insert(2, Ins('s_load_dwordx2 s[58:59], s[0:1], 40'))
    S(f'''
    s_cmp_ge_u32 {s_rb}, 8
    s_cselect_b32 s28, s58, s56
    s_cselect_b32 s29, s59, s57
    s_mov_b32 s30, {640*1280}
    s_and_b32 {s_t0}, {s_rb}, 7
    s_mul_i32 {s_t0}, {s_t0}, 15
    s_add_u32 {s_t0}, {s_t0}, {s_cb}
    s_lshl_b32 {s_t0}, {s_t0}, 2
    s_add_u32 {s_t0}, {s_t0}, {s_w}
    s_mul_i32 {s_t0}, {s_t0}, {14*128}
    v_min_u32 v137, 13, {v_lane}
    v_lshlrev_b32 v137, 7, v137
    buffer_load_dword v136, v137, {sTMP}, {s_t0} offen
    ''')
DSW = opt('dsw', -1)
lds_init = mk(setup_lds)
dsw = [x for x in lds_init if x.kind == 'ds']
pre.l += lds_init if DSW < 0 else [x for x in lds_init if x.kind != 'ds']
npre = len(atomize(pre.l))
for n in range(4, 10): rot(pre, n)
setup2(pre)
pre = atomize(pre.l)
SPLIT = min(npre + opt('split', 40), len(pre))
pre, su_post = pre[:SPLIT], pre[SPLIT:]
if d1[PRE:]: weave(pre, d1[PRE:], opt('pre0', 20), min(len(pre), opt('pre1', 120)))
for g in pre: S.extend(g)
stamp('setup')

CTA = opt('cta', 1)
seq = []
def tilewise(ns, k2):
    ns = list(ns); m = len(ns) - k2
    l = [(n, s_, t, rt) for n in ns for s_ in range(2) for t in (0, 1) for rt in range(4)]
    l += [(n, s_, t, rt) for n in ns[:m] for s_ in range(2) for t in (2, 3) for rt in range(4)]
    for rh in range(2): l += [(n, s_, t, rt) for n in ns[m:] for s_ in range(2) for t in (2, 3) for rt in (2 * rh, 2 * rh + 1)]
    return l
for n in range(20 - CTM):
    if n == 10 - CTA: seq += tilewise(range(n, 10), 0)
    elif 10 - CTA < n < 10: pass
    else: seq += [(n, s_, t, rt) for s_ in range(2) for t in range(4) for rt in range(4)]
seq += tilewise(range(20 - CTM, 20), opt('ct2', 1))
if opt('snake', 1):
    for k in range(0, len(seq), 8):
        if len(set(e[:3] for e in seq[k + 4:k + 8])) == 1: seq[k + 4:k + 8] = seq[k + 4:k + 8][::-1]
NG = len(seq)
def G(name, d): return 2 * opt(name, d)
def xreg(n, s_, rt):
    n %= 10
    return ar(32 * n + 16 * s_ + 4 * rt, 4) if n < 8 else vr(XV + 32 * (n - 8) + 16 * s_ + 4 * rt, 4)
BO = opt('bo', 10)
firstuse = {}; lastuse = {}
for k, e in enumerate(seq): firstuse.setdefault(e[0], k); lastuse[e[0]] = k
BARS = list(range(1, 21 - CTM)) + ([19] if CTM > 2 else [])
def bar_of(n): return max(b for b in [0] + BARS if b <= n)
def bar_gap(n): return firstuse[bar_of(n)] - BO
for n in range(4, 20):
    prev = [m for m in range(n) if WSLOT[m] == WSLOT[n] or (m < 10 and WSLOT[n] == 4 + m % 4)]
    assert WISS[n] in BARS and lastuse[prev[-1]] < bar_gap(WISS[n]), n
frag = []; fidx = []
for k, e in enumerate(seq):
    if k == 0 or seq[k - 1][:3] != e[:3]: frag.append([e[:3], k, k])
    frag[-1][2] = k; fidx.append(len(frag) - 1)
reads = []; xreads = []; xseen = set(); first_reads = []
LEAD = opt('lead', 4)
for j, ((n, s_, t), u0, u1) in enumerate(frag):
    lo = max(frag[j - 4][2] if j >= 4 else -1, bar_gap(n))
    sl_ = WSLOT[n]; buf = WRING + 4 * (j & 3)
    l = [Ins(f'ds_read_b64_tr_b16 {vr(buf+2*u,2)}, v{VWX[t] if sl_ >= 4 else VWR+t} offset:{(sl_%4)*16384+(32*s_+4*u)*256}') for u in range(2)]
    if n < 10 and (n, s_) not in xseen:
        xseen.add((n, s_))
        xl = [Ins(f'ds_read_b128 {xreg(n,s_,rt)}, v{VXR+s_} offset:{(n%4)*16384+rt*2048}') for rt in range(4)]
        if j == 0: first_reads += xl
        else: xreads += [Item(x, max(bar_gap(n), u0 - 22 + 2 * i), u0 - LEAD - 3 + i) for i, x in enumerate(xl)]
    if j < 2: first_reads += l
    elif opt('oneds', 0): reads += [Item(x, lo, max(lo, u0 - LEAD - 1 + i)) for i, x in enumerate(l)]
    else: reads.append(Item(l, lo, max(lo, u0 - LEAD)))
mf = []
for k, (n, s_, t, rt) in enumerate(seq):
    acc = vr(ACC[n // 10] + 8 * (4 * (t >> 1) + rt) + 4 * (t & 1), 4)
    mf.append(Ins(f'v_mfma_f32_16x16x32_bf16 {acc}, {vr(WRING+4*(fidx[k]&3),4)}, {xreg(n,s_,rt)}, {"0" if n % 10 == 0 and s_ == 0 else acc}'))
done = {}
for k, (n, s_, t, rt) in enumerate(seq): done[(n // 10, 2 * (t >> 1) + (rt >> 1))] = k
def epi1_tile(p, T):
    g = []
    if T % 2 == 0: g.append(L(f's_add_u32 {s_e0}, {s_stb}, {QKV[p]+2*T*GRP}'))
    for u in range(2):
        b = ACC[p] + 16 * T + 8 * u
        for i in range(8): g.append(L(f'v_mul_f32 v{b+i}, {s_scale}, v{b+i}'))
        for i in range(4): g.append(L(f'v_cvt_pk_bf16_f32 v{b+i}, v{b+2*i}, v{b+2*i+1}'))
        for i in (0, 2): g.append(L(f'v_and_b32 v{b+i}, {s_tag}, v{b+i}'))
    for u in range(2):
        b = ACC[p] + 16 * T + 8 * u
        for i in (1, 0): g.append(L(f'v_permlane16_swap_b32 v{b+i}, v{b+2+i}'))
        st = Stream(); tok = st.vm(f'buffer_store_dwordx4 {vr(b,4)}, {v_st}, {sWS}, {s_e0} offen offset:{256*(2*(T&1)+u)} sc1')
        g.append(st.l)
    return g, tok
assert not QRND
COST['vm'] = 2
cap = [2 - (1 if k + 1 < NG and fidx[k + 1] != fidx[k] else 0) for k in range(NG)]
fixed = {}
FLAGA = opt('flagA', 13)
for n in BARS:
    fixed[bar_gap(n)] = [('BAR', n)]; cap[bar_gap(n)] -= 2 + (2 if n == FLAGA else 0)
dmas = []
def split_salu(l):
    out = []
    for g in l:
        if len(g) > 1 and g[0].kind == 'vm': out += [g[:1], g[1:]]
        else: out.append(g)
    return out
for b in range(0, 17):
    l = split_salu([g for n in range(2, 20) if WISS[n] == b for g in dma_stage(n)])
    if l:
        lo = max(bar_gap(b), 0)
        dmas += paced(l, lo, lo + (G('dsp', 14) if len(l) > 5 else 14), 5)
KV0 = G('kv0', 262); KV1 = G('kv1', 290); KVB = G('kvb', 312)
assert KV0 > bar_gap(16) + 20
kv, tokKV = kvq_loads()
dmas += [Item(mk(poll_check, v_pres, v_p1, sWS, s_F1A) + [('ST', 'pc1')], KV0 - 1, KV0 - 1)] + paced(kv, KV0, KV1, 4)
epi = []
EA1 = G('epiAend', 180); EA0 = done[(0, 0)] + 4
for T in range(4):
    g, tokA = epi1_tile(0, T)
    lo = done[(0, T)] + 4
    it = asap(g, lo, lo + 1)
    for i, x in enumerate(it): x.hi = max(lo, EA0 + (len(g) * T + i) * (EA1 - EA0) // (4 * len(g))) + 2
    epi += it
for T in range(3):
    g, tokB = epi1_tile(1, T)
    lo = done[(1, T)] + 4
    it = asap(g, lo, lo + 1)
    e0 = done[(1, 0)] + 4; e1 = done[(1, 2)] + 4
    for i, x in enumerate(it): x.hi = max(lo, e0 + (len(g) * T + i) * (e1 - e0) // (2 * len(g))) + 1 if T < 2 else NG
    epi += it
NA = opt('na', 20); NWO1 = max(NA, opt('nwo1', 0)); WT = 0
misc = []
TL = opt('tl', 0)
if TL:
    tl_ = L(f'''
    v_lshlrev_b32 v140, 21, {v_lane}
    buffer_load_dword v141, v140, {sWS}, 0 offen
    buffer_load_dword v143, v140, {sOUT}, 0 offen
    ''')
    if TL < TB: misc += paced(tl_, 2 * TL, 2 * TL + 6, 3)
if TB > 0: misc.append(Item(touch, 2 * TB, 2 * TB + 4))
if TL and TL >= TB: misc += paced(tl_, 2 * TL, 2 * TL + 6, 3)
SU1 = G('su1', 44); SU0 = G('su0', 0); assert SU0 == 0 or opt('split', 40) >= 24
sus = asap(su_post, SU0, SU1) if su_post else []
misc += [Item(mk(poll_issue, v_pres, v_zero, sDBG, '0'), max(SU1 + 5, 220), max(SU1 + 9, 224)), Item(mk(poll_check, v_pres, v_zero, sDBG, '0'), 284, 290)]
misc += paced(setup_late(), 290, 298, 6)
misc += paced([Ins(f'v_add_u32 v{VWX[t]}, {L_X}, v{VWR+t}') for t in range(4)], 300, 308, 6)
P1I = KV0 - G('p1d', 20)
wl = []
if NA:
    WO0 = bar_gap(FLAGA) + 2
    misc += [Item(mk(poll_issue, v_pres, v_p2, sWS, s_F1A), G('p2i', 184), G('p2i', 184) + 4), Item(mk(poll_check, v_pres, v_p2, sWS, s_F1A), WO0 - 1, WO0 - 1)]
    wl = paced(wo_loads(0, NA), WO0, G('wo1', 290), 5)
misc += [x for x in wl if x.lo < P1I] + [Item(mk(poll_issue, v_pres, v_p1, sWS, s_F1A), P1I, P1I + 4)] + [x for x in wl if x.lo >= P1I]
if NWO1 > NA: misc += paced(wo_loads(NA, NWO1), KV1, NG - 4, 4)
misc2 = (paced(dsw, 2 * DSW, 2 * DSW + G('dswn', 3), 0) if DSW >= 0 else []) + paced(mask_far(), 460, 490, 8) + paced(zero_pads(), lastuse[17] + 1, lastuse[17] + 12, 4)
st = Stream(); st.wait(tokKV); st('s_barrier'); fixed[KVB] = st.l + [('ST', 'kvb')]; cap[KVB] -= 2
misc2 += paced(att_pre(), KVB, NG - 4, 2)
rep_ = []
gaps, over = schedule(NG, cap, [reads, xreads, dmas, epi, misc, misc2, sus], rep_, opt('oneds', 0))
if '--sched' in ARGS:
    for n in range(20): print(n, ' '.join('%2d' % x for x in rep_[32 * n:32 * n + 32]))
last_def = {}; last_use = {}
for k, m in enumerate(mf):
    for r in m.defs: last_def[r] = k
    for r in m.srcab: last_use[r] = k
lastx = max(k for k, g in enumerate(gaps) for it in g if not isinstance(it, tuple) and it.mn == 'ds_read_b128' and it.uses & {'v14', 'v15'})
assert lastx < 300
for k, g in enumerate(gaps):
    for it in g:
        if isinstance(it, tuple): continue
        if it.kind in ('valu', 'vm') or (it.kind == 'ds' and k > 400):
            for r in it.uses | it.defs: assert last_def.get(r, -1) <= k or k < 200, (k, it.text)
            if 'tr_b16 v' not in it.text:
                for r in it.defs: assert last_use.get(r, -1) <= k, (k, it.text)

S.wait(dma_tok[0])
if opt('waitall', 0): S('s_waitcnt vmcnt(0)')
S('s_barrier')
stamp('first')
S.l += first_reads
for k in range(NG):
    if k == 0 or fidx[k - 1] != fidx[k]: S.use(set().union(*[mf[j].srcab for j in range(k, frag[fidx[k]][2] + 1)]))
    S.l.append(mf[k])
    if opt('slow', 0) and G('slow0', 0) <= k < G('slow1', 160): S('s_nop %d' % opt('slow', 0))
    for it in fixed.get(k, []) + mem_first(gaps[k]):
        if isinstance(it, tuple) and it[0] == 'ST':
            if FINE: stamp(it[1])
        elif isinstance(it, tuple):
            n2 = it[1]
            tk = [dma_tok[m] for m in range(20) if bar_of(m) == n2]
            if n2 == FLAGA: tk.append(tokA)
            S.wait(*tk)
            S('s_barrier')
            if n2 == FLAGA: set_flag(S, v_flag, s_f1, 0)
            if FINE or '--clk' in ARGS or n2 in (10, 14, 16): stamp('b%d' % n2)
        else:
            S.l.append(it)
stamp('p1end')
S(qka(0)); S(qkb(0))
mrest = mask_rest()
S.l += mrest[:8]
g, tokB = epi1_tile(1, 3)
for x in g: S.l += x
S('L_join:')
stamp('join')
nst_join = nstamp[0] - 1

N = len(steps)
groups = []
for n in range(N):
    for g in range(4):
        st = Stream()
        if g == 0 and n + 1 < N: st(qka(n + 1))
        if g == 1 and n > 0: st(pv(n - 1, 1))
        if g == 2 and n + 1 < N: st(qkb(n + 1))
        if g == 3: st(pv(n, 0))
        if g > 0 or n > 0:
            for x in cvts((g - 1) & 3): st(x)
        for x in exps(n, g): st(x)
        groups.append(st.l)
first = {}
for n, (j, q) in enumerate(steps): first.setdefault(j, n)
last = {j: n for n, (j, q) in enumerate(steps)}
for j in range(1, 10):
    base = 4 * (last[j-2] + 1) + 1 if j >= 2 else 0
    for kk in range(2):
        for u in range(2): groups[base + kk].append(v_read(j, kk, u))
    if j + 1 < 10:
        groups[base + 3].append(k0_read(j + 1))
        if (j + 1) % 2 == 0: groups[base + 3].append(k1_read(j + 1))
    need = set(x for kk in range(2) for u in range(2) for x in v_read(j, kk, u).defs)
    if j + 1 < 10: need |= k0_read(j + 1).defs | (k1_read(j + 1).defs if (j + 1) % 2 == 0 else set())
    st = Stream(); st.use(need); groups[4 * first[j] + 3][0:0] = st.l
weave(groups, mrest[8:], 4, 36)
FB = opt('fb', 4)
st = Stream(); st.wait(tokB); st('s_barrier'); set_flag(st, v_flag, s_f1, 0); groups[4 * FB - 1] += st.l
groups[0] += L(f's_add_u32 {s_f1}, {s_f1}, 32768')
P3S = opt('p3s', 11); P3D = opt('p3d', 2)
NWO2 = opt('nwo2', 44)
NWOM = min(NWO2, opt('nwom', 44))
if NWOM > NWO1: weave(groups, wo_loads(NWO1, NWOM), opt('wo0g', 1), 4 * (P3S - P3D) - 1)
if NWO2 > NWOM: weave(groups, wo_loads(NWOM, NWO2), 4 * P3S + opt('bln', 12), 72)
groups[4 * (P3S - P3D) - 1] += mk(poll_issue, v_pres, v_p3, sWS, s_F1B)
groups[4 * P3S - 2] += L(f'''
s_add_u32 s60, {s_bF}, {QKV[1]}
s_add_u32 s61, {s_bS}, {QKV[1]}
s_add_u32 s62, {s_bF}, {QKV[1] + 80*GRP - 512}
s_add_u32 s63, {s_bS}, {QKV[1] + 80*GRP - 512}
''')
groups[4 * P3S - 3] += L(f'''
s_add_u32 s64, {s_bF}, {QKV[1] + 160*GRP}
s_add_u32 s65, {s_bF}, {QKV[1] + 161*GRP - 1088}
s_add_u32 s66, {s_bS}, {QKV[1] + 160*GRP - 2176}
s_mov_b32 m0, {s_mV}
''')
groups[4 * P3S - 1] += mk(poll_check, v_pres, v_p3, sWS, s_F1B)
bl = L(f'''
buffer_load_dword {v_g[0]}, {v_gad}, {sWS}, {s_gb} offen sc1
buffer_load_dword {v_g[1]}, {v_gad}, {sWS}, {s_gb} offen offset:128 sc1
buffer_load_dwordx4 {vr(QB0,4)}, {v_q4}, {sWS}, s60 offen sc1
buffer_load_dwordx4 {vr(KB0,4)}, {v_kb0}, {sWS}, s62 offen sc1
buffer_load_dwordx2 {vr(QB1,2)}, {v_qe}, {sWS}, s61 offen sc1
buffer_load_dwordx2 {vr(QB1+2,2)}, {v_qo}, {sWS}, s61 offen sc1
buffer_load_dwordx2 {ar(AKB1,2)}, {v_kb1}, {sWS}, s63 offen sc1
buffer_load_dwordx4 {vr(KB0+4,4)}, {v_q4}, {sWS}, s62 offen offset:512 sc1
buffer_load_dwordx4 {vr(QB0+4,4)}, {v_q4}, {sWS}, s60 offen offset:512 sc1
buffer_load_dwordx2 {vr(QB1+4,2)}, {v_qo}, {sWS}, s61 offen offset:512 sc1
buffer_load_dwordx4 {vr(KB0+8,4)}, {v_q4}, {sWS}, s62 offen offset:1024 sc1
buffer_load_dwordx2 {ar(AKB1+4,2)}, {v_qo}, {sWS}, s63 offen offset:1024 sc1
buffer_load_dwordx4 {v_l16}, {sWS}, s64 offen sc1 lds
buffer_load_dwordx4 {v_l16}, {sWS}, s65 offen offset:1088 sc1 lds
buffer_load_dwordx4 {v_l16}, {sWS}, s66 offen offset:2176 sc1 lds
''')
st = Stream(); st(f's_add_u32 m0, {s_mV}, 3264\nv_mov_b32 v{QB1+6}, 0\nv_mov_b32 v{QB1+7}, 0')
tokVB = st.vm(f'buffer_load_dwordx4 {v_halo}, {sWS}, 0 offen sc1 lds'); bl.append(st.l)
weave(groups, bl, 4 * P3S, 4 * P3S + opt('bln', 12))
for k, g in enumerate(groups):
    S.l += mem_first(g)
    if FINE and k % 8 == 7: stamp('a%d' % (k // 4))
for x in cvts(3): S(x)
S('s_nop 1')
S(pv(N - 1, 1))
stamp('attA')
S(f'''
s_lshl_b32 {s_t0}, {s_R}, 10
s_mul_i32 {s_t1}, {s_w}, {20*GRP}
s_add_u32 s{SX0}, {s_t0}, {s_t1}
s_mov_b32 {s_tag}, 0xfffe0000
''')
for s_ in range(1, 5): S(f's_add_u32 s{SX0+s_}, s{SX0}, {4*s_*GRP}')
for s_ in range(2): S(f's_add_u32 s{SX0+5+s_}, s{SX0}, {QKV[1] + 4*s_*GRP}')
S(f'''
s_mov_b32 {s_t1}, {hex(64 << 23)}
v_subrev_u32 {v_t1}, {hex(95 << 23)}, v{OA[0]+12}
v_subrev_u32 {v_t2}, {hex(95 << 23)}, v{OA[1]+12}
v_max_u32 {v_t1}, {v_t1}, {v_t2}
v_cmp_le_u32 vcc, {s_t1}, {v_t1}
s_cbranch_vccnz L_truemax
L_Aok:
''')
FBK = Stream()
FBK('@reset')
FBK(f'''
L_truemax:
s_lshr_b32 {s_t1}, {s_q0}, 5
s_sub_u32 {s_t1}, 8, {s_t1}
s_nop 7
''')
def fb_qk(j, q):
    c = vr(M_FAR, 16) if j == q else vr(M_DIAG, 16) if j == 8 + q else '0'
    FBK(f'''
    ds_read_b128 {ar(AK0,4)}, {v_k0} offset:{512*j}
    ds_read_b64 {ar(AK1,2)}, {v_k1} offset:{512*(j & ~1)}
    {mm} {vr(SB[0],16)}, {ar(AK0,4)}, {vr(QA0+4*q,4)}, {c}
    {mm} {vr(SB[0],16)}, {ar(AK1,4)}, {vr(QA1+4*q+2*(j&1),4)}, {vr(SB[0],16)}
    ''')
for q in range(2):
    FBK(f'v_mov_b32 {v_t3}, {NEGINF}')
    for i in range(16): FBK(f'v_mov_b32 v{OA[q]+i}, 0')
    for ps in range(2):
        for j in range(q, q + 9):
            l = lab('skip')
            FBK(f's_cmp_gt_i32 {s_t1}, {j}\ns_cbranch_scc1 {l}')
            if ps == 1:
                for kk in range(2):
                    for u in range(2): FBK(f'ds_read_b64_tr_b16 {ar(AV+4*kk+2*u,2)}, {v_v} offset:{512*j+256*kk+128*u}')
            fb_qk(j, q)
            if ps == 0:
                for i in range(0, 16, 2): FBK(f'v_max3_f32 {v_t3}, {v_t3}, v{SB[0]+i}, v{SB[0]+i+1}')
            else:
                for i in range(16): FBK(f'v_sub_f32 v{SB[0]+i}, v{SB[0]+i}, {v_t3}')
                for i in range(16): FBK(f'v_exp_f32 v{SB[0]+i}, v{SB[0]+i}')
                for i in range(8): FBK(f'v_cvt_pk_bf16_f32 v{P0+i}, v{SB[0]+2*i}, v{SB[0]+2*i+1}')
                for kk in range(2): FBK(f'{mm} {vr(OA[q],16)}, {ar(AV+4*kk,4)}, {vr(P0+4*kk,4)}, {vr(OA[q],16)}')
                FBK('s_nop 7')
            FBK(l + ':')
        if ps == 0:
            FBK(f'''
            s_nop 1
            v_mov_b32 {v_t4}, {v_t3}
            v_permlane32_swap_b32 {v_t3}, {v_t4}
            v_max_f32 {v_t3}, {v_t3}, {v_t4}
            ''')
FBK('s_nop 15\ns_branch L_Aok')

OSC = '' if opt('local', 0) else ' sc1'
def epi2(br, q, o, pk=False):
    st = Stream()
    st(f'v_rcp_f32 {v_t1}, v{o+12}')
    if br: st(f'v_sub_f32 {v_g[q]}, 1.0, {v_g[q]}')
    st(f'v_mul_f32 {v_t1}, {v_g[q]}, {v_t1}')
    if pk:
        for i in range(0, 12, 2): st(f'v_pk_mul_f32 {vr(o+i,2)}, {vr(o+i,2)}, {vr(22,2)} op_sel_hi:[1,0]')
    else:
        for i in range(12): st(f'v_mul_f32 v{o+i}, {v_t1}, v{o+i}')
    for i in (0, 4, 8): st(f'v_and_or_b32 v{o+i}, v{o+i}, {s_tag}, {v_o4}')
    for i in range(6): st(f'v_cvt_pk_bf16_f32 v{o+i}, v{o+2*i}, v{o+2*i+1}')
    st(f'buffer_store_dwordx4 {vr(o,4)}, {v_q4}, {sWS}, {"s60" if br else s_bF} offen offset:{512*q} sc1')
    tok = st.vm(f'buffer_store_dwordx2 {vr(o+4,2)}, {v_qe}, {sWS}, {"s61" if br else s_bS} offen offset:{512*q} sc1')
    return st.l, tok
qkB = [[Ins(x)] for x in (
    f'{mm} {vr(SP[0],16)}, {vr(KB0,4)}, {vr(QB0,4)}, {vr(MB_PREV0,16)}',
    f'{mm} {vr(SP[0],16)}, {ar(AKB1,4)}, {vr(QB1,4)}, {vr(SP[0],16)}',
    f'{mm} {vr(SD[0],16)}, {vr(KB0+4,4)}, {vr(QB0,4)}, {vr(MB_DIAG,16)}',
    f'{mm} {vr(SD[0],16)}, {ar(AKB1,4)}, {vr(QB1+2,4)}, {vr(SD[0],16)}',
    f'{mm} {vr(SP[1],16)}, {vr(KB0+4,4)}, {vr(QB0+4,4)}, {vr(MB_PREV,16)}',
    f'{mm} {vr(SP[1],16)}, {ar(AKB1,4)}, {vr(QB1+4,4)}, {vr(SP[1],16)}',
    f'{mm} {vr(SD[1],16)}, {vr(KB0+8,4)}, {vr(QB0+4,4)}, {vr(MB_DIAG,16)}',
    f'{mm} {vr(SD[1],16)}, {ar(AKB1+4,4)}, {vr(QB1+4,4)}, {vr(SD[1],16)}')]
st = Stream(); st.wait(tokVB)
for u in range(2): st(f'ds_read_b64_tr_b16 {ar(VB+2*u,2)}, {v_vh} offset:{128*u}')
for t in range(2):
    for kk in range(2):
        for u in range(2): st(f'ds_read_b64_tr_b16 {ar(VB+4+8*t+4*kk+2*u,2)}, {v_vb} offset:{512*t+256*kk+128*u}')
vbr = st.l
e0, _ = epi2(0, 0, OA[0], True); e1, tokOA = epi2(0, 1, OA[1], True)
S.l += e0 + e1
st2('epiA')
adr = Stream()
adr(f'''
v_lshrrev_b32 v14, 4, {v_lane}
v_and_b32 v15, 15, {v_lane}
v_lshlrev_b32 v5, 15, v14
v_lshl_add_u32 v5, v15, 4, v5
''')
for rho in range(4):
    adr(f'''
    s_add_u32 {s_t0}, {s_w}, {rho}
    s_and_b32 {s_t0}, {s_t0}, 3
    s_lshl_b32 s{56+rho}, {s_t0}, 8
    v_add_u32 v{V4+rho}, s{56+rho}, v5
    ''')
adr2 = Stream()
for rho in range(4):
    adr2(f's_mul_i32 {s_t1}, s{56+rho}, 60')
    if rho: adr2(f's_add_u32 {s_t1}, {s_t1}, {(rho-1)*5120}\nv_add_u32 v{VRW+rho-1}, {s_t1}, {v_l16}')
    else: adr2(f'v_add_u32 {v_rr}, {s_t1}, {v_l16}')
adr2(f'''
v_mul_u32_u24 v15, 1280, v15
v_mad_u32_u24 v15, v14, 40, v15
s_lshl_b32 {s_t0}, {s_R}, 2
s_add_u32 {s_t0}, {s_t0}, {s_w}
s_mul_i32 {s_t0}, {s_t0}, {16*1280}
s_mul_i32 {s_t1}, {s_C}, 160
s_add_u32 {s_t0}, {s_t0}, {s_t1}
v_add_u32 {v_out}, {s_t0}, v15
''')
for s_ in range(2, 5): adr2(f's_add_u32 s{SX0+5+s_}, s{SX0}, {QKV[1] + 4*s_*GRP}')
weave(qkB, vbr, 2, 6)
NWOB = max(NWO2, opt('nwob', 44))
if NWOB > NWO2: weave(qkB, wo_loads(NWO2, NWOB), 0, 6)
weave(qkB, adr.l, 0, 8)
for g in qkB[:6]: S.l += g
st2('qkB')
def softB(q):
    st = Stream()
    b = SP[q] + 8
    assert SD[q] == SP[q] + 16
    st(f'v_max3_f32 {v_t3}, v{b}, v{b+1}, v{b+2}')
    st(f'v_max3_f32 {v_t4}, v{b+3}, v{b+4}, v{b+5}')
    for i in range(6, 22, 4):
        st(f'v_max3_f32 {v_t3}, {v_t3}, v{b+i}, v{b+i+1}')
        st(f'v_max3_f32 {v_t4}, {v_t4}, v{b+i+2}, v{b+i+3}')
    st(f'v_max3_f32 {v_t3}, {v_t3}, v{b+22}, v{b+23}')
    st(f'v_max_f32 {v_t3}, {v_t3}, {v_t4}')
    st(f'v_mov_b32 {v_t4}, {v_t3}')
    st(f'v_permlane32_swap_b32 {v_t3}, {v_t4}')
    st(f'v_max_f32 {v_t3}, {v_t3}, {v_t4}')
    for i in range(0, 24, 2): st(f'v_pk_add_f32 {vr(b+i,2)}, {vr(b+i,2)}, {vr(24,2)} op_sel_hi:[1,0] neg_lo:[0,1] neg_hi:[0,1]')
    vop = [VB if q == 0 else VB + 8, VB + 4 + 8 * q, VB + 8 + 8 * q]
    for c in range(3):
        for i in range(8): st(f'v_exp_f32 v{b+8*c+i}, v{b+8*c+i}')
        if c: st(f'{mm} {vr(OB[q],16)}, {ar(vop[c-1],4)}, {vr(b+8*(c-1),4)}, {"0" if c == 1 else vr(OB[q],16)}')
        for i in range(4): st(f'v_cvt_pk_bf16_f32 v{b+8*c+i}, v{b+8*c+2*i}, v{b+8*c+2*i+1}')
    return st.l, Ins(f'{mm} {vr(OB[q],16)}, {ar(vop[2],4)}, {vr(b+16,4)}, {vr(OB[q],16)}')
l0, m0_ = softB(0); l1, m1_ = softB(1)
lb = l0[:5] + qkB[6] + l0[5:10] + qkB[7] + l0[10:] + l1[:2] + [m0_] + l1[2:]
def o_load(br, s_, rho):
    b = OF[br][s_] + 4 * rho
    return L(f'buffer_load_dwordx4 {vr(b,4)}, v{V4+rho}, {sWS}, s{SX0+5*br+s_} offen sc1')
order = (1, 2, 3, 0)
ogrp = [[(0, s_, rho) for rho in range(4)] for s_ in range(5)] + [[(1, s_, rho) for s_ in range(5)] for rho in order]
ol = [x for g in ogrp for e in g for x in o_load(*e)]
e0, _ = epi2(1, 0, OB[0]); e1, tokOB = epi2(1, 1, OB[1], True)
lb += e0[:2] + [m1_] + e0[2:] + e1
NO0 = opt('no0', 8); NOE = opt('noe', 4); OE = opt('oe', 1)
if NOE:
    k_ = [i for i, x in enumerate(lb) if x.kind == 'mfma'][-OE]
    lb[k_ + 1:k_ + 1] = ol[:NOE]
BST = opt('bst', 1)
bst = []
if BST:
    bst = [x for x in lb if x.kind == 'vm' and 'store' in x.mn]
    lb = [x for x in lb if x not in bst]
    if BST > 1:
        lb += L(f'v_mov_b32 v6, {v_q4}\nv_mov_b32 v7, {v_qe}')
        bst = [Ins(x.text.replace(v_q4 + ',', 'v6,').replace(v_qe + ',', 'v7,')) for x in bst]
S.l += lb
stamp('epiB')
S.l += ol[NOE:NO0]
if BST == 1: S.l += bst
S.l += adr2.l
NWO4 = max(NWOB, opt('nwo4', 44))
for g in wo_loads(NWOB, NWO4): S.l += g
st2('oiss')

def o_check(i):
    regs = [OF[br][s_] + 4 * rho + j for br, s_, rho in ogrp[i] for j in (0, 2)]
    def tree():
        st = Stream()
        for k in range(0, len(regs), 2): st(f'v_bitop3_b32 v1, {"v1" if k else "1"}, v{regs[k]}, v{regs[k+1]} bitop3:0x80')
        st('v_cmp_eq_u32 vcc, 0, v1')
        return st.l
    l = lab('again'); b = lab('fresh')
    tail('@reset')
    tail(f'{l}:\ns_mov_b32 {s_cnt}, 0\n{l}_a:')
    for e in ogrp[i]: tail.l += o_load(*e)
    tail(f's_add_u32 {s_cnt}, {s_cnt}, 1')
    if STAMPS: tail(f'v_writelane_b32 v0, {s_cnt}, {60 + (i >= 5)}')
    tail('s_waitcnt vmcnt(0)')
    tail.l += tree()
    tail(f's_cbranch_vccz {b}\ns_cmp_lt_u32 {s_cnt}, 0x40000\ns_cbranch_scc1 {l}_a\ns_branch {b}')
    t = tree()
    return t[:-1] + [t[-1:] + L(f's_cbranch_vccnz {l}\n{b}:')]
def mf3(br, s_, rho, ct):
    acc = vr(AC3 + 20 * rho + 4 * ct, 4)
    return [Ins(f'v_mfma_f32_16x16x32_bf16 {acc}, {ar(100*br+20*s_+4*ct,4)}, {vr(OF[br][s_]+4*rho,4)}, {"0" if br == 0 and s_ == 0 else acc}')]
sl = [mf3(*e, ct) for g in ogrp for e in g for ct in range(5)]
PB0 = opt('pb0', 36); PB1 = opt('pb1', 55)
if NO0 < 20: weave(sl, ol[NO0:20], 0, PB0)
if BST > 1: weave(sl, bst, BST, BST + 8)
if NWO4 < 50:
    S(f'v_mov_b32 v15, {v_l16}')
    weave(sl, wo_loads(NWO4, 50, 'v15'), PB0, PB1)
weave(sl, ol[20:], PB1, opt('no1', 140))
for it in o_check(0): S.l += it if isinstance(it, list) else [it]
stamp('poll4')
gstart = [20 * i for i in range(5)] + [100 + 25 * i for i in range(4)]
for i in range(1, 9): weave(sl, o_check(i), gstart[i] - opt('chk', 6), gstart[i])
for k, g in enumerate(sl):
    for it in g[1:]:
        if it.kind == 'vm': assert not any(it.defs & x.uses for j in range(k + 1) for x in sl[j] if x.kind != 'vm'), it.text
for i, rho in enumerate((1, 2, 3)):
    wr = [Ins(f'ds_write_b128 v{VRW+rho-1}, {vr(AC3+20*rho+4*ct,4)} offset:{1024*ct}') for ct in range(5)]
    lo = 125 + 25 * i + 3
    weave(sl, wr, lo, lo + (15 if i < 2 else 5))
sl[189] += L('s_waitcnt lgkmcnt(0)\ns_barrier')
rd = [Ins(f'ds_read_b128 {vr(RED+20*k+4*ct,4)}, {v_rr} offset:{5120*k+1024*ct}') for ct in range(5) for k in range(3)]
weave(sl, rd, 190, 200)
for k, g in enumerate(sl):
    S.l += mem_first(g)
    if k == 99: stamp('mf3A')
    elif k in (0, 19, 39, 59, 79, 124, 149, 174, 188, 189): st2('m%d' % k)
stamp('mf3')
for i in range(0, 20, 2):
    S(f'v_pk_add_f32 {vr(RED+i,2)}, {vr(RED+i,2)}, {vr(RED+20+i,2)}')
    S(f'v_pk_add_f32 {vr(AC3+i,2)}, {vr(AC3+i,2)}, {vr(RED+40+i,2)}')
for i in range(0, 20, 2):
    S(f'v_pk_add_f32 {vr(AC3+i,2)}, {vr(AC3+i,2)}, {vr(RED+i,2)}')
for i in range(10):
    S(f'v_cvt_pk_bf16_f32 v{AC3+i}, v{AC3+2*i}, v{AC3+2*i+1}')
S(f'''
buffer_store_dwordx4 {vr(AC3,4)}, {v_out}, {sOUT}, 0 offen
buffer_store_dwordx4 {vr(AC3+4,4)}, {v_out}, {sOUT}, 0 offen offset:16
buffer_store_dwordx2 {vr(AC3+8,2)}, {v_out}, {sOUT}, 0 offen offset:32
''')
if AMP:
    S('s_waitcnt vmcnt(0)')
    stamp('end')
    S(f'''
    s_cmp_lg_u32 s2, {opt('ampwg', 9)}
    s_cbranch_scc1 L_end
    s_memrealtime s[84:85]
    s_waitcnt lgkmcnt(0)
    s_sub_u32 s80, s82, s80
    s_lshl_b32 s80, s80, 2
    s_min_u32 s80, s80, 100000
    {('s_mov_b32 s80, %d' % opt('ampc', 0)) if opt('ampc', 0) else ''}
    L_amp:
    s_memrealtime s[86:87]
    s_waitcnt lgkmcnt(0)
    s_sub_u32 s86, s86, s84
    s_cmp_lt_u32 s86, s80
    s_cbranch_scc1 L_amp
    ''')
if STAMPS:
    stamp('red')
    S('s_waitcnt vmcnt(0)')
    stamp('end')
    S(f'''
    s_waitcnt lgkmcnt(0)
    s_cmp_lg_u32 {s_w}, 0
    s_cbranch_scc1 L_end
    v_writelane_b32 v0, s{ST0+2*((nstamp[0]-1)&1)}, {nstamp[0]-1}
    s_lshl_b32 {s_t0}, s2, 8
    s_add_u32 {s_t0}, {s_t0}, {STAMP_OFF}
    v_mbcnt_lo_u32_b32 v3, -1, 0
    v_mbcnt_hi_u32_b32 v3, -1, v3
    v_lshlrev_b32 v3, 2, v3
    buffer_store_dword v0, v3, {sWS}, {s_t0} offen
    ''')
    assert nstamp[0] <= 56, nstamp[0]
    open(OUT + '.stamps', 'w').write(' '.join(n or str(i) for i, n in enumerate(stamp_names)))
S('s_endpgm')

T = Stream()
nstamp[0] = 1
T('@reset')
T(f'''
L_spare:
s_waitcnt lgkmcnt(0)
s_load_dwordx2 s[56:57], s[0:1], 16
s_load_dwordx2 s[58:59], s[0:1], 40
s_load_dwordx2 s[8:9], s[0:1], 48
s_mov_b32 s30, {640*1280}
s_mov_b32 s10, 1280
''')
common_consts(T)
T(f'''
v_mov_b32 v64, 0
v_mov_b32 v65, 0
v_mov_b32 v66, 0
v_mov_b32 v67, 0
v_lshlrev_b32 {v_t1}, 4, v0
s_lshl_b32 {s_t2}, {s_rb}, 12
s_add_u32 {s_t2}, {s_t2}, {FLG}
''')
tokz = T.vm(f'buffer_store_dwordx4 v[64:67], {v_t1}, {sWS}, {s_t2} offen sc1')
def handshake():
    T.wait(tokz)
    T(f'''
    s_barrier
    s_lshl_b32 {s_t1}, {s_rb}, 2
    buffer_store_dword {v_one}, {v_flag}, {sDBG}, {s_t1} offen sc1
    ''')
STB = opt('stb', 0)
if STB:
    T(f'''
    s_mov_b32 s14, {640*3840}
    s_mov_b32 s15, 0x20000
    s_lshl_b32 {s_t0}, {s_rb}, 2
    s_add_u32 {s_t0}, {s_t0}, {s_w}
    s_mul_i32 {s_t0}, {s_t0}, {300*128}
    v_min_u32 {v_t1}, 59, {v_lane}
    v_lshlrev_b32 {v_t1}, 7, {v_t1}
    ''')
    for i in range(5):
        T(f'buffer_load_dword v{68+i}, {v_t1}, {sWB}, {s_t0} offen\ns_add_u32 {s_t0}, {s_t0}, {60*128}')
        if i == 2: handshake()
T(f'''
s_and_b32 {s_e0}, {s_rb}, 1
s_lshl_b32 {s_e0}, {s_e0}, 2
s_add_u32 {s_e0}, {s_e0}, {s_w}
s_bfe_u32 {s_e1}, {s_rb}, 0x20001
s_mul_i32 {s_t2}, {s_e0}, 160
s_mul_i32 {s_t1}, {s_e1}, {160*1280}
s_add_u32 {s_t2}, {s_t2}, {s_t1}
s_mov_b32 {s_t0}, {(1<<32)//10+1}
''')
for i in range(5):
    T(f'''
    v_add_u32 {v_t1}, {64*i}, {v_lane}
    v_mul_hi_u32 {v_t2}, {v_t1}, {s_t0}
    v_mul_u32_u24 {v_t3}, 10, {v_t2}
    v_sub_u32 {v_t1}, {v_t1}, {v_t3}
    v_mul_u32_u24 {v_t2}, 1280, {v_t2}
    v_lshl_add_u32 {v_t2}, {v_t1}, 4, {v_t2}
    v_add_u32 v{2+i}, {s_t2}, {v_t2}
    ''')
T(f'''
s_mul_i32 {s_mW}, {s_w}, 25600
s_waitcnt lgkmcnt(0)
s_cmp_ge_u32 {s_rb}, 8
s_cselect_b32 s28, s58, s56
s_cselect_b32 s29, s59, s57
''')
wtok = {}
def wo_dma(b):
    T(f's_mov_b32 {s_t3}, {b*32*1280}')
    for i in range(5):
        T(f's_add_u32 m0, {s_mW}, {1024*(5*b+i)}')
        wtok[5 * b + i] = T.vm(f'buffer_load_dwordx4 v{2+i}, {sTMP}, {s_t3} offen lds')
wo_dma(0); wo_dma(1)
T(f'''
v_lshrrev_b32 {v_t1}, 4, {v_lane}
v_bfe_u32 {v_t2}, {v_lane}, 2, 2
v_and_b32 {v_t3}, 3, {v_lane}
v_mul_u32_u24 {v_t3}, 40, {v_t3}
v_add_u32 {v_t3}, {s_mW}, {v_t3}
v_lshl_add_u32 {v_t2}, {v_t1}, 3, {v_t2}
v_mul_u32_u24 {v_t2}, 160, {v_t2}
v_add_u32 v7, {v_t2}, {v_t3}
s_lshr_b32 {s_t0}, {s_rb}, 3
s_lshl_b32 {s_t0}, {s_t0}, 3
s_add_u32 {s_t0}, {s_t0}, {s_e0}
s_lshl_b32 {s_t0}, {s_t0}, 2
s_add_u32 {s_t0}, {s_t0}, {s_e1}
s_mul_i32 {s_stb}, {s_t0}, 25600
v_and_b32 v9, 15, {v_lane}
v_lshlrev_b32 v9, 4, v9
v_mul_u32_u24 v10, 1280, {v_t1}
v_add_u32 v10, v10, v9
v_cmp_eq_u32 vcc, 0, v9
v_lshlrev_b32 {v_t1}, 2, {v_t1}
s_lshl_b32 {s_rot}, {s_rb}, 2
s_add_u32 {s_rot}, {s_rot}, {s_w}
v_cndmask_b32 v11, {v_big}, {v_t1}, vcc
''')
stamp('', T)
setup2(T); setup_lds(T)
wo_dma(2)
stamp('', T)
for s_ in range(5):
    T.wait(wtok[5 * s_ + 4])
    if s_ == 0 and not STB: handshake()
    for ct in range(5):
        f = 5 * s_ + ct
        for u in range(2):
            T(f'ds_read_b64_tr_b16 {vr(140+4*f+2*u,2)}, v7 offset:{(32*s_+4*u)*160+8*ct}')
    if s_ + 3 < 5: wo_dma(s_ + 3)
    if s_ == 2: poll_issue(T, v_pres, v_zero, sDBG, '0')
    for ct in range(5):
        f = 5 * s_ + ct
        if f % 4 == 0: T(f's_add_u32 {s_t1}, {s_stb}, {WOF + f*1024}')
        tokw = T.vm(f'buffer_store_dwordx4 {vr(140+4*f,4)}, {v_l16}, {sWS}, {s_t1} offen offset:{(f%4)*1024} sc1')
    if s_ == 2: tokw2 = tokw
    if FINE: stamp('', T)
poll_check(T, v_pres, v_zero, sDBG, '0')
stamp('', T)
GW = 224; GA = 48
T(f's_mul_i32 {s_t1}, {s_rot}, {32*1280}')
for j in range(5): T(f'buffer_load_dwordx4 {vr(GW+4*j,4)}, v9, {sWA}, 0 offen offset:{256*j}')
for i in range(8):
    for j in range(5): T(f'buffer_load_dwordx4 {vr(64+20*i+4*j,4)}, v10, {sX}, {s_t1} offen offset:{256*j}')
    T(f's_add_u32 {s_t1}, {s_t1}, {4*1280}')
    if i == 1:
        T.wait(tokw)
        T('s_barrier')
        set_flag(T, v_flag, s_f1, 0)
        stamp('', T)
poll_issue(T, v_pres, v_p1, sWS, s_F1A)
T(f's_lshl_b32 {s_rot}, {s_rot}, 7\ns_add_u32 {s_rot}, {s_rot}, {G_OFF}')
for i in range(8):
    T(f'v_mov_b32 v{GA+i}, 0')
    for k in range(20): T(f'v_dot2c_f32_bf16 v{GA+i}, v{64+20*i+k}, v{GW+k}')
for sh in (8, 4, 2, 1):
    for i in range(8): T(f'v_add_f32_dpp v{GA+i}, v{GA+i}, v{GA+i} row_ror:{sh} row_mask:0xf bank_mask:0xf')
for i in range(8): T(f'v_mul_f32 v{GA+i}, {f32(-math.log2(math.e))}, v{GA+i}')
for i in range(8): T(f'v_exp_f32 v{GA+i}, v{GA+i}')
for i in range(8): T(f'v_add_f32 v{GA+i}, 1.0, v{GA+i}')
for i in range(8): T(f'v_rcp_f32 v{GA+i}, v{GA+i}')
T.l += setup_late()
for i in range(8): tokg = T.vm(f'buffer_store_dword v{GA+i}, v11, {sWS}, {s_rot} offen offset:{16*i} sc1')
stamp('', T)
T.l += mask_far() + zero_pads()
if NA:
    poll(T, v_t1, v_p2, sWS, s_F1A)
    for g in wo_loads(0, NA): T.l += g
poll_check(T, v_pres, v_p1, sWS, s_F1A)
stamp('', T)
kv, _ = kvq_loads()
for g in kv: T.l += g
for g in wo_loads(NA, NWO1): T.l += g
if WT > KV0:
    a_, b_ = wo_touch(); T.l += a_ + b_
T('s_waitcnt vmcnt(0) lgkmcnt(0)\ns_barrier')
T.l += att_pre()
T(qka(0)); T(qkb(0))
T.l += mask_rest()[:8]
T('s_nop 7')
assert nstamp[0] <= nst_join
while nstamp[0] < nst_join: stamp('', T)
T('s_waitcnt lgkmcnt(0)')
T('s_branch L_join')

def undef_check(l, name):
    d = {'v0', 's0', 's1', 's2', 'exec'}; bad = []
    for i in l:
        u = i.uses - d if i.kind not in ('pseudo', 'label', 'none') else set()
        if u: bad.append((sorted(u), i.text))
        d |= i.defs | u
    if bad: print('USE BEFORE DEF in', name, bad)
ib = next(k for k, i in enumerate(S.l) if 'L_spare' in i.text); ij = next(k for k, i in enumerate(S.l) if i.text == 'L_join:')
undef_check(S.l, 'main'); undef_check(S.l[:ib] + T.l + S.l[ij:], 'spare')
S.extend(T); S.extend(tail)
S('L_end:\ns_endpgm')
S.extend(FBK)

XP = opt('xp', 0)
if XP:
    def drop(i):
        if XP & 96 and 's_cbranch_vccnz L_again' in i.text: return True
        if XP & 32 and 'store_dwordx2' in i.text and 's16' in i.uses: return True
        if XP & 128 and 'store' in i.text and 's16' in i.uses and (v_q4 in i.uses or v_qe in i.uses): return True
        if i.kind != 'vm': return False
        t = i.text
        if XP & 1 and s_e2 in i.uses and 'load' in t: return True
        if XP & 2 and 'load' in t and i.uses & {'v%d' % r for r in range(2, 10)} and 's16' in i.uses and 'lds' not in t and i.uses & {'s%d' % r for r in list(range(60, 66)) + list(range(70, 76))} and 'v8' not in i.uses - {None} | set() or False: return True
        if XP & 4 and 'load' in t and 's16' in i.uses and (v_q4 in i.uses or v_qe in i.uses or v_qo in i.uses or v_kb1 in i.uses) and i.uses & {'s60', 's61', 's62', 's63'}: return True
        if XP & 8 and 'store' in t and v_st in i.uses and 's16' in i.uses and i.tok not in (tokA, tokB): return True
        if XP & 16 and 'lds' in t and s_e1 in i.uses and i.tok is not tokKV: return True
        return False
    S.l = [i for i in S.l if not drop(i)]
stats = []
body = finalize(S, stats)
hdr = open('cdna_kernels/%s.s.ref' % NAME).read().split('; Override')[0]
K = NAME + '_kernel'
txt = hdr + f'''; Generated by a hand-written generator script: one persistent workgroup per CU, phases chained by flags in d_ws.
; @launch grid=(256,1,1) block=(256,1,1) lds={LDS_BYTES}
.amdgcn_target "amdgcn-amd-amdhsa--gfx950"
.text
.globl {K}
.p2align 8
.type {K},@function
{K}:
''' + '\n'.join(body) + f'''
.section .rodata,"a"
.p2align 6
.amdhsa_kernel {K}
  .amdhsa_next_free_vgpr 512
  .amdhsa_next_free_sgpr 102
  .amdhsa_accum_offset 256
  .amdhsa_group_segment_fixed_size 0
  .amdhsa_kernarg_size 80
  .amdhsa_user_sgpr_count 2
  .amdhsa_user_sgpr_kernarg_segment_ptr 1
  .amdhsa_system_sgpr_workgroup_id_x 1
  .amdhsa_float_denorm_mode_32 3
.end_amdhsa_kernel
'''
open(OUT, 'w').write(txt)
print('instructions:', len(body), ' nops:', len(stats), sum(s[0] for s in stats), ' overflow slots', over, 'WS_SIZE', WS_SIZE)
if '--nops' in ARGS:
    for s in stats: print(s)
```

```python
import sys, math, struct
from fw import *

NAME = "gated_mix__sliding_block__sliding_local_dilated__prompt"
ARGS = sys.argv[1:]
STAMPS = '--stamps' in ARGS
FINE = '--fine' in ARGS
FINE2 = '--fine2' in ARGS
def opt(name, default):
    for a in ARGS:
        if a.startswith('--' + name + '='): return int(a.split('=')[1])
    return default
OUT = [a for a in ARGS if not a.startswith('--')]
OUT = OUT[0] if OUT else 'k.s'

GRP = 2048 * 16
QKV = [0, 240 * GRP]
WOF = 480 * GRP
HOFF = WOF + 64 * 25600
G_OFF = HOFF + 64 * 16384
FLG = G_OFF + 8192
F1 = [FLG, FLG + 32768]
WS_SIZE = FLG + 65536
STAMP_OFF = WS_SIZE
BIG = 0x40000000
L_X = 65536
GS = 8192 + 64
L_KA = L_X + 16384; L_VA = L_KA + 3 * GS
L_VB = 131072 + 512; VBW = 4608
L_ONE = L_VB + 4 * VBW + ((L_VA + 3 * GS) % 256)
L_TAB = L_VB + 4 * VBW + 8192 + 256
LDS_BYTES = 160 * 1024
assert L_TAB + 1024 <= LDS_BYTES and L_VA + 3 * GS <= L_VB

def f32(x): return '0x%08x' % struct.unpack('<I', struct.pack('<f', x))[0]
QSCALE = (20 ** -0.5) * math.log2(math.e)
NEGINF = '0xff800000'

sX, sWA, sWB, sWS, sOUT, sDBG, sTMP = 's[4:7]', 's[8:11]', 's[12:15]', 's[16:19]', 's[20:23]', 's[24:27]', 's[28:31]'
s_xcd, s_t, s_rb, s_cb, s_w = 's32', 's33', 's34', 's35', 's36'
s_t0, s_t1, s_t2, s_t3 = 's37', 's38', 's39', 's40'
s_stb, s_scale, s_inv, s_mW, s_mX = 's41', 's42', 's43', 's44', 's45'
s_hd, s_r2, s_so, s_q0 = 's46', 's47', 's48', 's49'
s_cnt, s_f1, s_tag, s_hb, s_k1, s_wob = 's50', 's51', 's52', 's53', 's54', 's55'
SW0, SX0 = 60, 70
ST0 = 80
s_bF, s_bS, s_dF, s_dS, s_mK, s_mV, s_gb, s_rot = 's84', 's85', 's86', 's87', 's88', 's89', 's90', 's91'
s_e0, s_e1, s_e2, s_e3 = 's92', 's93', 's94', 's95'
s_F1A, s_F1B, s_F2, s_q0z, s_R, s_C = 's96', 's97', 's98', 's99', 's100', 's101'
ROWMAP = opt('rowmap', 0); QRND = opt('qrnd', 0)
v_lane = 'v1'
VWD, VXD, VWR, VXR = 2, 6, 10, 14
VWX = [14, 15, 42, 44]
v_dma, v_gad, v_kb0, v_k1 = 'v6', 'v7', 'v8', 'v9'
v_st, v_flag, v_one, v_pres, v_l16, v_big = 'v16', 'v17', 'v18', 'v19', 'v20', 'v21'
v_t1, v_t2, v_t3, v_t4, v_tmp, v_zero = 'v22', 'v23', 'v24', 'v25', 'v26', 'v27'
(v_p1, v_p2, v_p3, v_q4, v_qe, v_qo, v_k0, v_v, v_vb, v_vh, v_kb1, v_halo, v_mA, v_mB0, v_flagw, v_o4, v_o2, v_h, v_r, v_tabc) = ['v%d' % i for i in range(28, 48)]
WRING = 48
ACC = [64, 128]
XV = 192
E0, P0 = 48, 56
SB = [64, 192]; M_FAR, M_DIAG = 80, 208; QA0, QA1 = 96, 104; OA = [224, 240]
QB0, QB1, KB0 = 128, 136, 144
v_g = ['v46', 'v47']
MB_DIAG, MB_PREV, MB_PREV0 = 160, 168, 176
SP = [64, 192]; SD = [80, 208]; OB = [96, 112]
V4, V2, VRW, v_rr, v_out, v_p4 = 2, 6, 10, 'v13', 'v14', 'v15'
AC3 = 16; OF = [[224, 128, 144, 160, 176], [96, 112, 192, 208, 240]]; RED = 128
AK0, AK1, AV, AKB1 = 200, 208, 216, 232
VB = 200

def vr(b, n): return 'v[%d:%d]' % (b, b + n - 1)
def ar(b, n): return 'a[%d:%d]' % (b, b + n - 1)
mm = 'v_mfma_f32_32x32x16_bf16'

S = Stream()
tail = Stream()
nstamp = [0]; stamp_names = []
AMP = [a.split('=')[1].split(',') for a in ARGS if a.startswith('--amp=')]
AMP = AMP[0] if AMP else None
def stamp(name='', st=None):
    if AMP and name in AMP and st is None: S('s_memrealtime s[%d:%d]' % (ST0 + 2 * AMP.index(name), ST0 + 2 * AMP.index(name) + 1))
    if STAMPS:
        st = st or S
        k = nstamp[0]
        if k == 1:
            for i in range(56, 64): st('v_writelane_b32 v0, 0, %d' % i)
        if k > 0: st('v_writelane_b32 v0, s%d, %d' % (ST0 + 2 * ((k - 1) & 1), k - 1))
        st('s_memrealtime s[%d:%d]' % (ST0 + 2 * (k & 1), ST0 + 2 * (k & 1) + 1))
        if '--clk' in ARGS and st is S and 3 <= k <= 24:
            if k > 3: st('v_writelane_b32 v0, s%d, %d' % (28 + 2 * ((k - 1) & 1), 30 + k - 1))
            st('s_memtime s[%d:%d]' % (28 + 2 * (k & 1), 29 + 2 * (k & 1)))
    stamp_names.append(name)
    nstamp[0] += 1
def st2(n):
    if FINE2: stamp(n)
nlab = [0]
def lab(p):
    nlab[0] += 1
    return 'L_%s_%d' % (p, nlab[0])

PIDX = {v_zero: 0, v_p1: 1, v_p2: 2, v_p3: 3, v_p4: 4}
def poll_issue(st, res, adr, srd, soff, off=0):
    st('buffer_load_dword %s, %s, %s, %s offen offset:%d sc1' % (res, adr, srd, soff, off))
def poll_check(st, res, adr, srd, soff, off=0):
    l = lab('poll'); b = lab('back')
    st('v_cmp_ne_u32 vcc, 1, %s' % res)
    st('s_cbranch_vccnz %s' % l)
    st(b + ':')
    tail('@reset')
    tail(f'''
    {l}:
    s_mov_b32 {s_cnt}, 0
    {l}_a:
    buffer_load_dword {res}, {adr}, {srd}, {soff} offen offset:{off} sc1
    s_add_u32 {s_cnt}, {s_cnt}, 1
    {('v_writelane_b32 v0, %s, %d' % (s_cnt, 56 + PIDX[adr] + off // 4)) if STAMPS else ''}
    s_waitcnt vmcnt(0)
    v_cmp_ne_u32 vcc, 1, {res}
    s_cbranch_vccz {b}
    s_cmp_lt_u32 {s_cnt}, 0x40000
    s_cbranch_scc1 {l}_a
    s_branch {b}
    ''')
def poll(st, res, adr, srd, soff):
    poll_issue(st, res, adr, srd, soff); poll_check(st, res, adr, srd, soff)
def set_flag(st, vf, base, off):
    st(f'buffer_store_dword {v_one}, {vf}, {sWS}, {base} offen offset:{off} sc1')
def mk(fn, *a):
    st = Stream(); fn(st, *a); return st.l
def L(txt):
    st = Stream(); st(txt); return st.l

def setup2(st):
    st(f'''
    s_mov_b32 s14, {640*3840}
    s_mov_b32 s15, 0x20000
    s_mov_b32 s22, {2048*1280}
    s_mov_b32 s23, 0x20000
    s_mov_b32 {s_F1A}, {F1[0]}
    s_mov_b32 {s_F1B}, {F1[1]}
    s_and_b32 {s_C}, {s_t}, 7
    s_lshr_b32 {s_t2}, {s_t}, 3
    s_lshl_b32 {s_t0}, {s_xcd}, 2
    s_add_u32 {s_R}, {s_t0}, {s_t2}
    s_mov_b32 {s_r2}, {s_xcd if ROWMAP else s_C}
    s_mov_b32 {s_hd}, {s_t if ROWMAP else s_R}
    ''')
    if opt('map3', 1) == 1:
        st(f'''
        s_lshr_b32 {s_R}, {s_xcd}, 1
        s_lshl_b32 {s_R}, {s_R}, 3
        s_lshr_b32 {s_t0}, {s_t}, 2
        s_add_u32 {s_R}, {s_R}, {s_t0}
        s_and_b32 {s_C}, {s_xcd}, 1
        s_lshl_b32 {s_C}, {s_C}, 2
        s_and_b32 {s_t0}, {s_t}, 3
        s_add_u32 {s_C}, {s_C}, {s_t0}
        ''')
    st(f'''
    s_lshl_b32 {s_q0}, {s_r2}, 8
    s_lshl_b32 {s_t0}, {s_w}, 6
    s_add_u32 {s_q0}, {s_q0}, {s_t0}
    s_mul_i32 {s_e0}, {s_hd}, 5
    s_lshr_b32 {s_e0}, {s_e0}, 1
    s_and_b32 {s_t3}, {s_hd}, 1
    s_add_u32 {s_e1}, {s_e0}, {s_t3}
    s_lshl_b32 {s_so}, {s_t3}, 3
    s_lshl_b32 {s_t3}, {s_t3}, 1
    s_add_u32 {s_e2}, {s_e0}, 2
    s_sub_u32 {s_e2}, {s_e2}, {s_t3}
    s_lshl_b32 {s_e1}, {s_e1}, 15
    s_lshl_b32 {s_e2}, {s_e2}, 15
    s_lshl_b32 {s_t0}, {s_q0}, 4
    s_add_u32 {s_bF}, {s_e1}, {s_t0}
    s_add_u32 {s_bS}, {s_e2}, {s_t0}
    s_lshl_b32 {s_e3}, {s_r2}, 1
    s_add_u32 {s_e3}, {s_e3}, {s_w}
    s_lshl_b32 {s_t0}, {s_e3}, 11
    s_add_u32 {s_dF}, {s_e1}, {s_t0}
    s_add_u32 {s_dS}, {s_e2}, {s_t0}
    s_lshl_b32 {s_mK}, {s_w}, 11
    s_mul_i32 {s_mV}, {s_w}, {VBW}
    s_add_u32 {s_mV}, {s_mV}, {L_VB}
    s_lshl_b32 {s_gb}, {s_q0}, 2
    s_add_u32 {s_gb}, {s_gb}, {G_OFF}
    s_lshl_b32 {s_f1}, {s_rb}, 11
    s_lshl_b32 {s_t0}, {s_cb}, 7
    s_add_u32 {s_f1}, {s_f1}, {s_t0}
    s_add_u32 {s_f1}, {s_f1}, {F1[0]}
    s_lshl_b32 {s_wob}, {s_C}, 2
    s_add_u32 {s_wob}, {s_wob}, {s_w}
    s_mul_i32 {s_wob}, {s_wob}, 25600
    v_and_b32 {v_zero}, 60, {v_lane}
    v_lshrrev_b32 {v_h}, 5, {v_lane}
    v_and_b32 {v_r}, 31, {v_lane}
    v_bfe_u32 {v_t1}, {v_lane}, 2, 1
    v_lshl_add_u32 {v_t1}, {v_t1}, 1, {s_e0}
    v_lshrrev_b32 {v_t1}, 4, {v_t1}
    v_and_b32 {v_t2}, 3, {v_lane}
    v_min_u32 {v_t3}, 2, {v_t2}
    v_mad_u32_u24 {v_t4}, {v_t3}, 5, {v_t1}
    v_mad_u32_u24 {v_tmp}, {v_t2}, 5, {v_t1}
    v_min_u32 {v_tmp}, 15, {v_tmp}
    s_sub_u32 {s_t1}, {s_e3}, 2
    s_max_i32 {s_t1}, {s_t1}, 0
    s_lshl_b32 {s_t1}, {s_t1}, 11
    s_andn2_b32 {s_t2}, {s_q0}, 127
    s_lshl_b32 {s_t2}, {s_t2}, 4
    v_cmp_eq_u32 vcc, 0, {v_t2}
    v_mov_b32 {v_t1}, {s_t1}
    v_mov_b32 {v_t3}, {s_t2}
    v_cndmask_b32 {v_t1}, {v_t1}, {v_t3}, vcc
    v_lshl_add_u32 {v_p1}, {v_t4}, 7, {v_t1}
    s_sub_u32 {s_t1}, {s_q0}, 32
    s_max_i32 {s_t1}, {s_t1}, 0
    s_andn2_b32 {s_t1}, {s_t1}, 127
    s_lshl_b32 {s_t1}, {s_t1}, 4
    v_and_b32 {v_t2}, 8, {v_lane}
    v_cmp_eq_u32 vcc, 0, {v_t2}
    v_mov_b32 {v_t1}, {s_t1}
    v_and_b32 {v_t2}, 1, {v_lane}
    v_cndmask_b32 {v_t1}, {v_t1}, {v_t3}, vcc
    v_lshl_add_u32 {v_p3}, {v_tmp}, 7, {v_t1}
    v_cmp_gt_u32 s[38:39], 32, {v_lane}
    s_lshr_b32 {s_t0}, {s_R}, 1
    s_lshl_b32 {s_t0}, {s_t0}, 4
    s_add_u32 {s_t0}, {s_t0}, {s_w}
    v_add_lshl_u32 {v_t1}, {v_t2}, {s_t0}, 7
    v_cndmask_b32 {v_p3}, {v_t1}, {v_p3}, s[38:39]
    s_lshr_b32 {s_t3}, {s_hd}, 1
    s_lshl_b32 {s_t3}, {s_t3}, 7
    v_add_u32 {v_t1}, {s_t3}, {v_t3}
    v_cndmask_b32 {v_p1}, {v_t1}, {v_p1}, s[38:39]
    v_cmp_gt_u32 s[38:39], 48, {v_lane}
    s_mul_i32 {s_t3}, {s_w}, 3
    s_add_u32 {s_t0}, {s_t0}, {s_t3}
    v_and_b32 {v_t1}, 3, {v_lane}
    v_add_lshl_u32 {v_t1}, {v_t1}, {s_t0}, 7
    v_cndmask_b32 {v_p3}, {v_t1}, {v_p3}, s[38:39]
    s_lshl_b32 {s_hb}, {s_hd}, 14
    s_lshl_b32 {s_t3}, {s_q0}, 3
    s_add_u32 {s_hb}, {s_hb}, {s_t3}
    s_add_u32 {s_hb}, {s_hb}, {HOFF}
    s_lshl_b32 {s_t0}, {s_w}, 1
    s_lshr_b32 {s_t1}, {s_C}, 2
    s_add_u32 {s_t0}, {s_t0}, {s_t1}
    s_lshl_b32 {s_t0}, {s_t0}, 11
    s_add_u32 {s_t0}, {s_t0}, {15*128}
    v_lshl_add_u32 {v_p2}, {v_t2}, 14, {s_t0}
    v_cndmask_b32 {v_p1}, {v_p2}, {v_p1}, vcc
    ''')
    st(f'''
    v_lshlrev_b32 {v_q4}, 15, {v_h}
    v_lshl_add_u32 {v_q4}, {v_r}, 4, {v_q4}
    v_cmp_eq_u32 vcc, 0, {v_h}
    v_lshl_add_u32 {v_t1}, {v_r}, 4, {s_so}
    s_cmp_eq_u32 {s_q0}, 0
    s_cselect_b32 {s_q0z}, {BIG}, 0
    v_cndmask_b32 {v_qe}, {v_big}, {v_t1}, vcc
    v_cndmask_b32 {v_qo}, {v_t1}, {v_big}, vcc
    v_mov_b32 {v_t2}, {s_q0z}
    v_cndmask_b32 {v_t2}, 0, {v_t2}, vcc
    v_add3_u32 {v_kb1}, {v_t2}, {v_l16}, {s_so}
    v_and_b32 {v_t2}, 15, {v_lane}
    v_mov_b32 {v_o4}, 0x10000
    v_lshrrev_b32 {v_t1}, 4, {v_lane}
    v_lshl_add_u32 {v_t3}, {v_t1}, 15, {s_bF}
    v_cmp_eq_u32 vcc, 2, {v_t1}
    v_mov_b32 {v_t4}, {s_bS}
    s_add_u32 {s_t3}, {s_q0z}, {QKV[1] + 160*GRP - 256}
    v_cndmask_b32 {v_t3}, {v_t3}, {v_t4}, vcc
    v_cmp_eq_u32 vcc, 3, {v_t1}
    v_lshl_add_u32 {v_t3}, {v_t2}, 4, {v_t3}
    v_add_u32 {v_t3}, {s_t3}, {v_t3}
    v_cndmask_b32 {v_halo}, {v_t3}, {v_big}, vcc
    ''')
    st(f'''
    s_lshl_b32 {s_t0}, {s_w}, 10
    v_mul_u32_u24 {v_t1}, {GS}, {v_h}
    v_lshl_add_u32 {v_t1}, {v_r}, 4, {v_t1}
    s_add_u32 {s_t1}, {s_t0}, {L_KA}
    v_add_u32 {v_k0}, {s_t1}, {v_t1}
    s_add_u32 {s_k1}, {s_t0}, {L_KA + 2*GS}
    s_add_u32 {s_k1}, {s_k1}, {s_so}
    v_bfe_u32 {v_t1}, {v_lane}, 2, 2
    v_lshl_add_u32 {v_t1}, {v_h}, 2, {v_t1}
    v_lshlrev_b32 {v_t1}, 4, {v_t1}
    v_and_b32 {v_pres}, 16, {v_lane}
    v_cmp_eq_u32 vcc, 0, {v_pres}
    v_and_b32 {v_t2}, 1, {v_lane}
    v_bfe_u32 {v_t3}, {v_lane}, 1, 1
    v_add_u32 {v_t4}, 2, {v_t3}
    v_lshlrev_b32 {v_t3}, 3, {v_t3}
    v_mov_b32 {v_tmp}, {s_so}
    v_cndmask_b32 {v_t2}, {v_t4}, {v_t2}, vcc
    v_cndmask_b32 {v_t3}, {v_tmp}, {v_t3}, vcc
    v_cmp_eq_u32 vcc, 3, {v_t2}
    v_add_u32 {v_t1}, {v_t1}, {v_t3}
    s_add_u32 {s_t1}, {s_t0}, {L_VA}
    v_mul_u32_u24 {v_t3}, {GS}, {v_t2}
    v_add3_u32 {v_v}, {v_t1}, {v_t3}, {s_t1}
    v_mul_u32_u24 {v_t3}, 1088, {v_t2}
    v_add3_u32 {v_vb}, {v_t1}, {v_t3}, {s_mV}
    s_add_u32 {s_t1}, {s_mV}, {3*1088}
    v_lshlrev_b32 {v_t3}, 8, {v_t2}
    v_add3_u32 {v_vh}, {v_t1}, {v_t3}, {s_t1}
    s_add_u32 {s_t1}, {s_t0}, {L_ONE}
    v_add_u32 {v_t3}, {s_t1}, {v_t1}
    v_add_u32 {v_t1}, {L_ONE + 4096}, {v_t1}
    v_cndmask_b32 {v_v}, {v_v}, {v_t3}, vcc
    v_cndmask_b32 {v_vb}, {v_vb}, {v_t1}, vcc
    v_cndmask_b32 {v_vh}, {v_vh}, {v_t1}, vcc
    ''')
    st(f'''
    v_lshlrev_b32 {v_t1}, 2, {v_h}
    v_sub_u32 {v_t1}, {v_t1}, {v_r}
    v_lshlrev_b32 {v_t1}, 2, {v_t1}
    v_add_u32 {v_mA}, {L_TAB + 128}, {v_t1}
    s_cmp_eq_u32 {s_q0}, 0
    s_cselect_b64 vcc, -1, 0
    v_mov_b32 {v_t1}, {L_TAB + 4*64}
    v_cndmask_b32 {v_mB0}, {v_mA}, {v_t1}, vcc
    ''')
def setup_lds(st):
    st(f'''
    s_and_b32 {s_cnt}, {s_xcd if ROWMAP else s_t}, 7
    s_lshl_b32 {s_cnt}, {s_cnt}, 1
    s_add_u32 {s_cnt}, {s_cnt}, {s_w}
    s_cmp_ge_u32 {s_cnt}, 2
    s_cselect_b32 {s_inv}, 0, {BIG}
    s_cselect_b32 {s_cnt}, 0x3f803f80, 0
    v_mov_b32 v128, {s_cnt}
    v_mov_b32 v129, {s_cnt}
    v_mov_b32 v130, {s_cnt}
    v_mov_b32 v131, {s_cnt}
    s_lshl_b32 {s_cnt}, {s_w}, 11
    s_add_u32 {s_cnt}, {s_cnt}, {L_ONE}
    v_add_u32 v132, {s_cnt}, {v_l16}
    ds_write_b128 v132, v[128:131]
    ds_write_b128 v132, v[128:131] offset:1024
    ''')
    mk_ = [0, 0, 0, 0]
    for e in range(256):
        ok = (e - 32 <= 0) if e < 64 else (e - 96 > 0) if e < 128 else (0 <= 191 - e <= 14 and (191 - e) % 2 == 0)
        if ok: mk_[e >> 6] |= 1 << (e & 63)
    assert mk_[3] == 0 and mk_[1] & 0xffffffff == 0 and mk_[2] & 0xffffffff == 0
    st(f'''
    s_cmp_eq_u32 {s_w}, 0
    s_cselect_b32 s58, 0x{mk_[0] & 0xffffffff:x}, 0
    s_cselect_b32 s59, 0x{mk_[0] >> 32:x}, 0
    s_cmp_eq_u32 {s_w}, 1
    s_cselect_b32 s59, 0x{mk_[1] >> 32:x}, s59
    s_cmp_eq_u32 {s_w}, 2
    s_cselect_b32 s59, 0x{mk_[2] >> 32:x}, s59
    v_mov_b32 v138, {NEGINF}
    s_lshl_b32 {s_cnt}, {s_w}, 8
    s_add_u32 {s_cnt}, {s_cnt}, {L_TAB}
    v_cndmask_b32 v138, v138, 0, s[58:59]
    v_lshl_add_u32 v139, {v_lane}, 2, {s_cnt}
    ds_write_b32 v139, v138
    ''')
def setup_late():
    return L(f'''
    v_add_u32 {v_dma}, {s_inv}, {v_l16}
    v_lshlrev_b32 {v_gad}, 2, {v_r}
    v_add_u32 {v_kb0}, {s_q0z}, {v_q4}
    v_add_u32 {v_k1}, {s_k1}, {v_l16}
    v_lshlrev_b32 {v_zero}, 3, {v_lane}
    ''')
def h_fill(r):
    return L('\n'.join(f'v_mov_b32 v{r+i}, 0' for i in range(4)) + f'''
    s_lshr_b32 {s_e3}, {s_w}, 1
    s_lshl_b32 {s_e3}, {s_e3}, 4
    s_add_u32 {s_e3}, {s_e3}, {s_cb}
    s_lshl_b32 {s_e3}, {s_e3}, 1
    s_and_b32 {s_e2}, {s_w}, 1
    s_add_u32 {s_e3}, {s_e3}, {s_e2}
    s_lshl_b32 {s_e3}, {s_e3}, 4
    s_add_u32 {s_e3}, {s_e3}, {s_rb}
    s_lshl_b32 {s_e3}, {s_e3}, 10
    s_add_u32 {s_e3}, {s_e3}, {HOFF}
    buffer_store_dwordx4 {vr(r,4)}, {v_l16}, {sWS}, {s_e3} offen sc1''')
def adr_a():
    l = L(f'''
    v_lshrrev_b32 {v_t1}, 4, {v_lane}
    v_and_b32 {v_t2}, 15, {v_lane}
    v_add_lshl_u32 {v_tmp}, {v_t1}, {v_h}, 15
    v_lshl_add_u32 {v_tmp}, {v_t2}, 4, {v_tmp}
    ''')
    for rho in range(4):
        l += L(f's_add_u32 s{56+rho}, {s_w}, {rho}\ns_and_b32 s{56+rho}, s{56+rho}, 3\ns_lshl_b32 s{56+rho}, s{56+rho}, 8')
    return l
def adr_b(): return [Ins(f'v_add_u32 v{V4+rho}, s{56+rho}, {v_tmp}') for rho in range(4)]
def zero_pads():
    return L('\n'.join(f'v_accvgpr_write_b32 a{b}, 0' for b in (AK1 + 2, AK1 + 3, AK1 + 6, AK1 + 7, AKB1 + 2, AKB1 + 3, AKB1 + 6, AKB1 + 7))
             + f'\nv_mov_b32 v{QA1+8}, 0\nv_mov_b32 v{QA1+9}, 0')

def mask_reads(reg, adr, base, a0=0):
    l = []
    for a in range(a0, 4):
        for b in (0, 2):
            k = base + 8 * a + b
            l.append(Ins(f'ds_read2_b32 {vr(reg+4*a+b,2)}, {adr} offset0:{k} offset1:{k+1}'))
    return l
def mask_far(): return mask_reads(M_FAR, v_mA, 64)
def mask_rest(): return mask_reads(M_DIAG, v_mA, 0) + mask_reads(MB_DIAG, v_mA, 159) + mask_reads(MB_PREV, v_mA, 127, 2) + mask_reads(MB_PREV0, v_mB0, 127, 2)

def kvq_loads():
    g = []
    for ty in (1, 2):
        for gi in range(3):
            g.append(L(f's_add_u32 m0, {s_mK}, {(L_KA if ty == 1 else L_VA) + gi*GS}\n'
                       f's_add_u32 {s_e1}, {s_dS if gi == 2 else s_dF}, {QKV[0] + (80*ty + (gi if gi < 2 else 0))*GRP - 4096}'))
            g.append(L(f'buffer_load_dwordx4 {v_dma}, {sWS}, {s_e1} offen sc1 lds'))
            st = Stream()
            tok = st.vm(f'buffer_load_dwordx4 {v_dma}, {sWS}, {s_e1} offen offset:1024 sc1 lds')
            g.append(st.l)
    for x in (f'buffer_load_dwordx4 {vr(QA0,4)}, {v_q4}, {sWS}, {s_bF} offen sc1',
              f'buffer_load_dwordx2 {vr(QA1,2)}, {v_qe}, {sWS}, {s_bS} offen sc1',
              f'buffer_load_dwordx2 {vr(QA1+2,2)}, {v_qo}, {sWS}, {s_bS} offen sc1',
              f'buffer_load_dwordx4 {vr(QA0+4,4)}, {v_q4}, {sWS}, {s_bF} offen offset:512 sc1',
              f'buffer_load_dwordx2 {vr(QA1+4,2)}, {v_qe}, {sWS}, {s_bS} offen offset:512 sc1',
              f'buffer_load_dwordx2 {vr(QA1+6,2)}, {v_qo}, {sWS}, {s_bS} offen offset:512 sc1'):
        g.append([Ins(x)])
    return g, tok
def wo_loads(f0, f1, adr=v_l16):
    g = []
    for F in range(f0, f1):
        br, f = F // 25, F % 25
        if f % 4 == 0 or F == f0: g.append(L(f's_add_u32 {s_e2}, {s_wob}, {WOF + br*32*25600 + (f & ~3)*1024}'))
        g.append(L(f'buffer_load_dwordx4 {ar(4*F,4)}, {adr}, {sWS}, {s_e2} offen offset:{(f%4)*1024} sc1'))
    return g

steps = [(0, 0)] + [(j, q) for j in range(1, 9) for q in range(2)] + [(9, 1)]
def k0_read(j): return Ins(f'ds_read_b128 {ar(AK0+4*(j&1),4)}, {v_k0} offset:{512*j}')
def k1_read(j): return Ins(f'ds_read_b64 {ar(AK1+4*((j>>1)&1),2)}, {v_k1} offset:{512*j}')
def v_read(j, kk, u): return Ins(f'ds_read_b64_tr_b16 {ar(AV+8*(j&1)+4*kk+2*u,2)}, {v_v} offset:{512*j+256*kk+128*u}')
def qka(n):
    j, q = steps[n]
    c = vr(M_FAR, 16) if j == q else vr(M_DIAG, 16) if j == 8 + q else '0'
    return f'{mm} {vr(SB[n&1],16)}, {ar(AK0+4*(j&1),4)}, {vr(QA0+4*q,4)}, {c}'
def qkb(n):
    j, q = steps[n]
    return f'{mm} {vr(SB[n&1],16)}, {ar(AK1+4*((j>>1)&1),4)}, {vr(QA1+4*q+2*(j&1),4)}, {vr(SB[n&1],16)}'
def pv(n, kk):
    j, q = steps[n]
    c = '0' if (j == q and kk == 0) else vr(OA[q], 16)
    return f'{mm} {vr(OA[q],16)}, {ar(AV+8*(j&1)+4*kk,4)}, {vr(P0+4*kk,4)}, {c}'
def exps(n, g): return [f'v_exp_f32 v{E0+4*(g&1)+i}, v{SB[n&1]+4*g+i}' for i in range(4)]
def cvts(g): return [f'v_cvt_pk_bf16_f32 v{P0+2*g+i}, v{E0+4*(g&1)+2*i}, v{E0+4*(g&1)+2*i+1}' for i in range(2)]
def att_pre(): return [k0_read(0), k1_read(0), k0_read(1)] + [v_read(0, kk, u) for kk in range(2) for u in range(2)]

S(f'''
s_cmp_ge_u32 s2, 0x100
s_cbranch_scc1 L_end
s_load_dwordx2 s[4:5], s[0:1], 0
s_load_dwordx2 s[8:9], s[0:1], 8
s_load_dwordx2 s[12:13], s[0:1], 32
s_load_dwordx2 s[16:17], s[0:1], 72
s_load_dwordx2 s[20:21], s[0:1], 56
s_load_dwordx2 s[24:25], s[0:1], 64
''')
stamp('start')
if opt('cpf', 1):
    S(f'''
    s_getpc_b64 s[28:29]
    L_pc:
    s_mov_b32 s30, L_end-L_pc
    s_mov_b32 s31, 0x20000
    s_andn2_b32 {s_t0}, s2, 7
    v_min_u32 v132, 7, v0
    v_add_lshl_u32 v132, v132, {s_t0}, 7
    buffer_load_dword v133, v132, {sTMP}, 0 offen
    ''')
if opt('kick', 0):
    S(f'''
    s_mov_b32 s6, {2048*1280}
    s_mov_b32 s7, 0x20000
    s_mov_b32 s10, {640*3840}
    s_mov_b32 s11, 0x20000
    v_lshlrev_b32 v146, 21, v0
    s_lshl_b32 {s_t1}, s2, {10 if opt('kick', 1) == 2 else 0}
    s_waitcnt lgkmcnt(0)
    buffer_load_dword v147, v146, {sX}, {s_t1 if opt('kick', 1) == 2 else 0} offen
    buffer_load_dword v148, v146, {sWA}, {s_t1 if opt('kick', 1) == 2 else 0} offen
    ''')
    if AMP: stamp('sl')
S(f'''
v_lshrrev_b32 {v_tmp}, 6, v0
v_and_b32 {v_lane}, 63, v0
v_readfirstlane_b32 {s_w}, {v_tmp}
s_and_b32 {s_xcd}, s2, 7
{('s_xor_b32 %s, %s, %d' % (s_xcd, s_xcd, opt('xmap', 0))) if opt('xmap', 0) else ''}
s_lshr_b32 {s_t}, s2, 3
s_and_b32 {s_t0}, {s_xcd}, 1
s_lshl_b32 {s_t0}, {s_t0}, 3
s_and_b32 {s_t1}, {s_t}, 7
s_add_u32 {s_rb}, {s_t0}, {s_t1}
s_lshr_b32 {s_t0}, {s_xcd}, 1
s_lshl_b32 {s_t0}, {s_t0}, 2
s_lshr_b32 {s_t2}, {s_t}, 3
s_add_u32 {s_cb}, {s_t0}, {s_t2}
s_mov_b32 s6, {2048*1280}
s_mov_b32 s7, 0x20000
s_mov_b32 s11, 0x20000
s_cmp_eq_u32 {s_cb}, 15
s_cbranch_scc1 L_spare
s_mov_b32 s10, {640*3840}
s_lshl_b32 {s_rot}, {s_t2}, 1
s_add_u32 {s_rot}, {s_rot}, {s_t1}
''')
if opt('rot', 24) == 8:
    S(f's_and_b32 {s_rot}, {s_rot}, 7\ns_mul_i32 {s_rot}, {s_rot}, 5\ns_lshr_b32 {s_rot}, {s_rot}, 2')
elif opt('rot', 24) == 1:
    S(f's_mov_b32 {s_rot}, 0')
elif opt('rot', 24) == 2:
    S(f's_add_u32 {s_rot}, {s_t1}, {s_t2}\ns_and_b32 {s_rot}, {s_rot}, 1\ns_mul_i32 {s_rot}, {s_rot}, 5')
elif opt('rot', 24) == 3:
    S(f's_add_u32 {s_rot}, {s_t1}, {s_t2}\ns_mul_i32 {s_t0}, {s_rot}, 86\ns_lshr_b32 {s_t0}, {s_t0}, 8\ns_mul_i32 {s_t0}, {s_t0}, 3\ns_sub_u32 {s_rot}, {s_rot}, {s_t0}\ns_mul_i32 {s_rot}, {s_rot}, 7\ns_lshr_b32 {s_rot}, {s_rot}, 1')
elif opt('rot', 24) == 4:
    S(f's_add_u32 {s_rot}, {s_t1}, {s_t2}\ns_and_b32 {s_rot}, {s_rot}, 3\ns_mul_i32 {s_rot}, {s_rot}, 5\ns_lshr_b32 {s_rot}, {s_rot}, 1')
elif opt('rot', 24) in (22, 24):
    m_ = 1 if opt('rot', 24) == 22 else 3
    S(f'''
    s_add_u32 {s_rot}, {s_t1}, {s_t2}
    s_and_b32 {s_rot}, {s_rot}, 1
    s_mul_i32 {s_rot}, {s_rot}, {m_ + 1}
    s_and_b32 {s_t0}, {s_xcd}, 1
    s_mul_i32 {s_t0}, {s_t0}, {(m_ + 1) // 2}
    s_lshr_b32 {s_t3}, {s_xcd}, 1
    s_add_u32 {s_t0}, {s_t0}, {s_t3}
    s_and_b32 {s_t0}, {s_t0}, {m_}
    s_add_u32 {s_rot}, {s_rot}, {s_t0}
    s_mul_i32 {s_rot}, {s_rot}, 5
    s_lshr_b32 {s_rot}, {s_rot}, {1 if m_ == 1 else 2}
    ''')
elif opt('rot', 24) == 14:
    S(f'''
    s_and_b32 {s_t0}, {s_xcd}, 1
    s_lshl_b32 {s_t0}, {s_t0}, 1
    s_lshr_b32 {s_t3}, {s_xcd}, 1
    s_add_u32 {s_t0}, {s_t0}, {s_t3}
    s_and_b32 {s_rot}, {s_t0}, 3
    s_mul_i32 {s_rot}, {s_rot}, 5
    s_lshr_b32 {s_rot}, {s_rot}, 1
    ''')
else:
    S(f'''
    s_lshl_b32 {s_rot}, {s_rot}, 1
    s_add_u32 {s_t0}, {s_xcd}, 1
    s_lshr_b32 {s_t0}, {s_t0}, 1
    s_add_u32 {s_rot}, {s_rot}, {s_t0}
    s_and_b32 {s_rot}, {s_rot}, 15
    s_mul_i32 {s_rot}, {s_rot}, 5
    s_lshr_b32 {s_rot}, {s_rot}, 3
    ''')
def rot(st, n):
    if n >= 1: st(f's_cmp_eq_u32 {s_rot}, 10\ns_cselect_b32 {s_rot}, 0, {s_rot}')
    st(f'''
    s_mul_i32 s{SW0+n}, {s_rot}, {64*3840}
    s_lshl_b32 s{SX0+n}, {s_rot}, 7
    s_add_u32 {s_rot}, {s_rot}, 1
    ''')
rot(S, 0)
S(f'''
v_lshrrev_b32 {v_t1}, 4, {v_lane}
v_lshrrev_b32 {v_t2}, 3, {v_lane}
v_mul_u32_u24 {v_t2}, 1280, {v_t2}
v_and_b32 {v_t3}, 7, {v_lane}
v_xor_b32 {v_t3}, {v_t3}, {v_t1}
s_lshl_b32 {s_t2}, {s_rb}, 2
s_add_u32 {s_t2}, {s_t2}, {s_w}
s_mul_i32 {s_t2}, {s_t2}, {32*1280}
v_add_u32 {v_t2}, {s_t2}, {v_t2}
v_lshl_add_u32 v{VXD}, {v_t3}, 4, {v_t2}
v_xor_b32 {v_t3}, 4, {v_t3}
v_lshl_add_u32 v{VXD+1}, {v_t3}, 4, {v_t2}
v_add_u32 v{VXD+2}, {2*(8*1280-1024)}, v{VXD}
v_add_u32 v{VXD+3}, {3*(8*1280-1024)}, v{VXD+1}
v_add_u32 v{VXD+1}, {8*1280-1024}, v{VXD+1}
s_lshl_b32 {s_mW}, {s_w}, 12
s_add_u32 {s_mX}, {s_mW}, {L_X}
v_and_b32 {v_t2}, 15, {v_lane}
v_lshlrev_b32 {v_t3}, 1, {v_t1}
v_xor_b32 {v_t2}, {v_t2}, {v_t3}
v_mul_u32_u24 {v_t3}, 3840, {v_t1}
v_lshl_add_u32 {v_t3}, {v_t2}, 4, {v_t3}
s_mul_i32 {s_t1}, {s_w}, {16*3840}
s_lshl_b32 {s_t2}, {s_cb}, 8
s_add_u32 {s_t1}, {s_t1}, {s_t2}
v_add_u32 v{VWD}, {s_t1}, {v_t3}
''')
S(f'''
v_xor_b32 v{VWD+2}, 128, v{VWD}
v_add_u32 v{VWD+1}, {4*3840-1024}, v{VWD}
v_add_u32 v{VWD+3}, {3*(4*3840-1024)}, v{VWD+2}
v_add_u32 v{VWD+2}, {2*(4*3840-1024)}, v{VWD+2}
''')
rot(S, 1)
S('s_waitcnt lgkmcnt(0)')

dma_tok = {}
WSLOT = [n % 4 for n in range(10)] + [2, 6, 3, 7, 0, 4, 1, 2, 3, 0]
WISS = {n: n - 2 for n in range(2, 11)}
WISS.update({11: 8, 12: 9, 13: 9, 14: 10, 15: 12, 16: 12, 17: 13, 18: 14, 19: 16})
for a_ in ARGS:
    if a_.startswith('--wiss='): WISS.update({11 + i: int(x) for i, x in enumerate(a_[7:].split(','))})
CTM = opt('ctm', 4)
DFL = ['', ' sc1', ' nt', ' sc0 sc1', ' sc0'][opt('dfl', 0)]
def dma_stage(n):
    p, ns, slot = n // 10, n % 10, WSLOT[n]
    g = []
    if p == 0:
        g.append(L(f's_add_u32 m0, {s_mX}, {slot*16384}'))
        for i in range(4):
            g.append(L(f'buffer_load_dwordx4 v{VXD+i}, {sX}, s{SX0+ns} offen offset:{1024*i}{DFL} lds'))
        g[-1] += L(f's_add_u32 m0, {s_mW}, {slot*16384}')
    else:
        g.append(L(f's_add_u32 m0, {s_mW}, {slot*16384}'))
    for i in range(4):
        st = Stream()
        dma_tok[n] = st.vm(f'buffer_load_dwordx4 v{VWD+i}, {sWB if p else sWA}, s{SW0+ns} offen offset:{1024*i}{DFL} lds')
        g.append(st.l)
    return g

def common_consts(st):
    st(f'''
    s_mov_b32 s18, {WS_SIZE + (65536 if STAMPS else 0)}
    s_mov_b32 s19, 0x20000
    s_mov_b32 s26, 256
    s_mov_b32 s27, 0x20000
    s_mov_b32 s31, 0x20000
    v_cmp_eq_u32 vcc, 0, v0
    v_mov_b32 {v_big}, {BIG}
    v_mov_b32 {v_one}, 1
    v_lshlrev_b32 {v_l16}, 4, {v_lane}
    v_cndmask_b32 {v_flag}, {v_big}, 0, vcc
    ''')

for g in dma_stage(0): S.extend(g)
common_consts(S)
if opt('tlb', 0):
    S(f'''
    v_lshlrev_b32 v140, 20, {v_lane}
    s_mov_b32 s14, {640*3840}
    s_mov_b32 s15, 0x20000
    s_mov_b32 s22, {2048*1280}
    s_mov_b32 s23, 0x20000
    buffer_load_dword v141, v140, {sWS}, 0 offen
    buffer_load_dword v142, v140, {sWB}, 0 offen
    buffer_load_dword v143, v140, {sOUT}, 0 offen
    buffer_load_dword v144, v140, {sX}, 0 offen
    buffer_load_dword v145, v140, {sWA}, 0 offen
    ''')
SK = opt('skick', 0)
if SK:
    S(f's_and_b32 {s_t0}, {s_t}, 1\ns_lshl_b32 {s_t0}, {s_t0}, 21')
    if SK & 1: S(f's_load_dword s3, s[12:13], {s_t0}')
    if SK & 2: S(f's_load_dword s98, s[20:21], {s_t0}')
    if SK & 4: S(f's_and_b32 {s_t1}, {s_t}, 15\ns_min_u32 {s_t1}, {s_t1}, 8\ns_lshl_b32 {s_t1}, {s_t1}, 21\ns_load_dword s53, s[16:17], {s_t1}')
stamp('iss0')
d1 = dma_stage(1)
PRE = opt('pre', 5)
for g in d1[:PRE]: S.extend(g)
pre = Stream()
for n in range(2, 4): rot(pre, n)
pre(f'''
v_lshrrev_b32 {v_t1}, 4, {v_lane}
v_bfe_u32 {v_t2}, {v_lane}, 2, 2
v_lshl_add_u32 {v_t3}, {v_t1}, 3, {v_t2}
v_lshlrev_b32 {v_t3}, 8, {v_t3}
v_bfe_u32 {v_tmp}, {v_lane}, 2, 3
v_lshl_add_u32 {v_t3}, {v_tmp}, 5, {v_t3}
v_and_b32 {v_tmp}, 3, {v_lane}
v_lshl_add_u32 {v_t3}, {v_tmp}, 3, {v_t3}
s_and_b32 {s_t0}, {s_w}, 1
s_lshr_b32 {s_t1}, {s_w}, 1
s_lshl_b32 {s_t2}, {s_t0}, 7
v_xor_b32 v{VWR}, {s_t2}, {v_t3}
v_xor_b32 v{VWR+1}, 32, v{VWR}
v_xor_b32 v{VWR+2}, 64, v{VWR}
v_xor_b32 v{VWR+3}, 96, v{VWR}
v_and_b32 {v_t2}, 15, {v_lane}
v_bfe_u32 {v_t3}, {v_lane}, 1, 3
v_xor_b32 {v_t3}, {v_t3}, {v_t1}
v_lshlrev_b32 {v_t3}, 4, {v_t3}
v_lshl_add_u32 {v_t3}, {v_t2}, 7, {v_t3}
s_lshl_b32 {s_t2}, {s_t1}, 13
s_add_u32 {s_t2}, {s_t2}, {L_X}
v_add_u32 v{VXR}, {s_t2}, {v_t3}
v_xor_b32 v{VXR+1}, 64, v{VXR}
s_lshl_b32 {s_t2}, {s_rb}, 1
s_add_u32 {s_t2}, {s_t2}, {s_t1}
s_lshl_b32 {s_t2}, {s_t2}, 10
v_and_b32 {v_t3}, 1, {v_t1}
v_lshrrev_b32 {v_t1}, 1, {v_t1}
v_lshl_add_u32 {v_t1}, {v_t3}, 1, {v_t1}
v_lshlrev_b32 {v_t1}, 15, {v_t1}
v_lshl_add_u32 {v_t1}, {v_t2}, 4, {v_t1}
v_add_u32 {v_st}, {s_t2}, {v_t1}
s_lshl_b32 {s_stb}, {s_cb}, 1
s_add_u32 {s_stb}, {s_stb}, {s_t0}
s_lshl_b32 {s_stb}, {s_stb}, 18
s_cmp_lt_u32 {s_cb}, 5
s_cselect_b32 {s_scale}, {f32(QSCALE)}, 1.0
s_cselect_b32 {s_tag}, {'0xfffe0000' if QRND else '-2'}, -1
''')
TB = opt('tb', 34); TBH = opt('tbh', 1)
if TB >= 0:
    nl = 20 if TBH else 40
    pre(f'''
    s_mov_b32 s14, {640*3840}
    s_mov_b32 s15, 0x20000
    v_lshrrev_b32 v134, 1, {v_lane}
    v_mul_u32_u24 v134, 3840, v134
    v_and_b32 v135, 1, {v_lane}
    v_lshl_add_u32 v134, v135, 7, v134
    v_cmp_gt_u32 vcc, {nl}, {v_lane}
    s_and_b32 s56, {s_rb}, {15 if TBH else 7}
    s_lshl_b32 s56, s56, 2
    s_add_u32 s56, s56, {s_w}
    v_cndmask_b32 v134, {v_big}, v134, vcc
    s_mul_i32 s56, s56, {nl//2*3840}
    s_lshl_b32 s57, {s_cb}, 8
    s_add_u32 s56, s56, s57
    ''')
    if TBH == 2:
        pre(f'''
        v_lshrrev_b32 v134, 1, {v_lane}
        v_mul_u32_u24 v134, 3840, v134
        v_lshl_add_u32 v134, v135, 7, v134
        s_lshr_b32 s56, {s_t}, 3
        s_lshl_b32 s56, s56, 1
        s_add_u32 s56, s56, {s_t}
        s_bitcmp1_b32 s56, 1
        s_cselect_b32 s58, 0, 40
        v_cmp_gt_u32 vcc, s58, {v_lane}
        s_bfe_u32 s58, s56, 0x10002
        s_lshl_b32 s58, s58, 1
        s_and_b32 s56, s56, 1
        v_cndmask_b32 v134, {v_big}, v134, vcc
        s_add_u32 s56, s56, s58
        s_lshr_b32 s58, {s_rb}, 3
        s_lshl_b32 s58, s58, 2
        s_add_u32 s56, s56, s58
        s_lshl_b32 s56, s56, 2
        s_add_u32 s56, s56, {s_w}
        s_mul_i32 s56, s56, {20*3840}
        s_add_u32 s56, s56, s57
        ''')
    touch = Ins(f'buffer_load_dword v135, v134, {sWB}, s56 offen')
    if TB == 0: pre.l.append(touch)
if opt('wot', 0):
    S.l.insert(2, Ins('s_load_dwordx2 s[56:57], s[0:1], 16')); S.l.insert(2, Ins('s_load_dwordx2 s[58:59], s[0:1], 40'))
    S(f'''
    s_cmp_ge_u32 {s_rb}, 8
    s_cselect_b32 s28, s58, s56
    s_cselect_b32 s29, s59, s57
    s_mov_b32 s30, {640*1280}
    s_and_b32 {s_t0}, {s_rb}, 7
    s_mul_i32 {s_t0}, {s_t0}, 15
    s_add_u32 {s_t0}, {s_t0}, {s_cb}
    s_lshl_b32 {s_t0}, {s_t0}, 2
    s_add_u32 {s_t0}, {s_t0}, {s_w}
    s_mul_i32 {s_t0}, {s_t0}, {14*128}
    v_min_u32 v137, 13, {v_lane}
    v_lshlrev_b32 v137, 7, v137
    buffer_load_dword v136, v137, {sTMP}, {s_t0} offen
    ''')
DSW = opt('dsw', 52)
lds_init = mk(setup_lds)
dsw = [x for x in lds_init if x.kind == 'ds']
pre.l += lds_init if DSW < 0 else [x for x in lds_init if x.kind != 'ds']
npre = len(atomize(pre.l))
for n in range(4, 10): rot(pre, n)
setup2(pre)
pre = atomize(pre.l)
SPLIT = min(npre + opt('split', 40), len(pre))
pre, su_post = pre[:SPLIT], pre[SPLIT:]
if d1[PRE:]: weave(pre, d1[PRE:], opt('pre0', 20), min(len(pre), opt('pre1', 120)))
for g in pre: S.extend(g)
stamp('setup')

CTA = opt('cta', 1)
seq = []
def tilewise(ns, k2):
    ns = list(ns); m = len(ns) - k2
    l = [(n, s_, t, rt) for n in ns for s_ in range(2) for t in (0, 1) for rt in range(4)]
    l += [(n, s_, t, rt) for n in ns[:m] for s_ in range(2) for t in (2, 3) for rt in range(4)]
    for rh in range(2): l += [(n, s_, t, rt) for n in ns[m:] for s_ in range(2) for t in (2, 3) for rt in (2 * rh, 2 * rh + 1)]
    return l
for n in range(20 - CTM):
    if n == 10 - CTA: seq += tilewise(range(n, 10), 0)
    elif 10 - CTA < n < 10: pass
    else: seq += [(n, s_, t, rt) for s_ in range(2) for t in range(4) for rt in range(4)]
seq += tilewise(range(20 - CTM, 20), opt('ct2', 1))
if opt('snake', 1):
    for k in range(0, len(seq), 8):
        if len(set(e[:3] for e in seq[k + 4:k + 8])) == 1: seq[k + 4:k + 8] = seq[k + 4:k + 8][::-1]
NG = len(seq)
def G(name, d): return 2 * opt(name, d)
def xreg(n, s_, rt):
    n %= 10
    return ar(32 * n + 16 * s_ + 4 * rt, 4) if n < 8 else vr(XV + 32 * (n - 8) + 16 * s_ + 4 * rt, 4)
BO = opt('bo', 10)
firstuse = {}; lastuse = {}
for k, e in enumerate(seq): firstuse.setdefault(e[0], k); lastuse[e[0]] = k
BARS = list(range(1, 21 - CTM)) + ([19] if CTM > 2 else [])
def bar_of(n): return max(b for b in [0] + BARS if b <= n)
def bar_gap(n): return firstuse[bar_of(n)] - BO
for n in range(4, 20):
    prev = [m for m in range(n) if WSLOT[m] == WSLOT[n] or (m < 10 and WSLOT[n] == 4 + m % 4)]
    assert WISS[n] in BARS and lastuse[prev[-1]] < bar_gap(WISS[n]), n
frag = []; fidx = []
for k, e in enumerate(seq):
    if k == 0 or seq[k - 1][:3] != e[:3]: frag.append([e[:3], k, k])
    frag[-1][2] = k; fidx.append(len(frag) - 1)
reads = []; xreads = []; xseen = set(); first_reads = []
LEAD = opt('lead', 4)
for j, ((n, s_, t), u0, u1) in enumerate(frag):
    lo = max(frag[j - 4][2] if j >= 4 else -1, bar_gap(n))
    sl_ = WSLOT[n]; buf = WRING + 4 * (j & 3)
    l = [Ins(f'ds_read_b64_tr_b16 {vr(buf+2*u,2)}, v{VWX[t] if sl_ >= 4 else VWR+t} offset:{(sl_%4)*16384+(32*s_+4*u)*256}') for u in range(2)]
    if n < 10 and (n, s_) not in xseen:
        xseen.add((n, s_))
        xl = [Ins(f'ds_read_b128 {xreg(n,s_,rt)}, v{VXR+s_} offset:{(n%4)*16384+rt*2048}') for rt in range(4)]
        if j == 0: first_reads += xl
        else: xreads += [Item(x, max(bar_gap(n), u0 - 22 + 2 * i), u0 - LEAD - 3 + i) for i, x in enumerate(xl)]
    if j < 2: first_reads += l
    elif opt('oneds', 0): reads += [Item(x, lo, max(lo, u0 - LEAD - 1 + i)) for i, x in enumerate(l)]
    else: reads.append(Item(l, lo, max(lo, u0 - LEAD)))
mf = []
for k, (n, s_, t, rt) in enumerate(seq):
    acc = vr(ACC[n // 10] + 8 * (4 * (t >> 1) + rt) + 4 * (t & 1), 4)
    mf.append(Ins(f'v_mfma_f32_16x16x32_bf16 {acc}, {vr(WRING+4*(fidx[k]&3),4)}, {xreg(n,s_,rt)}, {"0" if n % 10 == 0 and s_ == 0 else acc}'))
done = {}
for k, (n, s_, t, rt) in enumerate(seq): done[(n // 10, 2 * (t >> 1) + (rt >> 1))] = k
def epi1_tile(p, T):
    g = []
    if T % 2 == 0: g.append(L(f's_add_u32 {s_e0}, {s_stb}, {QKV[p]+2*T*GRP}'))
    for u in range(2):
        b = ACC[p] + 16 * T + 8 * u
        for i in range(8): g.append(L(f'v_mul_f32 v{b+i}, {s_scale}, v{b+i}'))
        for i in range(4): g.append(L(f'v_cvt_pk_bf16_f32 v{b+i}, v{b+2*i}, v{b+2*i+1}'))
        for i in (0, 2): g.append(L(f'v_and_b32 v{b+i}, {s_tag}, v{b+i}'))
    for u in range(2):
        b = ACC[p] + 16 * T + 8 * u
        for i in (1, 0): g.append(L(f'v_permlane16_swap_b32 v{b+i}, v{b+2+i}'))
        st = Stream(); tok = st.vm(f'buffer_store_dwordx4 {vr(b,4)}, {v_st}, {sWS}, {s_e0} offen offset:{256*(2*(T&1)+u)} sc1')
        g.append(st.l)
    return g, tok
assert not QRND
COST['vm'] = 2
cap = [2 - (1 if k + 1 < NG and fidx[k + 1] != fidx[k] else 0) for k in range(NG)]
fixed = {}
FLAGA = opt('flagA', 13)
for n in BARS:
    fixed[bar_gap(n)] = [('BAR', n)]; cap[bar_gap(n)] -= 2 + (2 if n == FLAGA else 0)
dmas = []
def split_salu(l):
    out = []
    for g in l:
        if len(g) > 1 and g[0].kind == 'vm': out += [g[:1], g[1:]]
        else: out.append(g)
    return out
for b in range(0, 17):
    l = split_salu([g for n in range(2, 20) if WISS[n] == b for g in dma_stage(n)])
    if l:
        lo = max(bar_gap(b), 0)
        dmas += paced(l, lo, lo + (G('dsp', 14) if len(l) > 5 else 14), 5)
KV0 = G('kv0', 262); KV1 = G('kv1', 290); KVB = G('kvb', 312)
assert KV0 > bar_gap(15) + 2
kv, tokKV = kvq_loads()
kvi = [Item(mk(poll_check, v_pres, v_p1, sWS, s_F1A) + [('ST', 'pc1')], KV0 - 1, KV0 - 1)] + paced(kv, KV0, KV1, 4)
w19 = dmas[-5:]; dmas = dmas[:-5]
k_ = next((i for i, x in enumerate(kvi) if x.lo >= w19[0].lo and (i == 0 or 'm0' in x.ins[0].defs)))
for x in kvi[k_:]: x.hi = max(x.hi, w19[-1].hi + 1)
if k_ == 0: assert KV0 > w19[-1].hi + 1
dmas += kvi[:k_] + w19 + kvi[k_:]
W19E = w19[-1].hi + 12
epi = []
EA1 = G('epiAend', 180); EA0 = done[(0, 0)] + 4
for T in range(4):
    g, tokA = epi1_tile(0, T)
    lo = done[(0, T)] + 4
    it = asap(g, lo, lo + 1)
    for i, x in enumerate(it): x.hi = max(lo, EA0 + (len(g) * T + i) * (EA1 - EA0) // (4 * len(g))) + 2
    epi += it
for T in range(3):
    g, tokB = epi1_tile(1, T)
    lo = done[(1, T)] + 4
    it = asap(g, lo, lo + 1)
    e0 = done[(1, 0)] + 4; e1 = done[(1, 2)] + 4
    for i, x in enumerate(it): x.hi = max(lo, e0 + (len(g) * T + i) * (e1 - e0) // (2 * len(g))) + 1 if T < 2 else NG
    epi += it
NA = opt('na', 20); NWO1 = max(NA, opt('nwo1', 0)); WT = 0
misc = []
TL = opt('tl', 0)
if TL:
    tl_ = L(f'''
    v_lshlrev_b32 v140, 21, {v_lane}
    buffer_load_dword v141, v140, {sWS}, 0 offen
    buffer_load_dword v143, v140, {sOUT}, 0 offen
    ''')
    if TL < TB: misc += paced(tl_, 2 * TL, 2 * TL + 6, 3)
if TB > 0: misc.append(Item(touch, 2 * TB, 2 * TB + 4))
if TL and TL >= TB: misc += paced(tl_, 2 * TL, 2 * TL + 6, 3)
SU1 = G('su1', 44); SU0 = G('su0', 0); assert SU0 == 0 or opt('split', 40) >= 24
sus = asap(su_post, SU0, SU1) if su_post else []
HF = G('hf', 70); assert SU1 + 30 < HF <= 218
misc += paced(h_fill(140), HF - 30, HF, 4)
misc += [Item(mk(poll_issue, v_pres, v_zero, sDBG, '0'), max(SU1 + 5, 220), max(SU1 + 9, 224)), Item(mk(poll_check, v_pres, v_zero, sDBG, '0'), 284, 290)]
misc += paced(setup_late(), 290, 298, 6)
misc += paced([Ins(f'v_add_u32 v{VWX[t]}, {L_X}, v{VWR+t}') for t in range(4)], 300, 308, 6)
P1I = KV0 - G('p1d', 20)
wl = []
if NA:
    WO0 = bar_gap(FLAGA) + 2
    misc += [Item(mk(poll_issue, v_pres, v_p2, sWS, s_F1A), G('p2i', 184), G('p2i', 184) + 4), Item(mk(poll_check, v_pres, v_p2, sWS, s_F1A), WO0 - 1, WO0 - 1)]
    wl = paced(wo_loads(0, NA), WO0, G('wo1', 290), 5)
misc += [x for x in wl if x.lo < P1I] + [Item(mk(poll_issue, v_pres, v_p1, sWS, s_F1A), P1I, P1I + 4)] + [x for x in wl if x.lo >= P1I]
if NWO1 > NA: misc += paced(wo_loads(NA, NWO1), KV1, NG - 4, 4)
misc2 = (paced(dsw, 2 * DSW, 2 * DSW + G('dswn', 36), 0) if DSW >= 0 else []) + paced(adr_a(), 410, 450, 8) + paced(mask_far(), 460, 490, 8) + paced(adr_b(), W19E, W19E + 16, 8) + paced(zero_pads(), lastuse[17] + 1, lastuse[17] + 12, 4)
st = Stream(); st.wait(tokKV); st('s_barrier'); fixed[KVB] = st.l + [('ST', 'kvb')]; cap[KVB] -= 2
misc2 += paced(att_pre(), KVB, NG - 4, 2)
rep_ = []
gaps, over = schedule(NG, cap, [reads, xreads, dmas, epi, misc, misc2, sus], rep_, opt('oneds', 0))
if '--sched' in ARGS:
    for n in range(20): print(n, ' '.join('%2d' % x for x in rep_[32 * n:32 * n + 32]))
last_def = {}; last_use = {}; first_def = {}
for k, m in enumerate(mf):
    for r in m.defs: last_def[r] = k; first_def.setdefault(r, k)
    for r in m.srcab: last_use[r] = k
lastw = max(k for k, g in enumerate(gaps) for it in g if not isinstance(it, tuple) and it.lds and 's12' in it.uses)
assert lastw < W19E
lastx = max(k for k, g in enumerate(gaps) for it in g if not isinstance(it, tuple) and it.mn == 'ds_read_b128' and it.uses & {'v14', 'v15'})
assert lastx < 300
for k, g in enumerate(gaps):
    for it in g:
        if isinstance(it, tuple): continue
        if it.kind in ('valu', 'vm') or (it.kind == 'ds' and k > 400):
            for r in it.uses | it.defs: assert last_def.get(r, -1) <= k or k < first_def[r] - 8, (k, it.text)
            if 'tr_b16 v' not in it.text:
                for r in it.defs: assert last_use.get(r, -1) <= k, (k, it.text)

S.wait(dma_tok[0])
if opt('waitall', 0): S('s_waitcnt vmcnt(0)')
S('s_barrier')
stamp('first')
S.l += first_reads
for k in range(NG):
    if k == 0 or fidx[k - 1] != fidx[k]: S.use(set().union(*[mf[j].srcab for j in range(k, frag[fidx[k]][2] + 1)]))
    S.l.append(mf[k])
    if opt('slow', 0) and G('slow0', 0) <= k < G('slow1', 160): S('s_nop %d' % opt('slow', 0))
    for it in fixed.get(k, []) + mem_first(gaps[k]):
        if isinstance(it, tuple) and it[0] == 'ST':
            if FINE: stamp(it[1])
        elif isinstance(it, tuple):
            n2 = it[1]
            tk = [dma_tok[m] for m in range(20) if bar_of(m) == n2]
            if n2 == FLAGA: tk.append(tokA)
            S.wait(*tk)
            S('s_barrier')
            if n2 == FLAGA: set_flag(S, v_flag, s_f1, 0)
            if FINE or '--clk' in ARGS or n2 in (10, 14, 16): stamp('b%d' % n2)
        else:
            S.l.append(it)
stamp('p1end')
S(qka(0)); S(qkb(0))
mrest = mask_rest()
S.l += mrest[:8]
g, tokB = epi1_tile(1, 3)
for x in g: S.l += x
S('L_join:')
stamp('join')
nst_join = nstamp[0] - 1

N = len(steps)
groups = []
for n in range(N):
    for g in range(4):
        st = Stream()
        if g == 0 and n + 1 < N: st(qka(n + 1))
        if g == 1 and n > 0: st(pv(n - 1, 1))
        if g == 2 and n + 1 < N: st(qkb(n + 1))
        if g == 3: st(pv(n, 0))
        if g > 0 or n > 0:
            for x in cvts((g - 1) & 3): st(x)
        for x in exps(n, g): st(x)
        groups.append(st.l)
first = {}
for n, (j, q) in enumerate(steps): first.setdefault(j, n)
last = {j: n for n, (j, q) in enumerate(steps)}
for j in range(1, 10):
    base = 4 * (last[j-2] + 1) + 1 if j >= 2 else 0
    for kk in range(2):
        for u in range(2): groups[base + kk].append(v_read(j, kk, u))
    if j + 1 < 10:
        groups[base + 3].append(k0_read(j + 1))
        if (j + 1) % 2 == 0: groups[base + 3].append(k1_read(j + 1))
    need = set(x for kk in range(2) for u in range(2) for x in v_read(j, kk, u).defs)
    if j + 1 < 10: need |= k0_read(j + 1).defs | (k1_read(j + 1).defs if (j + 1) % 2 == 0 else set())
    st = Stream(); st.use(need); groups[4 * first[j] + 3][0:0] = st.l
weave(groups, mrest[8:], 4, 36)
FB = opt('fb', 4)
st = Stream(); st.wait(tokB); st('s_barrier'); set_flag(st, v_flag, s_f1, 0); groups[4 * FB - 1] += st.l
groups[0] += L(f's_add_u32 {s_f1}, {s_f1}, 32768')
P3S = opt('p3s', 11); P3D = opt('p3d', 2)
NWO2 = opt('nwo2', 44)
NWOM = min(NWO2, opt('nwom', 44))
if NWOM > NWO1: weave(groups, wo_loads(NWO1, NWOM), opt('wo0g', 1), 4 * (P3S - P3D) - 1)
if NWO2 > NWOM: weave(groups, wo_loads(NWOM, NWO2), 4 * P3S + opt('bln', 12), 72)
groups[4 * (P3S - P3D) - 1] += mk(poll_issue, v_pres, v_p3, sWS, s_F1B)
groups[4 * P3S - 2] += L(f'''
s_add_u32 s60, {s_bF}, {QKV[1]}
s_add_u32 s61, {s_bS}, {QKV[1]}
s_add_u32 s62, {s_bF}, {QKV[1] + 80*GRP - 512}
s_add_u32 s63, {s_bS}, {QKV[1] + 80*GRP - 512}
''')
groups[4 * P3S - 3] += L(f'''
s_add_u32 s64, {s_bF}, {QKV[1] + 160*GRP}
s_add_u32 s65, {s_bF}, {QKV[1] + 161*GRP - 1088}
s_add_u32 s66, {s_bS}, {QKV[1] + 160*GRP - 2176}
s_mov_b32 m0, {s_mV}
''')
groups[4 * P3S - 1] += mk(poll_check, v_pres, v_p3, sWS, s_F1B)
bl = L(f'''
buffer_load_dword {v_g[0]}, {v_gad}, {sWS}, {s_gb} offen sc1
buffer_load_dword {v_g[1]}, {v_gad}, {sWS}, {s_gb} offen offset:128 sc1
buffer_load_dwordx4 {vr(QB0,4)}, {v_q4}, {sWS}, s60 offen sc1
buffer_load_dwordx4 {vr(KB0,4)}, {v_kb0}, {sWS}, s62 offen sc1
buffer_load_dwordx2 {vr(QB1,2)}, {v_qe}, {sWS}, s61 offen sc1
buffer_load_dwordx2 {vr(QB1+2,2)}, {v_qo}, {sWS}, s61 offen sc1
buffer_load_dwordx2 {ar(AKB1,2)}, {v_kb1}, {sWS}, s63 offen sc1
buffer_load_dwordx4 {vr(KB0+4,4)}, {v_q4}, {sWS}, s62 offen offset:512 sc1
buffer_load_dwordx4 {vr(QB0+4,4)}, {v_q4}, {sWS}, s60 offen offset:512 sc1
buffer_load_dwordx2 {vr(QB1+4,2)}, {v_qo}, {sWS}, s61 offen offset:512 sc1
buffer_load_dwordx4 {vr(KB0+8,4)}, {v_q4}, {sWS}, s62 offen offset:1024 sc1
buffer_load_dwordx2 {ar(AKB1+4,2)}, {v_qo}, {sWS}, s63 offen offset:1024 sc1
buffer_load_dwordx4 {v_l16}, {sWS}, s64 offen sc1 lds
buffer_load_dwordx4 {v_l16}, {sWS}, s65 offen offset:1088 sc1 lds
buffer_load_dwordx4 {v_l16}, {sWS}, s66 offen offset:2176 sc1 lds
''')
st = Stream(); st(f's_add_u32 m0, {s_mV}, 3264\nv_mov_b32 v{QB1+6}, 0\nv_mov_b32 v{QB1+7}, 0')
tokVB = st.vm(f'buffer_load_dwordx4 {v_halo}, {sWS}, 0 offen sc1 lds'); bl.append(st.l)
weave(groups, bl, 4 * P3S, 4 * P3S + opt('bln', 12))
for k, g in enumerate(groups):
    S.l += mem_first(g)
    if FINE and k % 8 == 7: stamp('a%d' % (k // 4))
for x in cvts(3): S(x)
S('s_nop 1')
S(pv(N - 1, 1))
stamp('attA')
S(f'''
s_lshl_b32 {s_t0}, {s_R}, 10
s_mul_i32 {s_t1}, {s_w}, {20*GRP}
s_add_u32 s{SX0}, {s_t0}, {s_t1}
s_mov_b32 {s_tag}, 0xfffe0000
s_mov_b32 s90, 0
s_mov_b32 s91, -1
s_add_u32 s61, {s_hb}, {32*16384}
''')
for s_ in range(1, 4): S(f's_add_u32 s{SX0+s_}, s{SX0}, {5*s_*GRP}')
S(f'''
s_mov_b32 {s_t1}, {hex(64 << 23)}
v_subrev_u32 {v_t1}, {hex(95 << 23)}, v{OA[0]+12}
v_subrev_u32 {v_t2}, {hex(95 << 23)}, v{OA[1]+12}
v_max_u32 {v_t1}, {v_t1}, {v_t2}
v_cmp_le_u32 vcc, {s_t1}, {v_t1}
s_cbranch_vccnz L_truemax
L_Aok:
''')
FBK = Stream()
FBK('@reset')
FBK(f'''
L_truemax:
s_lshr_b32 {s_t1}, {s_q0}, 5
s_sub_u32 {s_t1}, 8, {s_t1}
s_nop 7
''')
def fb_qk(j, q):
    c = vr(M_FAR, 16) if j == q else vr(M_DIAG, 16) if j == 8 + q else '0'
    FBK(f'''
    ds_read_b128 {ar(AK0,4)}, {v_k0} offset:{512*j}
    ds_read_b64 {ar(AK1,2)}, {v_k1} offset:{512*(j & ~1)}
    {mm} {vr(SB[0],16)}, {ar(AK0,4)}, {vr(QA0+4*q,4)}, {c}
    {mm} {vr(SB[0],16)}, {ar(AK1,4)}, {vr(QA1+4*q+2*(j&1),4)}, {vr(SB[0],16)}
    ''')
for q in range(2):
    FBK(f'v_mov_b32 {v_t3}, {NEGINF}')
    for i in range(16): FBK(f'v_mov_b32 v{OA[q]+i}, 0')
    for ps in range(2):
        for j in range(q, q + 9):
            l = lab('skip')
            FBK(f's_cmp_gt_i32 {s_t1}, {j}\ns_cbranch_scc1 {l}')
            if ps == 1:
                for kk in range(2):
                    for u in range(2): FBK(f'ds_read_b64_tr_b16 {ar(AV+4*kk+2*u,2)}, {v_v} offset:{512*j+256*kk+128*u}')
            fb_qk(j, q)
            if ps == 0:
                for i in range(0, 16, 2): FBK(f'v_max3_f32 {v_t3}, {v_t3}, v{SB[0]+i}, v{SB[0]+i+1}')
            else:
                for i in range(16): FBK(f'v_sub_f32 v{SB[0]+i}, v{SB[0]+i}, {v_t3}')
                for i in range(16): FBK(f'v_exp_f32 v{SB[0]+i}, v{SB[0]+i}')
                for i in range(8): FBK(f'v_cvt_pk_bf16_f32 v{P0+i}, v{SB[0]+2*i}, v{SB[0]+2*i+1}')
                for kk in range(2): FBK(f'{mm} {vr(OA[q],16)}, {ar(AV+4*kk,4)}, {vr(P0+4*kk,4)}, {vr(OA[q],16)}')
                FBK('s_nop 7')
            FBK(l + ':')
        if ps == 0:
            FBK(f'''
            s_nop 1
            v_mov_b32 {v_t4}, {v_t3}
            v_permlane32_swap_b32 {v_t3}, {v_t4}
            v_max_f32 {v_t3}, {v_t3}, {v_t4}
            ''')
FBK('s_nop 15\ns_branch L_Aok')

OSC = '' if opt('local', 0) else ' sc1'
def epi2(br, q, o, pk=False):
    st = Stream()
    st(f'v_rcp_f32 {v_t1}, v{o+12}')
    st(f'v_mul_f32 {v_t1}, {v_g[q]}, {v_t1}')
    if pk:
        for i in range(0, 12, 2): st(f'v_pk_mul_f32 {vr(o+i,2)}, {vr(o+i,2)}, {vr(22,2)} op_sel_hi:[1,0]')
    else:
        for i in range(12): st(f'v_mul_f32 v{o+i}, {v_t1}, v{o+i}')
    for i in (0, 4, 8): st(f'v_and_or_b32 v{o+i}, v{o+i}, {s_tag}, {v_o4}')
    for i in range(6): st(f'v_cvt_pk_bf16_f32 v{o+i}, v{o+2*i}, v{o+2*i+1}')
    if q:
        for i in (4, 5): st(f'v_cndmask_b32 v{o+i}, v{o-16+i}, v{o+i}, s[90:91]')
    tok = st.vm(f'buffer_store_dwordx4 {vr(o,4)}, {v_q4}, {sWS}, {"s60" if br else s_bF} offen offset:{512*q} sc1')
    if q: tok = st.vm(f'buffer_store_dwordx2 {vr(o+4,2)}, {v_zero}, {sWS}, {"s61" if br else s_hb} offen sc1')
    return st.l, tok
qkB = [[Ins(x)] for x in (
    f'{mm} {vr(SP[0],16)}, {vr(KB0,4)}, {vr(QB0,4)}, {vr(MB_PREV0,16)}',
    f'{mm} {vr(SP[0],16)}, {ar(AKB1,4)}, {vr(QB1,4)}, {vr(SP[0],16)}',
    f'{mm} {vr(SD[0],16)}, {vr(KB0+4,4)}, {vr(QB0,4)}, {vr(MB_DIAG,16)}',
    f'{mm} {vr(SD[0],16)}, {ar(AKB1,4)}, {vr(QB1+2,4)}, {vr(SD[0],16)}',
    f'{mm} {vr(SP[1],16)}, {vr(KB0+4,4)}, {vr(QB0+4,4)}, {vr(MB_PREV,16)}',
    f'{mm} {vr(SP[1],16)}, {ar(AKB1,4)}, {vr(QB1+4,4)}, {vr(SP[1],16)}',
    f'{mm} {vr(SD[1],16)}, {vr(KB0+8,4)}, {vr(QB0+4,4)}, {vr(MB_DIAG,16)}',
    f'{mm} {vr(SD[1],16)}, {ar(AKB1+4,4)}, {vr(QB1+4,4)}, {vr(SD[1],16)}')]
st = Stream(); st.wait(tokVB)
for u in range(2): st(f'ds_read_b64_tr_b16 {ar(VB+2*u,2)}, {v_vh} offset:{128*u}')
for t in range(2):
    for kk in range(2):
        for u in range(2): st(f'ds_read_b64_tr_b16 {ar(VB+4+8*t+4*kk+2*u,2)}, {v_vb} offset:{512*t+256*kk+128*u}')
vbr = st.l
e0, _ = epi2(0, 0, OA[0], True); e1, tokOA = epi2(0, 1, OA[1], True)
S.l += e0 + e1
st2('epiA')
TST = opt('tst', 1)
adr2 = Stream()
for rho in range(4):
    adr2(f's_mul_i32 {s_t1}, s{56+rho}, 60')
    if rho: adr2(f's_add_u32 {s_t1}, {s_t1}, {(rho-1)*5120}\nv_add_u32 v{VRW+rho-1}, {s_t1}, {v_l16}')
    else: adr2(f'v_add_u32 {v_rr}, {s_t1}, {v_l16}')
adr2(f'''
v_lshrrev_b32 v14, 4, {v_lane}
v_and_b32 v15, 15, {v_lane}
v_lshlrev_b32 v9, 15, v14
v_lshl_add_u32 v9, v15, 3, v9
s_lshr_b32 {s_t0}, s56, 1
v_add_u32 v6, {s_t0}, v9
s_lshr_b32 {s_t0}, s57, 1
v_add_u32 v7, {s_t0}, v9
s_lshr_b32 {s_t0}, s58, 1
v_add_u32 v8, {s_t0}, v9
s_lshr_b32 {s_t0}, s59, 1
v_add_u32 v9, {s_t0}, v9
s_lshl_b32 {s_t0}, {s_w}, 17
s_lshl_b32 {s_t1}, {s_R}, 9
s_add_u32 {s_t0}, {s_t0}, {s_t1}
s_add_u32 s74, {s_t0}, {HOFF}
s_add_u32 s75, {s_t0}, {HOFF + 16384}
s_add_u32 s66, {s_t0}, {HOFF + 32*16384}
s_add_u32 s67, {s_t0}, {HOFF + 33*16384}
v_mul_u32_u24 v15, {160 if TST else 1280}, v15
v_mad_u32_u24 v15, v14, 40, v15
s_lshl_b32 {s_t0}, {s_R}, 2
s_add_u32 {s_t0}, {s_t0}, {s_w}
s_mul_i32 {s_t0}, {s_t0}, {16*1280}
s_mul_i32 {s_t1}, {s_C}, 160
s_add_u32 {s_e3}, {s_t0}, {s_t1}
s_mul_i32 {s_e0}, {s_w}, 2560
s_add_u32 {s_e0}, {s_e0}, 61440
s_movk_i32 {s_e1}, 1120
v_add_u32 {v_out}, {s_e0 if TST else s_e3}, v15
''')
for s_ in range(4): adr2(f's_add_u32 s{62+s_}, s{SX0}, {QKV[1] + 5*s_*GRP}')
qk_plain = [g[0].text for g in qkB]
FASTB = opt('fastb', 0)
NQ0 = 4 if FASTB else 6
weave(qkB, vbr, 1 if FASTB else 2, NQ0)
NWOB = max(NWO2, opt('nwob', 44))
if NWOB > NWO2: weave(qkB, wo_loads(NWO2, NWOB), 0, NQ0)
qkB[0] += L(f'v_sub_f32 {v_g[0]}, 1.0, {v_g[0]}\nv_sub_f32 {v_g[1]}, 1.0, {v_g[1]}\ns_mov_b32 {s_t1}, {hex(64 << 23)}')
for g in qkB[:NQ0]: S.l += g
st2('qkB')
def softB(q):
    st = Stream()
    b = SP[q] + 8
    assert SD[q] == SP[q] + 16
    st(f'v_max3_f32 {v_t3}, v{b}, v{b+1}, v{b+2}')
    st(f'v_max3_f32 {v_t4}, v{b+3}, v{b+4}, v{b+5}')
    for i in range(6, 22, 4):
        st(f'v_max3_f32 {v_t3}, {v_t3}, v{b+i}, v{b+i+1}')
        st(f'v_max3_f32 {v_t4}, {v_t4}, v{b+i+2}, v{b+i+3}')
    st(f'v_max3_f32 {v_t3}, {v_t3}, v{b+22}, v{b+23}')
    st(f'v_max_f32 {v_t3}, {v_t3}, {v_t4}')
    st(f'v_mov_b32 {v_t4}, {v_t3}')
    st(f'v_permlane32_swap_b32 {v_t3}, {v_t4}')
    st(f'v_max_f32 {v_t3}, {v_t3}, {v_t4}')
    for i in range(0, 24, 2): st(f'v_pk_add_f32 {vr(b+i,2)}, {vr(b+i,2)}, {vr(24,2)} op_sel_hi:[1,0] neg_lo:[0,1] neg_hi:[0,1]')
    vop = [VB if q == 0 else VB + 8, VB + 4 + 8 * q, VB + 8 + 8 * q]
    for c in range(3):
        for i in range(8): st(f'v_exp_f32 v{b+8*c+i}, v{b+8*c+i}')
        if c: st(f'{mm} {vr(OB[q],16)}, {ar(vop[c-1],4)}, {vr(b+8*(c-1),4)}, {"0" if c == 1 else vr(OB[q],16)}')
        for i in range(4): st(f'v_cvt_pk_bf16_f32 v{b+8*c+i}, v{b+8*c+2*i}, v{b+8*c+2*i+1}')
    return st.l, Ins(f'{mm} {vr(OB[q],16)}, {ar(vop[2],4)}, {vr(b+16,4)}, {vr(OB[q],16)}')
l0, m0_ = softB(0); l1, m1_ = softB(1)
if FASTB:
    def pvB(q, c):
        vop = [VB if q == 0 else VB + 8, VB + 4 + 8 * q, VB + 8 + 8 * q]
        return L(f'{mm} {vr(OB[q],16)}, {ar(vop[c],4)}, {vr(SP[q]+8+8*c,4)}, {"0" if c == 0 else vr(OB[q],16)}')
    st = Stream(); st.use({'a%d' % r for r in range(VB, VB + 20)})
    extra = {0: [qkB[4], qkB[5]], 1: [st.l + pvB(0, 0), qkB[6]], 2: [pvB(0, 1), qkB[7]], 3: [pvB(0, 2), []], 4: [pvB(1, 0), []], 5: [pvB(1, 1), []]}
    lb = []
    for k in range(6):
        b = SP[k // 3] + 8 + 8 * (k % 3)
        ex = L('\n'.join(f'v_exp_f32 v{b+i}, v{b+i}' for i in range(8)))
        lb += ex[:2] + extra[k][0] + ex[2:7] + extra[k][1] + ex[7:] + L('\n'.join(f'v_cvt_pk_bf16_f32 v{b+i}, v{b+2*i}, v{b+2*i+1}' for i in range(4)))
    FBK('@reset')
    FBK('L_truemaxB:\ns_nop 7')
    for x in qk_plain: FBK(x)
    FBK.l += l0 + [m0_] + l1 + [m1_]
    FBK.l += [x for x in epi2(1, 0, OB[0])[0] if x.kind != 'vm']
    FBK('s_nop 7\ns_branch L_Bok')
    m1_ = pvB(1, 2)[0]
else:
    lb = l0[:5] + qkB[6] + l0[5:10] + qkB[7] + l0[10:] + l1[:2] + [m0_] + l1[2:]
def o_load(br, s_, rho):
    b = OF[br][s_] + 4 * rho
    so = (62 if br else SX0) + s_
    if s_ < 4: return L(f'buffer_load_dwordx4 {vr(b,4)}, v{V4+rho}, {sWS}, s{so} offen sc1')
    return L('\n'.join(f'buffer_load_dwordx2 {vr(b+2*u,2)}, v{V2+rho}, {sWS}, s{so+u} offen sc1' for u in range(2)))
order = (1, 2, 3, 0)
ogrp = [[(0, s_, rho) for rho in range(4)] for s_ in range(5)] + [[(1, s_, rho) for s_ in range(5)] for rho in order]
ol = [x for g in ogrp for e in g for x in o_load(*e)]
e0, _ = epi2(1, 0, OB[0]); e1, tokOB = epi2(1, 1, OB[1], True)
if FASTB:
    assert opt('bst', 1) and opt('noe', 4) <= 4
    lb += e0[:1] + L(f'v_subrev_u32 {v_t3}, {hex(95 << 23)}, v{OB[0]+12}') + [m1_] + e0[1:]
    lb += L(f'''
    v_subrev_u32 {v_t4}, {hex(95 << 23)}, v{OB[1]+12}
    v_max_u32 {v_t3}, {v_t3}, {v_t4}
    v_cmp_le_u32 vcc, {s_t1}, {v_t3}
    s_cbranch_vccnz L_truemaxB
    L_Bok:
    ''') + e1
else:
    lb += e0[:1] + L('s_nop 0') + [m1_] + e0[1:] + e1
NO0 = opt('no0', 8); NOE = opt('noe', 4); OE = opt('oe', 1)
if NOE:
    k_ = [i for i, x in enumerate(lb) if x.kind == 'mfma'][-OE]
    lb[k_ + 1:k_ + 1] = ol[:NOE]
BST = opt('bst', 1)
bst = []
if BST:
    bst = [x for x in lb if x.kind == 'vm' and 'store' in x.mn]
    lb = [x for x in lb if x not in bst]
    if BST > 1:
        lb += L(f'v_mov_b32 v6, {v_q4}\nv_mov_b32 v7, {v_qe}')
        bst = [Ins(x.text.replace(v_q4 + ',', 'v6,').replace(v_qe + ',', 'v7,')) for x in bst]
S.l += lb
stamp('epiB')
S.l += ol[NOE:NO0]
if BST == 1: S.l += bst
S.l += adr2.l
NWO4 = max(NWOB, opt('nwo4', 44))
for g in wo_loads(NWOB, NWO4): S.l += g
st2('oiss')

def o_check(i):
    regs = [OF[br][s_] + 4 * rho + j for br, s_, rho in ogrp[i] for j in (0, 2)]
    def tree():
        st = Stream()
        for k in range(0, len(regs), 2): st(f'v_bitop3_b32 v1, {"v1" if k else "1"}, v{regs[k]}, v{regs[k+1]} bitop3:0x80')
        st('v_cmp_eq_u32 vcc, 0, v1')
        return st.l
    l = lab('again'); b = lab('fresh')
    tail('@reset')
    tail(f'{l}:\ns_mov_b32 {s_cnt}, 0\n{l}_a:')
    for e in ogrp[i]: tail.l += o_load(*e)
    tail(f's_add_u32 {s_cnt}, {s_cnt}, 1')
    if STAMPS: tail(f'v_writelane_b32 v0, {s_cnt}, {60 + (i >= 5)}')
    tail('s_waitcnt vmcnt(0)')
    tail.l += tree()
    tail(f's_cbranch_vccz {b}\ns_cmp_lt_u32 {s_cnt}, 0x40000\ns_cbranch_scc1 {l}_a\ns_branch {b}')
    t = tree()
    return t[:-1] + [t[-1:] + L(f's_cbranch_vccnz {l}\n{b}:')]
def mf3(br, s_, rho, ct):
    acc = vr(AC3 + 20 * rho + 4 * ct, 4)
    return [Ins(f'v_mfma_f32_16x16x32_bf16 {acc}, {ar(100*br+20*s_+4*ct,4)}, {vr(OF[br][s_]+4*rho,4)}, {"0" if br == 0 and s_ == 0 else acc}')]
PP = opt('pp', 0)
ent = [e for g in ogrp for e in g]
late = [e for e in ent if e[0] == 0 and e[2] == 0 and e[1] >= 5 - PP]
ent = [e for e in ent[:-5] if e not in late] + late + ent[-5:]
sl = [mf3(*e, ct) for e in ent for ct in range(5)]
PB0 = opt('pb0', 36); PB1 = opt('pb1', 55 - 3 * PP)
assert NO0 <= 16 and BST <= 1
weave(sl, ol[NO0:24], 0, PB0)
S(f'v_mov_b32 v15, {v_l16}')
if NWO4 < 50: weave(sl, wo_loads(NWO4, 50, 'v15'), PB0, PB1)
weave(sl, ol[24:], PB1, opt('no1', 140 - 5 * PP))
for it in o_check(0): S.l += it if isinstance(it, list) else [it]
stamp('poll4')
gstart = [5 * min(ent.index(e) for e in g) for g in ogrp]
for i in range(1, 9): weave(sl, o_check(i), gstart[i] - opt('chk', 6), gstart[i])
for k, g in enumerate(sl):
    for it in g[1:]:
        if it.kind == 'vm': assert not any(it.defs & x.uses for j in range(k + 1) for x in sl[j] if x.kind != 'vm'), it.text
for i, rho in enumerate((1, 2, 3)):
    wr = [Ins(f'ds_write_b128 v{VRW+rho-1}, {vr(AC3+20*rho+4*ct,4)} offset:{1024*ct}') for ct in range(5)]
    lo = gstart[5 + i] + 25 + 3
    weave(sl, wr, lo, lo + (15 if i < 2 else 5))
RB = lo + opt('rbd', 9)
sl[RB] += L('s_waitcnt lgkmcnt(0)\ns_barrier')
def red(k, ct): return OF[0][ct] + 4 * (k + 1)
weave(sl, [Ins(f'ds_read_b128 {vr(red(k,ct),4)}, {v_rr} offset:{5120*k+1024*ct}') for ct in range(5) for k in range(3)], RB + 1, min(RB + 11, 200))
nadd = max(0, min(5, (200 - RB - 8) // 4))
if nadd: weave(sl, [Ins(f'v_add_f32 v{red(0,ct)+j}, v{red(0,ct)+j}, v{red(k,ct)+j}') for ct in range(nadd) for k in (1, 2) for j in range(4)], 200 - 4 * nadd, 200)
if TST:
    fa = []
    for i, (r, t) in enumerate(((3, 7), (4, 8), (6 + 1, 8))):
        src = 'v15' if i == 0 else f'v{r}'
        if i: fa += L(f'v_add_u32 v{r}, {1024*i}, v15')
        tmp = 'v7' if i == 0 else 'v8'
        fa += L(f'v_mul_u32_u24 {tmp}, 6554, {src}\nv_lshrrev_b32 {tmp}, 20, {tmp}\nv_mad_u32_u24 v{r}, {tmp}, {s_e1}, {src}')
    fa += [L(f'v_cmp_gt_u32 vcc, 16, v8\nv_add_u32 v15, {s_e0}, v15\ns_nop 0\nv_cndmask_b32 v7, {BIG}, v7, vcc')]
    weave(sl, fa, gstart[7] + 1, gstart[7] + 18)
for k, g in enumerate(sl):
    S.l += mem_first(g)
    if k == 99: stamp('mf3A')
    elif k in (0, 19, 39, 59, 79, 124, 149, RB - 1, RB): st2('m%d' % k)
stamp('mf3')
for ct in range(nadd, 5):
    for k in (1, 2):
        for j in (0, 2): S(f'v_pk_add_f32 {vr(red(0,ct)+j,2)}, {vr(red(0,ct)+j,2)}, {vr(red(k,ct)+j,2)}')
for i in range(0, 20, 2):
    S(f'v_pk_add_f32 {vr(AC3+i,2)}, {vr(AC3+i,2)}, {vr(red(0,i//4)+i%4,2)}')
for i in range(10):
    S(f'v_cvt_pk_bf16_f32 v{AC3+i}, v{AC3+2*i}, v{AC3+2*i+1}')
if TST:
    for i in range(5): S(f'ds_write_b64 {v_out}, {vr(AC3+2*i,2)} offset:{8*i}')
    for i in range(3): S(f'ds_read_b128 {vr(40+4*i,4)}, v15 offset:{1024*i}')
    for i, r in enumerate((3, 4, 7)): S(f'buffer_store_dwordx4 {vr(40+4*i,4)}, v{r}, {sOUT}, {s_e3} offen')
else:
    S(f'''
    buffer_store_dwordx4 {vr(AC3,4)}, {v_out}, {sOUT}, 0 offen
    buffer_store_dwordx4 {vr(AC3+4,4)}, {v_out}, {sOUT}, 0 offen offset:16
    buffer_store_dwordx2 {vr(AC3+8,2)}, {v_out}, {sOUT}, 0 offen offset:32
    ''')
if AMP:
    S('s_waitcnt vmcnt(0)')
    stamp('end')
    S(f'''
    s_cmp_lg_u32 s2, {opt('ampwg', 9)}
    s_cbranch_scc1 L_end
    s_memrealtime s[84:85]
    s_waitcnt lgkmcnt(0)
    s_sub_u32 s80, s82, s80
    s_lshl_b32 s80, s80, 2
    s_min_u32 s80, s80, 100000
    {('s_mov_b32 s80, %d' % opt('ampc', 0)) if opt('ampc', 0) else ''}
    L_amp:
    s_memrealtime s[86:87]
    s_waitcnt lgkmcnt(0)
    s_sub_u32 s86, s86, s84
    s_cmp_lt_u32 s86, s80
    s_cbranch_scc1 L_amp
    ''')
if STAMPS:
    stamp('red')
    S('s_waitcnt vmcnt(0)')
    stamp('end')
    S(f'''
    s_waitcnt lgkmcnt(0)
    s_cmp_lg_u32 {s_w}, 0
    s_cbranch_scc1 L_end
    v_writelane_b32 v0, s{ST0+2*((nstamp[0]-1)&1)}, {nstamp[0]-1}
    s_lshl_b32 {s_t0}, s2, 8
    s_add_u32 {s_t0}, {s_t0}, {STAMP_OFF}
    v_mbcnt_lo_u32_b32 v3, -1, 0
    v_mbcnt_hi_u32_b32 v3, -1, v3
    v_lshlrev_b32 v3, 2, v3
    buffer_store_dword v0, v3, {sWS}, {s_t0} offen
    ''')
    assert nstamp[0] <= 56, nstamp[0]
    open(OUT + '.stamps', 'w').write(' '.join(n or str(i) for i, n in enumerate(stamp_names)))
S('s_endpgm')

T = Stream()
nstamp[0] = 1
T('@reset')
T(f'''
L_spare:
s_waitcnt lgkmcnt(0)
s_load_dwordx2 s[56:57], s[0:1], 16
s_load_dwordx2 s[58:59], s[0:1], 40
s_load_dwordx2 s[8:9], s[0:1], 48
s_mov_b32 s30, {640*1280}
s_mov_b32 s10, 1280
''')
common_consts(T)
T(f'''
v_mov_b32 v64, 0
v_mov_b32 v65, 0
v_mov_b32 v66, 0
v_mov_b32 v67, 0
v_lshlrev_b32 {v_t1}, 4, v0
s_lshl_b32 {s_t2}, {s_rb}, 12
s_add_u32 {s_t2}, {s_t2}, {FLG}
''')
tokz = T.vm(f'buffer_store_dwordx4 v[64:67], {v_t1}, {sWS}, {s_t2} offen sc1')
def handshake():
    T.wait(tokz)
    T(f'''
    s_barrier
    s_lshl_b32 {s_t1}, {s_rb}, 2
    buffer_store_dword {v_one}, {v_flag}, {sDBG}, {s_t1} offen sc1
    ''')
STB = opt('stb', 0)
if STB:
    T(f'''
    s_mov_b32 s14, {640*3840}
    s_mov_b32 s15, 0x20000
    s_lshl_b32 {s_t0}, {s_rb}, 2
    s_add_u32 {s_t0}, {s_t0}, {s_w}
    s_mul_i32 {s_t0}, {s_t0}, {300*128}
    v_min_u32 {v_t1}, 59, {v_lane}
    v_lshlrev_b32 {v_t1}, 7, {v_t1}
    ''')
    for i in range(5):
        T(f'buffer_load_dword v{68+i}, {v_t1}, {sWB}, {s_t0} offen\ns_add_u32 {s_t0}, {s_t0}, {60*128}')
        if i == 2: handshake()
T(f'''
s_and_b32 {s_e0}, {s_rb}, 1
s_lshl_b32 {s_e0}, {s_e0}, 2
s_add_u32 {s_e0}, {s_e0}, {s_w}
s_bfe_u32 {s_e1}, {s_rb}, 0x20001
s_mul_i32 {s_t2}, {s_e0}, 160
s_mul_i32 {s_t1}, {s_e1}, {160*1280}
s_add_u32 {s_t2}, {s_t2}, {s_t1}
s_mov_b32 {s_t0}, {(1<<32)//10+1}
''')
for i in range(5):
    T(f'''
    v_add_u32 {v_t1}, {64*i}, {v_lane}
    v_mul_hi_u32 {v_t2}, {v_t1}, {s_t0}
    v_mul_u32_u24 {v_t3}, 10, {v_t2}
    v_sub_u32 {v_t1}, {v_t1}, {v_t3}
    v_mul_u32_u24 {v_t2}, 1280, {v_t2}
    v_lshl_add_u32 {v_t2}, {v_t1}, 4, {v_t2}
    v_add_u32 v{2+i}, {s_t2}, {v_t2}
    ''')
T(f'''
s_mul_i32 {s_mW}, {s_w}, 25600
s_waitcnt lgkmcnt(0)
s_cmp_ge_u32 {s_rb}, 8
s_cselect_b32 s28, s58, s56
s_cselect_b32 s29, s59, s57
''')
wtok = {}
def wo_dma(b):
    T(f's_mov_b32 {s_t3}, {b*32*1280}')
    for i in range(5):
        T(f's_add_u32 m0, {s_mW}, {1024*(5*b+i)}')
        wtok[5 * b + i] = T.vm(f'buffer_load_dwordx4 v{2+i}, {sTMP}, {s_t3} offen lds')
wo_dma(0); wo_dma(1)
T(f'''
v_lshrrev_b32 {v_t1}, 4, {v_lane}
v_bfe_u32 {v_t2}, {v_lane}, 2, 2
v_and_b32 {v_t3}, 3, {v_lane}
v_mul_u32_u24 {v_t3}, 40, {v_t3}
v_add_u32 {v_t3}, {s_mW}, {v_t3}
v_mad_u32_u24 {v_t4}, {v_t1}, 40, {v_t2}
v_add_u32 {v_t4}, 16, {v_t4}
v_mul_u32_u24 {v_t4}, 160, {v_t4}
v_add_u32 v8, {v_t4}, {v_t3}
v_lshrrev_b32 {v_t4}, 1, {v_t1}
v_add_u32 {v_t4}, {v_t4}, {v_t1}
v_lshl_add_u32 {v_t2}, {v_t4}, 3, {v_t2}
v_mul_u32_u24 {v_t2}, 160, {v_t2}
v_add_u32 v7, {v_t2}, {v_t3}
s_lshr_b32 {s_t0}, {s_rb}, 3
s_lshl_b32 {s_t0}, {s_t0}, 3
s_add_u32 {s_t0}, {s_t0}, {s_e0}
s_lshl_b32 {s_t0}, {s_t0}, 2
s_add_u32 {s_t0}, {s_t0}, {s_e1}
s_mul_i32 {s_stb}, {s_t0}, 25600
v_and_b32 v9, 15, {v_lane}
v_lshlrev_b32 v9, 4, v9
v_mul_u32_u24 v10, 1280, {v_t1}
v_add_u32 v10, v10, v9
v_cmp_eq_u32 vcc, 0, v9
v_lshlrev_b32 {v_t1}, 2, {v_t1}
s_lshl_b32 {s_rot}, {s_rb}, 2
s_add_u32 {s_rot}, {s_rot}, {s_w}
v_cndmask_b32 v11, {v_big}, {v_t1}, vcc
''')
stamp('', T)
setup2(T); setup_lds(T)
T.l += h_fill(64)
wo_dma(2)
stamp('', T)
for s_ in range(5):
    T.wait(wtok[min(24, (400 * (s_ + 1) - 1) // 64)])
    if s_ == 0 and not STB: handshake()
    for ct in range(5):
        f = 5 * s_ + ct
        for u in range(2):
            if s_ < 4: T(f'ds_read_b64_tr_b16 {vr(140+4*f+2*u,2)}, v7 offset:{(40*s_+4*u)*160+8*ct}')
            else: T(f'ds_read_b64_tr_b16 {vr(140+4*f+2*u,2)}, v8 offset:{640*u+8*ct}')
    if s_ + 3 < 5: wo_dma(s_ + 3)
    if s_ == 2: poll_issue(T, v_pres, v_zero, sDBG, '0')
    for ct in range(5):
        f = 5 * s_ + ct
        if f % 4 == 0: T(f's_add_u32 {s_t1}, {s_stb}, {WOF + f*1024}')
        tokw = T.vm(f'buffer_store_dwordx4 {vr(140+4*f,4)}, {v_l16}, {sWS}, {s_t1} offen offset:{(f%4)*1024} sc1')
    if s_ == 2: tokw2 = tokw
    if FINE: stamp('', T)
poll_check(T, v_pres, v_zero, sDBG, '0')
stamp('', T)
GW = 224; GA = 48
T(f's_mul_i32 {s_t1}, {s_rot}, {32*1280}')
for j in range(5): T(f'buffer_load_dwordx4 {vr(GW+4*j,4)}, v9, {sWA}, 0 offen offset:{256*j}')
for i in range(8):
    for j in range(5): T(f'buffer_load_dwordx4 {vr(64+20*i+4*j,4)}, v10, {sX}, {s_t1} offen offset:{256*j}')
    T(f's_add_u32 {s_t1}, {s_t1}, {4*1280}')
    if i == 1:
        T.wait(tokw)
        T('s_barrier')
        set_flag(T, v_flag, s_f1, 0)
        stamp('', T)
poll_issue(T, v_pres, v_p1, sWS, s_F1A)
T(f's_lshl_b32 {s_rot}, {s_rot}, 7\ns_add_u32 {s_rot}, {s_rot}, {G_OFF}')
for i in range(8):
    T(f'v_mov_b32 v{GA+i}, 0')
    for k in range(20): T(f'v_dot2c_f32_bf16 v{GA+i}, v{64+20*i+k}, v{GW+k}')
for sh in (8, 4, 2, 1):
    for i in range(8): T(f'v_add_f32_dpp v{GA+i}, v{GA+i}, v{GA+i} row_ror:{sh} row_mask:0xf bank_mask:0xf')
for i in range(8): T(f'v_mul_f32 v{GA+i}, {f32(-math.log2(math.e))}, v{GA+i}')
for i in range(8): T(f'v_exp_f32 v{GA+i}, v{GA+i}')
for i in range(8): T(f'v_add_f32 v{GA+i}, 1.0, v{GA+i}')
for i in range(8): T(f'v_rcp_f32 v{GA+i}, v{GA+i}')
T.l += setup_late()
for i in range(8): tokg = T.vm(f'buffer_store_dword v{GA+i}, v11, {sWS}, {s_rot} offen offset:{16*i} sc1')
stamp('', T)
T.l += mask_far() + zero_pads() + adr_a() + adr_b()
if NA:
    poll(T, v_t1, v_p2, sWS, s_F1A)
    for g in wo_loads(0, NA): T.l += g
poll_check(T, v_pres, v_p1, sWS, s_F1A)
stamp('', T)
kv, _ = kvq_loads()
for g in kv: T.l += g
for g in wo_loads(NA, NWO1): T.l += g
if WT > KV0:
    a_, b_ = wo_touch(); T.l += a_ + b_
T('s_waitcnt vmcnt(0) lgkmcnt(0)\ns_barrier')
T.l += att_pre()
T(qka(0)); T(qkb(0))
T.l += mask_rest()[:8]
T('s_nop 7')
assert nstamp[0] <= nst_join
while nstamp[0] < nst_join: stamp('', T)
T('s_waitcnt lgkmcnt(0)')
T('s_branch L_join')

def undef_check(l, name):
    d = {'v0', 's0', 's1', 's2', 'exec'}; bad = []
    for i in l:
        u = i.uses - d if i.kind not in ('pseudo', 'label', 'none') else set()
        if u: bad.append((sorted(u), i.text))
        d |= i.defs | u
    if bad: print('USE BEFORE DEF in', name, bad)
ib = next(k for k, i in enumerate(S.l) if 'L_spare' in i.text); ij = next(k for k, i in enumerate(S.l) if i.text == 'L_join:')
undef_check(S.l, 'main'); undef_check(S.l[:ib] + T.l + S.l[ij:], 'spare')
S.extend(T); S.extend(tail)
S('L_end:\ns_endpgm')
S.extend(FBK)

XP = opt('xp', 0)
if XP:
    def drop(i):
        if XP & 96 and 's_cbranch_vccnz L_again' in i.text: return True
        if XP & 32 and 'store_dwordx2' in i.text and 's16' in i.uses: return True
        if XP & 128 and 'store' in i.text and 's16' in i.uses and (v_q4 in i.uses or v_qe in i.uses): return True
        if i.kind != 'vm': return False
        t = i.text
        if XP & 1 and s_e2 in i.uses and 'load' in t: return True
        if XP & 2 and 'load' in t and i.uses & {'v%d' % r for r in range(2, 10)} and 's16' in i.uses and 'lds' not in t and i.uses & {'s%d' % r for r in list(range(60, 66)) + list(range(70, 76))} and 'v8' not in i.uses - {None} | set() or False: return True
        if XP & 4 and 'load' in t and 's16' in i.uses and (v_q4 in i.uses or v_qe in i.uses or v_qo in i.uses or v_kb1 in i.uses) and i.uses & {'s60', 's61', 's62', 's63'}: return True
        if XP & 8 and 'store' in t and v_st in i.uses and 's16' in i.uses and i.tok not in (tokA, tokB): return True
        if XP & 16 and 'lds' in t and s_e1 in i.uses and i.tok is not tokKV: return True
        return False
    S.l = [i for i in S.l if not drop(i)]
stats = []
body = finalize(S, stats)
hdr = open('cdna_kernels/%s.s.ref' % NAME).read().split('; Override')[0]
K = NAME + '_kernel'
txt = hdr + f'''; Generated by a hand-written generator script: one persistent workgroup per CU, phases chained by flags in d_ws.
; @launch grid=(256,1,1) block=(256,1,1) lds={LDS_BYTES}
.amdgcn_target "amdgcn-amd-amdhsa--gfx950"
.text
.globl {K}
.p2align 8
.type {K},@function
{K}:
''' + '\n'.join(body) + f'''
.section .rodata,"a"
.p2align 6
.amdhsa_kernel {K}
  .amdhsa_next_free_vgpr 512
  .amdhsa_next_free_sgpr 102
  .amdhsa_accum_offset 256
  .amdhsa_group_segment_fixed_size 0
  .amdhsa_kernarg_size 80
  .amdhsa_user_sgpr_count 2
  .amdhsa_user_sgpr_kernarg_segment_ptr 1
  .amdhsa_system_sgpr_workgroup_id_x 1
  .amdhsa_float_denorm_mode_32 3
.end_amdhsa_kernel
'''
open(OUT, 'w').write(txt)
print('instructions:', len(body), ' nops:', len(stats), sum(s[0] for s in stats), ' overflow slots', over, 'WS_SIZE', WS_SIZE)
if '--nops' in ARGS:
    for s in stats: print(s)
```

```python
NAME = "gated_mix__sliding_block__sliding_local_dilated__prompt"
class Asm:
    def __init__(self):
        self.launch = []; self.text = []; self.kd = []; self.nlabel = 0
    def __call__(self, s):
        for l in s.strip("\n").split("\n"):
            self.text.append(l)
    def label(self, p="L"):
        self.nlabel += 1
        return "%s_%d" % (p, self.nlabel)
    def kernel(self, name, grid, block, lds, vgpr, sgpr=102, accum=None, launch=True):
        if accum is None: accum = (min(vgpr,256) + 3) // 4 * 4
        if launch: self.launch.append("; @launch kernel=%s grid=(%d,1,1) block=(%d,1,1) lds=%d" % (name, grid, block, lds))
        self.text += [".globl " + name, ".p2align 8", ".type %s,@function" % name, name + ":"]
        self.kd += [".p2align 6", ".amdhsa_kernel " + name, "  .amdhsa_next_free_vgpr %d" % vgpr, "  .amdhsa_next_free_sgpr %d" % sgpr,
                    "  .amdhsa_accum_offset %d" % accum, "  .amdhsa_group_segment_fixed_size 0", "  .amdhsa_kernarg_size 80",
                    "  .amdhsa_user_sgpr_count 2", "  .amdhsa_user_sgpr_kernarg_segment_ptr 1", "  .amdhsa_system_sgpr_workgroup_id_x 1",
                    "  .amdhsa_float_denorm_mode_32 3", ".end_amdhsa_kernel"]
    def relaunch(self, name, grid, block, lds):
        self.launch.append("; @launch kernel=%s grid=(%d,1,1) block=(%d,1,1) lds=%d" % (name, grid, block, lds))
    def write(self, path, header=""):
        L = []
        if header: L += header.strip("\n").split("\n")
        L += self.launch + ['.amdgcn_target "amdgcn-amd-amdhsa--gfx950"', ".text"] + self.text + ['.section .rodata,"a"'] + self.kd
        open(path, "w").write("\n".join(L) + "\n")
```

```python
import sys
from asmlib import *
a = Asm()
def gen(kname, kidx, var):
    shape, pat = var.split(':'); pats = pat.split('/')
    a.kernel(kname, 256, 256, 160*1024, 512, accum=256)
    a(f"""
    s_cmp_ge_u32 s2, 256
    s_cbranch_scc1 {kname}_end
    s_load_dwordx2 s[4:5], s[0:1], 8
    s_load_dwordx2 s[52:53], s[0:1], 72
    s_waitcnt lgkmcnt(0)
    s_mov_b32 s6, {640*3840}
    s_mov_b32 s7, 0x20000
    s_mov_b32 s54, 0x8000000
    s_mov_b32 s55, 0x20000
    v_and_b32 v1, 63, v0
    v_lshlrev_b32 v13, 3, v1
    v_lshlrev_b32 v14, 4, v1
    v_lshlrev_b32 v15, 4, v0
    v_lshrrev_b32 v16, 6, v0
    v_lshlrev_b32 v17, 12, v16
    v_readfirstlane_b32 s36, v16
    v_add_u32 v17, v17, v14
    v_add_u32 v18, 16384, v17
    s_lshl_b32 s36, s36, 12
    s_add_u32 m0, s36, 65536
    s_mov_b32 s42, 1.0
    s_mov_b32 s43, 1.0
    """)
    for r in range(64, 128): a(f"v_mov_b32 v{r}, 0\nv_accvgpr_write_b32 a{r+64}, 0")
    for i in range(16):
        a(f"s_mov_b32 s40, {i*4096}\nbuffer_load_dwordx4 v[60:63], v15, s[4:7], s40 offen\ns_waitcnt vmcnt(0)\nds_write_b128 v15, v[60:63] offset:{i*4096}")
    for i in range(16):
        a(f"s_mov_b32 s40, {(i+16)*4096}\nbuffer_load_dwordx4 a[{4*i}:{4*i+3}], v15, s[4:7], s40 offen")
        a(f"s_mov_b32 s40, {(i+32)*4096}\nbuffer_load_dwordx4 v[{128+4*i}:{128+4*i+3}], v15, s[4:7], s40 offen")
    a(f"""
    s_lshr_b32 s40, s2, 3
    s_mul_i32 s40, s40, {3*16384}
    s_waitcnt vmcnt(0) lgkmcnt(0)
    s_barrier
    s_mov_b32 s64, 0
    s_memrealtime s[20:21]
    s_memtime s[24:25]
    s_waitcnt lgkmcnt(0)
    .p2align 6
    {'s_nop 0' if var.endswith('+') else ''}
    {kname}_loop:
    """)
    n = 0; nr = 0; nb = 0; nd = 0
    NGAP = 16 if shape == 'q' else 32
    for st in range(2):
      for g in range(NGAP):
        if shape == 'q':
            w = 128 + 4*((g>>1)&3); x = 32*st + 8*(g>>2) + 4*(g&1); d = 64 + 16*(g&3)
            a(f"v_mfma_f32_32x32x16_bf16 v[{d}:{d+15}], v[{w}:{w+3}], a[{x}:{x+3}], v[{d}:{d+15}]")
        else:
            w = 128 + 4*((g>>2)&3); x = 32*st + 16*(g>>4) + 4*(g&3); d = 64 + 4*(g&15)
            if shape == 'p': w = 128 + 4*(g&3); x = 32*st + 16*(g>>4) + 4*((g>>2)&3)
            if shape == 's': x = 32*st + 16*(g>>4) + 4*((g&3) if not (g>>2)&1 else 3-(g&3))
            if shape == 'n': w = 128 + 4*(g&3); x = 32*st + 16*(g>>4) + 4*(((g>>2)+g)&3)
            if shape == 'a':
                a(f"v_mfma_f32_16x16x32_bf16 a[{d+64}:{d+67}], v[{w}:{w+3}], a[{x}:{x+3}], a[{d+64}:{d+67}]"); d = None
            if shape == 'x':
                a(f"v_mfma_f32_16x16x32_bf16 v[{d}:{d+3}], a[{x}:{x+3}], v[{w}:{w+3}], v[{d}:{d+3}]"); d = None
            if d: a(f"v_mfma_f32_16x16x32_bf16 v[{d}:{d+3}], v[{w}:{w+3}], a[{x}:{x+3}], v[{d}:{d+3}]")
        if g == NGAP - (5 if shape == 'q' else 10): a("s_waitcnt vmcnt(8)\ns_barrier")
        for t in pats[g % len(pats)]:
            n += 1
            if t == 'D':
                a(f"buffer_load_dwordx4 v{17+((nd>>2)&1)}, s[4:7], s40 offen offset:{(nd%4)*1024} lds"); nd += 1
            if t == 'r':
                r = 128 + 2*((nr+4)%8); a(f"ds_read_b64_tr_b16 v[{r}:{r+1}], v13 offset:{(nr%64)*512}"); nr += 1
            if t == 'b':
                r = 4*((nb+4)%16); a(f"ds_read_b128 a[{r}:{r+3}], v14 offset:{32768+(nb%32)*1024}"); nb += 1
            if t == 'v': a(f"v_mul_f32 v{160+n%16}, s42, v{160+n%16}")
            if t == 'c': a(f"v_cvt_pk_bf16_f32 v{200+n%8}, v{160+n%16}, v{161+n%16}")
            if t == 'E': a(f"v_exp_f32_e64 v{150+n%8}, v{128+n%16}")
            if t == 'V': a(f"v_mul_f32_e64 v{160+n%16}, s42, v{160+n%16}")
            if t == 'P': a(f"v_pk_mul_f32 v[{160+2*(n%8)}:{161+2*(n%8)}], v[{160+2*(n%8)}:{161+2*(n%8)}], s[42:43]")
            if t == 'w': a(f"s_waitcnt lgkmcnt(3)")
      a("s_add_u32 s40, s40, 32768")
    a(f"""
    s_add_u32 s64, s64, 1
    s_cmp_lt_u32 s64, 10
    s_cbranch_scc1 {kname}_loop
    s_memtime s[26:27]
    s_memrealtime s[22:23]
    s_waitcnt lgkmcnt(0)
    s_waitcnt vmcnt(0)
    s_sub_u32 s26, s26, s24
    v_mov_b32 v4, s20
    v_mov_b32 v5, s22
    v_mov_b32 v6, s26
    v_mov_b32 v7, s26
    s_lshl_b32 s38, s2, 4
    s_add_u32 s38, s38, {kidx*4096}
    v_mov_b32 v3, s38
    v_cmp_eq_u32 vcc, 0, v0
    s_and_saveexec_b64 s[70:71], vcc
    s_cbranch_execz {kname}_end
    buffer_store_dwordx4 v[4:7], v3, s[52:55], 0 offen
    {kname}_end:
    s_endpgm
    """)
cfg = sys.argv[1:]
for i, c in enumerate(cfg):
    gen("k%d_kernel" % i, i, c)
a.write("mb_shape.s")
```
